```python
import torch

def _softmax(x, axis=-1):
    return torch.softmax(x, dim=axis)
def _gelu(x):
    return torch.nn.functional.gelu(x, approximate="tanh")
def _silu(x):
    return torch.nn.functional.silu(x)
def _sigmoid(x):
    return torch.sigmoid(x)
def _layernorm(x, axis=-1, eps=1e-5):
    m = x.mean(dim=axis, keepdim=True)
    v = x.var(dim=axis, keepdim=True, unbiased=False)
    return (x - m) / torch.sqrt(v + eps)
def _scatter_add(tgt, idx, src, axis=0):
    return tgt.clone().index_add_(axis, idx, src)
def _segment_sum(src, seg, n):
    out = torch.zeros((n,) + src.shape[1:], dtype=src.dtype)
    return out.index_add_(0, seg, src)
def _pad(x, pw):
    flat = tuple(v for pair in reversed(pw) for v in pair)
    return torch.nn.functional.pad(x, flat)

kernel_name = 'sequential_preLN__gqa_block_cached__glu_gated_geglu__decode'

def setup_inputs():

    _w = (lambda a: (lambda t: t.to(torch.bfloat16) if t.is_floating_point() else t)(torch.as_tensor(a)))
    def _A_setup():
        B, Sq, D = 1, 1, 512
        Hq, Hkv, Sk, Dh = 32, 8, 32768, 128
        assert Hq % Hkv == 0, (Hq, Hkv)
        return {
            "x": _w((lambda *s: torch.randn(*s, dtype=torch.bfloat16) * 0.05)(B, Sq, D)),
            "k_cache": _w((lambda *s: torch.randn(*s, dtype=torch.bfloat16) * 3.2)(B, Hkv, Sk, Dh)),
            "v_cache": _w((lambda *s: torch.randn(*s, dtype=torch.bfloat16) * 1.6)(B, Hkv, Sk, Dh)),
            "wq": _w((lambda *s: torch.randn(*s, dtype=torch.bfloat16) * 3.2)(D, Hq * Dh) * (D ** -0.5)),
            "wo": _w((lambda *s: torch.randn(*s, dtype=torch.bfloat16) * 1.6)(Hq * Dh, D) * ((Hq * Dh) ** -0.5)),
        }
    _A_in = _A_setup()

    def _B_setup():
        B, S, Dm, Df = 1, 1, 512, 1792
        return {
            "x": _w((lambda *s: torch.randn(*s, dtype=torch.bfloat16) * 0.05)(B, S, Dm)),
            "w_gate": _w((lambda *s: torch.randn(*s, dtype=torch.bfloat16) * 1.6)(Dm, Df) * (Dm ** -0.5)),
            "w_up": _w((lambda *s: torch.randn(*s, dtype=torch.bfloat16) * 1.6)(Dm, Df) * (Dm ** -0.5)),
            "w_down": _w((lambda *s: torch.randn(*s, dtype=torch.bfloat16) * 1.6)(Df, Dm) * (Df ** -0.5)),
        }
    _B_in = _B_setup()

    return {
        "A_x": _A_in["x"],
        "A_k_cache": _A_in["k_cache"],
        "A_v_cache": _A_in["v_cache"],
        "A_wq": _A_in["wq"],
        "A_wo": _A_in["wo"],
        "B_x": _B_in["x"],
        "B_w_gate": _B_in["w_gate"],
        "B_w_up": _B_in["w_up"],
        "B_w_down": _B_in["w_down"],
    }

def reference(A_x, A_k_cache, A_v_cache, A_wq, A_wo, B_x, B_w_gate, B_w_up, B_w_down):
    def _A_ref(x, k_cache, v_cache, wq, wo):
        B, Sq, D = x.shape
        Hq, Dh = 32, 128
        Hkv = k_cache.shape[1]
        rep = Hq // Hkv
        q = (lambda x, *d: x.permute(*d))((x @ wq).reshape(B, Sq, Hq, Dh), 0, 2, 1, 3)
        k = (lambda x, n, axis: torch.repeat_interleave(x, n, dim=axis))(k_cache, rep, axis=1)
        v = (lambda x, n, axis: torch.repeat_interleave(x, n, dim=axis))(v_cache, rep, axis=1)
        scores = torch.einsum("bhqd,bhkd->bhqk", q, k) * (Dh ** -0.5)
        p = _softmax(scores, axis=-1)
        o = torch.einsum("bhqk,bhkd->bhqd", p, v)
        return (lambda x, *d: x.permute(*d))(o, 0, 2, 1, 3).reshape(B, Sq, Hq * Dh) @ wo

    def _B_ref(x, w_gate, w_up, w_down):
        g = torch.einsum("bsd,df->bsf", x, w_gate)
        u = torch.einsum("bsd,df->bsf", x, w_up)
        h = _gelu(g) * u
        return torch.einsum("bsf,fd->bsd", h, w_down)

    x = A_x
    h = x + _A_ref(_layernorm(x, axis=-1), A_k_cache, A_v_cache, A_wq, A_wo)
    h2 = h + _B_ref(_layernorm(h, axis=-1), B_w_gate, B_w_up, B_w_down)
    return h2
```

```python
import re
TRANS = ("v_exp_", "v_log_", "v_rcp_", "v_rsq_", "v_sqrt_", "v_sin_", "v_cos_")
def regs_of(tok):
    tok = tok.strip()
    t = tok.lstrip("-")
    m = re.fullmatch(r"abs\((.*)\)", t) or re.fullmatch(r"\|(.*)\|", t)
    if m: t = m.group(1)
    m = re.fullmatch(r"([vsa])\[(\d+):(\d+)\]", t)
    if m: return {(m.group(1), i) for i in range(int(m.group(2)), int(m.group(3)) + 1)}
    m = re.fullmatch(r"([vsa])(\d+)", t)
    if m: return {(m.group(1), int(m.group(2)))}
    if t in ("vcc", "vcc_lo", "vcc_hi"): return {("s", "vcc")}
    if t in ("exec", "exec_lo", "exec_hi"): return {("s", "exec")}
    if t == "m0": return {("s", "m0")}
    return set()
class Ins:
    def __init__(self, text):
        self.text = text
        t = text.split(";")[0].strip()
        self.label = t[:-1] if t.endswith(":") else None
        self.op = ""; self.ops = []; self.mods = ""
        self.w = set(); self.r = set()
        self.kind = "other"
        if self.label or not t or t.startswith("."):
            self.kind = "label" if self.label else "dir"; return
        parts = t.split(None, 1)
        self.op = parts[0]
        rest = parts[1] if len(parts) > 1 else ""
        rest = re.sub(r"(quad_perm|op_sel|op_sel_hi|neg_lo|neg_hi):\[([^\]]*)\]", lambda m: m.group(1) + ":" + m.group(2).replace(",", "_"), rest)
        rest = re.sub(r"hwreg\([^)]*\)", "hwreg", rest)
        toks = [x.strip() for x in rest.split(",")] if rest else []
        if toks:
            last = toks[-1].split()
            toks[-1] = last[0] if last else ""
            self.mods = " ".join(last[1:])
        self.ops = toks
        for x in toks: assert " " not in x, text
        op = self.op
        R = [regs_of(x) for x in toks]
        allr = set().union(*R) if R else set()
        if op.startswith("v_mfma"):
            self.kind = "mfma"; self.w = R[0]; self.A = R[1]; self.B = R[2]; self.C = R[3]
            self.r = R[1] | R[2] | R[3]
            self.passes = 8 if "32x32" in op else 4
            assert op in ("v_mfma_f32_16x16x32_bf16", "v_mfma_f32_32x32x16_bf16"), op
        elif op.startswith("v_"):
            self.kind = "valu"
            self.dpp = any(k in self.mods for k in ("row_", "quad_perm", "wave_", "bank_mask"))
            self.trans = op.startswith(TRANS)
            self.perml = op.startswith("v_permlane")
            self.rdlane = op.startswith(("v_readlane", "v_readfirstlane"))
            if self.perml: self.w = R[0] | R[1]; self.r = R[0] | R[1]
            elif op.startswith("v_nop"): pass
            else:
                self.w = set(R[0]); self.r = set().union(*R[1:]) if len(R) > 1 else set()
                if op.startswith(("v_fmac", "v_pk_fmac", "v_writelane", "v_dot2c")) or self.dpp: self.r |= R[0]
                if op.startswith("v_cndmask") and len(toks) == 3: self.r |= {("s", "vcc")}
                assert not op.startswith(("v_add_co", "v_addc", "v_sub_co", "v_cmpx", "v_div_")), op
        elif op.startswith(("buffer_", "global_", "flat_")):
            self.kind = "vmem"
            self.lds = " lds" in (" " + self.mods) or "load_lds" in op
            self.store = "store" in op or ("atomic" in op)
            if op.startswith(("buffer_wbl2", "buffer_inv")): self.r = set()
            elif "load" in op and not self.lds: self.w = R[0]; self.r = set().union(*R[1:])
            elif "atomic" in op and "sc0" in self.mods: self.w = R[0]; self.r = set().union(*R[1:])
            else: self.r = allr
            self.wide = self.store and ("x4" in op or "x3" in op)
            if self.wide:
                self.data = R[0] if op.startswith("buffer_") else R[1]
            if self.lds: self.r |= {("s", "m0")}
        elif op.startswith("ds_"):
            self.kind = "ds"
            if op.startswith(("ds_read", "ds_bpermute", "ds_permute", "ds_swizzle")) or "rtn" in op:
                self.w = R[0]; self.r = set().union(*R[1:]) if len(R) > 1 else set()
                if "d16" in op: self.r |= R[0]
            else: self.r = allr
        elif op.startswith("s_"):
            self.kind = "salu"
            if op == "s_nop": self.kind = "nop"; self.n = int(toks[0]) + 1
            elif op.startswith(("s_cbranch", "s_branch")): self.kind = "branch"; self.target = toks[0]
            elif op.startswith(("s_cmp", "s_waitcnt", "s_barrier", "s_sleep", "s_endpgm", "s_setprio", "s_bitcmp")): self.r = allr
            else:
                self.w = set(R[0]) if R else set(); self.r = set().union(*R[1:]) if len(R) > 1 else set()
                if "saveexec" in op: self.w |= {("s", "exec")}
        else:
            raise ValueError("unknown instruction: " + text)
    def states(self):
        if self.kind in ("label", "dir"): return 0
        if self.kind == "nop": return self.n
        return 1
def isv(S): return {x for x in S if x[0] in ("v", "a")}
def iss(S): return {x for x in S if x[0] == "s"}
def need(p, c):
    n = 0
    if p.kind == "valu":
        wv = isv(p.w); ws = iss(p.w)
        if c.kind == "mfma" and wv & c.r: n = max(n, 2)
        if c.kind == "valu":
            if (c.dpp or c.perml) and wv & c.r: n = max(n, 2)
            if c.rdlane and wv & c.r: n = max(n, 1)
            if p.trans and wv & (c.r): n = max(n, 1)
            if ws & c.r: n = max(n, 4 if c.rdlane or c.op.startswith("v_writelane") else 2)
        if c.kind == "vmem" and ws & c.r: n = max(n, 5)
        if c.kind == "salu" and ws & c.r: n = max(n, 1)
    if p.kind == "mfma":
        big = {4: 8, 8: 12}[p.passes]; mid = {4: 6, 8: 10}[p.passes]; war = {4: 3, 8: 7}[p.passes]
        if c.kind == "mfma":
            if p.w & (c.A | c.B): n = max(n, big)
            if p.w & c.C and not (p.w == c.C and p.passes == c.passes): n = max(n, mid)
            if p.w & c.w and not (p.w == c.C): n = max(n, big)
        elif c.kind in ("valu", "vmem", "ds"):
            if p.w & (c.r | c.w): n = max(n, big)
            if c.kind == "valu" and p.C & c.w: n = max(n, war)
    if p.kind == "salu" and ("s", "m0") in p.w and c.kind == "vmem" and c.lds: n = max(n, 1)
    if p.kind == "vmem" and getattr(p, "wide", False):
        if c.kind in ("valu", "mfma") and p.data & c.w: n = max(n, 2)
        elif p.data & c.w: n = max(n, 1)
    return n
def required_pad(hist, c):
    pad = 0; dist = 0
    for p in reversed(hist):
        if dist >= 24: break
        k = need(p, c)
        if k > dist: pad = max(pad, k - dist)
        dist += p.states()
    return pad
def fix(lines):
    out = []
    for ln in lines:
        for t in ln.split("\n"):
            ins = Ins(t)
            if ins.kind not in ("label", "dir"):
                pad = required_pad(out, ins)
                while pad > 0:
                    k = min(pad, 16); out.append(Ins(f"s_nop {k-1}")); pad -= k
            out.append(ins)
    pos = {i.label: n for n, i in enumerate(out) if i.label}
    for n, b in enumerate(out):
        if b.kind == "branch" and b.target in pos:
            hist = out[max(0, n - 40):n + 1]
            for c in out[pos[b.target]:pos[b.target] + 30]:
                if c.kind not in ("label", "dir"):
                    pad = required_pad(hist, c)
                    if pad: raise RuntimeError(f"hazard on edge {b.text} -> {c.text}: short by {pad}")
                hist.append(c)
                if c.op in ("s_branch", "s_endpgm"): break
    return [i.text for i in out]
class VM:
    def __init__(self): self.n = 0; self.done = 0
    def issue(self): self.n += 1; return self.n
    def wait(self, opid):
        if opid <= self.done: return None
        k = self.n - opid
        assert 0 <= k <= 63, k
        self.done = opid
        return f"s_waitcnt vmcnt({k})"
```

```python
import sys
from asmlib import fix, VM

NAME = "sequential_preLN__gqa_block_cached__glu_gated_geglu__decode"
HEADER = open("cdna_kernels/" + NAME + ".s.ref").read().split("; Override launch")[0]

WS_Q = 0x0
WS_P1 = 0x10000
P1_STRIDE = 2176
WS_P2 = 0xA0000
WS_P3 = 0xB0000
WS_STAMP = 0x200000
L_Q = 0
L_X = 1024
L_M = 2048
L_L = 2176
L_B = 2304
L_H = 3328
L_G = 5376
L_D = 5888
L_WO = 6400
L_GU = 22784
L_WD = 39168
L_K = 47360
KRING = 3
VRING = 5
LDS_BYTES = L_K + 8 * KRING * 4096

LOG2E = 0x3FB8AA3B
SCALE = 0x3DB504F3
FULL = "row_mask:0xf bank_mask:0xf"
SPIN_MAX = 20000


def gen(D=4, nt=True, hmap="xcd", inter="wgtile", flag="atomic", stamps=False, wnt=False, quad=True,
        warm=True, sleep=1, dump=False, xp=(), qsleep=8, prio=True, wdepth=3, wlate=()):
    C = []
    A = C.append
    ntf = " nt" if nt else ""
    wntf = " nt" if wnt else ""
    nstamp = [0]

    def stamp():
        if not stamps:
            return
        k = nstamp[0]
        nstamp[0] += 1
        assert k < 16
        A(f"s_memrealtime s[{64 + 2 * k}:{65 + 2 * k}]")

    def stamp_at(k):
        if stamps:
            A(f"s_memrealtime s[{64 + 2 * k}:{65 + 2 * k}]")

    def stamp_store():
        if not stamps:
            return
        A("s_waitcnt lgkmcnt(0)")
        A("s_mov_b64 exec, 1")
        A("s_lshl_b32 s4, s2, 4\ns_add_u32 s4, s4, s3\ns_lshl_b32 s4, s4, 6")
        A(f"s_add_u32 s4, s4, {WS_STAMP}")
        A("v_mov_b32 v1, s4")
        A("s_getreg_b32 s94, hwreg(HW_REG_XCC_ID)")
        for q in range(4):
            for i in range(4):
                A(f"v_mov_b32 v{4 + i}, s{64 + 2 * (4 * q + i)}")
            A(f"global_store_dwordx4 v1, v[4:7], s[38:39] offset:{16 * q}")
            A("s_nop 1")

    def rowsum(a, op="add"):
        for s in (8, 4, 2, 1):
            A(f"v_{op}_f32_dpp v{a}, v{a}, v{a} row_ror:{s} {FULL}")

    def xrow(a, t, op="add"):
        A(f"v_mov_b32 v{t}, v{a}")
        A(f"v_permlane16_swap_b32 v{a}, v{t}")
        A(f"v_{op}_f32 v{a}, v{a}, v{t}")
        A(f"v_mov_b32 v{t}, v{a}")
        A(f"v_permlane32_swap_b32 v{a}, v{t}")
        A(f"v_{op}_f32 v{a}, v{a}, v{t}")

    def rbf(a, t=None):
        t = a if t is None else t
        A(f"v_cvt_pk_bf16_f32 v{t}, v{a}, v{a}")
        A(f"v_lshlrev_b32 v{a}, 16, v{t}")

    def ln_stats(vals, mean, den, rden, t0, t1, tmp):
        A(f"v_add_f32 v{t0}, v{vals[0]}, v{vals[1]}")
        A(f"v_add_f32 v{t1}, v{vals[2]}, v{vals[3]}")
        A(f"v_add_f32 v{mean}, v{vals[4]}, v{vals[5]}")
        A(f"v_add_f32 v{den}, v{vals[6]}, v{vals[7]}")
        A(f"v_add_f32 v{t0}, v{t0}, v{t1}")
        A(f"v_add_f32 v{mean}, v{mean}, v{den}")
        A(f"v_add_f32 v{mean}, v{mean}, v{t0}")
        rowsum(mean)
        xrow(mean, t0)
        A(f"v_mul_f32 v{mean}, 0x3b000000, v{mean}")
        for i in range(8):
            A(f"v_sub_f32 v{tmp[i]}, v{vals[i]}, v{mean}")
        A(f"v_mul_f32 v{den}, v{tmp[0]}, v{tmp[0]}")
        A(f"v_mul_f32 v{t1}, v{tmp[1]}, v{tmp[1]}")
        for i in range(2, 8, 2):
            A(f"v_fmac_f32 v{den}, v{tmp[i]}, v{tmp[i]}")
            A(f"v_fmac_f32 v{t1}, v{tmp[i + 1]}, v{tmp[i + 1]}")
        A(f"v_add_f32 v{den}, v{den}, v{t1}")
        rowsum(den)
        xrow(den, t0)
        A(f"v_mul_f32 v{den}, 0x3b000000, v{den}")
        A(f"v_cvt_pk_bf16_f32 v{t0}, v{mean}, v{den}")
        A(f"v_lshlrev_b32 v{mean}, 16, v{t0}")
        A(f"v_and_b32 v{den}, 0xffff0000, v{t0}")
        A(f"v_add_f32 v{den}, 0x3727c5ac, v{den}")
        rbf(den)
        A(f"v_sqrt_f32 v{t0}, v{den}")
        A(f"v_rsq_f32 v{t1}, v{den}")
        A(f"v_fma_f32 v{den}, -v{t0}, v{t0}, v{den}")
        A(f"v_mul_f32 v{t1}, 0.5, v{t1}")
        A(f"v_fma_f32 v{den}, v{den}, v{t1}, v{t0}")
        rbf(den)
        A(f"v_rcp_f32 v{rden}, v{den}")

    def ln_apply(x, mean, den, rden, t0, t1):
        A(f"v_sub_f32 v{x}, v{x}, v{mean}")
        rbf(x)
        A(f"v_mul_f32 v{t0}, v{x}, v{rden}")
        A(f"v_fma_f32 v{t1}, -v{t0}, v{den}, v{x}")
        A(f"v_fma_f32 v{x}, v{t1}, v{rden}, v{t0}")
        rbf(x)

    def poll(label, loads, regs, t, slp=None):
        A(f"s_mov_b32 s5, 0")
        A(f"{label}:")
        for l in loads:
            A(l)
        A("s_waitcnt vmcnt(0)")
        regs = list(regs)
        if len(regs) % 2 == 0:
            A(f"v_max_u32 v{t}, v{regs[0]}, v{regs[1]}")
            rest = regs[2:]
        else:
            A(f"v_max3_u32 v{t}, v{regs[0]}, v{regs[1]}, v{regs[2]}")
            rest = regs[3:]
        for i in range(0, len(rest), 2):
            A(f"v_max3_u32 v{t}, v{t}, v{rest[i]}, v{rest[i + 1]}")
        A(f"v_cmp_eq_u32 vcc, -1, v{t}")
        A(f"s_cbranch_vccz {label}_ok")
        A("s_add_u32 s5, s5, 1")
        A(f"s_cmp_lt_u32 s5, {SPIN_MAX}")
        A(f"s_cbranch_scc0 {label}_ok")
        slp = sleep if slp is None else slp
        if slp:
            A(f"s_sleep {slp}")
        A(f"s_branch {label}")
        A(f"{label}_ok:")

    stamp_at(0)
    A("s_cmp_ge_u32 s2, 256")
    A("s_cbranch_scc1 L_end")
    A("s_load_dwordx16 s[16:31], s[0:1], 0")
    A("s_load_dwordx8 s[32:39], s[0:1], 64")
    A("v_lshrrev_b32 v1, 6, v0")
    A("v_and_b32 v0, 63, v0")
    A("v_readfirstlane_b32 s3, v1")
    A("s_and_b32 s6, s2, 7")
    A("s_lshr_b32 s7, s2, 3")
    if hmap == "xcd":
        A("s_mov_b32 s8, s6")
        A("s_mov_b32 s9, s7")
    else:
        A("s_and_b32 s8, s7, 7")
        A("s_lshr_b32 s9, s7, 3\ns_lshl_b32 s10, s6, 2\ns_add_u32 s9, s9, s10")
    if warm:
        A("s_getpc_b64 s[48:49]")
        A("L_pc:")
        A(f"s_sub_u32 s48, s48, L_pc-{NAME}_kernel\ns_subb_u32 s49, s49, 0")
        A("s_lshl_b32 s4, s3, 11")
        A("v_lshl_add_u32 v2, v0, 4, s4")
        A("v_add_u32 v3, 1024, v2")
        A(f"s_mov_b32 s4, L_codeend-{NAME}_kernel-16")
        A("v_min_u32 v2, s4, v2\nv_min_u32 v3, s4, v3")
        A("global_load_dwordx4 v[12:15], v2, s[48:49]")
        A("global_load_dwordx4 v[12:15], v3, s[48:49]")
    A("s_cmp_eq_u32 s3, 8")
    A("s_cbranch_scc0 L_stream")
    if prio: A("s_setprio 3")
    if "svcoff" in xp: A("s_waitcnt lgkmcnt(0)\ns_branch L_svcbar")
    A("v_lshlrev_b32 v1, 4, v0")
    A("s_lshl_b32 s10, s6, 5\ns_add_u32 s10, s10, s7")
    A("v_lshrrev_b32 v2, 1, v0\nv_and_b32 v3, 1, v0\nv_lshlrev_b32 v2, 17, v2\nv_lshl_add_u32 v2, v3, 4, v2")
    A("s_lshl_b32 s4, s10, 5")
    A("v_add_u32 v2, s4, v2")
    for i in range(4):
        A(f"v_mov_b32 v{100 + i}, -1")
    A("s_lshl_b32 s4, s6, 10\nv_add_u32 v3, s4, v1")
    A("s_mov_b32 s42, 0x400000\ns_mov_b32 s43, 0x20000\ns_mov_b32 s4, 0\ns_movk_i32 s5, 0x2000")
    A("s_cmp_eq_u32 s7, 0")
    A("s_waitcnt lgkmcnt(0)")
    A("s_cbranch_scc0 L_noqclear")
    A(f"global_store_dwordx4 v3, v[100:103], s[38:39] sc1")
    A("L_noqclear:")
    A("s_mov_b32 s40, s22\ns_and_b32 s41, s23, 0xffff")
    A("global_load_dwordx4 v[4:7], v1, s[16:17]")
    WQ = 32
    for i in range(16):
        A(f"buffer_load_dwordx4 v[{WQ + 4 * i}:{WQ + 4 * i + 3}], v2, s[40:43], s4 offen{wntf}")
        if i < 15:
            A("s_add_u32 s4, s4, s5")
    A("s_branch L_service")
    A("L_stream:")

    vKS = (1, 2, 3, 4)
    vKR = (5, 6, 7, 8)
    vV, vM, vML, vL = 9, 10, 11, 12
    PK = (13, 14)
    vAl = 15
    SEL = (16, 17, 18, 19)
    S = (20, 21, 22, 23)
    T = (24, 25, 26, 27)
    BB = 28
    vT2 = 38
    ACC = (40, 44)
    QF = 48
    KF = 64
    VR = [80 + 16 * i for i in range(VRING)]
    A(f"v_lshlrev_b32 v{vV}, 4, v0")
    A("v_lshrrev_b32 v24, 4, v0")
    A("v_lshlrev_b32 v25, 6, v24")
    A(f"v_xor_b32 v{vKS[0]}, v{vV}, v25")
    for i in (1, 2, 3):
        A(f"v_xor_b32 v{vKS[i]}, {16 * i}, v{vKS[0]}")
    A("s_lshl_b32 s10, s8, 23")
    if inter == "wgtile":
        A("s_lshl_b32 s11, s9, 18\ns_add_u32 s10, s10, s11\ns_lshl_b32 s11, s3, 12\ns_add_u32 s10, s10, s11")
        step = 8 * 4096
    elif inter == "contig":
        A("s_lshl_b32 s11, s9, 18\ns_add_u32 s10, s10, s11\ns_lshl_b32 s11, s3, 15\ns_add_u32 s10, s10, s11")
        step = 4096
    elif inter == "global":
        A("s_lshl_b32 s11, s9, 15\ns_add_u32 s10, s10, s11\ns_lshl_b32 s11, s3, 12\ns_add_u32 s10, s10, s11")
        step = 256 * 4096
    A("s_mov_b32 s11, s10")
    A(f"s_mul_i32 s56, s3, {KRING * 4096}\ns_add_u32 s56, s56, {L_K}")
    A("s_mov_b32 m0, s56")
    A("s_mov_b32 s42, 0x4000000\ns_mov_b32 s43, 0x20000\ns_mov_b32 s46, 0x4000000\ns_mov_b32 s47, 0x20000")
    A("s_waitcnt lgkmcnt(0)")
    A("s_mov_b32 s40, s18\ns_and_b32 s41, s19, 0xffff\ns_mov_b32 s44, s20\ns_and_b32 s45, s21, 0xffff")
    vm = VM()
    ids = {}
    order = ["K0", "V0", "K1", "V1", "K2", "V2", "V3", "V4", "K3", "K4", "K5", "V5", "K6", "V6", "K7", "V7"]
    seq = [(g[0], int(g[1]), u) for g in order for u in range(4)]

    def W(opid):
        w = vm.wait(opid)
        if w:
            A(w)

    def load(n):
        mat, t, u = seq[n]
        if n >= D:
            W(ids[seq[n - D]])
        if mat == "K":
            if u == 0 and t > 0:
                A(f"s_add_u32 m0, s56, {4096 * (t % KRING)}")
            A(f"buffer_load_dwordx4 v{vKS[u]}, s[40:43], s10 offen offset:{1024 * u}{ntf} lds")
            if u == 3:
                A(f"s_add_u32 s10, s10, {step}")
        else:
            r = VR[t % VRING] + 4 * u
            A(f"buffer_load_dwordx4 v[{r}:{r + 3}], v{vV}, s[44:47], s11 offen offset:{1024 * u}{ntf}")
            if u == 3:
                A(f"s_add_u32 s11, s11, {step}")
        ids[seq[n]] = vm.issue()

    def consts():
        A("v_and_b32 v24, 3, v0")
        A("v_mov_b32 v25, 0x0c0c0c0c")
        for k, (lo, e0) in enumerate(((0x0100, 0), (0x0100, 2), (0x0302, 0), (0x0302, 2))):
            A(f"v_mov_b32 v26, {hex(0x0c0c0000 | lo)}")
            A(f"v_mov_b32 v27, {hex((lo << 16) | 0x0c0c)}")
            A(f"v_cmp_eq_u32 vcc, {e0}, v24")
            A(f"v_cndmask_b32 v{SEL[k]}, v25, v26, vcc")
            A(f"v_cmp_eq_u32 vcc, {e0 + 1}, v24")
            A(f"v_cndmask_b32 v{SEL[k]}, v{SEL[k]}, v27, vcc")
        for z in (0, 1, 4, 5, 8, 9):
            A(f"v_mov_b32 v{BB + z}, 0")
        A(f"s_mov_b32 s12, {hex(LOG2E)}")
        A("v_bfe_u32 v25, v0, 2, 2")
        A("v_lshrrev_b32 v26, 4, v0")
        A("v_lshlrev_b32 v27, 8, v25")
        A(f"v_lshl_add_u32 v{vT2}, v26, 4, v27")
        A("v_lshl_add_u32 v25, v24, 2, v25")
        A("v_and_b32 v27, 15, v0")
        A("v_xor_b32 v26, v26, v27")
        A("v_lshlrev_b32 v26, 4, v26")
        A("v_lshl_add_u32 v26, v25, 8, v26")
        for u in range(4):
            A(f"v_xor_b32 v{vKR[u]}, {64 * u}, v26")
            A(f"v_add_u32 v{vKR[u]}, s56, v{vKR[u]}")

    def qk(t, last=False):
        W(ids[("K", t, 3)])
        if "nocomp" in xp and not last: return
        k = KF
        for u in range(4):
            A(f"ds_read_b128 v[{k + 4 * u}:{k + 4 * u + 3}], v{vKR[u]} offset:{4096 * (t % KRING)}")
        for u in range(4):
            c = "0" if u == 0 else f"v[{S[0]}:{S[3]}]"
            A("s_waitcnt lgkmcnt(0)" if stamps else f"s_waitcnt lgkmcnt({3 - u})")
            A(f"v_mfma_f32_16x16x32_bf16 v[{S[0]}:{S[3]}], v[{k + 4 * u}:{k + 4 * u + 3}], v[{QF + 4 * u}:{QF + 4 * u + 3}], {c}")
        for rnd in range(2):
            A(f"v_cvt_pk_bf16_f32 v{T[0]}, v{S[0]}, v{S[1]}")
            A(f"v_cvt_pk_bf16_f32 v{T[1]}, v{S[2]}, v{S[3]}")
            A(f"v_lshlrev_b32 v{S[0]}, 16, v{T[0]}")
            A(f"v_and_b32 v{S[1]}, 0xffff0000, v{T[0]}")
            A(f"v_lshlrev_b32 v{S[2]}, 16, v{T[1]}")
            A(f"v_and_b32 v{S[3]}, 0xffff0000, v{T[1]}")
            if rnd == 0:
                for r in range(4):
                    A(f"v_mul_f32 v{S[r]}, {hex(SCALE)}, v{S[r]}")
        if t == 0:
            A(f"v_max_f32 v{vM}, v{S[0]}, v{S[1]}")
            A(f"v_max3_f32 v{vM}, v{vM}, v{S[2]}, v{S[3]}")
        else:
            A(f"v_max3_f32 v{vM}, v{vM}, v{S[0]}, v{S[1]}")
            A(f"v_max3_f32 v{vM}, v{vM}, v{S[2]}, v{S[3]}")
        xrow(vM, T[0], "max")
        if last:
            A("v_bfe_u32 v26, v0, 2, 2")
            A("v_lshlrev_b32 v26, 5, v26")
            A("s_lshl_b32 s4, s3, 2")
            A("v_add_u32 v27, s4, v26")
            A("s_mov_b64 exec, 0x1111")
            A(f"ds_write_b32 v27, v{vM} offset:{L_M}")
            A("s_mov_b64 exec, -1")
            A("s_waitcnt lgkmcnt(0)")
            A("s_barrier")
            k0 = KF
            A(f"ds_read_b128 v[{k0}:{k0 + 3}], v26 offset:{L_M}")
            A(f"ds_read_b128 v[{k0 + 4}:{k0 + 7}], v26 offset:{L_M + 16}")
            A("s_waitcnt lgkmcnt(0)")
            A(f"v_max3_f32 v{vM}, v{k0}, v{k0 + 1}, v{k0 + 2}")
            A(f"v_max3_f32 v{vM}, v{vM}, v{k0 + 3}, v{k0 + 4}")
            A(f"v_max3_f32 v{vM}, v{vM}, v{k0 + 5}, v{k0 + 6}")
            A(f"v_max_f32 v{vM}, v{vM}, v{k0 + 7}")
        if t > 0:
            A(f"v_mov_b32 v{vAl}, v{vML}")
        A(f"v_mul_f32 v{vML}, s12, v{vM}")
        if t > 0:
            A(f"v_sub_f32 v{vAl}, v{vAl}, v{vML}")
            A(f"v_exp_f32 v{vAl}, v{vAl}")
        for r in range(4):
            A(f"v_fma_f32 v{S[r]}, v{S[r]}, s12, -v{vML}")
        for r in range(4):
            A(f"v_exp_f32 v{S[r]}, v{S[r]}")
        if t > 0:
            for a in range(8):
                A(f"v_mul_f32 v{ACC[0] + a}, v{vAl}, v{ACC[0] + a}")
        A(f"v_add_f32 v{T[0]}, v{S[0]}, v{S[1]}")
        A(f"v_add_f32 v{T[1]}, v{S[2]}, v{S[3]}")
        A(f"v_cvt_pk_bf16_f32 v{PK[0]}, v{S[0]}, v{S[1]}")
        A(f"v_cvt_pk_bf16_f32 v{PK[1]}, v{S[2]}, v{S[3]}")
        if t == 0:
            A(f"v_add_f32 v{vL}, v{T[0]}, v{T[1]}")
        else:
            A(f"v_add_f32 v{T[0]}, v{T[0]}, v{T[1]}")
            A(f"v_fma_f32 v{vL}, v{vL}, v{vAl}, v{T[0]}")
        if last:
            xrow(vL, T[0])
            A("s_mov_b64 exec, 0x1111")
            A(f"ds_write_b32 v27, v{vL} offset:{L_L}")
            A("s_mov_b64 exec, -1")

    def pv(t, last=False):
        v = VR[t % VRING]
        if "nocomp" in xp and not last:
            W(ids[("V", t, 3)]); return

        def perm(i):
            b = BB + 2 + 4 * (i & 1)
            A(f"v_perm_b32 v{b}, v{PK[i >> 1]}, v{PK[i >> 1]}, v{SEL[2 * (i & 1)]}")
            A(f"v_perm_b32 v{b + 1}, v{PK[i >> 1]}, v{PK[i >> 1]}, v{SEL[2 * (i & 1) + 1]}")
        perm(0)
        perm(1)
        if not last:
            W(ids[("V", t, 3)])
        for i in range(4):
            if last:
                W(ids[("V", t, i)])
            b = BB + 2 + 4 * (i & 1)
            for h in range(2):
                c = "0" if (t == 0 and i == 0) else f"v[{ACC[h]}:{ACC[h] + 3}]"
                bb = b if h == 0 else b - 2
                A(f"v_mfma_f32_16x16x32_bf16 v[{ACC[h]}:{ACC[h] + 3}], v[{v + 4 * i}:{v + 4 * i + 3}], v[{bb}:{bb + 3}], {c}")
            if i < 2:
                perm(i + 2)

    NPRE = 4 * (KRING + VRING)
    for n in range(NPRE):
        load(n)
        if n == D - 1:
            consts()
    stamp_at(1)
    A("s_barrier")
    stamp_at(2)
    for u in range(4):
        A(f"ds_read_b128 v[{QF + 4 * u}:{QF + 4 * u + 3}], v{vT2} offset:{L_Q + 64 * u}")
    A("s_waitcnt lgkmcnt(0)")
    blocks = []
    for t in range(7):
        blocks += [(qk, t, ("K", t, 3)), (pv, t, ("V", t, 3))]
    bi = 0
    for n in range(NPRE, 64):
        mat, t, u = seq[n]
        needb = 2 * (t - KRING) + 1 if mat == "K" else 2 * (t - VRING) + 2
        while bi < needb:
            blocks[bi][0](blocks[bi][1])
            bi += 1
        load(n)
        if bi < len(blocks) and blocks[bi][2] in ids and ids[blocks[bi][2]] <= vm.done:
            blocks[bi][0](blocks[bi][1])
            bi += 1
    while bi < len(blocks):
        blocks[bi][0](blocks[bi][1])
        bi += 1
    A("s_lshr_b32 s13, s7, 4\ns_lshl_b32 s4, s6, 1\ns_add_u32 s13, s13, s4")
    A("s_and_b32 s14, s7, 15")
    A("s_min_u32 s15, s7, 27\ns_mul_i32 s4, s6, 28\ns_add_u32 s15, s15, s4")
    qk(7, last=True)
    stamp_at(3)
    pv(7, last=True)
    stamp_at(4)
    A(f"v_add_u32 v16, s56, v{vV}")
    A(f"s_lshl_b32 s4, s3, 8\nv_lshl_add_u32 v17, v0, 2, s4")
    A(f"v_add_u32 v19, {L_K}, v17")
    A(f"v_add_u32 v20, {L_K + 4 * KRING * 4096}, v17")
    A(f"s_lshl_b32 s4, s8, 5\ns_add_u32 s4, s4, s9\ns_mul_i32 s4, s4, {P1_STRIDE}\ns_add_u32 s4, s4, {WS_P1}")
    A("v_add_u32 v18, s4, v17")
    A(f"ds_write_b128 v16, v[{ACC[0]}:{ACC[0] + 3}]")
    A(f"ds_write_b128 v16, v[{ACC[1]}:{ACC[1] + 3}] offset:1024")
    A("s_waitcnt lgkmcnt(0)")
    A("s_barrier")
    R0 = 72
    for i in range(8):
        A(f"ds_read_b32 v{R0 + i}, v{19 + (i >> 2)} offset:{KRING * 4096 * (i & 3)}")
    A("s_waitcnt lgkmcnt(0)")
    for i in range(4):
        A(f"v_add_f32 v{R0 + i}, v{R0 + i}, v{R0 + 4 + i}")
    A(f"v_add_f32 v{R0}, v{R0}, v{R0 + 1}")
    A(f"v_add_f32 v{R0 + 2}, v{R0 + 2}, v{R0 + 3}")
    A(f"v_add_f32 v{R0}, v{R0}, v{R0 + 2}")

    def store_quad(val, addr, base):
        if quad:
            for i in (1, 2, 3):
                A(f"v_mov_b32_dpp v{val + i}, v{val} quad_perm:[{i},{i},{i},{i}] {FULL}")
            A("s_mov_b32 exec_lo, 0x11111111\ns_mov_b32 exec_hi, 0x11111111")
            A(f"global_store_dwordx4 v{addr}, v[{val}:{val + 3}], {base} sc1")
            A("s_mov_b64 exec, -1")
        else:
            A(f"global_store_dword v{addr}, v{val}, {base} sc1")
    store_quad(R0, 18, "s[38:39]")
    vm.issue()
    A("s_cmp_eq_u32 s3, 7")
    A("s_cbranch_scc0 L_noml")
    A("v_bfe_u32 v16, v0, 2, 2\nv_lshlrev_b32 v17, 5, v16")
    A(f"ds_read_b128 v[80:83], v17 offset:{L_L}")
    A(f"ds_read_b128 v[84:87], v17 offset:{L_L + 16}")
    A("s_add_u32 s4, s4, 2048\nv_lshl_add_u32 v16, v16, 3, s4")
    A("s_waitcnt lgkmcnt(0)")
    for i in range(4):
        A(f"v_add_f32 v{80 + i}, v{80 + i}, v{84 + i}")
    A("v_add_f32 v80, v80, v81\nv_add_f32 v82, v82, v83\nv_add_f32 v81, v80, v82")
    A(f"v_mov_b32 v80, v{vML}")
    A("s_mov_b64 exec, 0x1111")
    A("global_store_dwordx2 v16, v[80:81], s[38:39] sc1")
    A("s_mov_b64 exec, -1")
    A("L_noml:")
    stamp_at(5)
    A("s_lshr_b32 s4, s13, 1\ns_lshl_b32 s4, s4, 5")
    A(f"v_and_b32 v16, 15, v0\nv_add_u32 v16, s4, v16\nv_mul_u32_u24 v16, {P1_STRIDE}, v16")
    A("s_and_b32 s4, s13, 1\ns_lshl_b32 s4, s4, 1\ns_lshr_b32 s5, s3, 2\ns_add_u32 s4, s4, s5")
    A(f"s_lshl_b32 s5, s4, 3\ns_add_u32 s5, s5, {WS_P1 + 2048}")
    A("v_add_u32 v20, s5, v16")
    A(f"v_add_u32 v21, {16 * P1_STRIDE}, v20")
    A(f"s_lshl_b32 s4, s4, 6\ns_and_b32 s5, s3, 3\ns_lshl_b32 s5, s5, 8\ns_add_u32 s4, s4, s5\ns_add_u32 s4, s4, {WS_P1}")
    A("v_lshrrev_b32 v17, 4, v0\nv_lshl_add_u32 v16, v17, 4, v16\nv_add_u32 v22, s4, v16")
    A(f"v_add_u32 v23, {16 * P1_STRIDE}, v22")
    A("v_bfe_u32 v16, v0, 2, 2\nv_lshlrev_b32 v16, 9, v16\nv_lshl_add_u32 v16, v17, 6, v16")
    A("v_and_b32 v17, 3, v0\nv_lshl_add_u32 v16, v17, 3, v16\ns_lshl_b32 s4, s3, 11\nv_add_u32 v16, s4, v16")
    WB = 88
    for tau in range(2):
        for t in range(2):
            r = WB + 4 * tau + 2 * t
            A(f"ds_read_b64_tr_b16 v[{r}:{r + 1}], v16 offset:{L_WO + 256 * t + 32 * tau}")
    G0 = 56
    vCol = G0 + 9
    A("v_bfe_u32 v16, v0, 4, 1\nv_lshrrev_b32 v17, 5, v0\nv_lshl_add_u32 v16, v16, 1, v17")
    A("v_and_b32 v17, 15, v0\nv_lshl_add_u32 v16, v17, 2, v16")
    A(f"s_lshl_b32 s4, s3, 6\nv_add_u32 v{vCol}, s4, v16")
    A(f"v_lshlrev_b32 v16, 4, v{vCol}\nv_lshlrev_b32 v17, 1, v{vCol}")
    A(f"ds_read_b128 v[{G0}:{G0 + 3}], v16 offset:{L_GU}")
    A(f"ds_read_b128 v[{G0 + 4}:{G0 + 7}], v16 offset:{L_GU + 8192}")
    A(f"ds_read_u16_d16_hi v{G0 + 8}, v17 offset:{L_X}")
    DW = 112
    A("s_lshl_b32 s4, s3, 7\nv_lshl_add_u32 v16, v0, 1, s4")
    for r in range(8):
        A(f"ds_read_u16_d16_hi v{DW + r}, v16 offset:{L_WD + 1024 * r}")
    A("s_waitcnt lgkmcnt(0)")
    GW = 96
    for i in range(8):
        A(f"v_lshlrev_b32 v{GW + 2 * i}, 16, v{G0 + i}")
        A(f"v_and_b32 v{GW + 2 * i + 1}, 0xffff0000, v{G0 + i}")
    D0 = 120
    loads = [f"global_load_dwordx2 v[136:137], v20, s[38:39] sc1",
             f"global_load_dwordx2 v[138:139], v21, s[38:39] sc1"]
    for pi in range(2):
        for t in range(2):
            r = D0 + 8 * pi + 4 * t
            loads.append(f"global_load_dwordx4 v[{r}:{r + 3}], v{22 + pi}, s[38:39] offset:{1024 * t} sc1")
    poll("L_poll1", loads, range(120, 140), 16)
    stamp_at(6)
    A("v_max_f32 v16, v136, v138")
    rowsum(16, "max")
    A("v_sub_f32 v136, v136, v16\nv_sub_f32 v138, v138, v16\nv_exp_f32 v136, v136\nv_exp_f32 v138, v138")
    A("v_mul_f32 v17, v136, v137\nv_fmac_f32 v17, v138, v139")
    rowsum(17)
    A("v_rcp_f32 v17, v17")
    A("v_mul_f32 v136, v136, v17\nv_mul_f32 v138, v138, v17")
    for e in range(8):
        A(f"v_mul_f32 v{D0 + e}, v136, v{D0 + e}")
    for e in range(8):
        A(f"v_fmac_f32 v{D0 + e}, v138, v{D0 + 8 + e}")
    for s in (8, 4, 2, 1):
        for e in range(8):
            A(f"v_add_f32_dpp v{D0 + e}, v{D0 + e}, v{D0 + e} row_ror:{s} {FULL}")
    for e in range(4):
        A(f"v_cvt_pk_bf16_f32 v{128 + e}, v{D0 + 2 * e}, v{D0 + 2 * e + 1}")
    A("s_waitcnt lgkmcnt(0)")
    A(f"v_mfma_f32_16x16x32_bf16 v[132:135], v[128:131], v[{WB}:{WB + 3}], 0")
    A(f"v_mfma_f32_16x16x32_bf16 v[136:139], v[128:131], v[{WB + 4}:{WB + 7}], 0")
    A("s_lshl_b32 s4, s3, 7\nv_lshl_add_u32 v16, v0, 2, s4")
    A("v_cmp_gt_u32 vcc, 16, v0")
    A("v_cndmask_b32 v132, v136, v132, vcc")
    A("s_mov_b32 exec_hi, 0")
    A(f"ds_write_b32 v16, v132 offset:{L_B}")
    A("s_mov_b64 exec, -1")
    A("s_waitcnt lgkmcnt(0)")
    A("s_barrier")
    A("s_cmp_eq_u32 s3, 0")
    A("s_cbranch_scc0 L_nob")
    A("v_and_b32 v16, 31, v0\nv_lshrrev_b32 v17, 5, v0\nv_lshlrev_b32 v16, 2, v16\nv_lshl_add_u32 v17, v17, 9, v16")
    for i in range(4):
        A(f"ds_read_b32 v{120 + i}, v17 offset:{L_B + 128 * i}")
    A(f"s_lshl_b32 s4, s13, 11\ns_lshl_b32 s5, s14, 7\ns_add_u32 s4, s4, s5\ns_add_u32 s4, s4, {WS_P2}")
    A("v_add_u32 v16, s4, v16")
    A("s_waitcnt lgkmcnt(0)")
    A("v_add_f32 v120, v120, v121\nv_add_f32 v122, v122, v123\nv_add_f32 v120, v120, v122")
    A("v_mov_b32 v121, v120\nv_permlane32_swap_b32 v120, v121\nv_add_f32 v120, v120, v121")
    if quad:
        for i in (1, 2, 3):
            A(f"v_mov_b32_dpp v{120 + i}, v120 quad_perm:[{i},{i},{i},{i}] {FULL}")
        A("s_mov_b64 exec, 0x11111111")
        A("global_store_dwordx4 v16, v[120:123], s[38:39] sc1")
    else:
        A("s_mov_b32 exec_hi, 0")
        A("global_store_dword v16, v120, s[38:39] sc1")
    A("s_mov_b64 exec, -1")
    A("L_nob:")
    stamp_at(7)
    A("s_cmp_ge_u32 s7, 28")
    A("s_cbranch_scc1 L_final")
    A(f"s_lshl_b32 s4, s3, 8\ns_add_u32 s4, s4, {WS_P2}")
    A("v_and_b32 v16, 15, v0\nv_lshrrev_b32 v17, 4, v0\nv_lshlrev_b32 v17, 13, v17\nv_lshl_add_u32 v16, v16, 4, v17\nv_add_u32 v20, s4, v16")
    A("v_add_u32 v21, 0x1000, v20")
    A(f"s_lshl_b32 s4, s15, 11\ns_add_u32 s4, s4, {WS_P3}\ns_lshl_b32 s5, s3, 8\ns_add_u32 s4, s4, s5")
    A("v_lshl_add_u32 v22, v0, 2, s4")
    A(f"v_lshlrev_b32 v23, 2, v{vCol}")
    A("v_lshlrev_b32 v24, 5, v0")
    loads = [f"global_load_dwordx4 v[{120 + 4 * i}:{123 + 4 * i}], v{20 + (i >> 1)}, s[38:39] offset:{2048 * (i & 1)} sc1" for i in range(4)]
    poll("L_poll2", loads, range(120, 136), 16)
    stamp_at(8)
    for e in range(4):
        A(f"v_add_f32 v{120 + e}, v{120 + e}, v{124 + e}")
        A(f"v_add_f32 v{128 + e}, v{128 + e}, v{132 + e}")
    for e in range(4):
        A(f"v_add_f32 v{120 + e}, v{120 + e}, v{128 + e}")
    A("v_permlane32_swap_b32 v120, v121\nv_permlane32_swap_b32 v122, v123")
    A("v_add_f32 v120, v120, v121\nv_add_f32 v122, v122, v123")
    A("v_permlane16_swap_b32 v120, v122")
    A("v_add_f32 v120, v120, v122")
    rbf(120)
    A(f"v_add_f32 v120, v120, v{G0 + 8}")
    rbf(120)
    A(f"ds_write_b32 v23, v120 offset:{L_H}")
    A("s_waitcnt lgkmcnt(0)")
    A("s_barrier")
    A(f"ds_read_b128 v[124:127], v24 offset:{L_H}")
    A(f"ds_read_b128 v[128:131], v24 offset:{L_H + 16}")
    A("s_waitcnt lgkmcnt(0)")
    ln_stats(list(range(124, 132)), 16, 17, 18, 19, 25, list(range(132, 140)))
    ln_apply(120, 16, 17, 18, 19, 25)
    for i in range(16):
        A(f"v_mul_f32 v{GW + i}, v120, v{GW + i}")
    for i in range(8):
        A(f"v_permlane32_swap_b32 v{GW + i}, v{GW + 8 + i}")
    for i in range(8):
        A(f"v_add_f32 v{GW + i}, v{GW + i}, v{GW + 8 + i}")
    for i in range(4):
        A(f"v_permlane16_swap_b32 v{GW + i}, v{GW + 4 + i}")
    for i in range(4):
        A(f"v_add_f32 v{GW + i}, v{GW + i}, v{GW + 4 + i}")
    for i in range(2):
        A(f"v_add_f32_dpp v{GW + 8 + i}, v{GW + i}, v{GW + i} row_ror:8 row_mask:0xf bank_mask:0x3")
        A(f"v_add_f32_dpp v{GW + 8 + i}, v{GW + 2 + i}, v{GW + 2 + i} row_ror:8 row_mask:0xf bank_mask:0xc")
    A(f"v_add_f32_dpp v{GW}, v{GW + 8}, v{GW + 8} row_shl:4 row_mask:0xf bank_mask:0x5")
    A(f"v_add_f32_dpp v{GW}, v{GW + 9}, v{GW + 9} row_shr:4 row_mask:0xf bank_mask:0xa")
    A(f"v_add_f32_dpp v{GW}, v{GW}, v{GW} quad_perm:[2,3,0,1] {FULL}")
    A(f"v_add_f32_dpp v{GW}, v{GW}, v{GW} quad_perm:[1,0,3,2] {FULL}")
    A("s_lshl_b32 s4, s3, 6\nv_add_u32 v16, s4, v0")
    A("s_mov_b32 exec_lo, 0x11111111\ns_mov_b32 exec_hi, 0x11111111")
    A(f"ds_write_b32 v16, v{GW} offset:{L_G}")
    A("s_mov_b64 exec, -1")
    A("v_and_b32 v16, 15, v0\nv_lshrrev_b32 v17, 4, v0\nv_lshlrev_b32 v17, 7, v17\nv_lshl_add_u32 v16, v16, 2, v17")
    A("s_waitcnt lgkmcnt(0)")
    A("s_barrier")
    A(f"ds_read_b32 v120, v16 offset:{L_G}")
    A(f"ds_read_b32 v121, v16 offset:{L_G + 64}")
    A("s_waitcnt lgkmcnt(0)")
    A("v_add_f32 v120, v120, v121")
    xrow(120, 121)
    rbf(120)
    A(f"v_mov_b32_dpp v121, v120 row_ror:8 {FULL}")
    A("v_mul_f32 v122, v120, v120")
    A("v_mul_f32 v122, v122, v120")
    A("v_mov_b32 v123, v120")
    A("v_fmac_f32 v123, 0x3d372713, v122")
    A("v_mul_f32 v123, 0xc0135761, v123")
    A("v_exp_f32 v123, v123")
    A("v_add_f32 v123, 1.0, v123")
    A("v_rcp_f32 v123, v123")
    A("v_mul_f32 v120, v120, v123")
    rbf(120)
    A("v_mul_f32 v120, v120, v121")
    rbf(120)
    for r in range(8):
        A(f"v_readlane_b32 s{48 + r}, v120, {r}")
    A(f"v_mul_f32 v124, s48, v{DW}")
    A(f"v_mul_f32 v125, s49, v{DW + 1}")
    for r in range(2, 8):
        A(f"v_fmac_f32 v{124 + (r & 1)}, s{48 + r}, v{DW + r}")
    A("v_add_f32 v124, v124, v125")
    store_quad(124, 22, "s[38:39]")
    stamp_at(9)
    stamp_store()
    A("s_endpgm")
    A("L_final:")
    A("s_sub_u32 s15, s7, 28\ns_lshl_b32 s4, s6, 2\ns_add_u32 s15, s15, s4")
    A("v_and_b32 v16, 3, v0\nv_lshrrev_b32 v17, 2, v0\nv_lshlrev_b32 v17, 11, v17\nv_lshl_add_u32 v17, v16, 4, v17")
    A("v_and_b32 v22, 15, v0\ns_lshl_b32 s4, s15, 5\nv_lshl_add_u32 v18, v22, 1, s4")
    A(f"ds_read_u16_d16_hi v19, v18 offset:{L_X}")
    A("v_lshlrev_b32 v22, 2, v22")
    A("s_cmp_eq_u32 s3, 7")
    A("s_cbranch_scc1 L_final_h")
    A(f"s_lshl_b32 s4, s3, 16\ns_lshl_b32 s5, s15, 6\ns_add_u32 s4, s4, s5\ns_add_u32 s4, s4, {WS_P3}")
    A("v_add_u32 v20, s4, v17\nv_add_u32 v21, 0x8000, v20")
    loads = [f"global_load_dwordx4 v[{120 + 4 * i}:{123 + 4 * i}], v{20 + i}, s[38:39] sc1" for i in range(2)]
    poll("L_poll3", loads, range(120, 128), 16)
    stamp_at(8)
    for e in range(4):
        A(f"v_add_f32 v{120 + e}, v{120 + e}, v{124 + e}")
    A("s_branch L_final_red")
    A("L_final_h:")
    A(f"s_lshl_b32 s5, s15, 6\ns_add_u32 s4, s5, {WS_P2}")
    A("v_add_u32 v20, s4, v17")
    loads = [f"global_load_dwordx4 v[120:123], v20, s[38:39] sc1"]
    poll("L_poll4", loads, range(120, 124), 16)
    stamp_at(8)
    A("L_final_red:")
    A("v_permlane32_swap_b32 v120, v121\nv_permlane32_swap_b32 v122, v123")
    A("v_add_f32 v120, v120, v121\nv_add_f32 v122, v122, v123")
    A("v_permlane16_swap_b32 v120, v122")
    A("v_add_f32 v120, v120, v122")
    A(f"v_add_f32_dpp v120, v120, v120 row_ror:8 {FULL}")
    A(f"v_add_f32_dpp v120, v120, v120 row_ror:4 {FULL}")
    A("v_bfe_u32 v16, v0, 4, 1\nv_lshrrev_b32 v17, 5, v0\nv_lshl_add_u32 v16, v16, 1, v17")
    A("v_and_b32 v17, 3, v0\nv_lshl_add_u32 v16, v17, 2, v16")
    A("s_lshl_b32 s4, s3, 6\nv_lshl_add_u32 v17, v16, 2, s4")
    A("s_mov_b32 exec_lo, 0x000f000f\ns_mov_b32 exec_hi, 0x000f000f")
    A(f"ds_write_b32 v17, v120 offset:{L_D}")
    A("s_mov_b64 exec, -1")
    A("s_cmp_eq_u32 s3, 0")
    A("s_cbranch_scc1 L_final_out")
    A("s_waitcnt lgkmcnt(0)")
    A("s_barrier")
    stamp_at(9)
    stamp_store()
    A("s_endpgm")
    A("L_final_out:")
    A("s_waitcnt lgkmcnt(0)")
    A("s_barrier")
    for i in range(8):
        A(f"ds_read_b32 v{120 + i}, v22 offset:{L_D + 64 * i}")
    A("s_waitcnt vmcnt(0) lgkmcnt(0)")
    rbf(127)
    A("v_add_f32 v127, v127, v19")
    rbf(127)
    A("v_add_f32 v120, v120, v121\nv_add_f32 v122, v122, v123\nv_add_f32 v124, v124, v125")
    A("v_add_f32 v120, v120, v122\nv_add_f32 v124, v124, v126\nv_add_f32 v120, v120, v124")
    rbf(120)
    A("v_add_f32 v120, v120, v127")
    A("v_cvt_pk_bf16_f32 v120, v120, v120")
    A("s_mov_b64 exec, 0xffff")
    A("global_store_short v18, v120, s[34:35]")
    A("s_mov_b64 exec, -1")
    stamp_at(9)
    stamp_store()
    A("s_endpgm")

    A("L_service:")
    stamp_at(1)
    nyoung = 16
    A("s_cmp_eq_u32 s7, 0")
    A("s_cbranch_scc0 L_noqflag")
    A("s_lshl_b32 s4, s6, 5\nv_mov_b32 v104, s4\nv_mov_b32 v105, 1")
    A("s_waitcnt vmcnt(17)")
    A("s_mov_b64 exec, 1")
    A("global_store_dword v104, v105, s[36:37] sc1")
    A("s_mov_b64 exec, -1")
    A("L_noqflag:")
    A(f"s_lshl_b32 s4, s8, 5\ns_add_u32 s4, s4, s9\ns_mul_i32 s4, s4, {P1_STRIDE}\ns_add_u32 s4, s4, {WS_P1}")
    A("v_add_u32 v104, s4, v1")
    if "noclear" in xp: A("s_mov_b64 exec, 1")
    A("global_store_dwordx4 v104, v[100:103], s[38:39] sc1")
    A("global_store_dwordx4 v104, v[100:103], s[38:39] offset:1024 sc1")
    A("s_lshr_b32 s13, s7, 4\ns_lshl_b32 s4, s6, 1\ns_add_u32 s13, s13, s4\ns_and_b32 s14, s7, 15")
    A(f"s_lshl_b32 s4, s13, 11\ns_lshl_b32 s5, s14, 7\ns_add_u32 s4, s4, s5\ns_add_u32 s4, s4, {WS_P2}")
    A("v_add_u32 v105, s4, v1")
    A("s_mov_b64 exec, 1" if "noclear" in xp else "s_mov_b64 exec, 0xff")
    A("global_store_dwordx4 v104, v[100:103], s[38:39] offset:2048 sc1")
    A("global_store_dwordx4 v105, v[100:103], s[38:39] sc1")
    A("s_mov_b64 exec, -1")
    nyoung += 4
    A("s_cmp_ge_u32 s7, 28")
    A("s_cselect_b32 s5, 0, 1")
    A(f"s_min_u32 s15, s7, 27\ns_mul_i32 s4, s6, 28\ns_add_u32 s15, s15, s4\ns_lshl_b32 s4, s15, 11\ns_add_u32 s4, s4, {WS_P3}")
    A("s_cmp_eq_u32 s5, 0")
    A(f"s_cselect_b32 s4, {WS_P3 + 224 * 2048}, s4")
    A("v_add_u32 v106, s4, v1")
    if "noclear" in xp: A("s_mov_b64 exec, 1")
    A("global_store_dwordx4 v106, v[100:103], s[38:39] sc1")
    A("global_store_dwordx4 v106, v[100:103], s[38:39] offset:1024 sc1")
    nyoung += 2
    A("s_mov_b64 exec, -1")
    A(f"s_waitcnt vmcnt({nyoung})")
    stamp_at(2)
    A(f"ds_write_b128 v1, v[4:7] offset:{L_X}")
    A("v_lshlrev_b32 v96, 5, v0")
    A("s_mov_b64 exec, 0xff")
    A("global_load_dword v97, v96, s[36:37] sc1")
    A("s_mov_b64 exec, -1")
    nyoung += 1
    X = list(range(8, 16))
    for i in range(4):
        A(f"v_lshlrev_b32 v{X[2 * i]}, 16, v{4 + i}")
        A(f"v_and_b32 v{X[2 * i + 1]}, 0xffff0000, v{4 + i}")
    ln_stats(X, 16, 17, 18, 19, 20, list(range(22, 30)))
    for i in range(8):
        ln_apply(X[i], 16, 17, 18, 19, 20)
    stamp_at(3)
    Q = list(range(22, 30))
    for i in range(16):
        A(f"s_waitcnt vmcnt({nyoung - 1 - i})")
        qp = "[0,0,2,2]" if i < 8 else "[1,1,3,3]"
        for p in range(4):
            w = WQ + 4 * i + p
            A(f"v_lshlrev_b32 v{100 + 2 * p}, 16, v{w}")
            A(f"v_and_b32 v{101 + 2 * p}, 0xffff0000, v{w}")
        for p in range(8):
            op = "mul" if i == 0 else "fmac"
            A(f"v_{op}_f32_dpp v{Q[p]}, v{X[i & 7]}, v{100 + p} quad_perm:{qp} {FULL}")
    for i in range(4):
        A(f"v_permlane32_swap_b32 v{Q[i]}, v{Q[4 + i]}")
    for i in range(4):
        A(f"v_add_f32 v{Q[i]}, v{Q[i]}, v{Q[4 + i]}")
    for i in range(2):
        A(f"v_permlane16_swap_b32 v{Q[i]}, v{Q[2 + i]}")
    for i in range(2):
        A(f"v_add_f32 v{Q[i]}, v{Q[i]}, v{Q[2 + i]}")
    for m in ("row_ror:8", "row_ror:4", "quad_perm:[2,3,0,1]"):
        for i in range(2):
            A(f"v_add_f32_dpp v{Q[i]}, v{Q[i]}, v{Q[i]} {m} {FULL}")
    A(f"v_cvt_pk_bf16_f32 v16, v{Q[0]}, v{Q[1]}")
    A("v_and_b32 v17, 1, v0\nv_lshlrev_b32 v17, 4, v17\nv_bfe_u32 v18, v0, 4, 1\nv_lshl_add_u32 v17, v18, 2, v17")
    A(f"v_lshrrev_b32 v18, 5, v0\nv_lshl_add_u32 v17, v18, 3, v17\ns_lshl_b32 s4, s10, 5\ns_add_u32 s4, s4, {WS_Q}\nv_add_u32 v17, s4, v17")
    A(f"s_lshl_b32 s4, s8, 10\ns_add_u32 s4, s4, {WS_Q}\nv_add_u32 v19, s4, v1")
    A("s_lshl_b32 s4, 1, s6\ns_lshl_b32 s5, 1, s8\ns_or_b32 s4, s4, s5")
    A("s_mov_b32 s5, 0")
    stamp_at(4)
    A("L_pollf:")
    A("s_waitcnt vmcnt(0)")
    A("v_cmp_ne_u32 vcc, 1, v97")
    A("s_and_b32 s57, vcc_lo, s4")
    A("s_cbranch_scc0 L_pollf_ok")
    A(f"s_add_u32 s5, s5, 1\ns_cmp_lt_u32 s5, {SPIN_MAX}\ns_cbranch_scc0 L_pollf_ok")
    A("s_mov_b64 exec, 0xff")
    A("global_load_dword v97, v96, s[36:37] sc1")
    A("s_mov_b64 exec, -1")
    A("s_branch L_pollf")
    A("L_pollf_ok:")
    A("s_mov_b32 exec_lo, 0x00030003\ns_mov_b32 exec_hi, 0x00030003")
    A("global_store_dword v17, v16, s[38:39] sc1")
    A("s_mov_b64 exec, -1")
    stamp_at(5)
    if qsleep: A(f"s_sleep {qsleep}")
    poll("L_pollq", ["global_load_dwordx4 v[4:7], v19, s[38:39] sc1"], range(4, 8), 16, slp=qsleep)
    stamp_at(6)
    A(f"ds_write_b128 v1, v[4:7] offset:{L_Q}")
    A("s_lshl_b32 s4, s13, 18\ns_lshl_b32 s5, s14, 6\ns_add_u32 s4, s4, s5")
    A("v_lshrrev_b32 v20, 2, v0\nv_and_b32 v21, 3, v0\nv_lshlrev_b32 v20, 10, v20\nv_lshl_add_u32 v20, v21, 4, v20\nv_add_u32 v20, s4, v20")
    A("v_mul_u32_u24 v21, 3584, v0\ns_lshl_b32 s4, s15, 4\nv_add_u32 v21, s4, v21")
    A("s_lshl_b32 s4, s15, 13\nv_add_u32 v22, s4, v1")
    A("s_waitcnt lgkmcnt(0)")
    A("s_barrier")
    stamp_at(7)
    wl = []
    for i in range(16):
        wl.append((L_WO + 1024 * i, "v20", "s[24:25]", "v_add_u32 v20, 0x4000, v20"))
    for i in range(8):
        wl.append((L_GU + 1024 * i, "v21", "s[28:29]", None))
        wl.append((L_GU + 8192 + 1024 * i, "v21", "s[30:31]", f"v_add_u32 v21, {64 * 3584}, v21"))
    for i in range(8):
        wl.append((L_WD + 1024 * i, "v22", "s[32:33]", "v_add_u32 v22, 1024, v22"))
    if "now" in xp: wl = []
    for n, (dst, va, base, upd) in enumerate(wl):
        A(f"s_mov_b32 m0, {dst}")
        if n >= wdepth:
            A(f"s_waitcnt vmcnt({wdepth - 1})")
        A(f"global_load_lds_dwordx4 {va}, {base}{wntf}")
        if upd:
            A(upd)
    stamp_at(8)
    A("s_mov_b32 s5, 0")
    A("L_pollf2:")
    A("s_mov_b64 exec, 0xff")
    A("global_load_dword v97, v96, s[36:37] sc1")
    A("s_waitcnt vmcnt(0)")
    A("v_cmp_ne_u32 vcc, 1, v97")
    A("s_mov_b64 exec, -1")
    A("s_cbranch_vccz L_pollf2_ok")
    A(f"s_add_u32 s5, s5, 1\ns_cmp_lt_u32 s5, {SPIN_MAX}\ns_cbranch_scc1 L_pollf2")
    A("L_pollf2_ok:")
    A(f"v_add_u32 v19, {WS_Q}, v1\nv_add_u32 v20, 0x1000, v19")
    poll("L_pollall", [f"global_load_dwordx4 v[{32 + 4 * i}:{35 + 4 * i}], v{19 + (i >> 2)}, s[38:39] offset:{1024 * (i & 3)} sc1" for i in range(8)],
         range(32, 64), 16, slp=qsleep)
    stamp_at(9)
    A("s_barrier")
    stamp_store()
    A("s_endpgm")
    A("L_svcbar:")
    A("s_barrier")
    A("s_barrier")
    stamp_store()
    A("L_end:")
    A("s_endpgm")
    A("L_codeend:")

    body = fix(C)
    out = HEADER
    out += f"; @launch grid=(256,1,1) block=(576,1,1) lds={LDS_BYTES}\n"
    out += '.amdgcn_target "amdgcn-amd-amdhsa--gfx950"\n.text\n'
    out += f".globl {NAME}_kernel\n.p2align 8\n.type {NAME}_kernel,@function\n{NAME}_kernel:\n"
    out += "\n".join(("" if l.endswith(":") else "    ") + l for l in body) + "\n"
    out += f""".section .rodata,"a"
.p2align 6
.amdhsa_kernel {NAME}_kernel
  .amdhsa_next_free_vgpr 168
  .amdhsa_next_free_sgpr 96
  .amdhsa_accum_offset 168
  .amdhsa_group_segment_fixed_size 0
  .amdhsa_kernarg_size 96
  .amdhsa_user_sgpr_count 2
  .amdhsa_user_sgpr_kernarg_segment_ptr 1
  .amdhsa_system_sgpr_workgroup_id_x 1
  .amdhsa_float_denorm_mode_32 3
.end_amdhsa_kernel
"""
    return out


if __name__ == "__main__":
    cfg = eval("dict(" + (sys.argv[2] if len(sys.argv) > 2 else "") + ")")
    open(sys.argv[1], "w").write(gen(**cfg))
```

```python
import sys
from asmlib import fix, VM

NAME = "sequential_preLN__gqa_block_cached__glu_gated_geglu__decode"
HEADER = open("cdna_kernels/" + NAME + ".s.ref").read().split("; Override launch")[0]

WS_Q = 0x0
WS_P1 = 0x10000
P1_STRIDE = 2176
WS_P2 = 0xA0000
WS_P3 = 0xB0000
WS_STAMP = 0x200000
L_Q = 0
L_X = 1024
L_M = 2048
L_L = 2176
L_B = 2304
L_H = 3328
L_G = 5376
L_D = 5888
L_WO = 6400
L_GU = 22784
L_WD = 39168
L_K = 47360
KRING = 3
VRING = 5
LDS_BYTES = L_K + 8 * KRING * 4096

LOG2E = 0x3FB8AA3B
SCALE = 0x3DB504F3
FULL = "row_mask:0xf bank_mask:0xf"
SPIN_MAX = 20000


def gen(D=4, nt=True, hmap="xcd", inter="wgtile", flag="atomic", stamps=False, wnt=False, quad=True,
        warm=True, sleep=1, dump=False, xp=(), qsleep=8, prio=True, wdepth=3, wlate=()):
    C = []
    A = C.append
    ntf = " nt" if nt else ""
    wntf = " nt" if wnt else ""
    nstamp = [0]

    def stamp():
        if not stamps:
            return
        k = nstamp[0]
        nstamp[0] += 1
        assert k < 16
        A(f"s_memrealtime s[{64 + 2 * k}:{65 + 2 * k}]")

    def stamp_at(k):
        if stamps:
            A(f"s_memrealtime s[{64 + 2 * k}:{65 + 2 * k}]")

    def stamp_store():
        if not stamps:
            return
        A("s_waitcnt lgkmcnt(0)")
        if stamps == "dbg":
            lab = f"L_dbg{len(C)}"
            A("s_and_b32 s4, s3, 7\ns_cmp_eq_u32 s4, 0")
            A(f"s_cbranch_scc0 {lab}")
            A("s_not_b32 s64, s64")
            A("s_cmp_eq_u32 s3, 8")
            sel0 = (0, 1, 2, 4, 6, 8, 9); sel8 = (2, 4, 5, 6, 7, 8, 9)
            A("s_mov_b64 exec, -1")
            for i in range(7):
                A(f"s_cselect_b32 s4, s{64 + 2 * sel8[i]}, s{64 + 2 * sel0[i]}")
                A(f"v_writelane_b32 v4, s4, {i}")
            A("s_lshl_b32 s4, s3, 2\ns_add_u32 s4, s4, 4\nv_lshl_add_u32 v1, v0, 2, s4")
            A("s_mov_b64 exec, 0x7f")
            A("global_atomic_umax v1, v4, s[36:37] sc1")
            A(f"{lab}:")
            return
        A("s_mov_b64 exec, 1")
        A("s_lshl_b32 s4, s2, 4\ns_add_u32 s4, s4, s3\ns_lshl_b32 s4, s4, 6")
        A(f"s_add_u32 s4, s4, {WS_STAMP}")
        A("v_mov_b32 v1, s4")
        A("s_getreg_b32 s94, hwreg(HW_REG_XCC_ID)")
        for q in range(4):
            for i in range(4):
                A(f"v_mov_b32 v{4 + i}, s{64 + 2 * (4 * q + i)}")
            A(f"global_store_dwordx4 v1, v[4:7], s[38:39] offset:{16 * q}")
            A("s_nop 1")

    def rowsum(a, op="add"):
        for s in (8, 4, 2, 1):
            A(f"v_{op}_f32_dpp v{a}, v{a}, v{a} row_ror:{s} {FULL}")

    def xrow(a, t, op="add"):
        A(f"v_mov_b32 v{t}, v{a}")
        A(f"v_permlane16_swap_b32 v{a}, v{t}")
        A(f"v_{op}_f32 v{a}, v{a}, v{t}")
        A(f"v_mov_b32 v{t}, v{a}")
        A(f"v_permlane32_swap_b32 v{a}, v{t}")
        A(f"v_{op}_f32 v{a}, v{a}, v{t}")

    def rbf(a, t=None):
        t = a if t is None else t
        A(f"v_cvt_pk_bf16_f32 v{t}, v{a}, v{a}")
        A(f"v_lshlrev_b32 v{a}, 16, v{t}")

    def ln_stats(vals, mean, den, rden, t0, t1, tmp):
        A(f"v_add_f32 v{t0}, v{vals[0]}, v{vals[1]}")
        A(f"v_add_f32 v{t1}, v{vals[2]}, v{vals[3]}")
        A(f"v_add_f32 v{mean}, v{vals[4]}, v{vals[5]}")
        A(f"v_add_f32 v{den}, v{vals[6]}, v{vals[7]}")
        A(f"v_add_f32 v{t0}, v{t0}, v{t1}")
        A(f"v_add_f32 v{mean}, v{mean}, v{den}")
        A(f"v_add_f32 v{mean}, v{mean}, v{t0}")
        rowsum(mean)
        xrow(mean, t0)
        A(f"v_mul_f32 v{mean}, 0x3b000000, v{mean}")
        for i in range(8):
            A(f"v_sub_f32 v{tmp[i]}, v{vals[i]}, v{mean}")
        A(f"v_mul_f32 v{den}, v{tmp[0]}, v{tmp[0]}")
        A(f"v_mul_f32 v{t1}, v{tmp[1]}, v{tmp[1]}")
        for i in range(2, 8, 2):
            A(f"v_fmac_f32 v{den}, v{tmp[i]}, v{tmp[i]}")
            A(f"v_fmac_f32 v{t1}, v{tmp[i + 1]}, v{tmp[i + 1]}")
        A(f"v_add_f32 v{den}, v{den}, v{t1}")
        rowsum(den)
        xrow(den, t0)
        A(f"v_mul_f32 v{den}, 0x3b000000, v{den}")
        A(f"v_cvt_pk_bf16_f32 v{t0}, v{mean}, v{den}")
        A(f"v_lshlrev_b32 v{mean}, 16, v{t0}")
        A(f"v_and_b32 v{den}, 0xffff0000, v{t0}")
        A(f"v_add_f32 v{den}, 0x3727c5ac, v{den}")
        rbf(den)
        A(f"v_sqrt_f32 v{t0}, v{den}")
        A(f"v_rsq_f32 v{t1}, v{den}")
        A(f"v_fma_f32 v{den}, -v{t0}, v{t0}, v{den}")
        A(f"v_mul_f32 v{t1}, 0.5, v{t1}")
        A(f"v_fma_f32 v{den}, v{den}, v{t1}, v{t0}")
        rbf(den)
        A(f"v_rcp_f32 v{rden}, v{den}")

    def ln_apply(x, mean, den, rden, t0, t1):
        A(f"v_sub_f32 v{x}, v{x}, v{mean}")
        rbf(x)
        A(f"v_mul_f32 v{t0}, v{x}, v{rden}")
        A(f"v_fma_f32 v{t1}, -v{t0}, v{den}, v{x}")
        A(f"v_fma_f32 v{x}, v{t1}, v{rden}, v{t0}")
        rbf(x)

    def poll(label, loads, regs, t, slp=None):
        A(f"s_mov_b32 s5, 0")
        A(f"{label}:")
        for l in loads:
            A(l)
        A("s_waitcnt vmcnt(0)")
        regs = list(regs)
        if len(regs) % 2 == 0:
            A(f"v_max_u32 v{t}, v{regs[0]}, v{regs[1]}")
            rest = regs[2:]
        else:
            A(f"v_max3_u32 v{t}, v{regs[0]}, v{regs[1]}, v{regs[2]}")
            rest = regs[3:]
        for i in range(0, len(rest), 2):
            A(f"v_max3_u32 v{t}, v{t}, v{rest[i]}, v{rest[i + 1]}")
        A(f"v_cmp_eq_u32 vcc, -1, v{t}")
        A(f"s_cbranch_vccz {label}_ok")
        A("s_add_u32 s5, s5, 1")
        A(f"s_cmp_lt_u32 s5, {SPIN_MAX}")
        A(f"s_cbranch_scc0 {label}_ok")
        slp = sleep if slp is None else slp
        if slp:
            A(f"s_sleep {slp}")
        A(f"s_branch {label}")
        A(f"{label}_ok:")

    stamp_at(0)
    A("s_cmp_ge_u32 s2, 256")
    A("s_cbranch_scc1 L_end")
    A("s_load_dwordx16 s[16:31], s[0:1], 0")
    A("s_load_dwordx8 s[32:39], s[0:1], 64")
    A("v_lshrrev_b32 v1, 6, v0")
    A("v_and_b32 v0, 63, v0")
    A("v_readfirstlane_b32 s3, v1")
    A("s_and_b32 s6, s2, 7")
    A("s_lshr_b32 s7, s2, 3")
    if hmap == "xcd":
        A("s_mov_b32 s8, s6")
        A("s_mov_b32 s9, s7")
    else:
        A("s_and_b32 s8, s7, 7")
        A("s_lshr_b32 s9, s7, 3\ns_lshl_b32 s10, s6, 2\ns_add_u32 s9, s9, s10")
    if warm:
        A("s_getpc_b64 s[48:49]")
        A("L_pc:")
        A(f"s_sub_u32 s48, s48, L_pc-{NAME}_kernel\ns_subb_u32 s49, s49, 0")
        A("s_lshl_b32 s4, s3, 11")
        A("v_lshl_add_u32 v2, v0, 4, s4")
        A("v_add_u32 v3, 1024, v2")
        A(f"s_mov_b32 s4, L_codeend-{NAME}_kernel-16")
        A("v_min_u32 v2, s4, v2\nv_min_u32 v3, s4, v3")
        A("global_load_dwordx4 v[12:15], v2, s[48:49]")
        A("global_load_dwordx4 v[12:15], v3, s[48:49]")
    A("s_cmp_eq_u32 s3, 8")
    A("s_cbranch_scc0 L_stream")
    if prio: A("s_setprio 3")
    if "svcoff" in xp: A("s_waitcnt lgkmcnt(0)\ns_branch L_svcbar")
    A("v_lshlrev_b32 v1, 4, v0")
    A("s_lshl_b32 s10, s6, 5\ns_add_u32 s10, s10, s7")
    A("v_lshrrev_b32 v2, 1, v0\nv_and_b32 v3, 1, v0\nv_lshlrev_b32 v2, 17, v2\nv_lshl_add_u32 v2, v3, 4, v2")
    A("s_lshl_b32 s4, s10, 5")
    A("v_add_u32 v2, s4, v2")
    for i in range(4):
        A(f"v_mov_b32 v{100 + i}, -1")
    A("s_lshl_b32 s4, s6, 10\nv_add_u32 v3, s4, v1")
    A("s_mov_b32 s42, 0x400000\ns_mov_b32 s43, 0x20000\ns_mov_b32 s4, 0\ns_movk_i32 s5, 0x2000")
    A("s_cmp_eq_u32 s7, 0")
    A("s_waitcnt lgkmcnt(0)")
    A("s_cbranch_scc0 L_noqclear")
    A(f"global_store_dwordx4 v3, v[100:103], s[38:39] sc1")
    A("L_noqclear:")
    A("s_mov_b32 s40, s22\ns_and_b32 s41, s23, 0xffff")
    A("global_load_dwordx4 v[4:7], v1, s[16:17]")
    WQ = 32
    for i in range(16):
        A(f"buffer_load_dwordx4 v[{WQ + 4 * i}:{WQ + 4 * i + 3}], v2, s[40:43], s4 offen{wntf}")
        if i < 15:
            A("s_add_u32 s4, s4, s5")
    A("s_branch L_service")
    A("L_stream:")

    vKS = (1, 2, 3, 4)
    vKR = (5, 6, 7, 8)
    vV, vM, vML, vL = 9, 10, 11, 12
    PK = (13, 14)
    vAl = 15
    SEL = (16, 17, 18, 19)
    S = (20, 21, 22, 23)
    T = (24, 25, 26, 27)
    BB = 28
    vT2 = 38
    ACC = (40, 44)
    QF = 48
    KF = 64
    VR = [80 + 16 * i for i in range(VRING)]
    A(f"v_lshlrev_b32 v{vV}, 4, v0")
    A("v_lshrrev_b32 v24, 4, v0")
    A("v_lshlrev_b32 v25, 6, v24")
    A(f"v_xor_b32 v{vKS[0]}, v{vV}, v25")
    for i in (1, 2, 3):
        A(f"v_xor_b32 v{vKS[i]}, {16 * i}, v{vKS[0]}")
    A("s_lshl_b32 s10, s8, 23")
    if inter == "wgtile":
        A("s_lshl_b32 s11, s9, 18\ns_add_u32 s10, s10, s11\ns_lshl_b32 s11, s3, 12\ns_add_u32 s10, s10, s11")
        step = 8 * 4096
    elif inter == "contig":
        A("s_lshl_b32 s11, s9, 18\ns_add_u32 s10, s10, s11\ns_lshl_b32 s11, s3, 15\ns_add_u32 s10, s10, s11")
        step = 4096
    elif inter == "global":
        A("s_lshl_b32 s11, s9, 15\ns_add_u32 s10, s10, s11\ns_lshl_b32 s11, s3, 12\ns_add_u32 s10, s10, s11")
        step = 256 * 4096
    A("s_mov_b32 s11, s10")
    A(f"s_mul_i32 s56, s3, {KRING * 4096}\ns_add_u32 s56, s56, {L_K}")
    A("s_mov_b32 m0, s56")
    A("s_mov_b32 s42, 0x4000000\ns_mov_b32 s43, 0x20000\ns_mov_b32 s46, 0x4000000\ns_mov_b32 s47, 0x20000")
    A("s_waitcnt lgkmcnt(0)")
    A("s_mov_b32 s40, s18\ns_and_b32 s41, s19, 0xffff\ns_mov_b32 s44, s20\ns_and_b32 s45, s21, 0xffff")
    vm = VM()
    ids = {}
    order = ["K0", "V0", "K1", "V1", "K2", "V2", "V3", "V4", "K3", "K4", "K5", "V5", "K6", "V6", "K7", "V7"]
    seq = [(g[0], int(g[1]), u) for g in order for u in range(4)]

    def W(opid):
        w = vm.wait(opid)
        if w:
            A(w)

    def load(n):
        mat, t, u = seq[n]
        if n >= D:
            W(ids[seq[n - D]])
        if mat == "K":
            if u == 0 and t > 0:
                A(f"s_add_u32 m0, s56, {4096 * (t % KRING)}")
            A(f"buffer_load_dwordx4 v{vKS[u]}, s[40:43], s10 offen offset:{1024 * u}{ntf} lds")
            if u == 3:
                A(f"s_add_u32 s10, s10, {step}")
        else:
            r = VR[t % VRING] + 4 * u
            A(f"buffer_load_dwordx4 v[{r}:{r + 3}], v{vV}, s[44:47], s11 offen offset:{1024 * u}{ntf}")
            if u == 3:
                A(f"s_add_u32 s11, s11, {step}")
        ids[seq[n]] = vm.issue()

    def consts():
        A("v_and_b32 v24, 3, v0")
        A("v_mov_b32 v25, 0x0c0c0c0c")
        for k, (lo, e0) in enumerate(((0x0100, 0), (0x0100, 2), (0x0302, 0), (0x0302, 2))):
            A(f"v_mov_b32 v26, {hex(0x0c0c0000 | lo)}")
            A(f"v_mov_b32 v27, {hex((lo << 16) | 0x0c0c)}")
            A(f"v_cmp_eq_u32 vcc, {e0}, v24")
            A(f"v_cndmask_b32 v{SEL[k]}, v25, v26, vcc")
            A(f"v_cmp_eq_u32 vcc, {e0 + 1}, v24")
            A(f"v_cndmask_b32 v{SEL[k]}, v{SEL[k]}, v27, vcc")
        for z in (0, 1, 4, 5, 8, 9):
            A(f"v_mov_b32 v{BB + z}, 0")
        A(f"s_mov_b32 s12, {hex(LOG2E)}")
        A("v_bfe_u32 v25, v0, 2, 2")
        A("v_lshrrev_b32 v26, 4, v0")
        A("v_lshlrev_b32 v27, 8, v25")
        A(f"v_lshl_add_u32 v{vT2}, v26, 4, v27")
        A("v_lshl_add_u32 v25, v24, 2, v25")
        A("v_and_b32 v27, 15, v0")
        A("v_xor_b32 v26, v26, v27")
        A("v_lshlrev_b32 v26, 4, v26")
        A("v_lshl_add_u32 v26, v25, 8, v26")
        for u in range(4):
            A(f"v_xor_b32 v{vKR[u]}, {64 * u}, v26")
            A(f"v_add_u32 v{vKR[u]}, s56, v{vKR[u]}")

    def qk(t, last=False):
        W(ids[("K", t, 3)])
        if "nocomp" in xp and not last: return
        k = KF
        for u in range(4):
            A(f"ds_read_b128 v[{k + 4 * u}:{k + 4 * u + 3}], v{vKR[u]} offset:{4096 * (t % KRING)}")
        for u in range(4):
            c = "0" if u == 0 else f"v[{S[0]}:{S[3]}]"
            A("s_waitcnt lgkmcnt(0)" if stamps else f"s_waitcnt lgkmcnt({3 - u})")
            A(f"v_mfma_f32_16x16x32_bf16 v[{S[0]}:{S[3]}], v[{k + 4 * u}:{k + 4 * u + 3}], v[{QF + 4 * u}:{QF + 4 * u + 3}], {c}")
        for rnd in range(2):
            A(f"v_cvt_pk_bf16_f32 v{T[0]}, v{S[0]}, v{S[1]}")
            A(f"v_cvt_pk_bf16_f32 v{T[1]}, v{S[2]}, v{S[3]}")
            A(f"v_lshlrev_b32 v{S[0]}, 16, v{T[0]}")
            A(f"v_and_b32 v{S[1]}, 0xffff0000, v{T[0]}")
            A(f"v_lshlrev_b32 v{S[2]}, 16, v{T[1]}")
            A(f"v_and_b32 v{S[3]}, 0xffff0000, v{T[1]}")
            if rnd == 0:
                for r in range(4):
                    A(f"v_mul_f32 v{S[r]}, {hex(SCALE)}, v{S[r]}")
        if t == 0:
            A(f"v_max_f32 v{vM}, v{S[0]}, v{S[1]}")
            A(f"v_max3_f32 v{vM}, v{vM}, v{S[2]}, v{S[3]}")
        else:
            A(f"v_max3_f32 v{vM}, v{vM}, v{S[0]}, v{S[1]}")
            A(f"v_max3_f32 v{vM}, v{vM}, v{S[2]}, v{S[3]}")
        xrow(vM, T[0], "max")
        if last:
            A("v_bfe_u32 v26, v0, 2, 2")
            A("v_lshlrev_b32 v26, 5, v26")
            A("s_lshl_b32 s4, s3, 2")
            A("v_add_u32 v27, s4, v26")
            A("s_mov_b64 exec, 0x1111")
            A(f"ds_write_b32 v27, v{vM} offset:{L_M}")
            A("s_mov_b64 exec, -1")
            A("s_waitcnt lgkmcnt(0)")
            A("s_barrier")
            k0 = KF
            A(f"ds_read_b128 v[{k0}:{k0 + 3}], v26 offset:{L_M}")
            A(f"ds_read_b128 v[{k0 + 4}:{k0 + 7}], v26 offset:{L_M + 16}")
            A("s_waitcnt lgkmcnt(0)")
            A(f"v_max3_f32 v{vM}, v{k0}, v{k0 + 1}, v{k0 + 2}")
            A(f"v_max3_f32 v{vM}, v{vM}, v{k0 + 3}, v{k0 + 4}")
            A(f"v_max3_f32 v{vM}, v{vM}, v{k0 + 5}, v{k0 + 6}")
            A(f"v_max_f32 v{vM}, v{vM}, v{k0 + 7}")
        if t > 0:
            A(f"v_mov_b32 v{vAl}, v{vML}")
        A(f"v_mul_f32 v{vML}, s12, v{vM}")
        if t > 0:
            A(f"v_sub_f32 v{vAl}, v{vAl}, v{vML}")
            A(f"v_exp_f32 v{vAl}, v{vAl}")
        for r in range(4):
            A(f"v_fma_f32 v{S[r]}, v{S[r]}, s12, -v{vML}")
        for r in range(4):
            A(f"v_exp_f32 v{S[r]}, v{S[r]}")
        if t > 0:
            for a in range(8):
                A(f"v_mul_f32 v{ACC[0] + a}, v{vAl}, v{ACC[0] + a}")
        A(f"v_add_f32 v{T[0]}, v{S[0]}, v{S[1]}")
        A(f"v_add_f32 v{T[1]}, v{S[2]}, v{S[3]}")
        A(f"v_cvt_pk_bf16_f32 v{PK[0]}, v{S[0]}, v{S[1]}")
        A(f"v_cvt_pk_bf16_f32 v{PK[1]}, v{S[2]}, v{S[3]}")
        if t == 0:
            A(f"v_add_f32 v{vL}, v{T[0]}, v{T[1]}")
        else:
            A(f"v_add_f32 v{T[0]}, v{T[0]}, v{T[1]}")
            A(f"v_fma_f32 v{vL}, v{vL}, v{vAl}, v{T[0]}")
        if last:
            xrow(vL, T[0])
            A("s_mov_b64 exec, 0x1111")
            A(f"ds_write_b32 v27, v{vL} offset:{L_L}")
            A("s_mov_b64 exec, -1")

    def pv(t, last=False):
        v = VR[t % VRING]
        if "nocomp" in xp and not last:
            W(ids[("V", t, 3)]); return

        def perm(i):
            b = BB + 2 + 4 * (i & 1)
            A(f"v_perm_b32 v{b}, v{PK[i >> 1]}, v{PK[i >> 1]}, v{SEL[2 * (i & 1)]}")
            A(f"v_perm_b32 v{b + 1}, v{PK[i >> 1]}, v{PK[i >> 1]}, v{SEL[2 * (i & 1) + 1]}")
        perm(0)
        perm(1)
        if not last:
            W(ids[("V", t, 3)])
        for i in range(4):
            if last:
                W(ids[("V", t, i)])
            b = BB + 2 + 4 * (i & 1)
            for h in range(2):
                c = "0" if (t == 0 and i == 0) else f"v[{ACC[h]}:{ACC[h] + 3}]"
                bb = b if h == 0 else b - 2
                A(f"v_mfma_f32_16x16x32_bf16 v[{ACC[h]}:{ACC[h] + 3}], v[{v + 4 * i}:{v + 4 * i + 3}], v[{bb}:{bb + 3}], {c}")
            if i < 2:
                perm(i + 2)

    NPRE = 4 * (KRING + VRING)
    for n in range(NPRE):
        load(n)
        if n == D - 1:
            consts()
    stamp_at(1)
    A("s_barrier")
    stamp_at(2)
    for u in range(4):
        A(f"ds_read_b128 v[{QF + 4 * u}:{QF + 4 * u + 3}], v{vT2} offset:{L_Q + 64 * u}")
    A("s_waitcnt lgkmcnt(0)")
    blocks = []
    for t in range(7):
        blocks += [(qk, t, ("K", t, 3)), (pv, t, ("V", t, 3))]
    bi = 0
    for n in range(NPRE, 64):
        mat, t, u = seq[n]
        needb = 2 * (t - KRING) + 1 if mat == "K" else 2 * (t - VRING) + 2
        while bi < needb:
            blocks[bi][0](blocks[bi][1])
            bi += 1
        load(n)
        if bi < len(blocks) and blocks[bi][2] in ids and ids[blocks[bi][2]] <= vm.done:
            blocks[bi][0](blocks[bi][1])
            bi += 1
    while bi < len(blocks):
        blocks[bi][0](blocks[bi][1])
        bi += 1
    A("s_lshr_b32 s13, s7, 4\ns_lshl_b32 s4, s6, 1\ns_add_u32 s13, s13, s4")
    A("s_and_b32 s14, s7, 15")
    A("s_min_u32 s15, s7, 27\ns_mul_i32 s4, s6, 28\ns_add_u32 s15, s15, s4")
    qk(7, last=True)
    stamp_at(3)
    pv(7, last=True)
    stamp_at(4)
    A(f"v_add_u32 v16, s56, v{vV}")
    A(f"s_lshl_b32 s4, s3, 8\nv_lshl_add_u32 v17, v0, 2, s4")
    A(f"v_add_u32 v19, {L_K}, v17")
    A(f"v_add_u32 v20, {L_K + 4 * KRING * 4096}, v17")
    A(f"s_lshl_b32 s4, s8, 5\ns_add_u32 s4, s4, s9\ns_mul_i32 s4, s4, {P1_STRIDE}\ns_add_u32 s4, s4, {WS_P1}")
    A("v_add_u32 v18, s4, v17")
    A(f"ds_write_b128 v16, v[{ACC[0]}:{ACC[0] + 3}]")
    A(f"ds_write_b128 v16, v[{ACC[1]}:{ACC[1] + 3}] offset:1024")
    A("s_waitcnt lgkmcnt(0)")
    A("s_barrier")
    R0 = 72
    for i in range(8):
        A(f"ds_read_b32 v{R0 + i}, v{19 + (i >> 2)} offset:{KRING * 4096 * (i & 3)}")
    A("s_waitcnt lgkmcnt(0)")
    for i in range(4):
        A(f"v_add_f32 v{R0 + i}, v{R0 + i}, v{R0 + 4 + i}")
    A(f"v_add_f32 v{R0}, v{R0}, v{R0 + 1}")
    A(f"v_add_f32 v{R0 + 2}, v{R0 + 2}, v{R0 + 3}")
    A(f"v_add_f32 v{R0}, v{R0}, v{R0 + 2}")

    def store_quad(val, addr, base):
        if quad:
            for i in (1, 2, 3):
                A(f"v_mov_b32_dpp v{val + i}, v{val} quad_perm:[{i},{i},{i},{i}] {FULL}")
            A("s_mov_b32 exec_lo, 0x11111111\ns_mov_b32 exec_hi, 0x11111111")
            A(f"global_store_dwordx4 v{addr}, v[{val}:{val + 3}], {base} sc1")
            A("s_mov_b64 exec, -1")
        else:
            A(f"global_store_dword v{addr}, v{val}, {base} sc1")
    store_quad(R0, 18, "s[38:39]")
    vm.issue()
    A("s_cmp_eq_u32 s3, 7")
    A("s_cbranch_scc0 L_noml")
    A("v_bfe_u32 v16, v0, 2, 2\nv_lshlrev_b32 v17, 5, v16")
    A(f"ds_read_b128 v[80:83], v17 offset:{L_L}")
    A(f"ds_read_b128 v[84:87], v17 offset:{L_L + 16}")
    A("s_add_u32 s4, s4, 2048\nv_lshl_add_u32 v16, v16, 3, s4")
    A("s_waitcnt lgkmcnt(0)")
    for i in range(4):
        A(f"v_add_f32 v{80 + i}, v{80 + i}, v{84 + i}")
    A("v_add_f32 v80, v80, v81\nv_add_f32 v82, v82, v83\nv_add_f32 v81, v80, v82")
    A(f"v_mov_b32 v80, v{vML}")
    A("s_mov_b64 exec, 0x1111")
    A("global_store_dwordx2 v16, v[80:81], s[38:39] sc1")
    A("s_mov_b64 exec, -1")
    A("L_noml:")
    stamp_at(5)
    A("s_lshr_b32 s4, s13, 1\ns_lshl_b32 s4, s4, 5")
    A(f"v_and_b32 v16, 15, v0\nv_add_u32 v16, s4, v16\nv_mul_u32_u24 v16, {P1_STRIDE}, v16")
    A("s_and_b32 s4, s13, 1\ns_lshl_b32 s4, s4, 1\ns_lshr_b32 s5, s3, 2\ns_add_u32 s4, s4, s5")
    A(f"s_lshl_b32 s5, s4, 3\ns_add_u32 s5, s5, {WS_P1 + 2048}")
    A("v_add_u32 v20, s5, v16")
    A(f"v_add_u32 v21, {16 * P1_STRIDE}, v20")
    A(f"s_lshl_b32 s4, s4, 6\ns_and_b32 s5, s3, 3\ns_lshl_b32 s5, s5, 8\ns_add_u32 s4, s4, s5\ns_add_u32 s4, s4, {WS_P1}")
    A("v_lshrrev_b32 v17, 4, v0\nv_lshl_add_u32 v16, v17, 4, v16\nv_add_u32 v22, s4, v16")
    A(f"v_add_u32 v23, {16 * P1_STRIDE}, v22")
    A("v_bfe_u32 v16, v0, 2, 2\nv_lshlrev_b32 v16, 9, v16\nv_lshl_add_u32 v16, v17, 6, v16")
    A("v_and_b32 v17, 3, v0\nv_lshl_add_u32 v16, v17, 3, v16\ns_lshl_b32 s4, s3, 11\nv_add_u32 v16, s4, v16")
    WB = 88
    for tau in range(2):
        for t in range(2):
            r = WB + 4 * tau + 2 * t
            A(f"ds_read_b64_tr_b16 v[{r}:{r + 1}], v16 offset:{L_WO + 256 * t + 32 * tau}")
    G0 = 56
    vCol = G0 + 9
    A("v_bfe_u32 v16, v0, 4, 1\nv_lshrrev_b32 v17, 5, v0\nv_lshl_add_u32 v16, v16, 1, v17")
    A("v_and_b32 v17, 15, v0\nv_lshl_add_u32 v16, v17, 2, v16")
    A(f"s_lshl_b32 s4, s3, 6\nv_add_u32 v{vCol}, s4, v16")
    A(f"v_lshlrev_b32 v16, 4, v{vCol}\nv_lshlrev_b32 v17, 1, v{vCol}")
    A(f"ds_read_b128 v[{G0}:{G0 + 3}], v16 offset:{L_GU}")
    A(f"ds_read_b128 v[{G0 + 4}:{G0 + 7}], v16 offset:{L_GU + 8192}")
    A(f"ds_read_u16_d16_hi v{G0 + 8}, v17 offset:{L_X}")
    DW = 112
    A("s_lshl_b32 s4, s3, 7\nv_lshl_add_u32 v16, v0, 1, s4")
    for r in range(8):
        A(f"ds_read_u16_d16_hi v{DW + r}, v16 offset:{L_WD + 1024 * r}")
    A("s_waitcnt lgkmcnt(0)")
    GW = 96
    for i in range(8):
        A(f"v_lshlrev_b32 v{GW + 2 * i}, 16, v{G0 + i}")
        A(f"v_and_b32 v{GW + 2 * i + 1}, 0xffff0000, v{G0 + i}")
    D0 = 120
    loads = [f"global_load_dwordx2 v[136:137], v20, s[38:39] sc1",
             f"global_load_dwordx2 v[138:139], v21, s[38:39] sc1"]
    for pi in range(2):
        for t in range(2):
            r = D0 + 8 * pi + 4 * t
            loads.append(f"global_load_dwordx4 v[{r}:{r + 3}], v{22 + pi}, s[38:39] offset:{1024 * t} sc1")
    poll("L_poll1", loads, range(120, 140), 16)
    stamp_at(6)
    A("v_max_f32 v16, v136, v138")
    rowsum(16, "max")
    A("v_sub_f32 v136, v136, v16\nv_sub_f32 v138, v138, v16\nv_exp_f32 v136, v136\nv_exp_f32 v138, v138")
    A("v_mul_f32 v17, v136, v137\nv_fmac_f32 v17, v138, v139")
    rowsum(17)
    A("v_rcp_f32 v17, v17")
    A("v_mul_f32 v136, v136, v17\nv_mul_f32 v138, v138, v17")
    for e in range(8):
        A(f"v_mul_f32 v{D0 + e}, v136, v{D0 + e}")
    for e in range(8):
        A(f"v_fmac_f32 v{D0 + e}, v138, v{D0 + 8 + e}")
    for s in (8, 4, 2, 1):
        for e in range(8):
            A(f"v_add_f32_dpp v{D0 + e}, v{D0 + e}, v{D0 + e} row_ror:{s} {FULL}")
    for e in range(4):
        A(f"v_cvt_pk_bf16_f32 v{128 + e}, v{D0 + 2 * e}, v{D0 + 2 * e + 1}")
    A("s_waitcnt lgkmcnt(0)")
    A(f"v_mfma_f32_16x16x32_bf16 v[132:135], v[128:131], v[{WB}:{WB + 3}], 0")
    A(f"v_mfma_f32_16x16x32_bf16 v[136:139], v[128:131], v[{WB + 4}:{WB + 7}], 0")
    A("s_lshl_b32 s4, s3, 7\nv_lshl_add_u32 v16, v0, 2, s4")
    A("v_cmp_gt_u32 vcc, 16, v0")
    A("v_cndmask_b32 v132, v136, v132, vcc")
    A("s_mov_b32 exec_hi, 0")
    A(f"ds_write_b32 v16, v132 offset:{L_B}")
    A("s_mov_b64 exec, -1")
    A("s_waitcnt lgkmcnt(0)")
    A("s_barrier")
    A("s_cmp_eq_u32 s3, 0")
    A("s_cbranch_scc0 L_nob")
    A("v_and_b32 v16, 31, v0\nv_lshrrev_b32 v17, 5, v0\nv_lshlrev_b32 v16, 2, v16\nv_lshl_add_u32 v17, v17, 9, v16")
    for i in range(4):
        A(f"ds_read_b32 v{120 + i}, v17 offset:{L_B + 128 * i}")
    A(f"s_lshl_b32 s4, s13, 11\ns_lshl_b32 s5, s14, 7\ns_add_u32 s4, s4, s5\ns_add_u32 s4, s4, {WS_P2}")
    A("v_add_u32 v16, s4, v16")
    A("s_waitcnt lgkmcnt(0)")
    A("v_add_f32 v120, v120, v121\nv_add_f32 v122, v122, v123\nv_add_f32 v120, v120, v122")
    A("v_mov_b32 v121, v120\nv_permlane32_swap_b32 v120, v121\nv_add_f32 v120, v120, v121")
    if quad:
        for i in (1, 2, 3):
            A(f"v_mov_b32_dpp v{120 + i}, v120 quad_perm:[{i},{i},{i},{i}] {FULL}")
        A("s_mov_b64 exec, 0x11111111")
        A("global_store_dwordx4 v16, v[120:123], s[38:39] sc1")
    else:
        A("s_mov_b32 exec_hi, 0")
        A("global_store_dword v16, v120, s[38:39] sc1")
    A("s_mov_b64 exec, -1")
    A("L_nob:")
    stamp_at(7)
    A("s_cmp_ge_u32 s7, 28")
    A("s_cbranch_scc1 L_final")
    A(f"s_lshl_b32 s4, s3, 8\ns_add_u32 s4, s4, {WS_P2}")
    A("v_and_b32 v16, 15, v0\nv_lshrrev_b32 v17, 4, v0\nv_lshlrev_b32 v17, 13, v17\nv_lshl_add_u32 v16, v16, 4, v17\nv_add_u32 v20, s4, v16")
    A("v_add_u32 v21, 0x1000, v20")
    A(f"s_lshl_b32 s4, s15, 11\ns_add_u32 s4, s4, {WS_P3}\ns_lshl_b32 s5, s3, 8\ns_add_u32 s4, s4, s5")
    A("v_lshl_add_u32 v22, v0, 2, s4")
    A(f"v_lshlrev_b32 v23, 2, v{vCol}")
    A("v_lshlrev_b32 v24, 5, v0")
    loads = [f"global_load_dwordx4 v[{120 + 4 * i}:{123 + 4 * i}], v{20 + (i >> 1)}, s[38:39] offset:{2048 * (i & 1)} sc1" for i in range(4)]
    poll("L_poll2", loads, range(120, 136), 16)
    stamp_at(8)
    for e in range(4):
        A(f"v_add_f32 v{120 + e}, v{120 + e}, v{124 + e}")
        A(f"v_add_f32 v{128 + e}, v{128 + e}, v{132 + e}")
    for e in range(4):
        A(f"v_add_f32 v{120 + e}, v{120 + e}, v{128 + e}")
    A("v_permlane32_swap_b32 v120, v121\nv_permlane32_swap_b32 v122, v123")
    A("v_add_f32 v120, v120, v121\nv_add_f32 v122, v122, v123")
    A("v_permlane16_swap_b32 v120, v122")
    A("v_add_f32 v120, v120, v122")
    rbf(120)
    A(f"v_add_f32 v120, v120, v{G0 + 8}")
    rbf(120)
    A(f"ds_write_b32 v23, v120 offset:{L_H}")
    A("s_waitcnt lgkmcnt(0)")
    A("s_barrier")
    A(f"ds_read_b128 v[124:127], v24 offset:{L_H}")
    A(f"ds_read_b128 v[128:131], v24 offset:{L_H + 16}")
    A("s_waitcnt lgkmcnt(0)")
    ln_stats(list(range(124, 132)), 16, 17, 18, 19, 25, list(range(132, 140)))
    ln_apply(120, 16, 17, 18, 19, 25)
    for i in range(16):
        A(f"v_mul_f32 v{GW + i}, v120, v{GW + i}")
    for i in range(8):
        A(f"v_permlane32_swap_b32 v{GW + i}, v{GW + 8 + i}")
    for i in range(8):
        A(f"v_add_f32 v{GW + i}, v{GW + i}, v{GW + 8 + i}")
    for i in range(4):
        A(f"v_permlane16_swap_b32 v{GW + i}, v{GW + 4 + i}")
    for i in range(4):
        A(f"v_add_f32 v{GW + i}, v{GW + i}, v{GW + 4 + i}")
    for i in range(2):
        A(f"v_add_f32_dpp v{GW + 8 + i}, v{GW + i}, v{GW + i} row_ror:8 row_mask:0xf bank_mask:0x3")
        A(f"v_add_f32_dpp v{GW + 8 + i}, v{GW + 2 + i}, v{GW + 2 + i} row_ror:8 row_mask:0xf bank_mask:0xc")
    A(f"v_add_f32_dpp v{GW}, v{GW + 8}, v{GW + 8} row_shl:4 row_mask:0xf bank_mask:0x5")
    A(f"v_add_f32_dpp v{GW}, v{GW + 9}, v{GW + 9} row_shr:4 row_mask:0xf bank_mask:0xa")
    A(f"v_add_f32_dpp v{GW}, v{GW}, v{GW} quad_perm:[2,3,0,1] {FULL}")
    A(f"v_add_f32_dpp v{GW}, v{GW}, v{GW} quad_perm:[1,0,3,2] {FULL}")
    A("s_lshl_b32 s4, s3, 6\nv_add_u32 v16, s4, v0")
    A("s_mov_b32 exec_lo, 0x11111111\ns_mov_b32 exec_hi, 0x11111111")
    A(f"ds_write_b32 v16, v{GW} offset:{L_G}")
    A("s_mov_b64 exec, -1")
    A("v_and_b32 v16, 15, v0\nv_lshrrev_b32 v17, 4, v0\nv_lshlrev_b32 v17, 7, v17\nv_lshl_add_u32 v16, v16, 2, v17")
    A("s_waitcnt lgkmcnt(0)")
    A("s_barrier")
    A(f"ds_read_b32 v120, v16 offset:{L_G}")
    A(f"ds_read_b32 v121, v16 offset:{L_G + 64}")
    A("s_waitcnt lgkmcnt(0)")
    A("v_add_f32 v120, v120, v121")
    xrow(120, 121)
    rbf(120)
    A(f"v_mov_b32_dpp v121, v120 row_ror:8 {FULL}")
    A("v_mul_f32 v122, v120, v120")
    A("v_mul_f32 v122, v122, v120")
    A("v_mov_b32 v123, v120")
    A("v_fmac_f32 v123, 0x3d372713, v122")
    A("v_mul_f32 v123, 0xc0135761, v123")
    A("v_exp_f32 v123, v123")
    A("v_add_f32 v123, 1.0, v123")
    A("v_rcp_f32 v123, v123")
    A("v_mul_f32 v120, v120, v123")
    rbf(120)
    A("v_mul_f32 v120, v120, v121")
    rbf(120)
    for r in range(8):
        A(f"v_readlane_b32 s{48 + r}, v120, {r}")
    A(f"v_mul_f32 v124, s48, v{DW}")
    A(f"v_mul_f32 v125, s49, v{DW + 1}")
    for r in range(2, 8):
        A(f"v_fmac_f32 v{124 + (r & 1)}, s{48 + r}, v{DW + r}")
    A("v_add_f32 v124, v124, v125")
    store_quad(124, 22, "s[38:39]")
    stamp_at(9)
    stamp_store()
    A("s_endpgm")
    A("L_final:")
    A("s_sub_u32 s15, s7, 28\ns_lshl_b32 s4, s6, 2\ns_add_u32 s15, s15, s4")
    A("v_and_b32 v16, 3, v0\nv_lshrrev_b32 v17, 2, v0\nv_lshlrev_b32 v17, 11, v17\nv_lshl_add_u32 v17, v16, 4, v17")
    A("v_and_b32 v22, 15, v0\ns_lshl_b32 s4, s15, 5\nv_lshl_add_u32 v18, v22, 1, s4")
    A(f"ds_read_u16_d16_hi v19, v18 offset:{L_X}")
    A("v_lshlrev_b32 v22, 2, v22")
    A("s_cmp_eq_u32 s3, 7")
    A("s_cbranch_scc1 L_final_h")
    A(f"s_lshl_b32 s4, s3, 16\ns_lshl_b32 s5, s15, 6\ns_add_u32 s4, s4, s5\ns_add_u32 s4, s4, {WS_P3}")
    A("v_add_u32 v20, s4, v17\nv_add_u32 v21, 0x8000, v20")
    loads = [f"global_load_dwordx4 v[{120 + 4 * i}:{123 + 4 * i}], v{20 + i}, s[38:39] sc1" for i in range(2)]
    poll("L_poll3", loads, range(120, 128), 16)
    stamp_at(8)
    for e in range(4):
        A(f"v_add_f32 v{120 + e}, v{120 + e}, v{124 + e}")
    A("s_branch L_final_red")
    A("L_final_h:")
    A(f"s_lshl_b32 s5, s15, 6\ns_add_u32 s4, s5, {WS_P2}")
    A("v_add_u32 v20, s4, v17")
    loads = [f"global_load_dwordx4 v[120:123], v20, s[38:39] sc1"]
    poll("L_poll4", loads, range(120, 124), 16)
    stamp_at(8)
    A("L_final_red:")
    A("v_permlane32_swap_b32 v120, v121\nv_permlane32_swap_b32 v122, v123")
    A("v_add_f32 v120, v120, v121\nv_add_f32 v122, v122, v123")
    A("v_permlane16_swap_b32 v120, v122")
    A("v_add_f32 v120, v120, v122")
    A(f"v_add_f32_dpp v120, v120, v120 row_ror:8 {FULL}")
    A(f"v_add_f32_dpp v120, v120, v120 row_ror:4 {FULL}")
    A("v_bfe_u32 v16, v0, 4, 1\nv_lshrrev_b32 v17, 5, v0\nv_lshl_add_u32 v16, v16, 1, v17")
    A("v_and_b32 v17, 3, v0\nv_lshl_add_u32 v16, v17, 2, v16")
    A("s_lshl_b32 s4, s3, 6\nv_lshl_add_u32 v17, v16, 2, s4")
    A("s_mov_b32 exec_lo, 0x000f000f\ns_mov_b32 exec_hi, 0x000f000f")
    A(f"ds_write_b32 v17, v120 offset:{L_D}")
    A("s_mov_b64 exec, -1")
    A("s_cmp_eq_u32 s3, 0")
    A("s_cbranch_scc1 L_final_out")
    A("s_waitcnt lgkmcnt(0)")
    A("s_barrier")
    stamp_at(9)
    stamp_store()
    A("s_endpgm")
    A("L_final_out:")
    A("s_waitcnt lgkmcnt(0)")
    A("s_barrier")
    for i in range(8):
        A(f"ds_read_b32 v{120 + i}, v22 offset:{L_D + 64 * i}")
    A("s_waitcnt vmcnt(0) lgkmcnt(0)")
    rbf(127)
    A("v_add_f32 v127, v127, v19")
    rbf(127)
    A("v_add_f32 v120, v120, v121\nv_add_f32 v122, v122, v123\nv_add_f32 v124, v124, v125")
    A("v_add_f32 v120, v120, v122\nv_add_f32 v124, v124, v126\nv_add_f32 v120, v120, v124")
    rbf(120)
    A("v_add_f32 v120, v120, v127")
    A("v_cvt_pk_bf16_f32 v120, v120, v120")
    A("s_mov_b64 exec, 0xffff")
    A("global_store_short v18, v120, s[34:35]")
    A("s_mov_b64 exec, -1")
    stamp_at(9)
    stamp_store()
    A("s_endpgm")

    A("L_service:")
    stamp_at(1)
    nyoung = 16
    A("s_cmp_eq_u32 s7, 0")
    A("s_cbranch_scc0 L_noqflag")
    A("s_lshl_b32 s4, s6, 5\nv_mov_b32 v104, s4\nv_mov_b32 v105, 1")
    A("s_waitcnt vmcnt(17)")
    A("s_mov_b64 exec, 1")
    A("global_store_dword v104, v105, s[36:37] sc1")
    A("s_mov_b64 exec, -1")
    A("L_noqflag:")
    A(f"s_lshl_b32 s4, s8, 5\ns_add_u32 s4, s4, s9\ns_mul_i32 s4, s4, {P1_STRIDE}\ns_add_u32 s4, s4, {WS_P1}")
    A("v_add_u32 v104, s4, v1")
    if "noclear" in xp: A("s_mov_b64 exec, 1")
    A("global_store_dwordx4 v104, v[100:103], s[38:39] sc1")
    A("global_store_dwordx4 v104, v[100:103], s[38:39] offset:1024 sc1")
    A("s_lshr_b32 s13, s7, 4\ns_lshl_b32 s4, s6, 1\ns_add_u32 s13, s13, s4\ns_and_b32 s14, s7, 15")
    A(f"s_lshl_b32 s4, s13, 11\ns_lshl_b32 s5, s14, 7\ns_add_u32 s4, s4, s5\ns_add_u32 s4, s4, {WS_P2}")
    A("v_add_u32 v105, s4, v1")
    A("s_mov_b64 exec, 1" if "noclear" in xp else "s_mov_b64 exec, 0xff")
    A("global_store_dwordx4 v104, v[100:103], s[38:39] offset:2048 sc1")
    A("global_store_dwordx4 v105, v[100:103], s[38:39] sc1")
    A("s_mov_b64 exec, -1")
    nyoung += 4
    A("s_cmp_ge_u32 s7, 28")
    A("s_cselect_b32 s5, 0, 1")
    A(f"s_min_u32 s15, s7, 27\ns_mul_i32 s4, s6, 28\ns_add_u32 s15, s15, s4\ns_lshl_b32 s4, s15, 11\ns_add_u32 s4, s4, {WS_P3}")
    A("s_cmp_eq_u32 s5, 0")
    A(f"s_cselect_b32 s4, {WS_P3 + 224 * 2048}, s4")
    A("v_add_u32 v106, s4, v1")
    if "noclear" in xp: A("s_mov_b64 exec, 1")
    A("global_store_dwordx4 v106, v[100:103], s[38:39] sc1")
    A("global_store_dwordx4 v106, v[100:103], s[38:39] offset:1024 sc1")
    nyoung += 2
    A("s_mov_b64 exec, -1")
    A(f"s_waitcnt vmcnt({nyoung})")
    stamp_at(2)
    A(f"ds_write_b128 v1, v[4:7] offset:{L_X}")
    A("v_lshlrev_b32 v96, 5, v0")
    A("s_mov_b64 exec, 0xff")
    A("global_load_dword v97, v96, s[36:37] sc1")
    A("s_mov_b64 exec, -1")
    nyoung += 1
    X = list(range(8, 16))
    for i in range(4):
        A(f"v_lshlrev_b32 v{X[2 * i]}, 16, v{4 + i}")
        A(f"v_and_b32 v{X[2 * i + 1]}, 0xffff0000, v{4 + i}")
    ln_stats(X, 16, 17, 18, 19, 20, list(range(22, 30)))
    for i in range(8):
        ln_apply(X[i], 16, 17, 18, 19, 20)
    stamp_at(3)
    Q = list(range(22, 30))
    for i in range(16):
        A(f"s_waitcnt vmcnt({nyoung - 1 - i})")
        qp = "[0,0,2,2]" if i < 8 else "[1,1,3,3]"
        for p in range(4):
            w = WQ + 4 * i + p
            A(f"v_lshlrev_b32 v{100 + 2 * p}, 16, v{w}")
            A(f"v_and_b32 v{101 + 2 * p}, 0xffff0000, v{w}")
        for p in range(8):
            op = "mul" if i == 0 else "fmac"
            A(f"v_{op}_f32_dpp v{Q[p]}, v{X[i & 7]}, v{100 + p} quad_perm:{qp} {FULL}")
    for i in range(4):
        A(f"v_permlane32_swap_b32 v{Q[i]}, v{Q[4 + i]}")
    for i in range(4):
        A(f"v_add_f32 v{Q[i]}, v{Q[i]}, v{Q[4 + i]}")
    for i in range(2):
        A(f"v_permlane16_swap_b32 v{Q[i]}, v{Q[2 + i]}")
    for i in range(2):
        A(f"v_add_f32 v{Q[i]}, v{Q[i]}, v{Q[2 + i]}")
    for m in ("row_ror:8", "row_ror:4", "quad_perm:[2,3,0,1]"):
        for i in range(2):
            A(f"v_add_f32_dpp v{Q[i]}, v{Q[i]}, v{Q[i]} {m} {FULL}")
    A(f"v_cvt_pk_bf16_f32 v16, v{Q[0]}, v{Q[1]}")
    A("v_and_b32 v17, 1, v0\nv_lshlrev_b32 v17, 4, v17\nv_bfe_u32 v18, v0, 4, 1\nv_lshl_add_u32 v17, v18, 2, v17")
    A(f"v_lshrrev_b32 v18, 5, v0\nv_lshl_add_u32 v17, v18, 3, v17\ns_lshl_b32 s4, s10, 5\ns_add_u32 s4, s4, {WS_Q}\nv_add_u32 v17, s4, v17")
    A(f"s_lshl_b32 s4, s8, 10\ns_add_u32 s4, s4, {WS_Q}\nv_add_u32 v19, s4, v1")
    A("s_lshl_b32 s4, 1, s6\ns_lshl_b32 s5, 1, s8\ns_or_b32 s4, s4, s5")
    A("s_mov_b32 s5, 0")
    stamp_at(4)
    A("L_pollf:")
    A("s_waitcnt vmcnt(0)")
    A("v_cmp_ne_u32 vcc, 1, v97")
    A("s_and_b32 s57, vcc_lo, s4")
    A("s_cbranch_scc0 L_pollf_ok")
    A(f"s_add_u32 s5, s5, 1\ns_cmp_lt_u32 s5, {SPIN_MAX}\ns_cbranch_scc0 L_pollf_ok")
    A("s_mov_b64 exec, 0xff")
    A("global_load_dword v97, v96, s[36:37] sc1")
    A("s_mov_b64 exec, -1")
    A("s_branch L_pollf")
    A("L_pollf_ok:")
    A("s_mov_b32 exec_lo, 0x00030003\ns_mov_b32 exec_hi, 0x00030003")
    A("global_store_dword v17, v16, s[38:39] sc1")
    A("s_mov_b64 exec, -1")
    stamp_at(5)
    if qsleep: A(f"s_sleep {qsleep}")
    poll("L_pollq", ["global_load_dwordx4 v[4:7], v19, s[38:39] sc1"], range(4, 8), 16, slp=qsleep)
    stamp_at(6)
    A(f"ds_write_b128 v1, v[4:7] offset:{L_Q}")
    A("s_lshl_b32 s4, s13, 18\ns_lshl_b32 s5, s14, 6\ns_add_u32 s4, s4, s5")
    A("v_lshrrev_b32 v20, 2, v0\nv_and_b32 v21, 3, v0\nv_lshlrev_b32 v20, 10, v20\nv_lshl_add_u32 v20, v21, 4, v20\nv_add_u32 v20, s4, v20")
    A("v_mul_u32_u24 v21, 3584, v0\ns_lshl_b32 s4, s15, 4\nv_add_u32 v21, s4, v21")
    A("s_lshl_b32 s4, s15, 13\nv_add_u32 v22, s4, v1")
    A("s_waitcnt lgkmcnt(0)")
    A("s_barrier")
    stamp_at(7)
    wl = []
    for i in range(16):
        wl.append((L_WO + 1024 * i, "v20", "s[24:25]", "v_add_u32 v20, 0x4000, v20"))
    for i in range(8):
        wl.append((L_GU + 1024 * i, "v21", "s[28:29]", None))
        wl.append((L_GU + 8192 + 1024 * i, "v21", "s[30:31]", f"v_add_u32 v21, {64 * 3584}, v21"))
    for i in range(8):
        wl.append((L_WD + 1024 * i, "v22", "s[32:33]", "v_add_u32 v22, 1024, v22"))
    if "now" in xp: wl = []
    for n, (dst, va, base, upd) in enumerate(wl):
        A(f"s_mov_b32 m0, {dst}")
        if n >= wdepth:
            A(f"s_waitcnt vmcnt({wdepth - 1})")
        A(f"global_load_lds_dwordx4 {va}, {base}{wntf}")
        if upd:
            A(upd)
    stamp_at(8)
    A("s_mov_b32 s5, 0")
    A("L_pollf2:")
    A("s_mov_b64 exec, 0xff")
    A("global_load_dword v97, v96, s[36:37] sc1")
    A("s_waitcnt vmcnt(0)")
    A("v_cmp_ne_u32 vcc, 1, v97")
    A("s_mov_b64 exec, -1")
    A("s_cbranch_vccz L_pollf2_ok")
    A(f"s_add_u32 s5, s5, 1\ns_cmp_lt_u32 s5, {SPIN_MAX}\ns_cbranch_scc1 L_pollf2")
    A("L_pollf2_ok:")
    A(f"v_add_u32 v19, {WS_Q}, v1\nv_add_u32 v20, 0x1000, v19")
    poll("L_pollall", [f"global_load_dwordx4 v[{32 + 4 * i}:{35 + 4 * i}], v{19 + (i >> 2)}, s[38:39] offset:{1024 * (i & 3)} sc1" for i in range(8)],
         range(32, 64), 16, slp=qsleep)
    stamp_at(9)
    A("s_barrier")
    stamp_store()
    A("s_endpgm")
    A("L_svcbar:")
    A("s_barrier")
    A("s_barrier")
    stamp_store()
    A("L_end:")
    A("s_endpgm")
    A("L_codeend:")

    body = fix(C)
    out = HEADER
    out += f"; @launch grid=(256,1,1) block=(576,1,1) lds={LDS_BYTES}\n"
    out += '.amdgcn_target "amdgcn-amd-amdhsa--gfx950"\n.text\n'
    out += f".globl {NAME}_kernel\n.p2align 8\n.type {NAME}_kernel,@function\n{NAME}_kernel:\n"
    out += "\n".join(("" if l.endswith(":") else "    ") + l for l in body) + "\n"
    out += f""".section .rodata,"a"
.p2align 6
.amdhsa_kernel {NAME}_kernel
  .amdhsa_next_free_vgpr 168
  .amdhsa_next_free_sgpr 96
  .amdhsa_accum_offset 168
  .amdhsa_group_segment_fixed_size 0
  .amdhsa_kernarg_size 96
  .amdhsa_user_sgpr_count 2
  .amdhsa_user_sgpr_kernarg_segment_ptr 1
  .amdhsa_system_sgpr_workgroup_id_x 1
  .amdhsa_float_denorm_mode_32 3
.end_amdhsa_kernel
"""
    return out


if __name__ == "__main__":
    cfg = eval("dict(" + (sys.argv[2] if len(sys.argv) > 2 else "") + ")")
    open(sys.argv[1], "w").write(gen(**cfg))
```

```python
import sys
from asmlib import fix, VM

NAME = "sequential_preLN__gqa_block_cached__glu_gated_geglu__decode"
HEADER = open("cdna_kernels/" + NAME + ".s.ref").read().split("; Override launch")[0]

WS_Q = 0x0
WS_F = 0x10000
WS_P1 = 0x20000
P1_STRIDE = 2176
WS_P2 = 0xB0000
WS_P3 = 0xC0000
WS_STAMP = 0x200000
L_Q = 0
L_X = 1024
L_M = 2048
L_L = 2176
L_F = 2304
L_B = 2560
L_H = 4608
L_HN = 6656
L_G = 7680
L_W = 8704
L_K = L_W + 49152
KRING = 3
VRING = 5
LDS_BYTES = L_K + 8 * KRING * 4096

LOG2E = 0x3FB8AA3B
SCALE = 0x3DB504F3
FULL = "row_mask:0xf bank_mask:0xf"
SPIN_MAX = 20000


def gen(D=4, D2=None, nt=True, hmap="xcd", inter="wgtile", stamps=False, wnt=False, warm=True, sleep=1, qsleep=4,
        xp=(), bpos=(36, 40, 44, 48), cpos=(36, 40, 44, 48, 52, 56), masked=True, qrot=4, brot=4):
    C = []
    A = C.append
    ntf = " nt" if nt else ""
    wntf = " nt" if wnt else ""
    D2 = D if D2 is None else D2

    def stamp_at(k):
        if stamps:
            A(f"s_memrealtime s[{64 + 2 * k}:{65 + 2 * k}]")

    def stamp_store():
        if not stamps:
            return
        A("s_waitcnt lgkmcnt(0)")
        if stamps == "dbg":
            lab = f"L_dbg{len(C)}"
            A("s_and_b32 s4, s3, 7\ns_cmp_eq_u32 s4, 0")
            A(f"s_cbranch_scc0 {lab}")
            A("s_not_b32 s64, s64")
            A("s_cmp_eq_u32 s3, 8")
            sel0 = (0, 1, 2, 4, 5, 6, 7)
            sel8 = (2, 4, 5, 6, 7, 8, 9)
            A("s_mov_b64 exec, -1")
            for i in range(7):
                A(f"s_cselect_b32 s4, s{64 + 2 * sel8[i]}, s{64 + 2 * sel0[i]}")
                A(f"v_writelane_b32 v4, s4, {i}")
            A("s_lshl_b32 s4, s3, 2\ns_add_u32 s4, s4, 4\nv_lshl_add_u32 v1, v0, 2, s4")
            A("s_mov_b64 exec, 0x7f")
            A("global_atomic_umax v1, v4, s[36:37] sc1")
            A(f"{lab}:")
            return
        A("s_mov_b64 exec, 1")
        A("s_lshl_b32 s4, s2, 4\ns_add_u32 s4, s4, s3\ns_lshl_b32 s4, s4, 6")
        A(f"s_add_u32 s4, s4, {WS_STAMP}")
        A("v_mov_b32 v1, s4")
        A("s_getreg_b32 s94, hwreg(HW_REG_XCC_ID)")
        A("s_mov_b32 s92, s59")
        for q in range(4):
            for i in range(4):
                A(f"v_mov_b32 v{4 + i}, s{64 + 2 * (4 * q + i)}")
            A(f"global_store_dwordx4 v1, v[4:7], s[38:39] offset:{16 * q}")
            A("s_nop 1")

    def rowsum(a, op="add"):
        for s in (8, 4, 2, 1):
            A(f"v_{op}_f32_dpp v{a}, v{a}, v{a} row_ror:{s} {FULL}")

    def xrow(a, t, op="add"):
        A(f"v_mov_b32 v{t}, v{a}")
        A(f"v_permlane16_swap_b32 v{a}, v{t}")
        A(f"v_{op}_f32 v{a}, v{a}, v{t}")
        A(f"v_mov_b32 v{t}, v{a}")
        A(f"v_permlane32_swap_b32 v{a}, v{t}")
        A(f"v_{op}_f32 v{a}, v{a}, v{t}")

    def scatter4(r):
        A(f"v_permlane32_swap_b32 v{r}, v{r + 1}\nv_permlane32_swap_b32 v{r + 2}, v{r + 3}")
        A(f"v_add_f32 v{r}, v{r}, v{r + 1}\nv_add_f32 v{r + 2}, v{r + 2}, v{r + 3}")
        A(f"v_permlane16_swap_b32 v{r}, v{r + 2}")
        A(f"v_add_f32 v{r}, v{r}, v{r + 2}")

    def sigma(dst, t):
        A(f"v_bfe_u32 v{dst}, v0, 4, 1\nv_lshrrev_b32 v{t}, 5, v0\nv_lshl_add_u32 v{dst}, v{dst}, 1, v{t}")

    def rbf(a):
        A(f"v_cvt_pk_bf16_f32 v{a}, v{a}, v{a}")
        A(f"v_lshlrev_b32 v{a}, 16, v{a}")

    def ln_stats(vals, mean, den, rden, t0, t1, tmp):
        A(f"v_add_f32 v{t0}, v{vals[0]}, v{vals[1]}")
        A(f"v_add_f32 v{t1}, v{vals[2]}, v{vals[3]}")
        A(f"v_add_f32 v{mean}, v{vals[4]}, v{vals[5]}")
        A(f"v_add_f32 v{den}, v{vals[6]}, v{vals[7]}")
        A(f"v_add_f32 v{t0}, v{t0}, v{t1}")
        A(f"v_add_f32 v{mean}, v{mean}, v{den}")
        A(f"v_add_f32 v{mean}, v{mean}, v{t0}")
        rowsum(mean)
        xrow(mean, t0)
        A(f"v_mul_f32 v{mean}, 0x3b000000, v{mean}")
        for i in range(8):
            A(f"v_sub_f32 v{tmp[i]}, v{vals[i]}, v{mean}")
        A(f"v_mul_f32 v{den}, v{tmp[0]}, v{tmp[0]}")
        A(f"v_mul_f32 v{t1}, v{tmp[1]}, v{tmp[1]}")
        for i in range(2, 8, 2):
            A(f"v_fmac_f32 v{den}, v{tmp[i]}, v{tmp[i]}")
            A(f"v_fmac_f32 v{t1}, v{tmp[i + 1]}, v{tmp[i + 1]}")
        A(f"v_add_f32 v{den}, v{den}, v{t1}")
        rowsum(den)
        xrow(den, t0)
        A(f"v_mul_f32 v{den}, 0x3b000000, v{den}")
        A(f"v_cvt_pk_bf16_f32 v{t0}, v{mean}, v{den}")
        A(f"v_lshlrev_b32 v{mean}, 16, v{t0}")
        A(f"v_and_b32 v{den}, 0xffff0000, v{t0}")
        A(f"v_add_f32 v{den}, 0x3727c5ac, v{den}")
        rbf(den)
        A(f"v_sqrt_f32 v{t0}, v{den}")
        A(f"v_rsq_f32 v{t1}, v{den}")
        A(f"v_fma_f32 v{den}, -v{t0}, v{t0}, v{den}")
        A(f"v_mul_f32 v{t1}, 0.5, v{t1}")
        A(f"v_fma_f32 v{den}, v{den}, v{t1}, v{t0}")
        rbf(den)
        A(f"v_rcp_f32 v{rden}, v{den}")

    def ln_apply(xs, mean, den, rden, ts):
        for x in xs:
            A(f"v_sub_f32 v{x}, v{x}, v{mean}")
        for x in xs:
            A(f"v_cvt_pk_bf16_f32 v{x}, v{x}, v{x}")
        for x in xs:
            A(f"v_lshlrev_b32 v{x}, 16, v{x}")
        for x, t in zip(xs, ts):
            A(f"v_mul_f32 v{t}, v{x}, v{rden}")
        for x, t in zip(xs, ts):
            A(f"v_fma_f32 v{x}, -v{t}, v{den}, v{x}")
        for x, t in zip(xs, ts):
            A(f"v_fma_f32 v{x}, v{x}, v{rden}, v{t}")

    def poll(label, loads, regs, t, slp=None):
        slp = sleep if slp is None else slp
        A("s_mov_b32 s59, 0")
        A(f"{label}:")
        for l in loads:
            A(l)
        A("s_waitcnt vmcnt(0)")
        regs = list(regs)
        if len(regs) == 1:
            t = regs[0]
            rest = []
        elif len(regs) % 2 == 0:
            A(f"v_max_u32 v{t}, v{regs[0]}, v{regs[1]}")
            rest = regs[2:]
        else:
            A(f"v_max3_u32 v{t}, v{regs[0]}, v{regs[1]}, v{regs[2]}")
            rest = regs[3:]
        for i in range(0, len(rest), 2):
            A(f"v_max3_u32 v{t}, v{t}, v{rest[i]}, v{rest[i + 1]}")
        A(f"v_cmp_eq_u32 vcc, -1, v{t}")
        A(f"s_branch {label}_ok" if ("svc3" in xp and label in ("L_pollq", "L_pollall")) else f"s_cbranch_vccz {label}_ok")
        A("s_add_u32 s59, s59, 1")
        A(f"s_cmp_lt_u32 s59, {SPIN_MAX}")
        A(f"s_cbranch_scc0 {label}_ok")
        if masked:
            A("s_mov_b64 exec, vcc")
        if slp:
            A(f"s_sleep {slp}")
        A(f"s_branch {label}")
        A(f"{label}_ok:")
        if masked:
            A("s_mov_b64 exec, -1")

    def store_quad(val, addr, lo="0x11111111", hi="0x11111111"):
        for i in (1, 2, 3):
            A(f"v_mov_b32_dpp v{val + i}, v{val} quad_perm:[{i},{i},{i},{i}] {FULL}")
        A(f"s_mov_b32 exec_lo, {lo}\ns_mov_b32 exec_hi, {hi}")
        A(f"global_store_dwordx4 v{addr}, v[{val}:{val + 3}], s[38:39] sc1")
        A("s_mov_b64 exec, -1")

    def roles():
        A("s_bfe_u32 s13, s7, 0x10003\ns_lshl_b32 s4, s61, 1\ns_add_u32 s13, s13, s4")
        A("s_and_b32 s14, s7, 7")
        A("s_mul_i32 s15, s6, 14\ns_add_u32 s15, s15, s7")

    def p1slot(dst):
        A(f"s_lshl_b32 {dst}, s8, 5\ns_add_u32 {dst}, {dst}, s9\ns_mul_i32 {dst}, {dst}, {P1_STRIDE}\ns_add_u32 {dst}, {dst}, {WS_P1}")

    stamp_at(0)
    A("s_cmp_ge_u32 s2, 256")
    A("s_cbranch_scc1 L_end")
    A("s_load_dwordx16 s[16:31], s[0:1], 0")
    A("s_load_dwordx8 s[32:39], s[0:1], 64")
    A("v_lshrrev_b32 v1, 6, v0")
    A("v_and_b32 v0, 63, v0")
    A("v_readfirstlane_b32 s3, v1")
    A("s_and_b32 s6, s2, 7")
    A("s_lshr_b32 s7, s2, 3")
    if hmap == "xcd":
        A("s_mov_b32 s8, s6")
        A("s_mov_b32 s9, s7")
    else:
        A("s_and_b32 s8, s7, 7")
        A("s_lshr_b32 s9, s7, 3\ns_lshl_b32 s10, s6, 2\ns_add_u32 s9, s9, s10")
    A(f"s_add_u32 s60, s6, {qrot}\ns_and_b32 s60, s60, 7")
    A(f"s_add_u32 s61, s6, {brot}\ns_and_b32 s61, s61, 7")
    A("v_lshlrev_b32 v9, 4, v0")
    if warm:
        A("s_getpc_b64 s[48:49]")
        A("L_pc:")
        A(f"s_sub_u32 s48, s48, L_pc-{NAME}_kernel\ns_subb_u32 s49, s49, 0")
        A("s_lshl_b32 s4, s3, 11")
        A("v_add_u32 v2, s4, v9")
        A("v_add_u32 v3, 1024, v2")
        A(f"s_mov_b32 s4, L_codeend-{NAME}_kernel-16")
        A("v_min_u32 v2, s4, v2\nv_min_u32 v3, s4, v3")
        A("global_load_dwordx4 v[20:23], v2, s[48:49]")
        A("global_load_dwordx4 v[20:23], v3, s[48:49]")
    A("s_cmp_eq_u32 s3, 8")
    A("s_cbranch_scc0 L_stream")
    A("s_setprio 3")
    A(f"v_mov_b32 v98, {L_F}\nv_mov_b32 v99, 0")
    A("ds_write_b32 v98, v99")
    if "svcoff" in xp:
        A("s_waitcnt lgkmcnt(0)\ns_branch L_svcbar")
    A("v_lshrrev_b32 v2, 3, v0\nv_and_b32 v3, 7, v0\nv_lshlrev_b32 v2, 17, v2\nv_lshl_add_u32 v2, v3, 4, v2")
    A("s_and_b32 s4, s7, 3\ns_lshl_b32 s4, s4, 20\ns_lshl_b32 s5, s60, 10\ns_add_u32 s4, s4, s5\ns_lshr_b32 s5, s7, 2\ns_lshl_b32 s5, s5, 7\ns_add_u32 s4, s4, s5")
    for i in range(4):
        A(f"v_mov_b32 v{100 + i}, -1")
    A("s_mov_b32 s42, 0x400000\ns_mov_b32 s43, 0x20000\ns_movk_i32 s5, 0x2000")
    A("s_cmp_eq_u32 s7, 0")
    A("s_waitcnt lgkmcnt(0)")
    A("s_barrier")
    A("s_cbranch_scc1 L_qclear")
    A("L_qcleared:")
    A("s_mov_b32 s40, s22\ns_and_b32 s41, s23, 0xffff")
    A("global_load_dwordx4 v[4:7], v9, s[16:17]")
    WQ = 32
    for i in range(16):
        A(f"buffer_load_dwordx4 v[{WQ + 4 * i}:{WQ + 4 * i + 3}], v2, s[40:43], s4 offen{wntf}")
        if i < 15:
            A("s_add_u32 s4, s4, s5")
    A("s_branch L_service")

    A("L_stream:")
    vKS = (1, 2, 3, 4)
    vKR = (5, 6, 7, 8)
    vV, vM, vML, vL = 9, 10, 11, 12
    PK = (13, 14)
    vAl = 15
    SEL = (16, 17, 18, 19)
    S = (20, 21, 22, 23)
    T = (24, 25, 26, 27)
    BB = 28
    vT2 = 38
    ACC = (40, 44)
    QF = 48
    KF = 64
    VR = [80 + 16 * i for i in range(VRING)]
    A("v_lshrrev_b32 v24, 4, v0")
    A("v_lshlrev_b32 v25, 6, v24")
    A(f"v_xor_b32 v{vKS[0]}, v{vV}, v25")
    for i in (1, 2, 3):
        A(f"v_xor_b32 v{vKS[i]}, {16 * i}, v{vKS[0]}")
    A("s_lshl_b32 s10, s8, 23")
    if inter == "wgtile":
        A("s_lshl_b32 s11, s9, 18\ns_add_u32 s10, s10, s11\ns_lshl_b32 s11, s3, 12\ns_add_u32 s10, s10, s11")
        step = 8 * 4096
    elif inter == "contig":
        A("s_lshl_b32 s11, s9, 18\ns_add_u32 s10, s10, s11\ns_lshl_b32 s11, s3, 15\ns_add_u32 s10, s10, s11")
        step = 4096
    elif inter == "global":
        A("s_lshl_b32 s11, s9, 15\ns_add_u32 s10, s10, s11\ns_lshl_b32 s11, s3, 12\ns_add_u32 s10, s10, s11")
        step = 256 * 4096
    A("s_mov_b32 s11, s10")
    A(f"s_mul_i32 s56, s3, {KRING * 4096}\ns_add_u32 s56, s56, {L_K}")
    A("s_mov_b32 m0, s56")
    A("s_mov_b32 s42, 0x4000000\ns_mov_b32 s43, 0x20000\ns_mov_b32 s46, 0x4000000\ns_mov_b32 s47, 0x20000")
    A("s_waitcnt lgkmcnt(0)")
    A("s_barrier")
    A("s_mov_b32 s40, s18\ns_and_b32 s41, s19, 0xffff\ns_mov_b32 s44, s20\ns_and_b32 s45, s21, 0xffff")
    vm = VM()
    ids = {}
    m0k = [0]
    order = ["K0", "V0", "K1", "V1", "K2", "V2", "V3", "V4", "K3", "K4", "K5", "V5", "K6", "V6", "K7", "V7"]
    seq = [(g[0], int(g[1]), u) for g in order for u in range(4)]
    NPRE = 4 * (KRING + VRING)

    def W(opid):
        w = vm.wait(opid)
        if w:
            A(w)

    wB = [("s58", L_W + 1024 * i, "v160", "s[24:25]", "v_add_u32 v160, 0x2000, v160") for i in range(4)]
    wC = [("s57", L_W, "v161", "s[28:29]", None), ("s57", L_W + 16384, "v161", "s[30:31]", f"v_add_u32 v161, {32 * 3584}, v161"),
          ("s57", L_W + 1024, "v161", "s[28:29]", None), ("s57", L_W + 16384 + 1024, "v161", "s[30:31]", None),
          ("s57", L_W + 32768, "v162", "s[32:33]", "v_add_u32 v162, 1024, v162"), ("s57", L_W + 32768 + 1024, "v162", "s[32:33]", None)]

    def wload(piece):
        so, lo, va, base, upd = piece
        A(f"s_add_u32 m0, {so}, {lo}")
        A(f"global_load_lds_dwordx4 {va}, {base}{wntf}")
        if upd:
            A(upd)

    def wslot(n):
        for role, pos, pieces, cond in (("B", bpos, wB, "s_cmp_ge_u32 s7, 16"), ("C", cpos, wC, "s_cmp_lt_u32 s7, 14")):
            ks = [k for k, p in enumerate(pos) if p == n]
            if ks and "now" not in xp:
                lab = f"L_w{role}{n}"
                A(cond)
                A(f"s_cbranch_scc0 {lab}")
                for k in ks:
                    wload(pieces[k])
                A(f"{lab}:")
                m0k[0] = None

    def load(n):
        mat, t, u = seq[n]
        d = D if n < NPRE else D2
        if n >= d:
            W(ids[seq[n - d]])
        wslot(n)
        if mat == "K":
            if m0k[0] != t:
                m0k[0] = t
                A(f"s_add_u32 m0, s56, {4096 * (t % KRING)}")
            A(f"buffer_load_dwordx4 v{vKS[u]}, s[40:43], s10 offen offset:{1024 * u}{ntf} lds")
            if u == 3:
                A(f"s_add_u32 s10, s10, {step}")
        else:
            r = VR[t % VRING] + 4 * u
            A(f"buffer_load_dwordx4 v[{r}:{r + 3}], v{vV}, s[44:47], s11 offen offset:{1024 * u}{ntf}")
            if u == 3:
                A(f"s_add_u32 s11, s11, {step}")
        ids[seq[n]] = vm.issue()

    def consts():
        A("v_and_b32 v24, 3, v0")
        A("v_mov_b32 v25, 0x0c0c0c0c")
        for k, (lo, e0) in enumerate(((0x0100, 0), (0x0100, 2), (0x0302, 0), (0x0302, 2))):
            A(f"v_mov_b32 v26, {hex(0x0c0c0000 | lo)}")
            A(f"v_mov_b32 v27, {hex((lo << 16) | 0x0c0c)}")
            A(f"v_cmp_eq_u32 vcc, {e0}, v24")
            A(f"v_cndmask_b32 v{SEL[k]}, v25, v26, vcc")
            A(f"v_cmp_eq_u32 vcc, {e0 + 1}, v24")
            A(f"v_cndmask_b32 v{SEL[k]}, v{SEL[k]}, v27, vcc")
        for z in (0, 1, 4, 5, 8, 9):
            A(f"v_mov_b32 v{BB + z}, 0")
        A(f"s_mov_b32 s12, {hex(LOG2E)}")
        A("v_bfe_u32 v25, v0, 2, 2")
        A("v_lshrrev_b32 v26, 4, v0")
        A("v_lshlrev_b32 v27, 8, v25")
        A(f"v_lshl_add_u32 v{vT2}, v26, 4, v27")
        A("v_lshl_add_u32 v25, v24, 2, v25")
        A("v_and_b32 v27, 15, v0")
        A("v_xor_b32 v26, v26, v27")
        A("v_lshlrev_b32 v26, 4, v26")
        A("v_lshl_add_u32 v26, v25, 8, v26")
        for u in range(4):
            A(f"v_xor_b32 v{vKR[u]}, {64 * u}, v26")
            A(f"v_add_u32 v{vKR[u]}, s56, v{vKR[u]}")
        roles()
        A("s_lshl_b32 s4, s13, 3\ns_add_u32 s4, s4, s3\ns_lshl_b32 s4, s4, 15\ns_lshl_b32 s5, s14, 7\ns_add_u32 s4, s4, s5")
        A("v_lshrrev_b32 v160, 3, v0\nv_and_b32 v161, 7, v0\nv_lshlrev_b32 v160, 10, v160\nv_lshl_add_u32 v160, v161, 4, v160\nv_add_u32 v160, s4, v160")
        A("s_lshl_b32 s4, s3, 6\nv_lshrrev_b32 v161, 1, v0\nv_add_u32 v161, s4, v161\nv_mul_u32_u24 v161, 3584, v161")
        A("v_and_b32 v162, 1, v0\nv_lshl_add_u32 v161, v162, 4, v161\ns_lshl_b32 s4, s15, 5\nv_add_u32 v161, s4, v161")
        A(f"s_lshl_b32 s4, s15, 3\ns_add_u32 s4, s4, s3\ns_lshl_b32 s4, s4, 11\nv_add_u32 v162, s4, v{vV}")
        A("s_lshl_b32 s57, s3, 11\ns_lshl_b32 s58, s3, 12")

    def qk(t, last=False):
        W(ids[("K", t, 3)])
        if "nocomp" in xp and not last:
            return
        k = KF
        for u in range(4):
            A(f"ds_read_b128 v[{k + 4 * u}:{k + 4 * u + 3}], v{vKR[u]} offset:{4096 * (t % KRING)}")
        for u in range(4):
            c = "0" if u == 0 else f"v[{S[0]}:{S[3]}]"
            A("s_waitcnt lgkmcnt(0)" if stamps else f"s_waitcnt lgkmcnt({3 - u})")
            A(f"v_mfma_f32_16x16x32_bf16 v[{S[0]}:{S[3]}], v[{k + 4 * u}:{k + 4 * u + 3}], v[{QF + 4 * u}:{QF + 4 * u + 3}], {c}")
        if last:
            A("v_bfe_u32 v26, v0, 2, 2")
            A("v_lshlrev_b32 v26, 5, v26")
            A("s_lshl_b32 s4, s3, 2")
            A("v_add_u32 v27, s4, v26")
        for rnd in range(2):
            A(f"v_cvt_pk_bf16_f32 v{T[0]}, v{S[0]}, v{S[1]}")
            A(f"v_cvt_pk_bf16_f32 v{T[1]}, v{S[2]}, v{S[3]}")
            A(f"v_lshlrev_b32 v{S[0]}, 16, v{T[0]}")
            A(f"v_and_b32 v{S[1]}, 0xffff0000, v{T[0]}")
            A(f"v_lshlrev_b32 v{S[2]}, 16, v{T[1]}")
            A(f"v_and_b32 v{S[3]}, 0xffff0000, v{T[1]}")
            if rnd == 0:
                for r in range(4):
                    A(f"v_mul_f32 v{S[r]}, {hex(SCALE)}, v{S[r]}")
        if t == 0:
            A(f"v_max_f32 v{vM}, v{S[0]}, v{S[1]}")
            A(f"v_max3_f32 v{vM}, v{vM}, v{S[2]}, v{S[3]}")
        else:
            A(f"v_max3_f32 v{vM}, v{vM}, v{S[0]}, v{S[1]}")
            A(f"v_max3_f32 v{vM}, v{vM}, v{S[2]}, v{S[3]}")
        xrow(vM, T[0], "max")
        if last:
            A("s_mov_b64 exec, 0x1111")
            A(f"ds_write_b32 v27, v{vM} offset:{L_M}")
            A("s_mov_b64 exec, -1")
            A("s_waitcnt lgkmcnt(0)")
            A("s_barrier")
            k0 = KF
            A(f"ds_read_b128 v[{k0}:{k0 + 3}], v26 offset:{L_M}")
            A(f"ds_read_b128 v[{k0 + 4}:{k0 + 7}], v26 offset:{L_M + 16}")
            A("s_waitcnt lgkmcnt(0)")
            A(f"v_max3_f32 v{vM}, v{k0}, v{k0 + 1}, v{k0 + 2}")
            A(f"v_max3_f32 v{vM}, v{vM}, v{k0 + 3}, v{k0 + 4}")
            A(f"v_max3_f32 v{vM}, v{vM}, v{k0 + 5}, v{k0 + 6}")
            A(f"v_max_f32 v{vM}, v{vM}, v{k0 + 7}")
        if t > 0:
            A(f"v_mov_b32 v{vAl}, v{vML}")
        A(f"v_mul_f32 v{vML}, s12, v{vM}")
        if t > 0:
            A(f"v_sub_f32 v{vAl}, v{vAl}, v{vML}")
            A(f"v_exp_f32 v{vAl}, v{vAl}")
        for r in range(4):
            A(f"v_fma_f32 v{S[r]}, v{S[r]}, s12, -v{vML}")
        for r in range(4):
            A(f"v_exp_f32 v{S[r]}, v{S[r]}")
        if t > 0:
            for a in range(8):
                A(f"v_mul_f32 v{ACC[0] + a}, v{vAl}, v{ACC[0] + a}")
        A(f"v_add_f32 v{T[0]}, v{S[0]}, v{S[1]}")
        A(f"v_add_f32 v{T[1]}, v{S[2]}, v{S[3]}")
        A(f"v_cvt_pk_bf16_f32 v{PK[0]}, v{S[0]}, v{S[1]}")
        A(f"v_cvt_pk_bf16_f32 v{PK[1]}, v{S[2]}, v{S[3]}")
        if t == 0:
            A(f"v_add_f32 v{vL}, v{T[0]}, v{T[1]}")
        else:
            A(f"v_add_f32 v{T[0]}, v{T[0]}, v{T[1]}")
            A(f"v_fma_f32 v{vL}, v{vL}, v{vAl}, v{T[0]}")
        if last:
            xrow(vL, T[0])
            A("s_mov_b64 exec, 0x1111")
            A(f"ds_write_b32 v27, v{vL} offset:{L_L}")
            A("s_mov_b64 exec, -1")

    def pv(t, last=False):
        v = VR[t % VRING]
        if "nocomp" in xp and not last:
            W(ids[("V", t, 3)])
            return

        def perm(i):
            b = BB + 2 + 4 * (i & 1)
            A(f"v_perm_b32 v{b}, v{PK[i >> 1]}, v{PK[i >> 1]}, v{SEL[2 * (i & 1)]}")
            A(f"v_perm_b32 v{b + 1}, v{PK[i >> 1]}, v{PK[i >> 1]}, v{SEL[2 * (i & 1) + 1]}")
        perm(0)
        perm(1)
        if not last:
            W(ids[("V", t, 3)])
        else:
            A(f"v_add_u32 v64, s56, v{vV}")
            A("v_and_b32 v65, 15, v0\nv_bfe_u32 v66, v0, 4, 1\nv_mul_u32_u24 v66, 272, v66\nv_add_u32 v65, v65, v66")
            A("v_lshrrev_b32 v66, 5, v0\nv_lshl_add_u32 v65, v66, 4, v65\ns_lshl_b32 s4, s3, 7")
            A(f"s_add_u32 s4, s4, {L_K}\nv_lshl_add_u32 v65, v65, 2, s4")
            A(f"v_add_u32 v66, {4 * KRING * 4096}, v65")
            p1slot("s4")
            A("s_lshl_b32 s5, s3, 8\ns_add_u32 s5, s5, s4\nv_lshl_add_u32 v67, v0, 2, s5")
        for i in range(4):
            if last:
                W(ids[("V", t, i)])
            b = BB + 2 + 4 * (i & 1)
            for h in range(2):
                c = "0" if (t == 0 and i == 0) else f"v[{ACC[h]}:{ACC[h] + 3}]"
                bb = b if h == 0 else b - 2
                A(f"v_mfma_f32_16x16x32_bf16 v[{ACC[h]}:{ACC[h] + 3}], v[{v + 4 * i}:{v + 4 * i + 3}], v[{bb}:{bb + 3}], {c}")
            if i < 2:
                perm(i + 2)

    for n in range(NPRE):
        load(n)
        if n == D - 1:
            consts()
    stamp_at(1)
    A(f"v_mov_b32 v24, {L_F}\ns_mov_b32 s5, 0")
    A("L_waitq:")
    A("ds_read_b32 v25, v24")
    A("s_waitcnt lgkmcnt(0)")
    A("v_cmp_ne_u32 vcc, 0, v25")
    A("s_cbranch_vccnz L_waitq_ok")
    A(f"s_add_u32 s5, s5, 1\ns_cmp_lt_u32 s5, {SPIN_MAX * 64}\ns_cbranch_scc0 L_waitq_ok")
    A("s_sleep 1")
    A("s_branch L_waitq")
    A("L_waitq_ok:")
    stamp_at(2)
    for u in range(4):
        A(f"ds_read_b128 v[{QF + 4 * u}:{QF + 4 * u + 3}], v{vT2} offset:{L_Q + 64 * u}")
    A("s_waitcnt lgkmcnt(0)")
    blocks = []
    for t in range(7):
        blocks += [(qk, t, ("K", t, 3)), (pv, t, ("V", t, 3))]
    bi = 0
    for n in range(NPRE, len(seq)):
        mat, t, u = seq[n]
        needb = {"K": 2 * (t - KRING) + 1, "V": 2 * (t - VRING) + 2}[mat]
        while bi < needb:
            blocks[bi][0](blocks[bi][1])
            bi += 1
        load(n)
        if bi < len(blocks) and blocks[bi][2] in ids and ids[blocks[bi][2]] <= vm.done:
            blocks[bi][0](blocks[bi][1])
            bi += 1
    while bi < len(blocks):
        blocks[bi][0](blocks[bi][1])
        bi += 1
    qk(7, last=True)
    stamp_at(3)
    pv(7, last=True)
    stamp_at(4)
    A(f"ds_write_b128 v64, v[{ACC[0]}:{ACC[0] + 3}]")
    A(f"ds_write_b128 v64, v[{ACC[1]}:{ACC[1] + 3}] offset:1088")
    A("s_waitcnt lgkmcnt(0)")
    A("s_barrier")
    R0 = 72
    for i in range(8):
        A(f"ds_read_b32 v{R0 + i}, v{65 + (i >> 2)} offset:{KRING * 4096 * (i & 3)}")
    A("s_cmp_eq_u32 s3, 7")
    A("s_waitcnt lgkmcnt(0)")
    for i in range(4):
        A(f"v_add_f32 v{R0 + i}, v{R0 + i}, v{R0 + 4 + i}")
    A(f"v_add_f32 v{R0}, v{R0}, v{R0 + 1}")
    A(f"v_add_f32 v{R0 + 2}, v{R0 + 2}, v{R0 + 3}")
    A(f"v_add_f32 v{R0}, v{R0}, v{R0 + 2}")
    store_quad(R0, 67)
    A("s_cbranch_scc0 L_noml")
    A(f"ds_read_b128 v[80:83], v26 offset:{L_L}")
    A(f"ds_read_b128 v[84:87], v26 offset:{L_L + 16}")
    A("s_add_u32 s4, s4, 2048\nv_lshrrev_b32 v16, 2, v26\nv_add_u32 v16, s4, v16")
    A("s_waitcnt lgkmcnt(0)")
    for i in range(4):
        A(f"v_add_f32 v{80 + i}, v{80 + i}, v{84 + i}")
    A("v_add_f32 v80, v80, v81\nv_add_f32 v82, v82, v83\nv_add_f32 v81, v80, v82")
    A(f"v_mov_b32 v80, v{vML}")
    A("s_mov_b64 exec, 0x1111")
    A("global_store_dwordx2 v16, v[80:81], s[38:39] sc1")
    A("s_mov_b64 exec, -1")
    A("L_noml:")
    stamp_at(5)
    A("s_cmp_lt_u32 s7, 14")
    A("s_cbranch_scc1 L_ffn")
    A("s_cmp_lt_u32 s7, 16")
    A("s_cbranch_scc1 L_final")
    A(f"s_lshl_b32 s4, s61, 5\nv_lshrrev_b32 v16, 3, v0\nv_add_u32 v16, s4, v16\nv_mul_u32_u24 v16, {P1_STRIDE}, v16")
    A("s_and_b32 s4, s13, 1\ns_lshl_b32 s4, s4, 1\ns_lshr_b32 s5, s3, 2\ns_add_u32 s4, s4, s5")
    A(f"s_lshl_b32 s5, s4, 3\ns_add_u32 s5, s5, {WS_P1 + 2048}")
    A("v_add_u32 v20, s5, v16")
    A(f"s_and_b32 s5, s3, 3\ns_lshl_b32 s5, s5, 2\ns_add_u32 s4, s4, s5\ns_lshl_b32 s4, s4, 7\ns_add_u32 s4, s4, {WS_P1}")
    A("v_and_b32 v17, 7, v0\nv_lshl_add_u32 v16, v17, 4, v16\nv_add_u32 v24, s4, v16")
    for pi in range(1, 4):
        A(f"v_add_u32 v{20 + pi}, {8 * pi * P1_STRIDE}, v20")
        A(f"v_add_u32 v{24 + pi}, {8 * pi * P1_STRIDE}, v24")
    sigma(16, 17)
    A("v_bfe_u32 v17, v0, 2, 2\nv_lshl_add_u32 v16, v16, 3, v17\nv_lshlrev_b32 v16, 7, v16")
    A("v_and_b32 v17, 3, v0\nv_lshl_add_u32 v16, v17, 3, v16\nv_add_u32 v16, s58, v16")
    WB = 88
    for tau in range(4):
        for t in range(2):
            r = WB + 4 * tau + 2 * t
            A(f"ds_read_b64_tr_b16 v[{r}:{r + 1}], v16 offset:{L_W + 512 * t + 32 * tau}")
    A("s_lshl_b32 s4, s3, 8\nv_lshl_add_u32 v18, v0, 2, s4")
    A(f"s_lshl_b32 s4, s13, 11\ns_lshl_b32 s5, s14, 8\ns_add_u32 s4, s4, s5\ns_add_u32 s4, s4, {WS_P2}")
    A("v_lshlrev_b32 v19, 2, v0\nv_add_u32 v28, s4, v19")
    D0, ML = 120, 136
    loads = []
    for pi in range(4):
        loads.append(f"global_load_dwordx2 v[{ML + 2 * pi}:{ML + 2 * pi + 1}], v{20 + pi}, s[38:39] sc1")
        loads.append(f"global_load_dwordx4 v[{D0 + 4 * pi}:{D0 + 4 * pi + 3}], v{24 + pi}, s[38:39] sc1")
    poll("L_poll1", loads, range(120, 144), 16)
    stamp_at(6)
    A(f"v_max3_f32 v16, v{ML}, v{ML + 2}, v{ML + 4}\nv_max_f32 v16, v16, v{ML + 6}")
    A(f"v_max_f32_dpp v16, v16, v16 row_ror:8 {FULL}")
    xrow(16, 17, "max")
    for pi in range(4):
        A(f"v_sub_f32 v{ML + 2 * pi}, v{ML + 2 * pi}, v16")
    for pi in range(4):
        A(f"v_exp_f32 v{ML + 2 * pi}, v{ML + 2 * pi}")
    A(f"v_mul_f32 v16, v{ML}, v{ML + 1}")
    for e in range(4):
        A(f"v_mul_f32 v{D0 + e}, v{ML}, v{D0 + e}")
    for pi in range(1, 4):
        A(f"v_fmac_f32 v16, v{ML + 2 * pi}, v{ML + 2 * pi + 1}")
        for e in range(4):
            A(f"v_fmac_f32 v{D0 + e}, v{ML + 2 * pi}, v{D0 + 4 * pi + e}")
    A(f"v_add_f32_dpp v16, v16, v16 row_ror:8 {FULL}")
    scatter4(D0)
    xrow(16, 17)
    A(f"v_add_f32_dpp v{D0}, v{D0}, v{D0} row_ror:8 {FULL}")
    A("v_rcp_f32 v16, v16")
    A(f"v_mul_f32 v{D0}, v{D0}, v16")
    A(f"v_mov_b32_dpp v{D0 + 1}, v{D0} quad_perm:[1,0,3,2] {FULL}")
    A(f"v_cvt_pk_bf16_f32 v{D0}, v{D0}, v{D0 + 1}")
    for e in range(4):
        A(f"v_mov_b32_dpp v{124 + e}, v{D0} row_newbcast:{2 * e} {FULL}")
    A("s_waitcnt lgkmcnt(0)")
    for tau in range(4):
        A(f"v_mfma_f32_16x16x32_bf16 v[{128 + 4 * tau}:{131 + 4 * tau}], v[124:127], v[{WB + 4 * tau}:{WB + 4 * tau + 3}], 0")
    for tau in range(1, 4):
        A(f"v_mov_b32_dpp v128, v{128 + 4 * tau} quad_perm:[0,1,2,3] row_mask:{hex(1 << tau)} bank_mask:0xf")
    A(f"ds_write_b32 v18, v128 offset:{L_B}")
    A("s_cmp_eq_u32 s3, 0")
    A("s_waitcnt lgkmcnt(0)")
    A("s_barrier")
    A("s_cbranch_scc0 L_bdone")
    for i in range(8):
        A(f"ds_read_b32 v{120 + i}, v19 offset:{L_B + 256 * i}")
    A("s_waitcnt lgkmcnt(0)")
    for i in range(4):
        A(f"v_add_f32 v{120 + i}, v{120 + i}, v{124 + i}")
    A("v_add_f32 v120, v120, v121\nv_add_f32 v122, v122, v123\nv_add_f32 v120, v120, v122")
    store_quad(120, 28)
    A("L_bdone:")
    stamp_at(7)
    stamp_store()
    A("s_endpgm")
    A("L_ffn:")
    late = [k for k, p in enumerate(cpos) if p == "end"]
    if "now" not in xp:
        for k in late:
            wload(wC[k])
    vCol = 65
    sigma(16, 17)
    A("v_and_b32 v17, 15, v0\nv_lshl_add_u32 v16, v17, 2, v16")
    A(f"s_lshl_b32 s4, s3, 6\nv_add_u32 v{vCol}, s4, v16")
    A(f"v_lshlrev_b32 v29, 1, v{vCol}")
    A(f"ds_read_u16_d16_hi v64, v29 offset:{L_X}")
    A(f"s_lshl_b32 s4, s3, 8\ns_add_u32 s4, s4, {WS_P2}")
    A("v_lshrrev_b32 v18, 4, v0\nv_lshlrev_b32 v19, 13, v18\nv_lshl_add_u32 v16, v17, 4, v19\nv_add_u32 v20, s4, v16")
    A("v_add_u32 v21, 0x1000, v20")
    A(f"s_lshl_b32 s4, s15, 11\ns_add_u32 s4, s4, {WS_P3}\ns_lshl_b32 s5, s3, 8\ns_add_u32 s4, s4, s5")
    A("v_lshl_add_u32 v22, v0, 2, s4")
    A(f"v_lshlrev_b32 v23, 2, v{vCol}")
    A("v_lshlrev_b32 v24, 5, v0")
    A("s_lshl_b32 s4, s3, 7\nv_lshl_add_u32 v25, v18, 4, s4")
    A("v_lshl_add_u32 v26, v0, 2, s4")
    A("v_lshlrev_b32 v27, 8, v18\nv_lshl_add_u32 v27, v17, 2, v27")
    A("v_lshl_add_u32 v28, v0, 1, s4")
    A("v_bfe_u32 v16, v0, 2, 2\nv_lshl_add_u32 v16, v18, 3, v16\nv_lshlrev_b32 v16, 5, v16")
    A("v_and_b32 v17, 3, v0\nv_lshl_add_u32 v16, v17, 3, v16\nv_add_u32 v16, s57, v16")
    if late:
        A("s_waitcnt vmcnt(0)")
        A("s_barrier")
    GW = 88
    for mat in range(2):
        for kap in range(2):
            for t in range(2):
                r = GW + 8 * mat + 4 * kap + 2 * t
                A(f"ds_read_b64_tr_b16 v[{r}:{r + 1}], v16 offset:{L_W + 16384 * mat + 1024 * kap + 128 * t}")
    DW = 104
    for r in range(16):
        if r == 6:
            A("s_waitcnt lgkmcnt(0)")
        A(f"ds_read_u16_d16_hi v{DW + r}, v28 offset:{L_W + 32768 + 1024 * r}")
    loads = [f"global_load_dwordx4 v[{120 + 4 * i}:{123 + 4 * i}], v{20 + (i >> 1)}, s[38:39] offset:{2048 * (i & 1)} sc1" for i in range(4)]
    poll("L_poll2", loads, range(120, 136), 16)
    stamp_at(6)
    for e in range(4):
        A(f"v_add_f32 v{120 + e}, v{120 + e}, v{124 + e}")
        A(f"v_add_f32 v{128 + e}, v{128 + e}, v{132 + e}")
    for e in range(4):
        A(f"v_add_f32 v{120 + e}, v{120 + e}, v{128 + e}")
    scatter4(120)
    rbf(120)
    A("s_waitcnt lgkmcnt(0)")
    A("v_add_f32 v120, v120, v64")
    rbf(120)
    A(f"ds_write_b32 v23, v120 offset:{L_H}")
    A("s_waitcnt lgkmcnt(0)")
    A("s_barrier")
    A(f"ds_read_b128 v[124:127], v24 offset:{L_H}")
    A(f"ds_read_b128 v[128:131], v24 offset:{L_H + 16}")
    A("s_waitcnt lgkmcnt(0)")
    stamp_at(8)
    ln_stats(list(range(124, 132)), 16, 17, 18, 19, 30, list(range(132, 140)))
    ln_apply([120], 16, 17, 18, [19])
    A("v_cvt_pk_bf16_f32 v120, v120, v120")
    A(f"ds_write_b16 v29, v120 offset:{L_HN}")
    A("s_waitcnt lgkmcnt(0)")
    A(f"ds_read_b128 v[124:127], v25 offset:{L_HN}")
    A(f"ds_read_b128 v[128:131], v25 offset:{L_HN + 64}")
    A("s_waitcnt lgkmcnt(0)")
    stamp_at(9)
    A(f"v_mfma_f32_16x16x32_bf16 v[132:135], v[124:127], v[{GW}:{GW + 3}], 0")
    A(f"v_mfma_f32_16x16x32_bf16 v[136:139], v[124:127], v[{GW + 8}:{GW + 11}], 0")
    A(f"v_mfma_f32_16x16x32_bf16 v[132:135], v[128:131], v[{GW + 4}:{GW + 7}], v[132:135]")
    A(f"v_mfma_f32_16x16x32_bf16 v[136:139], v[128:131], v[{GW + 12}:{GW + 15}], v[136:139]")
    A("v_mov_b32_dpp v132, v136 quad_perm:[0,1,2,3] row_mask:0x2 bank_mask:0xf")
    A("s_mov_b32 exec_hi, 0")
    A(f"ds_write_b32 v26, v132 offset:{L_G}")
    A("s_mov_b64 exec, -1")
    A("s_waitcnt lgkmcnt(0)")
    A("s_barrier")
    A(f"ds_read2_b32 v[120:121], v27 offset0:{L_G // 4 % 256} offset1:{L_G // 4 % 256 + 16}" if False else
      f"ds_read_b32 v120, v27 offset:{L_G}\nds_read_b32 v122, v27 offset:{L_G + 64}\nds_read_b32 v121, v27 offset:{L_G + 128}\nds_read_b32 v123, v27 offset:{L_G + 192}")
    A("s_waitcnt lgkmcnt(0)")
    stamp_at(10)
    A("v_add_f32 v120, v120, v121\nv_add_f32 v122, v122, v123")
    A("v_permlane32_swap_b32 v120, v122")
    A("v_add_f32 v120, v120, v122")
    A("v_mov_b32 v121, v120")
    A("v_permlane16_swap_b32 v120, v121")
    A("v_add_f32 v120, v120, v121")
    rbf(120)
    A("v_mov_b32 v121, v120")
    A("v_permlane32_swap_b32 v120, v121")
    A("v_mul_f32 v122, v120, v120")
    A("v_mul_f32 v122, v122, v120")
    A("v_mov_b32 v123, v120")
    A("v_fmac_f32 v123, 0x3d372713, v122")
    A("v_mul_f32 v123, 0xc0135761, v123")
    A("v_exp_f32 v123, v123")
    A("v_add_f32 v123, 1.0, v123")
    A("v_rcp_f32 v123, v123")
    A("v_mul_f32 v120, v120, v123")
    rbf(120)
    A("v_mul_f32 v120, v120, v121")
    rbf(120)
    for r in range(16):
        op = "mul" if r < 2 else "fmac"
        A(f"v_{op}_f32_dpp v{124 + (r & 1)}, v120, v{DW + r} row_newbcast:{r} {FULL}")
    A("v_add_f32 v124, v124, v125")
    store_quad(124, 22)
    stamp_at(7)
    stamp_store()
    A("s_endpgm")
    A("L_final:")
    A("s_sub_u32 s15, s7, 14\ns_lshl_b32 s4, s6, 1\ns_add_u32 s15, s15, s4")
    A("v_and_b32 v16, 7, v0\nv_lshrrev_b32 v17, 3, v0\nv_lshlrev_b32 v17, 11, v17\nv_lshl_add_u32 v17, v16, 4, v17")
    A("v_and_b32 v22, 31, v0\ns_lshl_b32 s4, s15, 6\nv_lshl_add_u32 v18, v22, 1, s4")
    A(f"ds_read_u16_d16_hi v19, v18 offset:{L_X}")
    A("v_lshlrev_b32 v22, 2, v22")
    sigma(23, 24)
    A("v_lshl_add_u32 v23, v16, 2, v23\ns_lshl_b32 s4, s3, 7\nv_lshl_add_u32 v23, v23, 2, s4")
    A(f"s_lshl_b32 s4, s3, 15\ns_add_u32 s4, s4, {WS_P3}")
    A("s_cmp_eq_u32 s3, 7")
    A(f"s_cselect_b32 s4, {WS_P2}, s4")
    A("s_lshl_b32 s5, s15, 7\ns_add_u32 s4, s4, s5")
    A("v_add_u32 v20, s4, v17\nv_add_u32 v21, 0x4000, v20")
    loads = [f"global_load_dwordx4 v[{120 + 4 * i}:{123 + 4 * i}], v{20 + i}, s[38:39] sc1" for i in range(2)]
    poll("L_poll3", loads, range(120, 128), 16)
    stamp_at(6)
    for e in range(4):
        A(f"v_add_f32 v{120 + e}, v{120 + e}, v{124 + e}")
    scatter4(120)
    A(f"v_add_f32_dpp v120, v120, v120 row_ror:8 {FULL}")
    A("s_mov_b32 exec_lo, 0x00ff00ff\ns_mov_b32 exec_hi, 0x00ff00ff")
    A(f"ds_write_b32 v23, v120 offset:{L_B}")
    A("s_mov_b64 exec, -1")
    A("s_cmp_eq_u32 s3, 0")
    A("s_waitcnt lgkmcnt(0)")
    A("s_barrier")
    A("s_cbranch_scc0 L_ddone")
    for i in range(8):
        A(f"ds_read_b32 v{120 + i}, v22 offset:{L_B + 128 * i}")
    A("s_waitcnt lgkmcnt(0)")
    rbf(127)
    A("v_add_f32 v120, v120, v121\nv_add_f32 v122, v122, v123\nv_add_f32 v124, v124, v125")
    A("v_add_f32 v127, v127, v19")
    A("v_add_f32 v120, v120, v122\nv_add_f32 v124, v124, v126")
    rbf(127)
    A("v_add_f32 v120, v120, v124")
    rbf(120)
    A("v_add_f32 v120, v120, v127")
    A(f"v_mov_b32_dpp v121, v120 quad_perm:[1,0,3,2] {FULL}")
    A("v_cvt_pk_bf16_f32 v120, v120, v121")
    A("s_mov_b64 exec, 0x55555555")
    A("global_store_dword v18, v120, s[34:35]")
    A("L_ddone:")
    stamp_at(7)
    stamp_store()
    A("s_endpgm")

    A("L_qclear:")
    A("s_lshl_b32 s10, s60, 13\nv_add_u32 v3, s10, v9\nv_add_u32 v8, 0x1000, v3")
    for i in range(8):
        A(f"global_store_dwordx4 v{3 if i < 4 else 8}, v[100:103], s[38:39] offset:{1024 * (i & 3)} sc1")
    A(f"s_lshl_b32 s10, s60, 7\ns_add_u32 s10, s10, {WS_F}\nv_add_u32 v3, s10, v9")
    A("s_mov_b64 exec, 0xff")
    A("global_store_dwordx4 v3, v[100:103], s[38:39] sc1")
    A("s_mov_b64 exec, -1")
    A("s_branch L_qcleared")
    A("L_service:")
    stamp_at(1)
    A("s_cmp_eq_u32 s7, 0")
    A("s_cbranch_scc0 L_noqflag")
    A("s_lshl_b32 s4, s60, 5\nv_mov_b32 v104, s4\nv_mov_b32 v105, 1")
    A("s_waitcnt vmcnt(17)")
    A("s_mov_b64 exec, 1")
    A("global_store_dword v104, v105, s[36:37] sc1")
    A("s_mov_b64 exec, -1")
    A("L_noqflag:")
    nyoung = 16
    roles()
    p1slot("s4")
    A("v_add_u32 v104, s4, v9")
    if "noclear" not in xp:
        A("global_store_dwordx4 v104, v[100:103], s[38:39] sc1")
        A("global_store_dwordx4 v104, v[100:103], s[38:39] offset:1024 sc1")
        A("s_mov_b64 exec, 0xff")
        A("global_store_dwordx4 v104, v[100:103], s[38:39] offset:2048 sc1")
        A("s_mov_b64 exec, -1")
        nyoung += 3
        A("s_cmp_lt_u32 s7, 14")
        A("s_cbranch_scc0 L_noclr3")
        A(f"s_lshl_b32 s4, s15, 11\ns_add_u32 s4, s4, {WS_P3}\nv_add_u32 v105, s4, v9")
        A("global_store_dwordx4 v105, v[100:103], s[38:39] sc1")
        A("global_store_dwordx4 v105, v[100:103], s[38:39] offset:1024 sc1")
        A("L_noclr3:")
        A("s_cmp_ge_u32 s7, 16")
        A("s_cbranch_scc0 L_noclr2")
        A(f"s_lshl_b32 s4, s13, 11\ns_lshl_b32 s5, s14, 8\ns_add_u32 s4, s4, s5\ns_add_u32 s4, s4, {WS_P2}\nv_add_u32 v105, s4, v9")
        A("s_mov_b64 exec, 0xffff")
        A("global_store_dwordx4 v105, v[100:103], s[38:39] sc1")
        A("s_mov_b64 exec, -1")
        A("L_noclr2:")
    A("v_lshlrev_b32 v96, 5, v0")
    A(f"s_waitcnt vmcnt({nyoung})")
    stamp_at(2)
    A(f"ds_write_b128 v9, v[4:7] offset:{L_X}")
    A("s_mov_b64 exec, 0xff")
    A("global_load_dword v97, v96, s[36:37] sc1" if "noflagrd" not in xp else "global_load_dword v97, v96, s[16:17]")
    A("s_mov_b64 exec, -1")
    nyoung += 1
    X = list(range(8, 16))
    X[1] = 3
    for i in range(4):
        A(f"v_lshlrev_b32 v{X[2 * i]}, 16, v{4 + i}")
        A(f"v_and_b32 v{X[2 * i + 1]}, 0xffff0000, v{4 + i}")
    ln_stats(X, 16, 17, 18, 19, 20, list(range(22, 30)))
    ln_apply(X, 16, 17, 18, list(range(22, 30)))
    for i in range(8):
        A(f"v_cvt_pk_bf16_f32 v{X[i]}, v{X[i]}, v{X[i]}")
    for i in range(8):
        A(f"v_lshlrev_b32 v{100 + i}, 16, v{X[i]}")
    A(f"ds_write_b128 v96, v[100:103] offset:{L_H}")
    A(f"ds_write_b128 v96, v[104:107] offset:{L_H + 16}")
    A("s_and_b32 s4, s7, 3\ns_lshl_b32 s4, s4, 9\nv_lshrrev_b32 v16, 3, v0\nv_lshl_add_u32 v16, v16, 6, s4")
    A("s_waitcnt lgkmcnt(0)")
    XN = 112
    for i in range(4):
        A(f"ds_read_b128 v[{XN + 4 * i}:{XN + 4 * i + 3}], v16 offset:{L_H + 16 * i}")
    A("s_waitcnt lgkmcnt(0)")
    stamp_at(3)
    Q = list(range(22, 30))
    for i in range(16):
        A(f"s_waitcnt vmcnt({nyoung - 1 - i})")
        for p in range(4):
            w = WQ + 4 * i + p
            A(f"v_lshlrev_b32 v{100 + 2 * p}, 16, v{w}")
            A(f"v_and_b32 v{101 + 2 * p}, 0xffff0000, v{w}")
        for p in range(8):
            op = "mul" if i == 0 else "fmac"
            A(f"v_{op}_f32 v{Q[p]}, v{XN + i}, v{100 + p}")
    for i in range(4):
        A(f"v_permlane32_swap_b32 v{Q[i]}, v{Q[4 + i]}")
    for i in range(4):
        A(f"v_add_f32 v{Q[i]}, v{Q[i]}, v{Q[4 + i]}")
    for i in range(2):
        A(f"v_permlane16_swap_b32 v{Q[i]}, v{Q[2 + i]}")
    for i in range(2):
        A(f"v_add_f32 v{Q[i]}, v{Q[i]}, v{Q[2 + i]}")
    A(f"v_add_f32_dpp v16, v{Q[0]}, v{Q[0]} row_ror:8 row_mask:0xf bank_mask:0x3")
    A(f"v_add_f32_dpp v16, v{Q[1]}, v{Q[1]} row_ror:8 row_mask:0xf bank_mask:0xc")
    A("v_and_b32 v17, 7, v0\nv_lshrrev_b32 v18, 3, v0\nv_lshl_add_u32 v17, v17, 3, v18\nv_lshlrev_b32 v17, 2, v17")
    A(f"ds_write_b32 v17, v16 offset:{L_B}")
    A(f"s_lshl_b32 s4, s60, 13\ns_and_b32 s5, s7, 3\ns_lshl_b32 s5, s5, 11\ns_add_u32 s4, s4, s5\ns_lshr_b32 s5, s7, 2\ns_lshl_b32 s5, s5, 8\ns_add_u32 s4, s4, s5")
    A("v_add_u32 v17, s4, v9")
    A(f"s_lshl_b32 s4, s60, 5\ns_add_u32 s4, s4, s7\ns_lshl_b32 s4, s4, 2\ns_add_u32 s4, s4, {WS_F}\nv_mov_b32 v18, s4")
    A("s_lshl_b32 s4, s8, 13\nv_add_u32 v19, s4, v9\nv_add_u32 v20, 0x1000, v19")
    A("s_waitcnt lgkmcnt(0)")
    A(f"ds_read_b128 v[4:7], v9 offset:{L_B}")
    A("s_lshl_b32 s4, 1, s60\ns_lshl_b32 s5, 1, s8\ns_or_b32 s4, s4, s5")
    A("s_mov_b32 s5, 0")
    stamp_at(4)
    if "svc1" in xp: A("s_branch L_svcbar2")
    A("L_pollf:")
    A("s_waitcnt vmcnt(0) lgkmcnt(0)")
    A("v_cmp_ne_u32 vcc, 1, v97")
    A("s_and_b32 s57, vcc_lo, s4")
    A("s_cbranch_scc0 L_pollf_ok")
    A(f"s_add_u32 s5, s5, 1\ns_cmp_lt_u32 s5, {SPIN_MAX}\ns_cbranch_scc0 L_pollf_ok")
    A("s_mov_b64 exec, 0xff")
    A("global_load_dword v97, v96, s[36:37] sc1")
    A("s_mov_b64 exec, -1")
    A("s_branch L_pollf")
    A("L_pollf_ok:")
    A("s_mov_b64 exec, 0xffff")
    A("global_store_dwordx4 v17, v[4:7], s[38:39] sc1")
    A("s_mov_b64 exec, 1")
    A("global_store_dword v18, v99, s[38:39] sc1")
    A("s_mov_b64 exec, -1")
    stamp_at(5)
    if "svc2" in xp: A("s_branch L_svcbar2")
    if qsleep:
        A(f"s_sleep {qsleep}")
    poll("L_pollq", [f"global_load_dwordx4 v[{32 + 4 * i}:{35 + 4 * i}], v{19 + (i >> 2)}, s[38:39] offset:{1024 * (i & 3)} sc1" for i in range(8)],
         range(32, 64), 16, slp=qsleep)
    stamp_at(6)
    for e in range(8):
        A(f"v_add_f32 v{32 + e}, v{32 + e}, v{40 + e}")
        A(f"v_add_f32 v{48 + e}, v{48 + e}, v{56 + e}")
    for e in range(8):
        A(f"v_add_f32 v{32 + e}, v{32 + e}, v{48 + e}")
    for e in range(4):
        A(f"v_cvt_pk_bf16_f32 v{40 + e}, v{32 + 2 * e}, v{33 + 2 * e}")
    A("v_lshlrev_b32 v16, 3, v0")
    A(f"ds_write_b64 v16, v[40:41] offset:{L_Q}")
    A(f"ds_write_b64 v16, v[42:43] offset:{L_Q + 512}")
    A("v_mov_b32 v99, 1")
    A("s_waitcnt lgkmcnt(0)")
    A("ds_write_b32 v98, v99")
    stamp_at(7)
    if "svc4" in xp: A("s_branch L_svcbar2")
    A("s_mov_b32 s5, 0")
    A("L_pollf2:")
    A("s_mov_b64 exec, 0xff")
    A("global_load_dword v97, v96, s[36:37] sc1")
    A("s_waitcnt vmcnt(0)")
    A("v_cmp_ne_u32 vcc, 1, v97")
    A("s_mov_b64 exec, -1")
    A("s_cbranch_vccz L_pollf2_ok")
    A(f"s_add_u32 s5, s5, 1\ns_cmp_lt_u32 s5, {SPIN_MAX}\ns_cbranch_scc1 L_pollf2")
    A("L_pollf2_ok:")
    stamp_at(8)
    A(f"v_add_u32 v19, {WS_F}, v9")
    poll("L_pollall", ["global_load_dwordx4 v[32:35], v19, s[38:39] sc1"], range(32, 36), 16, slp=16)
    stamp_at(9)
    A("s_waitcnt lgkmcnt(0)")
    A("s_barrier")
    stamp_store()
    A("s_endpgm")
    A("L_svcbar:")
    A("v_mov_b32 v99, 1")
    A("ds_write_b32 v98, v99")
    A("s_waitcnt lgkmcnt(0)")
    A("s_barrier")
    A("L_svcbar2:")
    A("v_mov_b32 v99, 1")
    A("ds_write_b32 v98, v99")
    A("s_waitcnt lgkmcnt(0)")
    A("s_barrier")
    stamp_store()
    A("L_end:")
    A("s_endpgm")
    A("L_codeend:")

    body = fix(C)
    out = HEADER
    out += f"; @launch grid=(256,1,1) block=(576,1,1) lds={LDS_BYTES}\n"
    out += '.amdgcn_target "amdgcn-amd-amdhsa--gfx950"\n.text\n'
    out += f".globl {NAME}_kernel\n.p2align 8\n.type {NAME}_kernel,@function\n{NAME}_kernel:\n"
    out += "\n".join(("" if l.endswith(":") else "    ") + l for l in body) + "\n"
    out += f""".section .rodata,"a"
.p2align 6
.amdhsa_kernel {NAME}_kernel
  .amdhsa_next_free_vgpr 168
  .amdhsa_next_free_sgpr 96
  .amdhsa_accum_offset 168
  .amdhsa_group_segment_fixed_size 0
  .amdhsa_kernarg_size 96
  .amdhsa_user_sgpr_count 2
  .amdhsa_user_sgpr_kernarg_segment_ptr 1
  .amdhsa_system_sgpr_workgroup_id_x 1
  .amdhsa_float_denorm_mode_32 3
.end_amdhsa_kernel
"""
    return out


if __name__ == "__main__":
    cfg = eval("dict(" + (sys.argv[2] if len(sys.argv) > 2 else "") + ")")
    open(sys.argv[1], "w").write(gen(**cfg))
```

```python
import sys
from asmlib import fix, VM

NAME = "sequential_preLN__gqa_block_cached__glu_gated_geglu__decode"
HEADER = open("cdna_kernels/" + NAME + ".s.ref").read().split("; Override launch")[0]

WS_Q = 0x0
WS_F = 0x10000
WS_P1 = 0x20000
P1_STRIDE = 2048
WS_P2 = 0xB0000
WS_P3 = 0xC0000
WS_STAMP = 0x200000
L_Q = 0
L_X = 1024
L_M = 2048
L_L = 2176
L_F = 2304
L_B = 2560
L_H = 4608
L_HN = 6656
L_G = 7680
L_W = 8704
L_K = L_W + 49152
KRING = 3
VRING = 5
LDS_BYTES = L_K + 8 * KRING * 4096

LOG2E = 0x3FB8AA3B
SCALE = 0x3DB504F3
FULL = "row_mask:0xf bank_mask:0xf"
SPIN_MAX = 20000


def gen(D=4, D2=None, nt=True, hmap="xcd", inter="wgtile", stamps=False, wnt=False, warm=True, sleep=1, qsleep=4,
        xp=(), bpos=(36, 40, 44, 48), cpos=('end',) * 6, masked=True, qrot=4, local=True, fastln=True, ld2='sc1', ld3='sc1', st2='sc1', st3='sc1', peel=False, qpos=18, late4=True, pref=True, sbar=True, KS=4):
    C = []
    A = C.append
    ntf = " nt" if nt else ""
    wntf = " nt" if wnt else ""
    D2 = D if D2 is None else D2
    KL = KS.bit_length() - 1
    NQ = 64 // KS
    QR = 2048 * KS

    def stamp_at(k):
        if stamps:
            A(f"s_memrealtime s[{64 + 2 * k}:{65 + 2 * k}]")

    def stamp_store():
        if not stamps:
            return
        A("s_waitcnt lgkmcnt(0)")
        if stamps == "dbg":
            lab = f"L_dbg{len(C)}"
            A("s_and_b32 s4, s3, 7\ns_cmp_eq_u32 s4, 0")
            A(f"s_cbranch_scc0 {lab}")
            A("s_not_b32 s64, s64")
            A("s_cmp_eq_u32 s3, 8")
            sel0 = (0, 1, 2, 4, 5, 6, 7)
            sel8 = (2, 4, 5, 6, 7, 8, 9)
            A("s_mov_b64 exec, -1")
            for i in range(7):
                A(f"s_cselect_b32 s4, s{64 + 2 * sel8[i]}, s{64 + 2 * sel0[i]}")
                A(f"v_writelane_b32 v4, s4, {i}")
            A("s_lshl_b32 s4, s3, 2\ns_add_u32 s4, s4, 4\nv_lshl_add_u32 v1, v0, 2, s4")
            A("s_mov_b64 exec, 0x7f")
            A("global_atomic_umax v1, v4, s[36:37] sc1")
            A(f"{lab}:")
            return
        A("s_mov_b64 exec, 1")
        A("s_lshl_b32 s4, s2, 4\ns_add_u32 s4, s4, s3\ns_lshl_b32 s4, s4, 6")
        A(f"s_add_u32 s4, s4, {WS_STAMP}")
        A("v_mov_b32 v1, s4")
        A("s_getreg_b32 s94, hwreg(HW_REG_XCC_ID)")
        A("s_mov_b32 s92, s59")
        for q in range(4):
            for i in range(4):
                A(f"v_mov_b32 v{4 + i}, s{64 + 2 * (4 * q + i)}")
            A(f"global_store_dwordx4 v1, v[4:7], s[38:39] offset:{16 * q}")
            A("s_nop 1")

    def rowsum(a, op="add"):
        for s in (8, 4, 2, 1):
            A(f"v_{op}_f32_dpp v{a}, v{a}, v{a} row_ror:{s} {FULL}")

    def xrow(a, t, op="add"):
        A(f"v_mov_b32 v{t}, v{a}")
        A(f"v_permlane16_swap_b32 v{a}, v{t}")
        A(f"v_{op}_f32 v{a}, v{a}, v{t}")
        A(f"v_mov_b32 v{t}, v{a}")
        A(f"v_permlane32_swap_b32 v{a}, v{t}")
        A(f"v_{op}_f32 v{a}, v{a}, v{t}")

    def scatter4(r):
        A(f"v_permlane32_swap_b32 v{r}, v{r + 1}\nv_permlane32_swap_b32 v{r + 2}, v{r + 3}")
        A(f"v_add_f32 v{r}, v{r}, v{r + 1}\nv_add_f32 v{r + 2}, v{r + 2}, v{r + 3}")
        A(f"v_permlane16_swap_b32 v{r}, v{r + 2}")
        A(f"v_add_f32 v{r}, v{r}, v{r + 2}")

    def sigma(dst, t):
        A(f"v_bfe_u32 v{dst}, v0, 4, 1\nv_lshrrev_b32 v{t}, 5, v0\nv_lshl_add_u32 v{dst}, v{dst}, 1, v{t}")

    def rbf(a):
        A(f"v_cvt_pk_bf16_f32 v{a}, v{a}, v{a}")
        A(f"v_lshlrev_b32 v{a}, 16, v{a}")

    def ln_stats(vals, mean, den, rden, t0, t1, tmp):
        A(f"v_add_f32 v{t0}, v{vals[0]}, v{vals[1]}")
        A(f"v_add_f32 v{t1}, v{vals[2]}, v{vals[3]}")
        A(f"v_add_f32 v{mean}, v{vals[4]}, v{vals[5]}")
        A(f"v_add_f32 v{den}, v{vals[6]}, v{vals[7]}")
        A(f"v_add_f32 v{t0}, v{t0}, v{t1}")
        A(f"v_add_f32 v{mean}, v{mean}, v{den}")
        A(f"v_add_f32 v{mean}, v{mean}, v{t0}")
        rowsum(mean)
        xrow(mean, t0)
        A(f"v_mul_f32 v{mean}, 0x3b000000, v{mean}")
        for i in range(8):
            A(f"v_sub_f32 v{tmp[i]}, v{vals[i]}, v{mean}")
        A(f"v_mul_f32 v{den}, v{tmp[0]}, v{tmp[0]}")
        A(f"v_mul_f32 v{t1}, v{tmp[1]}, v{tmp[1]}")
        for i in range(2, 8, 2):
            A(f"v_fmac_f32 v{den}, v{tmp[i]}, v{tmp[i]}")
            A(f"v_fmac_f32 v{t1}, v{tmp[i + 1]}, v{tmp[i + 1]}")
        A(f"v_add_f32 v{den}, v{den}, v{t1}")
        rowsum(den)
        xrow(den, t0)
        A(f"v_mul_f32 v{den}, 0x3b000000, v{den}")
        A(f"v_cvt_pk_bf16_f32 v{t0}, v{mean}, v{den}")
        A(f"v_lshlrev_b32 v{mean}, 16, v{t0}")
        A(f"v_and_b32 v{den}, 0xffff0000, v{t0}")
        A(f"v_add_f32 v{den}, 0x3727c5ac, v{den}")
        rbf(den)
        A(f"v_sqrt_f32 v{t0}, v{den}")
        A(f"v_rsq_f32 v{t1}, v{den}")
        A(f"v_fma_f32 v{den}, -v{t0}, v{t0}, v{den}")
        A(f"v_mul_f32 v{t1}, 0.5, v{t1}")
        A(f"v_fma_f32 v{den}, v{den}, v{t1}, v{t0}")
        rbf(den)
        A(f"v_rcp_f32 v{rden}, v{den}")

    def ln_apply(xs, mean, den, rden, ts):
        for x in xs:
            A(f"v_sub_f32 v{x}, v{x}, v{mean}")
        for x in xs:
            A(f"v_cvt_pk_bf16_f32 v{x}, v{x}, v{x}")
        for x in xs:
            A(f"v_lshlrev_b32 v{x}, 16, v{x}")
        for x, t in zip(xs, ts):
            A(f"v_mul_f32 v{t}, v{x}, v{rden}")
        for x, t in zip(xs, ts):
            A(f"v_fma_f32 v{x}, -v{t}, v{den}, v{x}")
        for x, t in zip(xs, ts):
            A(f"v_fma_f32 v{x}, v{x}, v{rden}, v{t}")

    def ln2():
        A("v_mov_b32 v133, v132")
        for i in range(4):
            A(f"v_pk_add_f32 v[{124 + 2 * i}:{125 + 2 * i}], v[{124 + 2 * i}:{125 + 2 * i}], v[132:133] neg_lo:[0,1] neg_hi:[0,1]")
        A("v_pk_add_f32 v[134:135], v[124:125], v[126:127]")
        A("v_pk_mul_f32 v[136:137], v[124:125], v[124:125]")
        A("v_pk_add_f32 v[138:139], v[128:129], v[130:131]")
        A("v_pk_fma_f32 v[136:137], v[126:127], v[126:127], v[136:137]")
        A("v_pk_add_f32 v[134:135], v[134:135], v[138:139]")
        A("v_pk_fma_f32 v[136:137], v[128:129], v[128:129], v[136:137]")
        A("v_add_f32 v16, v134, v135")
        A("v_pk_fma_f32 v[136:137], v[130:131], v[130:131], v[136:137]")
        A("v_add_f32 v17, v136, v137")
        for m in ("row_shr:1", "row_shr:2", "row_shr:4", "row_shr:8"):
            A(f"v_add_f32_dpp v16, v16, v16 {m} {FULL} bound_ctrl:0")
            A(f"v_add_f32_dpp v17, v17, v17 {m} {FULL} bound_ctrl:0")
        for m in ("row_bcast:15 row_mask:0xa", "row_bcast:31 row_mask:0xc"):
            A(f"v_add_f32_dpp v16, v16, v16 {m} bank_mask:0xf")
            A(f"v_add_f32_dpp v17, v17, v17 {m} bank_mask:0xf")
        A("v_readlane_b32 s4, v16, 63")
        A("v_readlane_b32 s5, v17, 63")
        A("v_mov_b32 v18, 0x3b000000")
        A("v_mul_f32 v16, s4, v18")
        A("v_mul_f32 v17, s5, v18")
        A("v_fma_f32 v17, -v16, v16, v17")
        A("v_add_f32 v16, v16, v132")
        A("v_max_f32 v17, 0, v17")
        A("v_cvt_pk_bf16_f32 v18, v16, v17")
        A("v_and_b32 v17, 0xffff0000, v18")
        A("v_lshlrev_b32 v16, 16, v18")
        A("v_add_f32 v17, 0x3727c5ac, v17")
        A("v_sub_f32 v120, v120, v16")
        A("v_cvt_pk_bf16_f32 v18, v120, v17")
        A("v_and_b32 v17, 0xffff0000, v18")
        A("v_sqrt_f32 v17, v17")
        A("v_lshlrev_b32 v120, 16, v18")
        rbf(17)
        A("v_rcp_f32 v18, v17")
        A("v_mul_f32 v19, v120, v18")
        A("v_fma_f32 v120, -v19, v17, v120")
        A("v_fma_f32 v120, v120, v18, v19")

    def poll(label, loads, regs, t, slp=None, between=None):
        slp = sleep if slp is None else slp
        A("s_mov_b32 s59, 0")
        if between:
            for l in loads:
                A(l)
            between()
            A(f"s_branch {label}_chk")
        A(f"{label}:")
        for l in loads:
            A(l)
        if between:
            A(f"{label}_chk:")
        A("s_waitcnt vmcnt(0)")
        regs = list(regs)
        if len(regs) == 1:
            t = regs[0]
            rest = []
        elif len(regs) % 2 == 0:
            A(f"v_max_u32 v{t}, v{regs[0]}, v{regs[1]}")
            rest = regs[2:]
        else:
            A(f"v_max3_u32 v{t}, v{regs[0]}, v{regs[1]}, v{regs[2]}")
            rest = regs[3:]
        for i in range(0, len(rest), 2):
            A(f"v_max3_u32 v{t}, v{t}, v{rest[i]}, v{rest[i + 1]}")
        A(f"v_cmp_eq_u32 vcc, -1, v{t}")
        A(f"s_branch {label}_ok" if ("svc3" in xp and label in ("L_pollq", "L_pollall")) else f"s_cbranch_vccz {label}_ok")
        A("s_add_u32 s59, s59, 1")
        A(f"s_cmp_lt_u32 s59, {SPIN_MAX}")
        A(f"s_cbranch_scc0 {label}_ok")
        if masked:
            A("s_mov_b64 exec, vcc")
        if slp:
            A(f"s_sleep {slp}")
        A(f"s_branch {label}")
        A(f"{label}_ok:")
        if masked:
            A("s_mov_b64 exec, -1")

    def ldswait(label, off):
        A(f"v_mov_b32 v24, {L_F}\ns_mov_b32 s5, 0")
        A(f"{label}:")
        A(f"ds_read_b32 v25, v24 offset:{off}")
        A("s_waitcnt lgkmcnt(0)")
        A("v_cmp_ne_u32 vcc, 0, v25")
        A(f"s_cbranch_vccnz {label}_ok")
        A(f"s_add_u32 s5, s5, 1\ns_cmp_lt_u32 s5, {SPIN_MAX * 64}\ns_cbranch_scc0 {label}_ok")
        A("s_sleep 1")
        A(f"s_branch {label}")
        A(f"{label}_ok:")

    def store_quad(val, addr, lo="0x11111111", hi="0x11111111", fl="sc1"):
        for i in (1, 2, 3):
            A(f"v_mov_b32_dpp v{val + i}, v{val} quad_perm:[{i},{i},{i},{i}] {FULL}")
        A(f"s_mov_b32 exec_lo, {lo}\ns_mov_b32 exec_hi, {hi}")
        A(f"global_store_dwordx4 v{addr}, v[{val}:{val + 3}], s[38:39] {fl}")
        A("s_mov_b64 exec, -1")

    def roles():
        A("s_bfe_u32 s13, s7, 0x10003\ns_lshl_b32 s4, s61, 1\ns_add_u32 s13, s13, s4")
        A("s_and_b32 s14, s7, 7")
        A("s_mul_i32 s15, s6, 14\ns_add_u32 s15, s15, s7")

    def p1slot(dst):
        A(f"s_lshl_b32 {dst}, s8, 5\ns_add_u32 {dst}, {dst}, s9\ns_mul_i32 {dst}, {dst}, {P1_STRIDE}\ns_add_u32 {dst}, {dst}, {WS_P1}")

    stamp_at(0)
    A("s_cmp_ge_u32 s2, 256")
    A("s_cbranch_scc1 L_end")
    A("s_load_dwordx16 s[16:31], s[0:1], 0")
    A("s_load_dwordx8 s[32:39], s[0:1], 64")
    A("v_lshrrev_b32 v1, 6, v0")
    A("v_and_b32 v0, 63, v0")
    A("v_readfirstlane_b32 s3, v1")
    A("s_and_b32 s6, s2, 7")
    A("s_lshr_b32 s7, s2, 3")
    if hmap == "xcd":
        A("s_mov_b32 s8, s6")
        A("s_mov_b32 s9, s7")
    else:
        A("s_and_b32 s8, s7, 7")
        A("s_lshr_b32 s9, s7, 3\ns_lshl_b32 s10, s6, 2\ns_add_u32 s9, s9, s10")
    A(f"s_add_u32 s60, s6, {qrot}\ns_and_b32 s60, s60, 7")
    brot = 0 if local else 4
    A(f"s_add_u32 s61, s6, {brot}\ns_and_b32 s61, s61, 7")
    A("v_lshlrev_b32 v9, 4, v0")
    if warm:
        A("s_getpc_b64 s[48:49]")
        A("L_pc:")
        A(f"s_sub_u32 s48, s48, L_pc-{NAME}_kernel\ns_subb_u32 s49, s49, 0")
        A("s_lshl_b32 s4, s3, 11")
        A("v_add_u32 v2, s4, v9")
        A("v_add_u32 v3, 1024, v2")
        A(f"s_mov_b32 s4, L_codeend-{NAME}_kernel-16")
        A("v_min_u32 v2, s4, v2\nv_min_u32 v3, s4, v3")
        A("global_load_dwordx4 v[20:23], v2, s[48:49]")
        A("global_load_dwordx4 v[20:23], v3, s[48:49]")
    A("s_cmp_eq_u32 s3, 8")
    A("s_cbranch_scc0 L_stream")
    A("s_setprio 3")
    A(f"v_mov_b32 v98, {L_F}\nv_mov_b32 v99, 0")
    A("ds_write_b32 v98, v99")
    A("ds_write_b32 v98, v99 offset:8")
    if "svcoff" in xp:
        A("s_waitcnt lgkmcnt(0)\ns_branch L_svcbar")
    A("v_lshrrev_b32 v2, 3, v0\nv_and_b32 v3, 7, v0\nv_lshlrev_b32 v2, 13, v2\nv_lshl_add_u32 v2, v3, 4, v2")
    A(f"s_and_b32 s4, s7, {KS - 1}\ns_lshl_b32 s4, s4, {22 - KL}\ns_lshl_b32 s5, s60, 10\ns_add_u32 s4, s4, s5\ns_lshr_b32 s5, s7, {KL}\ns_lshl_b32 s5, s5, 7\ns_add_u32 s4, s4, s5")
    for i in range(4):
        A(f"v_mov_b32 v{100 + i}, -1")
    A(f"s_mov_b32 s42, 0x400000\ns_mov_b32 s43, 0x20000\ns_mov_b32 m0, {L_W}\ns_mov_b32 s5, {NQ}")
    A("s_cmp_eq_u32 s7, 0")
    A("s_waitcnt lgkmcnt(0)")
    if not sbar:
        A("s_barrier")
    A("s_cbranch_scc1 L_qclear")
    A("L_qcleared:")
    A("s_mov_b32 s40, s22\ns_and_b32 s41, s23, 0xffff")
    A("global_load_dwordx4 v[4:7], v9, s[16:17]")
    if KS == 2:
        A("s_cmp_lt_u32 s7, 16")
        A("s_cbranch_scc0 L_service")
    A("L_wqloop:")
    A(f"buffer_load_dwordx4 v2, s[40:43], s4 offen{wntf} lds")
    A("s_add_u32 s4, s4, 0x10000\ns_add_u32 m0, m0, 1024\ns_sub_u32 s5, s5, 1")
    A("s_cbranch_scc0 L_wqloop" if False else "s_cmp_lg_u32 s5, 0\ns_cbranch_scc1 L_wqloop")
    A("s_branch L_service")

    A("L_stream:")
    vKS = (1, 2, 3, 4)
    vKR = (5, 6, 7, 8)
    vV, vM, vML, vL = 9, 10, 11, 12
    PK = (13, 14)
    vAl = 15
    SEL = (16, 17, 18, 19)
    S = (20, 21, 22, 23)
    T = (24, 25, 26, 27)
    BB = 28
    vT2 = 38
    ACC = (40, 44)
    QF = 48
    KF = 64
    VR = [80 + 16 * i for i in range(VRING)]
    A("v_lshrrev_b32 v24, 4, v0")
    A("v_lshlrev_b32 v25, 6, v24")
    A(f"v_xor_b32 v{vKS[0]}, v{vV}, v25")
    for i in (1, 2, 3):
        A(f"v_xor_b32 v{vKS[i]}, {16 * i}, v{vKS[0]}")
    A("s_lshl_b32 s10, s8, 23")
    if inter == "wgtile":
        A("s_lshl_b32 s11, s9, 18\ns_add_u32 s10, s10, s11\ns_lshl_b32 s11, s3, 12\ns_add_u32 s10, s10, s11")
        step = 8 * 4096
    elif inter == "contig":
        A("s_lshl_b32 s11, s9, 18\ns_add_u32 s10, s10, s11\ns_lshl_b32 s11, s3, 15\ns_add_u32 s10, s10, s11")
        step = 4096
    elif inter == "global":
        A("s_lshl_b32 s11, s9, 15\ns_add_u32 s10, s10, s11\ns_lshl_b32 s11, s3, 12\ns_add_u32 s10, s10, s11")
        step = 256 * 4096
    A("s_mov_b32 s11, s10")
    A(f"s_mul_i32 s56, s3, {KRING * 4096}\ns_add_u32 s56, s56, {L_K}")
    A("s_mov_b32 m0, s56")
    A("s_mov_b32 s42, 0x4000000\ns_mov_b32 s43, 0x20000\ns_mov_b32 s46, 0x4000000\ns_mov_b32 s47, 0x20000")
    A("s_waitcnt lgkmcnt(0)")
    stamp_at(12)
    A("s_barrier")
    stamp_at(11)
    A("s_mov_b32 s40, s18\ns_and_b32 s41, s19, 0xffff\ns_mov_b32 s44, s20\ns_and_b32 s45, s21, 0xffff")
    vm = VM()
    ids = {}
    m0k = [0]
    order = ["K0", "V0", "K1", "V1", "K2", "V2", "V3", "V4", "K3", "K4", "K5", "V5", "K6", "V6", "K7", "V7"]
    seq = [(g[0], int(g[1]), u) for g in order for u in range(4)]
    NPRE = 4 * (KRING + VRING)

    def W(opid):
        w = vm.wait(opid)
        if w:
            A(w)

    wB = [("s58", L_W + 1024 * i, "v160", "s[24:25]", "v_add_u32 v160, 0x2000, v160") for i in range(4)]
    wC = [("s57", L_W, "v161", "s[28:29]", None), ("s57", L_W + 16384, "v161", "s[30:31]", f"v_add_u32 v161, {32 * 3584}, v161"),
          ("s57", L_W + 1024, "v161", "s[28:29]", None), ("s57", L_W + 16384 + 1024, "v161", "s[30:31]", None),
          ("s57", L_W + 32768, "v162", "s[32:33]", "v_add_u32 v162, 1024, v162"), ("s57", L_W + 32768 + 1024, "v162", "s[32:33]", None)]

    def wload(piece):
        so, lo, va, base, upd = piece
        A(f"s_add_u32 m0, {so}, {lo}")
        A(f"global_load_lds_dwordx4 {va}, {base}{wntf}")
        if upd:
            A(upd)

    def wslot(n):
        for role, pos, pieces, cond in (("B", () if late4 else bpos, wB, "s_cmp_ge_u32 s7, 16"), ("C", cpos, wC, "s_cmp_lt_u32 s7, 14")):
            ks = [k for k, p in enumerate(pos) if p == n]
            if ks and "now" not in xp:
                lab = f"L_w{role}{n}"
                A(cond)
                A(f"s_cbranch_scc0 {lab}")
                for k in ks:
                    wload(pieces[k])
                A(f"{lab}:")
                m0k[0] = None

    def load(n):
        mat, t, u = seq[n]
        d = D if n < NPRE else D2
        if n >= d:
            W(ids[seq[n - d]])
        wslot(n)
        if mat == "K":
            if m0k[0] != t:
                m0k[0] = t
                A(f"s_add_u32 m0, s56, {4096 * (t % KRING)}")
            A(f"buffer_load_dwordx4 v{vKS[u]}, s[40:43], s10 offen offset:{1024 * u}{ntf} lds")
            if u == 3:
                A(f"s_add_u32 s10, s10, {step}")
        else:
            r = VR[t % VRING] + 4 * u
            A(f"buffer_load_dwordx4 v[{r}:{r + 3}], v{vV}, s[44:47], s11 offen offset:{1024 * u}{ntf}")
            if u == 3:
                A(f"s_add_u32 s11, s11, {step}")
        ids[seq[n]] = vm.issue()

    def consts():
        A("v_and_b32 v24, 3, v0")
        A("v_mov_b32 v25, 0x0c0c0c0c")
        for k, (lo, e0) in enumerate(((0x0100, 0), (0x0100, 2), (0x0302, 0), (0x0302, 2))):
            A(f"v_mov_b32 v26, {hex(0x0c0c0000 | lo)}")
            A(f"v_mov_b32 v27, {hex((lo << 16) | 0x0c0c)}")
            A(f"v_cmp_eq_u32 vcc, {e0}, v24")
            A(f"v_cndmask_b32 v{SEL[k]}, v25, v26, vcc")
            A(f"v_cmp_eq_u32 vcc, {e0 + 1}, v24")
            A(f"v_cndmask_b32 v{SEL[k]}, v{SEL[k]}, v27, vcc")
        for z in (0, 1, 4, 5, 8, 9):
            A(f"v_mov_b32 v{BB + z}, 0")
        A(f"s_mov_b32 s12, {hex(LOG2E)}")
        A("v_bfe_u32 v25, v0, 2, 2")
        A("v_lshrrev_b32 v26, 4, v0")
        A("v_lshlrev_b32 v27, 8, v25")
        A(f"v_lshl_add_u32 v{vT2}, v26, 4, v27")
        A("v_lshl_add_u32 v25, v24, 2, v25")
        A("v_and_b32 v27, 15, v0")
        A("v_xor_b32 v26, v26, v27")
        A("v_lshlrev_b32 v26, 4, v26")
        A("v_lshl_add_u32 v26, v25, 8, v26")
        for u in range(4):
            A(f"v_xor_b32 v{vKR[u]}, {64 * u}, v26")
            A(f"v_add_u32 v{vKR[u]}, s56, v{vKR[u]}")
        roles()
        A("s_lshl_b32 s4, s13, 3\ns_add_u32 s4, s4, s3\ns_lshl_b32 s4, s4, 15\ns_lshl_b32 s5, s14, 7\ns_add_u32 s4, s4, s5")
        A("v_lshrrev_b32 v160, 3, v0\nv_and_b32 v161, 7, v0\nv_lshlrev_b32 v160, 10, v160\nv_lshl_add_u32 v160, v161, 4, v160\nv_add_u32 v160, s4, v160")
        A("s_lshl_b32 s4, s3, 6\nv_lshrrev_b32 v161, 1, v0\nv_add_u32 v161, s4, v161\nv_mul_u32_u24 v161, 3584, v161")
        A("v_and_b32 v162, 1, v0\nv_lshl_add_u32 v161, v162, 4, v161\ns_lshl_b32 s4, s15, 5\nv_add_u32 v161, s4, v161")
        A(f"s_lshl_b32 s4, s15, 3\ns_add_u32 s4, s4, s3\ns_lshl_b32 s4, s4, 11\nv_add_u32 v162, s4, v{vV}")
        A("s_lshl_b32 s57, s3, 11\ns_lshl_b32 s58, s3, 12")
        A("s_lshl_b32 s4, s7, 3\ns_add_u32 s4, s4, s3\ns_and_b32 s4, s4, 127\ns_mul_i32 s4, s4, 14336\ns_mul_i32 s5, s6, 448\ns_andn2_b32 s5, s5, 127\ns_add_u32 s4, s4, s5")
        A("v_lshrrev_b32 v163, 5, v0\nv_mul_u32_u24 v163, 3584, v163\nv_and_b32 v164, 31, v0\nv_lshl_add_u32 v163, v164, 4, v163\nv_add_u32 v163, s4, v163")
        A("v_add_u32 v164, 7168, v163")

    def qk(t, last=False):
        W(ids[("K", t, 3)])
        if "nocomp" in xp and not last:
            return
        k = KF
        for u in range(4):
            A(f"ds_read_b128 v[{k + 4 * u}:{k + 4 * u + 3}], v{vKR[u]} offset:{4096 * (t % KRING)}")
        for u in range(4):
            c = "0" if u == 0 else f"v[{S[0]}:{S[3]}]"
            A("s_waitcnt lgkmcnt(0)" if stamps else f"s_waitcnt lgkmcnt({3 - u})")
            A(f"v_mfma_f32_16x16x32_bf16 v[{S[0]}:{S[3]}], v[{k + 4 * u}:{k + 4 * u + 3}], v[{QF + 4 * u}:{QF + 4 * u + 3}], {c}")
        if last:
            A("v_bfe_u32 v26, v0, 2, 2")
            A("v_lshlrev_b32 v26, 5, v26")
            A("s_lshl_b32 s4, s3, 2")
            A("v_add_u32 v27, s4, v26")
        for rnd in range(2):
            A(f"v_cvt_pk_bf16_f32 v{T[0]}, v{S[0]}, v{S[1]}")
            A(f"v_cvt_pk_bf16_f32 v{T[1]}, v{S[2]}, v{S[3]}")
            A(f"v_lshlrev_b32 v{S[0]}, 16, v{T[0]}")
            A(f"v_and_b32 v{S[1]}, 0xffff0000, v{T[0]}")
            A(f"v_lshlrev_b32 v{S[2]}, 16, v{T[1]}")
            A(f"v_and_b32 v{S[3]}, 0xffff0000, v{T[1]}")
            if rnd == 0:
                for r in range(4):
                    A(f"v_mul_f32 v{S[r]}, {hex(SCALE)}, v{S[r]}")
        if t == 0:
            A(f"v_max_f32 v{vM}, v{S[0]}, v{S[1]}")
            A(f"v_max3_f32 v{vM}, v{vM}, v{S[2]}, v{S[3]}")
        else:
            A(f"v_max3_f32 v{vM}, v{vM}, v{S[0]}, v{S[1]}")
            A(f"v_max3_f32 v{vM}, v{vM}, v{S[2]}, v{S[3]}")
        xrow(vM, T[0], "max")
        if last:
            A("s_mov_b64 exec, 0x1111")
            A(f"ds_write_b32 v27, v{vM} offset:{L_M}")
            A("s_mov_b64 exec, -1")
            A("s_waitcnt lgkmcnt(0)")
            A("s_barrier")
            k0 = KF
            A(f"ds_read_b128 v[{k0}:{k0 + 3}], v26 offset:{L_M}")
            A(f"ds_read_b128 v[{k0 + 4}:{k0 + 7}], v26 offset:{L_M + 16}")
            A("s_waitcnt lgkmcnt(0)")
            A(f"v_max3_f32 v{vM}, v{k0}, v{k0 + 1}, v{k0 + 2}")
            A(f"v_max3_f32 v{vM}, v{vM}, v{k0 + 3}, v{k0 + 4}")
            A(f"v_max3_f32 v{vM}, v{vM}, v{k0 + 5}, v{k0 + 6}")
            A(f"v_max_f32 v{vM}, v{vM}, v{k0 + 7}")
        if t > 0:
            A(f"v_mov_b32 v{vAl}, v{vML}")
        A(f"v_mul_f32 v{vML}, s12, v{vM}")
        if t > 0:
            A(f"v_sub_f32 v{vAl}, v{vAl}, v{vML}")
            A(f"v_exp_f32 v{vAl}, v{vAl}")
        for r in range(4):
            A(f"v_fma_f32 v{S[r]}, v{S[r]}, s12, -v{vML}")
        for r in range(4):
            A(f"v_exp_f32 v{S[r]}, v{S[r]}")
        if t > 0:
            for a in range(8):
                A(f"v_mul_f32 v{ACC[0] + a}, v{vAl}, v{ACC[0] + a}")
        A(f"v_add_f32 v{T[0]}, v{S[0]}, v{S[1]}")
        A(f"v_add_f32 v{T[1]}, v{S[2]}, v{S[3]}")
        A(f"v_cvt_pk_bf16_f32 v{PK[0]}, v{S[0]}, v{S[1]}")
        A(f"v_cvt_pk_bf16_f32 v{PK[1]}, v{S[2]}, v{S[3]}")
        if t == 0:
            A(f"v_add_f32 v{vL}, v{T[0]}, v{T[1]}")
        else:
            A(f"v_add_f32 v{T[0]}, v{T[0]}, v{T[1]}")
            A(f"v_fma_f32 v{vL}, v{vL}, v{vAl}, v{T[0]}")
        if last:
            xrow(vL, T[0])
            A("s_mov_b64 exec, 0x1111")
            A(f"ds_write_b32 v27, v{vL} offset:{L_L}")
            A("s_mov_b64 exec, -1")
            A("s_and_b32 s4, s3, 1\ns_lshl_b32 s4, s4, 6\nv_lshrrev_b32 v26, 5, v0\nv_lshl_add_u32 v26, v26, 5, s4")
            A(f"v_mov_b32 v27, {L_F}")
            A("s_waitcnt lgkmcnt(0)")
            A("s_barrier")
            if late4 and "now" not in xp:
                A("s_cmp_ge_u32 s7, 16")
                A("s_cbranch_scc0 L_late_c")
                for piece in wB:
                    wload(piece)
                A("s_branch L_late_done")
                A("L_late_c:")
                for i in range(4):
                    if not pref:
                        A("s_mov_b64 exec, 1")
                    A(f"global_load_dwordx4 v[{VR[0]}:{VR[0] + 3}], v{163 + (i >> 1)}, {'s[30:31]' if i & 1 else 's[28:29]'}")
                    if not pref:
                        A("s_mov_b64 exec, -1")
                A("L_late_done:")
                for i in range(4):
                    vm.issue()
            A(f"ds_read_b128 v[64:67], v26 offset:{L_M}")
            A(f"ds_read_b128 v[68:71], v26 offset:{L_M + 16}")
            A(f"ds_read_b128 v[72:75], v26 offset:{L_L}")
            A(f"ds_read_b128 v[76:79], v26 offset:{L_L + 16}")
            A("ds_read_b32 v27, v27 offset:4")
            A("s_waitcnt lgkmcnt(0)")
            A("v_max3_f32 v64, v64, v65, v66\nv_max3_f32 v64, v64, v67, v68\nv_max3_f32 v64, v64, v69, v70\nv_max_f32 v64, v64, v71")
            for i in range(4):
                A(f"v_add_f32 v{72 + i}, v{72 + i}, v{76 + i}")
            A("v_add_f32 v72, v72, v73\nv_add_f32 v74, v74, v75\nv_add_f32 v72, v72, v74")
            A("v_readfirstlane_b32 s62, v27")
            A("v_log_f32 v73, v72")
            A(f"v_rcp_f32 v{vAl}, v72")
            A(f"v_mul_f32 v64, s12, v64")
            A(f"v_add_f32 v{vL}, v64, v73")
            A(f"v_and_b32 v{vM}, 3, v0\nv_add_u32 v{vM}, 0x07060501, v{vM}")
            A("s_mov_b32 s50, 0x88888888\ns_mov_b32 s51, 0x88888888")

    def pv(t, last=False):
        v = VR[t % VRING]
        if "nocomp" in xp and not last:
            W(ids[("V", t, 3)])
            return

        def perm(i):
            b = BB + 2 + 4 * (i & 1)
            A(f"v_perm_b32 v{b}, v{PK[i >> 1]}, v{PK[i >> 1]}, v{SEL[2 * (i & 1)]}")
            A(f"v_perm_b32 v{b + 1}, v{PK[i >> 1]}, v{PK[i >> 1]}, v{SEL[2 * (i & 1) + 1]}")
        perm(0)
        perm(1)
        if not last:
            W(ids[("V", t, 3)])
        else:
            A(f"v_add_u32 v64, s56, v{vV}")
            A("v_and_b32 v65, 15, v0\nv_bfe_u32 v66, v0, 4, 1\nv_mul_u32_u24 v66, 272, v66\nv_add_u32 v65, v65, v66")
            A("v_lshrrev_b32 v66, 5, v0\nv_lshl_add_u32 v65, v66, 4, v65\ns_lshl_b32 s4, s3, 7")
            A(f"s_add_u32 s4, s4, {L_K}\nv_lshl_add_u32 v65, v65, 2, s4")
            A(f"v_add_u32 v66, {4 * KRING * 4096}, v65")
            p1slot("s4")
            A("s_lshl_b32 s5, s3, 8\ns_add_u32 s5, s5, s4\nv_lshl_add_u32 v67, v0, 2, s5")
        for i in range(4):
            if last:
                W(ids[("V", t, i)])
            b = BB + 2 + 4 * (i & 1)
            for h in range(2):
                c = "0" if (t == 0 and i == 0) else f"v[{ACC[h]}:{ACC[h] + 3}]"
                bb = b if h == 0 else b - 2
                A(f"v_mfma_f32_16x16x32_bf16 v[{ACC[h]}:{ACC[h] + 3}], v[{v + 4 * i}:{v + 4 * i + 3}], v[{bb}:{bb + 3}], {c}")
            if i < 2:
                perm(i + 2)

    for n in range(NPRE):
        load(n)
        if n == D - 1:
            consts()
        if n == D:
            stamp_at(13)
        if n == qpos:
            A(f"v_mov_b32 v24, {L_F}\nds_write_b32 v24, v24 offset:8")
    stamp_at(1)
    ldswait("L_waitq", 0)
    stamp_at(2)
    for u in range(4):
        A(f"ds_read_b128 v[{QF + 4 * u}:{QF + 4 * u + 3}], v{vT2} offset:{L_Q + 64 * u}")
    A("s_waitcnt lgkmcnt(0)")
    blocks = []
    for t in range(7):
        blocks += [(qk, t, ("K", t, 3)), (pv, t, ("V", t, 3))]
    bi = 0
    for n in range(NPRE, len(seq)):
        mat, t, u = seq[n]
        needb = {"K": 2 * (t - KRING) + 1, "V": 2 * (t - VRING) + 2}[mat]
        while bi < needb:
            blocks[bi][0](blocks[bi][1])
            bi += 1
        load(n)
        if bi < len(blocks) and blocks[bi][2] in ids and ids[blocks[bi][2]] <= vm.done:
            blocks[bi][0](blocks[bi][1])
            bi += 1
    while bi < len(blocks):
        blocks[bi][0](blocks[bi][1])
        bi += 1
    qk(7, last=True)
    stamp_at(3)
    pv(7, last=True)
    stamp_at(4)
    A(f"ds_write_b128 v64, v[{ACC[0]}:{ACC[0] + 3}]")
    A(f"ds_write_b128 v64, v[{ACC[1]}:{ACC[1] + 3}] offset:1088")
    A("s_waitcnt lgkmcnt(0)")
    A("s_barrier")
    R0 = 72
    for i in range(8):
        A(f"ds_read_b32 v{R0 + i}, v{65 + (i >> 2)} offset:{KRING * 4096 * (i & 3)}")
    A("s_cmp_eq_u32 s62, 1")
    A("s_waitcnt lgkmcnt(0)")
    for i in range(4):
        A(f"v_add_f32 v{R0 + i}, v{R0 + i}, v{R0 + 4 + i}")
    A(f"v_add_f32 v{R0}, v{R0}, v{R0 + 1}")
    A(f"v_add_f32 v{R0 + 2}, v{R0 + 2}, v{R0 + 3}")
    A(f"v_add_f32 v{R0}, v{R0}, v{R0 + 2}")
    A(f"v_mul_f32 v{R0}, v{R0}, v{vAl}")
    A(f"v_mov_b32_dpp v{R0 + 1}, v{R0} quad_perm:[3,3,3,3] {FULL}")
    A(f"v_perm_b32 v{R0}, v{R0}, v{R0 + 1}, v{vM}")
    A(f"v_cndmask_b32 v{R0}, v{R0}, v{vL}, s[50:51]")
    A("s_cbranch_scc0 L_pubfar")
    A(f"global_store_dword v67, v{R0}, s[38:39]")
    A("L_published:")
    stamp_at(5)
    A("s_cmp_lt_u32 s7, 14")
    A("s_cbranch_scc1 L_ffn")
    A("s_cmp_lt_u32 s7, 16")
    A("s_cbranch_scc1 L_final")
    A(f"s_lshl_b32 s4, s61, 5\nv_lshrrev_b32 v16, 3, v0\nv_add_u32 v16, s4, v16\nv_mul_u32_u24 v16, {P1_STRIDE}, v16")
    A("s_and_b32 s4, s13, 1\ns_lshl_b32 s4, s4, 1\ns_lshr_b32 s5, s3, 2\ns_add_u32 s4, s4, s5")
    A(f"s_and_b32 s5, s3, 3\ns_lshl_b32 s5, s5, 2\ns_add_u32 s4, s4, s5\ns_lshl_b32 s4, s4, 7\ns_add_u32 s4, s4, {WS_P1}")
    A("v_and_b32 v17, 7, v0\nv_lshl_add_u32 v16, v17, 4, v16\nv_add_u32 v24, s4, v16")
    for pi in range(1, 4):
        A(f"v_add_u32 v{24 + pi}, {8 * pi * P1_STRIDE}, v24")
    A("s_mov_b32 s52, 0x04000c0c\ns_mov_b32 s53, 0x0706000c")
    sigma(16, 17)
    A("v_bfe_u32 v17, v0, 2, 2\nv_lshl_add_u32 v16, v16, 3, v17\nv_lshlrev_b32 v16, 7, v16")
    A("v_and_b32 v17, 3, v0\nv_lshl_add_u32 v16, v17, 3, v16\nv_add_u32 v16, s58, v16")
    WB = 88

    def bweights():
        if late4:
            A("s_waitcnt vmcnt(4)")
        for tau in range(4):
            for t in range(2):
                r = WB + 4 * tau + 2 * t
                A(f"ds_read_b64_tr_b16 v[{r}:{r + 1}], v16 offset:{L_W + 512 * t + 32 * tau}")
    if not late4:
        bweights()
    A("s_lshl_b32 s4, s3, 8\nv_lshl_add_u32 v18, v0, 2, s4")
    A(f"s_lshl_b32 s4, s13, 11\ns_lshl_b32 s5, s14, 8\ns_add_u32 s4, s4, s5\ns_add_u32 s4, s4, {WS_P2}")
    A("v_lshlrev_b32 v19, 2, v0\nv_add_u32 v28, s4, v19")
    D0 = 120
    loads = [f"global_load_dwordx4 v[{D0 + 4 * pi}:{D0 + 4 * pi + 3}], v{24 + pi}, s[38:39] sc1" for pi in range(4)]
    poll("L_poll1", loads, range(120, 136), 31, between=bweights if late4 else None)
    stamp_at(6)
    A(f"v_max3_f32 v16, v{D0 + 3}, v{D0 + 7}, v{D0 + 11}\nv_max_f32 v16, v16, v{D0 + 15}")
    for pi in range(2):
        A(f"v_perm_b32 v{136 + pi}, v{D0 + 4 * pi + 2}, v{D0 + 4 * pi + 1}, s52")
    A(f"v_max_f32_dpp v16, v16, v16 row_ror:8 {FULL}")
    for pi in range(2, 4):
        A(f"v_perm_b32 v{136 + pi}, v{D0 + 4 * pi + 2}, v{D0 + 4 * pi + 1}, s52")
    A("v_mov_b32 v17, v16")
    for pi in range(2):
        A(f"v_perm_b32 v{136 + pi}, v{136 + pi}, v{D0 + 4 * pi}, s53")
    A("v_permlane16_swap_b32 v16, v17")
    A("v_max_f32 v16, v16, v17")
    A("v_mov_b32 v17, v16")
    for pi in range(2, 4):
        A(f"v_perm_b32 v{136 + pi}, v{136 + pi}, v{D0 + 4 * pi}, s53")
    A("v_permlane32_swap_b32 v16, v17")
    A("v_max_f32 v16, v16, v17")
    for pi in range(4):
        A(f"v_sub_f32 v{D0 + 4 * pi + 3}, v{D0 + 4 * pi + 3}, v16")
    for pi in range(4):
        A(f"v_exp_f32 v{140 + pi}, v{D0 + 4 * pi + 3}")
    for e in range(3):
        A(f"v_mul_f32 v{D0 + e}, v140, v{D0 + e}")
    A(f"v_mul_f32 v{D0 + 3}, v140, v136")
    A("v_add_f32 v16, v140, v141\nv_add_f32 v17, v142, v143")
    for pi in range(1, 4):
        for e in range(3):
            A(f"v_fmac_f32 v{D0 + e}, v{140 + pi}, v{D0 + 4 * pi + e}")
        A(f"v_fmac_f32 v{D0 + 3}, v{140 + pi}, v{136 + pi}")
        if pi == 1:
            A("v_add_f32 v16, v16, v17")
        if pi == 2:
            A(f"v_add_f32_dpp v16, v16, v16 row_ror:8 {FULL}")
    A("v_mov_b32 v17, v16")
    A(f"v_permlane32_swap_b32 v{D0}, v{D0 + 1}\nv_permlane32_swap_b32 v{D0 + 2}, v{D0 + 3}\nv_permlane32_swap_b32 v16, v17")
    A(f"v_add_f32 v{D0}, v{D0}, v{D0 + 1}\nv_add_f32 v{D0 + 2}, v{D0 + 2}, v{D0 + 3}\nv_add_f32 v16, v16, v17")
    A("v_mov_b32 v17, v16")
    A(f"v_permlane16_swap_b32 v{D0}, v{D0 + 2}\nv_permlane16_swap_b32 v16, v17")
    A(f"v_add_f32 v{D0}, v{D0}, v{D0 + 2}\nv_add_f32 v16, v16, v17")
    A(f"v_add_f32_dpp v{D0}, v{D0}, v{D0} row_ror:8 {FULL}")
    A("v_rcp_f32 v16, v16")
    A(f"v_mul_f32 v{D0}, v{D0}, v16")
    A(f"v_mov_b32_dpp v{D0 + 1}, v{D0} quad_perm:[1,0,3,2] {FULL}")
    A(f"v_cvt_pk_bf16_f32 v{D0}, v{D0}, v{D0 + 1}")
    for e in range(4):
        A(f"v_mov_b32_dpp v{124 + e}, v{D0} row_newbcast:{2 * e} {FULL}")
    A("s_waitcnt lgkmcnt(0)")
    for tau in range(4):
        A(f"v_mfma_f32_16x16x32_bf16 v[{128 + 4 * tau}:{131 + 4 * tau}], v[124:127], v[{WB + 4 * tau}:{WB + 4 * tau + 3}], 0")
    for tau in range(1, 4):
        A(f"v_mov_b32_dpp v128, v{128 + 4 * tau} quad_perm:[0,1,2,3] row_mask:{hex(1 << tau)} bank_mask:0xf")
    A(f"ds_write_b32 v18, v128 offset:{L_B}")
    A("s_cmp_eq_u32 s3, 0")
    A("s_waitcnt lgkmcnt(0)")
    A("s_barrier")
    A("s_cbranch_scc0 L_bdone")
    for i in range(8):
        A(f"ds_read_b32 v{120 + i}, v19 offset:{L_B + 256 * i}")
    A("s_waitcnt lgkmcnt(0)")
    for i in range(4):
        A(f"v_add_f32 v{120 + i}, v{120 + i}, v{124 + i}")
    A("v_add_f32 v120, v120, v121\nv_add_f32 v122, v122, v123\nv_add_f32 v120, v120, v122")
    store_quad(120, 28, fl=st2)
    A("L_bdone:")
    stamp_at(7)
    stamp_store()
    A("s_endpgm")
    A("L_pubfar:")
    A("s_nop 0")
    store_quad(R0, 67)
    A("s_branch L_published")
    A("L_ffn:")
    late = [k for k, p in enumerate(cpos) if p == "end"]
    if "now" not in xp:
        for k in late:
            wload(wC[k])
    vCol = 65
    A("v_and_b32 v17, 7, v0\nv_bfe_u32 v16, v0, 3, 2\nv_lshl_add_u32 v16, v17, 2, v16")
    A("v_and_b32 v18, 32, v0\nv_add_u32 v16, v16, v18")
    A(f"s_lshl_b32 s4, s3, 6\nv_add_u32 v{vCol}, s4, v16")
    A(f"v_lshlrev_b32 v29, 1, v{vCol}")
    A(f"ds_read_u16_d16_hi v64, v29 offset:{L_X}")
    A(f"s_lshl_b32 s4, s3, 8\ns_add_u32 s4, s4, {WS_P2}")
    A("v_lshrrev_b32 v18, 3, v0\nv_lshlrev_b32 v19, 12, v18\nv_lshl_add_u32 v16, v17, 4, v19\nv_add_u32 v20, s4, v16")
    A("v_lshrrev_b32 v18, 4, v0\nv_and_b32 v17, 15, v0")
    A(f"s_lshl_b32 s4, s15, 11\ns_add_u32 s4, s4, {WS_P3}\ns_lshl_b32 s5, s3, 8\ns_add_u32 s4, s4, s5")
    A("v_lshl_add_u32 v22, v0, 2, s4")
    A(f"v_lshlrev_b32 v23, 2, v{vCol}")
    A("v_lshlrev_b32 v24, 5, v0")
    A("v_mov_b32 v30, 0")
    A("s_lshl_b32 s4, s3, 7\nv_lshl_add_u32 v25, v18, 4, s4")
    A("v_lshl_add_u32 v26, v0, 2, s4")
    A("v_lshlrev_b32 v27, 8, v18\nv_lshl_add_u32 v27, v17, 2, v27")
    A("v_lshl_add_u32 v28, v0, 1, s4")
    A("v_bfe_u32 v16, v0, 2, 2\nv_lshl_add_u32 v16, v18, 3, v16\nv_lshlrev_b32 v16, 5, v16")
    A("v_and_b32 v17, 3, v0\nv_lshl_add_u32 v16, v17, 3, v16\nv_add_u32 v16, s57, v16")
    GW = 88
    DW = 104

    def cweights():
        if late:
            A("s_waitcnt vmcnt(4)" if peel else "s_waitcnt vmcnt(0)")
            A("s_barrier")
        for mat in range(2):
            for kap in range(2):
                for t in range(2):
                    r = GW + 8 * mat + 4 * kap + 2 * t
                    A(f"ds_read_b64_tr_b16 v[{r}:{r + 1}], v16 offset:{L_W + 16384 * mat + 1024 * kap + 128 * t}")
        for r in range(16):
            if r == 6:
                A("s_waitcnt lgkmcnt(0)")
            A(f"ds_read_u16_d16_hi v{DW + r}, v28 offset:{L_W + 32768 + 1024 * r}")
    loads = [f"global_load_dwordx4 v[{120 + 4 * i}:{123 + 4 * i}], v20, s[38:39] offset:{2048 * (i >> 1) + 128 * (i & 1)} {ld2}" for i in range(4)]
    if not peel:
        cweights()
    poll("L_poll2", loads, range(120, 136), 31, between=cweights if peel else None)
    stamp_at(6)
    for e in range(4):
        A(f"v_pk_add_f32 v[{120 + 2 * e}:{121 + 2 * e}], v[{120 + 2 * e}:{121 + 2 * e}], v[{128 + 2 * e}:{129 + 2 * e}]")
    for e in range(4):
        A(f"v_permlane32_swap_b32 v{120 + e}, v{124 + e}")
    A("v_pk_add_f32 v[120:121], v[120:121], v[124:125]\nv_pk_add_f32 v[122:123], v[122:123], v[126:127]")
    A("v_permlane16_swap_b32 v120, v122\nv_permlane16_swap_b32 v121, v123")
    A("v_pk_add_f32 v[122:123], v[120:121], v[122:123]")
    A("v_add_f32_dpp v120, v122, v122 row_ror:8 row_mask:0xf bank_mask:0x3")
    A("v_add_f32_dpp v120, v123, v123 row_ror:8 row_mask:0xf bank_mask:0xc")
    rbf(120)
    A("s_waitcnt lgkmcnt(0)")
    A("v_add_f32 v120, v120, v64")
    rbf(120)
    A(f"ds_write_b32 v23, v120 offset:{L_H}")
    A("s_waitcnt lgkmcnt(0)")
    A("s_barrier")
    A(f"ds_read_b128 v[124:127], v24 offset:{L_H}")
    A(f"ds_read_b128 v[128:131], v24 offset:{L_H + 16}")
    if fastln:
        A(f"ds_read_b32 v132, v30 offset:{L_H}")
    A("s_waitcnt lgkmcnt(0)")
    stamp_at(8)
    if fastln:
        ln2()
    else:
        ln_stats(list(range(124, 132)), 16, 17, 18, 19, 30, list(range(132, 140)))
        ln_apply([120], 16, 17, 18, [19])
    A("v_cvt_pk_bf16_f32 v120, v120, v120")
    A(f"ds_write_b16 v29, v120 offset:{L_HN}")
    A("s_waitcnt lgkmcnt(0)")
    A(f"ds_read_b128 v[124:127], v25 offset:{L_HN}")
    A(f"ds_read_b128 v[128:131], v25 offset:{L_HN + 64}")
    A("s_waitcnt lgkmcnt(0)")
    stamp_at(9)
    A(f"v_mfma_f32_16x16x32_bf16 v[132:135], v[124:127], v[{GW}:{GW + 3}], 0")
    A(f"v_mfma_f32_16x16x32_bf16 v[136:139], v[124:127], v[{GW + 8}:{GW + 11}], 0")
    A(f"v_mfma_f32_16x16x32_bf16 v[132:135], v[128:131], v[{GW + 4}:{GW + 7}], v[132:135]")
    A(f"v_mfma_f32_16x16x32_bf16 v[136:139], v[128:131], v[{GW + 12}:{GW + 15}], v[136:139]")
    A("v_mov_b32_dpp v132, v136 quad_perm:[0,1,2,3] row_mask:0x2 bank_mask:0xf")
    A("s_mov_b32 exec_hi, 0")
    A(f"ds_write_b32 v26, v132 offset:{L_G}")
    A("s_mov_b64 exec, -1")
    A("s_waitcnt lgkmcnt(0)")
    A("s_barrier")
    A(f"ds_read2_b32 v[120:121], v27 offset0:{L_G // 4 % 256} offset1:{L_G // 4 % 256 + 16}" if False else
      f"ds_read_b32 v120, v27 offset:{L_G}\nds_read_b32 v122, v27 offset:{L_G + 64}\nds_read_b32 v121, v27 offset:{L_G + 128}\nds_read_b32 v123, v27 offset:{L_G + 192}")
    A("s_waitcnt lgkmcnt(0)")
    stamp_at(10)
    A("v_add_f32 v120, v120, v121\nv_add_f32 v122, v122, v123")
    A("v_permlane32_swap_b32 v120, v122")
    A("v_add_f32 v120, v120, v122")
    A("v_mov_b32 v121, v120")
    A("v_permlane16_swap_b32 v120, v121")
    A("v_add_f32 v120, v120, v121")
    rbf(120)
    A("v_mov_b32 v121, v120")
    A("v_permlane32_swap_b32 v120, v121")
    A("v_mul_f32 v122, v120, v120")
    A("v_mul_f32 v122, v122, v120")
    A("v_mov_b32 v123, v120")
    A("v_fmac_f32 v123, 0x3d372713, v122")
    A("v_mul_f32 v123, 0xc0135761, v123")
    A("v_exp_f32 v123, v123")
    A("v_add_f32 v123, 1.0, v123")
    A("v_rcp_f32 v123, v123")
    A("v_mul_f32 v120, v120, v123")
    rbf(120)
    A("v_mul_f32 v120, v120, v121")
    rbf(120)
    for r in range(16):
        op = "mul" if r < 2 else "fmac"
        A(f"v_{op}_f32_dpp v{124 + (r & 1)}, v120, v{DW + r} row_newbcast:{r} {FULL}")
    A("v_add_f32 v124, v124, v125")
    store_quad(124, 22, fl=st3)
    stamp_at(7)
    stamp_store()
    A("s_endpgm")
    A("L_final:")
    A("s_sub_u32 s15, s7, 14\ns_lshl_b32 s4, s6, 1\ns_add_u32 s15, s15, s4")
    A("v_and_b32 v16, 7, v0\nv_lshrrev_b32 v17, 3, v0\nv_lshlrev_b32 v17, 11, v17\nv_lshl_add_u32 v17, v16, 4, v17")
    A("v_and_b32 v22, 31, v0\ns_lshl_b32 s4, s15, 6\nv_lshl_add_u32 v18, v22, 1, s4")
    A(f"ds_read_u16_d16_hi v19, v18 offset:{L_X}")
    A("v_lshlrev_b32 v22, 2, v22")
    sigma(23, 24)
    A("v_lshl_add_u32 v23, v16, 2, v23\ns_lshl_b32 s4, s3, 7\nv_lshl_add_u32 v23, v23, 2, s4")
    A(f"s_lshl_b32 s4, s3, 15\ns_add_u32 s4, s4, {WS_P3}")
    A("s_cmp_eq_u32 s3, 7")
    A(f"s_cselect_b32 s4, {WS_P2}, s4")
    A("s_lshl_b32 s5, s15, 7\ns_add_u32 s4, s4, s5")
    A("v_add_u32 v20, s4, v17\nv_add_u32 v21, 0x4000, v20")
    loads = [f"global_load_dwordx4 v[{120 + 4 * i}:{123 + 4 * i}], v{20 + i}, s[38:39] {ld3}" for i in range(2)]
    poll("L_poll3", loads, range(120, 128), 16)
    stamp_at(6)
    for e in range(4):
        A(f"v_add_f32 v{120 + e}, v{120 + e}, v{124 + e}")
    scatter4(120)
    A(f"v_add_f32_dpp v120, v120, v120 row_ror:8 {FULL}")
    A("s_mov_b32 exec_lo, 0x00ff00ff\ns_mov_b32 exec_hi, 0x00ff00ff")
    A(f"ds_write_b32 v23, v120 offset:{L_B}")
    A("s_mov_b64 exec, -1")
    A("s_cmp_eq_u32 s3, 0")
    A("s_waitcnt lgkmcnt(0)")
    A("s_barrier")
    A("s_cbranch_scc0 L_ddone")
    for i in range(8):
        A(f"ds_read_b32 v{120 + i}, v22 offset:{L_B + 128 * i}")
    A("s_waitcnt lgkmcnt(0)")
    rbf(127)
    A("v_add_f32 v120, v120, v121\nv_add_f32 v122, v122, v123\nv_add_f32 v124, v124, v125")
    A("v_add_f32 v127, v127, v19")
    A("v_add_f32 v120, v120, v122\nv_add_f32 v124, v124, v126")
    rbf(127)
    A("v_add_f32 v120, v120, v124")
    rbf(120)
    A("v_add_f32 v120, v120, v127")
    A(f"v_mov_b32_dpp v121, v120 quad_perm:[1,0,3,2] {FULL}")
    A("v_cvt_pk_bf16_f32 v120, v120, v121")
    A("s_mov_b64 exec, 0x55555555")
    A("global_store_dword v18, v120, s[34:35]")
    A("L_ddone:")
    stamp_at(7)
    stamp_store()
    A("s_endpgm")

    A("L_qclear:")
    A(f"s_lshl_b32 s10, s60, {11 + KL}\nv_add_u32 v3, s10, v9\nv_add_u32 v8, 0x1000, v3")
    for i in range(2 * KS):
        A(f"global_store_dwordx4 v{3 if i < 4 else 8}, v[100:103], s[38:39] offset:{1024 * (i & 3)} sc1")
    A(f"s_lshl_b32 s10, s60, 7\ns_add_u32 s10, s10, {WS_F}\nv_add_u32 v3, s10, v9")
    A("s_mov_b64 exec, 0xff")
    A("global_store_dwordx4 v3, v[100:103], s[38:39] sc1")
    A("s_mov_b64 exec, -1")
    A("s_branch L_qcleared")
    A("L_service:")
    stamp_at(1)
    nyoung = 0
    roles()
    p1slot("s4")
    A("v_add_u32 v104, s4, v9")
    if "noclear" not in xp:
        A("global_store_dwordx4 v104, v[100:103], s[38:39] sc1")
        A("global_store_dwordx4 v104, v[100:103], s[38:39] offset:1024 sc1")
        nyoung += 2
        A("s_cmp_lt_u32 s7, 14")
        A("s_cbranch_scc0 L_noclr3")
        A(f"s_lshl_b32 s4, s15, 11\ns_add_u32 s4, s4, {WS_P3}\nv_add_u32 v105, s4, v9")
        A("global_store_dwordx4 v105, v[100:103], s[38:39] sc1")
        A("global_store_dwordx4 v105, v[100:103], s[38:39] offset:1024 sc1")
        A("L_noclr3:")
        A("s_cmp_ge_u32 s7, 16")
        A("s_cbranch_scc0 L_noclr2")
        A(f"s_lshl_b32 s4, s13, 11\ns_lshl_b32 s5, s14, 8\ns_add_u32 s4, s4, s5\ns_add_u32 s4, s4, {WS_P2}\nv_add_u32 v105, s4, v9")
        A("s_mov_b64 exec, 0xffff")
        A("global_store_dwordx4 v105, v[100:103], s[38:39] sc1")
        A("s_mov_b64 exec, -1")
        A("L_noclr2:")
    if sbar:
        A("s_barrier")
    A("s_cmp_eq_u32 s7, 0")
    A("s_cbranch_scc0 L_noqflag")
    A("s_lshl_b32 s4, s60, 5\nv_mov_b32 v104, s4\nv_mov_b32 v105, 1")
    A(f"s_waitcnt vmcnt({NQ + 1 + (4 if 'noclear' not in xp else 0)})")
    A("s_mov_b64 exec, 1")
    A("global_store_dword v104, v105, s[36:37] sc1")
    A("s_mov_b64 exec, -1")
    A("L_noqflag:")
    A("v_lshlrev_b32 v96, 5, v0\nv_mov_b32 v17, 0")
    if KS == 2:
        A("s_cmp_lt_u32 s7, 16")
        A("s_cbranch_scc1 L_qproj")
        A("s_waitcnt vmcnt(0)")
        A(f"ds_write_b128 v9, v[4:7] offset:{L_X}")
        A("s_sleep 16")
        A("s_mov_b64 exec, 0xff")
        A("global_load_dword v97, v96, s[36:37] sc1")
        A("s_mov_b64 exec, -1")
        A("s_branch L_qdone")
    A("L_qproj:")
    A(f"s_waitcnt vmcnt({nyoung + NQ})")
    stamp_at(2)
    A(f"ds_write_b128 v9, v[4:7] offset:{L_X}")
    X = list(range(8, 16))
    X[1] = 3
    for i in range(4):
        A(f"v_lshlrev_b32 v{X[2 * i]}, 16, v{4 + i}")
        A(f"v_and_b32 v{X[2 * i + 1]}, 0xffff0000, v{4 + i}")
    ln_stats(X, 16, 17, 18, 19, 20, list(range(22, 30)))
    ln_apply(X, 16, 17, 18, list(range(22, 30)))
    for i in range(4):
        A(f"v_cvt_pk_bf16_f32 v{4 + i}, v{X[2 * i]}, v{X[2 * i + 1]}")
    A(f"ds_write_b128 v9, v[4:7] offset:{L_HN}")
    A("s_mov_b64 exec, 0xff")
    A("global_load_dword v97, v96, s[36:37] sc1")
    A("s_mov_b64 exec, -1")
    nyoung += 1
    A(f"s_and_b32 s4, s7, {KS - 1}\ns_lshl_b32 s4, s4, {10 - KL}\nv_lshrrev_b32 v17, 4, v0\nv_lshl_add_u32 v16, v17, 4, s4")
    A("v_bfe_u32 v18, v0, 2, 2\nv_lshl_add_u32 v17, v17, 3, v18\nv_lshlrev_b32 v17, 7, v17\nv_and_b32 v18, 3, v0\nv_lshl_add_u32 v17, v18, 3, v17")
    A("s_waitcnt lgkmcnt(0)")
    NK = NQ // 4
    for k in range(NK):
        A(f"ds_read_b128 v[{32 + 4 * k}:{35 + 4 * k}], v16 offset:{L_HN + 64 * k}")
    stamp_at(3)
    for k in range(NK):
        A(f"s_waitcnt vmcnt({nyoung + NQ - 4 - 4 * k}) lgkmcnt(0)")
        b = 64 + 16 * (k & 1)
        for tau in range(4):
            for t in range(2):
                r = b + 4 * tau + 2 * t
                A(f"ds_read_b64_tr_b16 v[{r}:{r + 1}], v17 offset:{L_W + 4096 * k + 512 * t + 32 * tau}")
        if k > 0:
            bp = 64 + 16 * ((k - 1) & 1)
            for tau in range(4):
                c = "0" if k == 1 else f"v[{112 + 4 * tau}:{115 + 4 * tau}]"
                A(f"v_mfma_f32_16x16x32_bf16 v[{112 + 4 * tau}:{115 + 4 * tau}], v[{28 + 4 * k}:{31 + 4 * k}], v[{bp + 4 * tau}:{bp + 4 * tau + 3}], {c}")
    A("s_waitcnt lgkmcnt(0)")
    for tau in range(4):
        A(f"v_mfma_f32_16x16x32_bf16 v[{112 + 4 * tau}:{115 + 4 * tau}], v[{28 + 4 * NK}:{31 + 4 * NK}], v[{80 + 4 * tau}:{83 + 4 * tau}], v[{112 + 4 * tau}:{115 + 4 * tau}]")
    A(f"s_lshl_b32 s4, s60, {11 + KL}\ns_and_b32 s5, s7, {KS - 1}\ns_lshl_b32 s5, s5, 11\ns_add_u32 s4, s4, s5\ns_lshr_b32 s5, s7, {KL}\ns_lshl_b32 s5, s5, 8\ns_add_u32 s4, s4, s5")
    A("v_lshl_add_u32 v17, v0, 2, s4")
    for tau in range(1, 4):
        A(f"v_mov_b32_dpp v112, v{112 + 4 * tau} quad_perm:[0,1,2,3] row_mask:{hex(1 << tau)} bank_mask:0xf")
    for i in (1, 2, 3):
        A(f"v_mov_b32_dpp v{112 + i}, v112 quad_perm:[{i},{i},{i},{i}] {FULL}")
    A("L_qdone:")
    A(f"s_lshl_b32 s4, s60, 5\ns_add_u32 s4, s4, s7\ns_lshl_b32 s4, s4, 2\ns_add_u32 s4, s4, {WS_F}\nv_mov_b32 v18, s4")
    A(f"s_lshl_b32 s4, s8, {11 + KL}\nv_add_u32 v19, s4, v9\nv_add_u32 v20, 0x1000, v19")
    A("s_getreg_b32 s62, hwreg(HW_REG_XCC_ID, 0, 4)\nv_mov_b32 v21, s62")
    A("s_lshl_b32 s4, 1, s60\ns_lshl_b32 s5, 1, s8\ns_or_b32 s4, s4, s5")
    A("s_mov_b32 s5, 0")
    stamp_at(4)
    if "svc1" in xp: A("s_branch L_svcbar2")
    A("L_pollf:")
    A("s_waitcnt vmcnt(0) lgkmcnt(0)")
    A("v_cmp_ne_u32 vcc, 1, v97")
    A("s_and_b32 s57, vcc_lo, s4")
    A("s_cbranch_scc0 L_pollf_ok")
    A(f"s_add_u32 s5, s5, 1\ns_cmp_lt_u32 s5, {SPIN_MAX}\ns_cbranch_scc0 L_pollf_ok")
    A("s_sleep 8")
    A("s_mov_b64 exec, 0xff")
    A("global_load_dword v97, v96, s[36:37] sc1")
    A("s_mov_b64 exec, -1")
    A("s_branch L_pollf")
    A("L_pollf_ok:")
    if KS == 2:
        A("s_cmp_lt_u32 s7, 16")
        A("s_cbranch_scc0 L_noqpub")
    A("s_mov_b32 exec_lo, 0x11111111\ns_mov_b32 exec_hi, 0x11111111")
    A("global_store_dwordx4 v17, v[112:115], s[38:39] sc1")
    A("L_noqpub:")
    A("s_mov_b64 exec, 1")
    A("global_store_dword v18, v21, s[38:39] sc1")
    A("s_mov_b64 exec, -1")
    stamp_at(5)
    if "svc2" in xp: A("s_branch L_svcbar2")
    ldswait("L_waitpos", 8)
    poll("L_pollq", [f"global_load_dwordx4 v[{32 + 4 * i}:{35 + 4 * i}], v{19 + (i >> 2)}, s[38:39] offset:{1024 * (i & 3)} sc1" for i in range(2 * KS)],
         range(32, 32 + 8 * KS), 16, slp=qsleep)
    stamp_at(6)
    for e in range(8):
        A(f"v_add_f32 v{32 + e}, v{32 + e}, v{40 + e}")
        if KS == 4:
            A(f"v_add_f32 v{48 + e}, v{48 + e}, v{56 + e}")
    if KS == 4:
        for e in range(8):
            A(f"v_add_f32 v{32 + e}, v{32 + e}, v{48 + e}")
    for e in range(4):
        A(f"v_cvt_pk_bf16_f32 v{40 + e}, v{32 + 2 * e}, v{33 + 2 * e}")
    A("v_lshlrev_b32 v16, 3, v0")
    A(f"ds_write_b64 v16, v[40:41] offset:{L_Q}")
    A(f"ds_write_b64 v16, v[42:43] offset:{L_Q + 512}")
    A("v_mov_b32 v99, 1")
    A("s_waitcnt lgkmcnt(0)")
    A("ds_write_b32 v98, v99")
    stamp_at(7)
    if "svc4" in xp: A("s_branch L_svcbar2")
    A("s_mov_b32 s5, 0")
    A("L_pollf2:")
    A("s_mov_b64 exec, 0xff")
    A("global_load_dword v97, v96, s[36:37] sc1")
    A("s_waitcnt vmcnt(0)")
    A("v_cmp_ne_u32 vcc, 1, v97")
    A("s_mov_b64 exec, -1")
    A("s_cbranch_vccz L_pollf2_ok")
    A(f"s_add_u32 s5, s5, 1\ns_cmp_lt_u32 s5, {SPIN_MAX}\ns_cbranch_scc1 L_pollf2")
    A("L_pollf2_ok:")
    stamp_at(8)
    A(f"v_add_u32 v19, {WS_F}, v9")
    poll("L_pollall", ["global_load_dwordx4 v[32:35], v19, s[38:39] sc1"], range(32, 36), 16, slp=16)
    stamp_at(9)
    A("v_xor_b32 v32, v32, v21\nv_xor_b32 v33, v33, v21\nv_xor_b32 v34, v34, v21\nv_xor_b32 v35, v35, v21")
    A("v_or_b32 v32, v32, v33\nv_or3_b32 v32, v32, v34, v35")
    A("v_cmp_ne_u32 vcc, 0, v32")
    A("s_lshl_b32 s4, s60, 3\ns_lshr_b64 s[4:5], vcc, s4\ns_and_b32 s4, s4, 0xff")
    A("s_cselect_b32 s4, 0, 1" if local and "far" not in xp else "s_mov_b32 s4, 0")
    A("v_mov_b32 v99, s4")
    A("ds_write_b32 v98, v99 offset:4")
    A("s_waitcnt lgkmcnt(0)")
    A("s_barrier")
    stamp_store()
    A("s_endpgm")
    A("L_svcbar:")
    A("v_mov_b32 v99, 1")
    A("ds_write_b32 v98, v99")
    A("s_waitcnt lgkmcnt(0)")
    A("s_barrier")
    A("L_svcbar2:")
    A("v_mov_b32 v99, 1")
    A("ds_write_b32 v98, v99")
    A("s_waitcnt lgkmcnt(0)")
    A("s_barrier")
    stamp_store()
    A("L_end:")
    A("s_endpgm")
    A("L_codeend:")

    body = fix(C)
    out = HEADER
    out += f"; @launch grid=(256,1,1) block=(576,1,1) lds={LDS_BYTES}\n"
    out += '.amdgcn_target "amdgcn-amd-amdhsa--gfx950"\n.text\n'
    out += f".globl {NAME}_kernel\n.p2align 8\n.type {NAME}_kernel,@function\n{NAME}_kernel:\n"
    out += "\n".join(("" if l.endswith(":") else "    ") + l for l in body) + "\n"
    out += f""".section .rodata,"a"
.p2align 6
.amdhsa_kernel {NAME}_kernel
  .amdhsa_next_free_vgpr 168
  .amdhsa_next_free_sgpr 96
  .amdhsa_accum_offset 168
  .amdhsa_group_segment_fixed_size 0
  .amdhsa_kernarg_size 96
  .amdhsa_user_sgpr_count 2
  .amdhsa_user_sgpr_kernarg_segment_ptr 1
  .amdhsa_system_sgpr_workgroup_id_x 1
  .amdhsa_float_denorm_mode_32 3
.end_amdhsa_kernel
"""
    return out


if __name__ == "__main__":
    cfg = eval("dict(" + (sys.argv[2] if len(sys.argv) > 2 else "") + ")")
    open(sys.argv[1], "w").write(gen(**cfg))
```

```python
import sys
from asmlib import fix, VM

NAME = "sequential_preLN__gqa_block_cached__glu_gated_geglu__decode"
HEADER = open("cdna_kernels/" + NAME + ".s.ref").read().split("; Override launch")[0]

WS_Q = 0x0
WS_F = 0x10000
WS_P1 = 0x20000
P1_STRIDE = 2048
WS_P2 = 0xB0000
WS_P3 = 0xC0000
WS_STAMP = 0x200000
L_Q = 0
L_X = 1024
L_M = 2048
L_L = 2176
L_F = 2304
L_B = 2560
L_H = 4608
L_HN = 6656
L_G = 7680
L_W = 8704
L_K = L_W + 49152
KRING = 3
VRING = 5
LDS_BYTES = L_K + 8 * KRING * 4096

LOG2E = 0x3FB8AA3B
SCALE = 0x3DB504F3
FULL = "row_mask:0xf bank_mask:0xf"
SPIN_MAX = 20000


def gen(D=4, D2=None, nt=True, hmap="xcd", inter="wgtile", stamps=False, wnt=False, warm=True, sleep=1, qsleep=4,
        xp=(), bpos=(36, 40, 44, 48), cpos=('end',) * 6, masked=True, qrot=4, local=True, fastln=True, ld2='sc1', ld3='sc1', st2='sc1', st3='sc1', peel=False, qpos=18, late4=True, pref=True, sbar=True, KS=4, perturb=None):
    C = []
    A = C.append
    ntf = " nt" if nt else ""
    wntf = " nt" if wnt else ""
    D2 = D if D2 is None else D2
    KL = KS.bit_length() - 1
    NQ = 64 // KS
    QR = 2048 * KS

    def stamp_at(k):
        if stamps:
            A(f"s_memrealtime s[{64 + 2 * k}:{65 + 2 * k}]")

    def stamp_store():
        if not stamps:
            return
        A("s_waitcnt lgkmcnt(0)")
        if stamps == "dbg":
            lab = f"L_dbg{len(C)}"
            A("s_and_b32 s4, s3, 7\ns_cmp_eq_u32 s4, 0")
            A(f"s_cbranch_scc0 {lab}")
            A("s_not_b32 s64, s64")
            A("s_cmp_eq_u32 s3, 8")
            sel0 = (0, 1, 2, 4, 5, 6, 7)
            sel8 = (2, 4, 5, 6, 7, 8, 9)
            A("s_mov_b64 exec, -1")
            for i in range(7):
                A(f"s_cselect_b32 s4, s{64 + 2 * sel8[i]}, s{64 + 2 * sel0[i]}")
                A(f"v_writelane_b32 v4, s4, {i}")
            A("s_lshl_b32 s4, s3, 2\ns_add_u32 s4, s4, 4\nv_lshl_add_u32 v1, v0, 2, s4")
            A("s_mov_b64 exec, 0x7f")
            A("global_atomic_umax v1, v4, s[36:37] sc1")
            A(f"{lab}:")
            return
        A("s_mov_b64 exec, 1")
        A("s_lshl_b32 s4, s2, 4\ns_add_u32 s4, s4, s3\ns_lshl_b32 s4, s4, 6")
        A(f"s_add_u32 s4, s4, {WS_STAMP}")
        A("v_mov_b32 v1, s4")
        A("s_getreg_b32 s94, hwreg(HW_REG_XCC_ID)")
        A("s_mov_b32 s92, s59")
        for q in range(4):
            for i in range(4):
                A(f"v_mov_b32 v{4 + i}, s{64 + 2 * (4 * q + i)}")
            A(f"global_store_dwordx4 v1, v[4:7], s[38:39] offset:{16 * q}")
            A("s_nop 1")

    def rowsum(a, op="add"):
        for s in (8, 4, 2, 1):
            A(f"v_{op}_f32_dpp v{a}, v{a}, v{a} row_ror:{s} {FULL}")

    def xrow(a, t, op="add"):
        A(f"v_mov_b32 v{t}, v{a}")
        A(f"v_permlane16_swap_b32 v{a}, v{t}")
        A(f"v_{op}_f32 v{a}, v{a}, v{t}")
        A(f"v_mov_b32 v{t}, v{a}")
        A(f"v_permlane32_swap_b32 v{a}, v{t}")
        A(f"v_{op}_f32 v{a}, v{a}, v{t}")

    def scatter4(r):
        A(f"v_permlane32_swap_b32 v{r}, v{r + 1}\nv_permlane32_swap_b32 v{r + 2}, v{r + 3}")
        A(f"v_add_f32 v{r}, v{r}, v{r + 1}\nv_add_f32 v{r + 2}, v{r + 2}, v{r + 3}")
        A(f"v_permlane16_swap_b32 v{r}, v{r + 2}")
        A(f"v_add_f32 v{r}, v{r}, v{r + 2}")

    def sigma(dst, t):
        A(f"v_bfe_u32 v{dst}, v0, 4, 1\nv_lshrrev_b32 v{t}, 5, v0\nv_lshl_add_u32 v{dst}, v{dst}, 1, v{t}")

    def rbf(a):
        A(f"v_cvt_pk_bf16_f32 v{a}, v{a}, v{a}")
        A(f"v_lshlrev_b32 v{a}, 16, v{a}")

    def ln_stats(vals, mean, den, rden, t0, t1, tmp):
        A(f"v_add_f32 v{t0}, v{vals[0]}, v{vals[1]}")
        A(f"v_add_f32 v{t1}, v{vals[2]}, v{vals[3]}")
        A(f"v_add_f32 v{mean}, v{vals[4]}, v{vals[5]}")
        A(f"v_add_f32 v{den}, v{vals[6]}, v{vals[7]}")
        A(f"v_add_f32 v{t0}, v{t0}, v{t1}")
        A(f"v_add_f32 v{mean}, v{mean}, v{den}")
        A(f"v_add_f32 v{mean}, v{mean}, v{t0}")
        rowsum(mean)
        xrow(mean, t0)
        A(f"v_mul_f32 v{mean}, 0x3b000000, v{mean}")
        for i in range(8):
            A(f"v_sub_f32 v{tmp[i]}, v{vals[i]}, v{mean}")
        A(f"v_mul_f32 v{den}, v{tmp[0]}, v{tmp[0]}")
        A(f"v_mul_f32 v{t1}, v{tmp[1]}, v{tmp[1]}")
        for i in range(2, 8, 2):
            A(f"v_fmac_f32 v{den}, v{tmp[i]}, v{tmp[i]}")
            A(f"v_fmac_f32 v{t1}, v{tmp[i + 1]}, v{tmp[i + 1]}")
        A(f"v_add_f32 v{den}, v{den}, v{t1}")
        rowsum(den)
        xrow(den, t0)
        A(f"v_mul_f32 v{den}, 0x3b000000, v{den}")
        A(f"v_cvt_pk_bf16_f32 v{t0}, v{mean}, v{den}")
        A(f"v_lshlrev_b32 v{mean}, 16, v{t0}")
        A(f"v_and_b32 v{den}, 0xffff0000, v{t0}")
        A(f"v_add_f32 v{den}, 0x3727c5ac, v{den}")
        rbf(den)
        A(f"v_sqrt_f32 v{t0}, v{den}")
        A(f"v_rsq_f32 v{t1}, v{den}")
        A(f"v_fma_f32 v{den}, -v{t0}, v{t0}, v{den}")
        A(f"v_mul_f32 v{t1}, 0.5, v{t1}")
        A(f"v_fma_f32 v{den}, v{den}, v{t1}, v{t0}")
        rbf(den)
        A(f"v_rcp_f32 v{rden}, v{den}")

    def ln_apply(xs, mean, den, rden, ts):
        for x in xs:
            A(f"v_sub_f32 v{x}, v{x}, v{mean}")
        for x in xs:
            A(f"v_cvt_pk_bf16_f32 v{x}, v{x}, v{x}")
        for x in xs:
            A(f"v_lshlrev_b32 v{x}, 16, v{x}")
        for x, t in zip(xs, ts):
            A(f"v_mul_f32 v{t}, v{x}, v{rden}")
        for x, t in zip(xs, ts):
            A(f"v_fma_f32 v{x}, -v{t}, v{den}, v{x}")
        for x, t in zip(xs, ts):
            A(f"v_fma_f32 v{x}, v{x}, v{rden}, v{t}")

    def ln2():
        A("v_mov_b32 v133, v132")
        for i in range(4):
            A(f"v_pk_add_f32 v[{124 + 2 * i}:{125 + 2 * i}], v[{124 + 2 * i}:{125 + 2 * i}], v[132:133] neg_lo:[0,1] neg_hi:[0,1]")
        A("v_pk_add_f32 v[134:135], v[124:125], v[126:127]")
        A("v_pk_mul_f32 v[136:137], v[124:125], v[124:125]")
        A("v_pk_add_f32 v[138:139], v[128:129], v[130:131]")
        A("v_pk_fma_f32 v[136:137], v[126:127], v[126:127], v[136:137]")
        A("v_pk_add_f32 v[134:135], v[134:135], v[138:139]")
        A("v_pk_fma_f32 v[136:137], v[128:129], v[128:129], v[136:137]")
        A("v_add_f32 v16, v134, v135")
        A("v_pk_fma_f32 v[136:137], v[130:131], v[130:131], v[136:137]")
        A("v_add_f32 v17, v136, v137")
        for m in ("row_shr:1", "row_shr:2", "row_shr:4", "row_shr:8"):
            A(f"v_add_f32_dpp v16, v16, v16 {m} {FULL} bound_ctrl:0")
            A(f"v_add_f32_dpp v17, v17, v17 {m} {FULL} bound_ctrl:0")
        for m in ("row_bcast:15 row_mask:0xa", "row_bcast:31 row_mask:0xc"):
            A(f"v_add_f32_dpp v16, v16, v16 {m} bank_mask:0xf")
            A(f"v_add_f32_dpp v17, v17, v17 {m} bank_mask:0xf")
        A("v_readlane_b32 s4, v16, 63")
        A("v_readlane_b32 s5, v17, 63")
        A("v_mov_b32 v18, 0x3b000000")
        A("v_mul_f32 v16, s4, v18")
        A("v_mul_f32 v17, s5, v18")
        A("v_fma_f32 v17, -v16, v16, v17")
        A("v_add_f32 v16, v16, v132")
        A("v_max_f32 v17, 0, v17")
        A("v_cvt_pk_bf16_f32 v18, v16, v17")
        A("v_and_b32 v17, 0xffff0000, v18")
        A("v_lshlrev_b32 v16, 16, v18")
        A("v_add_f32 v17, 0x3727c5ac, v17")
        A("v_sub_f32 v120, v120, v16")
        A("v_cvt_pk_bf16_f32 v18, v120, v17")
        A("v_and_b32 v17, 0xffff0000, v18")
        A("v_sqrt_f32 v17, v17")
        A("v_lshlrev_b32 v120, 16, v18")
        rbf(17)
        A("v_rcp_f32 v18, v17")
        A("v_mul_f32 v19, v120, v18")
        A("v_fma_f32 v120, -v19, v17, v120")
        A("v_fma_f32 v120, v120, v18, v19")

    def poll(label, loads, regs, t, slp=None, between=None):
        slp = sleep if slp is None else slp
        A("s_mov_b32 s59, 0")
        if between:
            for l in loads:
                A(l)
            between()
            A(f"s_branch {label}_chk")
        A(f"{label}:")
        for l in loads:
            A(l)
        if between:
            A(f"{label}_chk:")
        A("s_waitcnt vmcnt(0)")
        regs = list(regs)
        if len(regs) == 1:
            t = regs[0]
            rest = []
        elif len(regs) % 2 == 0:
            A(f"v_max_u32 v{t}, v{regs[0]}, v{regs[1]}")
            rest = regs[2:]
        else:
            A(f"v_max3_u32 v{t}, v{regs[0]}, v{regs[1]}, v{regs[2]}")
            rest = regs[3:]
        for i in range(0, len(rest), 2):
            A(f"v_max3_u32 v{t}, v{t}, v{rest[i]}, v{rest[i + 1]}")
        A(f"v_cmp_eq_u32 vcc, -1, v{t}")
        A(f"s_branch {label}_ok" if ("svc3" in xp and label in ("L_pollq", "L_pollall")) else f"s_cbranch_vccz {label}_ok")
        A("s_add_u32 s59, s59, 1")
        A(f"s_cmp_lt_u32 s59, {SPIN_MAX}")
        A(f"s_cbranch_scc0 {label}_ok")
        if masked:
            A("s_mov_b64 exec, vcc")
        if slp:
            A(f"s_sleep {slp}")
        A(f"s_branch {label}")
        A(f"{label}_ok:")
        if masked:
            A("s_mov_b64 exec, -1")

    def ldswait(label, off):
        A(f"v_mov_b32 v24, {L_F}\ns_mov_b32 s5, 0")
        A(f"{label}:")
        A(f"ds_read_b32 v25, v24 offset:{off}")
        A("s_waitcnt lgkmcnt(0)")
        A("v_cmp_ne_u32 vcc, 0, v25")
        A(f"s_cbranch_vccnz {label}_ok")
        A(f"s_add_u32 s5, s5, 1\ns_cmp_lt_u32 s5, {SPIN_MAX * 64}\ns_cbranch_scc0 {label}_ok")
        A("s_sleep 1")
        A(f"s_branch {label}")
        A(f"{label}_ok:")

    def store_quad(val, addr, lo="0x11111111", hi="0x11111111", fl="sc1"):
        for i in (1, 2, 3):
            A(f"v_mov_b32_dpp v{val + i}, v{val} quad_perm:[{i},{i},{i},{i}] {FULL}")
        A(f"s_mov_b32 exec_lo, {lo}\ns_mov_b32 exec_hi, {hi}")
        A(f"global_store_dwordx4 v{addr}, v[{val}:{val + 3}], s[38:39] {fl}")
        A("s_mov_b64 exec, -1")

    def roles():
        A("s_bfe_u32 s13, s7, 0x10003\ns_lshl_b32 s4, s61, 1\ns_add_u32 s13, s13, s4")
        A("s_and_b32 s14, s7, 7")
        A("s_mul_i32 s15, s6, 14\ns_add_u32 s15, s15, s7")

    def p1slot(dst):
        A(f"s_lshl_b32 {dst}, s8, 5\ns_add_u32 {dst}, {dst}, s9\ns_mul_i32 {dst}, {dst}, {P1_STRIDE}\ns_add_u32 {dst}, {dst}, {WS_P1}")

    stamp_at(0)
    A("s_cmp_ge_u32 s2, 256")
    A("s_cbranch_scc1 L_end")
    A("s_load_dwordx16 s[16:31], s[0:1], 0")
    A("s_load_dwordx8 s[32:39], s[0:1], 64")
    A("v_lshrrev_b32 v1, 6, v0")
    A("v_and_b32 v0, 63, v0")
    A("v_readfirstlane_b32 s3, v1")
    A("s_and_b32 s6, s2, 7")
    A("s_lshr_b32 s7, s2, 3")
    if hmap == "xcd":
        A("s_mov_b32 s8, s6")
        A("s_mov_b32 s9, s7")
    else:
        A("s_and_b32 s8, s7, 7")
        A("s_lshr_b32 s9, s7, 3\ns_lshl_b32 s10, s6, 2\ns_add_u32 s9, s9, s10")
    A(f"s_add_u32 s60, s6, {qrot}\ns_and_b32 s60, s60, 7")
    brot = 0 if local else 4
    A(f"s_add_u32 s61, s6, {brot}\ns_and_b32 s61, s61, 7")
    A("v_lshlrev_b32 v9, 4, v0")
    if warm:
        A("s_getpc_b64 s[48:49]")
        A("L_pc:")
        A(f"s_sub_u32 s48, s48, L_pc-{NAME}_kernel\ns_subb_u32 s49, s49, 0")
        A("s_lshl_b32 s4, s3, 11")
        A("v_add_u32 v2, s4, v9")
        A("v_add_u32 v3, 1024, v2")
        A(f"s_mov_b32 s4, L_codeend-{NAME}_kernel-16")
        A("v_min_u32 v2, s4, v2\nv_min_u32 v3, s4, v3")
        A("global_load_dwordx4 v[20:23], v2, s[48:49]")
        A("global_load_dwordx4 v[20:23], v3, s[48:49]")
    A("s_cmp_eq_u32 s3, 8")
    A("s_cbranch_scc0 L_stream")
    A("s_setprio 3")
    A(f"v_mov_b32 v98, {L_F}\nv_mov_b32 v99, 0")
    A("ds_write_b32 v98, v99")
    A("ds_write_b32 v98, v99 offset:8")
    if "svcoff" in xp:
        A("s_waitcnt lgkmcnt(0)\ns_branch L_svcbar")
    A("v_lshrrev_b32 v2, 3, v0\nv_and_b32 v3, 7, v0\nv_lshlrev_b32 v2, 13, v2\nv_lshl_add_u32 v2, v3, 4, v2")
    A(f"s_and_b32 s4, s7, {KS - 1}\ns_lshl_b32 s4, s4, {22 - KL}\ns_lshl_b32 s5, s60, 10\ns_add_u32 s4, s4, s5\ns_lshr_b32 s5, s7, {KL}\ns_lshl_b32 s5, s5, 7\ns_add_u32 s4, s4, s5")
    for i in range(4):
        A(f"v_mov_b32 v{100 + i}, -1")
    A(f"s_mov_b32 s42, 0x400000\ns_mov_b32 s43, 0x20000\ns_mov_b32 m0, {L_W}\ns_mov_b32 s5, {NQ}")
    A("s_cmp_eq_u32 s7, 0")
    A("s_waitcnt lgkmcnt(0)")
    if not sbar:
        A("s_barrier")
    A("s_cbranch_scc1 L_qclear")
    A("L_qcleared:")
    A("s_mov_b32 s40, s22\ns_and_b32 s41, s23, 0xffff")
    A("global_load_dwordx4 v[4:7], v9, s[16:17]")
    if KS == 2:
        A("s_cmp_lt_u32 s7, 16")
        A("s_cbranch_scc0 L_service")
    A("L_wqloop:")
    A(f"buffer_load_dwordx4 v2, s[40:43], s4 offen{wntf} lds")
    A("s_add_u32 s4, s4, 0x10000\ns_add_u32 m0, m0, 1024\ns_sub_u32 s5, s5, 1")
    A("s_cbranch_scc0 L_wqloop" if False else "s_cmp_lg_u32 s5, 0\ns_cbranch_scc1 L_wqloop")
    A("s_branch L_service")

    A("L_stream:")
    vKS = (1, 2, 3, 4)
    vKR = (5, 6, 7, 8)
    vV, vM, vML, vL = 9, 10, 11, 12
    PK = (13, 14)
    vAl = 15
    SEL = (16, 17, 18, 19)
    S = (20, 21, 22, 23)
    T = (24, 25, 26, 27)
    BB = 28
    vT2 = 38
    ACC = (40, 44)
    QF = 48
    KF = 64
    VR = [80 + 16 * i for i in range(VRING)]
    A("v_lshrrev_b32 v24, 4, v0")
    A("v_lshlrev_b32 v25, 6, v24")
    A(f"v_xor_b32 v{vKS[0]}, v{vV}, v25")
    for i in (1, 2, 3):
        A(f"v_xor_b32 v{vKS[i]}, {16 * i}, v{vKS[0]}")
    A("s_lshl_b32 s10, s8, 23")
    if inter == "wgtile":
        A("s_lshl_b32 s11, s9, 18\ns_add_u32 s10, s10, s11\ns_lshl_b32 s11, s3, 12\ns_add_u32 s10, s10, s11")
        step = 8 * 4096
    elif inter == "contig":
        A("s_lshl_b32 s11, s9, 18\ns_add_u32 s10, s10, s11\ns_lshl_b32 s11, s3, 15\ns_add_u32 s10, s10, s11")
        step = 4096
    elif inter == "global":
        A("s_lshl_b32 s11, s9, 15\ns_add_u32 s10, s10, s11\ns_lshl_b32 s11, s3, 12\ns_add_u32 s10, s10, s11")
        step = 256 * 4096
    A("s_mov_b32 s11, s10")
    A(f"s_mul_i32 s56, s3, {KRING * 4096}\ns_add_u32 s56, s56, {L_K}")
    A("s_mov_b32 m0, s56")
    A("s_mov_b32 s42, 0x4000000\ns_mov_b32 s43, 0x20000\ns_mov_b32 s46, 0x4000000\ns_mov_b32 s47, 0x20000")
    A("s_waitcnt lgkmcnt(0)")
    stamp_at(12)
    A("s_barrier")
    stamp_at(11)
    A("s_mov_b32 s40, s18\ns_and_b32 s41, s19, 0xffff\ns_mov_b32 s44, s20\ns_and_b32 s45, s21, 0xffff")
    vm = VM()
    ids = {}
    m0k = [0]
    order = ["K0", "V0", "K1", "V1", "K2", "V2", "V3", "V4", "K3", "K4", "K5", "V5", "K6", "V6", "K7", "V7"]
    seq = [(g[0], int(g[1]), u) for g in order for u in range(4)]
    NPRE = 4 * (KRING + VRING)

    def W(opid):
        w = vm.wait(opid)
        if w:
            A(w)

    wB = [("s58", L_W + 1024 * i, "v160", "s[24:25]", "v_add_u32 v160, 0x2000, v160") for i in range(4)]
    wC = [("s57", L_W, "v161", "s[28:29]", None), ("s57", L_W + 16384, "v161", "s[30:31]", f"v_add_u32 v161, {32 * 3584}, v161"),
          ("s57", L_W + 1024, "v161", "s[28:29]", None), ("s57", L_W + 16384 + 1024, "v161", "s[30:31]", None),
          ("s57", L_W + 32768, "v162", "s[32:33]", "v_add_u32 v162, 1024, v162"), ("s57", L_W + 32768 + 1024, "v162", "s[32:33]", None)]

    def wload(piece):
        so, lo, va, base, upd = piece
        A(f"s_add_u32 m0, {so}, {lo}")
        A(f"global_load_lds_dwordx4 {va}, {base}{wntf}")
        if upd:
            A(upd)

    def wslot(n):
        for role, pos, pieces, cond in (("B", () if late4 else bpos, wB, "s_cmp_ge_u32 s7, 16"), ("C", cpos, wC, "s_cmp_lt_u32 s7, 14")):
            ks = [k for k, p in enumerate(pos) if p == n]
            if ks and "now" not in xp:
                lab = f"L_w{role}{n}"
                A(cond)
                A(f"s_cbranch_scc0 {lab}")
                for k in ks:
                    wload(pieces[k])
                A(f"{lab}:")
                m0k[0] = None

    def load(n):
        mat, t, u = seq[n]
        d = D if n < NPRE else D2
        if n >= d:
            W(ids[seq[n - d]])
        wslot(n)
        if mat == "K":
            if m0k[0] != t:
                m0k[0] = t
                A(f"s_add_u32 m0, s56, {4096 * (t % KRING)}")
            A(f"buffer_load_dwordx4 v{vKS[u]}, s[40:43], s10 offen offset:{1024 * u}{ntf} lds")
            if u == 3:
                A(f"s_add_u32 s10, s10, {step}")
        else:
            r = VR[t % VRING] + 4 * u
            A(f"buffer_load_dwordx4 v[{r}:{r + 3}], v{vV}, s[44:47], s11 offen offset:{1024 * u}{ntf}")
            if u == 3:
                A(f"s_add_u32 s11, s11, {step}")
        ids[seq[n]] = vm.issue()

    def consts():
        A("v_and_b32 v24, 3, v0")
        A("v_mov_b32 v25, 0x0c0c0c0c")
        for k, (lo, e0) in enumerate(((0x0100, 0), (0x0100, 2), (0x0302, 0), (0x0302, 2))):
            A(f"v_mov_b32 v26, {hex(0x0c0c0000 | lo)}")
            A(f"v_mov_b32 v27, {hex((lo << 16) | 0x0c0c)}")
            A(f"v_cmp_eq_u32 vcc, {e0}, v24")
            A(f"v_cndmask_b32 v{SEL[k]}, v25, v26, vcc")
            A(f"v_cmp_eq_u32 vcc, {e0 + 1}, v24")
            A(f"v_cndmask_b32 v{SEL[k]}, v{SEL[k]}, v27, vcc")
        for z in (0, 1, 4, 5, 8, 9):
            A(f"v_mov_b32 v{BB + z}, 0")
        A(f"s_mov_b32 s12, {hex(LOG2E)}")
        A("v_bfe_u32 v25, v0, 2, 2")
        A("v_lshrrev_b32 v26, 4, v0")
        A("v_lshlrev_b32 v27, 8, v25")
        A(f"v_lshl_add_u32 v{vT2}, v26, 4, v27")
        A("v_lshl_add_u32 v25, v24, 2, v25")
        A("v_and_b32 v27, 15, v0")
        A("v_xor_b32 v26, v26, v27")
        A("v_lshlrev_b32 v26, 4, v26")
        A("v_lshl_add_u32 v26, v25, 8, v26")
        for u in range(4):
            A(f"v_xor_b32 v{vKR[u]}, {64 * u}, v26")
            A(f"v_add_u32 v{vKR[u]}, s56, v{vKR[u]}")
        roles()
        A("s_lshl_b32 s4, s13, 3\ns_add_u32 s4, s4, s3\ns_lshl_b32 s4, s4, 15\ns_lshl_b32 s5, s14, 7\ns_add_u32 s4, s4, s5")
        A("v_lshrrev_b32 v160, 3, v0\nv_and_b32 v161, 7, v0\nv_lshlrev_b32 v160, 10, v160\nv_lshl_add_u32 v160, v161, 4, v160\nv_add_u32 v160, s4, v160")
        A("s_lshl_b32 s4, s3, 6\nv_lshrrev_b32 v161, 1, v0\nv_add_u32 v161, s4, v161\nv_mul_u32_u24 v161, 3584, v161")
        A("v_and_b32 v162, 1, v0\nv_lshl_add_u32 v161, v162, 4, v161\ns_lshl_b32 s4, s15, 5\nv_add_u32 v161, s4, v161")
        A(f"s_lshl_b32 s4, s15, 3\ns_add_u32 s4, s4, s3\ns_lshl_b32 s4, s4, 11\nv_add_u32 v162, s4, v{vV}")
        A("s_lshl_b32 s57, s3, 11\ns_lshl_b32 s58, s3, 12")
        A("s_lshl_b32 s4, s7, 3\ns_add_u32 s4, s4, s3\ns_and_b32 s4, s4, 127\ns_mul_i32 s4, s4, 14336\ns_mul_i32 s5, s6, 448\ns_andn2_b32 s5, s5, 127\ns_add_u32 s4, s4, s5")
        A("v_lshrrev_b32 v163, 5, v0\nv_mul_u32_u24 v163, 3584, v163\nv_and_b32 v164, 31, v0\nv_lshl_add_u32 v163, v164, 4, v163\nv_add_u32 v163, s4, v163")
        A("v_add_u32 v164, 7168, v163")

    def qk(t, last=False):
        W(ids[("K", t, 3)])
        if "nocomp" in xp and not last:
            return
        k = KF
        for u in range(4):
            A(f"ds_read_b128 v[{k + 4 * u}:{k + 4 * u + 3}], v{vKR[u]} offset:{4096 * (t % KRING)}")
        for u in range(4):
            c = "0" if u == 0 else f"v[{S[0]}:{S[3]}]"
            A("s_waitcnt lgkmcnt(0)" if stamps else f"s_waitcnt lgkmcnt({3 - u})")
            A(f"v_mfma_f32_16x16x32_bf16 v[{S[0]}:{S[3]}], v[{k + 4 * u}:{k + 4 * u + 3}], v[{QF + 4 * u}:{QF + 4 * u + 3}], {c}")
        if last:
            A("v_bfe_u32 v26, v0, 2, 2")
            A("v_lshlrev_b32 v26, 5, v26")
            A("s_lshl_b32 s4, s3, 2")
            A("v_add_u32 v27, s4, v26")
        for rnd in range(2):
            A(f"v_cvt_pk_bf16_f32 v{T[0]}, v{S[0]}, v{S[1]}")
            A(f"v_cvt_pk_bf16_f32 v{T[1]}, v{S[2]}, v{S[3]}")
            A(f"v_lshlrev_b32 v{S[0]}, 16, v{T[0]}")
            A(f"v_and_b32 v{S[1]}, 0xffff0000, v{T[0]}")
            A(f"v_lshlrev_b32 v{S[2]}, 16, v{T[1]}")
            A(f"v_and_b32 v{S[3]}, 0xffff0000, v{T[1]}")
            if rnd == 0:
                for r in range(4):
                    A(f"v_mul_f32 v{S[r]}, {hex(SCALE)}, v{S[r]}")
        if t == 0:
            A(f"v_max_f32 v{vM}, v{S[0]}, v{S[1]}")
            A(f"v_max3_f32 v{vM}, v{vM}, v{S[2]}, v{S[3]}")
        else:
            A(f"v_max3_f32 v{vM}, v{vM}, v{S[0]}, v{S[1]}")
            A(f"v_max3_f32 v{vM}, v{vM}, v{S[2]}, v{S[3]}")
        xrow(vM, T[0], "max")
        if last:
            A("s_mov_b64 exec, 0x1111")
            A(f"ds_write_b32 v27, v{vM} offset:{L_M}")
            A("s_mov_b64 exec, -1")
            A("s_waitcnt lgkmcnt(0)")
            A("s_barrier")
            k0 = KF
            A(f"ds_read_b128 v[{k0}:{k0 + 3}], v26 offset:{L_M}")
            A(f"ds_read_b128 v[{k0 + 4}:{k0 + 7}], v26 offset:{L_M + 16}")
            A("s_waitcnt lgkmcnt(0)")
            A(f"v_max3_f32 v{vM}, v{k0}, v{k0 + 1}, v{k0 + 2}")
            A(f"v_max3_f32 v{vM}, v{vM}, v{k0 + 3}, v{k0 + 4}")
            A(f"v_max3_f32 v{vM}, v{vM}, v{k0 + 5}, v{k0 + 6}")
            A(f"v_max_f32 v{vM}, v{vM}, v{k0 + 7}")
        if t > 0:
            A(f"v_mov_b32 v{vAl}, v{vML}")
        A(f"v_mul_f32 v{vML}, s12, v{vM}")
        if t > 0:
            A(f"v_sub_f32 v{vAl}, v{vAl}, v{vML}")
            A(f"v_exp_f32 v{vAl}, v{vAl}")
        for r in range(4):
            A(f"v_fma_f32 v{S[r]}, v{S[r]}, s12, -v{vML}")
        for r in range(4):
            A(f"v_exp_f32 v{S[r]}, v{S[r]}")
        if t > 0:
            for a in range(8):
                A(f"v_mul_f32 v{ACC[0] + a}, v{vAl}, v{ACC[0] + a}")
        A(f"v_add_f32 v{T[0]}, v{S[0]}, v{S[1]}")
        A(f"v_add_f32 v{T[1]}, v{S[2]}, v{S[3]}")
        A(f"v_cvt_pk_bf16_f32 v{PK[0]}, v{S[0]}, v{S[1]}")
        A(f"v_cvt_pk_bf16_f32 v{PK[1]}, v{S[2]}, v{S[3]}")
        if t == 0:
            A(f"v_add_f32 v{vL}, v{T[0]}, v{T[1]}")
        else:
            A(f"v_add_f32 v{T[0]}, v{T[0]}, v{T[1]}")
            A(f"v_fma_f32 v{vL}, v{vL}, v{vAl}, v{T[0]}")
        if last:
            xrow(vL, T[0])
            A("s_mov_b64 exec, 0x1111")
            A(f"ds_write_b32 v27, v{vL} offset:{L_L}")
            A("s_mov_b64 exec, -1")
            A("s_and_b32 s4, s3, 1\ns_lshl_b32 s4, s4, 6\nv_lshrrev_b32 v26, 5, v0\nv_lshl_add_u32 v26, v26, 5, s4")
            A(f"v_mov_b32 v27, {L_F}")
            A("s_waitcnt lgkmcnt(0)")
            A("s_barrier")
            if late4 and "now" not in xp:
                A("s_cmp_ge_u32 s7, 16")
                A("s_cbranch_scc0 L_late_c")
                for piece in wB:
                    wload(piece)
                A("s_branch L_late_done")
                A("L_late_c:")
                for i in range(4):
                    if not pref:
                        A("s_mov_b64 exec, 1")
                    A(f"global_load_dwordx4 v[{VR[0]}:{VR[0] + 3}], v{163 + (i >> 1)}, {'s[30:31]' if i & 1 else 's[28:29]'}")
                    if not pref:
                        A("s_mov_b64 exec, -1")
                A("L_late_done:")
                for i in range(4):
                    vm.issue()
            A(f"ds_read_b128 v[64:67], v26 offset:{L_M}")
            A(f"ds_read_b128 v[68:71], v26 offset:{L_M + 16}")
            A(f"ds_read_b128 v[72:75], v26 offset:{L_L}")
            A(f"ds_read_b128 v[76:79], v26 offset:{L_L + 16}")
            A("ds_read_b32 v27, v27 offset:4")
            A("s_waitcnt lgkmcnt(0)")
            A("v_max3_f32 v64, v64, v65, v66\nv_max3_f32 v64, v64, v67, v68\nv_max3_f32 v64, v64, v69, v70\nv_max_f32 v64, v64, v71")
            for i in range(4):
                A(f"v_add_f32 v{72 + i}, v{72 + i}, v{76 + i}")
            A("v_add_f32 v72, v72, v73\nv_add_f32 v74, v74, v75\nv_add_f32 v72, v72, v74")
            A("v_readfirstlane_b32 s62, v27")
            A("v_log_f32 v73, v72")
            A(f"v_rcp_f32 v{vAl}, v72")
            A(f"v_mul_f32 v64, s12, v64")
            A(f"v_add_f32 v{vL}, v64, v73")
            A(f"v_and_b32 v{vM}, 3, v0\nv_add_u32 v{vM}, 0x07060501, v{vM}")
            A("s_mov_b32 s50, 0x88888888\ns_mov_b32 s51, 0x88888888")

    def pv(t, last=False):
        v = VR[t % VRING]
        if "nocomp" in xp and not last:
            W(ids[("V", t, 3)])
            return

        def perm(i):
            b = BB + 2 + 4 * (i & 1)
            A(f"v_perm_b32 v{b}, v{PK[i >> 1]}, v{PK[i >> 1]}, v{SEL[2 * (i & 1)]}")
            A(f"v_perm_b32 v{b + 1}, v{PK[i >> 1]}, v{PK[i >> 1]}, v{SEL[2 * (i & 1) + 1]}")
        perm(0)
        perm(1)
        if not last:
            W(ids[("V", t, 3)])
        else:
            A(f"v_add_u32 v64, s56, v{vV}")
            A("v_and_b32 v65, 15, v0\nv_bfe_u32 v66, v0, 4, 1\nv_mul_u32_u24 v66, 272, v66\nv_add_u32 v65, v65, v66")
            A("v_lshrrev_b32 v66, 5, v0\nv_lshl_add_u32 v65, v66, 4, v65\ns_lshl_b32 s4, s3, 7")
            A(f"s_add_u32 s4, s4, {L_K}\nv_lshl_add_u32 v65, v65, 2, s4")
            A(f"v_add_u32 v66, {4 * KRING * 4096}, v65")
            p1slot("s4")
            A("s_lshl_b32 s5, s3, 8\ns_add_u32 s5, s5, s4\nv_lshl_add_u32 v67, v0, 2, s5")
        for i in range(4):
            if last:
                W(ids[("V", t, i)])
            b = BB + 2 + 4 * (i & 1)
            for h in range(2):
                c = "0" if (t == 0 and i == 0) else f"v[{ACC[h]}:{ACC[h] + 3}]"
                bb = b if h == 0 else b - 2
                A(f"v_mfma_f32_16x16x32_bf16 v[{ACC[h]}:{ACC[h] + 3}], v[{v + 4 * i}:{v + 4 * i + 3}], v[{bb}:{bb + 3}], {c}")
            if i < 2:
                perm(i + 2)

    for n in range(NPRE):
        load(n)
        if n == D - 1:
            consts()
        if n == D:
            stamp_at(13)
        if n == qpos:
            A(f"v_mov_b32 v24, {L_F}\nds_write_b32 v24, v24 offset:8")
    stamp_at(1)
    ldswait("L_waitq", 0)
    stamp_at(2)
    for u in range(4):
        A(f"ds_read_b128 v[{QF + 4 * u}:{QF + 4 * u + 3}], v{vT2} offset:{L_Q + 64 * u}")
    A("s_waitcnt lgkmcnt(0)")
    blocks = []
    for t in range(7):
        blocks += [(qk, t, ("K", t, 3)), (pv, t, ("V", t, 3))]
    bi = 0
    for n in range(NPRE, len(seq)):
        mat, t, u = seq[n]
        needb = {"K": 2 * (t - KRING) + 1, "V": 2 * (t - VRING) + 2}[mat]
        while bi < needb:
            blocks[bi][0](blocks[bi][1])
            bi += 1
        load(n)
        if bi < len(blocks) and blocks[bi][2] in ids and ids[blocks[bi][2]] <= vm.done:
            blocks[bi][0](blocks[bi][1])
            bi += 1
    while bi < len(blocks):
        blocks[bi][0](blocks[bi][1])
        bi += 1
    qk(7, last=True)
    stamp_at(3)
    pv(7, last=True)
    stamp_at(4)
    A(f"ds_write_b128 v64, v[{ACC[0]}:{ACC[0] + 3}]")
    A(f"ds_write_b128 v64, v[{ACC[1]}:{ACC[1] + 3}] offset:1088")
    A("s_waitcnt lgkmcnt(0)")
    A("s_barrier")
    R0 = 72
    for i in range(8):
        A(f"ds_read_b32 v{R0 + i}, v{65 + (i >> 2)} offset:{KRING * 4096 * (i & 3)}")
    A("s_cmp_eq_u32 s62, 1")
    A("s_waitcnt lgkmcnt(0)")
    for i in range(4):
        A(f"v_add_f32 v{R0 + i}, v{R0 + i}, v{R0 + 4 + i}")
    A(f"v_add_f32 v{R0}, v{R0}, v{R0 + 1}")
    A(f"v_add_f32 v{R0 + 2}, v{R0 + 2}, v{R0 + 3}")
    A(f"v_add_f32 v{R0}, v{R0}, v{R0 + 2}")
    A(f"v_mul_f32 v{R0}, v{R0}, v{vAl}")
    A(f"v_mov_b32_dpp v{R0 + 1}, v{R0} quad_perm:[3,3,3,3] {FULL}")
    A(f"v_perm_b32 v{R0}, v{R0}, v{R0 + 1}, v{vM}")
    A(f"v_cndmask_b32 v{R0}, v{R0}, v{vL}, s[50:51]")
    A("s_cbranch_scc0 L_pubfar")
    A(f"global_store_dword v67, v{R0}, s[38:39]")
    A("L_published:")
    stamp_at(5)
    A("s_cmp_lt_u32 s7, 14")
    A("s_cbranch_scc1 L_ffn")
    A("s_cmp_lt_u32 s7, 16")
    A("s_cbranch_scc1 L_final")
    A(f"s_lshl_b32 s4, s61, 5\nv_lshrrev_b32 v16, 3, v0\nv_add_u32 v16, s4, v16\nv_mul_u32_u24 v16, {P1_STRIDE}, v16")
    A("s_and_b32 s4, s13, 1\ns_lshl_b32 s4, s4, 1\ns_lshr_b32 s5, s3, 2\ns_add_u32 s4, s4, s5")
    A(f"s_and_b32 s5, s3, 3\ns_lshl_b32 s5, s5, 2\ns_add_u32 s4, s4, s5\ns_lshl_b32 s4, s4, 7\ns_add_u32 s4, s4, {WS_P1}")
    A("v_and_b32 v17, 7, v0\nv_lshl_add_u32 v16, v17, 4, v16\nv_add_u32 v24, s4, v16")
    for pi in range(1, 4):
        A(f"v_add_u32 v{24 + pi}, {8 * pi * P1_STRIDE}, v24")
    A("s_mov_b32 s52, 0x04000c0c\ns_mov_b32 s53, 0x0706000c")
    sigma(16, 17)
    A("v_bfe_u32 v17, v0, 2, 2\nv_lshl_add_u32 v16, v16, 3, v17\nv_lshlrev_b32 v16, 7, v16")
    A("v_and_b32 v17, 3, v0\nv_lshl_add_u32 v16, v17, 3, v16\nv_add_u32 v16, s58, v16")
    WB = 88

    def bweights():
        if late4:
            A("s_waitcnt vmcnt(4)")
        for tau in range(4):
            for t in range(2):
                r = WB + 4 * tau + 2 * t
                A(f"ds_read_b64_tr_b16 v[{r}:{r + 1}], v16 offset:{L_W + 512 * t + 32 * tau}")
    if not late4:
        bweights()
    A("s_lshl_b32 s4, s3, 8\nv_lshl_add_u32 v18, v0, 2, s4")
    A(f"s_lshl_b32 s4, s13, 11\ns_lshl_b32 s5, s14, 8\ns_add_u32 s4, s4, s5\ns_add_u32 s4, s4, {WS_P2}")
    A("v_lshlrev_b32 v19, 2, v0\nv_add_u32 v28, s4, v19")
    D0 = 120
    loads = [f"global_load_dwordx4 v[{D0 + 4 * pi}:{D0 + 4 * pi + 3}], v{24 + pi}, s[38:39] sc1" for pi in range(4)]
    poll("L_poll1", loads, range(120, 136), 31, between=bweights if late4 else None)
    stamp_at(6)
    A(f"v_max3_f32 v16, v{D0 + 3}, v{D0 + 7}, v{D0 + 11}\nv_max_f32 v16, v16, v{D0 + 15}")
    for pi in range(2):
        A(f"v_perm_b32 v{136 + pi}, v{D0 + 4 * pi + 2}, v{D0 + 4 * pi + 1}, s52")
    A(f"v_max_f32_dpp v16, v16, v16 row_ror:8 {FULL}")
    for pi in range(2, 4):
        A(f"v_perm_b32 v{136 + pi}, v{D0 + 4 * pi + 2}, v{D0 + 4 * pi + 1}, s52")
    A("v_mov_b32 v17, v16")
    for pi in range(2):
        A(f"v_perm_b32 v{136 + pi}, v{136 + pi}, v{D0 + 4 * pi}, s53")
    A("v_permlane16_swap_b32 v16, v17")
    A("v_max_f32 v16, v16, v17")
    A("v_mov_b32 v17, v16")
    for pi in range(2, 4):
        A(f"v_perm_b32 v{136 + pi}, v{136 + pi}, v{D0 + 4 * pi}, s53")
    A("v_permlane32_swap_b32 v16, v17")
    A("v_max_f32 v16, v16, v17")
    for pi in range(4):
        A(f"v_sub_f32 v{D0 + 4 * pi + 3}, v{D0 + 4 * pi + 3}, v16")
    for pi in range(4):
        A(f"v_exp_f32 v{140 + pi}, v{D0 + 4 * pi + 3}")
    for e in range(3):
        A(f"v_mul_f32 v{D0 + e}, v140, v{D0 + e}")
    A(f"v_mul_f32 v{D0 + 3}, v140, v136")
    A("v_add_f32 v16, v140, v141\nv_add_f32 v17, v142, v143")
    for pi in range(1, 4):
        for e in range(3):
            A(f"v_fmac_f32 v{D0 + e}, v{140 + pi}, v{D0 + 4 * pi + e}")
        A(f"v_fmac_f32 v{D0 + 3}, v{140 + pi}, v{136 + pi}")
        if pi == 1:
            A("v_add_f32 v16, v16, v17")
        if pi == 2:
            A(f"v_add_f32_dpp v16, v16, v16 row_ror:8 {FULL}")
    A("v_mov_b32 v17, v16")
    A(f"v_permlane32_swap_b32 v{D0}, v{D0 + 1}\nv_permlane32_swap_b32 v{D0 + 2}, v{D0 + 3}\nv_permlane32_swap_b32 v16, v17")
    A(f"v_add_f32 v{D0}, v{D0}, v{D0 + 1}\nv_add_f32 v{D0 + 2}, v{D0 + 2}, v{D0 + 3}\nv_add_f32 v16, v16, v17")
    A("v_mov_b32 v17, v16")
    A(f"v_permlane16_swap_b32 v{D0}, v{D0 + 2}\nv_permlane16_swap_b32 v16, v17")
    A(f"v_add_f32 v{D0}, v{D0}, v{D0 + 2}\nv_add_f32 v16, v16, v17")
    A(f"v_add_f32_dpp v{D0}, v{D0}, v{D0} row_ror:8 {FULL}")
    A("v_rcp_f32 v16, v16")
    A(f"v_mul_f32 v{D0}, v{D0}, v16")
    A(f"v_mov_b32_dpp v{D0 + 1}, v{D0} quad_perm:[1,0,3,2] {FULL}")
    A(f"v_cvt_pk_bf16_f32 v{D0}, v{D0}, v{D0 + 1}")
    for e in range(4):
        A(f"v_mov_b32_dpp v{124 + e}, v{D0} row_newbcast:{2 * e} {FULL}")
    A("s_waitcnt lgkmcnt(0)")
    for tau in range(4):
        A(f"v_mfma_f32_16x16x32_bf16 v[{128 + 4 * tau}:{131 + 4 * tau}], v[124:127], v[{WB + 4 * tau}:{WB + 4 * tau + 3}], 0")
    for tau in range(1, 4):
        A(f"v_mov_b32_dpp v128, v{128 + 4 * tau} quad_perm:[0,1,2,3] row_mask:{hex(1 << tau)} bank_mask:0xf")
    A(f"ds_write_b32 v18, v128 offset:{L_B}")
    A("s_cmp_eq_u32 s3, 0")
    A("s_waitcnt lgkmcnt(0)")
    A("s_barrier")
    A("s_cbranch_scc0 L_bdone")
    for i in range(8):
        A(f"ds_read_b32 v{120 + i}, v19 offset:{L_B + 256 * i}")
    A("s_waitcnt lgkmcnt(0)")
    for i in range(4):
        A(f"v_add_f32 v{120 + i}, v{120 + i}, v{124 + i}")
    A("v_add_f32 v120, v120, v121\nv_add_f32 v122, v122, v123\nv_add_f32 v120, v120, v122")
    store_quad(120, 28, fl=st2)
    A("L_bdone:")
    stamp_at(7)
    stamp_store()
    A("s_endpgm")
    A("L_pubfar:")
    A("s_nop 0")
    store_quad(R0, 67)
    A("s_branch L_published")
    A("L_ffn:")
    late = [k for k, p in enumerate(cpos) if p == "end"]
    if "now" not in xp:
        for k in late:
            wload(wC[k])
    vCol = 65
    A("v_and_b32 v17, 7, v0\nv_bfe_u32 v16, v0, 3, 2\nv_lshl_add_u32 v16, v17, 2, v16")
    A("v_and_b32 v18, 32, v0\nv_add_u32 v16, v16, v18")
    A(f"s_lshl_b32 s4, s3, 6\nv_add_u32 v{vCol}, s4, v16")
    A(f"v_lshlrev_b32 v29, 1, v{vCol}")
    A(f"ds_read_u16_d16_hi v64, v29 offset:{L_X}")
    A(f"s_lshl_b32 s4, s3, 8\ns_add_u32 s4, s4, {WS_P2}")
    A("v_lshrrev_b32 v18, 3, v0\nv_lshlrev_b32 v19, 12, v18\nv_lshl_add_u32 v16, v17, 4, v19\nv_add_u32 v20, s4, v16")
    A("v_lshrrev_b32 v18, 4, v0\nv_and_b32 v17, 15, v0")
    A(f"s_lshl_b32 s4, s15, 11\ns_add_u32 s4, s4, {WS_P3}\ns_lshl_b32 s5, s3, 8\ns_add_u32 s4, s4, s5")
    A("v_lshl_add_u32 v22, v0, 2, s4")
    A(f"v_lshlrev_b32 v23, 2, v{vCol}")
    A("v_lshlrev_b32 v24, 5, v0")
    A("v_mov_b32 v30, 0")
    A("s_lshl_b32 s4, s3, 7\nv_lshl_add_u32 v25, v18, 4, s4")
    A("v_lshl_add_u32 v26, v0, 2, s4")
    A("v_lshlrev_b32 v27, 8, v18\nv_lshl_add_u32 v27, v17, 2, v27")
    A("v_lshl_add_u32 v28, v0, 1, s4")
    A("v_bfe_u32 v16, v0, 2, 2\nv_lshl_add_u32 v16, v18, 3, v16\nv_lshlrev_b32 v16, 5, v16")
    A("v_and_b32 v17, 3, v0\nv_lshl_add_u32 v16, v17, 3, v16\nv_add_u32 v16, s57, v16")
    GW = 88
    DW = 104

    def cweights():
        if late:
            A("s_waitcnt vmcnt(4)" if peel else "s_waitcnt vmcnt(0)")
            A("s_barrier")
        for mat in range(2):
            for kap in range(2):
                for t in range(2):
                    r = GW + 8 * mat + 4 * kap + 2 * t
                    A(f"ds_read_b64_tr_b16 v[{r}:{r + 1}], v16 offset:{L_W + 16384 * mat + 1024 * kap + 128 * t}")
        for r in range(16):
            if r == 6:
                A("s_waitcnt lgkmcnt(0)")
            A(f"ds_read_u16_d16_hi v{DW + r}, v28 offset:{L_W + 32768 + 1024 * r}")
    loads = [f"global_load_dwordx4 v[{120 + 4 * i}:{123 + 4 * i}], v20, s[38:39] offset:{2048 * (i >> 1) + 128 * (i & 1)} {ld2}" for i in range(4)]
    if not peel:
        cweights()
    poll("L_poll2", loads, range(120, 136), 31, between=cweights if peel else None)
    stamp_at(6)
    for e in range(4):
        A(f"v_pk_add_f32 v[{120 + 2 * e}:{121 + 2 * e}], v[{120 + 2 * e}:{121 + 2 * e}], v[{128 + 2 * e}:{129 + 2 * e}]")
    for e in range(4):
        A(f"v_permlane32_swap_b32 v{120 + e}, v{124 + e}")
    A("v_pk_add_f32 v[120:121], v[120:121], v[124:125]\nv_pk_add_f32 v[122:123], v[122:123], v[126:127]")
    A("v_permlane16_swap_b32 v120, v122\nv_permlane16_swap_b32 v121, v123")
    A("v_pk_add_f32 v[122:123], v[120:121], v[122:123]")
    A("v_add_f32_dpp v120, v122, v122 row_ror:8 row_mask:0xf bank_mask:0x3")
    A("v_add_f32_dpp v120, v123, v123 row_ror:8 row_mask:0xf bank_mask:0xc")
    rbf(120)
    A("s_waitcnt lgkmcnt(0)")
    A("v_add_f32 v120, v120, v64")
    rbf(120)
    A(f"ds_write_b32 v23, v120 offset:{L_H}")
    A("s_waitcnt lgkmcnt(0)")
    A("s_barrier")
    A(f"ds_read_b128 v[124:127], v24 offset:{L_H}")
    A(f"ds_read_b128 v[128:131], v24 offset:{L_H + 16}")
    if fastln:
        A(f"ds_read_b32 v132, v30 offset:{L_H}")
    A("s_waitcnt lgkmcnt(0)")
    stamp_at(8)
    if fastln:
        ln2()
    else:
        ln_stats(list(range(124, 132)), 16, 17, 18, 19, 30, list(range(132, 140)))
        ln_apply([120], 16, 17, 18, [19])
    A("v_cvt_pk_bf16_f32 v120, v120, v120")
    A(f"ds_write_b16 v29, v120 offset:{L_HN}")
    A("s_waitcnt lgkmcnt(0)")
    A(f"ds_read_b128 v[124:127], v25 offset:{L_HN}")
    A(f"ds_read_b128 v[128:131], v25 offset:{L_HN + 64}")
    A("s_waitcnt lgkmcnt(0)")
    stamp_at(9)
    A(f"v_mfma_f32_16x16x32_bf16 v[132:135], v[124:127], v[{GW}:{GW + 3}], 0")
    A(f"v_mfma_f32_16x16x32_bf16 v[136:139], v[124:127], v[{GW + 8}:{GW + 11}], 0")
    A(f"v_mfma_f32_16x16x32_bf16 v[132:135], v[128:131], v[{GW + 4}:{GW + 7}], v[132:135]")
    A(f"v_mfma_f32_16x16x32_bf16 v[136:139], v[128:131], v[{GW + 12}:{GW + 15}], v[136:139]")
    A("v_mov_b32_dpp v132, v136 quad_perm:[0,1,2,3] row_mask:0x2 bank_mask:0xf")
    A("s_mov_b32 exec_hi, 0")
    A(f"ds_write_b32 v26, v132 offset:{L_G}")
    A("s_mov_b64 exec, -1")
    A("s_waitcnt lgkmcnt(0)")
    A("s_barrier")
    A(f"ds_read2_b32 v[120:121], v27 offset0:{L_G // 4 % 256} offset1:{L_G // 4 % 256 + 16}" if False else
      f"ds_read_b32 v120, v27 offset:{L_G}\nds_read_b32 v122, v27 offset:{L_G + 64}\nds_read_b32 v121, v27 offset:{L_G + 128}\nds_read_b32 v123, v27 offset:{L_G + 192}")
    A("s_waitcnt lgkmcnt(0)")
    stamp_at(10)
    A("v_add_f32 v120, v120, v121\nv_add_f32 v122, v122, v123")
    A("v_permlane32_swap_b32 v120, v122")
    A("v_add_f32 v120, v120, v122")
    A("v_mov_b32 v121, v120")
    A("v_permlane16_swap_b32 v120, v121")
    A("v_add_f32 v120, v120, v121")
    rbf(120)
    A("v_mov_b32 v121, v120")
    A("v_permlane32_swap_b32 v120, v121")
    A("v_mul_f32 v122, v120, v120")
    A("v_mul_f32 v122, v122, v120")
    A("v_mov_b32 v123, v120")
    A("v_fmac_f32 v123, 0x3d372713, v122")
    A("v_mul_f32 v123, 0xc0135761, v123")
    A("v_exp_f32 v123, v123")
    A("v_add_f32 v123, 1.0, v123")
    A("v_rcp_f32 v123, v123")
    A("v_mul_f32 v120, v120, v123")
    rbf(120)
    A("v_mul_f32 v120, v120, v121")
    rbf(120)
    for r in range(16):
        op = "mul" if r < 2 else "fmac"
        A(f"v_{op}_f32_dpp v{124 + (r & 1)}, v120, v{DW + r} row_newbcast:{r} {FULL}")
    A("v_add_f32 v124, v124, v125")
    store_quad(124, 22, fl=st3)
    stamp_at(7)
    stamp_store()
    A("s_endpgm")
    A("L_final:")
    A("s_sub_u32 s15, s7, 14\ns_lshl_b32 s4, s6, 1\ns_add_u32 s15, s15, s4")
    A("v_and_b32 v16, 7, v0\nv_lshrrev_b32 v17, 3, v0\nv_lshlrev_b32 v17, 11, v17\nv_lshl_add_u32 v17, v16, 4, v17")
    A("v_and_b32 v22, 31, v0\ns_lshl_b32 s4, s15, 6\nv_lshl_add_u32 v18, v22, 1, s4")
    A(f"ds_read_u16_d16_hi v19, v18 offset:{L_X}")
    A("v_lshlrev_b32 v22, 2, v22")
    sigma(23, 24)
    A("v_lshl_add_u32 v23, v16, 2, v23\ns_lshl_b32 s4, s3, 7\nv_lshl_add_u32 v23, v23, 2, s4")
    A(f"s_lshl_b32 s4, s3, 15\ns_add_u32 s4, s4, {WS_P3}")
    A("s_cmp_eq_u32 s3, 7")
    A(f"s_cselect_b32 s4, {WS_P2}, s4")
    A("s_lshl_b32 s5, s15, 7\ns_add_u32 s4, s4, s5")
    A("v_add_u32 v20, s4, v17\nv_add_u32 v21, 0x4000, v20")
    loads = [f"global_load_dwordx4 v[{120 + 4 * i}:{123 + 4 * i}], v{20 + i}, s[38:39] {ld3}" for i in range(2)]
    poll("L_poll3", loads, range(120, 128), 16)
    stamp_at(6)
    for e in range(4):
        A(f"v_add_f32 v{120 + e}, v{120 + e}, v{124 + e}")
    scatter4(120)
    A(f"v_add_f32_dpp v120, v120, v120 row_ror:8 {FULL}")
    A("s_mov_b32 exec_lo, 0x00ff00ff\ns_mov_b32 exec_hi, 0x00ff00ff")
    A(f"ds_write_b32 v23, v120 offset:{L_B}")
    A("s_mov_b64 exec, -1")
    A("s_cmp_eq_u32 s3, 0")
    A("s_waitcnt lgkmcnt(0)")
    A("s_barrier")
    A("s_cbranch_scc0 L_ddone")
    for i in range(8):
        A(f"ds_read_b32 v{120 + i}, v22 offset:{L_B + 128 * i}")
    A("s_waitcnt lgkmcnt(0)")
    rbf(127)
    A("v_add_f32 v120, v120, v121\nv_add_f32 v122, v122, v123\nv_add_f32 v124, v124, v125")
    A("v_add_f32 v127, v127, v19")
    A("v_add_f32 v120, v120, v122\nv_add_f32 v124, v124, v126")
    rbf(127)
    A("v_add_f32 v120, v120, v124")
    rbf(120)
    A("v_add_f32 v120, v120, v127")
    if perturb:
        import struct
        kind, val = perturb
        h = hex(struct.unpack("<I", struct.pack("<f", val))[0])
        if kind == "add": A(f"v_add_f32 v120, {h}, v120")
        if kind == "mul": A(f"v_mul_f32 v120, {h}, v120")
        if kind == "one":
            A("s_cmp_eq_u32 s15, 0\ns_cselect_b32 s4, 1, 0\ns_mov_b32 s5, 0\ns_mov_b64 exec, s[4:5]")
            A(f"v_add_f32 v120, {h}, v120\ns_mov_b64 exec, -1")
    A(f"v_mov_b32_dpp v121, v120 quad_perm:[1,0,3,2] {FULL}")
    A("v_cvt_pk_bf16_f32 v120, v120, v121")
    A("s_mov_b64 exec, 0x55555555")
    A("global_store_dword v18, v120, s[34:35]")
    A("L_ddone:")
    stamp_at(7)
    stamp_store()
    A("s_endpgm")

    A("L_qclear:")
    A(f"s_lshl_b32 s10, s60, {11 + KL}\nv_add_u32 v3, s10, v9\nv_add_u32 v8, 0x1000, v3")
    for i in range(2 * KS):
        A(f"global_store_dwordx4 v{3 if i < 4 else 8}, v[100:103], s[38:39] offset:{1024 * (i & 3)} sc1")
    A(f"s_lshl_b32 s10, s60, 7\ns_add_u32 s10, s10, {WS_F}\nv_add_u32 v3, s10, v9")
    A("s_mov_b64 exec, 0xff")
    A("global_store_dwordx4 v3, v[100:103], s[38:39] sc1")
    A("s_mov_b64 exec, -1")
    A("s_branch L_qcleared")
    A("L_service:")
    stamp_at(1)
    nyoung = 0
    roles()
    p1slot("s4")
    A("v_add_u32 v104, s4, v9")
    if "noclear" not in xp:
        A("global_store_dwordx4 v104, v[100:103], s[38:39] sc1")
        A("global_store_dwordx4 v104, v[100:103], s[38:39] offset:1024 sc1")
        nyoung += 2
        A("s_cmp_lt_u32 s7, 14")
        A("s_cbranch_scc0 L_noclr3")
        A(f"s_lshl_b32 s4, s15, 11\ns_add_u32 s4, s4, {WS_P3}\nv_add_u32 v105, s4, v9")
        A("global_store_dwordx4 v105, v[100:103], s[38:39] sc1")
        A("global_store_dwordx4 v105, v[100:103], s[38:39] offset:1024 sc1")
        A("L_noclr3:")
        A("s_cmp_ge_u32 s7, 16")
        A("s_cbranch_scc0 L_noclr2")
        A(f"s_lshl_b32 s4, s13, 11\ns_lshl_b32 s5, s14, 8\ns_add_u32 s4, s4, s5\ns_add_u32 s4, s4, {WS_P2}\nv_add_u32 v105, s4, v9")
        A("s_mov_b64 exec, 0xffff")
        A("global_store_dwordx4 v105, v[100:103], s[38:39] sc1")
        A("s_mov_b64 exec, -1")
        A("L_noclr2:")
    if sbar:
        A("s_barrier")
    A("s_cmp_eq_u32 s7, 0")
    A("s_cbranch_scc0 L_noqflag")
    A("s_lshl_b32 s4, s60, 5\nv_mov_b32 v104, s4\nv_mov_b32 v105, 1")
    A(f"s_waitcnt vmcnt({NQ + 1 + (4 if 'noclear' not in xp else 0)})")
    A("s_mov_b64 exec, 1")
    A("global_store_dword v104, v105, s[36:37] sc1")
    A("s_mov_b64 exec, -1")
    A("L_noqflag:")
    A("v_lshlrev_b32 v96, 5, v0\nv_mov_b32 v17, 0")
    if KS == 2:
        A("s_cmp_lt_u32 s7, 16")
        A("s_cbranch_scc1 L_qproj")
        A("s_waitcnt vmcnt(0)")
        A(f"ds_write_b128 v9, v[4:7] offset:{L_X}")
        A("s_sleep 16")
        A("s_mov_b64 exec, 0xff")
        A("global_load_dword v97, v96, s[36:37] sc1")
        A("s_mov_b64 exec, -1")
        A("s_branch L_qdone")
    A("L_qproj:")
    A(f"s_waitcnt vmcnt({nyoung + NQ})")
    stamp_at(2)
    A(f"ds_write_b128 v9, v[4:7] offset:{L_X}")
    X = list(range(8, 16))
    X[1] = 3
    for i in range(4):
        A(f"v_lshlrev_b32 v{X[2 * i]}, 16, v{4 + i}")
        A(f"v_and_b32 v{X[2 * i + 1]}, 0xffff0000, v{4 + i}")
    ln_stats(X, 16, 17, 18, 19, 20, list(range(22, 30)))
    ln_apply(X, 16, 17, 18, list(range(22, 30)))
    for i in range(4):
        A(f"v_cvt_pk_bf16_f32 v{4 + i}, v{X[2 * i]}, v{X[2 * i + 1]}")
    A(f"ds_write_b128 v9, v[4:7] offset:{L_HN}")
    A("s_mov_b64 exec, 0xff")
    A("global_load_dword v97, v96, s[36:37] sc1")
    A("s_mov_b64 exec, -1")
    nyoung += 1
    A(f"s_and_b32 s4, s7, {KS - 1}\ns_lshl_b32 s4, s4, {10 - KL}\nv_lshrrev_b32 v17, 4, v0\nv_lshl_add_u32 v16, v17, 4, s4")
    A("v_bfe_u32 v18, v0, 2, 2\nv_lshl_add_u32 v17, v17, 3, v18\nv_lshlrev_b32 v17, 7, v17\nv_and_b32 v18, 3, v0\nv_lshl_add_u32 v17, v18, 3, v17")
    A("s_waitcnt lgkmcnt(0)")
    NK = NQ // 4
    for k in range(NK):
        A(f"ds_read_b128 v[{32 + 4 * k}:{35 + 4 * k}], v16 offset:{L_HN + 64 * k}")
    stamp_at(3)
    for k in range(NK):
        A(f"s_waitcnt vmcnt({nyoung + NQ - 4 - 4 * k}) lgkmcnt(0)")
        b = 64 + 16 * (k & 1)
        for tau in range(4):
            for t in range(2):
                r = b + 4 * tau + 2 * t
                A(f"ds_read_b64_tr_b16 v[{r}:{r + 1}], v17 offset:{L_W + 4096 * k + 512 * t + 32 * tau}")
        if k > 0:
            bp = 64 + 16 * ((k - 1) & 1)
            for tau in range(4):
                c = "0" if k == 1 else f"v[{112 + 4 * tau}:{115 + 4 * tau}]"
                A(f"v_mfma_f32_16x16x32_bf16 v[{112 + 4 * tau}:{115 + 4 * tau}], v[{28 + 4 * k}:{31 + 4 * k}], v[{bp + 4 * tau}:{bp + 4 * tau + 3}], {c}")
    A("s_waitcnt lgkmcnt(0)")
    for tau in range(4):
        A(f"v_mfma_f32_16x16x32_bf16 v[{112 + 4 * tau}:{115 + 4 * tau}], v[{28 + 4 * NK}:{31 + 4 * NK}], v[{80 + 4 * tau}:{83 + 4 * tau}], v[{112 + 4 * tau}:{115 + 4 * tau}]")
    A(f"s_lshl_b32 s4, s60, {11 + KL}\ns_and_b32 s5, s7, {KS - 1}\ns_lshl_b32 s5, s5, 11\ns_add_u32 s4, s4, s5\ns_lshr_b32 s5, s7, {KL}\ns_lshl_b32 s5, s5, 8\ns_add_u32 s4, s4, s5")
    A("v_lshl_add_u32 v17, v0, 2, s4")
    for tau in range(1, 4):
        A(f"v_mov_b32_dpp v112, v{112 + 4 * tau} quad_perm:[0,1,2,3] row_mask:{hex(1 << tau)} bank_mask:0xf")
    for i in (1, 2, 3):
        A(f"v_mov_b32_dpp v{112 + i}, v112 quad_perm:[{i},{i},{i},{i}] {FULL}")
    A("L_qdone:")
    A(f"s_lshl_b32 s4, s60, 5\ns_add_u32 s4, s4, s7\ns_lshl_b32 s4, s4, 2\ns_add_u32 s4, s4, {WS_F}\nv_mov_b32 v18, s4")
    A(f"s_lshl_b32 s4, s8, {11 + KL}\nv_add_u32 v19, s4, v9\nv_add_u32 v20, 0x1000, v19")
    A("s_getreg_b32 s62, hwreg(HW_REG_XCC_ID, 0, 4)\nv_mov_b32 v21, s62")
    A("s_lshl_b32 s4, 1, s60\ns_lshl_b32 s5, 1, s8\ns_or_b32 s4, s4, s5")
    A("s_mov_b32 s5, 0")
    stamp_at(4)
    if "svc1" in xp: A("s_branch L_svcbar2")
    A("L_pollf:")
    A("s_waitcnt vmcnt(0) lgkmcnt(0)")
    A("v_cmp_ne_u32 vcc, 1, v97")
    A("s_and_b32 s57, vcc_lo, s4")
    A("s_cbranch_scc0 L_pollf_ok")
    A(f"s_add_u32 s5, s5, 1\ns_cmp_lt_u32 s5, {SPIN_MAX}\ns_cbranch_scc0 L_pollf_ok")
    A("s_sleep 8")
    A("s_mov_b64 exec, 0xff")
    A("global_load_dword v97, v96, s[36:37] sc1")
    A("s_mov_b64 exec, -1")
    A("s_branch L_pollf")
    A("L_pollf_ok:")
    if KS == 2:
        A("s_cmp_lt_u32 s7, 16")
        A("s_cbranch_scc0 L_noqpub")
    A("s_mov_b32 exec_lo, 0x11111111\ns_mov_b32 exec_hi, 0x11111111")
    A("global_store_dwordx4 v17, v[112:115], s[38:39] sc1")
    A("L_noqpub:")
    A("s_mov_b64 exec, 1")
    A("global_store_dword v18, v21, s[38:39] sc1")
    A("s_mov_b64 exec, -1")
    stamp_at(5)
    if "svc2" in xp: A("s_branch L_svcbar2")
    ldswait("L_waitpos", 8)
    poll("L_pollq", [f"global_load_dwordx4 v[{32 + 4 * i}:{35 + 4 * i}], v{19 + (i >> 2)}, s[38:39] offset:{1024 * (i & 3)} sc1" for i in range(2 * KS)],
         range(32, 32 + 8 * KS), 16, slp=qsleep)
    stamp_at(6)
    for e in range(8):
        A(f"v_add_f32 v{32 + e}, v{32 + e}, v{40 + e}")
        if KS == 4:
            A(f"v_add_f32 v{48 + e}, v{48 + e}, v{56 + e}")
    if KS == 4:
        for e in range(8):
            A(f"v_add_f32 v{32 + e}, v{32 + e}, v{48 + e}")
    for e in range(4):
        A(f"v_cvt_pk_bf16_f32 v{40 + e}, v{32 + 2 * e}, v{33 + 2 * e}")
    A("v_lshlrev_b32 v16, 3, v0")
    A(f"ds_write_b64 v16, v[40:41] offset:{L_Q}")
    A(f"ds_write_b64 v16, v[42:43] offset:{L_Q + 512}")
    A("v_mov_b32 v99, 1")
    A("s_waitcnt lgkmcnt(0)")
    A("ds_write_b32 v98, v99")
    stamp_at(7)
    if "svc4" in xp: A("s_branch L_svcbar2")
    A("s_mov_b32 s5, 0")
    A("L_pollf2:")
    A("s_mov_b64 exec, 0xff")
    A("global_load_dword v97, v96, s[36:37] sc1")
    A("s_waitcnt vmcnt(0)")
    A("v_cmp_ne_u32 vcc, 1, v97")
    A("s_mov_b64 exec, -1")
    A("s_cbranch_vccz L_pollf2_ok")
    A(f"s_add_u32 s5, s5, 1\ns_cmp_lt_u32 s5, {SPIN_MAX}\ns_cbranch_scc1 L_pollf2")
    A("L_pollf2_ok:")
    stamp_at(8)
    A(f"v_add_u32 v19, {WS_F}, v9")
    poll("L_pollall", ["global_load_dwordx4 v[32:35], v19, s[38:39] sc1"], range(32, 36), 16, slp=16)
    stamp_at(9)
    A("v_xor_b32 v32, v32, v21\nv_xor_b32 v33, v33, v21\nv_xor_b32 v34, v34, v21\nv_xor_b32 v35, v35, v21")
    A("v_or_b32 v32, v32, v33\nv_or3_b32 v32, v32, v34, v35")
    A("v_cmp_ne_u32 vcc, 0, v32")
    A("s_lshl_b32 s4, s60, 3\ns_lshr_b64 s[4:5], vcc, s4\ns_and_b32 s4, s4, 0xff")
    A("s_cselect_b32 s4, 0, 1" if local and "far" not in xp else "s_mov_b32 s4, 0")
    A("v_mov_b32 v99, s4")
    A("ds_write_b32 v98, v99 offset:4")
    A("s_waitcnt lgkmcnt(0)")
    A("s_barrier")
    stamp_store()
    A("s_endpgm")
    A("L_svcbar:")
    A("v_mov_b32 v99, 1")
    A("ds_write_b32 v98, v99")
    A("s_waitcnt lgkmcnt(0)")
    A("s_barrier")
    A("L_svcbar2:")
    A("v_mov_b32 v99, 1")
    A("ds_write_b32 v98, v99")
    A("s_waitcnt lgkmcnt(0)")
    A("s_barrier")
    stamp_store()
    A("L_end:")
    A("s_endpgm")
    A("L_codeend:")

    body = fix(C)
    out = HEADER
    out += f"; @launch grid=(256,1,1) block=(576,1,1) lds={LDS_BYTES}\n"
    out += '.amdgcn_target "amdgcn-amd-amdhsa--gfx950"\n.text\n'
    out += f".globl {NAME}_kernel\n.p2align 8\n.type {NAME}_kernel,@function\n{NAME}_kernel:\n"
    out += "\n".join(("" if l.endswith(":") else "    ") + l for l in body) + "\n"
    out += f""".section .rodata,"a"
.p2align 6
.amdhsa_kernel {NAME}_kernel
  .amdhsa_next_free_vgpr 168
  .amdhsa_next_free_sgpr 96
  .amdhsa_accum_offset 168
  .amdhsa_group_segment_fixed_size 0
  .amdhsa_kernarg_size 96
  .amdhsa_user_sgpr_count 2
  .amdhsa_user_sgpr_kernarg_segment_ptr 1
  .amdhsa_system_sgpr_workgroup_id_x 1
  .amdhsa_float_denorm_mode_32 3
.end_amdhsa_kernel
"""
    return out


if __name__ == "__main__":
    cfg = eval("dict(" + (sys.argv[2] if len(sys.argv) > 2 else "") + ")")
    open(sys.argv[1], "w").write(gen(**cfg))
```

```python
import sys
from asmlib import fix, VM

NAME = "sequential_preLN__gqa_block_cached__glu_gated_geglu__decode"
HEADER = open("cdna_kernels/" + NAME + ".s.ref").read().split("; Override launch")[0]

WS_Q = 0x0
WS_F = 0x10000
WS_P1 = 0x20000
P1_STRIDE = 2048
WS_P2 = 0xB0000
WS_P3 = 0xC0000
WS_STAMP = 0x200000
L_Q = 0
L_X = 1024
L_M = 2048
L_L = 2176
L_F = 2304
L_B = 2560
L_H = 4608
L_HN = 6656
L_G = 7680
L_W = 8704
L_K = L_W + 49152
KRING = 3
VRING = 5
LDS_BYTES = L_K + 8 * KRING * 4096

LOG2E = 0x3FB8AA3B
SCALE = 0x3DB504F3
FULL = "row_mask:0xf bank_mask:0xf"
SPIN_MAX = 20000


def gen(D=4, D2=None, nt=True, inter="wgtile", stamps=False, wnt=True, warm=True, sleep=1, qsleep=4,
        xp=(), masked=True, qrot=4, local=True, qpos=18, pref=True, fold=True, bpos=None, bwait=True, ppos=None, kfirst=True, wb=False, pad1=0, pad2=0, pad3=0):
    C = []
    A = C.append
    ntf = " nt" if nt else ""
    wntf = " nt" if wnt else ""
    D2 = D if D2 is None else D2
    hmap = "xcd"; KS = 4; ld2 = ld3 = st2 = st3 = "sc1"; peel = False; late4 = True; cpos = ("end",) * 6; fastln = True; perturb = None
    bpos = (D + 4 if kfirst else D) if bpos is None else bpos
    KL = KS.bit_length() - 1
    NQ = 64 // KS
    QR = 2048 * KS

    def stamp_at(k):
        if stamps:
            A(f"s_memrealtime s[{64 + 2 * k}:{65 + 2 * k}]")

    def stamp_store():
        if not stamps:
            return
        A("s_waitcnt lgkmcnt(0)")
        if stamps == "dbg":
            lab = f"L_dbg{len(C)}"
            A("s_and_b32 s4, s3, 7\ns_cmp_eq_u32 s4, 0")
            A(f"s_cbranch_scc0 {lab}")
            A("s_not_b32 s64, s64")
            A("s_cmp_eq_u32 s3, 8")
            sel0 = (0, 1, 2, 4, 5, 6, 7)
            sel8 = (2, 4, 5, 6, 7, 8, 9)
            A("s_mov_b64 exec, -1")
            for i in range(7):
                A(f"s_cselect_b32 s4, s{64 + 2 * sel8[i]}, s{64 + 2 * sel0[i]}")
                A(f"v_writelane_b32 v4, s4, {i}")
            A("s_lshl_b32 s4, s3, 2\ns_add_u32 s4, s4, 4\nv_lshl_add_u32 v1, v0, 2, s4")
            A("s_mov_b64 exec, 0x7f")
            A("global_atomic_umax v1, v4, s[36:37] sc1")
            A(f"{lab}:")
            return
        A("s_mov_b64 exec, 1")
        A("s_lshl_b32 s4, s2, 4\ns_add_u32 s4, s4, s3\ns_lshl_b32 s4, s4, 6")
        A(f"s_add_u32 s4, s4, {WS_STAMP}")
        A("v_mov_b32 v1, s4")
        A("s_getreg_b32 s94, hwreg(HW_REG_XCC_ID)")
        A("s_lshl_b32 s92, s62, 16\ns_add_u32 s92, s92, s59")
        for q in range(4):
            for i in range(4):
                A(f"v_mov_b32 v{4 + i}, s{64 + 2 * (4 * q + i)}")
            A(f"global_store_dwordx4 v1, v[4:7], s[38:39] offset:{16 * q}")
            A("s_nop 1")

    def rowsum(a, op="add"):
        for s in (8, 4, 2, 1):
            A(f"v_{op}_f32_dpp v{a}, v{a}, v{a} row_ror:{s} {FULL}")

    def xrow(a, t, op="add"):
        A(f"v_mov_b32 v{t}, v{a}")
        A(f"v_permlane16_swap_b32 v{a}, v{t}")
        A(f"v_{op}_f32 v{a}, v{a}, v{t}")
        A(f"v_mov_b32 v{t}, v{a}")
        A(f"v_permlane32_swap_b32 v{a}, v{t}")
        A(f"v_{op}_f32 v{a}, v{a}, v{t}")

    def scatter4(r):
        A(f"v_permlane32_swap_b32 v{r}, v{r + 1}\nv_permlane32_swap_b32 v{r + 2}, v{r + 3}")
        A(f"v_add_f32 v{r}, v{r}, v{r + 1}\nv_add_f32 v{r + 2}, v{r + 2}, v{r + 3}")
        A(f"v_permlane16_swap_b32 v{r}, v{r + 2}")
        A(f"v_add_f32 v{r}, v{r}, v{r + 2}")

    def sigma(dst, t):
        A(f"v_bfe_u32 v{dst}, v0, 4, 1\nv_lshrrev_b32 v{t}, 5, v0\nv_lshl_add_u32 v{dst}, v{dst}, 1, v{t}")

    def rbf(a):
        A(f"v_cvt_pk_bf16_f32 v{a}, v{a}, v{a}")
        A(f"v_lshlrev_b32 v{a}, 16, v{a}")

    def ln_stats(vals, mean, den, rden, t0, t1, tmp):
        A(f"v_add_f32 v{t0}, v{vals[0]}, v{vals[1]}")
        A(f"v_add_f32 v{t1}, v{vals[2]}, v{vals[3]}")
        A(f"v_add_f32 v{mean}, v{vals[4]}, v{vals[5]}")
        A(f"v_add_f32 v{den}, v{vals[6]}, v{vals[7]}")
        A(f"v_add_f32 v{t0}, v{t0}, v{t1}")
        A(f"v_add_f32 v{mean}, v{mean}, v{den}")
        A(f"v_add_f32 v{mean}, v{mean}, v{t0}")
        rowsum(mean)
        xrow(mean, t0)
        A(f"v_mul_f32 v{mean}, 0x3b000000, v{mean}")
        for i in range(8):
            A(f"v_sub_f32 v{tmp[i]}, v{vals[i]}, v{mean}")
        A(f"v_mul_f32 v{den}, v{tmp[0]}, v{tmp[0]}")
        A(f"v_mul_f32 v{t1}, v{tmp[1]}, v{tmp[1]}")
        for i in range(2, 8, 2):
            A(f"v_fmac_f32 v{den}, v{tmp[i]}, v{tmp[i]}")
            A(f"v_fmac_f32 v{t1}, v{tmp[i + 1]}, v{tmp[i + 1]}")
        A(f"v_add_f32 v{den}, v{den}, v{t1}")
        rowsum(den)
        xrow(den, t0)
        A(f"v_mul_f32 v{den}, 0x3b000000, v{den}")
        A(f"v_cvt_pk_bf16_f32 v{t0}, v{mean}, v{den}")
        A(f"v_lshlrev_b32 v{mean}, 16, v{t0}")
        A(f"v_and_b32 v{den}, 0xffff0000, v{t0}")
        A(f"v_add_f32 v{den}, 0x3727c5ac, v{den}")
        rbf(den)
        A(f"v_sqrt_f32 v{t0}, v{den}")
        A(f"v_rsq_f32 v{t1}, v{den}")
        A(f"v_fma_f32 v{den}, -v{t0}, v{t0}, v{den}")
        A(f"v_mul_f32 v{t1}, 0.5, v{t1}")
        A(f"v_fma_f32 v{den}, v{den}, v{t1}, v{t0}")
        rbf(den)
        A(f"v_rcp_f32 v{rden}, v{den}")

    def ln_apply(xs, mean, den, rden, ts):
        for x in xs:
            A(f"v_sub_f32 v{x}, v{x}, v{mean}")
        for x in xs:
            A(f"v_cvt_pk_bf16_f32 v{x}, v{x}, v{x}")
        for x in xs:
            A(f"v_lshlrev_b32 v{x}, 16, v{x}")
        for x, t in zip(xs, ts):
            A(f"v_mul_f32 v{t}, v{x}, v{rden}")
        for x, t in zip(xs, ts):
            A(f"v_fma_f32 v{x}, -v{t}, v{den}, v{x}")
        for x, t in zip(xs, ts):
            A(f"v_fma_f32 v{x}, v{x}, v{rden}, v{t}")

    def ln2():
        A("v_mov_b32 v133, v132")
        for i in range(4):
            A(f"v_pk_add_f32 v[{124 + 2 * i}:{125 + 2 * i}], v[{124 + 2 * i}:{125 + 2 * i}], v[132:133] neg_lo:[0,1] neg_hi:[0,1]")
        A("v_pk_add_f32 v[134:135], v[124:125], v[126:127]")
        A("v_pk_mul_f32 v[136:137], v[124:125], v[124:125]")
        A("v_pk_add_f32 v[138:139], v[128:129], v[130:131]")
        A("v_pk_fma_f32 v[136:137], v[126:127], v[126:127], v[136:137]")
        A("v_pk_add_f32 v[134:135], v[134:135], v[138:139]")
        A("v_pk_fma_f32 v[136:137], v[128:129], v[128:129], v[136:137]")
        A("v_add_f32 v16, v134, v135")
        A("v_pk_fma_f32 v[136:137], v[130:131], v[130:131], v[136:137]")
        A("v_add_f32 v17, v136, v137")
        for m in ("row_shr:1", "row_shr:2", "row_shr:4", "row_shr:8"):
            A(f"v_add_f32_dpp v16, v16, v16 {m} {FULL} bound_ctrl:0")
            A(f"v_add_f32_dpp v17, v17, v17 {m} {FULL} bound_ctrl:0")
        for m in ("row_bcast:15 row_mask:0xa", "row_bcast:31 row_mask:0xc"):
            A(f"v_add_f32_dpp v16, v16, v16 {m} bank_mask:0xf")
            A(f"v_add_f32_dpp v17, v17, v17 {m} bank_mask:0xf")
        A("v_readlane_b32 s4, v16, 63")
        A("v_readlane_b32 s5, v17, 63")
        A("v_mov_b32 v18, 0x3b000000")
        A("v_mul_f32 v16, s4, v18")
        A("v_mul_f32 v17, s5, v18")
        A("v_fma_f32 v17, -v16, v16, v17")
        A("v_add_f32 v16, v16, v132")
        A("v_max_f32 v17, 0, v17")
        A("v_cvt_pk_bf16_f32 v18, v16, v17")
        A("v_and_b32 v17, 0xffff0000, v18")
        A("v_lshlrev_b32 v16, 16, v18")
        A("v_add_f32 v17, 0x3727c5ac, v17")
        A("v_sub_f32 v120, v120, v16")
        A("v_cvt_pk_bf16_f32 v18, v120, v17")
        A("v_and_b32 v17, 0xffff0000, v18")
        A("v_sqrt_f32 v17, v17")
        A("v_lshlrev_b32 v120, 16, v18")
        rbf(17)
        A("v_rcp_f32 v18, v17")
        A("v_mul_f32 v19, v120, v18")
        A("v_fma_f32 v120, -v19, v17, v120")
        A("v_fma_f32 v120, v120, v18, v19")

    def poll(label, loads, regs, t, slp=None, between=None):
        slp = sleep if slp is None else slp
        A("s_mov_b32 s59, 0")
        if between:
            for l in loads:
                A(l)
            between()
            A(f"s_branch {label}_chk")
        A(f"{label}:")
        for l in loads:
            A(l)
        if between:
            A(f"{label}_chk:")
        A("s_waitcnt vmcnt(0)")
        regs = list(regs)
        if len(regs) == 1:
            t = regs[0]
            rest = []
        elif len(regs) % 2 == 0:
            A(f"v_max_u32 v{t}, v{regs[0]}, v{regs[1]}")
            rest = regs[2:]
        else:
            A(f"v_max3_u32 v{t}, v{regs[0]}, v{regs[1]}, v{regs[2]}")
            rest = regs[3:]
        for i in range(0, len(rest), 2):
            A(f"v_max3_u32 v{t}, v{t}, v{rest[i]}, v{rest[i + 1]}")
        A(f"v_cmp_eq_u32 vcc, -1, v{t}")
        A(f"s_branch {label}_ok" if ("svc3" in xp and label in ("L_pollq", "L_pollall")) else f"s_cbranch_vccz {label}_ok")
        A("s_add_u32 s59, s59, 1")
        A(f"s_cmp_lt_u32 s59, {SPIN_MAX}")
        A(f"s_cbranch_scc0 {label}_ok")
        if masked:
            A("s_mov_b64 exec, vcc")
        if slp:
            A(f"s_sleep {slp}")
        A(f"s_branch {label}")
        A(f"{label}_ok:")
        if masked:
            A("s_mov_b64 exec, -1")

    def ldswait(label, off, val=None):
        A(f"v_mov_b32 v24, {L_F}\ns_mov_b32 s5, 0")
        A(f"{label}:")
        A(f"ds_read_b32 v25, v24 offset:{off}")
        A("s_waitcnt lgkmcnt(0)")
        A("v_cmp_ne_u32 vcc, 0, v25" if val is None else f"v_cmp_eq_u32 vcc, {val}, v25")
        A(f"s_cbranch_vccnz {label}_ok")
        A(f"s_add_u32 s5, s5, 1\ns_cmp_lt_u32 s5, {SPIN_MAX * 64}\ns_cbranch_scc0 {label}_ok")
        A("s_sleep 1")
        A(f"s_branch {label}")
        A(f"{label}_ok:")

    def store_quad(val, addr, lo="0x11111111", hi="0x11111111", fl="sc1"):
        for i in (1, 2, 3):
            A(f"v_mov_b32_dpp v{val + i}, v{val} quad_perm:[{i},{i},{i},{i}] {FULL}")
        A(f"s_mov_b32 exec_lo, {lo}\ns_mov_b32 exec_hi, {hi}")
        A(f"global_store_dwordx4 v{addr}, v[{val}:{val + 3}], s[38:39] {fl}")
        A("s_mov_b64 exec, -1")

    def roles():
        brot = 0 if local else 4
        A(f"s_add_u32 s61, s6, {brot}\ns_and_b32 s61, s61, 7")
        A("s_bfe_u32 s13, s7, 0x10003\ns_lshl_b32 s4, s61, 1\ns_add_u32 s13, s13, s4")
        A("s_and_b32 s14, s7, 7")
        A("s_mul_i32 s15, s6, 14\ns_add_u32 s15, s15, s7")

    def p1slot(dst):
        A(f"s_lshl_b32 {dst}, s6, 5\ns_add_u32 {dst}, {dst}, s7\ns_mul_i32 {dst}, {dst}, {P1_STRIDE}\ns_add_u32 {dst}, {dst}, {WS_P1}")

    stamp_at(0)
    A("s_load_dwordx16 s[16:31], s[0:1], 0")
    A("s_load_dwordx8 s[32:39], s[0:1], 64")
    A("s_cmp_ge_u32 s2, 256")
    A("s_cbranch_scc1 L_end")
    A("v_lshrrev_b32 v1, 6, v0")
    A("v_and_b32 v0, 63, v0")
    A("v_readfirstlane_b32 s3, v1")
    A("s_and_b32 s6, s2, 7")
    A("s_lshr_b32 s7, s2, 3")
    A(f"s_add_u32 s60, s6, {qrot}\ns_and_b32 s60, s60, 7")
    A("v_lshlrev_b32 v9, 4, v0")
    A("s_cmp_eq_u32 s3, 8")
    A("s_cbranch_scc1 L_service")
    def wqaddr():
        A("v_lshrrev_b32 v10, 3, v0\nv_and_b32 v11, 7, v0\nv_lshlrev_b32 v10, 13, v10\nv_lshl_add_u32 v10, v11, 4, v10")
        A("s_and_b32 s4, s7, 3\ns_lshl_b32 s4, s4, 3\ns_add_u32 s4, s4, s3\ns_lshl_b32 s4, s4, 7\ns_add_u32 s4, s4, s60\ns_lshl_b32 s4, s4, 3")
        A("s_lshr_b32 s5, s7, 2\ns_add_u32 s4, s4, s5\ns_lshl_b32 s4, s4, 7")
        A("v_add_u32 v10, s4, v10\nv_add_u32 v11, 0x10000, v10")
        A(f"s_lshl_b32 s57, s3, 11\ns_add_u32 m0, s57, {L_W}")

    def wqload():
        A("s_cmp_eq_u32 s3, 0")
        A("s_cbranch_scc0 L_nox")
        A(f"s_mov_b32 m0, {L_X}")
        A("global_load_lds_dwordx4 v9, s[16:17]")
        A(f"s_mov_b32 m0, {L_W}")
        A("s_nop 0")
        A("L_nox:")
        A(f"global_load_lds_dwordx4 v10, s[22:23]{wntf}")
        A("s_add_u32 m0, m0, 1024")
        A(f"global_load_lds_dwordx4 v11, s[22:23]{wntf}")
    if not kfirst:
        wqaddr()
    vKS = (1, 2, 3, 4)
    vKR = (5, 6, 7, 8)
    vV, vM, vML, vL = 9, 10, 11, 12
    PK = (13, 14)
    vAl = 15
    SEL = (16, 17, 18, 19)
    S = (20, 21, 22, 23)
    T = (24, 25, 26, 27)
    BB = 28
    vT2 = 38
    ACC = (40, 44)
    QF = 48
    KF = 64
    VR = [80 + 16 * i for i in range(VRING)]
    A("v_lshrrev_b32 v24, 4, v0")
    A("v_lshlrev_b32 v25, 6, v24")
    A(f"v_xor_b32 v{vKS[0]}, v{vV}, v25")
    for i in (1, 2, 3):
        A(f"v_xor_b32 v{vKS[i]}, {16 * i}, v{vKS[0]}")
    A("s_lshl_b32 s10, s6, 23")
    if inter == "wgtile":
        A("s_lshl_b32 s11, s7, 18\ns_add_u32 s10, s10, s11\ns_lshl_b32 s11, s3, 12\ns_add_u32 s10, s10, s11")
        step = 8 * 4096
    elif inter == "contig":
        A("s_lshl_b32 s11, s7, 18\ns_add_u32 s10, s10, s11\ns_lshl_b32 s11, s3, 15\ns_add_u32 s10, s10, s11")
        step = 4096
    elif inter == "global":
        A("s_lshl_b32 s11, s7, 15\ns_add_u32 s10, s10, s11\ns_lshl_b32 s11, s3, 12\ns_add_u32 s10, s10, s11")
        step = 256 * 4096
    A("s_mov_b32 s11, s10")
    A(f"s_mul_i32 s56, s3, {KRING * 4096}\ns_add_u32 s56, s56, {L_K}")
    A("s_mov_b32 s42, 0x4000000\ns_mov_b32 s43, 0x20000")
    if kfirst:
        A("s_mov_b32 m0, s56")
    A("s_waitcnt lgkmcnt(0)")
    stamp_at(12)
    if not kfirst:
        A("s_barrier")
        wqload()
        A("s_mov_b32 m0, s56")
    A("s_mov_b32 s40, s18\ns_and_b32 s41, s19, 0xffff")
    stamp_at(11)
    vm = VM()
    ids = {}
    m0k = [0]
    order = ["K0", "V0", "K1", "V1", "K2", "V2", "V3", "V4", "K3", "K4", "K5", "V5", "K6", "V6", "K7", "V7"]
    seq = [(g[0], int(g[1]), u) for g in order for u in range(4)]
    NPRE = 4 * (KRING + VRING)

    def W(opid):
        w = vm.wait(opid)
        if w:
            A(w)

    wB = [("s58", L_W + 1024 * i, "v160", "s[24:25]", "v_add_u32 v160, 0x2000, v160") for i in range(4)]
    wC = [("s57", L_W, "v161", "s[28:29]", None), ("s57", L_W + 16384, "v161", "s[30:31]", f"v_add_u32 v161, {32 * 3584}, v161"),
          ("s57", L_W + 1024, "v161", "s[28:29]", None), ("s57", L_W + 16384 + 1024, "v161", "s[30:31]", None),
          ("s57", L_W + 32768, "v162", "s[32:33]", "v_add_u32 v162, 1024, v162"), ("s57", L_W + 32768 + 1024, "v162", "s[32:33]", None)]

    def wload(piece):
        so, lo, va, base, upd = piece
        A(f"s_add_u32 m0, {so}, {lo}")
        A(f"global_load_lds_dwordx4 {va}, {base}{'' if va == 'v161' else wntf}")
        if upd:
            A(upd)

    def preload(i):
        if not pref:
            A("s_mov_b64 exec, 1")
        A(f"global_load_dwordx4 v[164:167], v{162 + (i >> 1) + 0 * i}, {'s[30:31]' if i & 1 else 's[28:29]'}".replace("v162", "v39").replace("v163,", "v163,"))
        if not pref:
            A("s_mov_b64 exec, -1")

    def wslot(n):
        if ppos is not None and n in ppos and "now" not in xp:
            A("s_cmp_lt_u32 s7, 16")
            A(f"s_cbranch_scc0 L_pre{n}")
            for i, p in enumerate(ppos):
                if p == n:
                    preload(i)
            A(f"L_pre{n}:")
        for role, pos, pieces, cond in (("B", (), wB, "s_cmp_ge_u32 s7, 16"), ("C", cpos, wC, "s_cmp_lt_u32 s7, 14")):
            ks = [k for k, p in enumerate(pos) if p == n]
            if ks and "now" not in xp:
                lab = f"L_w{role}{n}"
                A(cond)
                A(f"s_cbranch_scc0 {lab}")
                for k in ks:
                    wload(pieces[k])
                A(f"{lab}:")
                m0k[0] = None

    def load(n):
        mat, t, u = seq[n]
        d = D if n < NPRE else D2
        if n >= d:
            W(ids[seq[n - d]])
        wslot(n)
        if mat == "K":
            if m0k[0] != t:
                m0k[0] = t
                A(f"s_add_u32 m0, s56, {4096 * (t % KRING)}")
            A(f"buffer_load_dwordx4 v{vKS[u]}, s[40:43], s10 offen offset:{1024 * u}{ntf} lds")
            if u == 3:
                A(f"s_add_u32 s10, s10, {step}")
        else:
            r = VR[t % VRING] + 4 * u
            A(f"buffer_load_dwordx4 v[{r}:{r + 3}], v{vV}, s[44:47], s11 offen offset:{1024 * u}{ntf}")
            if u == 3:
                A(f"s_add_u32 s11, s11, {step}")
        ids[seq[n]] = vm.issue()

    def consts():
        A("v_and_b32 v24, 3, v0")
        A("v_mov_b32 v25, 0x0c0c0c0c")
        for k, (lo, e0) in enumerate(((0x0100, 0), (0x0100, 2), (0x0302, 0), (0x0302, 2))):
            A(f"v_mov_b32 v26, {hex(0x0c0c0000 | lo)}")
            A(f"v_mov_b32 v27, {hex((lo << 16) | 0x0c0c)}")
            A(f"v_cmp_eq_u32 vcc, {e0}, v24")
            A(f"v_cndmask_b32 v{SEL[k]}, v25, v26, vcc")
            A(f"v_cmp_eq_u32 vcc, {e0 + 1}, v24")
            A(f"v_cndmask_b32 v{SEL[k]}, v{SEL[k]}, v27, vcc")
        for z in (0, 1, 4, 5, 8, 9):
            A(f"v_mov_b32 v{BB + z}, 0")
        A(f"s_mov_b32 s12, {hex(LOG2E)}")
        A("v_bfe_u32 v25, v0, 2, 2")
        A("v_lshrrev_b32 v26, 4, v0")
        A("v_lshlrev_b32 v27, 8, v25")
        A(f"v_lshl_add_u32 v{vT2}, v26, 4, v27")
        A("v_lshl_add_u32 v25, v24, 2, v25")
        A("v_and_b32 v27, 15, v0")
        A("v_xor_b32 v26, v26, v27")
        A("v_lshlrev_b32 v26, 4, v26")
        A("v_lshl_add_u32 v26, v25, 8, v26")
        for u in range(4):
            A(f"v_xor_b32 v{vKR[u]}, {64 * u}, v26")
            A(f"v_add_u32 v{vKR[u]}, s56, v{vKR[u]}")
        roles()
        A("s_lshl_b32 s4, s13, 3\ns_add_u32 s4, s4, s3\ns_lshl_b32 s4, s4, 15\ns_lshl_b32 s5, s14, 7\ns_add_u32 s4, s4, s5")
        A("v_lshrrev_b32 v160, 3, v0\nv_and_b32 v161, 7, v0\nv_lshlrev_b32 v160, 10, v160\nv_lshl_add_u32 v160, v161, 4, v160\nv_add_u32 v160, s4, v160")
        A("s_lshl_b32 s4, s3, 6\nv_lshrrev_b32 v161, 1, v0\nv_add_u32 v161, s4, v161\nv_mul_u32_u24 v161, 3584, v161")
        A("v_and_b32 v162, 1, v0\nv_lshl_add_u32 v161, v162, 4, v161\ns_lshl_b32 s4, s15, 5\nv_add_u32 v161, s4, v161")
        A(f"s_min_u32 s4, s15, 111\ns_lshl_b32 s4, s4, 3\ns_add_u32 s4, s4, s3\ns_lshl_b32 s4, s4, 11\nv_add_u32 v162, s4, v{vV}")
        A("s_lshl_b32 s58, s3, 12")
        A("s_lshl_b32 s4, s7, 3\ns_add_u32 s4, s4, s3\ns_and_b32 s4, s4, 127\ns_mul_i32 s4, s4, 14336\ns_mul_i32 s5, s6, 448\ns_andn2_b32 s5, s5, 127\ns_add_u32 s4, s4, s5")
        A("v_lshrrev_b32 v39, 5, v0\nv_mul_u32_u24 v39, 3584, v39\nv_and_b32 v163, 31, v0\nv_lshl_add_u32 v39, v163, 4, v39\nv_add_u32 v39, s4, v39")
        A("v_add_u32 v163, 7168, v39")

    def qk(t, last=False):
        W(ids[("K", t, 3)])
        if "nocomp" in xp and not last:
            return
        k = KF
        for u in range(4):
            A(f"ds_read_b128 v[{k + 4 * u}:{k + 4 * u + 3}], v{vKR[u]} offset:{4096 * (t % KRING)}")
        for u in range(4):
            c = "0" if u == 0 else f"v[{S[0]}:{S[3]}]"
            A("s_waitcnt lgkmcnt(0)" if stamps else f"s_waitcnt lgkmcnt({3 - u})")
            A(f"v_mfma_f32_16x16x32_bf16 v[{S[0]}:{S[3]}], v[{k + 4 * u}:{k + 4 * u + 3}], v[{QF + 4 * u}:{QF + 4 * u + 3}], {c}")
        if last:
            A("v_bfe_u32 v26, v0, 2, 2")
            A("v_lshlrev_b32 v26, 5, v26")
            A("s_lshl_b32 s4, s3, 2")
            A("v_add_u32 v27, s4, v26")
        for rnd in range(2):
            A(f"v_cvt_pk_bf16_f32 v{T[0]}, v{S[0]}, v{S[1]}")
            A(f"v_cvt_pk_bf16_f32 v{T[1]}, v{S[2]}, v{S[3]}")
            A(f"v_lshlrev_b32 v{S[0]}, 16, v{T[0]}")
            A(f"v_and_b32 v{S[1]}, 0xffff0000, v{T[0]}")
            A(f"v_lshlrev_b32 v{S[2]}, 16, v{T[1]}")
            A(f"v_and_b32 v{S[3]}, 0xffff0000, v{T[1]}")
            if rnd == 0:
                for r in range(4):
                    A(f"v_mul_f32 v{S[r]}, {hex(SCALE)}, v{S[r]}")
        if t == 0:
            A(f"v_max_f32 v{vM}, v{S[0]}, v{S[1]}")
            A(f"v_max3_f32 v{vM}, v{vM}, v{S[2]}, v{S[3]}")
        else:
            A(f"v_max3_f32 v{vM}, v{vM}, v{S[0]}, v{S[1]}")
            A(f"v_max3_f32 v{vM}, v{vM}, v{S[2]}, v{S[3]}")
        xrow(vM, T[0], "max")
        if last:
            A("s_mov_b64 exec, 0x1111")
            A(f"ds_write_b32 v27, v{vM} offset:{L_M}")
            A("s_mov_b64 exec, -1")
            A("s_waitcnt lgkmcnt(0)")
            A("s_barrier")
            k0 = KF
            A(f"ds_read_b128 v[{k0}:{k0 + 3}], v26 offset:{L_M}")
            A(f"ds_read_b128 v[{k0 + 4}:{k0 + 7}], v26 offset:{L_M + 16}")
            A("s_waitcnt lgkmcnt(0)")
            A(f"v_max3_f32 v{vM}, v{k0}, v{k0 + 1}, v{k0 + 2}")
            A(f"v_max3_f32 v{vM}, v{vM}, v{k0 + 3}, v{k0 + 4}")
            A(f"v_max3_f32 v{vM}, v{vM}, v{k0 + 5}, v{k0 + 6}")
            A(f"v_max_f32 v{vM}, v{vM}, v{k0 + 7}")
        if t > 0:
            A(f"v_mov_b32 v{vAl}, v{vML}")
        A(f"v_mul_f32 v{vML}, s12, v{vM}")
        if t > 0:
            A(f"v_sub_f32 v{vAl}, v{vAl}, v{vML}")
            A(f"v_exp_f32 v{vAl}, v{vAl}")
        for r in range(4):
            A(f"v_fma_f32 v{S[r]}, v{S[r]}, s12, -v{vML}")
        for r in range(4):
            A(f"v_exp_f32 v{S[r]}, v{S[r]}")
        if t > 0:
            for a in range(8):
                A(f"v_mul_f32 v{ACC[0] + a}, v{vAl}, v{ACC[0] + a}")
        A(f"v_add_f32 v{T[0]}, v{S[0]}, v{S[1]}")
        A(f"v_add_f32 v{T[1]}, v{S[2]}, v{S[3]}")
        A(f"v_cvt_pk_bf16_f32 v{PK[0]}, v{S[0]}, v{S[1]}")
        A(f"v_cvt_pk_bf16_f32 v{PK[1]}, v{S[2]}, v{S[3]}")
        if t == 0:
            A(f"v_add_f32 v{vL}, v{T[0]}, v{T[1]}")
        else:
            A(f"v_add_f32 v{T[0]}, v{T[0]}, v{T[1]}")
            A(f"v_fma_f32 v{vL}, v{vL}, v{vAl}, v{T[0]}")
        if last:
            xrow(vL, T[0])
            A("s_mov_b64 exec, 0x1111")
            A(f"ds_write_b32 v27, v{vL} offset:{L_L}")
            A("s_mov_b64 exec, -1")
            A("s_and_b32 s4, s3, 1\ns_lshl_b32 s4, s4, 6\nv_lshrrev_b32 v26, 5, v0\nv_lshl_add_u32 v26, v26, 5, s4")
            A(f"v_mov_b32 v27, {L_F}")
            A("s_waitcnt lgkmcnt(0)")
            A("s_barrier")
            if late4 and "now" not in xp:
                A("s_cmp_ge_u32 s7, 16")
                A("s_cbranch_scc0 L_late_c")
                for piece in wB:
                    wload(piece)
                A("s_branch L_late_done")
                A("L_late_c:")
                if ppos is None:
                    for i in range(4):
                        preload(i)
                else:
                    A("s_cmp_lt_u32 s7, 14")
                    A("s_cselect_b64 exec, -1, 1")
                    wload(wC[4])
                    wload(wC[5])
                    A("s_mov_b64 exec, 1")
                    preload(0)
                    preload(1)
                    A("s_mov_b64 exec, -1")
                A("L_late_done:")
                for i in range(4):
                    vm.issue()
            A(f"ds_read_b128 v[64:67], v26 offset:{L_M}")
            A(f"ds_read_b128 v[68:71], v26 offset:{L_M + 16}")
            A(f"ds_read_b128 v[72:75], v26 offset:{L_L}")
            A(f"ds_read_b128 v[76:79], v26 offset:{L_L + 16}")
            A("ds_read_b32 v27, v27 offset:4")
            A("s_waitcnt lgkmcnt(0)")
            A("v_max3_f32 v64, v64, v65, v66\nv_max3_f32 v64, v64, v67, v68\nv_max3_f32 v64, v64, v69, v70\nv_max_f32 v64, v64, v71")
            for i in range(4):
                A(f"v_add_f32 v{72 + i}, v{72 + i}, v{76 + i}")
            A("v_add_f32 v72, v72, v73\nv_add_f32 v74, v74, v75\nv_add_f32 v72, v72, v74")
            A("v_readfirstlane_b32 s62, v27")
            A("v_log_f32 v73, v72")
            A(f"v_rcp_f32 v{vAl}, v72")
            A(f"v_mul_f32 v64, s12, v64")
            A(f"v_add_f32 v{vL}, v64, v73")
            A(f"v_and_b32 v{vM}, 3, v0\nv_add_u32 v{vM}, 0x07060501, v{vM}")
            A("s_mov_b32 s50, 0x88888888\ns_mov_b32 s51, 0x88888888")

    def pv(t, last=False):
        v = VR[t % VRING]
        if "nocomp" in xp and not last:
            W(ids[("V", t, 3)])
            return

        def perm(i):
            b = BB + 2 + 4 * (i & 1)
            A(f"v_perm_b32 v{b}, v{PK[i >> 1]}, v{PK[i >> 1]}, v{SEL[2 * (i & 1)]}")
            A(f"v_perm_b32 v{b + 1}, v{PK[i >> 1]}, v{PK[i >> 1]}, v{SEL[2 * (i & 1) + 1]}")
        perm(0)
        perm(1)
        if not last:
            W(ids[("V", t, 3)])
        else:
            A(f"v_add_u32 v64, s56, v{vV}")
            A("v_and_b32 v65, 15, v0\nv_bfe_u32 v66, v0, 4, 1\nv_mul_u32_u24 v66, 272, v66\nv_add_u32 v65, v65, v66")
            A("v_lshrrev_b32 v66, 5, v0\nv_lshl_add_u32 v65, v66, 4, v65\ns_lshl_b32 s4, s3, 7")
            A(f"s_add_u32 s4, s4, {L_K}\nv_lshl_add_u32 v65, v65, 2, s4")
            A(f"v_add_u32 v66, {4 * KRING * 4096}, v65")
            p1slot("s4")
            A("s_lshl_b32 s5, s3, 8\ns_add_u32 s5, s5, s4\nv_lshl_add_u32 v67, v0, 2, s5")
        for i in range(4):
            if last:
                W(ids[("V", t, i)])
            b = BB + 2 + 4 * (i & 1)
            for h in range(2):
                c = "0" if (t == 0 and i == 0) else f"v[{ACC[h]}:{ACC[h] + 3}]"
                bb = b if h == 0 else b - 2
                A(f"v_mfma_f32_16x16x32_bf16 v[{ACC[h]}:{ACC[h] + 3}], v[{v + 4 * i}:{v + 4 * i + 3}], v[{bb}:{bb + 3}], {c}")
            if i < 2:
                perm(i + 2)

    for n in range(NPRE):
        load(n)
        if n == 3:
            A("s_mov_b32 s44, s20\ns_and_b32 s45, s21, 0xffff\ns_mov_b32 s46, 0x4000000\ns_mov_b32 s47, 0x20000")
            if kfirst:
                wqaddr()
                wqload()
                m0k[0] = None
                A("s_barrier")
        if n == max(D - 1, 3):
            consts()
        if n == bpos:
            stamp_at(13)
            A(f"v_mov_b32 v24, {L_F}\nv_mov_b32 v25, 1\ns_mov_b64 exec, 1\nds_add_u32 v24, v25 offset:12\ns_mov_b64 exec, -1")
        if n == qpos:
            A(f"v_mov_b32 v24, {L_F}\nds_write_b32 v24, v24 offset:8")
    stamp_at(1)
    ldswait("L_waitq", 0)
    stamp_at(2)
    for u in range(4):
        A(f"ds_read_b128 v[{QF + 4 * u}:{QF + 4 * u + 3}], v{vT2} offset:{L_Q + 64 * u}")
    A("s_waitcnt lgkmcnt(0)")
    blocks = []
    for t in range(7):
        blocks += [(qk, t, ("K", t, 3)), (pv, t, ("V", t, 3))]
    bi = 0
    for n in range(NPRE, len(seq)):
        mat, t, u = seq[n]
        needb = {"K": 2 * (t - KRING) + 1, "V": 2 * (t - VRING) + 2}[mat]
        while bi < needb:
            blocks[bi][0](blocks[bi][1])
            bi += 1
        load(n)
        if bi < len(blocks) and blocks[bi][2] in ids and ids[blocks[bi][2]] <= vm.done:
            blocks[bi][0](blocks[bi][1])
            bi += 1
    while bi < len(blocks):
        blocks[bi][0](blocks[bi][1])
        bi += 1
    for _ in range(pad1):
        A("s_nop 0")
    qk(7, last=True)
    stamp_at(3)
    pv(7, last=True)
    stamp_at(4)
    A(f"ds_write_b128 v64, v[{ACC[0]}:{ACC[0] + 3}]")
    A(f"ds_write_b128 v64, v[{ACC[1]}:{ACC[1] + 3}] offset:1088")
    A("s_waitcnt lgkmcnt(0)")
    A("s_barrier")
    R0 = 72
    for i in range(8):
        A(f"ds_read_b32 v{R0 + i}, v{65 + (i >> 2)} offset:{KRING * 4096 * (i & 3)}")
    A("s_cmp_eq_u32 s62, 1")
    A("s_waitcnt lgkmcnt(0)")
    for i in range(2):
        A(f"v_pk_add_f32 v[{R0 + 2 * i}:{R0 + 2 * i + 1}], v[{R0 + 2 * i}:{R0 + 2 * i + 1}], v[{R0 + 4 + 2 * i}:{R0 + 5 + 2 * i}]")
    A(f"v_pk_add_f32 v[{R0}:{R0 + 1}], v[{R0}:{R0 + 1}], v[{R0 + 2}:{R0 + 3}]")
    A(f"v_add_f32 v{R0}, v{R0}, v{R0 + 1}")
    A(f"v_mul_f32 v{R0}, v{R0}, v{vAl}")
    A(f"v_mov_b32_dpp v{R0 + 1}, v{R0} quad_perm:[3,3,3,3] {FULL}")
    A(f"v_perm_b32 v{R0}, v{R0}, v{R0 + 1}, v{vM}")
    A(f"v_cndmask_b32 v{R0}, v{R0}, v{vL}, s[50:51]")
    A("s_cbranch_scc0 L_pubfar")
    A(f"global_store_dword v67, v{R0}, s[38:39]")
    A("L_published:")
    for _ in range(pad2):
        A("s_nop 0")
    stamp_at(5)
    A("s_cmp_lt_u32 s7, 14")
    A("s_cbranch_scc1 L_ffn")
    A("s_cmp_lt_u32 s7, 16")
    A("s_cbranch_scc1 L_final")
    A(f"s_lshl_b32 s4, s61, 5\nv_lshrrev_b32 v16, 3, v0\nv_add_u32 v16, s4, v16\nv_mul_u32_u24 v16, {P1_STRIDE}, v16")
    A("s_and_b32 s4, s13, 1\ns_lshl_b32 s4, s4, 1\ns_lshr_b32 s5, s3, 2\ns_add_u32 s4, s4, s5")
    A(f"s_and_b32 s5, s3, 3\ns_lshl_b32 s5, s5, 2\ns_add_u32 s4, s4, s5\ns_lshl_b32 s4, s4, 7\ns_add_u32 s4, s4, {WS_P1}")
    A("v_and_b32 v17, 7, v0\nv_lshl_add_u32 v16, v17, 4, v16\nv_add_u32 v24, s4, v16")
    for pi in range(1, 4):
        A(f"v_add_u32 v{24 + pi}, {8 * pi * P1_STRIDE}, v24")
    A("s_mov_b32 s52, 0x04000c0c\ns_mov_b32 s53, 0x0706000c")
    A("s_mov_b32 s54, 0xffff0000\ns_mov_b32 s55, 0xffff0000\ns_mov_b32 s50, 0\ns_mov_b32 s51, -1")
    sigma(16, 17)
    A("v_bfe_u32 v17, v0, 2, 2\nv_lshl_add_u32 v16, v16, 3, v17\nv_lshlrev_b32 v16, 7, v16")
    A("v_and_b32 v17, 3, v0\nv_lshl_add_u32 v16, v17, 3, v16\nv_add_u32 v16, s58, v16")
    WB = 88

    def bweights():
        if not bwait:
            A("s_waitcnt vmcnt(4)")
        for tau in range(4):
            for t in range(2):
                r = WB + 4 * tau + 2 * t
                A(f"ds_read_b64_tr_b16 v[{r}:{r + 1}], v16 offset:{L_W + 512 * t + 32 * tau}")
    if not late4:
        bweights()
    A("s_lshl_b32 s4, s3, 8\nv_lshl_add_u32 v18, v0, 2, s4")
    A(f"s_lshl_b32 s4, s13, 11\ns_lshl_b32 s5, s14, 8\ns_add_u32 s4, s4, s5\ns_add_u32 s4, s4, {WS_P2}")
    A("v_lshlrev_b32 v19, 2, v0\nv_add_u32 v28, s4, v19")
    D0 = 120
    loads = [f"global_load_dwordx4 v[{D0 + 4 * pi}:{D0 + 4 * pi + 3}], v{24 + pi}, s[38:39] sc1" for pi in range(4)]
    if bwait:
        A("s_waitcnt vmcnt(1)")
    poll("L_poll1", loads, range(120, 136), 31, between=bweights)
    stamp_at(6)
    A(f"v_max3_f32 v16, v{D0 + 3}, v{D0 + 7}, v{D0 + 11}\nv_max_f32 v16, v16, v{D0 + 15}")
    for pi in range(2):
        A(f"v_perm_b32 v{136 + pi}, v{D0 + 4 * pi + 2}, v{D0 + 4 * pi + 1}, s52")
    A(f"v_max_f32_dpp v16, v16, v16 row_ror:8 {FULL}")
    A("v_mov_b32 v17, v16")
    for pi in range(2, 4):
        A(f"v_perm_b32 v{136 + pi}, v{D0 + 4 * pi + 2}, v{D0 + 4 * pi + 1}, s52")
    A("v_permlane16_swap_b32 v16, v17")
    A("v_max_f32 v16, v16, v17")
    A("v_mov_b32 v17, v16")
    A("v_permlane32_swap_b32 v16, v17")
    A("v_max_f32 v16, v16, v17")
    for pi in range(4):
        A(f"v_sub_f32 v{140 + pi}, v{D0 + 4 * pi + 3}, v16")
    for pi in range(4):
        A(f"v_exp_f32 v{140 + pi}, v{140 + pi}")
        A(f"v_perm_b32 v{D0 + 4 * pi + 3}, v{136 + pi}, v{D0 + 4 * pi}, s53")
    A("v_pk_add_f32 v[16:17], v[140:141], v[142:143]")
    for hlf in range(2):
        A(f"v_pk_mul_f32 v[{D0 + 2 * hlf}:{D0 + 2 * hlf + 1}], v[140:141], v[{D0 + 2 * hlf}:{D0 + 2 * hlf + 1}] op_sel_hi:[0,1]")
    A("v_add_f32 v16, v16, v17")
    for pi in range(1, 4):
        w = f"v[{140 + (pi & 2)}:{141 + (pi & 2)}]"
        sel = "op_sel:[1,0,0] op_sel_hi:[1,1,1]" if pi & 1 else "op_sel_hi:[0,1,1]"
        for hlf in range(2):
            r = D0 + 2 * hlf
            A(f"v_pk_fma_f32 v[{r}:{r + 1}], {w}, v[{r + 4 * pi}:{r + 4 * pi + 1}], v[{r}:{r + 1}] {sel}")
        if pi == 1:
            A(f"v_add_f32_dpp v16, v16, v16 row_ror:8 {FULL}")
    A("v_mov_b32 v17, v16")
    A(f"v_permlane32_swap_b32 v{D0}, v{D0 + 1}\nv_permlane32_swap_b32 v{D0 + 2}, v{D0 + 3}\nv_permlane32_swap_b32 v16, v17")
    A(f"v_add_f32 v{D0}, v{D0}, v{D0 + 1}\nv_add_f32 v{D0 + 2}, v{D0 + 2}, v{D0 + 3}\nv_add_f32 v16, v16, v17")
    A("v_mov_b32 v17, v16")
    A(f"v_permlane16_swap_b32 v{D0}, v{D0 + 2}\nv_permlane16_swap_b32 v16, v17")
    A(f"v_add_f32 v{D0}, v{D0}, v{D0 + 2}\nv_add_f32 v16, v16, v17")
    A(f"v_add_f32_dpp v{D0}, v{D0}, v{D0} row_ror:8 {FULL}")
    A("v_rcp_f32 v16, v16")
    A(f"v_mul_f32 v{D0}, v{D0}, v16")
    A(f"v_mov_b32_dpp v{D0 + 1}, v{D0} quad_perm:[1,0,3,2] {FULL}")
    A(f"v_cvt_pk_bf16_f32 v{D0}, v{D0}, v{D0 + 1}")
    for e in range(4):
        A(f"v_mov_b32_dpp v{124 + e}, v{D0} row_newbcast:{2 * e} {FULL}")
    A("s_waitcnt lgkmcnt(0)")
    for tau in range(4):
        A(f"v_mfma_f32_16x16x32_bf16 v[{128 + 4 * tau}:{131 + 4 * tau}], v[124:127], v[{WB + 4 * tau}:{WB + 4 * tau + 3}], 0")
    A("v_cndmask_b32 v128, v128, v132, s[54:55]")
    A("v_cndmask_b32 v136, v136, v140, s[54:55]")
    A("v_cndmask_b32 v128, v128, v136, s[50:51]")
    A(f"ds_write_b32 v18, v128 offset:{L_B}")
    A("s_cmp_eq_u32 s3, 0")
    A("s_waitcnt lgkmcnt(0)")
    A("s_barrier")
    A("s_cbranch_scc0 L_bdone")
    for i in range(8):
        A(f"ds_read_b32 v{120 + i}, v19 offset:{L_B + 256 * i}")
    A("s_waitcnt lgkmcnt(0)")
    for i in range(2):
        A(f"v_pk_add_f32 v[{120 + 2 * i}:{121 + 2 * i}], v[{120 + 2 * i}:{121 + 2 * i}], v[{124 + 2 * i}:{125 + 2 * i}]")
    A("v_pk_add_f32 v[120:121], v[120:121], v[122:123]")
    A("v_add_f32 v120, v120, v121")
    store_quad(120, 28, fl=st2)
    A("L_bdone:")
    if wb:
        A("s_cmp_eq_u32 s3, 1\ns_cbranch_scc0 L_nowb\ns_cmp_eq_u32 s7, 16\ns_cbranch_scc0 L_nowb")
        A("buffer_wbl2 sc1")
        A("L_nowb:")
    stamp_at(7)
    stamp_store()
    A("s_endpgm")
    A("L_pubfar:")
    A("s_nop 0")
    store_quad(R0, 67)
    A("s_branch L_published")
    A("L_ffn:")
    if "now" not in xp:
        for k in ((4, 5, 0, 1, 2, 3) if ppos is None else (0, 1, 2, 3)):
            wload(wC[k])
    vCol = 65
    A("v_and_b32 v17, 7, v0\nv_bfe_u32 v16, v0, 3, 2\nv_lshl_add_u32 v16, v17, 2, v16")
    A("v_and_b32 v18, 32, v0\nv_add_u32 v16, v16, v18")
    A(f"s_lshl_b32 s4, s3, 6\nv_add_u32 v{vCol}, s4, v16")
    A(f"v_lshlrev_b32 v29, 1, v{vCol}")
    A(f"ds_read_u16_d16_hi v64, v29 offset:{L_X}")
    A(f"s_lshl_b32 s4, s3, 8\ns_add_u32 s4, s4, {WS_P2}")
    A("v_lshrrev_b32 v18, 3, v0\nv_lshlrev_b32 v19, 12, v18\nv_lshl_add_u32 v16, v17, 4, v19\nv_add_u32 v20, s4, v16")
    A("v_lshrrev_b32 v18, 4, v0\nv_and_b32 v17, 15, v0")
    A(f"s_lshl_b32 s4, s15, 11\ns_add_u32 s4, s4, {WS_P3}\ns_lshl_b32 s5, s3, 8\ns_add_u32 s4, s4, s5")
    A("v_lshl_add_u32 v22, v0, 2, s4")
    A("s_lshl_b32 s5, s3, 4\nv_mov_b32 v23, s5")
    A("v_and_b32 v24, 7, v0\nv_lshlrev_b32 v24, 4, v24")
    A("s_mov_b32 s63, 0x42800000\ns_mov_b32 s54, 0xffff0000\ns_mov_b32 s55, 0xffff0000")
    A("v_mov_b32 v67, 0x3b000000\nv_mov_b32 v68, 0x3727c5ac\nv_mov_b32 v69, 0xbdd2d3e8\nv_mov_b32 v70, 0xc0135761")
    for i in range(4):
        A(f"v_mov_b32 v{72 + i}, 0x3f803f80")
    A("s_lshl_b32 s4, s3, 7\nv_lshl_add_u32 v25, v18, 4, s4")
    A("v_lshlrev_b32 v27, 2, v0\ns_lshl_b32 s5, s3, 8\nv_add_u32 v26, s5, v27")
    A("v_lshl_add_u32 v28, v0, 1, s4")
    A("v_bfe_u32 v16, v0, 2, 2\nv_lshl_add_u32 v16, v18, 3, v16\nv_lshlrev_b32 v16, 5, v16")
    A("v_and_b32 v17, 3, v0\nv_lshl_add_u32 v16, v17, 3, v16\nv_add_u32 v16, s57, v16")
    GW = 88
    DW = 104

    A("s_waitcnt vmcnt(4)" if "now" not in xp else "s_waitcnt vmcnt(0)")
    A("s_barrier")
    for r in range(16):
        if r == 14:
            A("s_waitcnt lgkmcnt(0)")
        A(f"ds_read_u16_d16_hi v{DW + r}, v28 offset:{L_W + 32768 + 1024 * r}")
    A("s_waitcnt vmcnt(0) lgkmcnt(0)")
    stamp_at(11)

    def cweights():
        for mat in range(2):
            for kap in range(2):
                for t in range(2):
                    r = GW + 8 * mat + 4 * kap + 2 * t
                    A(f"ds_read_b64_tr_b16 v[{r}:{r + 1}], v16 offset:{L_W + 16384 * mat + 1024 * kap + 128 * t}")
        A("s_waitcnt lgkmcnt(0)")
        A(f"v_mfma_f32_16x16x32_bf16 v[140:143], v[72:75], v[{GW}:{GW + 3}], 0")
        A(f"v_mfma_f32_16x16x32_bf16 v[144:147], v[72:75], v[{GW + 8}:{GW + 11}], 0")
        A(f"v_mfma_f32_16x16x32_bf16 v[140:143], v[72:75], v[{GW + 4}:{GW + 7}], v[140:143]")
        A(f"v_mfma_f32_16x16x32_bf16 v[144:147], v[72:75], v[{GW + 12}:{GW + 15}], v[144:147]")
        A("v_cndmask_b32 v66, v140, v144, s[54:55]")
        stamp_at(13)
    loads = [f"global_load_dwordx4 v[{120 + 4 * i}:{123 + 4 * i}], v20, s[38:39] offset:{2048 * (i >> 1) + 128 * (i & 1)} {ld2}" for i in range(4)]
    poll("L_poll2", loads, range(120, 136), 31, between=cweights)
    stamp_at(6)
    for e in range(4):
        A(f"v_pk_add_f32 v[{120 + 2 * e}:{121 + 2 * e}], v[{120 + 2 * e}:{121 + 2 * e}], v[{128 + 2 * e}:{129 + 2 * e}]")
    for e in range(4):
        A(f"v_permlane32_swap_b32 v{120 + e}, v{124 + e}")
    A("v_pk_add_f32 v[120:121], v[120:121], v[124:125]\nv_pk_add_f32 v[122:123], v[122:123], v[126:127]")
    A("v_permlane16_swap_b32 v120, v122\nv_permlane16_swap_b32 v121, v123")
    A("v_pk_add_f32 v[122:123], v[120:121], v[122:123]")
    A("v_add_f32_dpp v120, v122, v122 row_ror:8 row_mask:0xf bank_mask:0x3")
    A("v_add_f32_dpp v120, v123, v123 row_ror:8 row_mask:0xf bank_mask:0xc")
    A("v_add_f32 v120, v120, v64")
    A("v_cvt_pk_bf16_f32 v121, v120, v120")
    A(f"ds_write_b16 v29, v121 offset:{L_HN}")
    A("v_lshlrev_b32 v120, 16, v121")
    A("v_readfirstlane_b32 s4, v120")
    A("s_waitcnt lgkmcnt(0)")
    A(f"ds_read_b128 v[124:127], v25 offset:{L_HN}")
    A(f"ds_read_b128 v[128:131], v25 offset:{L_HN + 64}")
    A("v_subrev_f32 v140, s4, v120")
    A("v_mov_b32 v142, s4")
    A("v_mul_f32 v141, v140, v140")
    steps = [f"{m} {FULL}" for m in ("row_shr:1", "row_shr:2", "row_shr:4", "row_shr:8")] + ["row_bcast:15 row_mask:0xa bank_mask:0xf", "row_bcast:31 row_mask:0xc bank_mask:0xf"]
    mf = [f"v_mfma_f32_16x16x32_bf16 v[132:135], v[124:127], v[{GW}:{GW + 3}], 0",
          f"v_mfma_f32_16x16x32_bf16 v[136:139], v[124:127], v[{GW + 8}:{GW + 11}], 0",
          f"v_mfma_f32_16x16x32_bf16 v[132:135], v[128:131], v[{GW + 4}:{GW + 7}], v[132:135]",
          f"v_mfma_f32_16x16x32_bf16 v[136:139], v[128:131], v[{GW + 12}:{GW + 15}], v[136:139]"]
    for k, m in enumerate(steps):
        A(f"v_add_f32_dpp v140, v140, v140 {m}")
        A(f"v_add_f32_dpp v141, v141, v141 {m}")
        if k == 1:
            A("s_waitcnt lgkmcnt(0)")
            stamp_at(8)
            A(mf[0])
            A(mf[1])
        if k == 2:
            A(mf[2])
            A(mf[3])
    A("s_mov_b32 exec_lo, 0\ns_mov_b32 exec_hi, 0x80000000")
    A(f"ds_write_b96 v23, v[140:142] offset:{L_H}")
    A("s_mov_b32 exec_lo, -1\ns_mov_b32 exec_hi, 0")
    A("v_cndmask_b32 v66, v132, v136, s[54:55]")
    A("s_mov_b64 exec, -1")
    A(f"ds_write_b32 v26, v66 offset:{L_B}")
    A("s_waitcnt lgkmcnt(0)")
    stamp_at(9)
    A("s_barrier")
    A(f"ds_read_b96 v[124:126], v24 offset:{L_H}")
    for i in range(8):
        A(f"ds_read_b32 v{128 + i}, v27 offset:{L_B + 256 * i}")
    A("s_waitcnt lgkmcnt(0)" if stamps else "s_waitcnt lgkmcnt(8)")
    stamp_at(10)
    x8 = ("quad_perm:[1,0,3,2]", "quad_perm:[2,3,0,1]", "row_half_mirror")
    A("v_fma_f32 v127, v126, s63, v124")
    A("v_add_f32 v124, v124, v124")
    A("s_waitcnt lgkmcnt(0)" if stamps else "s_waitcnt lgkmcnt(4)")
    A(f"v_add_f32_dpp v127, v127, v127 {x8[0]} {FULL}")
    A("v_pk_add_f32 v[128:129], v[128:129], v[130:131]")
    A("s_waitcnt lgkmcnt(0)")
    A(f"v_add_f32_dpp v127, v127, v127 {x8[1]} {FULL}")
    A("v_pk_add_f32 v[132:133], v[132:133], v[134:135]")
    A("v_pk_add_f32 v[128:129], v[128:129], v[132:133]")
    A(f"v_add_f32_dpp v127, v127, v127 {x8[2]} {FULL}")
    A("v_add_f32 v120, v128, v129")
    A("v_add_f32 v121, v128, v129")
    A("v_mul_f32 v127, 0x3b000000, v127")
    A("v_sub_f32 v126, v127, v126")
    A("v_permlane32_swap_b32 v120, v121")
    A("v_fma_f32 v124, v126, s63, -v124")
    A("v_fma_f32 v125, v126, v124, v125")
    A("v_fma_f32 v122, -v127, v121, v120")
    A("v_fma_f32 v121, -v127, v121, v120")
    A(f"v_add_f32_dpp v125, v125, v125 {x8[0]} {FULL}")
    A("v_mov_b32 v120, v122")
    A(f"v_add_f32_dpp v125, v125, v125 {x8[1]} {FULL}")
    A("v_permlane16_swap_b32 v120, v121")
    A(f"v_add_f32_dpp v125, v125, v125 {x8[2]} {FULL}")
    A("v_fma_f32 v125, v125, v67, v68")
    A("v_rsq_f32 v125, v125")
    A("v_mul_f32 v120, v120, v125")
    A("v_mul_f32 v121, v121, v125")
    A("v_mul_f32 v122, v120, v120")
    A("v_mul_f32 v121, v120, v121")
    A("v_fma_f32 v122, v122, v69, v70")
    A("v_mul_f32 v122, v122, v120")
    A("v_exp_f32 v122, v122")
    A("v_add_f32 v122, 1.0, v122")
    A("v_rcp_f32 v122, v122")
    A("v_mul_f32 v120, v121, v122")
    for r in range(16):
        op = "mul" if r < 4 else "fmac"
        A(f"v_{op}_f32_dpp v{124 + (r & 3)}, v120, v{DW + r} row_newbcast:{r} {FULL}")
    A("v_pk_add_f32 v[124:125], v[124:125], v[126:127]")
    A("v_add_f32 v124, v124, v125")
    store_quad(124, 22, fl=st3)
    stamp_at(7)
    stamp_store()
    A("s_endpgm")
    A("L_final:")
    A("s_sub_u32 s15, s7, 14\ns_lshl_b32 s4, s6, 1\ns_add_u32 s15, s15, s4")
    A("v_and_b32 v16, 7, v0\nv_lshrrev_b32 v17, 3, v0\nv_lshlrev_b32 v17, 11, v17\nv_lshl_add_u32 v17, v16, 4, v17")
    A("v_and_b32 v22, 31, v0\ns_lshl_b32 s4, s15, 6\nv_lshl_add_u32 v18, v22, 1, s4")
    A("v_lshlrev_b32 v22, 2, v22")
    sigma(23, 24)
    A("v_lshl_add_u32 v23, v16, 2, v23\nv_lshl_add_u32 v19, v23, 1, s4")
    A(f"ds_read_u16_d16_hi v19, v19 offset:{L_X}")
    A("s_lshl_b32 s4, s3, 7\nv_lshl_add_u32 v23, v23, 2, s4")
    A(f"s_lshl_b32 s4, s3, 15\ns_add_u32 s4, s4, {WS_P3}")
    A("s_cmp_eq_u32 s3, 7")
    A(f"s_cselect_b32 s4, {WS_P2}, s4")
    A("s_lshl_b32 s5, s15, 7\ns_add_u32 s4, s4, s5")
    A("v_add_u32 v20, s4, v17\nv_add_u32 v21, 0x4000, v20")
    loads = [f"global_load_dwordx4 v[{120 + 4 * i}:{123 + 4 * i}], v{20 + i}, s[38:39] {ld3}" for i in range(2)]
    poll("L_poll3", loads, range(120, 128), 16)
    stamp_at(6)
    for e in range(4):
        A(f"v_add_f32 v{120 + e}, v{120 + e}, v{124 + e}")
    scatter4(120)
    A(f"v_add_f32_dpp v120, v120, v120 row_ror:8 {FULL}")
    A("s_cmp_eq_u32 s3, 7")
    A("s_cbranch_scc0 L_dnoh")
    A("s_waitcnt lgkmcnt(0)")
    A("v_add_f32 v120, v120, v19")
    rbf(120)
    A("L_dnoh:")
    A("s_mov_b32 exec_lo, 0x00ff00ff\ns_mov_b32 exec_hi, 0x00ff00ff")
    A(f"ds_write_b32 v23, v120 offset:{L_B}")
    A("s_mov_b64 exec, -1")
    A("s_cmp_eq_u32 s3, 0")
    A("s_waitcnt lgkmcnt(0)")
    A("s_barrier")
    A("s_cbranch_scc0 L_ddone")
    for i in range(8):
        A(f"ds_read_b32 v{120 + i}, v22 offset:{L_B + 128 * i}")
    A("s_waitcnt lgkmcnt(0)")
    for i in range(2):
        A(f"v_pk_add_f32 v[{120 + 2 * i}:{121 + 2 * i}], v[{120 + 2 * i}:{121 + 2 * i}], v[{124 + 2 * i}:{125 + 2 * i}]")
    A("v_pk_add_f32 v[120:121], v[120:121], v[122:123]")
    A("v_add_f32 v120, v120, v121")
    if perturb:
        import struct
        kind, val = perturb
        h = hex(struct.unpack("<I", struct.pack("<f", val))[0])
        if kind == "add": A(f"v_add_f32 v120, {h}, v120")
        if kind == "mul": A(f"v_mul_f32 v120, {h}, v120")
        if kind == "one":
            A("s_cmp_eq_u32 s15, 0\ns_cselect_b32 s4, 1, 0\ns_mov_b32 s5, 0\ns_mov_b64 exec, s[4:5]")
            A(f"v_add_f32 v120, {h}, v120\ns_mov_b64 exec, -1")
    A(f"v_mov_b32_dpp v121, v120 quad_perm:[1,0,3,2] {FULL}")
    A("v_cvt_pk_bf16_f32 v120, v120, v121")
    A("s_mov_b64 exec, 0x55555555")
    A("global_store_dword v18, v120, s[34:35]")
    A("L_ddone:")
    stamp_at(7)
    stamp_store()
    A("s_endpgm")

    for _ in range(pad3):
        A("s_nop 0")
    A("L_service:")
    A("s_setprio 3")
    A(f"v_mov_b32 v98, {L_F}\nv_mov_b32 v99, 0")
    A("ds_write_b32 v98, v99")
    A("ds_write_b32 v98, v99 offset:8")
    A("ds_write_b32 v98, v99 offset:12")
    A("s_waitcnt lgkmcnt(0)")
    A("s_barrier")
    for i in range(4):
        A(f"v_mov_b32 v{100 + i}, -1")
    roles()
    p1slot("s4")
    A("v_add_u32 v104, s4, v9")
    A("s_cmp_eq_u32 s7, 0")
    A("s_waitcnt lgkmcnt(0)")
    if "svcoff" in xp:
        A("s_branch L_svcbar")
    A("s_cbranch_scc0 L_qcleared")
    A(f"s_lshl_b32 s10, s60, 13\nv_add_u32 v3, s10, v9\nv_add_u32 v8, 0x1000, v3")
    for i in range(8):
        A(f"global_store_dwordx4 v{3 if i < 4 else 8}, v[100:103], s[38:39] offset:{1024 * (i & 3)} sc1")
    A(f"s_lshl_b32 s10, s60, 7\ns_add_u32 s10, s10, {WS_F}\nv_add_u32 v3, s10, v9")
    A("s_mov_b64 exec, 0xff")
    A("global_store_dwordx4 v3, v[100:103], s[38:39] sc1")
    A("s_mov_b64 exec, -1")
    A("L_qcleared:")
    nyoung = 0
    if "noclear" not in xp:
        A("global_store_dwordx4 v104, v[100:103], s[38:39] sc1")
        A("global_store_dwordx4 v104, v[100:103], s[38:39] offset:1024 sc1")
        nyoung += 2
        A("s_cmp_lt_u32 s7, 14")
        A("s_cbranch_scc0 L_noclr3")
        A(f"s_lshl_b32 s4, s15, 11\ns_add_u32 s4, s4, {WS_P3}\nv_add_u32 v105, s4, v9")
        A("global_store_dwordx4 v105, v[100:103], s[38:39] sc1")
        A("global_store_dwordx4 v105, v[100:103], s[38:39] offset:1024 sc1")
        A("L_noclr3:")
        A("s_cmp_ge_u32 s7, 16")
        A("s_cbranch_scc0 L_noclr2")
        A(f"s_lshl_b32 s4, s13, 11\ns_lshl_b32 s5, s14, 8\ns_add_u32 s4, s4, s5\ns_add_u32 s4, s4, {WS_P2}\nv_add_u32 v105, s4, v9")
        A("s_mov_b64 exec, 0xffff")
        A("global_store_dwordx4 v105, v[100:103], s[38:39] sc1")
        A("s_mov_b64 exec, -1")
        A("L_noclr2:")
    stamp_at(1)
    A("v_lshlrev_b32 v96, 5, v0")
    A("s_cmp_eq_u32 s7, 0")
    A("s_cbranch_scc0 L_noqflag")
    A("s_lshl_b32 s4, s60, 5\nv_mov_b32 v104, s4\nv_mov_b32 v105, 1")
    A(f"s_waitcnt vmcnt({4 if 'noclear' not in xp else 0})")
    A("s_mov_b64 exec, 1")
    A("global_store_dword v104, v105, s[36:37] sc1")
    A("s_mov_b64 exec, -1")
    A("L_noqflag:")
    ldswait("L_waitwq", 12, 8)
    A(f"ds_read_b128 v[4:7], v9 offset:{L_X}")
    A("s_waitcnt lgkmcnt(0)")
    stamp_at(2)
    X = list(range(8, 16))
    X[1] = 3
    for i in range(4):
        A(f"v_lshlrev_b32 v{X[2 * i]}, 16, v{4 + i}")
        A(f"v_and_b32 v{X[2 * i + 1]}, 0xffff0000, v{4 + i}")
    ln_stats(X, 16, 17, 18, 19, 20, list(range(22, 30)))
    ln_apply(X, 16, 17, 18, list(range(22, 30)))
    for i in range(4):
        A(f"v_cvt_pk_bf16_f32 v{4 + i}, v{X[2 * i]}, v{X[2 * i + 1]}")
    A(f"ds_write_b128 v9, v[4:7] offset:{L_HN}")
    A(f"s_and_b32 s4, s7, {KS - 1}\ns_lshl_b32 s4, s4, {10 - KL}\nv_lshrrev_b32 v17, 4, v0\nv_lshl_add_u32 v16, v17, 4, s4")
    A("v_bfe_u32 v18, v0, 2, 2\nv_lshl_add_u32 v17, v17, 3, v18\nv_lshlrev_b32 v17, 7, v17\nv_and_b32 v18, 3, v0\nv_lshl_add_u32 v17, v18, 3, v17")
    A("s_waitcnt lgkmcnt(0)")
    NK = NQ // 4
    for k in range(NK):
        A(f"ds_read_b128 v[{32 + 4 * k}:{35 + 4 * k}], v16 offset:{L_HN + 64 * k}")
    stamp_at(3)
    A("s_mov_b64 exec, 0xff")
    A("global_load_dword v97, v96, s[36:37] sc1")
    A("s_mov_b64 exec, -1")
    for k in range(NK):
        A("s_waitcnt lgkmcnt(0)")
        b = 64 + 16 * (k & 1)
        for tau in range(4):
            for t in range(2):
                r = b + 4 * tau + 2 * t
                A(f"ds_read_b64_tr_b16 v[{r}:{r + 1}], v17 offset:{L_W + 4096 * k + 512 * t + 32 * tau}")
        if k > 0:
            bp = 64 + 16 * ((k - 1) & 1)
            for tau in range(4):
                c = "0" if k == 1 else f"v[{112 + 4 * tau}:{115 + 4 * tau}]"
                A(f"v_mfma_f32_16x16x32_bf16 v[{112 + 4 * tau}:{115 + 4 * tau}], v[{28 + 4 * k}:{31 + 4 * k}], v[{bp + 4 * tau}:{bp + 4 * tau + 3}], {c}")
    A("s_waitcnt lgkmcnt(0)")
    for tau in range(4):
        A(f"v_mfma_f32_16x16x32_bf16 v[{112 + 4 * tau}:{115 + 4 * tau}], v[{28 + 4 * NK}:{31 + 4 * NK}], v[{80 + 4 * tau}:{83 + 4 * tau}], v[{112 + 4 * tau}:{115 + 4 * tau}]")
    A(f"s_lshl_b32 s4, s60, {11 + KL}\ns_and_b32 s5, s7, {KS - 1}\ns_lshl_b32 s5, s5, 11\ns_add_u32 s4, s4, s5\ns_lshr_b32 s5, s7, {KL}\ns_lshl_b32 s5, s5, 8\ns_add_u32 s4, s4, s5")
    A("v_lshl_add_u32 v17, v0, 2, s4")
    for tau in range(1, 4):
        A(f"v_mov_b32_dpp v112, v{112 + 4 * tau} quad_perm:[0,1,2,3] row_mask:{hex(1 << tau)} bank_mask:0xf")
    for i in (1, 2, 3):
        A(f"v_mov_b32_dpp v{112 + i}, v112 quad_perm:[{i},{i},{i},{i}] {FULL}")
    A("L_qdone:")
    A(f"s_lshl_b32 s4, s60, 5\ns_add_u32 s4, s4, s7\ns_lshl_b32 s4, s4, 2\ns_add_u32 s4, s4, {WS_F}\nv_mov_b32 v18, s4")
    A(f"s_lshl_b32 s4, s6, {11 + KL}\nv_add_u32 v19, s4, v9\nv_add_u32 v20, 0x1000, v19")
    A("s_getreg_b32 s62, hwreg(HW_REG_XCC_ID, 0, 4)\nv_mov_b32 v21, s62")
    A("s_lshl_b32 s4, 1, s60\ns_lshl_b32 s5, 1, s6\ns_or_b32 s4, s4, s5")
    A("s_mov_b32 s5, 0")
    stamp_at(4)
    if "svc1" in xp: A("s_branch L_svcbar2")
    A("L_pollf:")
    A("s_waitcnt vmcnt(0) lgkmcnt(0)")
    A("v_cmp_ne_u32 vcc, 1, v97")
    A("s_and_b32 s57, vcc_lo, s4")
    A("s_cbranch_scc0 L_pollf_ok")
    A(f"s_add_u32 s5, s5, 1\ns_cmp_lt_u32 s5, {SPIN_MAX}\ns_cbranch_scc0 L_pollf_ok")
    A("s_sleep 8")
    A("s_mov_b64 exec, 0xff")
    A("global_load_dword v97, v96, s[36:37] sc1")
    A("s_mov_b64 exec, -1")
    A("s_branch L_pollf")
    A("L_pollf_ok:")
    if KS == 2:
        A("s_cmp_lt_u32 s7, 16")
        A("s_cbranch_scc0 L_noqpub")
    A("s_mov_b32 exec_lo, 0x11111111\ns_mov_b32 exec_hi, 0x11111111")
    A("global_store_dwordx4 v17, v[112:115], s[38:39] sc1")
    A("L_noqpub:")
    A("s_mov_b64 exec, 1")
    A("global_store_dword v18, v21, s[38:39] sc1")
    A("s_mov_b64 exec, -1")
    stamp_at(5)
    if "svc2" in xp: A("s_branch L_svcbar2")
    if warm:
        A("s_getpc_b64 s[48:49]")
        A("L_pc:")
        A(f"s_sub_u32 s48, s48, L_pc-{NAME}_kernel\ns_subb_u32 s49, s49, 0")
        A(f"s_mov_b32 s4, L_codeend-{NAME}_kernel-16\nv_mov_b32 v2, v9\ns_mov_b32 s5, 0")
        A("L_warm:")
        A("v_min_u32 v3, s4, v2")
        A("global_load_dwordx4 v[128:131], v3, s[48:49]")
        A("v_add_u32 v2, 1024, v2\ns_add_u32 s5, s5, 1024\ns_cmp_lt_u32 s5, s4\ns_cbranch_scc1 L_warm")
    ldswait("L_waitpos", 8)
    poll("L_pollq", [f"global_load_dwordx4 v[{32 + 4 * i}:{35 + 4 * i}], v{19 + (i >> 2)}, s[38:39] offset:{1024 * (i & 3)} sc1" for i in range(2 * KS)],
         range(32, 32 + 8 * KS), 16, slp=qsleep)
    stamp_at(6)
    for e in range(8):
        A(f"v_add_f32 v{32 + e}, v{32 + e}, v{40 + e}")
        if KS == 4:
            A(f"v_add_f32 v{48 + e}, v{48 + e}, v{56 + e}")
    if KS == 4:
        for e in range(8):
            A(f"v_add_f32 v{32 + e}, v{32 + e}, v{48 + e}")
    for e in range(4):
        A(f"v_cvt_pk_bf16_f32 v{40 + e}, v{32 + 2 * e}, v{33 + 2 * e}")
    A("v_lshlrev_b32 v16, 3, v0")
    A(f"ds_write_b64 v16, v[40:41] offset:{L_Q}")
    A(f"ds_write_b64 v16, v[42:43] offset:{L_Q + 512}")
    A("v_mov_b32 v99, 1")
    A("s_waitcnt lgkmcnt(0)")
    A("ds_write_b32 v98, v99")
    stamp_at(7)
    if "svc4" in xp: A("s_branch L_svcbar2")
    A("s_mov_b32 s5, 0")
    A("L_pollf2:")
    A("s_mov_b64 exec, 0xff")
    A("global_load_dword v97, v96, s[36:37] sc1")
    A("s_waitcnt vmcnt(0)")
    A("v_cmp_ne_u32 vcc, 1, v97")
    A("s_mov_b64 exec, -1")
    A("s_cbranch_vccz L_pollf2_ok")
    A(f"s_add_u32 s5, s5, 1\ns_cmp_lt_u32 s5, {SPIN_MAX}\ns_cbranch_scc1 L_pollf2")
    A("L_pollf2_ok:")
    stamp_at(8)
    A(f"v_add_u32 v19, {WS_F}, v9")
    poll("L_pollall", ["global_load_dwordx4 v[32:35], v19, s[38:39] sc1"], range(32, 36), 16, slp=16)
    stamp_at(9)
    A("v_xor_b32 v32, v32, v21\nv_xor_b32 v33, v33, v21\nv_xor_b32 v34, v34, v21\nv_xor_b32 v35, v35, v21")
    A("v_or_b32 v32, v32, v33\nv_or3_b32 v32, v32, v34, v35")
    A("v_cmp_ne_u32 vcc, 0, v32")
    A("s_lshl_b32 s4, s60, 3\ns_lshr_b64 s[4:5], vcc, s4\ns_and_b32 s4, s4, 0xff")
    A("s_cselect_b32 s4, 0, 1" if local and "far" not in xp else "s_mov_b32 s4, 0")
    A("v_mov_b32 v99, s4")
    A("ds_write_b32 v98, v99 offset:4")
    A("s_waitcnt lgkmcnt(0)")
    A("s_barrier")
    stamp_store()
    A("s_endpgm")
    A("L_svcbar:")
    A("L_svcbar2:")
    A("v_mov_b32 v99, 1")
    A("ds_write_b32 v98, v99")
    A("s_waitcnt lgkmcnt(0)")
    A("s_barrier")
    stamp_store()
    A("L_end:")
    A("s_endpgm")
    A("L_codeend:")

    body = fix(C)
    out = HEADER
    out += f"; @launch grid=(256,1,1) block=(576,1,1) lds={LDS_BYTES}\n"
    out += '.amdgcn_target "amdgcn-amd-amdhsa--gfx950"\n.text\n'
    out += f".globl {NAME}_kernel\n.p2align 8\n.type {NAME}_kernel,@function\n{NAME}_kernel:\n"
    out += "\n".join(("" if l.endswith(":") else "    ") + l for l in body) + "\n"
    out += f""".section .rodata,"a"
.p2align 6
.amdhsa_kernel {NAME}_kernel
  .amdhsa_next_free_vgpr 168
  .amdhsa_next_free_sgpr 96
  .amdhsa_accum_offset 168
  .amdhsa_group_segment_fixed_size 0
  .amdhsa_kernarg_size 96
  .amdhsa_user_sgpr_count 2
  .amdhsa_user_sgpr_kernarg_segment_ptr 1
  .amdhsa_system_sgpr_workgroup_id_x 1
  .amdhsa_float_denorm_mode_32 3
.end_amdhsa_kernel
"""
    return out


if __name__ == "__main__":
    cfg = eval("dict(" + (sys.argv[2] if len(sys.argv) > 2 else "") + ")")
    open(sys.argv[1], "w").write(gen(**cfg))
```

```python
import sys
from asmlib import fix, VM

NAME = "sequential_preLN__gqa_block_cached__glu_gated_geglu__decode"
HEADER = open("cdna_kernels/" + NAME + ".s.ref").read().split("; Override launch")[0]

WS_Q = 0x0
WS_F = 0x10000
WS_P1 = 0x20000
P1_STRIDE = 2048
WS_P2 = 0xB0000
WS_P3 = 0xC0000
WS_STAMP = 0x200000
L_Q = 0
L_X = 1024
L_M = 2048
L_L = 2176
L_F = 2304
L_B = 2560
L_H = 4608
L_HN = 6656
L_G = 7680
L_W = 8704
L_K = L_W + 49152
KRING = 3
VRING = 5
LDS_BYTES = L_K + 8 * KRING * 4096

LOG2E = 0x3FB8AA3B
SCALE = 0x3DB504F3
FULL = "row_mask:0xf bank_mask:0xf"
SPIN_MAX = 20000


def gen(D=4, D2=None, nt=True, inter="wgtile", stamps=False, wnt=True, warm=True, sleep=1, qsleep=4,
        xp=(), masked=True, qrot=4, local=True, qpos=18, pref=True, fold=True, bpos=None, bwait=True, ppos=None, kfirst=True, wb=False, pad1=0, pad2=0, pad3=0, enc=None):
    C = []
    A = C.append
    ntf = " nt" if nt else ""
    wntf = " nt" if wnt else ""
    D2 = D if D2 is None else D2
    hmap = "xcd"; KS = 4; ld2 = ld3 = st2 = st3 = "sc1"; peel = False; late4 = True; cpos = ("end",) * 6; fastln = True; perturb = None
    bpos = (D + 4 if kfirst else D) if bpos is None else bpos
    KL = KS.bit_length() - 1
    NQ = 64 // KS
    QR = 2048 * KS

    def stamp_at(k):
        if stamps:
            A(f"s_memrealtime s[{64 + 2 * k}:{65 + 2 * k}]")

    def stamp_store():
        if not stamps or stamps == "enc":
            return
        A("s_waitcnt lgkmcnt(0)")
        if stamps == "dbg":
            lab = f"L_dbg{len(C)}"
            A("s_and_b32 s4, s3, 7\ns_cmp_eq_u32 s4, 0")
            A(f"s_cbranch_scc0 {lab}")
            A("s_not_b32 s64, s64")
            A("s_cmp_eq_u32 s3, 8")
            sel0 = (0, 1, 2, 4, 5, 6, 7)
            sel8 = (2, 4, 5, 6, 7, 8, 9)
            A("s_mov_b64 exec, -1")
            for i in range(7):
                A(f"s_cselect_b32 s4, s{64 + 2 * sel8[i]}, s{64 + 2 * sel0[i]}")
                A(f"v_writelane_b32 v4, s4, {i}")
            A("s_lshl_b32 s4, s3, 2\ns_add_u32 s4, s4, 4\nv_lshl_add_u32 v1, v0, 2, s4")
            A("s_mov_b64 exec, 0x7f")
            A("global_atomic_umax v1, v4, s[36:37] sc1")
            A(f"{lab}:")
            return
        A("s_mov_b64 exec, 1")
        A("s_lshl_b32 s4, s2, 4\ns_add_u32 s4, s4, s3\ns_lshl_b32 s4, s4, 6")
        A(f"s_add_u32 s4, s4, {WS_STAMP}")
        A("v_mov_b32 v1, s4")
        A("s_getreg_b32 s94, hwreg(HW_REG_XCC_ID)")
        A("s_lshl_b32 s92, s62, 16\ns_add_u32 s92, s92, s59")
        for q in range(4):
            for i in range(4):
                A(f"v_mov_b32 v{4 + i}, s{64 + 2 * (4 * q + i)}")
            A(f"global_store_dwordx4 v1, v[4:7], s[38:39] offset:{16 * q}")
            A("s_nop 1")

    def rowsum(a, op="add"):
        for s in (8, 4, 2, 1):
            A(f"v_{op}_f32_dpp v{a}, v{a}, v{a} row_ror:{s} {FULL}")

    def xrow(a, t, op="add"):
        A(f"v_mov_b32 v{t}, v{a}")
        A(f"v_permlane16_swap_b32 v{a}, v{t}")
        A(f"v_{op}_f32 v{a}, v{a}, v{t}")
        A(f"v_mov_b32 v{t}, v{a}")
        A(f"v_permlane32_swap_b32 v{a}, v{t}")
        A(f"v_{op}_f32 v{a}, v{a}, v{t}")

    def scatter4(r):
        A(f"v_permlane32_swap_b32 v{r}, v{r + 1}\nv_permlane32_swap_b32 v{r + 2}, v{r + 3}")
        A(f"v_add_f32 v{r}, v{r}, v{r + 1}\nv_add_f32 v{r + 2}, v{r + 2}, v{r + 3}")
        A(f"v_permlane16_swap_b32 v{r}, v{r + 2}")
        A(f"v_add_f32 v{r}, v{r}, v{r + 2}")

    def sigma(dst, t):
        A(f"v_bfe_u32 v{dst}, v0, 4, 1\nv_lshrrev_b32 v{t}, 5, v0\nv_lshl_add_u32 v{dst}, v{dst}, 1, v{t}")

    def rbf(a):
        A(f"v_cvt_pk_bf16_f32 v{a}, v{a}, v{a}")
        A(f"v_lshlrev_b32 v{a}, 16, v{a}")

    def ln_stats(vals, mean, den, rden, t0, t1, tmp):
        A(f"v_add_f32 v{t0}, v{vals[0]}, v{vals[1]}")
        A(f"v_add_f32 v{t1}, v{vals[2]}, v{vals[3]}")
        A(f"v_add_f32 v{mean}, v{vals[4]}, v{vals[5]}")
        A(f"v_add_f32 v{den}, v{vals[6]}, v{vals[7]}")
        A(f"v_add_f32 v{t0}, v{t0}, v{t1}")
        A(f"v_add_f32 v{mean}, v{mean}, v{den}")
        A(f"v_add_f32 v{mean}, v{mean}, v{t0}")
        rowsum(mean)
        xrow(mean, t0)
        A(f"v_mul_f32 v{mean}, 0x3b000000, v{mean}")
        for i in range(8):
            A(f"v_sub_f32 v{tmp[i]}, v{vals[i]}, v{mean}")
        A(f"v_mul_f32 v{den}, v{tmp[0]}, v{tmp[0]}")
        A(f"v_mul_f32 v{t1}, v{tmp[1]}, v{tmp[1]}")
        for i in range(2, 8, 2):
            A(f"v_fmac_f32 v{den}, v{tmp[i]}, v{tmp[i]}")
            A(f"v_fmac_f32 v{t1}, v{tmp[i + 1]}, v{tmp[i + 1]}")
        A(f"v_add_f32 v{den}, v{den}, v{t1}")
        rowsum(den)
        xrow(den, t0)
        A(f"v_mul_f32 v{den}, 0x3b000000, v{den}")
        A(f"v_cvt_pk_bf16_f32 v{t0}, v{mean}, v{den}")
        A(f"v_lshlrev_b32 v{mean}, 16, v{t0}")
        A(f"v_and_b32 v{den}, 0xffff0000, v{t0}")
        A(f"v_add_f32 v{den}, 0x3727c5ac, v{den}")
        rbf(den)
        A(f"v_sqrt_f32 v{t0}, v{den}")
        A(f"v_rsq_f32 v{t1}, v{den}")
        A(f"v_fma_f32 v{den}, -v{t0}, v{t0}, v{den}")
        A(f"v_mul_f32 v{t1}, 0.5, v{t1}")
        A(f"v_fma_f32 v{den}, v{den}, v{t1}, v{t0}")
        rbf(den)
        A(f"v_rcp_f32 v{rden}, v{den}")

    def ln_apply(xs, mean, den, rden, ts):
        for x in xs:
            A(f"v_sub_f32 v{x}, v{x}, v{mean}")
        for x in xs:
            A(f"v_cvt_pk_bf16_f32 v{x}, v{x}, v{x}")
        for x in xs:
            A(f"v_lshlrev_b32 v{x}, 16, v{x}")
        for x, t in zip(xs, ts):
            A(f"v_mul_f32 v{t}, v{x}, v{rden}")
        for x, t in zip(xs, ts):
            A(f"v_fma_f32 v{x}, -v{t}, v{den}, v{x}")
        for x, t in zip(xs, ts):
            A(f"v_fma_f32 v{x}, v{x}, v{rden}, v{t}")

    def ln2():
        A("v_mov_b32 v133, v132")
        for i in range(4):
            A(f"v_pk_add_f32 v[{124 + 2 * i}:{125 + 2 * i}], v[{124 + 2 * i}:{125 + 2 * i}], v[132:133] neg_lo:[0,1] neg_hi:[0,1]")
        A("v_pk_add_f32 v[134:135], v[124:125], v[126:127]")
        A("v_pk_mul_f32 v[136:137], v[124:125], v[124:125]")
        A("v_pk_add_f32 v[138:139], v[128:129], v[130:131]")
        A("v_pk_fma_f32 v[136:137], v[126:127], v[126:127], v[136:137]")
        A("v_pk_add_f32 v[134:135], v[134:135], v[138:139]")
        A("v_pk_fma_f32 v[136:137], v[128:129], v[128:129], v[136:137]")
        A("v_add_f32 v16, v134, v135")
        A("v_pk_fma_f32 v[136:137], v[130:131], v[130:131], v[136:137]")
        A("v_add_f32 v17, v136, v137")
        for m in ("row_shr:1", "row_shr:2", "row_shr:4", "row_shr:8"):
            A(f"v_add_f32_dpp v16, v16, v16 {m} {FULL} bound_ctrl:0")
            A(f"v_add_f32_dpp v17, v17, v17 {m} {FULL} bound_ctrl:0")
        for m in ("row_bcast:15 row_mask:0xa", "row_bcast:31 row_mask:0xc"):
            A(f"v_add_f32_dpp v16, v16, v16 {m} bank_mask:0xf")
            A(f"v_add_f32_dpp v17, v17, v17 {m} bank_mask:0xf")
        A("v_readlane_b32 s4, v16, 63")
        A("v_readlane_b32 s5, v17, 63")
        A("v_mov_b32 v18, 0x3b000000")
        A("v_mul_f32 v16, s4, v18")
        A("v_mul_f32 v17, s5, v18")
        A("v_fma_f32 v17, -v16, v16, v17")
        A("v_add_f32 v16, v16, v132")
        A("v_max_f32 v17, 0, v17")
        A("v_cvt_pk_bf16_f32 v18, v16, v17")
        A("v_and_b32 v17, 0xffff0000, v18")
        A("v_lshlrev_b32 v16, 16, v18")
        A("v_add_f32 v17, 0x3727c5ac, v17")
        A("v_sub_f32 v120, v120, v16")
        A("v_cvt_pk_bf16_f32 v18, v120, v17")
        A("v_and_b32 v17, 0xffff0000, v18")
        A("v_sqrt_f32 v17, v17")
        A("v_lshlrev_b32 v120, 16, v18")
        rbf(17)
        A("v_rcp_f32 v18, v17")
        A("v_mul_f32 v19, v120, v18")
        A("v_fma_f32 v120, -v19, v17, v120")
        A("v_fma_f32 v120, v120, v18, v19")

    def poll(label, loads, regs, t, slp=None, between=None):
        slp = sleep if slp is None else slp
        A("s_mov_b32 s59, 0")
        if between:
            for l in loads:
                A(l)
            between()
            A(f"s_branch {label}_chk")
        A(f"{label}:")
        for l in loads:
            A(l)
        if between:
            A(f"{label}_chk:")
        A("s_waitcnt vmcnt(0)")
        regs = list(regs)
        if len(regs) == 1:
            t = regs[0]
            rest = []
        elif len(regs) % 2 == 0:
            A(f"v_max_u32 v{t}, v{regs[0]}, v{regs[1]}")
            rest = regs[2:]
        else:
            A(f"v_max3_u32 v{t}, v{regs[0]}, v{regs[1]}, v{regs[2]}")
            rest = regs[3:]
        for i in range(0, len(rest), 2):
            A(f"v_max3_u32 v{t}, v{t}, v{rest[i]}, v{rest[i + 1]}")
        A(f"v_cmp_eq_u32 vcc, -1, v{t}")
        A(f"s_branch {label}_ok" if ("svc3" in xp and label in ("L_pollq", "L_pollall")) else f"s_cbranch_vccz {label}_ok")
        A("s_add_u32 s59, s59, 1")
        A(f"s_cmp_lt_u32 s59, {SPIN_MAX}")
        A(f"s_cbranch_scc0 {label}_ok")
        if masked:
            A("s_mov_b64 exec, vcc")
        if slp:
            A(f"s_sleep {slp}")
        A(f"s_branch {label}")
        A(f"{label}_ok:")
        if masked:
            A("s_mov_b64 exec, -1")

    def ldswait(label, off, val=None):
        A(f"v_mov_b32 v24, {L_F}\ns_mov_b32 s5, 0")
        A(f"{label}:")
        A(f"ds_read_b32 v25, v24 offset:{off}")
        A("s_waitcnt lgkmcnt(0)")
        A("v_cmp_ne_u32 vcc, 0, v25" if val is None else f"v_cmp_eq_u32 vcc, {val}, v25")
        A(f"s_cbranch_vccnz {label}_ok")
        A(f"s_add_u32 s5, s5, 1\ns_cmp_lt_u32 s5, {SPIN_MAX * 64}\ns_cbranch_scc0 {label}_ok")
        A("s_sleep 1")
        A(f"s_branch {label}")
        A(f"{label}_ok:")

    def store_quad(val, addr, lo="0x11111111", hi="0x11111111", fl="sc1"):
        for i in (1, 2, 3):
            A(f"v_mov_b32_dpp v{val + i}, v{val} quad_perm:[{i},{i},{i},{i}] {FULL}")
        A(f"s_mov_b32 exec_lo, {lo}\ns_mov_b32 exec_hi, {hi}")
        A(f"global_store_dwordx4 v{addr}, v[{val}:{val + 3}], s[38:39] {fl}")
        A("s_mov_b64 exec, -1")

    def roles():
        brot = 0 if local else 4
        A(f"s_add_u32 s61, s6, {brot}\ns_and_b32 s61, s61, 7")
        A("s_bfe_u32 s13, s7, 0x10003\ns_lshl_b32 s4, s61, 1\ns_add_u32 s13, s13, s4")
        A("s_and_b32 s14, s7, 7")
        A("s_mul_i32 s15, s6, 14\ns_add_u32 s15, s15, s7")

    def p1slot(dst):
        A(f"s_lshl_b32 {dst}, s6, 5\ns_add_u32 {dst}, {dst}, s7\ns_mul_i32 {dst}, {dst}, {P1_STRIDE}\ns_add_u32 {dst}, {dst}, {WS_P1}")

    stamp_at(0)
    A("s_load_dwordx16 s[16:31], s[0:1], 0")
    A("s_load_dwordx8 s[32:39], s[0:1], 64")
    A("s_cmp_ge_u32 s2, 256")
    A("s_cbranch_scc1 L_end")
    A("v_lshrrev_b32 v1, 6, v0")
    A("v_and_b32 v0, 63, v0")
    A("v_readfirstlane_b32 s3, v1")
    A("s_and_b32 s6, s2, 7")
    A("s_lshr_b32 s7, s2, 3")
    A(f"s_add_u32 s60, s6, {qrot}\ns_and_b32 s60, s60, 7")
    A("v_lshlrev_b32 v9, 4, v0")
    A("s_cmp_eq_u32 s3, 8")
    A("s_cbranch_scc1 L_service")
    def wqaddr():
        A("v_lshrrev_b32 v10, 3, v0\nv_and_b32 v11, 7, v0\nv_lshlrev_b32 v10, 13, v10\nv_lshl_add_u32 v10, v11, 4, v10")
        A("s_and_b32 s4, s7, 3\ns_lshl_b32 s4, s4, 3\ns_add_u32 s4, s4, s3\ns_lshl_b32 s4, s4, 7\ns_add_u32 s4, s4, s60\ns_lshl_b32 s4, s4, 3")
        A("s_lshr_b32 s5, s7, 2\ns_add_u32 s4, s4, s5\ns_lshl_b32 s4, s4, 7")
        A("v_add_u32 v10, s4, v10\nv_add_u32 v11, 0x10000, v10")
        A(f"s_lshl_b32 s57, s3, 11\ns_add_u32 m0, s57, {L_W}")

    def wqload():
        A("s_cmp_eq_u32 s3, 0")
        A("s_cbranch_scc0 L_nox")
        A(f"s_mov_b32 m0, {L_X}")
        A("global_load_lds_dwordx4 v9, s[16:17]")
        A(f"s_mov_b32 m0, {L_W}")
        A("s_nop 0")
        A("L_nox:")
        A(f"global_load_lds_dwordx4 v10, s[22:23]{wntf}")
        A("s_add_u32 m0, m0, 1024")
        A(f"global_load_lds_dwordx4 v11, s[22:23]{wntf}")
    if not kfirst:
        wqaddr()
    vKS = (1, 2, 3, 4)
    vKR = (5, 6, 7, 8)
    vV, vM, vML, vL = 9, 10, 11, 12
    PK = (13, 14)
    vAl = 15
    SEL = (16, 17, 18, 19)
    S = (20, 21, 22, 23)
    T = (24, 25, 26, 27)
    BB = 28
    vT2 = 38
    ACC = (40, 44)
    QF = 48
    KF = 64
    VR = [80 + 16 * i for i in range(VRING)]
    A("v_lshrrev_b32 v24, 4, v0")
    A("v_lshlrev_b32 v25, 6, v24")
    A(f"v_xor_b32 v{vKS[0]}, v{vV}, v25")
    for i in (1, 2, 3):
        A(f"v_xor_b32 v{vKS[i]}, {16 * i}, v{vKS[0]}")
    A("s_lshl_b32 s10, s6, 23")
    if inter == "wgtile":
        A("s_lshl_b32 s11, s7, 18\ns_add_u32 s10, s10, s11\ns_lshl_b32 s11, s3, 12\ns_add_u32 s10, s10, s11")
        step = 8 * 4096
    elif inter == "contig":
        A("s_lshl_b32 s11, s7, 18\ns_add_u32 s10, s10, s11\ns_lshl_b32 s11, s3, 15\ns_add_u32 s10, s10, s11")
        step = 4096
    elif inter == "global":
        A("s_lshl_b32 s11, s7, 15\ns_add_u32 s10, s10, s11\ns_lshl_b32 s11, s3, 12\ns_add_u32 s10, s10, s11")
        step = 256 * 4096
    A("s_mov_b32 s11, s10")
    A(f"s_mul_i32 s56, s3, {KRING * 4096}\ns_add_u32 s56, s56, {L_K}")
    A("s_mov_b32 s42, 0x4000000\ns_mov_b32 s43, 0x20000")
    if kfirst:
        A("s_mov_b32 m0, s56")
    A("s_waitcnt lgkmcnt(0)")
    stamp_at(12)
    if not kfirst:
        A("s_barrier")
        wqload()
        A("s_mov_b32 m0, s56")
    A("s_mov_b32 s40, s18\ns_and_b32 s41, s19, 0xffff")
    stamp_at(11)
    vm = VM()
    ids = {}
    m0k = [0]
    order = ["K0", "V0", "K1", "V1", "K2", "V2", "V3", "V4", "K3", "K4", "K5", "V5", "K6", "V6", "K7", "V7"]
    seq = [(g[0], int(g[1]), u) for g in order for u in range(4)]
    NPRE = 4 * (KRING + VRING)

    def W(opid):
        w = vm.wait(opid)
        if w:
            A(w)

    wB = [("s58", L_W + 1024 * i, "v160", "s[24:25]", "v_add_u32 v160, 0x2000, v160") for i in range(4)]
    wC = [("s57", L_W, "v161", "s[28:29]", None), ("s57", L_W + 16384, "v161", "s[30:31]", f"v_add_u32 v161, {32 * 3584}, v161"),
          ("s57", L_W + 1024, "v161", "s[28:29]", None), ("s57", L_W + 16384 + 1024, "v161", "s[30:31]", None),
          ("s57", L_W + 32768, "v162", "s[32:33]", "v_add_u32 v162, 1024, v162"), ("s57", L_W + 32768 + 1024, "v162", "s[32:33]", None)]

    def wload(piece):
        so, lo, va, base, upd = piece
        A(f"s_add_u32 m0, {so}, {lo}")
        A(f"global_load_lds_dwordx4 {va}, {base}{'' if va == 'v161' else wntf}")
        if upd:
            A(upd)

    def preload(i):
        if not pref:
            A("s_mov_b64 exec, 1")
        A(f"global_load_dwordx4 v[164:167], v{162 + (i >> 1) + 0 * i}, {'s[30:31]' if i & 1 else 's[28:29]'}".replace("v162", "v39").replace("v163,", "v163,"))
        if not pref:
            A("s_mov_b64 exec, -1")

    def wslot(n):
        if ppos is not None and n in ppos and "now" not in xp:
            A("s_cmp_lt_u32 s7, 16")
            A(f"s_cbranch_scc0 L_pre{n}")
            for i, p in enumerate(ppos):
                if p == n:
                    preload(i)
            A(f"L_pre{n}:")
        for role, pos, pieces, cond in (("B", (), wB, "s_cmp_ge_u32 s7, 16"), ("C", cpos, wC, "s_cmp_lt_u32 s7, 14")):
            ks = [k for k, p in enumerate(pos) if p == n]
            if ks and "now" not in xp:
                lab = f"L_w{role}{n}"
                A(cond)
                A(f"s_cbranch_scc0 {lab}")
                for k in ks:
                    wload(pieces[k])
                A(f"{lab}:")
                m0k[0] = None

    def load(n):
        mat, t, u = seq[n]
        d = D if n < NPRE else D2
        if n >= d:
            W(ids[seq[n - d]])
        wslot(n)
        if mat == "K":
            if m0k[0] != t:
                m0k[0] = t
                A(f"s_add_u32 m0, s56, {4096 * (t % KRING)}")
            A(f"buffer_load_dwordx4 v{vKS[u]}, s[40:43], s10 offen offset:{1024 * u}{ntf} lds")
            if u == 3:
                A(f"s_add_u32 s10, s10, {step}")
        else:
            r = VR[t % VRING] + 4 * u
            A(f"buffer_load_dwordx4 v[{r}:{r + 3}], v{vV}, s[44:47], s11 offen offset:{1024 * u}{ntf}")
            if u == 3:
                A(f"s_add_u32 s11, s11, {step}")
        ids[seq[n]] = vm.issue()

    def consts():
        A("v_and_b32 v24, 3, v0")
        A("v_mov_b32 v25, 0x0c0c0c0c")
        for k, (lo, e0) in enumerate(((0x0100, 0), (0x0100, 2), (0x0302, 0), (0x0302, 2))):
            A(f"v_mov_b32 v26, {hex(0x0c0c0000 | lo)}")
            A(f"v_mov_b32 v27, {hex((lo << 16) | 0x0c0c)}")
            A(f"v_cmp_eq_u32 vcc, {e0}, v24")
            A(f"v_cndmask_b32 v{SEL[k]}, v25, v26, vcc")
            A(f"v_cmp_eq_u32 vcc, {e0 + 1}, v24")
            A(f"v_cndmask_b32 v{SEL[k]}, v{SEL[k]}, v27, vcc")
        for z in (0, 1, 4, 5, 8, 9):
            A(f"v_mov_b32 v{BB + z}, 0")
        A(f"s_mov_b32 s12, {hex(LOG2E)}")
        A("v_bfe_u32 v25, v0, 2, 2")
        A("v_lshrrev_b32 v26, 4, v0")
        A("v_lshlrev_b32 v27, 8, v25")
        A(f"v_lshl_add_u32 v{vT2}, v26, 4, v27")
        A("v_lshl_add_u32 v25, v24, 2, v25")
        A("v_and_b32 v27, 15, v0")
        A("v_xor_b32 v26, v26, v27")
        A("v_lshlrev_b32 v26, 4, v26")
        A("v_lshl_add_u32 v26, v25, 8, v26")
        for u in range(4):
            A(f"v_xor_b32 v{vKR[u]}, {64 * u}, v26")
            A(f"v_add_u32 v{vKR[u]}, s56, v{vKR[u]}")
        roles()
        A("s_lshl_b32 s4, s13, 3\ns_add_u32 s4, s4, s3\ns_lshl_b32 s4, s4, 15\ns_lshl_b32 s5, s14, 7\ns_add_u32 s4, s4, s5")
        A("v_lshrrev_b32 v160, 3, v0\nv_and_b32 v161, 7, v0\nv_lshlrev_b32 v160, 10, v160\nv_lshl_add_u32 v160, v161, 4, v160\nv_add_u32 v160, s4, v160")
        A("s_lshl_b32 s4, s3, 6\nv_lshrrev_b32 v161, 1, v0\nv_add_u32 v161, s4, v161\nv_mul_u32_u24 v161, 3584, v161")
        A("v_and_b32 v162, 1, v0\nv_lshl_add_u32 v161, v162, 4, v161\ns_lshl_b32 s4, s15, 5\nv_add_u32 v161, s4, v161")
        A(f"s_min_u32 s4, s15, 111\ns_lshl_b32 s4, s4, 3\ns_add_u32 s4, s4, s3\ns_lshl_b32 s4, s4, 11\nv_add_u32 v162, s4, v{vV}")
        A("s_lshl_b32 s58, s3, 12")
        A("s_lshl_b32 s4, s7, 3\ns_add_u32 s4, s4, s3\ns_and_b32 s4, s4, 127\ns_mul_i32 s4, s4, 14336\ns_mul_i32 s5, s6, 448\ns_andn2_b32 s5, s5, 127\ns_add_u32 s4, s4, s5")
        A("v_lshrrev_b32 v39, 5, v0\nv_mul_u32_u24 v39, 3584, v39\nv_and_b32 v163, 31, v0\nv_lshl_add_u32 v39, v163, 4, v39\nv_add_u32 v39, s4, v39")
        A("v_add_u32 v163, 7168, v39")

    def qk(t, last=False):
        W(ids[("K", t, 3)])
        if "nocomp" in xp and not last:
            return
        k = KF
        for u in range(4):
            A(f"ds_read_b128 v[{k + 4 * u}:{k + 4 * u + 3}], v{vKR[u]} offset:{4096 * (t % KRING)}")
        for u in range(4):
            c = "0" if u == 0 else f"v[{S[0]}:{S[3]}]"
            A("s_waitcnt lgkmcnt(0)" if stamps else f"s_waitcnt lgkmcnt({3 - u})")
            A(f"v_mfma_f32_16x16x32_bf16 v[{S[0]}:{S[3]}], v[{k + 4 * u}:{k + 4 * u + 3}], v[{QF + 4 * u}:{QF + 4 * u + 3}], {c}")
        if last:
            A("v_bfe_u32 v26, v0, 2, 2")
            A("v_lshlrev_b32 v26, 5, v26")
            A("s_lshl_b32 s4, s3, 2")
            A("v_add_u32 v27, s4, v26")
        for rnd in range(2):
            A(f"v_cvt_pk_bf16_f32 v{T[0]}, v{S[0]}, v{S[1]}")
            A(f"v_cvt_pk_bf16_f32 v{T[1]}, v{S[2]}, v{S[3]}")
            A(f"v_lshlrev_b32 v{S[0]}, 16, v{T[0]}")
            A(f"v_and_b32 v{S[1]}, 0xffff0000, v{T[0]}")
            A(f"v_lshlrev_b32 v{S[2]}, 16, v{T[1]}")
            A(f"v_and_b32 v{S[3]}, 0xffff0000, v{T[1]}")
            if rnd == 0:
                for r in range(4):
                    A(f"v_mul_f32 v{S[r]}, {hex(SCALE)}, v{S[r]}")
        if t == 0:
            A(f"v_max_f32 v{vM}, v{S[0]}, v{S[1]}")
            A(f"v_max3_f32 v{vM}, v{vM}, v{S[2]}, v{S[3]}")
        else:
            A(f"v_max3_f32 v{vM}, v{vM}, v{S[0]}, v{S[1]}")
            A(f"v_max3_f32 v{vM}, v{vM}, v{S[2]}, v{S[3]}")
        xrow(vM, T[0], "max")
        if last:
            A("s_mov_b64 exec, 0x1111")
            A(f"ds_write_b32 v27, v{vM} offset:{L_M}")
            A("s_mov_b64 exec, -1")
            A("s_waitcnt lgkmcnt(0)")
            A("s_barrier")
            k0 = KF
            A(f"ds_read_b128 v[{k0}:{k0 + 3}], v26 offset:{L_M}")
            A(f"ds_read_b128 v[{k0 + 4}:{k0 + 7}], v26 offset:{L_M + 16}")
            A("s_waitcnt lgkmcnt(0)")
            A(f"v_max3_f32 v{vM}, v{k0}, v{k0 + 1}, v{k0 + 2}")
            A(f"v_max3_f32 v{vM}, v{vM}, v{k0 + 3}, v{k0 + 4}")
            A(f"v_max3_f32 v{vM}, v{vM}, v{k0 + 5}, v{k0 + 6}")
            A(f"v_max_f32 v{vM}, v{vM}, v{k0 + 7}")
        if t > 0:
            A(f"v_mov_b32 v{vAl}, v{vML}")
        A(f"v_mul_f32 v{vML}, s12, v{vM}")
        if t > 0:
            A(f"v_sub_f32 v{vAl}, v{vAl}, v{vML}")
            A(f"v_exp_f32 v{vAl}, v{vAl}")
        for r in range(4):
            A(f"v_fma_f32 v{S[r]}, v{S[r]}, s12, -v{vML}")
        for r in range(4):
            A(f"v_exp_f32 v{S[r]}, v{S[r]}")
        if t > 0:
            for a in range(8):
                A(f"v_mul_f32 v{ACC[0] + a}, v{vAl}, v{ACC[0] + a}")
        A(f"v_add_f32 v{T[0]}, v{S[0]}, v{S[1]}")
        A(f"v_add_f32 v{T[1]}, v{S[2]}, v{S[3]}")
        A(f"v_cvt_pk_bf16_f32 v{PK[0]}, v{S[0]}, v{S[1]}")
        A(f"v_cvt_pk_bf16_f32 v{PK[1]}, v{S[2]}, v{S[3]}")
        if t == 0:
            A(f"v_add_f32 v{vL}, v{T[0]}, v{T[1]}")
        else:
            A(f"v_add_f32 v{T[0]}, v{T[0]}, v{T[1]}")
            A(f"v_fma_f32 v{vL}, v{vL}, v{vAl}, v{T[0]}")
        if last:
            xrow(vL, T[0])
            A("s_mov_b64 exec, 0x1111")
            A(f"ds_write_b32 v27, v{vL} offset:{L_L}")
            A("s_mov_b64 exec, -1")
            A("s_and_b32 s4, s3, 1\ns_lshl_b32 s4, s4, 6\nv_lshrrev_b32 v26, 5, v0\nv_lshl_add_u32 v26, v26, 5, s4")
            A(f"v_mov_b32 v27, {L_F}")
            A("s_waitcnt lgkmcnt(0)")
            A("s_barrier")
            if late4 and "now" not in xp:
                A("s_cmp_ge_u32 s7, 16")
                A("s_cbranch_scc0 L_late_c")
                for piece in wB:
                    wload(piece)
                A("s_branch L_late_done")
                A("L_late_c:")
                if ppos is None:
                    for i in range(4):
                        preload(i)
                else:
                    A("s_cmp_lt_u32 s7, 14")
                    A("s_cselect_b64 exec, -1, 1")
                    wload(wC[4])
                    wload(wC[5])
                    A("s_mov_b64 exec, 1")
                    preload(0)
                    preload(1)
                    A("s_mov_b64 exec, -1")
                A("L_late_done:")
                for i in range(4):
                    vm.issue()
            A(f"ds_read_b128 v[64:67], v26 offset:{L_M}")
            A(f"ds_read_b128 v[68:71], v26 offset:{L_M + 16}")
            A(f"ds_read_b128 v[72:75], v26 offset:{L_L}")
            A(f"ds_read_b128 v[76:79], v26 offset:{L_L + 16}")
            A("ds_read_b32 v27, v27 offset:4")
            A("s_waitcnt lgkmcnt(0)")
            A("v_max3_f32 v64, v64, v65, v66\nv_max3_f32 v64, v64, v67, v68\nv_max3_f32 v64, v64, v69, v70\nv_max_f32 v64, v64, v71")
            for i in range(4):
                A(f"v_add_f32 v{72 + i}, v{72 + i}, v{76 + i}")
            A("v_add_f32 v72, v72, v73\nv_add_f32 v74, v74, v75\nv_add_f32 v72, v72, v74")
            A("v_readfirstlane_b32 s62, v27")
            A("v_log_f32 v73, v72")
            A(f"v_rcp_f32 v{vAl}, v72")
            A(f"v_mul_f32 v64, s12, v64")
            A(f"v_add_f32 v{vL}, v64, v73")
            A(f"v_and_b32 v{vM}, 3, v0\nv_add_u32 v{vM}, 0x07060501, v{vM}")
            A("s_mov_b32 s50, 0x88888888\ns_mov_b32 s51, 0x88888888")

    def pv(t, last=False):
        v = VR[t % VRING]
        if "nocomp" in xp and not last:
            W(ids[("V", t, 3)])
            return

        def perm(i):
            b = BB + 2 + 4 * (i & 1)
            A(f"v_perm_b32 v{b}, v{PK[i >> 1]}, v{PK[i >> 1]}, v{SEL[2 * (i & 1)]}")
            A(f"v_perm_b32 v{b + 1}, v{PK[i >> 1]}, v{PK[i >> 1]}, v{SEL[2 * (i & 1) + 1]}")
        perm(0)
        perm(1)
        if not last:
            W(ids[("V", t, 3)])
        else:
            A(f"v_add_u32 v64, s56, v{vV}")
            A("v_and_b32 v65, 15, v0\nv_bfe_u32 v66, v0, 4, 1\nv_mul_u32_u24 v66, 272, v66\nv_add_u32 v65, v65, v66")
            A("v_lshrrev_b32 v66, 5, v0\nv_lshl_add_u32 v65, v66, 4, v65\ns_lshl_b32 s4, s3, 7")
            A(f"s_add_u32 s4, s4, {L_K}\nv_lshl_add_u32 v65, v65, 2, s4")
            A(f"v_add_u32 v66, {4 * KRING * 4096}, v65")
            p1slot("s4")
            A("s_lshl_b32 s5, s3, 8\ns_add_u32 s5, s5, s4\nv_lshl_add_u32 v67, v0, 2, s5")
        for i in range(4):
            if last:
                W(ids[("V", t, i)])
            b = BB + 2 + 4 * (i & 1)
            for h in range(2):
                c = "0" if (t == 0 and i == 0) else f"v[{ACC[h]}:{ACC[h] + 3}]"
                bb = b if h == 0 else b - 2
                A(f"v_mfma_f32_16x16x32_bf16 v[{ACC[h]}:{ACC[h] + 3}], v[{v + 4 * i}:{v + 4 * i + 3}], v[{bb}:{bb + 3}], {c}")
            if i < 2:
                perm(i + 2)

    for n in range(NPRE):
        load(n)
        if n == 3:
            A("s_mov_b32 s44, s20\ns_and_b32 s45, s21, 0xffff\ns_mov_b32 s46, 0x4000000\ns_mov_b32 s47, 0x20000")
            if kfirst:
                wqaddr()
                wqload()
                m0k[0] = None
                A("s_barrier")
        if n == max(D - 1, 3):
            consts()
        if n == bpos:
            stamp_at(13)
            A(f"v_mov_b32 v24, {L_F}\nv_mov_b32 v25, 1\ns_mov_b64 exec, 1\nds_add_u32 v24, v25 offset:12\ns_mov_b64 exec, -1")
        if n == qpos:
            A(f"v_mov_b32 v24, {L_F}\nds_write_b32 v24, v24 offset:8")
    stamp_at(1)
    ldswait("L_waitq", 0)
    stamp_at(2)
    for u in range(4):
        A(f"ds_read_b128 v[{QF + 4 * u}:{QF + 4 * u + 3}], v{vT2} offset:{L_Q + 64 * u}")
    A("s_waitcnt lgkmcnt(0)")
    blocks = []
    for t in range(7):
        blocks += [(qk, t, ("K", t, 3)), (pv, t, ("V", t, 3))]
    bi = 0
    for n in range(NPRE, len(seq)):
        mat, t, u = seq[n]
        needb = {"K": 2 * (t - KRING) + 1, "V": 2 * (t - VRING) + 2}[mat]
        while bi < needb:
            blocks[bi][0](blocks[bi][1])
            bi += 1
        load(n)
        if bi < len(blocks) and blocks[bi][2] in ids and ids[blocks[bi][2]] <= vm.done:
            blocks[bi][0](blocks[bi][1])
            bi += 1
    while bi < len(blocks):
        blocks[bi][0](blocks[bi][1])
        bi += 1
    for _ in range(pad1):
        A("s_nop 0")
    qk(7, last=True)
    stamp_at(3)
    pv(7, last=True)
    stamp_at(4)
    A(f"ds_write_b128 v64, v[{ACC[0]}:{ACC[0] + 3}]")
    A(f"ds_write_b128 v64, v[{ACC[1]}:{ACC[1] + 3}] offset:1088")
    A("s_waitcnt lgkmcnt(0)")
    A("s_barrier")
    R0 = 72
    for i in range(8):
        A(f"ds_read_b32 v{R0 + i}, v{65 + (i >> 2)} offset:{KRING * 4096 * (i & 3)}")
    A("s_cmp_eq_u32 s62, 1")
    A("s_waitcnt lgkmcnt(0)")
    for i in range(2):
        A(f"v_pk_add_f32 v[{R0 + 2 * i}:{R0 + 2 * i + 1}], v[{R0 + 2 * i}:{R0 + 2 * i + 1}], v[{R0 + 4 + 2 * i}:{R0 + 5 + 2 * i}]")
    A(f"v_pk_add_f32 v[{R0}:{R0 + 1}], v[{R0}:{R0 + 1}], v[{R0 + 2}:{R0 + 3}]")
    A(f"v_add_f32 v{R0}, v{R0}, v{R0 + 1}")
    A(f"v_mul_f32 v{R0}, v{R0}, v{vAl}")
    A(f"v_mov_b32_dpp v{R0 + 1}, v{R0} quad_perm:[3,3,3,3] {FULL}")
    A(f"v_perm_b32 v{R0}, v{R0}, v{R0 + 1}, v{vM}")
    A(f"v_cndmask_b32 v{R0}, v{R0}, v{vL}, s[50:51]")
    A("s_cbranch_scc0 L_pubfar")
    A(f"global_store_dword v67, v{R0}, s[38:39]")
    A("L_published:")
    for _ in range(pad2):
        A("s_nop 0")
    stamp_at(5)
    A("s_cmp_lt_u32 s7, 14")
    A("s_cbranch_scc1 L_ffn")
    A("s_cmp_lt_u32 s7, 16")
    A("s_cbranch_scc1 L_final")
    A(f"s_lshl_b32 s4, s61, 5\nv_lshrrev_b32 v16, 3, v0\nv_add_u32 v16, s4, v16\nv_mul_u32_u24 v16, {P1_STRIDE}, v16")
    A("s_and_b32 s4, s13, 1\ns_lshl_b32 s4, s4, 1\ns_lshr_b32 s5, s3, 2\ns_add_u32 s4, s4, s5")
    A(f"s_and_b32 s5, s3, 3\ns_lshl_b32 s5, s5, 2\ns_add_u32 s4, s4, s5\ns_lshl_b32 s4, s4, 7\ns_add_u32 s4, s4, {WS_P1}")
    A("v_and_b32 v17, 7, v0\nv_lshl_add_u32 v16, v17, 4, v16\nv_add_u32 v24, s4, v16")
    for pi in range(1, 4):
        A(f"v_add_u32 v{24 + pi}, {8 * pi * P1_STRIDE}, v24")
    A("s_mov_b32 s52, 0x04000c0c\ns_mov_b32 s53, 0x0706000c")
    A("s_mov_b32 s54, 0xffff0000\ns_mov_b32 s55, 0xffff0000\ns_mov_b32 s50, 0\ns_mov_b32 s51, -1")
    sigma(16, 17)
    A("v_bfe_u32 v17, v0, 2, 2\nv_lshl_add_u32 v16, v16, 3, v17\nv_lshlrev_b32 v16, 7, v16")
    A("v_and_b32 v17, 3, v0\nv_lshl_add_u32 v16, v17, 3, v16\nv_add_u32 v16, s58, v16")
    WB = 88

    def bweights():
        if not bwait:
            A("s_waitcnt vmcnt(4)")
        for tau in range(4):
            for t in range(2):
                r = WB + 4 * tau + 2 * t
                A(f"ds_read_b64_tr_b16 v[{r}:{r + 1}], v16 offset:{L_W + 512 * t + 32 * tau}")
    if not late4:
        bweights()
    A("s_lshl_b32 s4, s3, 8\nv_lshl_add_u32 v18, v0, 2, s4")
    A(f"s_lshl_b32 s4, s13, 11\ns_lshl_b32 s5, s14, 8\ns_add_u32 s4, s4, s5\ns_add_u32 s4, s4, {WS_P2}")
    A("v_lshlrev_b32 v19, 2, v0\nv_add_u32 v28, s4, v19")
    D0 = 120
    loads = [f"global_load_dwordx4 v[{D0 + 4 * pi}:{D0 + 4 * pi + 3}], v{24 + pi}, s[38:39] sc1" for pi in range(4)]
    if bwait:
        A("s_waitcnt vmcnt(1)")
    poll("L_poll1", loads, range(120, 136), 31, between=bweights)
    stamp_at(6)
    A(f"v_max3_f32 v16, v{D0 + 3}, v{D0 + 7}, v{D0 + 11}\nv_max_f32 v16, v16, v{D0 + 15}")
    for pi in range(2):
        A(f"v_perm_b32 v{136 + pi}, v{D0 + 4 * pi + 2}, v{D0 + 4 * pi + 1}, s52")
    A(f"v_max_f32_dpp v16, v16, v16 row_ror:8 {FULL}")
    A("v_mov_b32 v17, v16")
    for pi in range(2, 4):
        A(f"v_perm_b32 v{136 + pi}, v{D0 + 4 * pi + 2}, v{D0 + 4 * pi + 1}, s52")
    A("v_permlane16_swap_b32 v16, v17")
    A("v_max_f32 v16, v16, v17")
    A("v_mov_b32 v17, v16")
    A("v_permlane32_swap_b32 v16, v17")
    A("v_max_f32 v16, v16, v17")
    for pi in range(4):
        A(f"v_sub_f32 v{140 + pi}, v{D0 + 4 * pi + 3}, v16")
    for pi in range(4):
        A(f"v_exp_f32 v{140 + pi}, v{140 + pi}")
        A(f"v_perm_b32 v{D0 + 4 * pi + 3}, v{136 + pi}, v{D0 + 4 * pi}, s53")
    A("v_pk_add_f32 v[16:17], v[140:141], v[142:143]")
    for hlf in range(2):
        A(f"v_pk_mul_f32 v[{D0 + 2 * hlf}:{D0 + 2 * hlf + 1}], v[140:141], v[{D0 + 2 * hlf}:{D0 + 2 * hlf + 1}] op_sel_hi:[0,1]")
    A("v_add_f32 v16, v16, v17")
    for pi in range(1, 4):
        w = f"v[{140 + (pi & 2)}:{141 + (pi & 2)}]"
        sel = "op_sel:[1,0,0] op_sel_hi:[1,1,1]" if pi & 1 else "op_sel_hi:[0,1,1]"
        for hlf in range(2):
            r = D0 + 2 * hlf
            A(f"v_pk_fma_f32 v[{r}:{r + 1}], {w}, v[{r + 4 * pi}:{r + 4 * pi + 1}], v[{r}:{r + 1}] {sel}")
        if pi == 1:
            A(f"v_add_f32_dpp v16, v16, v16 row_ror:8 {FULL}")
    A("v_mov_b32 v17, v16")
    A(f"v_permlane32_swap_b32 v{D0}, v{D0 + 1}\nv_permlane32_swap_b32 v{D0 + 2}, v{D0 + 3}\nv_permlane32_swap_b32 v16, v17")
    A(f"v_add_f32 v{D0}, v{D0}, v{D0 + 1}\nv_add_f32 v{D0 + 2}, v{D0 + 2}, v{D0 + 3}\nv_add_f32 v16, v16, v17")
    A("v_mov_b32 v17, v16")
    A(f"v_permlane16_swap_b32 v{D0}, v{D0 + 2}\nv_permlane16_swap_b32 v16, v17")
    A(f"v_add_f32 v{D0}, v{D0}, v{D0 + 2}\nv_add_f32 v16, v16, v17")
    A(f"v_add_f32_dpp v{D0}, v{D0}, v{D0} row_ror:8 {FULL}")
    A("v_rcp_f32 v16, v16")
    A(f"v_mul_f32 v{D0}, v{D0}, v16")
    A(f"v_mov_b32_dpp v{D0 + 1}, v{D0} quad_perm:[1,0,3,2] {FULL}")
    A(f"v_cvt_pk_bf16_f32 v{D0}, v{D0}, v{D0 + 1}")
    for e in range(4):
        A(f"v_mov_b32_dpp v{124 + e}, v{D0} row_newbcast:{2 * e} {FULL}")
    A("s_waitcnt lgkmcnt(0)")
    for tau in range(4):
        A(f"v_mfma_f32_16x16x32_bf16 v[{128 + 4 * tau}:{131 + 4 * tau}], v[124:127], v[{WB + 4 * tau}:{WB + 4 * tau + 3}], 0")
    A("v_cndmask_b32 v128, v128, v132, s[54:55]")
    A("v_cndmask_b32 v136, v136, v140, s[54:55]")
    A("v_cndmask_b32 v128, v128, v136, s[50:51]")
    A(f"ds_write_b32 v18, v128 offset:{L_B}")
    A("s_cmp_eq_u32 s3, 0")
    A("s_waitcnt lgkmcnt(0)")
    A("s_barrier")
    A("s_cbranch_scc0 L_bdone")
    for i in range(8):
        A(f"ds_read_b32 v{120 + i}, v19 offset:{L_B + 256 * i}")
    A("s_waitcnt lgkmcnt(0)")
    for i in range(2):
        A(f"v_pk_add_f32 v[{120 + 2 * i}:{121 + 2 * i}], v[{120 + 2 * i}:{121 + 2 * i}], v[{124 + 2 * i}:{125 + 2 * i}]")
    A("v_pk_add_f32 v[120:121], v[120:121], v[122:123]")
    A("v_add_f32 v120, v120, v121")
    store_quad(120, 28, fl=st2)
    A("L_bdone:")
    if wb:
        A("s_cmp_eq_u32 s3, 1\ns_cbranch_scc0 L_nowb\ns_cmp_eq_u32 s7, 16\ns_cbranch_scc0 L_nowb")
        A("buffer_wbl2 sc1")
        A("L_nowb:")
    stamp_at(7)
    stamp_store()
    A("s_endpgm")
    A("L_pubfar:")
    A("s_nop 0")
    store_quad(R0, 67)
    A("s_branch L_published")
    A("L_ffn:")
    if "now" not in xp:
        for k in ((4, 5, 0, 1, 2, 3) if ppos is None else (0, 1, 2, 3)):
            wload(wC[k])
    vCol = 65
    A("v_and_b32 v17, 7, v0\nv_bfe_u32 v16, v0, 3, 2\nv_lshl_add_u32 v16, v17, 2, v16")
    A("v_and_b32 v18, 32, v0\nv_add_u32 v16, v16, v18")
    A(f"s_lshl_b32 s4, s3, 6\nv_add_u32 v{vCol}, s4, v16")
    A(f"v_lshlrev_b32 v29, 1, v{vCol}")
    A(f"ds_read_u16_d16_hi v64, v29 offset:{L_X}")
    A(f"s_lshl_b32 s4, s3, 8\ns_add_u32 s4, s4, {WS_P2}")
    A("v_lshrrev_b32 v18, 3, v0\nv_lshlrev_b32 v19, 12, v18\nv_lshl_add_u32 v16, v17, 4, v19\nv_add_u32 v20, s4, v16")
    A("v_lshrrev_b32 v18, 4, v0\nv_and_b32 v17, 15, v0")
    A(f"s_lshl_b32 s4, s15, 11\ns_add_u32 s4, s4, {WS_P3}\ns_lshl_b32 s5, s3, 8\ns_add_u32 s4, s4, s5")
    A("v_lshl_add_u32 v22, v0, 2, s4")
    A("s_lshl_b32 s5, s3, 4\nv_mov_b32 v23, s5")
    A("v_and_b32 v24, 7, v0\nv_lshlrev_b32 v24, 4, v24")
    A("s_mov_b32 s63, 0x42800000\ns_mov_b32 s54, 0xffff0000\ns_mov_b32 s55, 0xffff0000")
    A("v_mov_b32 v67, 0x3b000000\nv_mov_b32 v68, 0x3727c5ac\nv_mov_b32 v69, 0xbdd2d3e8\nv_mov_b32 v70, 0xc0135761")
    for i in range(4):
        A(f"v_mov_b32 v{72 + i}, 0x3f803f80")
    A("s_lshl_b32 s4, s3, 7\nv_lshl_add_u32 v25, v18, 4, s4")
    A("v_lshlrev_b32 v27, 2, v0\ns_lshl_b32 s5, s3, 8\nv_add_u32 v26, s5, v27")
    A("v_lshl_add_u32 v28, v0, 1, s4")
    A("v_bfe_u32 v16, v0, 2, 2\nv_lshl_add_u32 v16, v18, 3, v16\nv_lshlrev_b32 v16, 5, v16")
    A("v_and_b32 v17, 3, v0\nv_lshl_add_u32 v16, v17, 3, v16\nv_add_u32 v16, s57, v16")
    GW = 88
    DW = 104

    A("s_waitcnt vmcnt(4)" if "now" not in xp else "s_waitcnt vmcnt(0)")
    A("s_barrier")
    for r in range(16):
        if r == 14:
            A("s_waitcnt lgkmcnt(0)")
        A(f"ds_read_u16_d16_hi v{DW + r}, v28 offset:{L_W + 32768 + 1024 * r}")
    A("s_waitcnt vmcnt(0) lgkmcnt(0)")
    stamp_at(11)

    def cweights():
        for mat in range(2):
            for kap in range(2):
                for t in range(2):
                    r = GW + 8 * mat + 4 * kap + 2 * t
                    A(f"ds_read_b64_tr_b16 v[{r}:{r + 1}], v16 offset:{L_W + 16384 * mat + 1024 * kap + 128 * t}")
        A("s_waitcnt lgkmcnt(0)")
        A(f"v_mfma_f32_16x16x32_bf16 v[140:143], v[72:75], v[{GW}:{GW + 3}], 0")
        A(f"v_mfma_f32_16x16x32_bf16 v[144:147], v[72:75], v[{GW + 8}:{GW + 11}], 0")
        A(f"v_mfma_f32_16x16x32_bf16 v[140:143], v[72:75], v[{GW + 4}:{GW + 7}], v[140:143]")
        A(f"v_mfma_f32_16x16x32_bf16 v[144:147], v[72:75], v[{GW + 12}:{GW + 15}], v[144:147]")
        A("v_cndmask_b32 v66, v140, v144, s[54:55]")
        stamp_at(13)
    loads = [f"global_load_dwordx4 v[{120 + 4 * i}:{123 + 4 * i}], v20, s[38:39] offset:{2048 * (i >> 1) + 128 * (i & 1)} {ld2}" for i in range(4)]
    poll("L_poll2", loads, range(120, 136), 31, between=cweights)
    stamp_at(6)
    for e in range(4):
        A(f"v_pk_add_f32 v[{120 + 2 * e}:{121 + 2 * e}], v[{120 + 2 * e}:{121 + 2 * e}], v[{128 + 2 * e}:{129 + 2 * e}]")
    for e in range(4):
        A(f"v_permlane32_swap_b32 v{120 + e}, v{124 + e}")
    A("v_pk_add_f32 v[120:121], v[120:121], v[124:125]\nv_pk_add_f32 v[122:123], v[122:123], v[126:127]")
    A("v_permlane16_swap_b32 v120, v122\nv_permlane16_swap_b32 v121, v123")
    A("v_pk_add_f32 v[122:123], v[120:121], v[122:123]")
    A("v_add_f32_dpp v120, v122, v122 row_ror:8 row_mask:0xf bank_mask:0x3")
    A("v_add_f32_dpp v120, v123, v123 row_ror:8 row_mask:0xf bank_mask:0xc")
    A("v_add_f32 v120, v120, v64")
    A("v_cvt_pk_bf16_f32 v121, v120, v120")
    A(f"ds_write_b16 v29, v121 offset:{L_HN}")
    A("v_lshlrev_b32 v120, 16, v121")
    A("v_readfirstlane_b32 s4, v120")
    A("s_waitcnt lgkmcnt(0)")
    A(f"ds_read_b128 v[124:127], v25 offset:{L_HN}")
    A(f"ds_read_b128 v[128:131], v25 offset:{L_HN + 64}")
    A("v_subrev_f32 v140, s4, v120")
    A("v_mov_b32 v142, s4")
    A("v_mul_f32 v141, v140, v140")
    steps = [f"{m} {FULL}" for m in ("row_shr:1", "row_shr:2", "row_shr:4", "row_shr:8")] + ["row_bcast:15 row_mask:0xa bank_mask:0xf", "row_bcast:31 row_mask:0xc bank_mask:0xf"]
    mf = [f"v_mfma_f32_16x16x32_bf16 v[132:135], v[124:127], v[{GW}:{GW + 3}], 0",
          f"v_mfma_f32_16x16x32_bf16 v[136:139], v[124:127], v[{GW + 8}:{GW + 11}], 0",
          f"v_mfma_f32_16x16x32_bf16 v[132:135], v[128:131], v[{GW + 4}:{GW + 7}], v[132:135]",
          f"v_mfma_f32_16x16x32_bf16 v[136:139], v[128:131], v[{GW + 12}:{GW + 15}], v[136:139]"]
    for k, m in enumerate(steps):
        A(f"v_add_f32_dpp v140, v140, v140 {m}")
        A(f"v_add_f32_dpp v141, v141, v141 {m}")
        if k == 1:
            A("s_waitcnt lgkmcnt(0)")
            stamp_at(8)
            A(mf[0])
            A(mf[1])
        if k == 2:
            A(mf[2])
            A(mf[3])
    A("s_mov_b32 exec_lo, 0\ns_mov_b32 exec_hi, 0x80000000")
    A(f"ds_write_b96 v23, v[140:142] offset:{L_H}")
    A("s_mov_b32 exec_lo, -1\ns_mov_b32 exec_hi, 0")
    A("v_cndmask_b32 v66, v132, v136, s[54:55]")
    A("s_mov_b64 exec, -1")
    A(f"ds_write_b32 v26, v66 offset:{L_B}")
    A("s_waitcnt lgkmcnt(0)")
    stamp_at(9)
    A("s_barrier")
    A(f"ds_read_b96 v[124:126], v24 offset:{L_H}")
    for i in range(8):
        A(f"ds_read_b32 v{128 + i}, v27 offset:{L_B + 256 * i}")
    A("s_waitcnt lgkmcnt(0)" if stamps else "s_waitcnt lgkmcnt(8)")
    stamp_at(10)
    x8 = ("quad_perm:[1,0,3,2]", "quad_perm:[2,3,0,1]", "row_half_mirror")
    A("v_fma_f32 v127, v126, s63, v124")
    A("v_add_f32 v124, v124, v124")
    A("s_waitcnt lgkmcnt(0)" if stamps else "s_waitcnt lgkmcnt(4)")
    A(f"v_add_f32_dpp v127, v127, v127 {x8[0]} {FULL}")
    A("v_pk_add_f32 v[128:129], v[128:129], v[130:131]")
    A("s_waitcnt lgkmcnt(0)")
    A(f"v_add_f32_dpp v127, v127, v127 {x8[1]} {FULL}")
    A("v_pk_add_f32 v[132:133], v[132:133], v[134:135]")
    A("v_pk_add_f32 v[128:129], v[128:129], v[132:133]")
    A(f"v_add_f32_dpp v127, v127, v127 {x8[2]} {FULL}")
    A("v_add_f32 v120, v128, v129")
    A("v_add_f32 v121, v128, v129")
    A("v_mul_f32 v127, 0x3b000000, v127")
    A("v_sub_f32 v126, v127, v126")
    A("v_permlane32_swap_b32 v120, v121")
    A("v_fma_f32 v124, v126, s63, -v124")
    A("v_fma_f32 v125, v126, v124, v125")
    A("v_fma_f32 v122, -v127, v121, v120")
    A("v_fma_f32 v121, -v127, v121, v120")
    A(f"v_add_f32_dpp v125, v125, v125 {x8[0]} {FULL}")
    A("v_mov_b32 v120, v122")
    A(f"v_add_f32_dpp v125, v125, v125 {x8[1]} {FULL}")
    A("v_permlane16_swap_b32 v120, v121")
    A(f"v_add_f32_dpp v125, v125, v125 {x8[2]} {FULL}")
    A("v_fma_f32 v125, v125, v67, v68")
    A("v_rsq_f32 v125, v125")
    A("v_mul_f32 v120, v120, v125")
    A("v_mul_f32 v121, v121, v125")
    A("v_mul_f32 v122, v120, v120")
    A("v_mul_f32 v121, v120, v121")
    A("v_fma_f32 v122, v122, v69, v70")
    A("v_mul_f32 v122, v122, v120")
    A("v_exp_f32 v122, v122")
    A("v_add_f32 v122, 1.0, v122")
    A("v_rcp_f32 v122, v122")
    A("v_mul_f32 v120, v121, v122")
    for r in range(16):
        op = "mul" if r < 4 else "fmac"
        A(f"v_{op}_f32_dpp v{124 + (r & 3)}, v120, v{DW + r} row_newbcast:{r} {FULL}")
    A("v_pk_add_f32 v[124:125], v[124:125], v[126:127]")
    A("v_add_f32 v124, v124, v125")
    store_quad(124, 22, fl=st3)
    stamp_at(7)
    stamp_store()
    A("s_endpgm")
    A("L_final:")
    A("s_sub_u32 s15, s7, 14\ns_lshl_b32 s4, s6, 1\ns_add_u32 s15, s15, s4")
    A("v_and_b32 v16, 7, v0\nv_lshrrev_b32 v17, 3, v0\nv_lshlrev_b32 v17, 11, v17\nv_lshl_add_u32 v17, v16, 4, v17")
    A("v_and_b32 v22, 31, v0\ns_lshl_b32 s4, s15, 6\nv_lshl_add_u32 v18, v22, 1, s4")
    A("v_lshlrev_b32 v22, 2, v22")
    sigma(23, 24)
    A("v_lshl_add_u32 v23, v16, 2, v23\nv_lshl_add_u32 v19, v23, 1, s4")
    A(f"ds_read_u16_d16_hi v19, v19 offset:{L_X}")
    A("s_lshl_b32 s4, s3, 7\nv_lshl_add_u32 v23, v23, 2, s4")
    A(f"s_lshl_b32 s4, s3, 15\ns_add_u32 s4, s4, {WS_P3}")
    A("s_cmp_eq_u32 s3, 7")
    A(f"s_cselect_b32 s4, {WS_P2}, s4")
    A("s_lshl_b32 s5, s15, 7\ns_add_u32 s4, s4, s5")
    A("v_add_u32 v20, s4, v17\nv_add_u32 v21, 0x4000, v20")
    loads = [f"global_load_dwordx4 v[{120 + 4 * i}:{123 + 4 * i}], v{20 + i}, s[38:39] {ld3}" for i in range(2)]
    poll("L_poll3", loads, range(120, 128), 16)
    stamp_at(6)
    for e in range(4):
        A(f"v_add_f32 v{120 + e}, v{120 + e}, v{124 + e}")
    scatter4(120)
    A(f"v_add_f32_dpp v120, v120, v120 row_ror:8 {FULL}")
    A("s_cmp_eq_u32 s3, 7")
    A("s_cbranch_scc0 L_dnoh")
    A("s_waitcnt lgkmcnt(0)")
    A("v_add_f32 v120, v120, v19")
    rbf(120)
    A("L_dnoh:")
    A("s_mov_b32 exec_lo, 0x00ff00ff\ns_mov_b32 exec_hi, 0x00ff00ff")
    A(f"ds_write_b32 v23, v120 offset:{L_B}")
    A("s_mov_b64 exec, -1")
    A("s_cmp_eq_u32 s3, 0")
    A("s_waitcnt lgkmcnt(0)")
    A("s_barrier")
    A("s_cbranch_scc0 L_ddone")
    for i in range(8):
        A(f"ds_read_b32 v{120 + i}, v22 offset:{L_B + 128 * i}")
    A("s_waitcnt lgkmcnt(0)")
    for i in range(2):
        A(f"v_pk_add_f32 v[{120 + 2 * i}:{121 + 2 * i}], v[{120 + 2 * i}:{121 + 2 * i}], v[{124 + 2 * i}:{125 + 2 * i}]")
    A("v_pk_add_f32 v[120:121], v[120:121], v[122:123]")
    A("v_add_f32 v120, v120, v121")
    if perturb:
        import struct
        kind, val = perturb
        h = hex(struct.unpack("<I", struct.pack("<f", val))[0])
        if kind == "add": A(f"v_add_f32 v120, {h}, v120")
        if kind == "mul": A(f"v_mul_f32 v120, {h}, v120")
        if kind == "one":
            A("s_cmp_eq_u32 s15, 0\ns_cselect_b32 s4, 1, 0\ns_mov_b32 s5, 0\ns_mov_b64 exec, s[4:5]")
            A(f"v_add_f32 v120, {h}, v120\ns_mov_b64 exec, -1")
    A(f"v_mov_b32_dpp v121, v120 quad_perm:[1,0,3,2] {FULL}")
    A("v_cvt_pk_bf16_f32 v120, v120, v121")
    A("s_mov_b64 exec, 0x55555555")
    A("global_store_dword v18, v120, s[34:35]")
    stamp_at(7)
    if enc:
        a, b, mult = enc
        A("s_waitcnt lgkmcnt(0)")
        A(f"s_sub_u32 s4, s{64 + 2 * a}, s{64 + 2 * b}\ns_mul_i32 s4, s4, {mult}\ns_min_u32 s4, s4, 40000")
        A("L_enc:\ns_memrealtime s[8:9]\ns_waitcnt lgkmcnt(0)\ns_sub_u32 s5, s8, s78\ns_cmp_lt_u32 s5, s4\ns_cbranch_scc1 L_enc")
    A("L_ddone:")
    stamp_at(7)
    stamp_store()
    A("s_endpgm")

    for _ in range(pad3):
        A("s_nop 0")
    A("L_service:")
    A("s_setprio 3")
    A(f"v_mov_b32 v98, {L_F}\nv_mov_b32 v99, 0")
    A("ds_write_b32 v98, v99")
    A("ds_write_b32 v98, v99 offset:8")
    A("ds_write_b32 v98, v99 offset:12")
    A("s_waitcnt lgkmcnt(0)")
    A("s_barrier")
    for i in range(4):
        A(f"v_mov_b32 v{100 + i}, -1")
    roles()
    p1slot("s4")
    A("v_add_u32 v104, s4, v9")
    A("s_cmp_eq_u32 s7, 0")
    A("s_waitcnt lgkmcnt(0)")
    if "svcoff" in xp:
        A("s_branch L_svcbar")
    A("s_cbranch_scc0 L_qcleared")
    A(f"s_lshl_b32 s10, s60, 13\nv_add_u32 v3, s10, v9\nv_add_u32 v8, 0x1000, v3")
    for i in range(8):
        A(f"global_store_dwordx4 v{3 if i < 4 else 8}, v[100:103], s[38:39] offset:{1024 * (i & 3)} sc1")
    A(f"s_lshl_b32 s10, s60, 7\ns_add_u32 s10, s10, {WS_F}\nv_add_u32 v3, s10, v9")
    A("s_mov_b64 exec, 0xff")
    A("global_store_dwordx4 v3, v[100:103], s[38:39] sc1")
    A("s_mov_b64 exec, -1")
    A("L_qcleared:")
    nyoung = 0
    if "noclear" not in xp:
        A("global_store_dwordx4 v104, v[100:103], s[38:39] sc1")
        A("global_store_dwordx4 v104, v[100:103], s[38:39] offset:1024 sc1")
        nyoung += 2
        A("s_cmp_lt_u32 s7, 14")
        A("s_cbranch_scc0 L_noclr3")
        A(f"s_lshl_b32 s4, s15, 11\ns_add_u32 s4, s4, {WS_P3}\nv_add_u32 v105, s4, v9")
        A("global_store_dwordx4 v105, v[100:103], s[38:39] sc1")
        A("global_store_dwordx4 v105, v[100:103], s[38:39] offset:1024 sc1")
        A("L_noclr3:")
        A("s_cmp_ge_u32 s7, 16")
        A("s_cbranch_scc0 L_noclr2")
        A(f"s_lshl_b32 s4, s13, 11\ns_lshl_b32 s5, s14, 8\ns_add_u32 s4, s4, s5\ns_add_u32 s4, s4, {WS_P2}\nv_add_u32 v105, s4, v9")
        A("s_mov_b64 exec, 0xffff")
        A("global_store_dwordx4 v105, v[100:103], s[38:39] sc1")
        A("s_mov_b64 exec, -1")
        A("L_noclr2:")
    stamp_at(1)
    A("v_lshlrev_b32 v96, 5, v0")
    A("s_cmp_eq_u32 s7, 0")
    A("s_cbranch_scc0 L_noqflag")
    A("s_lshl_b32 s4, s60, 5\nv_mov_b32 v104, s4\nv_mov_b32 v105, 1")
    A(f"s_waitcnt vmcnt({4 if 'noclear' not in xp else 0})")
    A("s_mov_b64 exec, 1")
    A("global_store_dword v104, v105, s[36:37] sc1")
    A("s_mov_b64 exec, -1")
    A("L_noqflag:")
    ldswait("L_waitwq", 12, 8)
    A(f"ds_read_b128 v[4:7], v9 offset:{L_X}")
    A("s_waitcnt lgkmcnt(0)")
    stamp_at(2)
    X = list(range(8, 16))
    X[1] = 3
    for i in range(4):
        A(f"v_lshlrev_b32 v{X[2 * i]}, 16, v{4 + i}")
        A(f"v_and_b32 v{X[2 * i + 1]}, 0xffff0000, v{4 + i}")
    ln_stats(X, 16, 17, 18, 19, 20, list(range(22, 30)))
    ln_apply(X, 16, 17, 18, list(range(22, 30)))
    for i in range(4):
        A(f"v_cvt_pk_bf16_f32 v{4 + i}, v{X[2 * i]}, v{X[2 * i + 1]}")
    A(f"ds_write_b128 v9, v[4:7] offset:{L_HN}")
    A(f"s_and_b32 s4, s7, {KS - 1}\ns_lshl_b32 s4, s4, {10 - KL}\nv_lshrrev_b32 v17, 4, v0\nv_lshl_add_u32 v16, v17, 4, s4")
    A("v_bfe_u32 v18, v0, 2, 2\nv_lshl_add_u32 v17, v17, 3, v18\nv_lshlrev_b32 v17, 7, v17\nv_and_b32 v18, 3, v0\nv_lshl_add_u32 v17, v18, 3, v17")
    A("s_waitcnt lgkmcnt(0)")
    NK = NQ // 4
    for k in range(NK):
        A(f"ds_read_b128 v[{32 + 4 * k}:{35 + 4 * k}], v16 offset:{L_HN + 64 * k}")
    stamp_at(3)
    A("s_mov_b64 exec, 0xff")
    A("global_load_dword v97, v96, s[36:37] sc1")
    A("s_mov_b64 exec, -1")
    for k in range(NK):
        A("s_waitcnt lgkmcnt(0)")
        b = 64 + 16 * (k & 1)
        for tau in range(4):
            for t in range(2):
                r = b + 4 * tau + 2 * t
                A(f"ds_read_b64_tr_b16 v[{r}:{r + 1}], v17 offset:{L_W + 4096 * k + 512 * t + 32 * tau}")
        if k > 0:
            bp = 64 + 16 * ((k - 1) & 1)
            for tau in range(4):
                c = "0" if k == 1 else f"v[{112 + 4 * tau}:{115 + 4 * tau}]"
                A(f"v_mfma_f32_16x16x32_bf16 v[{112 + 4 * tau}:{115 + 4 * tau}], v[{28 + 4 * k}:{31 + 4 * k}], v[{bp + 4 * tau}:{bp + 4 * tau + 3}], {c}")
    A("s_waitcnt lgkmcnt(0)")
    for tau in range(4):
        A(f"v_mfma_f32_16x16x32_bf16 v[{112 + 4 * tau}:{115 + 4 * tau}], v[{28 + 4 * NK}:{31 + 4 * NK}], v[{80 + 4 * tau}:{83 + 4 * tau}], v[{112 + 4 * tau}:{115 + 4 * tau}]")
    A(f"s_lshl_b32 s4, s60, {11 + KL}\ns_and_b32 s5, s7, {KS - 1}\ns_lshl_b32 s5, s5, 11\ns_add_u32 s4, s4, s5\ns_lshr_b32 s5, s7, {KL}\ns_lshl_b32 s5, s5, 8\ns_add_u32 s4, s4, s5")
    A("v_lshl_add_u32 v17, v0, 2, s4")
    for tau in range(1, 4):
        A(f"v_mov_b32_dpp v112, v{112 + 4 * tau} quad_perm:[0,1,2,3] row_mask:{hex(1 << tau)} bank_mask:0xf")
    for i in (1, 2, 3):
        A(f"v_mov_b32_dpp v{112 + i}, v112 quad_perm:[{i},{i},{i},{i}] {FULL}")
    A("L_qdone:")
    A(f"s_lshl_b32 s4, s60, 5\ns_add_u32 s4, s4, s7\ns_lshl_b32 s4, s4, 2\ns_add_u32 s4, s4, {WS_F}\nv_mov_b32 v18, s4")
    A(f"s_lshl_b32 s4, s6, {11 + KL}\nv_add_u32 v19, s4, v9\nv_add_u32 v20, 0x1000, v19")
    A("s_getreg_b32 s62, hwreg(HW_REG_XCC_ID, 0, 4)\nv_mov_b32 v21, s62")
    A("s_lshl_b32 s4, 1, s60\ns_lshl_b32 s5, 1, s6\ns_or_b32 s4, s4, s5")
    A("s_mov_b32 s5, 0")
    stamp_at(4)
    if "svc1" in xp: A("s_branch L_svcbar2")
    A("L_pollf:")
    A("s_waitcnt vmcnt(0) lgkmcnt(0)")
    A("v_cmp_ne_u32 vcc, 1, v97")
    A("s_and_b32 s57, vcc_lo, s4")
    A("s_cbranch_scc0 L_pollf_ok")
    A(f"s_add_u32 s5, s5, 1\ns_cmp_lt_u32 s5, {SPIN_MAX}\ns_cbranch_scc0 L_pollf_ok")
    A("s_sleep 8")
    A("s_mov_b64 exec, 0xff")
    A("global_load_dword v97, v96, s[36:37] sc1")
    A("s_mov_b64 exec, -1")
    A("s_branch L_pollf")
    A("L_pollf_ok:")
    if KS == 2:
        A("s_cmp_lt_u32 s7, 16")
        A("s_cbranch_scc0 L_noqpub")
    A("s_mov_b32 exec_lo, 0x11111111\ns_mov_b32 exec_hi, 0x11111111")
    A("global_store_dwordx4 v17, v[112:115], s[38:39] sc1")
    A("L_noqpub:")
    A("s_mov_b64 exec, 1")
    A("global_store_dword v18, v21, s[38:39] sc1")
    A("s_mov_b64 exec, -1")
    stamp_at(5)
    if "svc2" in xp: A("s_branch L_svcbar2")
    if warm:
        A("s_getpc_b64 s[48:49]")
        A("L_pc:")
        A(f"s_sub_u32 s48, s48, L_pc-{NAME}_kernel\ns_subb_u32 s49, s49, 0")
        A(f"s_mov_b32 s4, L_codeend-{NAME}_kernel-16\nv_mov_b32 v2, v9\ns_mov_b32 s5, 0")
        A("L_warm:")
        A("v_min_u32 v3, s4, v2")
        A("global_load_dwordx4 v[128:131], v3, s[48:49]")
        A("v_add_u32 v2, 1024, v2\ns_add_u32 s5, s5, 1024\ns_cmp_lt_u32 s5, s4\ns_cbranch_scc1 L_warm")
    ldswait("L_waitpos", 8)
    poll("L_pollq", [f"global_load_dwordx4 v[{32 + 4 * i}:{35 + 4 * i}], v{19 + (i >> 2)}, s[38:39] offset:{1024 * (i & 3)} sc1" for i in range(2 * KS)],
         range(32, 32 + 8 * KS), 16, slp=qsleep)
    stamp_at(6)
    for e in range(8):
        A(f"v_add_f32 v{32 + e}, v{32 + e}, v{40 + e}")
        if KS == 4:
            A(f"v_add_f32 v{48 + e}, v{48 + e}, v{56 + e}")
    if KS == 4:
        for e in range(8):
            A(f"v_add_f32 v{32 + e}, v{32 + e}, v{48 + e}")
    for e in range(4):
        A(f"v_cvt_pk_bf16_f32 v{40 + e}, v{32 + 2 * e}, v{33 + 2 * e}")
    A("v_lshlrev_b32 v16, 3, v0")
    A(f"ds_write_b64 v16, v[40:41] offset:{L_Q}")
    A(f"ds_write_b64 v16, v[42:43] offset:{L_Q + 512}")
    A("v_mov_b32 v99, 1")
    A("s_waitcnt lgkmcnt(0)")
    A("ds_write_b32 v98, v99")
    stamp_at(7)
    if "svc4" in xp: A("s_branch L_svcbar2")
    A("s_mov_b32 s5, 0")
    A("L_pollf2:")
    A("s_mov_b64 exec, 0xff")
    A("global_load_dword v97, v96, s[36:37] sc1")
    A("s_waitcnt vmcnt(0)")
    A("v_cmp_ne_u32 vcc, 1, v97")
    A("s_mov_b64 exec, -1")
    A("s_cbranch_vccz L_pollf2_ok")
    A(f"s_add_u32 s5, s5, 1\ns_cmp_lt_u32 s5, {SPIN_MAX}\ns_cbranch_scc1 L_pollf2")
    A("L_pollf2_ok:")
    stamp_at(8)
    A(f"v_add_u32 v19, {WS_F}, v9")
    poll("L_pollall", ["global_load_dwordx4 v[32:35], v19, s[38:39] sc1"], range(32, 36), 16, slp=16)
    stamp_at(9)
    A("v_xor_b32 v32, v32, v21\nv_xor_b32 v33, v33, v21\nv_xor_b32 v34, v34, v21\nv_xor_b32 v35, v35, v21")
    A("v_or_b32 v32, v32, v33\nv_or3_b32 v32, v32, v34, v35")
    A("v_cmp_ne_u32 vcc, 0, v32")
    A("s_lshl_b32 s4, s60, 3\ns_lshr_b64 s[4:5], vcc, s4\ns_and_b32 s4, s4, 0xff")
    A("s_cselect_b32 s4, 0, 1" if local and "far" not in xp else "s_mov_b32 s4, 0")
    A("v_mov_b32 v99, s4")
    A("ds_write_b32 v98, v99 offset:4")
    A("s_waitcnt lgkmcnt(0)")
    A("s_barrier")
    stamp_store()
    A("s_endpgm")
    A("L_svcbar:")
    A("L_svcbar2:")
    A("v_mov_b32 v99, 1")
    A("ds_write_b32 v98, v99")
    A("s_waitcnt lgkmcnt(0)")
    A("s_barrier")
    stamp_store()
    A("L_end:")
    A("s_endpgm")
    A("L_codeend:")

    body = fix(C)
    out = HEADER
    out += f"; @launch grid=(256,1,1) block=(576,1,1) lds={LDS_BYTES}\n"
    out += '.amdgcn_target "amdgcn-amd-amdhsa--gfx950"\n.text\n'
    out += f".globl {NAME}_kernel\n.p2align 8\n.type {NAME}_kernel,@function\n{NAME}_kernel:\n"
    out += "\n".join(("" if l.endswith(":") else "    ") + l for l in body) + "\n"
    out += f""".section .rodata,"a"
.p2align 6
.amdhsa_kernel {NAME}_kernel
  .amdhsa_next_free_vgpr 168
  .amdhsa_next_free_sgpr 96
  .amdhsa_accum_offset 168
  .amdhsa_group_segment_fixed_size 0
  .amdhsa_kernarg_size 96
  .amdhsa_user_sgpr_count 2
  .amdhsa_user_sgpr_kernarg_segment_ptr 1
  .amdhsa_system_sgpr_workgroup_id_x 1
  .amdhsa_float_denorm_mode_32 3
.end_amdhsa_kernel
"""
    return out


if __name__ == "__main__":
    cfg = eval("dict(" + (sys.argv[2] if len(sys.argv) > 2 else "") + ")")
    open(sys.argv[1], "w").write(gen(**cfg))
```

```python
import sys
from asmlib import fix, VM

NAME = "sequential_preLN__gqa_block_cached__glu_gated_geglu__decode"
HEADER = open("cdna_kernels/" + NAME + ".s.ref").read().split("; Override launch")[0]

WS_Q = 0x0
WS_F = 0x10000
WS_G = 0x11000
WS_P1 = 0x20000
P1_STRIDE = 2048
WS_P2 = 0xB0000
WS_P3 = 0xC0000
WS_STAMP = 0x200000
L_Q = 0
L_X = 1024
L_M = 2048
L_L = 2176
L_F = 2304
L_B = 2560
L_H = 4608
L_HN = 6656
L_G = 7680
L_W = 8704
L_K = L_W + 49152
KRING = 3
VRING = 5
LDS_BYTES = L_K + 8 * KRING * 4096

LOG2E = 0x3FB8AA3B
SCALE = 0x3DB504F3
FULL = "row_mask:0xf bank_mask:0xf"
SPIN_MAX = 20000


def gen(D=4, D2=None, nt=True, inter="wgtile", stamps=False, wnt=True, warm=True, sleep=1, qsleep=4,
        xp=(), masked=True, qrot=4, local=True, qpos=18, pref=True, fold=True, bpos=None, bwait=True, ppos=None, kfirst=True, wb=False, pad1=0, pad2=0, pad3=0, gsync=True, gsleep=2, cdelay=0, opos=None, enc=None, dsplit=True, early=False):
    C = []
    A = C.append
    ntf = " nt" if nt else ""
    wntf = " nt" if wnt else ""
    D2 = D if D2 is None else D2
    hmap = "xcd"; KS = 4; ld2 = ld3 = st2 = st3 = "sc1"; peel = False; late4 = True; cpos = ("end",) * 6; fastln = True; perturb = None
    bpos = (D + 4 if kfirst else D) if bpos is None else bpos
    KL = KS.bit_length() - 1
    NQ = 64 // KS
    QR = 2048 * KS

    def stamp_at(k):
        if stamps:
            A(f"s_memrealtime s[{64 + 2 * k}:{65 + 2 * k}]")

    def stamp_store():
        if not stamps:
            return
        A("s_waitcnt lgkmcnt(0)")
        if stamps == "dbg":
            lab = f"L_dbg{len(C)}"
            A("s_and_b32 s4, s3, 7\ns_cmp_eq_u32 s4, 0")
            A(f"s_cbranch_scc0 {lab}")
            A("s_not_b32 s64, s64")
            A("s_cmp_eq_u32 s3, 8")
            sel0 = (0, 1, 2, 4, 5, 6, 7)
            sel8 = (2, 4, 5, 6, 7, 8, 9)
            A("s_mov_b64 exec, -1")
            for i in range(7):
                A(f"s_cselect_b32 s4, s{64 + 2 * sel8[i]}, s{64 + 2 * sel0[i]}")
                A(f"v_writelane_b32 v4, s4, {i}")
            A("s_lshl_b32 s4, s3, 2\ns_add_u32 s4, s4, 4\nv_lshl_add_u32 v1, v0, 2, s4")
            A("s_mov_b64 exec, 0x7f")
            A("global_atomic_umax v1, v4, s[36:37] sc1")
            A(f"{lab}:")
            return
        lab = f"L_st{len(C)}"
        A(f"s_cmp_eq_u32 s3, 1\ns_cbranch_scc0 {lab}")
        A(f"s_mov_b64 exec, 0xffff\nv_lshlrev_b32 v5, 2, v0\nds_read_b32 v4, v5 offset:{L_G}")
        A(f"s_lshl_b32 s4, s2, 4\ns_add_u32 s4, s4, 8\ns_lshl_b32 s4, s4, 6\ns_add_u32 s4, s4, {WS_STAMP}\nv_add_u32 v5, s4, v5")
        A("s_waitcnt lgkmcnt(0)\nglobal_store_dword v5, v4, s[38:39]\ns_nop 1")
        A(f"{lab}:")
        A("s_mov_b64 exec, 1")
        A("s_lshl_b32 s4, s2, 4\ns_add_u32 s4, s4, s3\ns_lshl_b32 s4, s4, 6")
        A(f"s_add_u32 s4, s4, {WS_STAMP}")
        A("v_mov_b32 v1, s4")
        A("s_getreg_b32 s94, hwreg(HW_REG_XCC_ID)")
        A("s_lshl_b32 s92, s62, 16\ns_add_u32 s92, s92, s59")
        for q in range(4):
            for i in range(4):
                A(f"v_mov_b32 v{4 + i}, s{64 + 2 * (4 * q + i)}")
            A(f"global_store_dwordx4 v1, v[4:7], s[38:39] offset:{16 * q}")
            A("s_nop 1")

    def rowsum(a, op="add"):
        for s in (8, 4, 2, 1):
            A(f"v_{op}_f32_dpp v{a}, v{a}, v{a} row_ror:{s} {FULL}")

    def xrow(a, t, op="add"):
        A(f"v_mov_b32 v{t}, v{a}")
        A(f"v_permlane16_swap_b32 v{a}, v{t}")
        A(f"v_{op}_f32 v{a}, v{a}, v{t}")
        A(f"v_mov_b32 v{t}, v{a}")
        A(f"v_permlane32_swap_b32 v{a}, v{t}")
        A(f"v_{op}_f32 v{a}, v{a}, v{t}")

    def scatter4(r):
        A(f"v_permlane32_swap_b32 v{r}, v{r + 1}\nv_permlane32_swap_b32 v{r + 2}, v{r + 3}")
        A(f"v_add_f32 v{r}, v{r}, v{r + 1}\nv_add_f32 v{r + 2}, v{r + 2}, v{r + 3}")
        A(f"v_permlane16_swap_b32 v{r}, v{r + 2}")
        A(f"v_add_f32 v{r}, v{r}, v{r + 2}")

    def sigma(dst, t):
        A(f"v_bfe_u32 v{dst}, v0, 4, 1\nv_lshrrev_b32 v{t}, 5, v0\nv_lshl_add_u32 v{dst}, v{dst}, 1, v{t}")

    def rbf(a):
        A(f"v_cvt_pk_bf16_f32 v{a}, v{a}, v{a}")
        A(f"v_lshlrev_b32 v{a}, 16, v{a}")

    def ln_stats(vals, mean, den, rden, t0, t1, tmp):
        A(f"v_add_f32 v{t0}, v{vals[0]}, v{vals[1]}")
        A(f"v_add_f32 v{t1}, v{vals[2]}, v{vals[3]}")
        A(f"v_add_f32 v{mean}, v{vals[4]}, v{vals[5]}")
        A(f"v_add_f32 v{den}, v{vals[6]}, v{vals[7]}")
        A(f"v_add_f32 v{t0}, v{t0}, v{t1}")
        A(f"v_add_f32 v{mean}, v{mean}, v{den}")
        A(f"v_add_f32 v{mean}, v{mean}, v{t0}")
        rowsum(mean)
        xrow(mean, t0)
        A(f"v_mul_f32 v{mean}, 0x3b000000, v{mean}")
        for i in range(8):
            A(f"v_sub_f32 v{tmp[i]}, v{vals[i]}, v{mean}")
        A(f"v_mul_f32 v{den}, v{tmp[0]}, v{tmp[0]}")
        A(f"v_mul_f32 v{t1}, v{tmp[1]}, v{tmp[1]}")
        for i in range(2, 8, 2):
            A(f"v_fmac_f32 v{den}, v{tmp[i]}, v{tmp[i]}")
            A(f"v_fmac_f32 v{t1}, v{tmp[i + 1]}, v{tmp[i + 1]}")
        A(f"v_add_f32 v{den}, v{den}, v{t1}")
        rowsum(den)
        xrow(den, t0)
        A(f"v_mul_f32 v{den}, 0x3b000000, v{den}")
        A(f"v_cvt_pk_bf16_f32 v{t0}, v{mean}, v{den}")
        A(f"v_lshlrev_b32 v{mean}, 16, v{t0}")
        A(f"v_and_b32 v{den}, 0xffff0000, v{t0}")
        A(f"v_add_f32 v{den}, 0x3727c5ac, v{den}")
        rbf(den)
        A(f"v_sqrt_f32 v{t0}, v{den}")
        A(f"v_rsq_f32 v{t1}, v{den}")
        A(f"v_fma_f32 v{den}, -v{t0}, v{t0}, v{den}")
        A(f"v_mul_f32 v{t1}, 0.5, v{t1}")
        A(f"v_fma_f32 v{den}, v{den}, v{t1}, v{t0}")
        rbf(den)
        A(f"v_rcp_f32 v{rden}, v{den}")

    def ln_apply(xs, mean, den, rden, ts):
        for x in xs:
            A(f"v_sub_f32 v{x}, v{x}, v{mean}")
        for x in xs:
            A(f"v_cvt_pk_bf16_f32 v{x}, v{x}, v{x}")
        for x in xs:
            A(f"v_lshlrev_b32 v{x}, 16, v{x}")
        for x, t in zip(xs, ts):
            A(f"v_mul_f32 v{t}, v{x}, v{rden}")
        for x, t in zip(xs, ts):
            A(f"v_fma_f32 v{x}, -v{t}, v{den}, v{x}")
        for x, t in zip(xs, ts):
            A(f"v_fma_f32 v{x}, v{x}, v{rden}, v{t}")

    def ln2():
        A("v_mov_b32 v133, v132")
        for i in range(4):
            A(f"v_pk_add_f32 v[{124 + 2 * i}:{125 + 2 * i}], v[{124 + 2 * i}:{125 + 2 * i}], v[132:133] neg_lo:[0,1] neg_hi:[0,1]")
        A("v_pk_add_f32 v[134:135], v[124:125], v[126:127]")
        A("v_pk_mul_f32 v[136:137], v[124:125], v[124:125]")
        A("v_pk_add_f32 v[138:139], v[128:129], v[130:131]")
        A("v_pk_fma_f32 v[136:137], v[126:127], v[126:127], v[136:137]")
        A("v_pk_add_f32 v[134:135], v[134:135], v[138:139]")
        A("v_pk_fma_f32 v[136:137], v[128:129], v[128:129], v[136:137]")
        A("v_add_f32 v16, v134, v135")
        A("v_pk_fma_f32 v[136:137], v[130:131], v[130:131], v[136:137]")
        A("v_add_f32 v17, v136, v137")
        for m in ("row_shr:1", "row_shr:2", "row_shr:4", "row_shr:8"):
            A(f"v_add_f32_dpp v16, v16, v16 {m} {FULL} bound_ctrl:0")
            A(f"v_add_f32_dpp v17, v17, v17 {m} {FULL} bound_ctrl:0")
        for m in ("row_bcast:15 row_mask:0xa", "row_bcast:31 row_mask:0xc"):
            A(f"v_add_f32_dpp v16, v16, v16 {m} bank_mask:0xf")
            A(f"v_add_f32_dpp v17, v17, v17 {m} bank_mask:0xf")
        A("v_readlane_b32 s4, v16, 63")
        A("v_readlane_b32 s5, v17, 63")
        A("v_mov_b32 v18, 0x3b000000")
        A("v_mul_f32 v16, s4, v18")
        A("v_mul_f32 v17, s5, v18")
        A("v_fma_f32 v17, -v16, v16, v17")
        A("v_add_f32 v16, v16, v132")
        A("v_max_f32 v17, 0, v17")
        A("v_cvt_pk_bf16_f32 v18, v16, v17")
        A("v_and_b32 v17, 0xffff0000, v18")
        A("v_lshlrev_b32 v16, 16, v18")
        A("v_add_f32 v17, 0x3727c5ac, v17")
        A("v_sub_f32 v120, v120, v16")
        A("v_cvt_pk_bf16_f32 v18, v120, v17")
        A("v_and_b32 v17, 0xffff0000, v18")
        A("v_sqrt_f32 v17, v17")
        A("v_lshlrev_b32 v120, 16, v18")
        rbf(17)
        A("v_rcp_f32 v18, v17")
        A("v_mul_f32 v19, v120, v18")
        A("v_fma_f32 v120, -v19, v17, v120")
        A("v_fma_f32 v120, v120, v18, v19")

    def poll(label, loads, regs, t, slp=None, between=None):
        slp = sleep if slp is None else slp
        A("s_mov_b32 s59, 0")
        if between:
            for l in loads:
                A(l)
            between()
            A(f"s_branch {label}_chk")
        A(f"{label}:")
        for l in loads:
            A(l)
        if between:
            A(f"{label}_chk:")
        A("s_waitcnt vmcnt(0)")
        regs = list(regs)
        if len(regs) == 1:
            t = regs[0]
            rest = []
        elif len(regs) % 2 == 0:
            A(f"v_max_u32 v{t}, v{regs[0]}, v{regs[1]}")
            rest = regs[2:]
        else:
            A(f"v_max3_u32 v{t}, v{regs[0]}, v{regs[1]}, v{regs[2]}")
            rest = regs[3:]
        for i in range(0, len(rest), 2):
            A(f"v_max3_u32 v{t}, v{t}, v{rest[i]}, v{rest[i + 1]}")
        A(f"v_cmp_eq_u32 vcc, -1, v{t}")
        A(f"s_branch {label}_ok" if ("svc3" in xp and label in ("L_pollq", "L_pollall")) else f"s_cbranch_vccz {label}_ok")
        A("s_add_u32 s59, s59, 1")
        A(f"s_cmp_lt_u32 s59, {SPIN_MAX}")
        A(f"s_cbranch_scc0 {label}_ok")
        if masked:
            A("s_mov_b64 exec, vcc")
        if slp:
            A(f"s_sleep {slp}")
        A(f"s_branch {label}")
        A(f"{label}_ok:")
        if masked:
            A("s_mov_b64 exec, -1")

    def ldswait(label, off, val=None):
        A(f"v_mov_b32 v24, {L_F}\ns_mov_b32 s5, 0")
        A(f"{label}:")
        A(f"ds_read_b32 v25, v24 offset:{off}")
        A("s_waitcnt lgkmcnt(0)")
        A("v_cmp_ne_u32 vcc, 0, v25" if val is None else f"v_cmp_eq_u32 vcc, {val}, v25")
        A(f"s_cbranch_vccnz {label}_ok")
        A(f"s_add_u32 s5, s5, 1\ns_cmp_lt_u32 s5, {SPIN_MAX * 64}\ns_cbranch_scc0 {label}_ok")
        A("s_sleep 1")
        A(f"s_branch {label}")
        A(f"{label}_ok:")

    def store_quad(val, addr, lo="0x11111111", hi="0x11111111", fl="sc1"):
        for i in (1, 2, 3):
            A(f"v_mov_b32_dpp v{val + i}, v{val} quad_perm:[{i},{i},{i},{i}] {FULL}")
        A(f"s_mov_b32 exec_lo, {lo}\ns_mov_b32 exec_hi, {hi}")
        A(f"global_store_dwordx4 v{addr}, v[{val}:{val + 3}], s[38:39] {fl}")
        A("s_mov_b64 exec, -1")

    def roles():
        brot = 0 if local else 4
        A(f"s_add_u32 s61, s6, {brot}\ns_and_b32 s61, s61, 7")
        A("s_bfe_u32 s13, s7, 0x10003\ns_lshl_b32 s4, s61, 1\ns_add_u32 s13, s13, s4")
        A("s_and_b32 s14, s7, 7")
        A("s_mul_i32 s15, s6, 14\ns_add_u32 s15, s15, s7")

    def p1slot(dst):
        A(f"s_lshl_b32 {dst}, s6, 5\ns_add_u32 {dst}, {dst}, s7\ns_mul_i32 {dst}, {dst}, {P1_STRIDE}\ns_add_u32 {dst}, {dst}, {WS_P1}")

    stamp_at(0)
    A("s_load_dwordx16 s[16:31], s[0:1], 0")
    A("s_load_dwordx8 s[32:39], s[0:1], 64")
    A("s_cmp_ge_u32 s2, 256")
    A("s_cbranch_scc1 L_end")
    A("v_lshrrev_b32 v1, 6, v0")
    A("v_and_b32 v0, 63, v0")
    A("v_readfirstlane_b32 s3, v1")
    A("s_and_b32 s6, s2, 7")
    A("s_lshr_b32 s7, s2, 3")
    A(f"s_add_u32 s60, s6, {qrot}\ns_and_b32 s60, s60, 7")
    A("v_lshlrev_b32 v9, 4, v0")
    A("s_cmp_eq_u32 s3, 8")
    A("s_cbranch_scc1 L_service")
    def wqaddr():
        A("v_lshrrev_b32 v10, 3, v0\nv_and_b32 v11, 7, v0\nv_lshlrev_b32 v10, 13, v10\nv_lshl_add_u32 v10, v11, 4, v10")
        A("s_and_b32 s4, s7, 3\ns_lshl_b32 s4, s4, 3\ns_add_u32 s4, s4, s3\ns_lshl_b32 s4, s4, 7\ns_add_u32 s4, s4, s60\ns_lshl_b32 s4, s4, 3")
        A("s_lshr_b32 s5, s7, 2\ns_add_u32 s4, s4, s5\ns_lshl_b32 s4, s4, 7")
        A("v_add_u32 v10, s4, v10\nv_add_u32 v11, 0x10000, v10")
        A(f"s_lshl_b32 s57, s3, 11\ns_add_u32 m0, s57, {L_W}")

    def wqload():
        A("s_cmp_eq_u32 s3, 0")
        A("s_cbranch_scc0 L_nox")
        A(f"s_mov_b32 m0, {L_X}")
        A("global_load_lds_dwordx4 v9, s[16:17]")
        A(f"s_mov_b32 m0, {L_W}")
        A("s_nop 0")
        A("L_nox:")
        A(f"global_load_lds_dwordx4 v10, s[22:23]{wntf}")
        A("s_add_u32 m0, m0, 1024")
        A(f"global_load_lds_dwordx4 v11, s[22:23]{wntf}")
    if not kfirst:
        wqaddr()
    vKS = (1, 2, 3, 4)
    vKR = (5, 6, 7, 8)
    vV, vM, vML, vL = 9, 10, 11, 12
    PK = (13, 14)
    vAl = 15
    SEL = (16, 17, 18, 19)
    S = (20, 21, 22, 23)
    T = (24, 25, 26, 27)
    BB = 28
    vT2 = 38
    ACC = (40, 44)
    QF = 48
    KF = 64
    VR = [80 + 16 * i for i in range(VRING)]
    A("v_lshrrev_b32 v24, 4, v0")
    A("v_lshlrev_b32 v25, 6, v24")
    A(f"v_xor_b32 v{vKS[0]}, v{vV}, v25")
    for i in (1, 2, 3):
        A(f"v_xor_b32 v{vKS[i]}, {16 * i}, v{vKS[0]}")
    A("s_lshl_b32 s10, s6, 23")
    if inter == "wgtile":
        A("s_lshl_b32 s11, s7, 18\ns_add_u32 s10, s10, s11\ns_lshl_b32 s11, s3, 12\ns_add_u32 s10, s10, s11")
        step = 8 * 4096
    elif inter == "contig":
        A("s_lshl_b32 s11, s7, 18\ns_add_u32 s10, s10, s11\ns_lshl_b32 s11, s3, 15\ns_add_u32 s10, s10, s11")
        step = 4096
    elif inter == "global":
        A("s_lshl_b32 s11, s7, 15\ns_add_u32 s10, s10, s11\ns_lshl_b32 s11, s3, 12\ns_add_u32 s10, s10, s11")
        step = 256 * 4096
    A("s_mov_b32 s11, s10")
    A(f"s_mul_i32 s56, s3, {KRING * 4096}\ns_add_u32 s56, s56, {L_K}")
    A("s_mov_b32 s42, 0x4000000\ns_mov_b32 s43, 0x20000")
    if kfirst:
        A("s_mov_b32 m0, s56")
    A("s_waitcnt lgkmcnt(0)")
    stamp_at(12)
    if not kfirst:
        A("s_barrier")
        wqload()
        A("s_mov_b32 m0, s56")
    A("s_mov_b32 s40, s18\ns_and_b32 s41, s19, 0xffff")
    stamp_at(11)
    vm = VM()
    ids = {}
    m0k = [0]
    order = ["K0", "V0", "K1", "V1", "K2", "V2", "V3", "V4", "K3", "K4", "K5", "V5", "K6", "V6", "K7", "V7"]
    seq = [(g[0], int(g[1]), u) for g in order for u in range(4)]
    NPRE = 4 * (KRING + VRING)

    def W(opid):
        w = vm.wait(opid)
        if w:
            A(w)

    def load(n):
        mat, t, u = seq[n]
        d = D if n < NPRE else D2
        if n >= d:
            W(ids[seq[n - d]])
        if opos and n in opos and "now" not in xp:
            for i, p in enumerate(opos):
                if p == n:
                    A(f"global_load_dwordx4 v[164:167], v161, s[24:25] offset:{1024 * i}")
        if mat == "K":
            if m0k[0] != t:
                m0k[0] = t
                A(f"s_add_u32 m0, s56, {4096 * (t % KRING)}")
            A(f"buffer_load_dwordx4 v{vKS[u]}, s[40:43], s10 offen offset:{1024 * u}{ntf} lds")
            if u == 3:
                A(f"s_add_u32 s10, s10, {step}")
        else:
            r = VR[t % VRING] + 4 * u
            A(f"buffer_load_dwordx4 v[{r}:{r + 3}], v{vV}, s[44:47], s11 offen offset:{1024 * u}{ntf}")
            if u == 3:
                A(f"s_add_u32 s11, s11, {step}")
        ids[seq[n]] = vm.issue()

    def consts():
        A("v_and_b32 v24, 3, v0")
        A("v_mov_b32 v25, 0x0c0c0c0c")
        for k, (lo, e0) in enumerate(((0x0100, 0), (0x0100, 2), (0x0302, 0), (0x0302, 2))):
            A(f"v_mov_b32 v26, {hex(0x0c0c0000 | lo)}")
            A(f"v_mov_b32 v27, {hex((lo << 16) | 0x0c0c)}")
            A(f"v_cmp_eq_u32 vcc, {e0}, v24")
            A(f"v_cndmask_b32 v{SEL[k]}, v25, v26, vcc")
            A(f"v_cmp_eq_u32 vcc, {e0 + 1}, v24")
            A(f"v_cndmask_b32 v{SEL[k]}, v{SEL[k]}, v27, vcc")
        for z in (0, 1, 4, 5, 8, 9):
            A(f"v_mov_b32 v{BB + z}, 0")
        A(f"s_mov_b32 s12, {hex(LOG2E)}")
        A("v_bfe_u32 v25, v0, 2, 2")
        A("v_lshrrev_b32 v26, 4, v0")
        A("v_lshlrev_b32 v27, 8, v25")
        A(f"v_lshl_add_u32 v{vT2}, v26, 4, v27")
        A("v_lshl_add_u32 v25, v24, 2, v25")
        A("v_and_b32 v27, 15, v0")
        A("v_xor_b32 v26, v26, v27")
        A("v_lshlrev_b32 v26, 4, v26")
        A("v_lshl_add_u32 v26, v25, 8, v26")
        for u in range(4):
            A(f"v_xor_b32 v{vKR[u]}, {64 * u}, v26")
            A(f"v_add_u32 v{vKR[u]}, s56, v{vKR[u]}")
        roles()
        A("s_lshl_b32 s58, s3, 12")
        A("s_lshl_b32 s4, s13, 3\ns_add_u32 s4, s4, s3\ns_lshl_b32 s4, s4, 15\ns_lshl_b32 s5, s14, 7\ns_add_u32 s4, s4, s5")
        A("v_lshrrev_b32 v160, 3, v0\nv_and_b32 v161, 7, v0\nv_lshlrev_b32 v160, 10, v160\nv_lshl_add_u32 v160, v161, 4, v160\nv_add_u32 v160, s4, v160")
        A(f"s_lshl_b32 s4, s61, 5\ns_add_u32 s4, s4, s7\ns_lshl_b32 s4, s4, 3\ns_add_u32 s4, s4, s3\ns_lshl_b32 s4, s4, 11\nv_add_u32 v161, s4, v{vV}")

    def qk(t, last=False):
        W(ids[("K", t, 3)])
        if "nocomp" in xp and not last:
            return
        k = KF
        for u in range(4):
            A(f"ds_read_b128 v[{k + 4 * u}:{k + 4 * u + 3}], v{vKR[u]} offset:{4096 * (t % KRING)}")
        for u in range(4):
            c = "0" if u == 0 else f"v[{S[0]}:{S[3]}]"
            A("s_waitcnt lgkmcnt(0)" if stamps else f"s_waitcnt lgkmcnt({3 - u})")
            A(f"v_mfma_f32_16x16x32_bf16 v[{S[0]}:{S[3]}], v[{k + 4 * u}:{k + 4 * u + 3}], v[{QF + 4 * u}:{QF + 4 * u + 3}], {c}")
        if last:
            A("v_bfe_u32 v26, v0, 2, 2")
            A("v_lshlrev_b32 v26, 5, v26")
            A("s_lshl_b32 s4, s3, 2")
            A("v_add_u32 v27, s4, v26")
        for rnd in range(2):
            A(f"v_cvt_pk_bf16_f32 v{T[0]}, v{S[0]}, v{S[1]}")
            A(f"v_cvt_pk_bf16_f32 v{T[1]}, v{S[2]}, v{S[3]}")
            A(f"v_lshlrev_b32 v{S[0]}, 16, v{T[0]}")
            A(f"v_and_b32 v{S[1]}, 0xffff0000, v{T[0]}")
            A(f"v_lshlrev_b32 v{S[2]}, 16, v{T[1]}")
            A(f"v_and_b32 v{S[3]}, 0xffff0000, v{T[1]}")
            if rnd == 0:
                for r in range(4):
                    A(f"v_mul_f32 v{S[r]}, {hex(SCALE)}, v{S[r]}")
        if t == 0:
            A(f"v_max_f32 v{vM}, v{S[0]}, v{S[1]}")
            A(f"v_max3_f32 v{vM}, v{vM}, v{S[2]}, v{S[3]}")
        else:
            A(f"v_max3_f32 v{vM}, v{vM}, v{S[0]}, v{S[1]}")
            A(f"v_max3_f32 v{vM}, v{vM}, v{S[2]}, v{S[3]}")
        xrow(vM, T[0], "max")
        if last:
            A("s_mov_b64 exec, 0x1111")
            A(f"ds_write_b32 v27, v{vM} offset:{L_M}")
            A("s_mov_b64 exec, -1")
            A("s_waitcnt lgkmcnt(0)")
            A("s_barrier")
            k0 = KF
            A(f"ds_read_b128 v[{k0}:{k0 + 3}], v26 offset:{L_M}")
            A(f"ds_read_b128 v[{k0 + 4}:{k0 + 7}], v26 offset:{L_M + 16}")
            A("s_waitcnt lgkmcnt(0)")
            A(f"v_max3_f32 v{vM}, v{k0}, v{k0 + 1}, v{k0 + 2}")
            A(f"v_max3_f32 v{vM}, v{vM}, v{k0 + 3}, v{k0 + 4}")
            A(f"v_max3_f32 v{vM}, v{vM}, v{k0 + 5}, v{k0 + 6}")
            A(f"v_max_f32 v{vM}, v{vM}, v{k0 + 7}")
        if t > 0:
            A(f"v_mov_b32 v{vAl}, v{vML}")
        A(f"v_mul_f32 v{vML}, s12, v{vM}")
        if t > 0:
            A(f"v_sub_f32 v{vAl}, v{vAl}, v{vML}")
            A(f"v_exp_f32 v{vAl}, v{vAl}")
        for r in range(4):
            A(f"v_fma_f32 v{S[r]}, v{S[r]}, s12, -v{vML}")
        for r in range(4):
            A(f"v_exp_f32 v{S[r]}, v{S[r]}")
        if t > 0:
            for a in range(8):
                A(f"v_mul_f32 v{ACC[0] + a}, v{vAl}, v{ACC[0] + a}")
        A(f"v_add_f32 v{T[0]}, v{S[0]}, v{S[1]}")
        A(f"v_add_f32 v{T[1]}, v{S[2]}, v{S[3]}")
        A(f"v_cvt_pk_bf16_f32 v{PK[0]}, v{S[0]}, v{S[1]}")
        A(f"v_cvt_pk_bf16_f32 v{PK[1]}, v{S[2]}, v{S[3]}")
        if t == 0:
            A(f"v_add_f32 v{vL}, v{T[0]}, v{T[1]}")
        else:
            A(f"v_add_f32 v{T[0]}, v{T[0]}, v{T[1]}")
            A(f"v_fma_f32 v{vL}, v{vL}, v{vAl}, v{T[0]}")
        if last:
            xrow(vL, T[0])
            A("s_mov_b64 exec, 0x1111")
            A(f"ds_write_b32 v27, v{vL} offset:{L_L}")
            A("s_mov_b64 exec, -1")
            A("s_and_b32 s4, s3, 1\ns_lshl_b32 s4, s4, 6\nv_lshrrev_b32 v26, 5, v0\nv_lshl_add_u32 v26, v26, 5, s4")
            A(f"v_mov_b32 v27, {L_F}")
            A("s_waitcnt lgkmcnt(0)")
            A("s_barrier")
            if "now" not in xp:
                A("s_cmp_ge_u32 s7, 16")
                A("s_cselect_b64 exec, -1, 1")
                for i in range(4):
                    A(f"s_add_u32 m0, s58, {L_W + 1024 * i}")
                    A(f"global_load_lds_dwordx4 v160, s[24:25]")
                    vm.issue()
                    if i < 3:
                        A("v_add_u32 v160, 0x2000, v160")
                A("s_mov_b64 exec, -1")
            A(f"ds_read_b128 v[64:67], v26 offset:{L_M}")
            A(f"ds_read_b128 v[68:71], v26 offset:{L_M + 16}")
            A(f"ds_read_b128 v[72:75], v26 offset:{L_L}")
            A(f"ds_read_b128 v[76:79], v26 offset:{L_L + 16}")
            A("ds_read_b32 v27, v27 offset:4")
            A("s_waitcnt lgkmcnt(0)")
            A("v_max3_f32 v64, v64, v65, v66\nv_max3_f32 v64, v64, v67, v68\nv_max3_f32 v64, v64, v69, v70\nv_max_f32 v64, v64, v71")
            for i in range(4):
                A(f"v_add_f32 v{72 + i}, v{72 + i}, v{76 + i}")
            A("v_add_f32 v72, v72, v73\nv_add_f32 v74, v74, v75\nv_add_f32 v72, v72, v74")
            A("v_readfirstlane_b32 s62, v27")
            A("v_log_f32 v73, v72")
            A(f"v_rcp_f32 v{vAl}, v72")
            A(f"v_mul_f32 v64, s12, v64")
            A(f"v_add_f32 v{vL}, v64, v73")
            A(f"v_and_b32 v{vM}, 3, v0\nv_add_u32 v{vM}, 0x07060501, v{vM}")
            A("s_mov_b32 s50, 0x88888888\ns_mov_b32 s51, 0x88888888")

    def pv(t, last=False):
        v = VR[t % VRING]
        if "nocomp" in xp and not last:
            W(ids[("V", t, 3)])
            return

        def perm(i):
            b = BB + 2 + 4 * (i & 1)
            A(f"v_perm_b32 v{b}, v{PK[i >> 1]}, v{PK[i >> 1]}, v{SEL[2 * (i & 1)]}")
            A(f"v_perm_b32 v{b + 1}, v{PK[i >> 1]}, v{PK[i >> 1]}, v{SEL[2 * (i & 1) + 1]}")
        perm(0)
        perm(1)
        if not last:
            W(ids[("V", t, 3)])
        else:
            A(f"v_add_u32 v64, s56, v{vV}")
            A("v_and_b32 v65, 15, v0\nv_bfe_u32 v66, v0, 4, 1\nv_mul_u32_u24 v66, 272, v66\nv_add_u32 v65, v65, v66")
            A("v_lshrrev_b32 v66, 5, v0\nv_lshl_add_u32 v65, v66, 4, v65\ns_lshl_b32 s4, s3, 7")
            A(f"s_add_u32 s4, s4, {L_K}\nv_lshl_add_u32 v65, v65, 2, s4")
            A(f"v_add_u32 v66, {4 * KRING * 4096}, v65")
            p1slot("s4")
            A("s_lshl_b32 s5, s3, 8\ns_add_u32 s5, s5, s4\nv_lshl_add_u32 v67, v0, 2, s5")
        for i in range(4):
            if last:
                W(ids[("V", t, i)])
            b = BB + 2 + 4 * (i & 1)
            for h in range(2):
                c = "0" if (t == 0 and i == 0) else f"v[{ACC[h]}:{ACC[h] + 3}]"
                bb = b if h == 0 else b - 2
                A(f"v_mfma_f32_16x16x32_bf16 v[{ACC[h]}:{ACC[h] + 3}], v[{v + 4 * i}:{v + 4 * i + 3}], v[{bb}:{bb + 3}], {c}")
            if i < 2:
                perm(i + 2)

    for n in range(NPRE):
        load(n)
        if n == 3:
            A("s_mov_b32 s44, s20\ns_and_b32 s45, s21, 0xffff\ns_mov_b32 s46, 0x4000000\ns_mov_b32 s47, 0x20000")
            if kfirst:
                wqaddr()
                wqload()
                m0k[0] = None
                A("s_barrier")
        if n == max(D - 1, 3):
            consts()
        if n == bpos:
            stamp_at(13)
            A(f"v_mov_b32 v24, {L_F}\nv_mov_b32 v25, 1\ns_mov_b64 exec, 1\nds_add_u32 v24, v25 offset:12\ns_mov_b64 exec, -1")
        if n == qpos:
            A(f"v_mov_b32 v24, {L_F}\nds_write_b32 v24, v24 offset:8")
    stamp_at(1)
    ldswait("L_waitq", 0)
    stamp_at(2)
    for u in range(4):
        A(f"ds_read_b128 v[{QF + 4 * u}:{QF + 4 * u + 3}], v{vT2} offset:{L_Q + 64 * u}")
    A("s_waitcnt lgkmcnt(0)")
    blocks = []
    for t in range(7):
        blocks += [(qk, t, ("K", t, 3)), (pv, t, ("V", t, 3))]
    bi = 0
    for n in range(NPRE, len(seq)):
        mat, t, u = seq[n]
        needb = {"K": 2 * (t - KRING) + 1, "V": 2 * (t - VRING) + 2}[mat]
        while bi < needb:
            blocks[bi][0](blocks[bi][1])
            bi += 1
        load(n)
        if bi < len(blocks) and blocks[bi][2] in ids and ids[blocks[bi][2]] <= vm.done:
            blocks[bi][0](blocks[bi][1])
            bi += 1
    while bi < len(blocks):
        blocks[bi][0](blocks[bi][1])
        bi += 1
    for _ in range(pad1):
        A("s_nop 0")
    qk(7, last=True)
    stamp_at(3)
    pv(7, last=True)
    stamp_at(4)
    A(f"ds_write_b128 v64, v[{ACC[0]}:{ACC[0] + 3}]")
    A(f"ds_write_b128 v64, v[{ACC[1]}:{ACC[1] + 3}] offset:1088")
    A("s_waitcnt lgkmcnt(0)")
    A("s_barrier")
    R0 = 72
    for i in range(8):
        A(f"ds_read_b32 v{R0 + i}, v{65 + (i >> 2)} offset:{KRING * 4096 * (i & 3)}")
    A("s_cmp_eq_u32 s62, 1")
    A("s_waitcnt lgkmcnt(0)")
    for i in range(2):
        A(f"v_pk_add_f32 v[{R0 + 2 * i}:{R0 + 2 * i + 1}], v[{R0 + 2 * i}:{R0 + 2 * i + 1}], v[{R0 + 4 + 2 * i}:{R0 + 5 + 2 * i}]")
    A(f"v_pk_add_f32 v[{R0}:{R0 + 1}], v[{R0}:{R0 + 1}], v[{R0 + 2}:{R0 + 3}]")
    A(f"v_add_f32 v{R0}, v{R0}, v{R0 + 1}")
    A(f"v_mul_f32 v{R0}, v{R0}, v{vAl}")
    A(f"v_mov_b32_dpp v{R0 + 1}, v{R0} quad_perm:[3,3,3,3] {FULL}")
    A(f"v_perm_b32 v{R0}, v{R0}, v{R0 + 1}, v{vM}")
    A(f"v_cndmask_b32 v{R0}, v{R0}, v{vL}, s[50:51]")
    A("s_cbranch_scc0 L_pubfar")
    A(f"global_store_dword v67, v{R0}, s[38:39]")
    A("L_published:")
    for _ in range(pad2):
        A("s_nop 0")
    stamp_at(5)
    A("s_cmp_lt_u32 s7, 14")
    A("s_cbranch_scc1 L_ffn")
    A("s_cmp_lt_u32 s7, 16")
    A("s_cbranch_scc1 L_final")
    A(f"s_lshl_b32 s4, s61, 5\nv_lshrrev_b32 v16, 3, v0\nv_add_u32 v16, s4, v16\nv_mul_u32_u24 v16, {P1_STRIDE}, v16")
    A("s_and_b32 s4, s13, 1\ns_lshl_b32 s4, s4, 1\ns_lshr_b32 s5, s3, 2\ns_add_u32 s4, s4, s5")
    A(f"s_and_b32 s5, s3, 3\ns_lshl_b32 s5, s5, 2\ns_add_u32 s4, s4, s5\ns_lshl_b32 s4, s4, 7\ns_add_u32 s4, s4, {WS_P1}")
    A("v_and_b32 v17, 7, v0\nv_lshl_add_u32 v16, v17, 4, v16\nv_add_u32 v24, s4, v16")
    for pi in range(1, 4):
        A(f"v_add_u32 v{24 + pi}, {8 * pi * P1_STRIDE}, v24")
    A("s_mov_b32 s52, 0x04000c0c\ns_mov_b32 s53, 0x0706000c")
    A("s_mov_b32 s54, 0xffff0000\ns_mov_b32 s55, 0xffff0000\ns_mov_b32 s50, 0\ns_mov_b32 s51, -1")
    sigma(16, 17)
    A("v_bfe_u32 v17, v0, 2, 2\nv_lshl_add_u32 v16, v16, 3, v17\nv_lshlrev_b32 v16, 7, v16")
    A("v_and_b32 v17, 3, v0\nv_lshl_add_u32 v16, v17, 3, v16\nv_add_u32 v16, s58, v16")
    WB = 88

    A("v_mov_b32 v30, v16")
    A("s_lshl_b32 s4, s3, 8\nv_lshl_add_u32 v18, v0, 2, s4")
    A(f"s_lshl_b32 s4, s13, 11\ns_lshl_b32 s5, s14, 8\ns_add_u32 s4, s4, s5\ns_add_u32 s4, s4, {WS_P2}")
    A("v_lshlrev_b32 v19, 2, v0\nv_add_u32 v28, s4, v19")
    D0 = 120
    loads = [f"global_load_dwordx4 v[{D0 + 4 * pi}:{D0 + 4 * pi + 3}], v{24 + pi}, s[38:39] sc1" for pi in range(4)]
    def bweights():
        for tau in range(4):
            for t in range(2):
                r = WB + 4 * tau + 2 * t
                A(f"ds_read_b64_tr_b16 v[{r}:{r + 1}], v30 offset:{L_W + 512 * t + 32 * tau}")
    A("s_waitcnt vmcnt(1)")
    stamp_at(8)
    poll("L_poll1", loads, range(120, 136), 31, between=bweights)
    stamp_at(6)
    A(f"v_max3_f32 v16, v{D0 + 3}, v{D0 + 7}, v{D0 + 11}\nv_max_f32 v16, v16, v{D0 + 15}")
    for pi in range(2):
        A(f"v_perm_b32 v{136 + pi}, v{D0 + 4 * pi + 2}, v{D0 + 4 * pi + 1}, s52")
    A(f"v_max_f32_dpp v16, v16, v16 row_ror:8 {FULL}")
    A("v_mov_b32 v17, v16")
    for pi in range(2, 4):
        A(f"v_perm_b32 v{136 + pi}, v{D0 + 4 * pi + 2}, v{D0 + 4 * pi + 1}, s52")
    A("v_permlane16_swap_b32 v16, v17")
    A("v_max_f32 v16, v16, v17")
    A("v_mov_b32 v17, v16")
    A("v_permlane32_swap_b32 v16, v17")
    A("v_max_f32 v16, v16, v17")
    for pi in range(4):
        A(f"v_sub_f32 v{140 + pi}, v{D0 + 4 * pi + 3}, v16")
    for pi in range(4):
        A(f"v_exp_f32 v{140 + pi}, v{140 + pi}")
        A(f"v_perm_b32 v{D0 + 4 * pi + 3}, v{136 + pi}, v{D0 + 4 * pi}, s53")
    A("v_pk_add_f32 v[16:17], v[140:141], v[142:143]")
    for hlf in range(2):
        A(f"v_pk_mul_f32 v[{D0 + 2 * hlf}:{D0 + 2 * hlf + 1}], v[140:141], v[{D0 + 2 * hlf}:{D0 + 2 * hlf + 1}] op_sel_hi:[0,1]")
    A("v_add_f32 v16, v16, v17")
    for pi in range(1, 4):
        w = f"v[{140 + (pi & 2)}:{141 + (pi & 2)}]"
        sel = "op_sel:[1,0,0] op_sel_hi:[1,1,1]" if pi & 1 else "op_sel_hi:[0,1,1]"
        for hlf in range(2):
            r = D0 + 2 * hlf
            A(f"v_pk_fma_f32 v[{r}:{r + 1}], {w}, v[{r + 4 * pi}:{r + 4 * pi + 1}], v[{r}:{r + 1}] {sel}")
        if pi == 1:
            A(f"v_add_f32_dpp v16, v16, v16 row_ror:8 {FULL}")
    A("v_mov_b32 v17, v16")
    A(f"v_permlane32_swap_b32 v{D0}, v{D0 + 1}\nv_permlane32_swap_b32 v{D0 + 2}, v{D0 + 3}\nv_permlane32_swap_b32 v16, v17")
    A(f"v_add_f32 v{D0}, v{D0}, v{D0 + 1}\nv_add_f32 v{D0 + 2}, v{D0 + 2}, v{D0 + 3}\nv_add_f32 v16, v16, v17")
    A("v_mov_b32 v17, v16")
    A(f"v_permlane16_swap_b32 v{D0}, v{D0 + 2}\nv_permlane16_swap_b32 v16, v17")
    A(f"v_add_f32 v{D0}, v{D0}, v{D0 + 2}\nv_add_f32 v16, v16, v17")
    A(f"v_add_f32_dpp v{D0}, v{D0}, v{D0} row_ror:8 {FULL}")
    A("v_rcp_f32 v16, v16")
    A(f"v_mul_f32 v{D0}, v{D0}, v16")
    A(f"v_mov_b32_dpp v{D0 + 1}, v{D0} quad_perm:[1,0,3,2] {FULL}")
    A(f"v_cvt_pk_bf16_f32 v{D0}, v{D0}, v{D0 + 1}")
    for e in range(4):
        A(f"v_mov_b32_dpp v{124 + e}, v{D0} row_newbcast:{2 * e} {FULL}")
    A("s_waitcnt lgkmcnt(0)")
    for tau in range(4):
        A(f"v_mfma_f32_16x16x32_bf16 v[{128 + 4 * tau}:{131 + 4 * tau}], v[124:127], v[{WB + 4 * tau}:{WB + 4 * tau + 3}], 0")
    A("v_cndmask_b32 v128, v128, v132, s[54:55]")
    A("v_cndmask_b32 v136, v136, v140, s[54:55]")
    A("v_cndmask_b32 v128, v128, v136, s[50:51]")
    A(f"ds_write_b32 v18, v128 offset:{L_B}")
    A("s_cmp_eq_u32 s3, 0")
    A("s_waitcnt lgkmcnt(0)")
    A("s_barrier")
    A("s_cbranch_scc0 L_bdone")
    for i in range(8):
        A(f"ds_read_b32 v{120 + i}, v19 offset:{L_B + 256 * i}")
    A("s_waitcnt lgkmcnt(0)")
    for i in range(2):
        A(f"v_pk_add_f32 v[{120 + 2 * i}:{121 + 2 * i}], v[{120 + 2 * i}:{121 + 2 * i}], v[{124 + 2 * i}:{125 + 2 * i}]")
    A("v_pk_add_f32 v[120:121], v[120:121], v[122:123]")
    A("v_add_f32 v120, v120, v121")
    store_quad(120, 28, fl=st2)
    A("L_bdone:")
    if wb:
        A("s_cmp_eq_u32 s3, 1\ns_cbranch_scc0 L_nowb\ns_cmp_eq_u32 s7, 16\ns_cbranch_scc0 L_nowb")
        A("buffer_wbl2 sc1")
        A("L_nowb:")
    stamp_at(7)
    stamp_store()
    A("s_endpgm")
    A("L_pubfar:")
    A("s_nop 0")
    store_quad(R0, 67)
    A("s_branch L_published")
    A("L_ffn:")
    vCol = 65
    A("v_and_b32 v17, 7, v0\nv_bfe_u32 v16, v0, 3, 2\nv_lshl_add_u32 v16, v17, 2, v16")
    A("v_and_b32 v18, 32, v0\nv_add_u32 v16, v16, v18")
    A(f"s_lshl_b32 s4, s3, 6\nv_add_u32 v{vCol}, s4, v16")
    A(f"v_lshlrev_b32 v29, 1, v{vCol}")
    A(f"ds_read_u16_d16_hi v64, v29 offset:{L_X}")
    A(f"s_lshl_b32 s4, s3, 8\ns_add_u32 s4, s4, {WS_P2}")
    A("v_lshrrev_b32 v18, 3, v0\nv_lshlrev_b32 v19, 12, v18\nv_lshl_add_u32 v16, v17, 4, v19\nv_add_u32 v20, s4, v16")
    A("v_lshrrev_b32 v18, 4, v0\nv_and_b32 v17, 15, v0")
    A(f"s_lshl_b32 s4, s15, 11\ns_add_u32 s4, s4, {WS_P3}\ns_lshl_b32 s5, s3, 8\ns_add_u32 s4, s4, s5")
    A("v_lshl_add_u32 v22, v0, 2, s4")
    A("s_lshl_b32 s5, s3, 4\nv_mov_b32 v23, s5")
    A("v_and_b32 v24, 7, v0\nv_lshlrev_b32 v24, 4, v24")
    A("s_mov_b32 s63, 0x42800000\ns_mov_b32 s54, 0xffff0000\ns_mov_b32 s55, 0xffff0000")
    A("v_mov_b32 v67, 0x3b000000\nv_mov_b32 v68, 0x3727c5ac\nv_mov_b32 v69, 0xbdd2d3e8\nv_mov_b32 v70, 0xc0135761")
    for i in range(4):
        A(f"v_mov_b32 v{72 + i}, 0x3f803f80")
    A("s_lshl_b32 s4, s3, 7\nv_lshl_add_u32 v25, v18, 4, s4")
    A("v_lshlrev_b32 v27, 2, v0\ns_lshl_b32 s5, s3, 8\nv_add_u32 v26, s5, v27")
    A("v_lshl_add_u32 v28, v0, 1, s4")
    A("v_bfe_u32 v16, v0, 2, 2\nv_lshl_add_u32 v16, v18, 3, v16\nv_lshlrev_b32 v16, 5, v16")
    A("v_and_b32 v17, 3, v0\nv_lshl_add_u32 v16, v17, 3, v16\nv_add_u32 v16, s57, v16")
    GW = 88
    DW = 104

    def dreads():
        for r in range(16):
            if r == 14:
                A("s_waitcnt lgkmcnt(0)")
            A(f"ds_read_u16_d16_hi v{DW + r}, v28 offset:{L_W + 32768 + 1024 * r}")
    if dsplit:
        A("s_barrier")
        dreads()
        A("s_waitcnt lgkmcnt(0)")
    A("s_barrier")
    stamp_at(11)

    def cweights():
        for mat in range(2):
            for kap in range(2):
                for t in range(2):
                    r = GW + 8 * mat + 4 * kap + 2 * t
                    A(f"ds_read_b64_tr_b16 v[{r}:{r + 1}], v16 offset:{L_W + 16384 * mat + 1024 * kap + 128 * t}")
        A("s_waitcnt lgkmcnt(0)")
        A(f"v_mfma_f32_16x16x32_bf16 v[140:143], v[72:75], v[{GW}:{GW + 3}], 0")
        A(f"v_mfma_f32_16x16x32_bf16 v[144:147], v[72:75], v[{GW + 8}:{GW + 11}], 0")
        A(f"v_mfma_f32_16x16x32_bf16 v[140:143], v[72:75], v[{GW + 4}:{GW + 7}], v[140:143]")
        A(f"v_mfma_f32_16x16x32_bf16 v[144:147], v[72:75], v[{GW + 12}:{GW + 15}], v[144:147]")
        if not dsplit:
            dreads()
        A("v_cndmask_b32 v66, v140, v144, s[54:55]")
        stamp_at(13)
    loads = [f"global_load_dwordx4 v[{120 + 4 * i}:{123 + 4 * i}], v20, s[38:39] offset:{2048 * (i >> 1) + 128 * (i & 1)} {ld2}" for i in range(4)]
    poll("L_poll2", loads, range(120, 136), 31, between=cweights)
    stamp_at(6)
    for e in range(4):
        A(f"v_pk_add_f32 v[{120 + 2 * e}:{121 + 2 * e}], v[{120 + 2 * e}:{121 + 2 * e}], v[{128 + 2 * e}:{129 + 2 * e}]")
    for e in range(4):
        A(f"v_permlane32_swap_b32 v{120 + e}, v{124 + e}")
    A("v_pk_add_f32 v[120:121], v[120:121], v[124:125]\nv_pk_add_f32 v[122:123], v[122:123], v[126:127]")
    A("v_permlane16_swap_b32 v120, v122\nv_permlane16_swap_b32 v121, v123")
    A("v_pk_add_f32 v[122:123], v[120:121], v[122:123]")
    A("v_add_f32_dpp v120, v122, v122 row_ror:8 row_mask:0xf bank_mask:0x3")
    A("v_add_f32_dpp v120, v123, v123 row_ror:8 row_mask:0xf bank_mask:0xc")
    A("v_add_f32 v120, v120, v64")
    A("v_cvt_pk_bf16_f32 v121, v120, v120")
    A(f"ds_write_b16 v29, v121 offset:{L_HN}")
    A("v_lshlrev_b32 v120, 16, v121")
    A("v_readfirstlane_b32 s4, v120")
    A("s_waitcnt lgkmcnt(0)")
    A(f"ds_read_b128 v[124:127], v25 offset:{L_HN}")
    A(f"ds_read_b128 v[128:131], v25 offset:{L_HN + 64}")
    A("v_subrev_f32 v140, s4, v120")
    A("v_mov_b32 v142, s4")
    A("v_mul_f32 v141, v140, v140")
    steps = [f"{m} {FULL}" for m in ("row_shr:1", "row_shr:2", "row_shr:4", "row_shr:8")] + ["row_bcast:15 row_mask:0xa bank_mask:0xf", "row_bcast:31 row_mask:0xc bank_mask:0xf"]
    mf = [f"v_mfma_f32_16x16x32_bf16 v[132:135], v[124:127], v[{GW}:{GW + 3}], 0",
          f"v_mfma_f32_16x16x32_bf16 v[136:139], v[124:127], v[{GW + 8}:{GW + 11}], 0",
          f"v_mfma_f32_16x16x32_bf16 v[132:135], v[128:131], v[{GW + 4}:{GW + 7}], v[132:135]",
          f"v_mfma_f32_16x16x32_bf16 v[136:139], v[128:131], v[{GW + 12}:{GW + 15}], v[136:139]"]
    for k, m in enumerate(steps):
        A(f"v_add_f32_dpp v140, v140, v140 {m}")
        A(f"v_add_f32_dpp v141, v141, v141 {m}")
        if k == 1:
            A("s_waitcnt lgkmcnt(0)")
            stamp_at(8)
            A(mf[0])
            A(mf[1])
        if k == 2:
            A(mf[2])
            A(mf[3])
    A("s_mov_b32 exec_lo, 0\ns_mov_b32 exec_hi, 0x80000000")
    A(f"ds_write_b96 v23, v[140:142] offset:{L_H}")
    A("s_mov_b32 exec_lo, -1\ns_mov_b32 exec_hi, 0")
    A("v_cndmask_b32 v66, v132, v136, s[54:55]")
    A("s_mov_b64 exec, -1")
    A(f"ds_write_b32 v26, v66 offset:{L_B}")
    A("s_waitcnt lgkmcnt(0)")
    stamp_at(9)
    A("s_barrier")
    A(f"ds_read_b96 v[124:126], v24 offset:{L_H}")
    for i in range(8):
        A(f"ds_read_b32 v{128 + i}, v27 offset:{L_B + 256 * i}")
    A("s_waitcnt lgkmcnt(0)" if stamps else "s_waitcnt lgkmcnt(8)")
    stamp_at(10)
    x8 = ("quad_perm:[1,0,3,2]", "quad_perm:[2,3,0,1]", "row_half_mirror")
    A("v_fma_f32 v127, v126, s63, v124")
    A("v_add_f32 v124, v124, v124")
    A("s_waitcnt lgkmcnt(0)" if stamps else "s_waitcnt lgkmcnt(4)")
    A(f"v_add_f32_dpp v127, v127, v127 {x8[0]} {FULL}")
    A("v_pk_add_f32 v[128:129], v[128:129], v[130:131]")
    A("s_waitcnt lgkmcnt(0)")
    A(f"v_add_f32_dpp v127, v127, v127 {x8[1]} {FULL}")
    A("v_pk_add_f32 v[132:133], v[132:133], v[134:135]")
    A("v_pk_add_f32 v[128:129], v[128:129], v[132:133]")
    A(f"v_add_f32_dpp v127, v127, v127 {x8[2]} {FULL}")
    A("v_add_f32 v120, v128, v129")
    A("v_add_f32 v121, v128, v129")
    A("v_mul_f32 v127, 0x3b000000, v127")
    A("v_sub_f32 v126, v127, v126")
    A("v_permlane32_swap_b32 v120, v121")
    A("v_fma_f32 v124, v126, s63, -v124")
    A("v_fma_f32 v125, v126, v124, v125")
    A("v_fma_f32 v122, -v127, v121, v120")
    A("v_fma_f32 v121, -v127, v121, v120")
    A(f"v_add_f32_dpp v125, v125, v125 {x8[0]} {FULL}")
    A("v_mov_b32 v120, v122")
    A(f"v_add_f32_dpp v125, v125, v125 {x8[1]} {FULL}")
    A("v_permlane16_swap_b32 v120, v121")
    A(f"v_add_f32_dpp v125, v125, v125 {x8[2]} {FULL}")
    A("v_fma_f32 v125, v125, v67, v68")
    A("v_rsq_f32 v125, v125")
    A("v_mul_f32 v120, v120, v125")
    A("v_mul_f32 v121, v121, v125")
    A("v_mul_f32 v122, v120, v120")
    A("v_mul_f32 v121, v120, v121")
    A("v_fma_f32 v122, v122, v69, v70")
    A("v_mul_f32 v122, v122, v120")
    A("v_exp_f32 v122, v122")
    A("v_add_f32 v122, 1.0, v122")
    A("v_rcp_f32 v122, v122")
    A("v_mul_f32 v120, v121, v122")
    for r in range(16):
        op = "mul" if r < 4 else "fmac"
        A(f"v_{op}_f32_dpp v{124 + (r & 3)}, v120, v{DW + r} row_newbcast:{r} {FULL}")
    A("v_pk_add_f32 v[124:125], v[124:125], v[126:127]")
    A("v_add_f32 v124, v124, v125")
    store_quad(124, 22, fl=st3)
    stamp_at(7)
    stamp_store()
    A("s_endpgm")
    A("L_final:")
    A("s_barrier")
    A("s_sub_u32 s15, s7, 14\ns_lshl_b32 s4, s6, 1\ns_add_u32 s15, s15, s4")
    A("v_and_b32 v16, 7, v0\nv_lshrrev_b32 v17, 3, v0\nv_lshlrev_b32 v17, 11, v17\nv_lshl_add_u32 v17, v16, 4, v17")
    A("v_and_b32 v22, 31, v0\ns_lshl_b32 s4, s15, 6\nv_lshl_add_u32 v18, v22, 1, s4")
    A("v_lshlrev_b32 v22, 2, v22")
    sigma(23, 24)
    A("v_lshl_add_u32 v23, v16, 2, v23\nv_lshl_add_u32 v19, v23, 1, s4")
    A(f"ds_read_u16_d16_hi v19, v19 offset:{L_X}")
    A("s_lshl_b32 s4, s3, 7\nv_lshl_add_u32 v23, v23, 2, s4")
    A(f"s_lshl_b32 s4, s3, 15\ns_add_u32 s4, s4, {WS_P3}")
    A("s_cmp_eq_u32 s3, 7")
    A(f"s_cselect_b32 s4, {WS_P2}, s4")
    A("s_lshl_b32 s5, s15, 7\ns_add_u32 s4, s4, s5")
    A("v_add_u32 v20, s4, v17\nv_add_u32 v21, 0x4000, v20")
    loads = [f"global_load_dwordx4 v[{120 + 4 * i}:{123 + 4 * i}], v{20 + i}, s[38:39] {ld3}" for i in range(2)]
    poll("L_poll3", loads, range(120, 128), 16)
    stamp_at(6)
    for e in range(4):
        A(f"v_add_f32 v{120 + e}, v{120 + e}, v{124 + e}")
    scatter4(120)
    A(f"v_add_f32_dpp v120, v120, v120 row_ror:8 {FULL}")
    A("s_cmp_eq_u32 s3, 7")
    A("s_cbranch_scc0 L_dnoh")
    A("s_waitcnt lgkmcnt(0)")
    A("v_add_f32 v120, v120, v19")
    rbf(120)
    A("L_dnoh:")
    A("s_mov_b32 exec_lo, 0x00ff00ff\ns_mov_b32 exec_hi, 0x00ff00ff")
    A(f"ds_write_b32 v23, v120 offset:{L_B}")
    A("s_mov_b64 exec, -1")
    A("s_cmp_eq_u32 s3, 0")
    A("s_waitcnt lgkmcnt(0)")
    A("s_barrier")
    A("s_cbranch_scc0 L_ddone")
    for i in range(8):
        A(f"ds_read_b32 v{120 + i}, v22 offset:{L_B + 128 * i}")
    A("s_waitcnt lgkmcnt(0)")
    for i in range(2):
        A(f"v_pk_add_f32 v[{120 + 2 * i}:{121 + 2 * i}], v[{120 + 2 * i}:{121 + 2 * i}], v[{124 + 2 * i}:{125 + 2 * i}]")
    A("v_pk_add_f32 v[120:121], v[120:121], v[122:123]")
    A("v_add_f32 v120, v120, v121")
    if perturb:
        import struct
        kind, val = perturb
        h = hex(struct.unpack("<I", struct.pack("<f", val))[0])
        if kind == "add": A(f"v_add_f32 v120, {h}, v120")
        if kind == "mul": A(f"v_mul_f32 v120, {h}, v120")
        if kind == "one":
            A("s_cmp_eq_u32 s15, 0\ns_cselect_b32 s4, 1, 0\ns_mov_b32 s5, 0\ns_mov_b64 exec, s[4:5]")
            A(f"v_add_f32 v120, {h}, v120\ns_mov_b64 exec, -1")
    A(f"v_mov_b32_dpp v121, v120 quad_perm:[1,0,3,2] {FULL}")
    A("v_cvt_pk_bf16_f32 v120, v120, v121")
    A("s_mov_b64 exec, 0x55555555")
    A("global_store_dword v18, v120, s[34:35]")
    A("L_ddone:")
    stamp_at(7)
    stamp_store()
    A("s_endpgm")

    for _ in range(pad3):
        A("s_nop 0")
    A("L_service:")
    A("s_setprio 3")
    A(f"v_mov_b32 v98, {L_F}\nv_mov_b32 v99, 0")
    A("ds_write_b32 v98, v99")
    A("ds_write_b32 v98, v99 offset:8")
    A("ds_write_b32 v98, v99 offset:12")
    A("s_waitcnt lgkmcnt(0)")
    A("s_barrier")
    for i in range(4):
        A(f"v_mov_b32 v{100 + i}, -1")
    roles()
    p1slot("s4")
    A("v_add_u32 v104, s4, v9")
    A("s_cmp_eq_u32 s7, 0")
    A("s_waitcnt lgkmcnt(0)")
    if "svcoff" in xp:
        A("s_branch L_svcbar")
    A("s_cbranch_scc0 L_qcleared")
    A(f"s_lshl_b32 s10, s60, 13\nv_add_u32 v3, s10, v9\nv_add_u32 v8, 0x1000, v3")
    for i in range(8):
        A(f"global_store_dwordx4 v{3 if i < 4 else 8}, v[100:103], s[38:39] offset:{1024 * (i & 3)} sc1")
    A(f"s_lshl_b32 s10, s60, 7\ns_add_u32 s10, s10, {WS_F}\nv_add_u32 v3, s10, v9")
    A(f"s_lshl_b32 s10, s6, 7\ns_add_u32 s10, s10, {WS_G}\nv_add_u32 v8, s10, v9")
    A("s_mov_b64 exec, 0xff")
    A("global_store_dwordx4 v3, v[100:103], s[38:39] sc1")
    A("global_store_dwordx4 v8, v[100:103], s[38:39] sc1")
    A("s_mov_b64 exec, -1")
    A("L_qcleared:")
    nyoung = 0
    if "noclear" not in xp:
        A("global_store_dwordx4 v104, v[100:103], s[38:39] sc1")
        A("global_store_dwordx4 v104, v[100:103], s[38:39] offset:1024 sc1")
        nyoung += 2
        A("s_cmp_lt_u32 s7, 14")
        A("s_cbranch_scc0 L_noclr3")
        A(f"s_lshl_b32 s4, s15, 11\ns_add_u32 s4, s4, {WS_P3}\nv_add_u32 v105, s4, v9")
        A("global_store_dwordx4 v105, v[100:103], s[38:39] sc1")
        A("global_store_dwordx4 v105, v[100:103], s[38:39] offset:1024 sc1")
        A("L_noclr3:")
        A("s_cmp_ge_u32 s7, 16")
        A("s_cbranch_scc0 L_noclr2")
        A(f"s_lshl_b32 s4, s13, 11\ns_lshl_b32 s5, s14, 8\ns_add_u32 s4, s4, s5\ns_add_u32 s4, s4, {WS_P2}\nv_add_u32 v105, s4, v9")
        A("s_mov_b64 exec, 0xffff")
        A("global_store_dwordx4 v105, v[100:103], s[38:39] sc1")
        A("s_mov_b64 exec, -1")
        A("L_noclr2:")
    stamp_at(1)
    A("v_lshlrev_b32 v96, 5, v0")
    A("s_cmp_eq_u32 s7, 0")
    A("s_cbranch_scc0 L_noqflag")
    A("s_lshl_b32 s4, s60, 5\nv_mov_b32 v104, s4\nv_mov_b32 v105, 1")
    A(f"s_waitcnt vmcnt({4 if 'noclear' not in xp else 0})")
    A("s_mov_b64 exec, 1")
    A("global_store_dword v104, v105, s[36:37] sc1")
    A("s_mov_b64 exec, -1")
    A("L_noqflag:")
    ldswait("L_waitwq", 12, 8)
    A(f"ds_read_b128 v[4:7], v9 offset:{L_X}")
    A("s_waitcnt lgkmcnt(0)")
    stamp_at(2)
    X = list(range(8, 16))
    X[1] = 3
    for i in range(4):
        A(f"v_lshlrev_b32 v{X[2 * i]}, 16, v{4 + i}")
        A(f"v_and_b32 v{X[2 * i + 1]}, 0xffff0000, v{4 + i}")
    ln_stats(X, 16, 17, 18, 19, 20, list(range(22, 30)))
    ln_apply(X, 16, 17, 18, list(range(22, 30)))
    for i in range(4):
        A(f"v_cvt_pk_bf16_f32 v{4 + i}, v{X[2 * i]}, v{X[2 * i + 1]}")
    A(f"ds_write_b128 v9, v[4:7] offset:{L_HN}")
    A(f"s_and_b32 s4, s7, {KS - 1}\ns_lshl_b32 s4, s4, {10 - KL}\nv_lshrrev_b32 v17, 4, v0\nv_lshl_add_u32 v16, v17, 4, s4")
    A("v_bfe_u32 v18, v0, 2, 2\nv_lshl_add_u32 v17, v17, 3, v18\nv_lshlrev_b32 v17, 7, v17\nv_and_b32 v18, 3, v0\nv_lshl_add_u32 v17, v18, 3, v17")
    A("s_waitcnt lgkmcnt(0)")
    NK = NQ // 4
    for k in range(NK):
        A(f"ds_read_b128 v[{32 + 4 * k}:{35 + 4 * k}], v16 offset:{L_HN + 64 * k}")
    stamp_at(3)
    A("s_mov_b64 exec, 0xff")
    A("global_load_dword v97, v96, s[36:37] sc1")
    A("s_mov_b64 exec, -1")
    for k in range(NK):
        A("s_waitcnt lgkmcnt(0)")
        b = 64 + 16 * (k & 1)
        for tau in range(4):
            for t in range(2):
                r = b + 4 * tau + 2 * t
                A(f"ds_read_b64_tr_b16 v[{r}:{r + 1}], v17 offset:{L_W + 4096 * k + 512 * t + 32 * tau}")
        if k > 0:
            bp = 64 + 16 * ((k - 1) & 1)
            for tau in range(4):
                c = "0" if k == 1 else f"v[{112 + 4 * tau}:{115 + 4 * tau}]"
                A(f"v_mfma_f32_16x16x32_bf16 v[{112 + 4 * tau}:{115 + 4 * tau}], v[{28 + 4 * k}:{31 + 4 * k}], v[{bp + 4 * tau}:{bp + 4 * tau + 3}], {c}")
    A("s_waitcnt lgkmcnt(0)")
    for tau in range(4):
        A(f"v_mfma_f32_16x16x32_bf16 v[{112 + 4 * tau}:{115 + 4 * tau}], v[{28 + 4 * NK}:{31 + 4 * NK}], v[{80 + 4 * tau}:{83 + 4 * tau}], v[{112 + 4 * tau}:{115 + 4 * tau}]")
    A(f"s_lshl_b32 s4, s60, {11 + KL}\ns_and_b32 s5, s7, {KS - 1}\ns_lshl_b32 s5, s5, 11\ns_add_u32 s4, s4, s5\ns_lshr_b32 s5, s7, {KL}\ns_lshl_b32 s5, s5, 8\ns_add_u32 s4, s4, s5")
    A("v_lshl_add_u32 v17, v0, 2, s4")
    for tau in range(1, 4):
        A(f"v_mov_b32_dpp v112, v{112 + 4 * tau} quad_perm:[0,1,2,3] row_mask:{hex(1 << tau)} bank_mask:0xf")
    for i in (1, 2, 3):
        A(f"v_mov_b32_dpp v{112 + i}, v112 quad_perm:[{i},{i},{i},{i}] {FULL}")
    A("L_qdone:")
    A(f"s_lshl_b32 s4, s60, 5\ns_add_u32 s4, s4, s7\ns_lshl_b32 s4, s4, 2\ns_add_u32 s4, s4, {WS_F}\nv_mov_b32 v18, s4")
    A(f"s_lshl_b32 s4, s6, {11 + KL}\nv_add_u32 v19, s4, v9\nv_add_u32 v20, 0x1000, v19")
    A("s_getreg_b32 s62, hwreg(HW_REG_XCC_ID, 0, 4)\nv_mov_b32 v21, s62")
    A("s_lshl_b32 s4, 1, s60\ns_lshl_b32 s5, 1, s6\ns_or_b32 s4, s4, s5")
    A("s_mov_b32 s5, 0")
    stamp_at(4)
    if "svc1" in xp: A("s_branch L_svcbar2")
    A("L_pollf:")
    A("s_waitcnt vmcnt(0) lgkmcnt(0)")
    A("v_cmp_ne_u32 vcc, 1, v97")
    A("s_and_b32 s57, vcc_lo, s4")
    A("s_cbranch_scc0 L_pollf_ok")
    A(f"s_add_u32 s5, s5, 1\ns_cmp_lt_u32 s5, {SPIN_MAX}\ns_cbranch_scc0 L_pollf_ok")
    A("s_sleep 8")
    A("s_mov_b64 exec, 0xff")
    A("global_load_dword v97, v96, s[36:37] sc1")
    A("s_mov_b64 exec, -1")
    A("s_branch L_pollf")
    A("L_pollf_ok:")
    if KS == 2:
        A("s_cmp_lt_u32 s7, 16")
        A("s_cbranch_scc0 L_noqpub")
    A("s_mov_b32 exec_lo, 0x11111111\ns_mov_b32 exec_hi, 0x11111111")
    A("global_store_dwordx4 v17, v[112:115], s[38:39] sc1")
    A("L_noqpub:")
    A("s_mov_b64 exec, 1")
    A("global_store_dword v18, v21, s[38:39] sc1")
    A("s_mov_b64 exec, -1")
    stamp_at(5)
    if "svc2" in xp: A("s_branch L_svcbar2")
    if warm:
        A("s_getpc_b64 s[48:49]")
        A("L_pc:")
        A(f"s_sub_u32 s48, s48, L_pc-{NAME}_kernel\ns_subb_u32 s49, s49, 0")
        A(f"s_mov_b32 s4, L_codeend-{NAME}_kernel-16\nv_mov_b32 v2, v9\ns_mov_b32 s5, 0")
        A("L_warm:")
        A("v_min_u32 v3, s4, v2")
        A("global_load_dwordx4 v[128:131], v3, s[48:49]")
        A("v_add_u32 v2, 1024, v2\ns_add_u32 s5, s5, 1024\ns_cmp_lt_u32 s5, s4\ns_cbranch_scc1 L_warm")
    ldswait("L_waitpos", 8)
    poll("L_pollq", [f"global_load_dwordx4 v[{32 + 4 * i}:{35 + 4 * i}], v{19 + (i >> 2)}, s[38:39] offset:{1024 * (i & 3)} sc1" for i in range(2 * KS)],
         range(32, 32 + 8 * KS), 16, slp=qsleep)
    stamp_at(6)
    for e in range(8):
        A(f"v_add_f32 v{32 + e}, v{32 + e}, v{40 + e}")
        if KS == 4:
            A(f"v_add_f32 v{48 + e}, v{48 + e}, v{56 + e}")
    if KS == 4:
        for e in range(8):
            A(f"v_add_f32 v{32 + e}, v{32 + e}, v{48 + e}")
    for e in range(4):
        A(f"v_cvt_pk_bf16_f32 v{40 + e}, v{32 + 2 * e}, v{33 + 2 * e}")
    A("v_lshlrev_b32 v16, 3, v0")
    A(f"ds_write_b64 v16, v[40:41] offset:{L_Q}")
    A(f"ds_write_b64 v16, v[42:43] offset:{L_Q + 512}")
    A("v_mov_b32 v99, 1")
    A("s_waitcnt lgkmcnt(0)")
    A("ds_write_b32 v98, v99")
    stamp_at(7)
    if "svc4" in xp: A("s_branch L_svcbar2")
    A("s_mov_b32 s5, 0")
    A("L_pollf2:")
    A("s_mov_b64 exec, 0xff")
    A("global_load_dword v97, v96, s[36:37] sc1")
    A("s_waitcnt vmcnt(0)")
    A("v_cmp_ne_u32 vcc, 1, v97")
    A("s_mov_b64 exec, -1")
    A("s_cbranch_vccz L_pollf2_ok")
    A(f"s_add_u32 s5, s5, 1\ns_cmp_lt_u32 s5, {SPIN_MAX}\ns_cbranch_scc1 L_pollf2")
    A("L_pollf2_ok:")
    stamp_at(8)
    A(f"v_add_u32 v19, {WS_F}, v9")
    poll("L_pollall", ["global_load_dwordx4 v[32:35], v19, s[38:39] sc1"], range(32, 36), 16, slp=16)
    stamp_at(9)
    A("v_xor_b32 v32, v32, v21\nv_xor_b32 v33, v33, v21\nv_xor_b32 v34, v34, v21\nv_xor_b32 v35, v35, v21")
    A("v_or_b32 v32, v32, v33\nv_or3_b32 v32, v32, v34, v35")
    A("v_cmp_ne_u32 vcc, 0, v32")
    A("s_lshl_b32 s4, s60, 3\ns_lshr_b64 s[4:5], vcc, s4\ns_and_b32 s4, s4, 0xff")
    A("s_cselect_b32 s4, 0, 1" if local and "far" not in xp else "s_mov_b32 s4, 0")
    A("L_svcend:")
    A("s_mov_b32 s63, s4")
    A("v_mov_b32 v99, s4")
    A("ds_write_b32 v98, v99 offset:4")
    A(f"s_lshl_b32 s4, s6, 7\ns_add_u32 s4, s4, {WS_G}\nv_and_b32 v16, 31, v0\nv_lshl_add_u32 v16, v16, 2, s4")
    A("s_lshl_b32 s5, s7, 2\ns_add_u32 s4, s4, s5\nv_mov_b32 v17, s4\nv_mov_b32 v18, 0")
    A(f"s_and_b32 s4, s7, 15\ns_mul_i32 s4, s4, {32 * 3584}\ns_mul_i32 s5, s6, 448\ns_andn2_b32 s5, s5, 127\ns_add_u32 s4, s4, s5")
    A("v_lshrrev_b32 v21, 5, v0\nv_mul_u32_u24 v21, 3584, v21\nv_and_b32 v22, 31, v0\nv_lshl_add_u32 v21, v22, 4, v21\nv_add_u32 v21, s4, v21")
    A("v_lshrrev_b32 v22, 1, v0\nv_mul_u32_u24 v22, 3584, v22\nv_and_b32 v23, 1, v0\nv_lshl_add_u32 v22, v23, 4, v22\ns_lshl_b32 s4, s15, 5\nv_add_u32 v22, s4, v22")
    A("s_lshl_b32 s4, s15, 14\nv_add_u32 v23, s4, v9")
    A("s_waitcnt lgkmcnt(0)")
    A("s_barrier")
    if gsync:
        A("s_cmp_eq_u32 s63, 1")
        A("s_cbranch_scc0 L_nosig")
        A("s_mov_b64 exec, 1")
        A("global_store_dword v17, v18, s[38:39]")
        A("s_mov_b64 exec, -1")
        A("L_nosig:")
    A("s_cmp_ge_u32 s7, 16")
    A("s_cbranch_scc1 L_svcout")
    if gsync:
        A("s_cmp_eq_u32 s63, 1")
        A("s_cbranch_scc0 L_nog")
        A("s_barrier")
        A("global_load_dword v19, v16, s[38:39] sc1")
        A("s_barrier")
        A("s_mov_b32 s5, 0")
        A("L_pollg:")
        A("s_waitcnt vmcnt(0)")
        A("v_cmp_eq_u32 vcc, -1, v19")
        A("s_cbranch_vccz L_gok")
        A(f"s_add_u32 s5, s5, 1\ns_cmp_lt_u32 s5, {SPIN_MAX}\ns_cbranch_scc0 L_gok")
        A(f"s_sleep {gsleep}")
        A("global_load_dword v19, v16, s[38:39] sc1")
        A("s_branch L_pollg")
        A("L_nog:")
    A("s_barrier")
    if not early:
        A("s_barrier")
    A("L_gok:")
    stamp_at(10)

    def wloop(label, n, lds, body):
        A(f"s_mov_b32 s5, {n}")
        if lds is not None:
            A(f"s_mov_b32 m0, {lds}")
        A(f"{label}:")
        body()
        A(f"s_sub_u32 s5, s5, 1\ns_cmp_lg_u32 s5, 0\ns_cbranch_scc1 {label}")
    if "now" not in xp:
        if cdelay:
            A(f"s_sleep {cdelay}")

        def b_pre():
            A("global_load_dwordx4 v[32:35], v21, s[28:29]")
            A("global_load_dwordx4 v[32:35], v21, s[30:31]")
            A("v_add_u32 v21, 7168, v21")
        if pref:
            wloop("L_wpre", 16, None, b_pre)
        if early:
            assert not gsync
            A("s_barrier")
        A("s_cmp_lt_u32 s7, 14")
        A("s_cbranch_scc0 L_wdone")

        def b_down():
            A(f"global_load_lds_dwordx4 v23, s[32:33]{wntf}")
            A("v_add_u32 v23, 1024, v23\ns_add_u32 m0, m0, 1024")
        wloop("L_wdown", 16, L_W + 32768, b_down)
        A("s_waitcnt vmcnt(16)")
        stamp_at(11)

        def b_gu():
            A("global_load_lds_dwordx4 v22, s[28:29]")
            A("s_add_u32 m0, m0, 16384")
            A("global_load_lds_dwordx4 v22, s[30:31]")
            A(f"v_add_u32 v22, {32 * 3584}, v22\ns_sub_u32 m0, m0, {16384 - 1024}")
        wloop("L_wgu", 16, L_W, b_gu)
        if dsplit:
            A("s_waitcnt vmcnt(32)")
            A("s_barrier")
        A("L_wdone:")
    elif dsplit:
        A("s_cmp_lt_u32 s7, 14\ns_cbranch_scc0 L_wdone\ns_barrier\nL_wdone:")
    A("s_waitcnt vmcnt(0)")
    stamp_at(12)
    if stamps:
        A("s_waitcnt lgkmcnt(0)")
        for i in range(16):
            A(f"v_writelane_b32 v4, s{64 + 2 * i}, {i}")
        A(f"v_lshlrev_b32 v5, 2, v0\nds_write_b32 v5, v4 offset:{L_G}\ns_waitcnt lgkmcnt(0)")
    A("s_barrier")
    A("s_endpgm")
    A("L_svcout:")
    if stamps:
        A("s_waitcnt lgkmcnt(0)")
        for i in range(16):
            A(f"v_writelane_b32 v4, s{64 + 2 * i}, {i}")
        A(f"v_lshlrev_b32 v5, 2, v0\nds_write_b32 v5, v4 offset:{L_G}\ns_waitcnt lgkmcnt(0)")
    A("s_barrier")
    A("s_barrier")
    A("s_endpgm")
    A("L_svcbar:")
    A("L_svcbar2:")
    A("v_mov_b32 v99, 1")
    A("ds_write_b32 v98, v99")
    A("s_mov_b32 s4, 0")
    A("s_branch L_svcend")
    A("L_end:")
    A("s_endpgm")
    A("L_codeend:")

    body = fix(C)
    out = HEADER
    out += f"; @launch grid=(256,1,1) block=(576,1,1) lds={LDS_BYTES}\n"
    out += '.amdgcn_target "amdgcn-amd-amdhsa--gfx950"\n.text\n'
    out += f".globl {NAME}_kernel\n.p2align 8\n.type {NAME}_kernel,@function\n{NAME}_kernel:\n"
    out += "\n".join(("" if l.endswith(":") else "    ") + l for l in body) + "\n"
    out += f""".section .rodata,"a"
.p2align 6
.amdhsa_kernel {NAME}_kernel
  .amdhsa_next_free_vgpr 168
  .amdhsa_next_free_sgpr 96
  .amdhsa_accum_offset 168
  .amdhsa_group_segment_fixed_size 0
  .amdhsa_kernarg_size 96
  .amdhsa_user_sgpr_count 2
  .amdhsa_user_sgpr_kernarg_segment_ptr 1
  .amdhsa_system_sgpr_workgroup_id_x 1
  .amdhsa_float_denorm_mode_32 3
.end_amdhsa_kernel
"""
    return out


if __name__ == "__main__":
    cfg = eval("dict(" + (sys.argv[2] if len(sys.argv) > 2 else "") + ")")
    open(sys.argv[1], "w").write(gen(**cfg))
```

```python
import sys
from asmlib import fix, VM

NAME = "sequential_preLN__gqa_block_cached__glu_gated_geglu__decode"
HEADER = open("cdna_kernels/" + NAME + ".s.ref").read().split("; Override launch")[0]

WS_Q = 0x0
WS_F = 0x10000
WS_G = 0x11000
WS_R = 0x12000
WS_P1 = 0x20000
P1_STRIDE = 2048
WS_P2 = 0xB0000
WS_P3 = 0xC0000
WS_STAMP = 0x200000
L_Q = 0
L_X = 1024
L_M = 2048
L_L = 2176
L_F = 2304
L_B = 2560
L_H = 4608
L_HN = 6656
L_G = 7680
L_W = 8704
L_K = L_W + 49152
KRING = 3
VRING = 5
LDS_BYTES = L_K + 8 * KRING * 4096

LOG2E = 0x3FB8AA3B
SCALE = 0x3DB504F3
FULL = "row_mask:0xf bank_mask:0xf"
SPIN_MAX = 20000


def gen(D=3, D2=4, nt=True, inter="wgtile", stamps=False, wnt=True, warm=True, sleep=1, qsleep=4,
        xp=(), masked=True, qrot=4, local=True, qpos=18, pref=True, fold=True, bpos=None, bwait=True, ppos=None, kfirst=True, wb=False, pad1=0, pad2=0, pad3=0, gsync=True, gsleep=2, cdelay=0, opos=None, enc=None, dsplit=True, early=False, gate=True, sclr='first', qearly=True, lpos='b1b', order=None, pm='S1g2GPDwU', dsleep=None, cfast=False, adapt=None, d2from=32, D3=None, d3from=56):
    C = []
    A = C.append
    ntf = " nt" if nt else ""
    wntf = " nt" if wnt else ""
    D2 = D if D2 is None else D2
    hmap = "xcd"; KS = 4; ld2 = ld3 = st2 = st3 = "sc1"; peel = False; late4 = True; cpos = ("end",) * 6; fastln = True; perturb = None
    bpos = (D + 3 if kfirst else D) if bpos is None else bpos
    KL = KS.bit_length() - 1
    NQ = 64 // KS
    QR = 2048 * KS

    def stamp_at(k):
        if stamps:
            A(f"s_memrealtime s[{64 + 2 * k}:{65 + 2 * k}]")

    def stamp_store():
        if not stamps:
            return
        A("s_waitcnt lgkmcnt(0)")
        if stamps == "dbg":
            lab = f"L_dbg{len(C)}"
            A("s_and_b32 s4, s3, 7\ns_cmp_eq_u32 s4, 0")
            A(f"s_cbranch_scc0 {lab}")
            A("s_not_b32 s64, s64")
            A("s_cmp_eq_u32 s3, 8")
            sel0 = (0, 1, 2, 4, 5, 6, 7)
            sel8 = (2, 4, 5, 6, 7, 8, 9)
            A("s_mov_b64 exec, -1")
            for i in range(7):
                A(f"s_cselect_b32 s4, s{64 + 2 * sel8[i]}, s{64 + 2 * sel0[i]}")
                A(f"v_writelane_b32 v4, s4, {i}")
            A("s_lshl_b32 s4, s3, 2\ns_add_u32 s4, s4, 4\nv_lshl_add_u32 v1, v0, 2, s4")
            A("s_mov_b64 exec, 0x7f")
            A("global_atomic_umax v1, v4, s[36:37] sc1")
            A(f"{lab}:")
            return
        lab = f"L_st{len(C)}"
        A(f"s_cmp_eq_u32 s3, 1\ns_cbranch_scc0 {lab}")
        A(f"s_mov_b64 exec, 0xffff\nv_lshlrev_b32 v5, 2, v0\nds_read_b32 v4, v5 offset:{L_G}")
        A(f"s_lshl_b32 s4, s2, 4\ns_add_u32 s4, s4, 8\ns_lshl_b32 s4, s4, 6\ns_add_u32 s4, s4, {WS_STAMP}\nv_add_u32 v5, s4, v5")
        A("s_waitcnt lgkmcnt(0)\nglobal_store_dword v5, v4, s[38:39]\ns_nop 1")
        A(f"{lab}:")
        A("s_mov_b64 exec, 1")
        A("s_lshl_b32 s4, s2, 4\ns_add_u32 s4, s4, s3\ns_lshl_b32 s4, s4, 6")
        A(f"s_add_u32 s4, s4, {WS_STAMP}")
        A("v_mov_b32 v1, s4")
        A("s_getreg_b32 s94, hwreg(HW_REG_XCC_ID)")
        A("s_lshl_b32 s92, s62, 16\ns_add_u32 s92, s92, s59")
        for q in range(4):
            for i in range(4):
                A(f"v_mov_b32 v{4 + i}, s{64 + 2 * (4 * q + i)}")
            A(f"global_store_dwordx4 v1, v[4:7], s[38:39] offset:{16 * q}")
            A("s_nop 1")

    def rowsum(a, op="add"):
        for s in (8, 4, 2, 1):
            A(f"v_{op}_f32_dpp v{a}, v{a}, v{a} row_ror:{s} {FULL}")

    def xrow(a, t, op="add"):
        A(f"v_mov_b32 v{t}, v{a}")
        A(f"v_permlane16_swap_b32 v{a}, v{t}")
        A(f"v_{op}_f32 v{a}, v{a}, v{t}")
        A(f"v_mov_b32 v{t}, v{a}")
        A(f"v_permlane32_swap_b32 v{a}, v{t}")
        A(f"v_{op}_f32 v{a}, v{a}, v{t}")

    def scatter4(r):
        A(f"v_permlane32_swap_b32 v{r}, v{r + 1}\nv_permlane32_swap_b32 v{r + 2}, v{r + 3}")
        A(f"v_add_f32 v{r}, v{r}, v{r + 1}\nv_add_f32 v{r + 2}, v{r + 2}, v{r + 3}")
        A(f"v_permlane16_swap_b32 v{r}, v{r + 2}")
        A(f"v_add_f32 v{r}, v{r}, v{r + 2}")

    def sigma(dst, t):
        A(f"v_bfe_u32 v{dst}, v0, 4, 1\nv_lshrrev_b32 v{t}, 5, v0\nv_lshl_add_u32 v{dst}, v{dst}, 1, v{t}")

    def rbf(a):
        A(f"v_cvt_pk_bf16_f32 v{a}, v{a}, v{a}")
        A(f"v_lshlrev_b32 v{a}, 16, v{a}")

    def ln_stats(vals, mean, den, rden, t0, t1, tmp):
        A(f"v_add_f32 v{t0}, v{vals[0]}, v{vals[1]}")
        A(f"v_add_f32 v{t1}, v{vals[2]}, v{vals[3]}")
        A(f"v_add_f32 v{mean}, v{vals[4]}, v{vals[5]}")
        A(f"v_add_f32 v{den}, v{vals[6]}, v{vals[7]}")
        A(f"v_add_f32 v{t0}, v{t0}, v{t1}")
        A(f"v_add_f32 v{mean}, v{mean}, v{den}")
        A(f"v_add_f32 v{mean}, v{mean}, v{t0}")
        rowsum(mean)
        xrow(mean, t0)
        A(f"v_mul_f32 v{mean}, 0x3b000000, v{mean}")
        for i in range(8):
            A(f"v_sub_f32 v{tmp[i]}, v{vals[i]}, v{mean}")
        A(f"v_mul_f32 v{den}, v{tmp[0]}, v{tmp[0]}")
        A(f"v_mul_f32 v{t1}, v{tmp[1]}, v{tmp[1]}")
        for i in range(2, 8, 2):
            A(f"v_fmac_f32 v{den}, v{tmp[i]}, v{tmp[i]}")
            A(f"v_fmac_f32 v{t1}, v{tmp[i + 1]}, v{tmp[i + 1]}")
        A(f"v_add_f32 v{den}, v{den}, v{t1}")
        rowsum(den)
        xrow(den, t0)
        A(f"v_mul_f32 v{den}, 0x3b000000, v{den}")
        A(f"v_cvt_pk_bf16_f32 v{t0}, v{mean}, v{den}")
        A(f"v_lshlrev_b32 v{mean}, 16, v{t0}")
        A(f"v_and_b32 v{den}, 0xffff0000, v{t0}")
        A(f"v_add_f32 v{den}, 0x3727c5ac, v{den}")
        rbf(den)
        A(f"v_sqrt_f32 v{t0}, v{den}")
        A(f"v_rsq_f32 v{t1}, v{den}")
        A(f"v_fma_f32 v{den}, -v{t0}, v{t0}, v{den}")
        A(f"v_mul_f32 v{t1}, 0.5, v{t1}")
        A(f"v_fma_f32 v{den}, v{den}, v{t1}, v{t0}")
        rbf(den)
        A(f"v_rcp_f32 v{rden}, v{den}")

    def ln_apply(xs, mean, den, rden, ts):
        for x in xs:
            A(f"v_sub_f32 v{x}, v{x}, v{mean}")
        for x in xs:
            A(f"v_cvt_pk_bf16_f32 v{x}, v{x}, v{x}")
        for x in xs:
            A(f"v_lshlrev_b32 v{x}, 16, v{x}")
        for x, t in zip(xs, ts):
            A(f"v_mul_f32 v{t}, v{x}, v{rden}")
        for x, t in zip(xs, ts):
            A(f"v_fma_f32 v{x}, -v{t}, v{den}, v{x}")
        for x, t in zip(xs, ts):
            A(f"v_fma_f32 v{x}, v{x}, v{rden}, v{t}")

    def ln2():
        A("v_mov_b32 v133, v132")
        for i in range(4):
            A(f"v_pk_add_f32 v[{124 + 2 * i}:{125 + 2 * i}], v[{124 + 2 * i}:{125 + 2 * i}], v[132:133] neg_lo:[0,1] neg_hi:[0,1]")
        A("v_pk_add_f32 v[134:135], v[124:125], v[126:127]")
        A("v_pk_mul_f32 v[136:137], v[124:125], v[124:125]")
        A("v_pk_add_f32 v[138:139], v[128:129], v[130:131]")
        A("v_pk_fma_f32 v[136:137], v[126:127], v[126:127], v[136:137]")
        A("v_pk_add_f32 v[134:135], v[134:135], v[138:139]")
        A("v_pk_fma_f32 v[136:137], v[128:129], v[128:129], v[136:137]")
        A("v_add_f32 v16, v134, v135")
        A("v_pk_fma_f32 v[136:137], v[130:131], v[130:131], v[136:137]")
        A("v_add_f32 v17, v136, v137")
        for m in ("row_shr:1", "row_shr:2", "row_shr:4", "row_shr:8"):
            A(f"v_add_f32_dpp v16, v16, v16 {m} {FULL} bound_ctrl:0")
            A(f"v_add_f32_dpp v17, v17, v17 {m} {FULL} bound_ctrl:0")
        for m in ("row_bcast:15 row_mask:0xa", "row_bcast:31 row_mask:0xc"):
            A(f"v_add_f32_dpp v16, v16, v16 {m} bank_mask:0xf")
            A(f"v_add_f32_dpp v17, v17, v17 {m} bank_mask:0xf")
        A("v_readlane_b32 s4, v16, 63")
        A("v_readlane_b32 s5, v17, 63")
        A("v_mov_b32 v18, 0x3b000000")
        A("v_mul_f32 v16, s4, v18")
        A("v_mul_f32 v17, s5, v18")
        A("v_fma_f32 v17, -v16, v16, v17")
        A("v_add_f32 v16, v16, v132")
        A("v_max_f32 v17, 0, v17")
        A("v_cvt_pk_bf16_f32 v18, v16, v17")
        A("v_and_b32 v17, 0xffff0000, v18")
        A("v_lshlrev_b32 v16, 16, v18")
        A("v_add_f32 v17, 0x3727c5ac, v17")
        A("v_sub_f32 v120, v120, v16")
        A("v_cvt_pk_bf16_f32 v18, v120, v17")
        A("v_and_b32 v17, 0xffff0000, v18")
        A("v_sqrt_f32 v17, v17")
        A("v_lshlrev_b32 v120, 16, v18")
        rbf(17)
        A("v_rcp_f32 v18, v17")
        A("v_mul_f32 v19, v120, v18")
        A("v_fma_f32 v120, -v19, v17, v120")
        A("v_fma_f32 v120, v120, v18, v19")

    def poll(label, loads, regs, t, slp=None, between=None):
        slp = sleep if slp is None else slp
        A("s_mov_b32 s59, 0")
        if between:
            for l in loads:
                A(l)
            between()
            A(f"s_branch {label}_chk")
        A(f"{label}:")
        for l in loads:
            A(l)
        if between:
            A(f"{label}_chk:")
        A("s_waitcnt vmcnt(0)")
        regs = list(regs)
        if len(regs) == 1:
            t = regs[0]
            rest = []
        elif len(regs) % 2 == 0:
            A(f"v_max_u32 v{t}, v{regs[0]}, v{regs[1]}")
            rest = regs[2:]
        else:
            A(f"v_max3_u32 v{t}, v{regs[0]}, v{regs[1]}, v{regs[2]}")
            rest = regs[3:]
        for i in range(0, len(rest), 2):
            A(f"v_max3_u32 v{t}, v{t}, v{rest[i]}, v{rest[i + 1]}")
        A(f"v_cmp_eq_u32 vcc, -1, v{t}")
        A(f"s_branch {label}_ok" if ("svc3" in xp and label in ("L_pollq", "L_pollall")) else f"s_cbranch_vccz {label}_ok")
        A("s_add_u32 s59, s59, 1")
        A(f"s_cmp_lt_u32 s59, {SPIN_MAX}")
        A(f"s_cbranch_scc0 {label}_ok")
        if masked:
            A("s_mov_b64 exec, vcc")
        if slp:
            A(f"s_sleep {slp}")
        A(f"s_branch {label}")
        A(f"{label}_ok:")
        if masked:
            A("s_mov_b64 exec, -1")

    def ldswait(label, off, val=None):
        A(f"v_mov_b32 v24, {L_F}\ns_mov_b32 s5, 0")
        A(f"{label}:")
        A(f"ds_read_b32 v25, v24 offset:{off}")
        A("s_waitcnt lgkmcnt(0)")
        A("v_cmp_ne_u32 vcc, 0, v25" if val is None else f"v_cmp_eq_u32 vcc, {val}, v25")
        A(f"s_cbranch_vccnz {label}_ok")
        A(f"s_add_u32 s5, s5, 1\ns_cmp_lt_u32 s5, {SPIN_MAX * 64}\ns_cbranch_scc0 {label}_ok")
        A("s_sleep 1")
        A(f"s_branch {label}")
        A(f"{label}_ok:")

    def store_quad(val, addr, lo="0x11111111", hi="0x11111111", fl="sc1"):
        for i in (1, 2, 3):
            A(f"v_mov_b32_dpp v{val + i}, v{val} quad_perm:[{i},{i},{i},{i}] {FULL}")
        A(f"s_mov_b32 exec_lo, {lo}\ns_mov_b32 exec_hi, {hi}")
        A(f"global_store_dwordx4 v{addr}, v[{val}:{val + 3}], s[38:39] {fl}")
        A("s_mov_b64 exec, -1")

    def roles():
        brot = 0 if local else 4
        A(f"s_add_u32 s61, s6, {brot}\ns_and_b32 s61, s61, 7")
        A("s_bfe_u32 s13, s7, 0x10003\ns_lshl_b32 s4, s61, 1\ns_add_u32 s13, s13, s4")
        A("s_and_b32 s14, s7, 7")
        A("s_mul_i32 s15, s6, 14\ns_add_u32 s15, s15, s7")

    def p1slot(dst):
        A(f"s_lshl_b32 {dst}, s6, 5\ns_add_u32 {dst}, {dst}, s7\ns_mul_i32 {dst}, {dst}, {P1_STRIDE}\ns_add_u32 {dst}, {dst}, {WS_P1}")

    stamp_at(0)
    A("s_load_dwordx16 s[16:31], s[0:1], 0")
    A("s_load_dwordx8 s[32:39], s[0:1], 64")
    A("s_cmp_ge_u32 s2, 256")
    A("s_cbranch_scc1 L_end")
    A("v_lshrrev_b32 v1, 6, v0")
    A("v_and_b32 v0, 63, v0")
    A("v_readfirstlane_b32 s3, v1")
    A("s_and_b32 s6, s2, 7")
    A("s_lshr_b32 s7, s2, 3")
    A(f"s_add_u32 s60, s6, {qrot}\ns_and_b32 s60, s60, 7")
    A("v_lshlrev_b32 v9, 4, v0")
    A("s_cmp_eq_u32 s3, 8")
    A("s_cbranch_scc1 L_service")
    def wqaddr():
        A("v_lshrrev_b32 v10, 3, v0\nv_and_b32 v11, 7, v0\nv_lshlrev_b32 v10, 13, v10\nv_lshl_add_u32 v10, v11, 4, v10")
        A("s_and_b32 s4, s7, 3\ns_lshl_b32 s4, s4, 3\ns_add_u32 s4, s4, s3\ns_lshl_b32 s4, s4, 7\ns_add_u32 s4, s4, s60\ns_lshl_b32 s4, s4, 3")
        A("s_lshr_b32 s5, s7, 2\ns_add_u32 s4, s4, s5\ns_lshl_b32 s4, s4, 7")
        A("v_add_u32 v10, s4, v10\nv_add_u32 v11, 0x10000, v10")
        A(f"s_lshl_b32 s57, s3, 11\ns_add_u32 m0, s57, {L_W}")

    def clears():
        for i in range(4):
            A(f"v_mov_b32 v{12 + i}, -1")
        roles()
        p1slot("s4")
        A(f"s_lshl_b32 s5, s15, 11\ns_add_u32 s5, s5, {WS_P3 - 256}")
        A(f"s_lshl_b32 s8, s13, 11\ns_lshl_b32 s9, s14, 8\ns_add_u32 s8, s8, s9\ns_add_u32 s8, s8, {WS_P2 - 256}")
        A("s_cmp_ge_u32 s7, 16\ns_cselect_b32 s5, s8, s5\ns_cselect_b32 s8, 1, 8\ns_cselect_b32 s9, 32, 14")
        A("s_cmp_lt_u32 s7, s9\ns_cselect_b32 s8, s8, 0\ns_cmp_lt_u32 s3, s8\ns_cselect_b32 s8, -1, 0xffff")
        A("v_mov_b32 v16, s4\nv_mov_b32 v17, s5\nv_cmp_gt_u32 vcc, 16, v0\ns_lshl_b32 s4, s3, 8")
        A("v_cndmask_b32 v16, v17, v16, vcc\nv_add3_u32 v16, v16, v9, s4")

    def clearstore():
        A("s_mov_b32 exec_lo, s8\ns_mov_b32 exec_hi, 0")
        A("global_store_dwordx4 v16, v[12:15], s[38:39] sc1")
        A("s_mov_b64 exec, -1")

    def wqload():
        A("s_cmp_eq_u32 s3, 0")
        A("s_cbranch_scc0 L_nox")
        A(f"s_mov_b32 m0, {L_X}")
        A("global_load_lds_dwordx4 v9, s[16:17]")
        A(f"s_mov_b32 m0, {L_W}")
        A("s_nop 0")
        A("L_nox:")
        A(f"global_load_lds_dwordx4 v10, s[22:23]{wntf}")
        A("s_add_u32 m0, m0, 1024")
        A(f"global_load_lds_dwordx4 v11, s[22:23]{wntf}")
    if not kfirst:
        wqaddr()
    vKS = (1, 2, 3, 4)
    vKR = (5, 6, 7, 8)
    vV, vM, vML, vL = 9, 10, 11, 12
    PK = (13, 14)
    vAl = 15
    SEL = (16, 17, 18, 19)
    S = (20, 21, 22, 23)
    T = (24, 25, 26, 27)
    BB = 28
    vT2 = 38
    ACC = (40, 44)
    QF = 48
    KF = 64
    VR = [80 + 16 * i for i in range(VRING)]
    A("v_lshrrev_b32 v24, 4, v0")
    A("v_lshlrev_b32 v25, 6, v24")
    A(f"v_xor_b32 v{vKS[0]}, v{vV}, v25")
    for i in (1, 2, 3):
        A(f"v_xor_b32 v{vKS[i]}, {16 * i}, v{vKS[0]}")
    A("s_lshl_b32 s10, s6, 23")
    if inter == "wgtile":
        A("s_lshl_b32 s11, s7, 18\ns_add_u32 s10, s10, s11\ns_lshl_b32 s11, s3, 12\ns_add_u32 s10, s10, s11")
        step = 8 * 4096
    elif inter == "contig":
        A("s_lshl_b32 s11, s7, 18\ns_add_u32 s10, s10, s11\ns_lshl_b32 s11, s3, 15\ns_add_u32 s10, s10, s11")
        step = 4096
    elif inter == "global":
        A("s_lshl_b32 s11, s7, 15\ns_add_u32 s10, s10, s11\ns_lshl_b32 s11, s3, 12\ns_add_u32 s10, s10, s11")
        step = 256 * 4096
    A("s_mov_b32 s11, s10")
    A(f"s_mul_i32 s56, s3, {KRING * 4096}\ns_add_u32 s56, s56, {L_K}")
    A("s_mov_b32 s42, 0x4000000\ns_mov_b32 s43, 0x20000")
    if kfirst:
        A("s_mov_b32 m0, s56")
    if sclr == "first" and "noclear" not in xp:
        clears()
    A("s_waitcnt lgkmcnt(0)")
    stamp_at(12)
    if sclr == "first" and "noclear" not in xp:
        clearstore()
    if not kfirst:
        A("s_barrier")
        wqload()
        A("s_mov_b32 m0, s56")
    A("s_mov_b32 s40, s18\ns_and_b32 s41, s19, 0xffff")
    stamp_at(11)
    vm = VM()
    ids = {}
    m0k = [0]
    order = (order or "K0 V0 K1 V1 K2 V2 V3 V4 K3 K4 K5 V5 K6 V6 K7 V7").split()
    seq = [(g[0], int(g[1]), u) for g in order for u in range(4)]
    NPRE = 4 * (KRING + VRING)

    def W(opid):
        w = vm.wait(opid)
        if w:
            A(w)

    def load(n):
        mat, t, u = seq[n]
        d = D if n < d2from else D2
        if D3 and n >= d3from:
            d = D3
        if adapt and n >= NPRE and n in adapt[2]:
            W(ids[seq[n - d - 1]])
            A(f"s_cbranch_vccnz L_ad{n}")
            A(f"s_waitcnt vmcnt({d - 1})")
            A(f"L_ad{n}:")
        elif n >= d:
            W(ids[seq[n - d]])
            if adapt and n >= NPRE and n in adapt[3]:
                A(f"s_cmp_le_u32 s9, {adapt[0]}")
                A(f"s_cbranch_scc0 L_ad{n}")
                A(f"s_waitcnt vmcnt({d - 2})")
                A(f"L_ad{n}:")
        if opos and n in opos and "now" not in xp:
            for i, p in enumerate(opos):
                if p == n:
                    A(f"global_load_dwordx4 v[164:167], v161, s[24:25] offset:{1024 * i}")
        if mat == "K":
            if m0k[0] != t:
                m0k[0] = t
                A(f"s_add_u32 m0, s56, {4096 * (t % KRING)}")
            A(f"buffer_load_dwordx4 v{vKS[u]}, s[40:43], s10 offen offset:{1024 * u}{ntf} lds")
            if u == 3:
                A(f"s_add_u32 s10, s10, {step}")
        else:
            r = VR[t % VRING] + 4 * u
            A(f"buffer_load_dwordx4 v[{r}:{r + 3}], v{vV}, s[44:47], s11 offen offset:{1024 * u}{ntf}")
            if u == 3:
                A(f"s_add_u32 s11, s11, {step}")
        ids[seq[n]] = vm.issue()

    def consts():
        A("v_and_b32 v24, 3, v0")
        A("v_mov_b32 v25, 0x0c0c0c0c")
        for k, (lo, e0) in enumerate(((0x0100, 0), (0x0100, 2), (0x0302, 0), (0x0302, 2))):
            A(f"v_mov_b32 v26, {hex(0x0c0c0000 | lo)}")
            A(f"v_mov_b32 v27, {hex((lo << 16) | 0x0c0c)}")
            A(f"v_cmp_eq_u32 vcc, {e0}, v24")
            A(f"v_cndmask_b32 v{SEL[k]}, v25, v26, vcc")
            A(f"v_cmp_eq_u32 vcc, {e0 + 1}, v24")
            A(f"v_cndmask_b32 v{SEL[k]}, v{SEL[k]}, v27, vcc")
        for z in (0, 1, 4, 5, 8, 9):
            A(f"v_mov_b32 v{BB + z}, 0")
        A(f"s_mov_b32 s12, {hex(LOG2E)}")
        A("v_bfe_u32 v25, v0, 2, 2")
        A("v_lshrrev_b32 v26, 4, v0")
        A("v_lshlrev_b32 v27, 8, v25")
        A(f"v_lshl_add_u32 v{vT2}, v26, 4, v27")
        A("v_lshl_add_u32 v25, v24, 2, v25")
        A("v_and_b32 v27, 15, v0")
        A("v_xor_b32 v26, v26, v27")
        A("v_lshlrev_b32 v26, 4, v26")
        A("v_lshl_add_u32 v26, v25, 8, v26")
        for u in range(4):
            A(f"v_xor_b32 v{vKR[u]}, {64 * u}, v26")
            A(f"v_add_u32 v{vKR[u]}, s56, v{vKR[u]}")
        roles()
        A("s_lshl_b32 s58, s3, 12")
        A("s_lshl_b32 s4, s13, 3\ns_add_u32 s4, s4, s3\ns_lshl_b32 s4, s4, 15\ns_lshl_b32 s5, s14, 7\ns_add_u32 s4, s4, s5")
        A("v_lshrrev_b32 v160, 3, v0\nv_and_b32 v161, 7, v0\nv_lshlrev_b32 v160, 10, v160\nv_lshl_add_u32 v160, v161, 4, v160\nv_add_u32 v160, s4, v160")
        A(f"s_lshl_b32 s4, s61, 5\ns_add_u32 s4, s4, s7\ns_lshl_b32 s4, s4, 3\ns_add_u32 s4, s4, s3\ns_lshl_b32 s4, s4, 11\nv_add_u32 v161, s4, v{vV}")

    def late():
        if "now" not in xp:
            A("s_cmp_ge_u32 s7, 16")
            A("s_cselect_b64 exec, -1, 1")
            for i in range(4):
                A(f"s_add_u32 m0, s58, {L_W + 1024 * i}")
                A(f"global_load_lds_dwordx4 v160, s[24:25]{wntf if not opos else ''}")
                vm.issue()
                if i < 3:
                    A("v_add_u32 v160, 0x2000, v160")
            A("s_mov_b64 exec, -1")

    def qk(t, last=False):
        W(ids[("K", t, 3)])
        if "nocomp" in xp and not last:
            return
        k = KF
        for u in range(4):
            A(f"ds_read_b128 v[{k + 4 * u}:{k + 4 * u + 3}], v{vKR[u]} offset:{4096 * (t % KRING)}")
        for u in range(4):
            c = "0" if u == 0 else f"v[{S[0]}:{S[3]}]"
            A("s_waitcnt lgkmcnt(0)" if stamps else f"s_waitcnt lgkmcnt({3 - u})")
            A(f"v_mfma_f32_16x16x32_bf16 v[{S[0]}:{S[3]}], v[{k + 4 * u}:{k + 4 * u + 3}], v[{QF + 4 * u}:{QF + 4 * u + 3}], {c}")
        if last:
            A("v_bfe_u32 v26, v0, 2, 2")
            A("v_lshlrev_b32 v26, 5, v26")
            A("s_lshl_b32 s4, s3, 2")
            A("v_add_u32 v27, s4, v26")
        for rnd in range(2):
            A(f"v_cvt_pk_bf16_f32 v{T[0]}, v{S[0]}, v{S[1]}")
            A(f"v_cvt_pk_bf16_f32 v{T[1]}, v{S[2]}, v{S[3]}")
            A(f"v_lshlrev_b32 v{S[0]}, 16, v{T[0]}")
            A(f"v_and_b32 v{S[1]}, 0xffff0000, v{T[0]}")
            A(f"v_lshlrev_b32 v{S[2]}, 16, v{T[1]}")
            A(f"v_and_b32 v{S[3]}, 0xffff0000, v{T[1]}")
            if rnd == 0:
                for r in range(4):
                    A(f"v_mul_f32 v{S[r]}, {hex(SCALE)}, v{S[r]}")
        if t == 0:
            A(f"v_max_f32 v{vM}, v{S[0]}, v{S[1]}")
            A(f"v_max3_f32 v{vM}, v{vM}, v{S[2]}, v{S[3]}")
        else:
            A(f"v_max3_f32 v{vM}, v{vM}, v{S[0]}, v{S[1]}")
            A(f"v_max3_f32 v{vM}, v{vM}, v{S[2]}, v{S[3]}")
        xrow(vM, T[0], "max")
        if last:
            A("s_mov_b64 exec, 0x1111")
            A(f"ds_write_b32 v27, v{vM} offset:{L_M}")
            A("s_mov_b64 exec, -1")
            A("s_waitcnt lgkmcnt(0)")
            A("s_barrier")
            if lpos == "b1":
                late()
            k0 = KF
            A(f"ds_read_b128 v[{k0}:{k0 + 3}], v26 offset:{L_M}")
            A(f"ds_read_b128 v[{k0 + 4}:{k0 + 7}], v26 offset:{L_M + 16}")
            A("s_waitcnt lgkmcnt(0)")
            A(f"v_max3_f32 v{vM}, v{k0}, v{k0 + 1}, v{k0 + 2}")
            A(f"v_max3_f32 v{vM}, v{vM}, v{k0 + 3}, v{k0 + 4}")
            A(f"v_max3_f32 v{vM}, v{vM}, v{k0 + 5}, v{k0 + 6}")
            A(f"v_max_f32 v{vM}, v{vM}, v{k0 + 7}")
        if t > 0:
            A(f"v_mov_b32 v{vAl}, v{vML}")
        A(f"v_mul_f32 v{vML}, s12, v{vM}")
        if t > 0:
            A(f"v_sub_f32 v{vAl}, v{vAl}, v{vML}")
            A(f"v_exp_f32 v{vAl}, v{vAl}")
        for r in range(4):
            A(f"v_fma_f32 v{S[r]}, v{S[r]}, s12, -v{vML}")
        for r in range(4):
            A(f"v_exp_f32 v{S[r]}, v{S[r]}")
        if t > 0:
            for a in range(8):
                A(f"v_mul_f32 v{ACC[0] + a}, v{vAl}, v{ACC[0] + a}")
        A(f"v_add_f32 v{T[0]}, v{S[0]}, v{S[1]}")
        A(f"v_add_f32 v{T[1]}, v{S[2]}, v{S[3]}")
        A(f"v_cvt_pk_bf16_f32 v{PK[0]}, v{S[0]}, v{S[1]}")
        A(f"v_cvt_pk_bf16_f32 v{PK[1]}, v{S[2]}, v{S[3]}")
        if t == 0:
            A(f"v_add_f32 v{vL}, v{T[0]}, v{T[1]}")
        else:
            A(f"v_add_f32 v{T[0]}, v{T[0]}, v{T[1]}")
            A(f"v_fma_f32 v{vL}, v{vL}, v{vAl}, v{T[0]}")
        if last:
            xrow(vL, T[0])
            A("s_mov_b64 exec, 0x1111")
            A(f"ds_write_b32 v27, v{vL} offset:{L_L}")
            A("s_mov_b64 exec, -1")
            A("s_and_b32 s4, s3, 1\ns_lshl_b32 s4, s4, 6\nv_lshrrev_b32 v26, 5, v0\nv_lshl_add_u32 v26, v26, 5, s4")
            A(f"v_mov_b32 v27, {L_F}")
            A("s_waitcnt lgkmcnt(0)")
            A("s_barrier")
            if lpos == "b1b":
                late()
            A(f"ds_read_b128 v[64:67], v26 offset:{L_M}")
            A(f"ds_read_b128 v[68:71], v26 offset:{L_M + 16}")
            A(f"ds_read_b128 v[72:75], v26 offset:{L_L}")
            A(f"ds_read_b128 v[76:79], v26 offset:{L_L + 16}")
            A("ds_read_b32 v27, v27 offset:4")
            A("s_waitcnt lgkmcnt(0)")
            A("v_max3_f32 v64, v64, v65, v66\nv_max3_f32 v64, v64, v67, v68\nv_max3_f32 v64, v64, v69, v70\nv_max_f32 v64, v64, v71")
            for i in range(4):
                A(f"v_add_f32 v{72 + i}, v{72 + i}, v{76 + i}")
            A("v_add_f32 v72, v72, v73\nv_add_f32 v74, v74, v75\nv_add_f32 v72, v72, v74")
            A("v_readfirstlane_b32 s62, v27")
            A("v_log_f32 v73, v72")
            A(f"v_rcp_f32 v{vAl}, v72")
            A(f"v_mul_f32 v64, s12, v64")
            A(f"v_add_f32 v{vL}, v64, v73")
            A(f"v_and_b32 v{vM}, 3, v0\nv_add_u32 v{vM}, 0x07060501, v{vM}")
            A("s_mov_b32 s50, 0x88888888\ns_mov_b32 s51, 0x88888888")

    def pv(t, last=False):
        v = VR[t % VRING]
        if "nocomp" in xp and not last:
            W(ids[("V", t, 3)])
            return

        def perm(i):
            b = BB + 2 + 4 * (i & 1)
            A(f"v_perm_b32 v{b}, v{PK[i >> 1]}, v{PK[i >> 1]}, v{SEL[2 * (i & 1)]}")
            A(f"v_perm_b32 v{b + 1}, v{PK[i >> 1]}, v{PK[i >> 1]}, v{SEL[2 * (i & 1) + 1]}")
        perm(0)
        perm(1)
        if not last:
            W(ids[("V", t, 3)])
        else:
            A(f"v_add_u32 v64, s56, v{vV}")
            A("v_and_b32 v65, 15, v0\nv_bfe_u32 v66, v0, 4, 1\nv_mul_u32_u24 v66, 272, v66\nv_add_u32 v65, v65, v66")
            A("v_lshrrev_b32 v66, 5, v0\nv_lshl_add_u32 v65, v66, 4, v65\ns_lshl_b32 s4, s3, 7")
            A(f"s_add_u32 s4, s4, {L_K}\nv_lshl_add_u32 v65, v65, 2, s4")
            A(f"v_add_u32 v66, {4 * KRING * 4096}, v65")
            p1slot("s4")
            A("s_lshl_b32 s5, s3, 8\ns_add_u32 s5, s5, s4\nv_lshl_add_u32 v67, v0, 2, s5")
        for i in range(4):
            if last:
                W(ids[("V", t, i)])
            b = BB + 2 + 4 * (i & 1)
            for h in range(2):
                c = "0" if (t == 0 and i == 0) else f"v[{ACC[h]}:{ACC[h] + 3}]"
                bb = b if h == 0 else b - 2
                A(f"v_mfma_f32_16x16x32_bf16 v[{ACC[h]}:{ACC[h] + 3}], v[{v + 4 * i}:{v + 4 * i + 3}], v[{bb}:{bb + 3}], {c}")
            if i < 2:
                perm(i + 2)

    for n in range(NPRE):
        load(n)
        if n == 3:
            A("s_mov_b32 s44, s20\ns_and_b32 s45, s21, 0xffff\ns_mov_b32 s46, 0x4000000\ns_mov_b32 s47, 0x20000")
            if sclr == "after" and "noclear" not in xp:
                clears()
                clearstore()
            if kfirst:
                wqaddr()
                wqload()
                m0k[0] = None
                A("s_barrier")
        if n == max(D - 1, 3):
            consts()
        if n == bpos:
            stamp_at(13)
            A(f"v_mov_b32 v24, {L_F}\nv_mov_b32 v25, 1\ns_mov_b64 exec, 1\nds_add_u32 v24, v25 offset:12\ns_mov_b64 exec, -1")
        if n == qpos:
            A(f"v_mov_b32 v24, {L_F}\nds_write_b32 v24, v24 offset:8")
    stamp_at(1)
    ldswait("L_waitq", 0)
    if adapt:
        lo, hi, lsites, tsites = adapt
        A("v_readfirstlane_b32 s9, v25")
        A(f"v_cmp_lt_u32 vcc, {hi}, v25")
        if stamps:
            A("s_mov_b32 s88, s9")
    stamp_at(2)
    for u in range(4):
        A(f"ds_read_b128 v[{QF + 4 * u}:{QF + 4 * u + 3}], v{vT2} offset:{L_Q + 64 * u}")
    A("s_waitcnt lgkmcnt(0)")
    blocks = []
    for t in range(7):
        blocks += [(qk, t, ("K", t, 3)), (pv, t, ("V", t, 3))]
    bi = 0
    for n in range(NPRE, len(seq)):
        mat, t, u = seq[n]
        needb = {"K": 2 * (t - KRING) + 1, "V": 2 * (t - VRING) + 2}[mat]
        while bi < needb:
            blocks[bi][0](blocks[bi][1])
            bi += 1
        load(n)
        if bi < len(blocks) and blocks[bi][2] in ids and ids[blocks[bi][2]] <= vm.done:
            blocks[bi][0](blocks[bi][1])
            bi += 1
    if lpos == "v7":
        late()
    while bi < len(blocks):
        blocks[bi][0](blocks[bi][1])
        bi += 1
    for _ in range(pad1):
        A("s_nop 0")
    qk(7, last=True)
    stamp_at(3)
    pv(7, last=True)
    stamp_at(4)
    A(f"ds_write_b128 v64, v[{ACC[0]}:{ACC[0] + 3}]")
    A(f"ds_write_b128 v64, v[{ACC[1]}:{ACC[1] + 3}] offset:1088")
    A("s_waitcnt lgkmcnt(0)")
    A("s_barrier")
    R0 = 72
    for i in range(8):
        A(f"ds_read_b32 v{R0 + i}, v{65 + (i >> 2)} offset:{KRING * 4096 * (i & 3)}")
    A("s_cmp_eq_u32 s62, 1")
    A("s_waitcnt lgkmcnt(0)")
    for i in range(2):
        A(f"v_pk_add_f32 v[{R0 + 2 * i}:{R0 + 2 * i + 1}], v[{R0 + 2 * i}:{R0 + 2 * i + 1}], v[{R0 + 4 + 2 * i}:{R0 + 5 + 2 * i}]")
    A(f"v_pk_add_f32 v[{R0}:{R0 + 1}], v[{R0}:{R0 + 1}], v[{R0 + 2}:{R0 + 3}]")
    A(f"v_add_f32 v{R0}, v{R0}, v{R0 + 1}")
    A(f"v_mul_f32 v{R0}, v{R0}, v{vAl}")
    A(f"v_mov_b32_dpp v{R0 + 1}, v{R0} quad_perm:[3,3,3,3] {FULL}")
    A(f"v_perm_b32 v{R0}, v{R0}, v{R0 + 1}, v{vM}")
    A(f"v_cndmask_b32 v{R0}, v{R0}, v{vL}, s[50:51]")
    A("s_cbranch_scc0 L_pubfar")
    A(f"global_store_dword v67, v{R0}, s[38:39]")
    A("L_published:")
    for _ in range(pad2):
        A("s_nop 0")
    stamp_at(5)
    A("s_cmp_lt_u32 s7, 14")
    A("s_cbranch_scc1 L_ffn")
    A("s_cmp_lt_u32 s7, 16")
    A("s_cbranch_scc1 L_final")
    A(f"s_lshl_b32 s4, s61, 5\nv_lshrrev_b32 v16, 3, v0\nv_add_u32 v16, s4, v16\nv_mul_u32_u24 v16, {P1_STRIDE}, v16")
    A("s_and_b32 s4, s13, 1\ns_lshl_b32 s4, s4, 1\ns_lshr_b32 s5, s3, 2\ns_add_u32 s4, s4, s5")
    A(f"s_and_b32 s5, s3, 3\ns_lshl_b32 s5, s5, 2\ns_add_u32 s4, s4, s5\ns_lshl_b32 s4, s4, 7\ns_add_u32 s4, s4, {WS_P1}")
    A("v_and_b32 v17, 7, v0\nv_lshl_add_u32 v16, v17, 4, v16\nv_add_u32 v24, s4, v16")
    for pi in range(1, 4):
        A(f"v_add_u32 v{24 + pi}, {8 * pi * P1_STRIDE}, v24")
    A("s_mov_b32 s52, 0x04000c0c\ns_mov_b32 s53, 0x0706000c")
    A("s_mov_b32 s54, 0xffff0000\ns_mov_b32 s55, 0xffff0000\ns_mov_b32 s50, 0\ns_mov_b32 s51, -1")
    sigma(16, 17)
    A("v_bfe_u32 v17, v0, 2, 2\nv_lshl_add_u32 v16, v16, 3, v17\nv_lshlrev_b32 v16, 7, v16")
    A("v_and_b32 v17, 3, v0\nv_lshl_add_u32 v16, v17, 3, v16\nv_add_u32 v16, s58, v16")
    WB = 88

    A("v_mov_b32 v30, v16")
    A("s_lshl_b32 s4, s3, 8\nv_lshl_add_u32 v18, v0, 2, s4")
    A(f"s_lshl_b32 s4, s13, 11\ns_lshl_b32 s5, s14, 8\ns_add_u32 s4, s4, s5\ns_add_u32 s4, s4, {WS_P2}")
    A("v_lshlrev_b32 v19, 2, v0\nv_add_u32 v28, s4, v19")
    D0 = 120
    loads = [f"global_load_dwordx4 v[{D0 + 4 * pi}:{D0 + 4 * pi + 3}], v{24 + pi}, s[38:39] sc1" for pi in range(4)]
    def bweights():
        if not bwait:
            A("s_waitcnt vmcnt(4)")
        for tau in range(4):
            for t in range(2):
                r = WB + 4 * tau + 2 * t
                A(f"ds_read_b64_tr_b16 v[{r}:{r + 1}], v30 offset:{L_W + 512 * t + 32 * tau}")
    if bwait:
        A("s_waitcnt vmcnt(1)")
    if gate:
        A("s_barrier")
    stamp_at(8)
    poll("L_poll1", loads, range(120, 136), 31, between=bweights)
    stamp_at(6)
    A(f"v_max3_f32 v16, v{D0 + 3}, v{D0 + 7}, v{D0 + 11}\nv_max_f32 v16, v16, v{D0 + 15}")
    for pi in range(2):
        A(f"v_perm_b32 v{136 + pi}, v{D0 + 4 * pi + 2}, v{D0 + 4 * pi + 1}, s52")
    A(f"v_max_f32_dpp v16, v16, v16 row_ror:8 {FULL}")
    A("v_mov_b32 v17, v16")
    for pi in range(2, 4):
        A(f"v_perm_b32 v{136 + pi}, v{D0 + 4 * pi + 2}, v{D0 + 4 * pi + 1}, s52")
    A("v_permlane16_swap_b32 v16, v17")
    A("v_max_f32 v16, v16, v17")
    A("v_mov_b32 v17, v16")
    A("v_permlane32_swap_b32 v16, v17")
    A("v_max_f32 v16, v16, v17")
    for pi in range(4):
        A(f"v_sub_f32 v{140 + pi}, v{D0 + 4 * pi + 3}, v16")
    for pi in range(4):
        A(f"v_exp_f32 v{140 + pi}, v{140 + pi}")
        A(f"v_perm_b32 v{D0 + 4 * pi + 3}, v{136 + pi}, v{D0 + 4 * pi}, s53")
    A("v_pk_add_f32 v[16:17], v[140:141], v[142:143]")
    for hlf in range(2):
        A(f"v_pk_mul_f32 v[{D0 + 2 * hlf}:{D0 + 2 * hlf + 1}], v[140:141], v[{D0 + 2 * hlf}:{D0 + 2 * hlf + 1}] op_sel_hi:[0,1]")
    A("v_add_f32 v16, v16, v17")
    for pi in range(1, 4):
        w = f"v[{140 + (pi & 2)}:{141 + (pi & 2)}]"
        sel = "op_sel:[1,0,0] op_sel_hi:[1,1,1]" if pi & 1 else "op_sel_hi:[0,1,1]"
        for hlf in range(2):
            r = D0 + 2 * hlf
            A(f"v_pk_fma_f32 v[{r}:{r + 1}], {w}, v[{r + 4 * pi}:{r + 4 * pi + 1}], v[{r}:{r + 1}] {sel}")
        if pi == 1:
            A(f"v_add_f32_dpp v16, v16, v16 row_ror:8 {FULL}")
    A("v_mov_b32 v17, v16")
    A(f"v_permlane32_swap_b32 v{D0}, v{D0 + 1}\nv_permlane32_swap_b32 v{D0 + 2}, v{D0 + 3}\nv_permlane32_swap_b32 v16, v17")
    A(f"v_add_f32 v{D0}, v{D0}, v{D0 + 1}\nv_add_f32 v{D0 + 2}, v{D0 + 2}, v{D0 + 3}\nv_add_f32 v16, v16, v17")
    A("v_mov_b32 v17, v16")
    A(f"v_permlane16_swap_b32 v{D0}, v{D0 + 2}\nv_permlane16_swap_b32 v16, v17")
    A(f"v_add_f32 v{D0}, v{D0}, v{D0 + 2}\nv_add_f32 v16, v16, v17")
    A(f"v_add_f32_dpp v{D0}, v{D0}, v{D0} row_ror:8 {FULL}")
    A("v_rcp_f32 v16, v16")
    A(f"v_mul_f32 v{D0}, v{D0}, v16")
    A(f"v_mov_b32_dpp v{D0 + 1}, v{D0} quad_perm:[1,0,3,2] {FULL}")
    A(f"v_cvt_pk_bf16_f32 v{D0}, v{D0}, v{D0 + 1}")
    for e in range(4):
        A(f"v_mov_b32_dpp v{124 + e}, v{D0} row_newbcast:{2 * e} {FULL}")
    A("s_waitcnt lgkmcnt(0)")
    for tau in range(4):
        A(f"v_mfma_f32_16x16x32_bf16 v[{128 + 4 * tau}:{131 + 4 * tau}], v[124:127], v[{WB + 4 * tau}:{WB + 4 * tau + 3}], 0")
    A("v_cndmask_b32 v128, v128, v132, s[54:55]")
    A("v_cndmask_b32 v136, v136, v140, s[54:55]")
    A("v_cndmask_b32 v128, v128, v136, s[50:51]")
    A(f"ds_write_b32 v18, v128 offset:{L_B}")
    A("s_cmp_eq_u32 s3, 0")
    A("s_waitcnt lgkmcnt(0)")
    A("s_barrier")
    A("s_cbranch_scc0 L_bdone")
    for i in range(8):
        A(f"ds_read_b32 v{120 + i}, v19 offset:{L_B + 256 * i}")
    A("s_waitcnt lgkmcnt(0)")
    for i in range(2):
        A(f"v_pk_add_f32 v[{120 + 2 * i}:{121 + 2 * i}], v[{120 + 2 * i}:{121 + 2 * i}], v[{124 + 2 * i}:{125 + 2 * i}]")
    A("v_pk_add_f32 v[120:121], v[120:121], v[122:123]")
    A("v_add_f32 v120, v120, v121")
    store_quad(120, 28, fl=st2)
    A("L_bdone:")
    if wb:
        A("s_cmp_eq_u32 s3, 1\ns_cbranch_scc0 L_nowb\ns_cmp_eq_u32 s7, 16\ns_cbranch_scc0 L_nowb")
        A("buffer_wbl2 sc1")
        A("L_nowb:")
    stamp_at(7)
    stamp_store()
    A("s_endpgm")
    A("L_pubfar:")
    A("s_nop 0")
    store_quad(R0, 67)
    A("s_branch L_published")
    A("L_ffn:")
    vCol = 65
    A("v_and_b32 v17, 7, v0\nv_bfe_u32 v16, v0, 3, 2\nv_lshl_add_u32 v16, v17, 2, v16")
    A("v_and_b32 v18, 32, v0\nv_add_u32 v16, v16, v18")
    A(f"s_lshl_b32 s4, s3, 6\nv_add_u32 v{vCol}, s4, v16")
    A(f"v_lshlrev_b32 v29, 1, v{vCol}")
    A(f"ds_read_u16_d16_hi v64, v29 offset:{L_X}")
    A(f"s_lshl_b32 s4, s3, 8\ns_add_u32 s4, s4, {WS_P2}")
    A("v_lshrrev_b32 v18, 3, v0\nv_lshlrev_b32 v19, 12, v18\nv_lshl_add_u32 v16, v17, 4, v19\nv_add_u32 v20, s4, v16")
    A("v_lshrrev_b32 v18, 4, v0\nv_and_b32 v17, 15, v0")
    A(f"s_lshl_b32 s4, s15, 11\ns_add_u32 s4, s4, {WS_P3}\ns_lshl_b32 s5, s3, 8\ns_add_u32 s4, s4, s5")
    A("v_lshl_add_u32 v22, v0, 2, s4")
    A("s_lshl_b32 s5, s3, 4\nv_mov_b32 v23, s5")
    A("v_and_b32 v24, 7, v0\nv_lshlrev_b32 v24, 4, v24")
    A("s_mov_b32 s63, 0x42800000\ns_mov_b32 s54, 0xffff0000\ns_mov_b32 s55, 0xffff0000")
    A("v_mov_b32 v67, 0x3b000000\nv_mov_b32 v68, 0x3727c5ac\nv_mov_b32 v69, 0xbdd2d3e8\nv_mov_b32 v70, 0xc0135761")
    for i in range(4):
        A(f"v_mov_b32 v{72 + i}, 0x3f803f80")
    A("s_lshl_b32 s4, s3, 7\nv_lshl_add_u32 v25, v18, 4, s4")
    A("v_lshlrev_b32 v27, 2, v0\ns_lshl_b32 s5, s3, 8\nv_add_u32 v26, s5, v27")
    A("v_lshl_add_u32 v28, v0, 1, s4")
    if cfast:
        A("v_bfe_u32 v16, v0, 2, 2\nv_lshlrev_b32 v16, 2, v16\nv_bfe_u32 v19, v0, 4, 1\nv_lshl_add_u32 v16, v19, 1, v16")
        A("v_and_b32 v19, 32, v0\nv_add_u32 v16, v16, v19\nv_lshlrev_b32 v16, 5, v16")
    else:
        A("v_bfe_u32 v16, v0, 2, 2\nv_lshl_add_u32 v16, v18, 3, v16\nv_lshlrev_b32 v16, 5, v16")
    A("v_and_b32 v17, 3, v0\nv_lshl_add_u32 v16, v17, 3, v16\nv_add_u32 v16, s57, v16")
    GW = 88
    DW = 104

    def dreads():
        for r in range(16):
            if r == 14:
                A("s_waitcnt lgkmcnt(0)")
            A(f"ds_read_u16_d16_hi v{DW + r}, v28 offset:{L_W + 32768 + 1024 * r}")
    if dsplit:
        A("s_barrier")
        dreads()
        A("s_waitcnt lgkmcnt(0)")
    A("s_barrier")
    stamp_at(11)

    def cweights():
        for mat in range(2):
            for kap in range(2):
                for t in range(2):
                    r = GW + 8 * mat + 4 * kap + 2 * t
                    A(f"ds_read_b64_tr_b16 v[{r}:{r + 1}], v16 offset:{L_W + 16384 * mat + ((32 * kap + 512 * t) if cfast else (1024 * kap + 128 * t))}")
        if cfast:
            stamp_at(13)
            return
        colsums()

    def colsums():
        A("s_waitcnt lgkmcnt(0)")
        A(f"v_mfma_f32_16x16x32_bf16 v[140:143], v[72:75], v[{GW}:{GW + 3}], 0")
        A(f"v_mfma_f32_16x16x32_bf16 v[144:147], v[72:75], v[{GW + 8}:{GW + 11}], 0")
        A(f"v_mfma_f32_16x16x32_bf16 v[140:143], v[72:75], v[{GW + 4}:{GW + 7}], v[140:143]")
        A(f"v_mfma_f32_16x16x32_bf16 v[144:147], v[72:75], v[{GW + 12}:{GW + 15}], v[144:147]")
        if not cfast:
            A("v_cndmask_b32 v66, v140, v144, s[54:55]")
            stamp_at(13)
    loads = [f"global_load_dwordx4 v[{120 + 4 * i}:{123 + 4 * i}], v20, s[38:39] offset:{2048 * (i >> 1) + 128 * (i & 1)} {ld2}" for i in range(4)]
    poll("L_poll2", loads, range(120, 136), 31, between=cweights)
    stamp_at(6)
    if cfast:
        n0 = len(C)
        colsums()
        cs = C[n0:]
        del C[n0:]
        A(cs[0])
    for e in range(4):
        if cfast:
            A(cs[1 + e])
        A(f"v_pk_add_f32 v[{120 + 2 * e}:{121 + 2 * e}], v[{120 + 2 * e}:{121 + 2 * e}], v[{128 + 2 * e}:{129 + 2 * e}]")
    for e in range(4):
        A(f"v_permlane32_swap_b32 v{120 + e}, v{124 + e}")
    A("v_pk_add_f32 v[120:121], v[120:121], v[124:125]\nv_pk_add_f32 v[122:123], v[122:123], v[126:127]")
    A("v_permlane16_swap_b32 v120, v122\nv_permlane16_swap_b32 v121, v123")
    A("v_pk_add_f32 v[122:123], v[120:121], v[122:123]")
    A("v_add_f32_dpp v120, v122, v122 row_ror:8 row_mask:0xf bank_mask:0x3")
    A("v_add_f32_dpp v120, v123, v123 row_ror:8 row_mask:0xf bank_mask:0xc")
    A("v_add_f32 v120, v120, v64")
    if cfast:
        A(f"v_mov_b32_dpp v122, v120 quad_perm:[1,0,3,2] {FULL}")
        A("v_cndmask_b32 v66, v140, v144, s[54:55]")
        A("v_cvt_pk_bf16_f32 v121, v120, v122")
        A("v_lshlrev_b32 v120, 16, v121")
        for e in range(8):
            A(f"v_mov_b32_dpp v{124 + e}, v121 row_newbcast:{2 * e} {FULL}")
            if e == 0:
                A("v_readfirstlane_b32 s4, v120")
    else:
        A("v_cvt_pk_bf16_f32 v121, v120, v120")
        A(f"ds_write_b16 v29, v121 offset:{L_HN}")
        A("v_lshlrev_b32 v120, 16, v121")
        A("v_readfirstlane_b32 s4, v120")
        A("s_waitcnt lgkmcnt(0)")
        A(f"ds_read_b128 v[124:127], v25 offset:{L_HN}")
        A(f"ds_read_b128 v[128:131], v25 offset:{L_HN + 64}")
    A("v_subrev_f32 v148, s4, v120")
    A("v_mov_b32 v150, s4")
    A("v_mul_f32 v149, v148, v148")
    steps = [f"{m} {FULL}" for m in ("row_shr:1", "row_shr:2", "row_shr:4", "row_shr:8")] + ["row_bcast:15 row_mask:0xa bank_mask:0xf", "row_bcast:31 row_mask:0xc bank_mask:0xf"]
    mf = [f"v_mfma_f32_16x16x32_bf16 v[132:135], v[124:127], v[{GW}:{GW + 3}], 0",
          f"v_mfma_f32_16x16x32_bf16 v[136:139], v[124:127], v[{GW + 8}:{GW + 11}], 0",
          f"v_mfma_f32_16x16x32_bf16 v[132:135], v[128:131], v[{GW + 4}:{GW + 7}], v[132:135]",
          f"v_mfma_f32_16x16x32_bf16 v[136:139], v[128:131], v[{GW + 12}:{GW + 15}], v[136:139]"]
    for k, m in enumerate(steps):
        A(f"v_add_f32_dpp v148, v148, v148 {m}")
        A(f"v_add_f32_dpp v149, v149, v149 {m}")
        if k == (0 if cfast else 1):
            if not cfast:
                A("s_waitcnt lgkmcnt(0)")
            stamp_at(8)
            A(mf[0])
            A(mf[1])
        if k == (1 if cfast else 2):
            A(mf[2])
            A(mf[3])
    A("s_mov_b32 exec_lo, 0\ns_mov_b32 exec_hi, 0x80000000")
    A(f"ds_write_b96 v23, v[148:150] offset:{L_H}")
    A("s_mov_b32 exec_lo, -1\ns_mov_b32 exec_hi, 0")
    A("v_cndmask_b32 v66, v132, v136, s[54:55]")
    A("s_mov_b64 exec, -1")
    A(f"ds_write_b32 v26, v66 offset:{L_B}")
    A("s_waitcnt lgkmcnt(0)")
    stamp_at(9)
    A("s_barrier")
    A(f"ds_read_b96 v[124:126], v24 offset:{L_H}")
    for i in range(8):
        A(f"ds_read_b32 v{128 + i}, v27 offset:{L_B + 256 * i}")
    A("s_waitcnt lgkmcnt(0)" if stamps else "s_waitcnt lgkmcnt(8)")
    stamp_at(10)
    x8 = ("quad_perm:[1,0,3,2]", "quad_perm:[2,3,0,1]", "row_half_mirror")
    A("v_fma_f32 v127, v126, s63, v124")
    A("v_add_f32 v124, v124, v124")
    A("s_waitcnt lgkmcnt(0)" if stamps else "s_waitcnt lgkmcnt(4)")
    A(f"v_add_f32_dpp v127, v127, v127 {x8[0]} {FULL}")
    A("v_pk_add_f32 v[128:129], v[128:129], v[130:131]")
    A("s_waitcnt lgkmcnt(0)")
    A(f"v_add_f32_dpp v127, v127, v127 {x8[1]} {FULL}")
    A("v_pk_add_f32 v[132:133], v[132:133], v[134:135]")
    A("v_pk_add_f32 v[128:129], v[128:129], v[132:133]")
    A(f"v_add_f32_dpp v127, v127, v127 {x8[2]} {FULL}")
    A("v_add_f32 v120, v128, v129")
    A("v_add_f32 v121, v128, v129")
    A("v_mul_f32 v127, 0x3b000000, v127")
    A("v_sub_f32 v126, v127, v126")
    A("v_permlane32_swap_b32 v120, v121")
    A("v_fma_f32 v124, v126, s63, -v124")
    A("v_fma_f32 v125, v126, v124, v125")
    A("v_fma_f32 v122, -v127, v121, v120")
    A("v_fma_f32 v121, -v127, v121, v120")
    A(f"v_add_f32_dpp v125, v125, v125 {x8[0]} {FULL}")
    A("v_mov_b32 v120, v122")
    A(f"v_add_f32_dpp v125, v125, v125 {x8[1]} {FULL}")
    A("v_permlane16_swap_b32 v120, v121")
    A(f"v_add_f32_dpp v125, v125, v125 {x8[2]} {FULL}")
    A("v_fma_f32 v125, v125, v67, v68")
    A("v_rsq_f32 v125, v125")
    A("v_mul_f32 v120, v120, v125")
    A("v_mul_f32 v121, v121, v125")
    A("v_mul_f32 v122, v120, v120")
    A("v_mul_f32 v121, v120, v121")
    A("v_fma_f32 v122, v122, v69, v70")
    A("v_mul_f32 v122, v122, v120")
    A("v_exp_f32 v122, v122")
    A("v_add_f32 v122, 1.0, v122")
    A("v_rcp_f32 v122, v122")
    A("v_mul_f32 v120, v121, v122")
    for r in range(16):
        op = "mul" if r < 4 else "fmac"
        A(f"v_{op}_f32_dpp v{124 + (r & 3)}, v120, v{DW + r} row_newbcast:{r} {FULL}")
    A("v_pk_add_f32 v[124:125], v[124:125], v[126:127]")
    A("v_add_f32 v124, v124, v125")
    store_quad(124, 22, fl=st3)
    stamp_at(7)
    stamp_store()
    A("s_endpgm")
    A("L_final:")
    A("s_barrier")
    A("s_sub_u32 s15, s7, 14\ns_lshl_b32 s4, s6, 1\ns_add_u32 s15, s15, s4")
    A("v_and_b32 v16, 7, v0\nv_lshrrev_b32 v17, 3, v0\nv_lshlrev_b32 v17, 11, v17\nv_lshl_add_u32 v17, v16, 4, v17")
    A("v_and_b32 v22, 31, v0\ns_lshl_b32 s4, s15, 6\nv_lshl_add_u32 v18, v22, 1, s4")
    A("v_lshlrev_b32 v22, 2, v22")
    sigma(23, 24)
    A("v_lshl_add_u32 v23, v16, 2, v23\nv_lshl_add_u32 v19, v23, 1, s4")
    A(f"ds_read_u16_d16_hi v19, v19 offset:{L_X}")
    A("s_lshl_b32 s4, s3, 7\nv_lshl_add_u32 v23, v23, 2, s4")
    A(f"s_lshl_b32 s4, s3, 15\ns_add_u32 s4, s4, {WS_P3}")
    A("s_cmp_eq_u32 s3, 7")
    A(f"s_cselect_b32 s4, {WS_P2}, s4")
    A("s_lshl_b32 s5, s15, 7\ns_add_u32 s4, s4, s5")
    A("v_add_u32 v20, s4, v17\nv_add_u32 v21, 0x4000, v20")
    loads = [f"global_load_dwordx4 v[{120 + 4 * i}:{123 + 4 * i}], v{20 + i}, s[38:39] {ld3}" for i in range(2)]
    if dsleep is not None:
        A("s_cmp_eq_u32 s3, 7")
        A("s_cbranch_scc1 L_dgo")
        A("s_barrier")
        A(f"s_sleep {dsleep}")
        A("L_dgo:")
    poll("L_poll3", loads, range(120, 128), 16)
    if dsleep is not None:
        A("s_cmp_eq_u32 s3, 7")
        A("s_cbranch_scc0 L_dgo2")
        A("s_barrier")
        A("L_dgo2:")
    stamp_at(6)
    for e in range(4):
        A(f"v_add_f32 v{120 + e}, v{120 + e}, v{124 + e}")
    scatter4(120)
    A(f"v_add_f32_dpp v120, v120, v120 row_ror:8 {FULL}")
    A("s_cmp_eq_u32 s3, 7")
    A("s_cbranch_scc0 L_dnoh")
    A("s_waitcnt lgkmcnt(0)")
    A("v_add_f32 v120, v120, v19")
    rbf(120)
    A("L_dnoh:")
    A("s_mov_b32 exec_lo, 0x00ff00ff\ns_mov_b32 exec_hi, 0x00ff00ff")
    A(f"ds_write_b32 v23, v120 offset:{L_B}")
    A("s_mov_b64 exec, -1")
    A("s_cmp_eq_u32 s3, 0")
    A("s_waitcnt lgkmcnt(0)")
    A("s_barrier")
    A("s_cbranch_scc0 L_ddone")
    for i in range(8):
        A(f"ds_read_b32 v{120 + i}, v22 offset:{L_B + 128 * i}")
    A("s_waitcnt lgkmcnt(0)")
    for i in range(2):
        A(f"v_pk_add_f32 v[{120 + 2 * i}:{121 + 2 * i}], v[{120 + 2 * i}:{121 + 2 * i}], v[{124 + 2 * i}:{125 + 2 * i}]")
    A("v_pk_add_f32 v[120:121], v[120:121], v[122:123]")
    A("v_add_f32 v120, v120, v121")
    if perturb:
        import struct
        kind, val = perturb
        h = hex(struct.unpack("<I", struct.pack("<f", val))[0])
        if kind == "add": A(f"v_add_f32 v120, {h}, v120")
        if kind == "mul": A(f"v_mul_f32 v120, {h}, v120")
        if kind == "one":
            A("s_cmp_eq_u32 s15, 0\ns_cselect_b32 s4, 1, 0\ns_mov_b32 s5, 0\ns_mov_b64 exec, s[4:5]")
            A(f"v_add_f32 v120, {h}, v120\ns_mov_b64 exec, -1")
    A(f"v_mov_b32_dpp v121, v120 quad_perm:[1,0,3,2] {FULL}")
    A("v_cvt_pk_bf16_f32 v120, v120, v121")
    A("s_mov_b64 exec, 0x55555555")
    A("global_store_dword v18, v120, s[34:35]")
    A("L_ddone:")
    stamp_at(7)
    stamp_store()
    A("s_endpgm")

    for _ in range(pad3):
        A("s_nop 0")
    A("L_service:")
    A("s_setprio 3")
    A(f"v_mov_b32 v98, {L_F}\nv_mov_b32 v99, 0")
    A("ds_write_b32 v98, v99")
    A("ds_write_b32 v98, v99 offset:8")
    A("ds_write_b32 v98, v99 offset:12")
    if not qearly:
        A("s_waitcnt lgkmcnt(0)")
        A("s_barrier")
    for i in range(4):
        A(f"v_mov_b32 v{100 + i}, -1")
    roles()
    p1slot("s4")
    A("v_add_u32 v104, s4, v9")
    A("s_cmp_eq_u32 s7, 0")
    A("s_waitcnt lgkmcnt(0)")
    if "svcoff" in xp:
        A("s_barrier\ns_branch L_svcbar" if qearly else "s_branch L_svcbar")
    A("s_cbranch_scc0 L_qcleared")
    A(f"s_lshl_b32 s10, s60, 13\nv_add_u32 v3, s10, v9\nv_add_u32 v8, 0x1000, v3")
    for i in range(8):
        A(f"global_store_dwordx4 v{3 if i < 4 else 8}, v[100:103], s[38:39] offset:{1024 * (i & 3)} sc1")
    A(f"s_lshl_b32 s10, s60, 7\ns_add_u32 s10, s10, {WS_F}\nv_add_u32 v3, s10, v9")
    A(f"s_lshl_b32 s10, s6, 7\ns_add_u32 s10, s10, {WS_G}\nv_add_u32 v8, s10, v9")
    A("s_mov_b64 exec, 0xff")
    A("global_store_dwordx4 v3, v[100:103], s[38:39] sc1")
    A("global_store_dwordx4 v8, v[100:103], s[38:39] sc1")
    if adapt:
        A(f"global_store_dwordx4 v8, v[100:103], s[38:39] offset:{WS_R - WS_G - 4096 + 4096 - 0 if WS_R - WS_G < 4096 else 0} sc1" if False else f"v_add_u32 v8, {WS_R - WS_G}, v8\nglobal_store_dwordx4 v8, v[100:103], s[38:39] sc1")
    A("s_mov_b64 exec, -1")
    A("L_qcleared:")
    if qearly:
        A("s_barrier")
    nyoung = 0
    if "noclear" not in xp and sclr is None:
        A("global_store_dwordx4 v104, v[100:103], s[38:39] sc1")
        A("global_store_dwordx4 v104, v[100:103], s[38:39] offset:1024 sc1")
        nyoung += 2
        A("s_cmp_lt_u32 s7, 14")
        A("s_cbranch_scc0 L_noclr3")
        A(f"s_lshl_b32 s4, s15, 11\ns_add_u32 s4, s4, {WS_P3}\nv_add_u32 v105, s4, v9")
        A("global_store_dwordx4 v105, v[100:103], s[38:39] sc1")
        A("global_store_dwordx4 v105, v[100:103], s[38:39] offset:1024 sc1")
        A("L_noclr3:")
        A("s_cmp_ge_u32 s7, 16")
        A("s_cbranch_scc0 L_noclr2")
        A(f"s_lshl_b32 s4, s13, 11\ns_lshl_b32 s5, s14, 8\ns_add_u32 s4, s4, s5\ns_add_u32 s4, s4, {WS_P2}\nv_add_u32 v105, s4, v9")
        A("s_mov_b64 exec, 0xffff")
        A("global_store_dwordx4 v105, v[100:103], s[38:39] sc1")
        A("s_mov_b64 exec, -1")
        A("L_noclr2:")
    stamp_at(1)
    A("v_lshlrev_b32 v96, 5, v0")
    A("s_cmp_eq_u32 s7, 0")
    A("s_cbranch_scc0 L_noqflag")
    A("s_lshl_b32 s4, s60, 5\nv_mov_b32 v104, s4\nv_mov_b32 v105, 1")
    A(f"s_waitcnt vmcnt({4 if ('noclear' not in xp and sclr is None) else 0})")
    A("s_mov_b64 exec, 1")
    A("global_store_dword v104, v105, s[36:37] sc1")
    A("s_mov_b64 exec, -1")
    A("L_noqflag:")
    ldswait("L_waitwq", 12, 8)

    def firstlook():
        A("s_mov_b64 exec, 0xff")
        A("global_load_dword v97, v96, s[36:37] sc1")
        A("s_mov_b64 exec, -1")
    if qearly:
        firstlook()
    A(f"ds_read_b128 v[4:7], v9 offset:{L_X}")
    A("s_waitcnt lgkmcnt(0)")
    stamp_at(2)
    X = list(range(8, 16))
    X[1] = 3
    for i in range(4):
        A(f"v_lshlrev_b32 v{X[2 * i]}, 16, v{4 + i}")
        A(f"v_and_b32 v{X[2 * i + 1]}, 0xffff0000, v{4 + i}")
    ln_stats(X, 16, 17, 18, 19, 20, list(range(22, 30)))
    ln_apply(X, 16, 17, 18, list(range(22, 30)))
    for i in range(4):
        A(f"v_cvt_pk_bf16_f32 v{4 + i}, v{X[2 * i]}, v{X[2 * i + 1]}")
    A(f"ds_write_b128 v9, v[4:7] offset:{L_HN}")
    A(f"s_and_b32 s4, s7, {KS - 1}\ns_lshl_b32 s4, s4, {10 - KL}\nv_lshrrev_b32 v17, 4, v0\nv_lshl_add_u32 v16, v17, 4, s4")
    A("v_bfe_u32 v18, v0, 2, 2\nv_lshl_add_u32 v17, v17, 3, v18\nv_lshlrev_b32 v17, 7, v17\nv_and_b32 v18, 3, v0\nv_lshl_add_u32 v17, v18, 3, v17")
    A("s_waitcnt lgkmcnt(0)")
    NK = NQ // 4
    for k in range(NK):
        A(f"ds_read_b128 v[{32 + 4 * k}:{35 + 4 * k}], v16 offset:{L_HN + 64 * k}")
    stamp_at(3)
    if not qearly:
        firstlook()
    for k in range(NK):
        A("s_waitcnt lgkmcnt(0)")
        b = 64 + 16 * (k & 1)
        for tau in range(4):
            for t in range(2):
                r = b + 4 * tau + 2 * t
                A(f"ds_read_b64_tr_b16 v[{r}:{r + 1}], v17 offset:{L_W + 4096 * k + 512 * t + 32 * tau}")
        if k > 0:
            bp = 64 + 16 * ((k - 1) & 1)
            for tau in range(4):
                c = "0" if k == 1 else f"v[{112 + 4 * tau}:{115 + 4 * tau}]"
                A(f"v_mfma_f32_16x16x32_bf16 v[{112 + 4 * tau}:{115 + 4 * tau}], v[{28 + 4 * k}:{31 + 4 * k}], v[{bp + 4 * tau}:{bp + 4 * tau + 3}], {c}")
    A("s_waitcnt lgkmcnt(0)")
    for tau in range(4):
        A(f"v_mfma_f32_16x16x32_bf16 v[{112 + 4 * tau}:{115 + 4 * tau}], v[{28 + 4 * NK}:{31 + 4 * NK}], v[{80 + 4 * tau}:{83 + 4 * tau}], v[{112 + 4 * tau}:{115 + 4 * tau}]")
    A(f"s_lshl_b32 s4, s60, {11 + KL}\ns_and_b32 s5, s7, {KS - 1}\ns_lshl_b32 s5, s5, 11\ns_add_u32 s4, s4, s5\ns_lshr_b32 s5, s7, {KL}\ns_lshl_b32 s5, s5, 8\ns_add_u32 s4, s4, s5")
    A("v_lshl_add_u32 v17, v0, 2, s4")
    for tau in range(1, 4):
        A(f"v_mov_b32_dpp v112, v{112 + 4 * tau} quad_perm:[0,1,2,3] row_mask:{hex(1 << tau)} bank_mask:0xf")
    for i in (1, 2, 3):
        A(f"v_mov_b32_dpp v{112 + i}, v112 quad_perm:[{i},{i},{i},{i}] {FULL}")
    A("L_qdone:")
    A(f"s_lshl_b32 s4, s60, 5\ns_add_u32 s4, s4, s7\ns_lshl_b32 s4, s4, 2\ns_add_u32 s4, s4, {WS_F}\nv_mov_b32 v18, s4")
    A(f"s_lshl_b32 s4, s6, {11 + KL}\nv_add_u32 v19, s4, v9\nv_add_u32 v20, 0x1000, v19")
    A("s_getreg_b32 s62, hwreg(HW_REG_XCC_ID, 0, 4)\nv_mov_b32 v21, s62")
    A("s_lshl_b32 s4, 1, s60\ns_lshl_b32 s5, 1, s6\ns_or_b32 s4, s4, s5")
    if adapt:
        A(f"s_add_u32 s5, s7, {qrot}\ns_and_b32 s5, s5, 7\ns_lshl_b32 s5, 1, s5\ns_or_b32 s4, s4, s5")
    A("s_mov_b32 s5, 0")
    stamp_at(4)
    if "svc1" in xp: A("s_branch L_svcbar2")
    A("L_pollf:")
    A("s_waitcnt vmcnt(0) lgkmcnt(0)")
    A("v_cmp_ne_u32 vcc, 1, v97")
    A("s_and_b32 s57, vcc_lo, s4")
    A("s_cbranch_scc0 L_pollf_ok")
    A(f"s_add_u32 s5, s5, 1\ns_cmp_lt_u32 s5, {SPIN_MAX}\ns_cbranch_scc0 L_pollf_ok")
    A("s_sleep 8")
    A("s_mov_b64 exec, 0xff")
    A("global_load_dword v97, v96, s[36:37] sc1")
    A("s_mov_b64 exec, -1")
    A("s_branch L_pollf")
    A("L_pollf_ok:")
    if KS == 2:
        A("s_cmp_lt_u32 s7, 16")
        A("s_cbranch_scc0 L_noqpub")
    A("s_mov_b32 exec_lo, 0x11111111\ns_mov_b32 exec_hi, 0x11111111")
    A("global_store_dwordx4 v17, v[112:115], s[38:39] sc1")
    A("L_noqpub:")
    A("s_mov_b64 exec, 1")
    A("global_store_dword v18, v21, s[38:39] sc1")
    A("s_mov_b64 exec, -1")
    stamp_at(5)
    if "svc2" in xp: A("s_branch L_svcbar2")
    if warm:
        A("s_getpc_b64 s[48:49]")
        A("L_pc:")
        A(f"s_sub_u32 s48, s48, L_pc-{NAME}_kernel\ns_subb_u32 s49, s49, 0")
        A(f"s_mov_b32 s4, L_codeend-{NAME}_kernel-16\nv_mov_b32 v2, v9\ns_mov_b32 s5, 0")
        A("L_warm:")
        A("v_min_u32 v3, s4, v2")
        A("global_load_dwordx4 v[128:131], v3, s[48:49]")
        A("v_add_u32 v2, 1024, v2\ns_add_u32 s5, s5, 1024\ns_cmp_lt_u32 s5, s4\ns_cbranch_scc1 L_warm")
    if adapt:
        A(f"s_and_b32 s4, s7, 7\ns_lshl_b32 s4, s4, 7\ns_add_u32 s4, s4, {WS_R}\nv_mov_b32 v26, s4\nv_mov_b32 v27, 1")
    ldswait("L_waitpos", 8)
    if adapt:
        A("s_mov_b64 exec, 1")
        A("global_atomic_add v28, v26, v27, s[38:39] sc0 sc1")
        A("s_mov_b64 exec, -1")
    poll("L_pollq", [f"global_load_dwordx4 v[{32 + 4 * i}:{35 + 4 * i}], v{19 + (i >> 2)}, s[38:39] offset:{1024 * (i & 3)} sc1" for i in range(2 * KS)],
         range(32, 32 + 8 * KS), 16, slp=qsleep)
    stamp_at(6)
    for e in range(8):
        A(f"v_add_f32 v{32 + e}, v{32 + e}, v{40 + e}")
        if KS == 4:
            A(f"v_add_f32 v{48 + e}, v{48 + e}, v{56 + e}")
    if KS == 4:
        for e in range(8):
            A(f"v_add_f32 v{32 + e}, v{32 + e}, v{48 + e}")
    for e in range(4):
        A(f"v_cvt_pk_bf16_f32 v{40 + e}, v{32 + 2 * e}, v{33 + 2 * e}")
    A("v_lshlrev_b32 v16, 3, v0")
    A(f"ds_write_b64 v16, v[40:41] offset:{L_Q}")
    A(f"ds_write_b64 v16, v[42:43] offset:{L_Q + 512}")
    if adapt:
        A("v_readfirstlane_b32 s4, v28")
        A("s_add_u32 s4, s4, 2")
        A("v_mov_b32 v99, s4")
    else:
        A("v_mov_b32 v99, 1")
    A("s_waitcnt lgkmcnt(0)")
    A("ds_write_b32 v98, v99")
    stamp_at(7)
    if "svc4" in xp: A("s_branch L_svcbar2")
    A("s_mov_b32 s5, 0")
    A("L_pollf2:")
    A("s_mov_b64 exec, 0xff")
    A("global_load_dword v97, v96, s[36:37] sc1")
    A("s_waitcnt vmcnt(0)")
    A("v_cmp_ne_u32 vcc, 1, v97")
    A("s_mov_b64 exec, -1")
    A("s_cbranch_vccz L_pollf2_ok")
    A(f"s_add_u32 s5, s5, 1\ns_cmp_lt_u32 s5, {SPIN_MAX}\ns_cbranch_scc1 L_pollf2")
    A("L_pollf2_ok:")
    stamp_at(8)
    A(f"v_add_u32 v19, {WS_F}, v9")
    poll("L_pollall", ["global_load_dwordx4 v[32:35], v19, s[38:39] sc1"], range(32, 36), 16, slp=16)
    stamp_at(9)
    A("v_xor_b32 v32, v32, v21\nv_xor_b32 v33, v33, v21\nv_xor_b32 v34, v34, v21\nv_xor_b32 v35, v35, v21")
    A("v_or_b32 v32, v32, v33\nv_or3_b32 v32, v32, v34, v35")
    A("v_cmp_ne_u32 vcc, 0, v32")
    A("s_lshl_b32 s4, s60, 3\ns_lshr_b64 s[4:5], vcc, s4\ns_and_b32 s4, s4, 0xff")
    A("s_cselect_b32 s4, 0, 1" if local and "far" not in xp else "s_mov_b32 s4, 0")
    A("L_svcend:")
    A("s_mov_b32 s63, s4")
    A("v_mov_b32 v99, s4")
    A("ds_write_b32 v98, v99 offset:4")
    A(f"s_lshl_b32 s4, s6, 7\ns_add_u32 s4, s4, {WS_G}\nv_and_b32 v16, 31, v0\nv_lshl_add_u32 v16, v16, 2, s4")
    A("s_lshl_b32 s5, s7, 2\ns_add_u32 s4, s4, s5\nv_mov_b32 v17, s4\nv_mov_b32 v18, 0")
    A(f"s_and_b32 s4, s7, 15\ns_mul_i32 s4, s4, {32 * 3584}\ns_mul_i32 s5, s6, 448\ns_andn2_b32 s5, s5, 127\ns_add_u32 s4, s4, s5")
    A("v_lshrrev_b32 v21, 5, v0\nv_mul_u32_u24 v21, 3584, v21\nv_and_b32 v22, 31, v0\nv_lshl_add_u32 v21, v22, 4, v21\nv_add_u32 v21, s4, v21")
    A("v_lshrrev_b32 v22, 1, v0\nv_mul_u32_u24 v22, 3584, v22\nv_and_b32 v23, 1, v0\nv_lshl_add_u32 v22, v23, 4, v22\ns_lshl_b32 s4, s15, 5\nv_add_u32 v22, s4, v22")
    A("s_lshl_b32 s4, s15, 14\nv_add_u32 v23, s4, v9")
    A("s_waitcnt lgkmcnt(0)")
    A("s_barrier")
    assert gate and dsplit

    def wloop(label, n, lds, body):
        A(f"s_mov_b32 s5, {n}")
        if lds is not None:
            A(f"s_mov_b32 m0, {lds}")
        A(f"{label}:")
        body()
        A(f"s_sub_u32 s5, s5, 1\ns_cmp_lg_u32 s5, 0\ns_cbranch_scc1 {label}")

    def b_pre():
        A("global_load_dwordx4 v[32:35], v21, s[28:29]")
        A("global_load_dwordx4 v[32:35], v21, s[30:31]")
        A("v_add_u32 v21, 7168, v21")

    def b_down():
        A(f"global_load_lds_dwordx4 v23, s[32:33]{wntf}")
        A("v_add_u32 v23, 1024, v23\ns_add_u32 m0, m0, 1024")

    def b_gu():
        A("global_load_lds_dwordx4 v22, s[28:29]")
        A("s_add_u32 m0, m0, 16384")
        A("global_load_lds_dwordx4 v22, s[30:31]")
        A(f"v_add_u32 v22, {32 * 3584}, v22\ns_sub_u32 m0, m0, {16384 - 1024}")

    def only(cond, label, body):
        A(cond)
        A(f"s_cbranch_scc0 {label}")
        body()
        A(f"{label}:")
    after_pre = 0
    for k, step in enumerate(pm):
        if step in "SgG" and not gsync:
            continue
        if step in "PDU" and "now" in xp:
            continue
        if step == "S":
            only("s_cmp_eq_u32 s63, 1", "L_nosig", lambda: A("s_mov_b64 exec, 1\nglobal_store_dword v17, v18, s[38:39]\ns_mov_b64 exec, -1"))
        elif step in "12":
            A("s_barrier")
        elif step == "g":
            only("s_cmp_eq_u32 s63, 1", f"L_nog{k}", lambda: A("global_load_dword v19, v16, s[38:39] sc1"))
        elif step == "G":
            def gwait():
                A("s_mov_b32 s5, 0")
                A("L_pollg:")
                A("s_waitcnt vmcnt(0)")
                A("v_cmp_eq_u32 vcc, -1, v19")
                A("s_cbranch_vccz L_gok")
                A(f"s_add_u32 s5, s5, 1\ns_cmp_lt_u32 s5, {SPIN_MAX}\ns_cbranch_scc0 L_gok")
                A(f"s_sleep {gsleep}")
                A("global_load_dword v19, v16, s[38:39] sc1")
                A("s_branch L_pollg")
            only("s_cmp_eq_u32 s63, 1", "L_gok", gwait)
            stamp_at(10)
        elif step == "P":
            if pref:
                only("s_cmp_lt_u32 s7, 16", "L_nopre", lambda: wloop("L_wpre", 16, None, b_pre))
            after_pre = 0
        elif step == "D":
            only("s_cmp_lt_u32 s7, 14", "L_nodown", lambda: wloop("L_wdown", 16, L_W + 32768, b_down))
            after_pre = 16
        elif step == "w":
            A(f"s_waitcnt vmcnt({after_pre})")
            stamp_at(11)
        elif step == "z":
            A(f"s_sleep {cdelay}")
        elif step == "U":
            only("s_cmp_lt_u32 s7, 14", "L_nogu", lambda: wloop("L_wgu", 16, L_W, b_gu))
    only("s_cmp_lt_u32 s7, 14", "L_wdone", lambda: A("s_waitcnt vmcnt(32)\ns_barrier"))
    A("s_waitcnt vmcnt(0)")
    stamp_at(12)
    if stamps:
        A("s_waitcnt lgkmcnt(0)")
        for i in range(16):
            A(f"v_writelane_b32 v4, s{64 + 2 * i}, {i}")
        A(f"v_lshlrev_b32 v5, 2, v0\nds_write_b32 v5, v4 offset:{L_G}\ns_waitcnt lgkmcnt(0)")
    A("s_barrier")
    A("s_endpgm")
    A("L_svcbar:")
    A("L_svcbar2:")
    A("v_mov_b32 v99, 1")
    A("ds_write_b32 v98, v99")
    A("s_mov_b32 s4, 0")
    A("s_branch L_svcend")
    A("L_end:")
    A("s_endpgm")
    A("L_codeend:")

    body = fix(C)
    out = HEADER
    out += f"; @launch grid=(256,1,1) block=(576,1,1) lds={LDS_BYTES}\n"
    out += '.amdgcn_target "amdgcn-amd-amdhsa--gfx950"\n.text\n'
    out += f".globl {NAME}_kernel\n.p2align 8\n.type {NAME}_kernel,@function\n{NAME}_kernel:\n"
    out += "\n".join(("" if l.endswith(":") else "    ") + l for l in body) + "\n"
    out += f""".section .rodata,"a"
.p2align 6
.amdhsa_kernel {NAME}_kernel
  .amdhsa_next_free_vgpr 168
  .amdhsa_next_free_sgpr 96
  .amdhsa_accum_offset 168
  .amdhsa_group_segment_fixed_size 0
  .amdhsa_kernarg_size 96
  .amdhsa_user_sgpr_count 2
  .amdhsa_user_sgpr_kernarg_segment_ptr 1
  .amdhsa_system_sgpr_workgroup_id_x 1
  .amdhsa_float_denorm_mode_32 3
.end_amdhsa_kernel
"""
    return out


if __name__ == "__main__":
    cfg = eval("dict(" + (sys.argv[2] if len(sys.argv) > 2 else "") + ")")
    open(sys.argv[1], "w").write(gen(**cfg))
```

```python
import sys
from asmlib import fix, VM

NAME = "sequential_preLN__gqa_block_cached__glu_gated_geglu__decode"
HEADER = open("cdna_kernels/" + NAME + ".s.ref").read().split("; Override launch")[0]

WS_Q = 0x0
WS_F = 0x10000
WS_G = 0x11000
WS_R = 0x12000
WS_V = 0x13000
WS_P1 = 0x20000
P1_STRIDE = 2048
WS_P2 = 0xB0000
WS_P3 = 0xC0000
WS_STAMP = 0x200000
L_Q = 0
L_X = 1024
L_M = 2048
L_L = 2176
L_F = 2304
L_B = 2560
L_H = 4608
L_HN = 6656
L_G = 7680
L_W = 8704
L_K = L_W + 49152
KRING = 3
VRING = 5
LDS_BYTES = L_K + 8 * KRING * 4096

LOG2E = 0x3FB8AA3B
SCALE = 0x3DB504F3
FULL = "row_mask:0xf bank_mask:0xf"
SPIN_MAX = 20000


def gen(D=3, D2=4, nt=True, inter="wgtile", stamps=False, wnt=True, warm='one', sleep=1, qsleep=4,
        xp=(), masked=True, qrot=4, local=True, qpos=18, pref=True, fold=True, bpos=None, bwait=False, ppos=None, kfirst=True, wb=False, pad1=0, pad2=0, pad3=0, gsync=True, gsleep=2, cdelay=0, opos=None, enc=None, dsplit=True, early=False, gate=True, sclr='first', qearly=True, lpos='b1b', order=None, pm='S1g2GPU', dsleep=None, cfast=False, adapt=None, d2from=32, D3=None, d3from=56, split=False, dup='auto', dup3=True, rankpre=True, gmiss=16, ntr=2, vpos=52, dlate=True, outfl=''):
    C = []
    A = C.append
    ntf = " nt" if nt else ""
    wntf = " nt" if wnt else ""
    D2 = D if D2 is None else D2
    hmap = "xcd"; KS = 4; ld2 = ld3 = st2 = st3 = "sc1"; peel = False; late4 = True; cpos = ("end",) * 6; fastln = True; perturb = None
    bpos = (D + 3 if kfirst else D) if bpos is None else bpos
    KL = KS.bit_length() - 1
    NQ = 64 // KS
    QR = 2048 * KS

    def stamp_at(k):
        if stamps:
            A(f"s_memrealtime s[{64 + 2 * k}:{65 + 2 * k}]")

    def stamp_store():
        if not stamps:
            return
        A("s_waitcnt lgkmcnt(0)")
        if stamps == "dbg":
            lab = f"L_dbg{len(C)}"
            A("s_and_b32 s4, s3, 7\ns_cmp_eq_u32 s4, 0")
            A(f"s_cbranch_scc0 {lab}")
            A("s_not_b32 s64, s64")
            A("s_cmp_eq_u32 s3, 8")
            sel0 = (0, 1, 2, 4, 5, 6, 7)
            sel8 = (2, 4, 5, 6, 7, 8, 9)
            A("s_mov_b64 exec, -1")
            for i in range(7):
                A(f"s_cselect_b32 s4, s{64 + 2 * sel8[i]}, s{64 + 2 * sel0[i]}")
                A(f"v_writelane_b32 v4, s4, {i}")
            A("s_lshl_b32 s4, s3, 2\ns_add_u32 s4, s4, 4\nv_lshl_add_u32 v1, v0, 2, s4")
            A("s_mov_b64 exec, 0x7f")
            A("global_atomic_umax v1, v4, s[36:37] sc1")
            A(f"{lab}:")
            return
        lab = f"L_st{len(C)}"
        A(f"s_cmp_eq_u32 s3, 1\ns_cbranch_scc0 {lab}")
        A(f"s_mov_b64 exec, 0xffff\nv_lshlrev_b32 v5, 2, v0\nds_read_b32 v4, v5 offset:{L_G}")
        A(f"s_lshl_b32 s4, s2, 4\ns_add_u32 s4, s4, 8\ns_lshl_b32 s4, s4, 6\ns_add_u32 s4, s4, {WS_STAMP}\nv_add_u32 v5, s4, v5")
        A("s_waitcnt lgkmcnt(0)\nglobal_store_dword v5, v4, s[38:39]\ns_nop 1")
        A(f"{lab}:")
        A("s_mov_b64 exec, 1")
        A("s_lshl_b32 s4, s2, 4\ns_add_u32 s4, s4, s3\ns_lshl_b32 s4, s4, 6")
        A(f"s_add_u32 s4, s4, {WS_STAMP}")
        A("v_mov_b32 v1, s4")
        A("s_getreg_b32 s94, hwreg(HW_REG_XCC_ID)")
        A("s_lshl_b32 s92, s62, 16\ns_add_u32 s92, s92, s59\ns_lshl_b32 s4, s49, 11\ns_add_u32 s92, s92, s4")
        for q in range(4):
            for i in range(4):
                A(f"v_mov_b32 v{4 + i}, s{64 + 2 * (4 * q + i)}")
            A(f"global_store_dwordx4 v1, v[4:7], s[38:39] offset:{16 * q}")
            A("s_nop 1")

    def rowsum(a, op="add"):
        for s in (8, 4, 2, 1):
            A(f"v_{op}_f32_dpp v{a}, v{a}, v{a} row_ror:{s} {FULL}")

    def xrow(a, t, op="add"):
        A(f"v_mov_b32 v{t}, v{a}")
        A(f"v_permlane16_swap_b32 v{a}, v{t}")
        A(f"v_{op}_f32 v{a}, v{a}, v{t}")
        A(f"v_mov_b32 v{t}, v{a}")
        A(f"v_permlane32_swap_b32 v{a}, v{t}")
        A(f"v_{op}_f32 v{a}, v{a}, v{t}")

    def scatter4(r):
        A(f"v_permlane32_swap_b32 v{r}, v{r + 1}\nv_permlane32_swap_b32 v{r + 2}, v{r + 3}")
        A(f"v_add_f32 v{r}, v{r}, v{r + 1}\nv_add_f32 v{r + 2}, v{r + 2}, v{r + 3}")
        A(f"v_permlane16_swap_b32 v{r}, v{r + 2}")
        A(f"v_add_f32 v{r}, v{r}, v{r + 2}")

    def sigma(dst, t):
        A(f"v_bfe_u32 v{dst}, v0, 4, 1\nv_lshrrev_b32 v{t}, 5, v0\nv_lshl_add_u32 v{dst}, v{dst}, 1, v{t}")

    def rbf(a):
        A(f"v_cvt_pk_bf16_f32 v{a}, v{a}, v{a}")
        A(f"v_lshlrev_b32 v{a}, 16, v{a}")

    def ln_stats(vals, mean, den, rden, t0, t1, tmp):
        A(f"v_add_f32 v{t0}, v{vals[0]}, v{vals[1]}")
        A(f"v_add_f32 v{t1}, v{vals[2]}, v{vals[3]}")
        A(f"v_add_f32 v{mean}, v{vals[4]}, v{vals[5]}")
        A(f"v_add_f32 v{den}, v{vals[6]}, v{vals[7]}")
        A(f"v_add_f32 v{t0}, v{t0}, v{t1}")
        A(f"v_add_f32 v{mean}, v{mean}, v{den}")
        A(f"v_add_f32 v{mean}, v{mean}, v{t0}")
        rowsum(mean)
        xrow(mean, t0)
        A(f"v_mul_f32 v{mean}, 0x3b000000, v{mean}")
        for i in range(8):
            A(f"v_sub_f32 v{tmp[i]}, v{vals[i]}, v{mean}")
        A(f"v_mul_f32 v{den}, v{tmp[0]}, v{tmp[0]}")
        A(f"v_mul_f32 v{t1}, v{tmp[1]}, v{tmp[1]}")
        for i in range(2, 8, 2):
            A(f"v_fmac_f32 v{den}, v{tmp[i]}, v{tmp[i]}")
            A(f"v_fmac_f32 v{t1}, v{tmp[i + 1]}, v{tmp[i + 1]}")
        A(f"v_add_f32 v{den}, v{den}, v{t1}")
        rowsum(den)
        xrow(den, t0)
        A(f"v_mul_f32 v{den}, 0x3b000000, v{den}")
        A(f"v_cvt_pk_bf16_f32 v{t0}, v{mean}, v{den}")
        A(f"v_lshlrev_b32 v{mean}, 16, v{t0}")
        A(f"v_and_b32 v{den}, 0xffff0000, v{t0}")
        A(f"v_add_f32 v{den}, 0x3727c5ac, v{den}")
        rbf(den)
        A(f"v_sqrt_f32 v{t0}, v{den}")
        A(f"v_rsq_f32 v{t1}, v{den}")
        A(f"v_fma_f32 v{den}, -v{t0}, v{t0}, v{den}")
        A(f"v_mul_f32 v{t1}, 0.5, v{t1}")
        A(f"v_fma_f32 v{den}, v{den}, v{t1}, v{t0}")
        rbf(den)
        A(f"v_rcp_f32 v{rden}, v{den}")

    def ln_apply(xs, mean, den, rden, ts):
        for x in xs:
            A(f"v_sub_f32 v{x}, v{x}, v{mean}")
        for x in xs:
            A(f"v_cvt_pk_bf16_f32 v{x}, v{x}, v{x}")
        for x in xs:
            A(f"v_lshlrev_b32 v{x}, 16, v{x}")
        for x, t in zip(xs, ts):
            A(f"v_mul_f32 v{t}, v{x}, v{rden}")
        for x, t in zip(xs, ts):
            A(f"v_fma_f32 v{x}, -v{t}, v{den}, v{x}")
        for x, t in zip(xs, ts):
            A(f"v_fma_f32 v{x}, v{x}, v{rden}, v{t}")

    def ln2():
        A("v_mov_b32 v133, v132")
        for i in range(4):
            A(f"v_pk_add_f32 v[{124 + 2 * i}:{125 + 2 * i}], v[{124 + 2 * i}:{125 + 2 * i}], v[132:133] neg_lo:[0,1] neg_hi:[0,1]")
        A("v_pk_add_f32 v[134:135], v[124:125], v[126:127]")
        A("v_pk_mul_f32 v[136:137], v[124:125], v[124:125]")
        A("v_pk_add_f32 v[138:139], v[128:129], v[130:131]")
        A("v_pk_fma_f32 v[136:137], v[126:127], v[126:127], v[136:137]")
        A("v_pk_add_f32 v[134:135], v[134:135], v[138:139]")
        A("v_pk_fma_f32 v[136:137], v[128:129], v[128:129], v[136:137]")
        A("v_add_f32 v16, v134, v135")
        A("v_pk_fma_f32 v[136:137], v[130:131], v[130:131], v[136:137]")
        A("v_add_f32 v17, v136, v137")
        for m in ("row_shr:1", "row_shr:2", "row_shr:4", "row_shr:8"):
            A(f"v_add_f32_dpp v16, v16, v16 {m} {FULL} bound_ctrl:0")
            A(f"v_add_f32_dpp v17, v17, v17 {m} {FULL} bound_ctrl:0")
        for m in ("row_bcast:15 row_mask:0xa", "row_bcast:31 row_mask:0xc"):
            A(f"v_add_f32_dpp v16, v16, v16 {m} bank_mask:0xf")
            A(f"v_add_f32_dpp v17, v17, v17 {m} bank_mask:0xf")
        A("v_readlane_b32 s4, v16, 63")
        A("v_readlane_b32 s5, v17, 63")
        A("v_mov_b32 v18, 0x3b000000")
        A("v_mul_f32 v16, s4, v18")
        A("v_mul_f32 v17, s5, v18")
        A("v_fma_f32 v17, -v16, v16, v17")
        A("v_add_f32 v16, v16, v132")
        A("v_max_f32 v17, 0, v17")
        A("v_cvt_pk_bf16_f32 v18, v16, v17")
        A("v_and_b32 v17, 0xffff0000, v18")
        A("v_lshlrev_b32 v16, 16, v18")
        A("v_add_f32 v17, 0x3727c5ac, v17")
        A("v_sub_f32 v120, v120, v16")
        A("v_cvt_pk_bf16_f32 v18, v120, v17")
        A("v_and_b32 v17, 0xffff0000, v18")
        A("v_sqrt_f32 v17, v17")
        A("v_lshlrev_b32 v120, 16, v18")
        rbf(17)
        A("v_rcp_f32 v18, v17")
        A("v_mul_f32 v19, v120, v18")
        A("v_fma_f32 v120, -v19, v17, v120")
        A("v_fma_f32 v120, v120, v18, v19")

    def poll(label, loads, regs, t, slp=None, between=None):
        slp = sleep if slp is None else slp
        A("s_mov_b32 s59, 0")
        if between:
            for l in loads:
                A(l)
            between()
            A(f"s_branch {label}_chk")
        A(f"{label}:")
        for l in loads:
            A(l)
        if between:
            A(f"{label}_chk:")
        A("s_waitcnt vmcnt(0)")
        regs = list(regs)
        if len(regs) == 1:
            t = regs[0]
            rest = []
        elif len(regs) % 2 == 0:
            A(f"v_max_u32 v{t}, v{regs[0]}, v{regs[1]}")
            rest = regs[2:]
        else:
            A(f"v_max3_u32 v{t}, v{regs[0]}, v{regs[1]}, v{regs[2]}")
            rest = regs[3:]
        for i in range(0, len(rest), 2):
            A(f"v_max3_u32 v{t}, v{t}, v{rest[i]}, v{rest[i + 1]}")
        A(f"v_cmp_eq_u32 vcc, -1, v{t}")
        A(f"s_branch {label}_ok" if ("svc3" in xp and label in ("L_pollq", "L_pollall")) else f"s_cbranch_vccz {label}_ok")
        A("s_add_u32 s59, s59, 1")
        A(f"s_cmp_lt_u32 s59, {SPIN_MAX}")
        A(f"s_cbranch_scc0 {label}_ok")
        if masked:
            A("s_mov_b64 exec, vcc")
        if slp:
            A(f"s_sleep {slp}")
        A(f"s_branch {label}")
        A(f"{label}_ok:")
        if masked:
            A("s_mov_b64 exec, -1")

    def ldswait(label, off, val=None):
        A(f"v_mov_b32 v24, {L_F}\ns_mov_b32 s5, 0")
        A(f"{label}:")
        A(f"ds_read_b32 v25, v24 offset:{off}")
        A("s_waitcnt lgkmcnt(0)")
        A("v_cmp_ne_u32 vcc, 0, v25" if val is None else f"v_cmp_eq_u32 vcc, {val}, v25")
        A(f"s_cbranch_vccnz {label}_ok")
        A(f"s_add_u32 s5, s5, 1\ns_cmp_lt_u32 s5, {SPIN_MAX * 64}\ns_cbranch_scc0 {label}_ok")
        A("s_sleep 1")
        A(f"s_branch {label}")
        A(f"{label}_ok:")

    def store_quad(val, addr, lo="0x11111111", hi="0x11111111", fl="sc1", addr2=None):
        for i in (1, 2, 3):
            A(f"v_mov_b32_dpp v{val + i}, v{val} quad_perm:[{i},{i},{i},{i}] {FULL}")
        A(f"s_mov_b32 exec_lo, {lo}\ns_mov_b32 exec_hi, {hi}")
        A(f"global_store_dwordx4 v{addr}, v[{val}:{val + 3}], s[38:39] {fl}")
        if addr2 is not None:
            A(f"global_store_dwordx4 v{addr2}, v[{val}:{val + 3}], s[38:39] {fl}")
        A("s_mov_b64 exec, -1")

    def roles():
        brot = 0 if local else 4
        A(f"s_add_u32 s61, s6, {brot}\ns_and_b32 s61, s61, 7")
        A("s_bfe_u32 s13, s7, 0x10003\ns_lshl_b32 s4, s61, 1\ns_add_u32 s13, s13, s4")
        A("s_and_b32 s14, s7, 7")
        A("s_mul_i32 s15, s6, 14\ns_add_u32 s15, s15, s7")

    def rowoff(dst, row, tmp, on=True):
        if dup is None or not on:
            A(f"s_lshl_b32 {dst}, {row}, 11")
        else:
            A(f"s_lshr_b32 {tmp}, {row}, 2\ns_lshl_b32 {tmp}, {tmp}, 14\ns_and_b32 {dst}, {row}, 3\ns_lshl_b32 {dst}, {dst}, 11\ns_add_u32 {dst}, {dst}, {tmp}")

    def mycopy(dst):
        if dup == "auto":
            A(f"s_mov_b32 {dst}, s49")
        else:
            A(f"s_lshr_b32 {dst}, s6, 2\ns_xor_b32 {dst}, {dst}, {dup}\ns_lshl_b32 {dst}, {dst}, 13")

    def p1slot(dst):
        A(f"s_lshl_b32 {dst}, s6, 5\ns_add_u32 {dst}, {dst}, s7\ns_mul_i32 {dst}, {dst}, {P1_STRIDE}\ns_add_u32 {dst}, {dst}, {WS_P1}")

    stamp_at(0)
    A("s_load_dwordx16 s[16:31], s[0:1], 0")
    A("s_load_dwordx8 s[32:39], s[0:1], 64")
    A("s_cmp_ge_u32 s2, 256")
    A("s_cbranch_scc1 L_end")
    A("v_lshrrev_b32 v1, 6, v0")
    A("v_and_b32 v0, 63, v0")
    A("v_readfirstlane_b32 s3, v1")
    A("s_and_b32 s6, s2, 7")
    A("s_lshr_b32 s7, s2, 3")
    A(f"s_add_u32 s60, s6, {qrot}\ns_and_b32 s60, s60, 7")
    A("v_lshlrev_b32 v9, 4, v0")
    A("s_cmp_eq_u32 s3, 8")
    A("s_cbranch_scc1 L_service")
    def wqaddr():
        A("v_lshrrev_b32 v10, 3, v0\nv_and_b32 v11, 7, v0\nv_lshlrev_b32 v10, 13, v10\nv_lshl_add_u32 v10, v11, 4, v10")
        A("s_and_b32 s4, s7, 3\ns_lshl_b32 s4, s4, 3\ns_add_u32 s4, s4, s3\ns_lshl_b32 s4, s4, 7\ns_add_u32 s4, s4, s60\ns_lshl_b32 s4, s4, 3")
        A("s_lshr_b32 s5, s7, 2\ns_add_u32 s4, s4, s5\ns_lshl_b32 s4, s4, 7")
        A("v_add_u32 v10, s4, v10\nv_add_u32 v11, 0x10000, v10")
        A(f"s_lshl_b32 s57, s3, 11\ns_add_u32 m0, s57, {L_W}")

    def clears():
        for i in range(4):
            A(f"v_mov_b32 v{12 + i}, -1")
        roles()
        p1slot("s4")
        rowoff("s5", "s15", "s8", dup3)
        A(f"s_add_u32 s5, s5, {WS_P3 - 256}")
        rowoff("s8", "s13", "s9")
        A(f"s_lshl_b32 s9, s14, 8\ns_add_u32 s8, s8, s9\ns_add_u32 s8, s8, {WS_P2 - 256}")
        A("s_cmp_ge_u32 s7, 16\ns_cselect_b32 s5, s8, s5\ns_cselect_b32 s8, 1, 8\ns_cselect_b32 s9, 32, 14")
        A("s_cmp_lt_u32 s7, s9\ns_cselect_b32 s8, s8, 0\ns_cmp_lt_u32 s3, s8\ns_cselect_b32 s8, -1, 0xffff")
        if dup is not None:
            A("s_cselect_b32 s9, 0xffff, 0")
            if not dup3:
                A("s_cmp_ge_u32 s7, 16\ns_cselect_b32 s9, s9, 0")
        A("v_mov_b32 v16, s4\nv_mov_b32 v17, s5\nv_cmp_gt_u32 vcc, 16, v0\ns_lshl_b32 s4, s3, 8")
        A("v_cndmask_b32 v16, v17, v16, vcc\nv_add3_u32 v16, v16, v9, s4")
        if dup is not None:
            A(f"v_lshrrev_b32 v17, 5, v0\nv_mul_u32_u24 v17, {8192 - 256}, v17\nv_add_u32 v16, v16, v17")

    def clearstore():
        A("s_mov_b32 exec_lo, s8\ns_mov_b32 exec_hi, " + ("0" if dup is None else "s9"))
        A("global_store_dwordx4 v16, v[12:15], s[38:39] sc1")
        A("s_mov_b64 exec, -1")

    def wqload():
        A("s_cmp_eq_u32 s3, 0")
        A("s_cbranch_scc0 L_nox")
        A(f"s_mov_b32 m0, {L_X}")
        A("global_load_lds_dwordx4 v9, s[16:17]")
        A(f"s_mov_b32 m0, {L_W}")
        A("s_nop 0")
        A("L_nox:")
        A(f"global_load_lds_dwordx4 v10, s[22:23]{wntf}")
        A("s_add_u32 m0, m0, 1024")
        A(f"global_load_lds_dwordx4 v11, s[22:23]{wntf}")
    if not kfirst:
        wqaddr()
    vKS = (1, 2, 3, 4)
    vKR = (5, 6, 7, 8)
    vV, vM, vML, vL = 9, 10, 11, 12
    PK = (13, 14)
    vAl = 15
    SEL = (16, 17, 18, 19)
    S = (20, 21, 22, 23)
    T = (24, 25, 26, 27)
    BB = 28
    vT2 = 38
    ACC = (40, 44)
    QF = 48
    KF = 64
    VR = [80 + 16 * i for i in range(VRING)]
    A("v_lshrrev_b32 v24, 4, v0")
    A("v_lshlrev_b32 v25, 6, v24")
    A(f"v_xor_b32 v{vKS[0]}, v{vV}, v25")
    for i in (1, 2, 3):
        A(f"v_xor_b32 v{vKS[i]}, {16 * i}, v{vKS[0]}")
    if split:
        A(f"v_add_u32 v{vKS[2]}, 6144, v{vKS[2]}\nv_add_u32 v{vKS[3]}, 6144, v{vKS[3]}\nv_add_u32 v39, 6144, v{vV}")
    A("s_lshl_b32 s10, s6, 23")
    if inter == "wgtile":
        if split:
            A("s_lshl_b32 s11, s7, 18\ns_add_u32 s10, s10, s11\ns_and_b32 s11, s3, 3\ns_lshl_b32 s11, s11, 11\ns_add_u32 s10, s10, s11")
            A("s_lshr_b32 s11, s3, 2\ns_lshl_b32 s11, s11, 14\ns_add_u32 s10, s10, s11")
        else:
            A("s_lshl_b32 s11, s7, 18\ns_add_u32 s10, s10, s11\ns_lshl_b32 s11, s3, 12\ns_add_u32 s10, s10, s11")
        step = 8 * 4096
    elif inter == "contig":
        A("s_lshl_b32 s11, s7, 18\ns_add_u32 s10, s10, s11\ns_lshl_b32 s11, s3, 15\ns_add_u32 s10, s10, s11")
        step = 4096
    elif inter == "global":
        A("s_lshl_b32 s11, s7, 15\ns_add_u32 s10, s10, s11\ns_lshl_b32 s11, s3, 12\ns_add_u32 s10, s10, s11")
        step = 256 * 4096
    A("s_mov_b32 s11, s10")
    A(f"s_mul_i32 s56, s3, {KRING * 4096}\ns_add_u32 s56, s56, {L_K}")
    A("s_mov_b32 s42, 0x4000000\ns_mov_b32 s43, 0x20000")
    if kfirst:
        A("s_mov_b32 m0, s56")
    if sclr == "first" and "noclear" not in xp:
        clears()
    A("s_waitcnt lgkmcnt(0)")
    stamp_at(12)
    if sclr == "first" and "noclear" not in xp:
        clearstore()
    if not kfirst:
        A("s_barrier")
        wqload()
        A("s_mov_b32 m0, s56")
    A("s_mov_b32 s40, s18\ns_and_b32 s41, s19, 0xffff")
    stamp_at(11)
    vm = VM()
    ids = {}
    m0k = [0]
    order = (order or "K0 V0 K1 V1 K2 V2 V3 V4 K3 K4 K5 V5 K6 V6 K7 V7").split()
    seq = [(g[0], int(g[1]), u) for g in order for u in range(4)]
    NPRE = 4 * (KRING + VRING)

    def W(opid):
        w = vm.wait(opid)
        if w:
            A(w)

    def load(n):
        mat, t, u = seq[n]
        d = D if n < d2from else D2
        if D3 and n >= d3from:
            d = D3
        if adapt and n >= NPRE and n in adapt[2]:
            W(ids[seq[n - d - 1]])
            A(f"s_cbranch_vccnz L_ad{n}")
            A(f"s_waitcnt vmcnt({d - 1})")
            A(f"L_ad{n}:")
        elif n >= d:
            W(ids[seq[n - d]])
            if adapt and n >= NPRE and n in adapt[3]:
                A(f"s_cmp_le_u32 s9, {adapt[0]}")
                A(f"s_cbranch_scc0 L_ad{n}")
                A(f"s_waitcnt vmcnt({d - 2})")
                A(f"L_ad{n}:")
        if opos and n in opos and "now" not in xp:
            for i, p in enumerate(opos):
                if p == n:
                    A(f"global_load_dwordx4 v[164:167], v161, s[24:25] offset:{1024 * i}")
        if mat == "K":
            if m0k[0] != t:
                m0k[0] = t
                A(f"s_add_u32 m0, s56, {4096 * (t % KRING)}")
            A(f"buffer_load_dwordx4 v{vKS[u]}, s[40:43], s10 offen offset:{1024 * u}{ntf} lds")
            if u == 3:
                A(f"s_add_u32 s10, s10, {step}")
        else:
            r = VR[t % VRING] + 4 * u
            A(f"buffer_load_dwordx4 v[{r}:{r + 3}], v{39 if (split and u >= 2) else vV}, s[44:47], s11 offen offset:{1024 * u}{ntf}")
            if u == 3:
                A(f"s_add_u32 s11, s11, {step}")
        ids[seq[n]] = vm.issue()
        if n == qpos:
            A(f"v_mov_b32 v39, {L_F}\nds_write_b32 v39, v39 offset:8")
        if n == vpos and dup == "auto" and vpos:
            A("ds_write_b32 v39, v39 offset:20")

    def consts():
        A("v_and_b32 v24, 3, v0")
        A("v_mov_b32 v25, 0x0c0c0c0c")
        for k, (lo, e0) in enumerate(((0x0100, 0), (0x0100, 2), (0x0302, 0), (0x0302, 2))):
            A(f"v_mov_b32 v26, {hex(0x0c0c0000 | lo)}")
            A(f"v_mov_b32 v27, {hex((lo << 16) | 0x0c0c)}")
            A(f"v_cmp_eq_u32 vcc, {e0}, v24")
            A(f"v_cndmask_b32 v{SEL[k]}, v25, v26, vcc")
            A(f"v_cmp_eq_u32 vcc, {e0 + 1}, v24")
            A(f"v_cndmask_b32 v{SEL[k]}, v{SEL[k]}, v27, vcc")
        for z in (0, 1, 4, 5, 8, 9):
            A(f"v_mov_b32 v{BB + z}, 0")
        A(f"s_mov_b32 s12, {hex(LOG2E)}")
        A("v_bfe_u32 v25, v0, 2, 2")
        A("v_lshrrev_b32 v26, 4, v0")
        A("v_lshlrev_b32 v27, 8, v25")
        A(f"v_lshl_add_u32 v{vT2}, v26, 4, v27")
        A("v_lshl_add_u32 v25, v24, 2, v25")
        A("v_and_b32 v27, 15, v0")
        A("v_xor_b32 v26, v26, v27")
        A("v_lshlrev_b32 v26, 4, v26")
        A("v_lshl_add_u32 v26, v25, 8, v26")
        for u in range(4):
            A(f"v_xor_b32 v{vKR[u]}, {64 * u}, v26")
            A(f"v_add_u32 v{vKR[u]}, s56, v{vKR[u]}")
        roles()
        A("s_lshl_b32 s58, s3, 12")
        if dlate:
            A(f"s_min_u32 s4, s15, 111\ns_lshl_b32 s4, s4, 3\ns_add_u32 s4, s4, s3\ns_lshl_b32 s4, s4, 11\nv_add_u32 v162, s4, v{vV}")
        A("s_lshl_b32 s4, s13, 3\ns_add_u32 s4, s4, s3\ns_lshl_b32 s4, s4, 15\ns_lshl_b32 s5, s14, 7\ns_add_u32 s4, s4, s5")
        A("v_lshrrev_b32 v160, 3, v0\nv_and_b32 v161, 7, v0\nv_lshlrev_b32 v160, 10, v160\nv_lshl_add_u32 v160, v161, 4, v160\nv_add_u32 v160, s4, v160")
        A(f"s_lshl_b32 s4, s61, 5\ns_add_u32 s4, s4, s7\ns_lshl_b32 s4, s4, 3\ns_add_u32 s4, s4, s3\ns_lshl_b32 s4, s4, 11\nv_add_u32 v161, s4, v{vV}")

    def late():
        if "now" in xp:
            return
        if dlate:
            A("s_cmp_lt_u32 s7, 14")
            A("s_cbranch_scc0 L_late_b")
            for i in range(2):
                A(f"s_add_u32 m0, s57, {L_W + 32768 + 1024 * i}")
                A(f"global_load_lds_dwordx4 v162, s[32:33] offset:0{wntf}")
                if i == 0:
                    A("v_add_u32 v162, 1024, v162")
            A("s_mov_b64 exec, 1")
            A("global_load_dword v163, v162, s[32:33]\nglobal_load_dword v163, v162, s[32:33]")
            A("s_branch L_late_done")
            A("L_late_b:")
        A("s_cmp_ge_u32 s7, 16")
        A("s_cselect_b64 exec, -1, 1")
        for i in range(4):
            A(f"s_add_u32 m0, s58, {L_W + 1024 * i}")
            A(f"global_load_lds_dwordx4 v160, s[24:25]{wntf if not opos else ''}")
            vm.issue()
            if i < 3:
                A("v_add_u32 v160, 0x2000, v160")
        A("L_late_done:")
        A("s_mov_b64 exec, -1")

    def qk(t, last=False):
        W(ids[("K", t, 3)])
        if "nocomp" in xp and not last:
            return
        k = KF
        for u in range(4):
            A(f"ds_read_b128 v[{k + 4 * u}:{k + 4 * u + 3}], v{vKR[u]} offset:{4096 * (t % KRING)}")
        for u in range(4):
            c = "0" if u == 0 else f"v[{S[0]}:{S[3]}]"
            A("s_waitcnt lgkmcnt(0)" if stamps else f"s_waitcnt lgkmcnt({3 - u})")
            A(f"v_mfma_f32_16x16x32_bf16 v[{S[0]}:{S[3]}], v[{k + 4 * u}:{k + 4 * u + 3}], v[{QF + 4 * u}:{QF + 4 * u + 3}], {c}")
        if last:
            A("v_bfe_u32 v26, v0, 2, 2")
            A("v_lshlrev_b32 v26, 5, v26")
            A("s_lshl_b32 s4, s3, 2")
            A("v_add_u32 v27, s4, v26")
        for rnd in range(2):
            A(f"v_cvt_pk_bf16_f32 v{T[0]}, v{S[0]}, v{S[1]}")
            A(f"v_cvt_pk_bf16_f32 v{T[1]}, v{S[2]}, v{S[3]}")
            A(f"v_lshlrev_b32 v{S[0]}, 16, v{T[0]}")
            A(f"v_and_b32 v{S[1]}, 0xffff0000, v{T[0]}")
            A(f"v_lshlrev_b32 v{S[2]}, 16, v{T[1]}")
            A(f"v_and_b32 v{S[3]}, 0xffff0000, v{T[1]}")
            if rnd == 0:
                for r in range(4):
                    A(f"v_mul_f32 v{S[r]}, {hex(SCALE)}, v{S[r]}")
        if t == 0:
            A(f"v_max_f32 v{vM}, v{S[0]}, v{S[1]}")
            A(f"v_max3_f32 v{vM}, v{vM}, v{S[2]}, v{S[3]}")
        else:
            A(f"v_max3_f32 v{vM}, v{vM}, v{S[0]}, v{S[1]}")
            A(f"v_max3_f32 v{vM}, v{vM}, v{S[2]}, v{S[3]}")
        xrow(vM, T[0], "max")
        if last:
            A("s_mov_b64 exec, 0x1111")
            A(f"ds_write_b32 v27, v{vM} offset:{L_M}")
            A("s_mov_b64 exec, -1")
            A("s_waitcnt lgkmcnt(0)")
            A("s_barrier")
            if lpos == "b1":
                late()
            k0 = KF
            A(f"ds_read_b128 v[{k0}:{k0 + 3}], v26 offset:{L_M}")
            A(f"ds_read_b128 v[{k0 + 4}:{k0 + 7}], v26 offset:{L_M + 16}")
            A("s_waitcnt lgkmcnt(0)")
            A(f"v_max3_f32 v{vM}, v{k0}, v{k0 + 1}, v{k0 + 2}")
            A(f"v_max3_f32 v{vM}, v{vM}, v{k0 + 3}, v{k0 + 4}")
            A(f"v_max3_f32 v{vM}, v{vM}, v{k0 + 5}, v{k0 + 6}")
            A(f"v_max_f32 v{vM}, v{vM}, v{k0 + 7}")
        if t > 0:
            A(f"v_mov_b32 v{vAl}, v{vML}")
        A(f"v_mul_f32 v{vML}, s12, v{vM}")
        if t > 0:
            A(f"v_sub_f32 v{vAl}, v{vAl}, v{vML}")
            A(f"v_exp_f32 v{vAl}, v{vAl}")
        for r in range(4):
            A(f"v_fma_f32 v{S[r]}, v{S[r]}, s12, -v{vML}")
        for r in range(4):
            A(f"v_exp_f32 v{S[r]}, v{S[r]}")
        if t > 0:
            for a in range(8):
                A(f"v_mul_f32 v{ACC[0] + a}, v{vAl}, v{ACC[0] + a}")
        A(f"v_add_f32 v{T[0]}, v{S[0]}, v{S[1]}")
        A(f"v_add_f32 v{T[1]}, v{S[2]}, v{S[3]}")
        A(f"v_cvt_pk_bf16_f32 v{PK[0]}, v{S[0]}, v{S[1]}")
        A(f"v_cvt_pk_bf16_f32 v{PK[1]}, v{S[2]}, v{S[3]}")
        if t == 0:
            A(f"v_add_f32 v{vL}, v{T[0]}, v{T[1]}")
        else:
            A(f"v_add_f32 v{T[0]}, v{T[0]}, v{T[1]}")
            A(f"v_fma_f32 v{vL}, v{vL}, v{vAl}, v{T[0]}")
        if last:
            xrow(vL, T[0])
            A("s_mov_b64 exec, 0x1111")
            A(f"ds_write_b32 v27, v{vL} offset:{L_L}")
            A("s_mov_b64 exec, -1")
            A("s_and_b32 s4, s3, 1\ns_lshl_b32 s4, s4, 6\nv_lshrrev_b32 v26, 5, v0\nv_lshl_add_u32 v26, v26, 5, s4")
            A(f"v_mov_b32 v27, {L_F}")
            A("s_waitcnt lgkmcnt(0)")
            A("s_barrier")
            if lpos == "b1b":
                late()
            A(f"ds_read_b128 v[64:67], v26 offset:{L_M}")
            A(f"ds_read_b128 v[68:71], v26 offset:{L_M + 16}")
            A(f"ds_read_b128 v[72:75], v26 offset:{L_L}")
            A(f"ds_read_b128 v[76:79], v26 offset:{L_L + 16}")
            A("ds_read2_b32 v[26:27], v27 offset0:4 offset1:1")
            A("s_waitcnt lgkmcnt(0)")
            A("v_max3_f32 v64, v64, v65, v66\nv_max3_f32 v64, v64, v67, v68\nv_max3_f32 v64, v64, v69, v70\nv_max_f32 v64, v64, v71")
            for i in range(4):
                A(f"v_add_f32 v{72 + i}, v{72 + i}, v{76 + i}")
            A("v_add_f32 v72, v72, v73\nv_add_f32 v74, v74, v75\nv_add_f32 v72, v72, v74")
            A("v_readfirstlane_b32 s62, v27")
            A("v_readfirstlane_b32 s49, v26")
            A("v_log_f32 v73, v72")
            A(f"v_rcp_f32 v{vAl}, v72")
            A(f"v_mul_f32 v64, s12, v64")
            A(f"v_add_f32 v{vL}, v64, v73")
            A(f"v_and_b32 v{vM}, 3, v0\nv_add_u32 v{vM}, 0x07060501, v{vM}")
            A("s_mov_b32 s50, 0x88888888\ns_mov_b32 s51, 0x88888888")

    def pv(t, last=False):
        v = VR[t % VRING]
        if "nocomp" in xp and not last:
            W(ids[("V", t, 3)])
            return

        def perm(i):
            b = BB + 2 + 4 * (i & 1)
            A(f"v_perm_b32 v{b}, v{PK[i >> 1]}, v{PK[i >> 1]}, v{SEL[2 * (i & 1)]}")
            A(f"v_perm_b32 v{b + 1}, v{PK[i >> 1]}, v{PK[i >> 1]}, v{SEL[2 * (i & 1) + 1]}")
        perm(0)
        perm(1)
        if not last:
            W(ids[("V", t, 3)])
        else:
            A(f"v_add_u32 v64, s56, v{vV}")
            A("v_and_b32 v65, 15, v0\nv_bfe_u32 v66, v0, 4, 1\nv_mul_u32_u24 v66, 272, v66\nv_add_u32 v65, v65, v66")
            A("v_lshrrev_b32 v66, 5, v0\nv_lshl_add_u32 v65, v66, 4, v65\ns_lshl_b32 s4, s3, 7")
            A(f"s_add_u32 s4, s4, {L_K}\nv_lshl_add_u32 v65, v65, 2, s4")
            A(f"v_add_u32 v66, {4 * KRING * 4096}, v65")
            p1slot("s4")
            A("s_lshl_b32 s5, s3, 8\ns_add_u32 s5, s5, s4\nv_lshl_add_u32 v67, v0, 2, s5")
        for i in range(4):
            if last:
                W(ids[("V", t, i)])
            b = BB + 2 + 4 * (i & 1)
            for h in range(2):
                c = "0" if (t == 0 and i == 0) else f"v[{ACC[h]}:{ACC[h] + 3}]"
                bb = b if h == 0 else b - 2
                A(f"v_mfma_f32_16x16x32_bf16 v[{ACC[h]}:{ACC[h] + 3}], v[{v + 4 * i}:{v + 4 * i + 3}], v[{bb}:{bb + 3}], {c}")
            if i < 2:
                perm(i + 2)

    for n in range(NPRE):
        load(n)
        if n == 3:
            A("s_mov_b32 s44, s20\ns_and_b32 s45, s21, 0xffff\ns_mov_b32 s46, 0x4000000\ns_mov_b32 s47, 0x20000")
            if sclr == "after" and "noclear" not in xp:
                clears()
                clearstore()
            if kfirst:
                wqaddr()
                wqload()
                m0k[0] = None
                A("s_barrier")
        if n == max(D - 1, 3):
            consts()
        if n == bpos:
            stamp_at(13)
            A(f"v_mov_b32 v24, {L_F}\nv_mov_b32 v25, 1\ns_mov_b64 exec, 1\nds_add_u32 v24, v25 offset:12\ns_mov_b64 exec, -1")
        if n == qpos and False:
            A(f"v_mov_b32 v24, {L_F}\nds_write_b32 v24, v24 offset:8")
    stamp_at(1)
    ldswait("L_waitq", 0)
    if adapt:
        lo, hi, lsites, tsites = adapt
        A("v_readfirstlane_b32 s9, v25")
        A(f"v_cmp_lt_u32 vcc, {hi}, v25")
        if stamps:
            A("s_mov_b32 s88, s9")
    stamp_at(2)
    for u in range(4):
        A(f"ds_read_b128 v[{QF + 4 * u}:{QF + 4 * u + 3}], v{vT2} offset:{L_Q + 64 * u}")
    A("s_waitcnt lgkmcnt(0)")
    blocks = []
    for t in range(7):
        blocks += [(qk, t, ("K", t, 3)), (pv, t, ("V", t, 3))]
    bi = 0
    for n in range(NPRE, len(seq)):
        mat, t, u = seq[n]
        needb = {"K": 2 * (t - KRING) + 1, "V": 2 * (t - VRING) + 2}[mat]
        while bi < needb:
            blocks[bi][0](blocks[bi][1])
            bi += 1
        load(n)
        if bi < len(blocks) and blocks[bi][2] in ids and ids[blocks[bi][2]] <= vm.done:
            blocks[bi][0](blocks[bi][1])
            bi += 1
    if lpos == "v7":
        late()
    while bi < len(blocks):
        blocks[bi][0](blocks[bi][1])
        bi += 1
    for _ in range(pad1):
        A("s_nop 0")
    qk(7, last=True)
    stamp_at(3)
    pv(7, last=True)
    stamp_at(4)
    A(f"ds_write_b128 v64, v[{ACC[0]}:{ACC[0] + 3}]")
    A(f"ds_write_b128 v64, v[{ACC[1]}:{ACC[1] + 3}] offset:1088")
    A("s_waitcnt lgkmcnt(0)")
    A("s_barrier")
    R0 = 72
    for i in range(8):
        A(f"ds_read_b32 v{R0 + i}, v{65 + (i >> 2)} offset:{KRING * 4096 * (i & 3)}")
    A("s_cmp_eq_u32 s62, 1")
    A("s_waitcnt lgkmcnt(0)")
    for i in range(2):
        A(f"v_pk_add_f32 v[{R0 + 2 * i}:{R0 + 2 * i + 1}], v[{R0 + 2 * i}:{R0 + 2 * i + 1}], v[{R0 + 4 + 2 * i}:{R0 + 5 + 2 * i}]")
    A(f"v_pk_add_f32 v[{R0}:{R0 + 1}], v[{R0}:{R0 + 1}], v[{R0 + 2}:{R0 + 3}]")
    A(f"v_add_f32 v{R0}, v{R0}, v{R0 + 1}")
    A(f"v_mul_f32 v{R0}, v{R0}, v{vAl}")
    A(f"v_mov_b32_dpp v{R0 + 1}, v{R0} quad_perm:[3,3,3,3] {FULL}")
    A(f"v_perm_b32 v{R0}, v{R0}, v{R0 + 1}, v{vM}")
    A(f"v_cndmask_b32 v{R0}, v{R0}, v{vL}, s[50:51]")
    A("s_cbranch_scc0 L_pubfar")
    A(f"global_store_dword v67, v{R0}, s[38:39]")
    A("L_published:")
    for _ in range(pad2):
        A("s_nop 0")
    stamp_at(5)
    A("s_cmp_lt_u32 s7, 14")
    A("s_cbranch_scc1 L_ffn")
    A("s_cmp_lt_u32 s7, 16")
    A("s_cbranch_scc1 L_final")
    A(f"s_lshl_b32 s4, s61, 5\nv_lshrrev_b32 v16, 3, v0\nv_add_u32 v16, s4, v16\nv_mul_u32_u24 v16, {P1_STRIDE}, v16")
    A("s_and_b32 s4, s13, 1\ns_lshl_b32 s4, s4, 1\ns_lshr_b32 s5, s3, 2\ns_add_u32 s4, s4, s5")
    A(f"s_and_b32 s5, s3, 3\ns_lshl_b32 s5, s5, 2\ns_add_u32 s4, s4, s5\ns_lshl_b32 s4, s4, 7\ns_add_u32 s4, s4, {WS_P1}")
    A("v_and_b32 v17, 7, v0\nv_lshl_add_u32 v16, v17, 4, v16\nv_add_u32 v24, s4, v16")
    for pi in range(1, 4):
        A(f"v_add_u32 v{24 + pi}, {8 * pi * P1_STRIDE}, v24")
    A("s_mov_b32 s52, 0x04000c0c\ns_mov_b32 s53, 0x0706000c")
    A("s_mov_b32 s54, 0xffff0000\ns_mov_b32 s55, 0xffff0000\ns_mov_b32 s50, 0\ns_mov_b32 s51, -1")
    sigma(16, 17)
    A("v_bfe_u32 v17, v0, 2, 2\nv_lshl_add_u32 v16, v16, 3, v17\nv_lshlrev_b32 v16, 7, v16")
    A("v_and_b32 v17, 3, v0\nv_lshl_add_u32 v16, v17, 3, v16\nv_add_u32 v16, s58, v16")
    WB = 88

    A("v_mov_b32 v30, v16")
    A("s_lshl_b32 s4, s3, 8\nv_lshl_add_u32 v18, v0, 2, s4")
    rowoff("s4", "s13", "s5")
    A(f"s_lshl_b32 s5, s14, 8\ns_add_u32 s4, s4, s5\ns_add_u32 s4, s4, {WS_P2}")
    if dup is not None:
        mycopy("s5")
        A("s_xor_b32 s5, s5, 0x2000\ns_add_u32 s4, s4, s5")
    A("v_lshlrev_b32 v19, 2, v0\nv_add_u32 v28, s4, v19")
    if dup is not None:
        A("v_xor_b32 v29, 0x2000, v28")
    D0 = 120
    loads = [f"global_load_dwordx4 v[{D0 + 4 * pi}:{D0 + 4 * pi + 3}], v{24 + pi}, s[38:39] sc1" for pi in range(4)]
    def bweights():
        if not bwait:
            A("s_waitcnt vmcnt(4)")
        for tau in range(4):
            for t in range(2):
                r = WB + 4 * tau + 2 * t
                A(f"ds_read_b64_tr_b16 v[{r}:{r + 1}], v30 offset:{L_W + 512 * t + 32 * tau}")
    if bwait:
        A("s_waitcnt vmcnt(1)")
    if gate:
        A("s_barrier")
    stamp_at(8)
    poll("L_poll1", loads, range(120, 136), 31, between=bweights)
    stamp_at(6)
    A(f"v_max3_f32 v16, v{D0 + 3}, v{D0 + 7}, v{D0 + 11}\nv_max_f32 v16, v16, v{D0 + 15}")
    for pi in range(2):
        A(f"v_perm_b32 v{136 + pi}, v{D0 + 4 * pi + 2}, v{D0 + 4 * pi + 1}, s52")
    A(f"v_max_f32_dpp v16, v16, v16 row_ror:8 {FULL}")
    A("v_mov_b32 v17, v16")
    for pi in range(2, 4):
        A(f"v_perm_b32 v{136 + pi}, v{D0 + 4 * pi + 2}, v{D0 + 4 * pi + 1}, s52")
    A("v_permlane16_swap_b32 v16, v17")
    A("v_max_f32 v16, v16, v17")
    A("v_mov_b32 v17, v16")
    A("v_permlane32_swap_b32 v16, v17")
    A("v_max_f32 v16, v16, v17")
    for pi in range(4):
        A(f"v_sub_f32 v{140 + pi}, v{D0 + 4 * pi + 3}, v16")
    for pi in range(4):
        A(f"v_exp_f32 v{140 + pi}, v{140 + pi}")
        A(f"v_perm_b32 v{D0 + 4 * pi + 3}, v{136 + pi}, v{D0 + 4 * pi}, s53")
    A("v_pk_add_f32 v[16:17], v[140:141], v[142:143]")
    for hlf in range(2):
        A(f"v_pk_mul_f32 v[{D0 + 2 * hlf}:{D0 + 2 * hlf + 1}], v[140:141], v[{D0 + 2 * hlf}:{D0 + 2 * hlf + 1}] op_sel_hi:[0,1]")
    A("v_add_f32 v16, v16, v17")
    for pi in range(1, 4):
        w = f"v[{140 + (pi & 2)}:{141 + (pi & 2)}]"
        sel = "op_sel:[1,0,0] op_sel_hi:[1,1,1]" if pi & 1 else "op_sel_hi:[0,1,1]"
        for hlf in range(2):
            r = D0 + 2 * hlf
            A(f"v_pk_fma_f32 v[{r}:{r + 1}], {w}, v[{r + 4 * pi}:{r + 4 * pi + 1}], v[{r}:{r + 1}] {sel}")
        if pi == 1:
            A(f"v_add_f32_dpp v16, v16, v16 row_ror:8 {FULL}")
    A("v_mov_b32 v17, v16")
    A(f"v_permlane32_swap_b32 v{D0}, v{D0 + 1}\nv_permlane32_swap_b32 v{D0 + 2}, v{D0 + 3}\nv_permlane32_swap_b32 v16, v17")
    A(f"v_add_f32 v{D0}, v{D0}, v{D0 + 1}\nv_add_f32 v{D0 + 2}, v{D0 + 2}, v{D0 + 3}\nv_add_f32 v16, v16, v17")
    A("v_mov_b32 v17, v16")
    A(f"v_permlane16_swap_b32 v{D0}, v{D0 + 2}\nv_permlane16_swap_b32 v16, v17")
    A(f"v_add_f32 v{D0}, v{D0}, v{D0 + 2}\nv_add_f32 v16, v16, v17")
    A(f"v_add_f32_dpp v{D0}, v{D0}, v{D0} row_ror:8 {FULL}")
    A("v_rcp_f32 v16, v16")
    A(f"v_mul_f32 v{D0}, v{D0}, v16")
    A(f"v_mov_b32_dpp v{D0 + 1}, v{D0} quad_perm:[1,0,3,2] {FULL}")
    A(f"v_cvt_pk_bf16_f32 v{D0}, v{D0}, v{D0 + 1}")
    for e in range(4):
        A(f"v_mov_b32_dpp v{124 + e}, v{D0} row_newbcast:{2 * e} {FULL}")
    A("s_waitcnt lgkmcnt(0)")
    for tau in range(4):
        A(f"v_mfma_f32_16x16x32_bf16 v[{128 + 4 * tau}:{131 + 4 * tau}], v[124:127], v[{WB + 4 * tau}:{WB + 4 * tau + 3}], 0")
    A("v_cndmask_b32 v128, v128, v132, s[54:55]")
    A("v_cndmask_b32 v136, v136, v140, s[54:55]")
    A("v_cndmask_b32 v128, v128, v136, s[50:51]")
    A(f"ds_write_b32 v18, v128 offset:{L_B}")
    A("s_cmp_eq_u32 s3, 0")
    A("s_waitcnt lgkmcnt(0)")
    A("s_barrier")
    A("s_cbranch_scc0 L_bdone")
    for i in range(8):
        A(f"ds_read_b32 v{120 + i}, v19 offset:{L_B + 256 * i}")
    A("s_waitcnt lgkmcnt(0)")
    for i in range(2):
        A(f"v_pk_add_f32 v[{120 + 2 * i}:{121 + 2 * i}], v[{120 + 2 * i}:{121 + 2 * i}], v[{124 + 2 * i}:{125 + 2 * i}]")
    A("v_pk_add_f32 v[120:121], v[120:121], v[122:123]")
    A("v_add_f32 v120, v120, v121")
    store_quad(120, 28, fl=st2, addr2=None if dup is None else 29)
    A("L_bdone:")
    if wb:
        A("s_cmp_eq_u32 s3, 1\ns_cbranch_scc0 L_nowb\ns_cmp_eq_u32 s7, 16\ns_cbranch_scc0 L_nowb")
        A("buffer_wbl2 sc1")
        A("L_nowb:")
    stamp_at(7)
    stamp_store()
    A("s_endpgm")
    A("L_pubfar:")
    A("s_nop 0")
    store_quad(R0, 67)
    A("s_branch L_published")
    A("L_ffn:")
    vCol = 65
    A("v_and_b32 v17, 7, v0\nv_bfe_u32 v16, v0, 3, 2\nv_lshl_add_u32 v16, v17, 2, v16")
    A("v_and_b32 v18, 32, v0\nv_add_u32 v16, v16, v18")
    A(f"s_lshl_b32 s4, s3, 6\nv_add_u32 v{vCol}, s4, v16")
    A(f"v_lshlrev_b32 v29, 1, v{vCol}")
    A(f"ds_read_u16_d16_hi v64, v29 offset:{L_X}")
    A(f"s_lshl_b32 s4, s3, 8\ns_add_u32 s4, s4, {WS_P2}")
    if dup is None:
        A("v_lshrrev_b32 v18, 3, v0\nv_lshlrev_b32 v19, 12, v18\nv_lshl_add_u32 v16, v17, 4, v19\nv_add_u32 v20, s4, v16")
    else:
        mycopy("s5")
        A("s_add_u32 s4, s4, s5")
        A("v_lshrrev_b32 v18, 4, v0\nv_lshlrev_b32 v19, 14, v18\nv_bfe_u32 v18, v0, 3, 1\nv_lshl_add_u32 v19, v18, 12, v19\nv_lshl_add_u32 v16, v17, 4, v19\nv_add_u32 v20, s4, v16")
    A("v_lshrrev_b32 v18, 4, v0\nv_and_b32 v17, 15, v0")
    rowoff("s4", "s15", "s5", dup3)
    A(f"s_add_u32 s4, s4, {WS_P3}\ns_lshl_b32 s5, s3, 8\ns_add_u32 s4, s4, s5")
    if dup is not None and dup3:
        mycopy("s5")
        A("s_xor_b32 s5, s5, 0x2000\ns_add_u32 s4, s4, s5")
    A("v_lshl_add_u32 v22, v0, 2, s4")
    if dup is not None and dup3:
        A("v_xor_b32 v21, 0x2000, v22")
    A("s_lshl_b32 s5, s3, 4\nv_mov_b32 v23, s5")
    A("v_and_b32 v24, 7, v0\nv_lshlrev_b32 v24, 4, v24")
    A("s_mov_b32 s63, 0x42800000\ns_mov_b32 s54, 0xffff0000\ns_mov_b32 s55, 0xffff0000")
    A("v_mov_b32 v67, 0x3b000000\nv_mov_b32 v68, 0x3727c5ac\nv_mov_b32 v69, 0xbdd2d3e8\nv_mov_b32 v70, 0xc0135761")
    for i in range(4):
        A(f"v_mov_b32 v{72 + i}, 0x3f803f80")
    A("s_lshl_b32 s4, s3, 7\nv_lshl_add_u32 v25, v18, 4, s4")
    A("v_lshlrev_b32 v27, 2, v0\ns_lshl_b32 s5, s3, 8\nv_add_u32 v26, s5, v27")
    A("v_lshl_add_u32 v28, v0, 1, s4")
    if cfast:
        A("v_bfe_u32 v16, v0, 2, 2\nv_lshlrev_b32 v16, 2, v16\nv_bfe_u32 v19, v0, 4, 1\nv_lshl_add_u32 v16, v19, 1, v16")
        A("v_and_b32 v19, 32, v0\nv_add_u32 v16, v16, v19\nv_lshlrev_b32 v16, 5, v16")
    else:
        A("v_bfe_u32 v16, v0, 2, 2\nv_lshl_add_u32 v16, v18, 3, v16\nv_lshlrev_b32 v16, 5, v16")
    A("v_and_b32 v17, 3, v0\nv_lshl_add_u32 v16, v17, 3, v16\nv_add_u32 v16, s57, v16")
    GW = 88
    DW = 104

    def dreads():
        for r in range(16):
            if r == 14:
                A("s_waitcnt lgkmcnt(0)")
            A(f"ds_read_u16_d16_hi v{DW + r}, v28 offset:{L_W + 32768 + 1024 * r}")
    if dsplit:
        if dlate:
            A("s_waitcnt vmcnt(1)")
        A("s_barrier")
        dreads()
        A("s_waitcnt lgkmcnt(0)")
    A("s_barrier")
    stamp_at(11)

    def cweights():
        for mat in range(2):
            for kap in range(2):
                for t in range(2):
                    r = GW + 8 * mat + 4 * kap + 2 * t
                    A(f"ds_read_b64_tr_b16 v[{r}:{r + 1}], v16 offset:{L_W + 16384 * mat + ((32 * kap + 512 * t) if cfast else (1024 * kap + 128 * t))}")
        if cfast:
            stamp_at(13)
            return
        colsums()

    def colsums():
        A("s_waitcnt lgkmcnt(0)")
        A(f"v_mfma_f32_16x16x32_bf16 v[140:143], v[72:75], v[{GW}:{GW + 3}], 0")
        A(f"v_mfma_f32_16x16x32_bf16 v[144:147], v[72:75], v[{GW + 8}:{GW + 11}], 0")
        A(f"v_mfma_f32_16x16x32_bf16 v[140:143], v[72:75], v[{GW + 4}:{GW + 7}], v[140:143]")
        A(f"v_mfma_f32_16x16x32_bf16 v[144:147], v[72:75], v[{GW + 12}:{GW + 15}], v[144:147]")
        if not cfast:
            A("v_cndmask_b32 v66, v140, v144, s[54:55]")
            stamp_at(13)
    loads = [f"global_load_dwordx4 v[{120 + 4 * i}:{123 + 4 * i}], v20, s[38:39] offset:{2048 * (i >> 1) + 128 * (i & 1)} {ld2}" for i in range(4)]
    poll("L_poll2", loads, range(120, 136), 31, between=cweights)
    stamp_at(6)
    if cfast:
        n0 = len(C)
        colsums()
        cs = C[n0:]
        del C[n0:]
        A(cs[0])
    for e in range(4):
        if cfast:
            A(cs[1 + e])
        A(f"v_pk_add_f32 v[{120 + 2 * e}:{121 + 2 * e}], v[{120 + 2 * e}:{121 + 2 * e}], v[{128 + 2 * e}:{129 + 2 * e}]")
    for e in range(4):
        A(f"v_permlane32_swap_b32 v{120 + e}, v{124 + e}")
    A("v_pk_add_f32 v[120:121], v[120:121], v[124:125]\nv_pk_add_f32 v[122:123], v[122:123], v[126:127]")
    A("v_permlane16_swap_b32 v120, v122\nv_permlane16_swap_b32 v121, v123")
    A("v_pk_add_f32 v[122:123], v[120:121], v[122:123]")
    A("v_add_f32_dpp v120, v122, v122 row_ror:8 row_mask:0xf bank_mask:0x3")
    A("v_add_f32_dpp v120, v123, v123 row_ror:8 row_mask:0xf bank_mask:0xc")
    A("v_add_f32 v120, v120, v64")
    if cfast:
        A(f"v_mov_b32_dpp v122, v120 quad_perm:[1,0,3,2] {FULL}")
        A("v_cndmask_b32 v66, v140, v144, s[54:55]")
        A("v_cvt_pk_bf16_f32 v121, v120, v122")
        A("v_lshlrev_b32 v120, 16, v121")
        for e in range(8):
            A(f"v_mov_b32_dpp v{124 + e}, v121 row_newbcast:{2 * e} {FULL}")
            if e == 0:
                A("v_readfirstlane_b32 s4, v120")
    else:
        A("v_cvt_pk_bf16_f32 v121, v120, v120")
        A(f"ds_write_b16 v29, v121 offset:{L_HN}")
        A("v_lshlrev_b32 v120, 16, v121")
        A("v_readfirstlane_b32 s4, v120")
        A("s_waitcnt lgkmcnt(0)")
        A(f"ds_read_b128 v[124:127], v25 offset:{L_HN}")
        A(f"ds_read_b128 v[128:131], v25 offset:{L_HN + 64}")
    A("v_subrev_f32 v148, s4, v120")
    A("v_mov_b32 v150, s4")
    A("v_mul_f32 v149, v148, v148")
    steps = [f"{m} {FULL}" for m in ("row_shr:1", "row_shr:2", "row_shr:4", "row_shr:8")] + ["row_bcast:15 row_mask:0xa bank_mask:0xf", "row_bcast:31 row_mask:0xc bank_mask:0xf"]
    mf = [f"v_mfma_f32_16x16x32_bf16 v[132:135], v[124:127], v[{GW}:{GW + 3}], 0",
          f"v_mfma_f32_16x16x32_bf16 v[136:139], v[124:127], v[{GW + 8}:{GW + 11}], 0",
          f"v_mfma_f32_16x16x32_bf16 v[132:135], v[128:131], v[{GW + 4}:{GW + 7}], v[132:135]",
          f"v_mfma_f32_16x16x32_bf16 v[136:139], v[128:131], v[{GW + 12}:{GW + 15}], v[136:139]"]
    for k, m in enumerate(steps):
        A(f"v_add_f32_dpp v148, v148, v148 {m}")
        A(f"v_add_f32_dpp v149, v149, v149 {m}")
        if k == (0 if cfast else 1):
            if not cfast:
                A("s_waitcnt lgkmcnt(0)")
            stamp_at(8)
            A(mf[0])
            A(mf[1])
        if k == (1 if cfast else 2):
            A(mf[2])
            A(mf[3])
    A("s_mov_b32 exec_lo, 0\ns_mov_b32 exec_hi, 0x80000000")
    A(f"ds_write_b96 v23, v[148:150] offset:{L_H}")
    A("s_mov_b32 exec_lo, -1\ns_mov_b32 exec_hi, 0")
    A("v_cndmask_b32 v66, v132, v136, s[54:55]")
    A("s_mov_b64 exec, -1")
    A(f"ds_write_b32 v26, v66 offset:{L_B}")
    A("s_waitcnt lgkmcnt(0)")
    stamp_at(9)
    A("s_barrier")
    A(f"ds_read_b96 v[124:126], v24 offset:{L_H}")
    for i in range(8):
        A(f"ds_read_b32 v{128 + i}, v27 offset:{L_B + 256 * i}")
    A("s_waitcnt lgkmcnt(0)" if stamps else "s_waitcnt lgkmcnt(8)")
    stamp_at(10)
    x8 = ("quad_perm:[1,0,3,2]", "quad_perm:[2,3,0,1]", "row_half_mirror")
    A("v_fma_f32 v127, v126, s63, v124")
    A("v_add_f32 v124, v124, v124")
    A("s_waitcnt lgkmcnt(0)" if stamps else "s_waitcnt lgkmcnt(4)")
    A(f"v_add_f32_dpp v127, v127, v127 {x8[0]} {FULL}")
    A("v_pk_add_f32 v[128:129], v[128:129], v[130:131]")
    A("s_waitcnt lgkmcnt(0)")
    A(f"v_add_f32_dpp v127, v127, v127 {x8[1]} {FULL}")
    A("v_pk_add_f32 v[132:133], v[132:133], v[134:135]")
    A("v_pk_add_f32 v[128:129], v[128:129], v[132:133]")
    A(f"v_add_f32_dpp v127, v127, v127 {x8[2]} {FULL}")
    A("v_add_f32 v120, v128, v129")
    A("v_add_f32 v121, v128, v129")
    A("v_mul_f32 v127, 0x3b000000, v127")
    A("v_sub_f32 v126, v127, v126")
    A("v_permlane32_swap_b32 v120, v121")
    A("v_fma_f32 v124, v126, s63, -v124")
    A("v_fma_f32 v125, v126, v124, v125")
    A("v_fma_f32 v122, -v127, v121, v120")
    A("v_fma_f32 v121, -v127, v121, v120")
    A(f"v_add_f32_dpp v125, v125, v125 {x8[0]} {FULL}")
    A("v_mov_b32 v120, v122")
    A(f"v_add_f32_dpp v125, v125, v125 {x8[1]} {FULL}")
    A("v_permlane16_swap_b32 v120, v121")
    A(f"v_add_f32_dpp v125, v125, v125 {x8[2]} {FULL}")
    A("v_fma_f32 v125, v125, v67, v68")
    A("v_rsq_f32 v125, v125")
    A("v_mul_f32 v120, v120, v125")
    A("v_mul_f32 v121, v121, v125")
    A("v_mul_f32 v122, v120, v120")
    A("v_mul_f32 v121, v120, v121")
    A("v_fma_f32 v122, v122, v69, v70")
    A("v_mul_f32 v122, v122, v120")
    A("v_exp_f32 v122, v122")
    A("v_add_f32 v122, 1.0, v122")
    A("v_rcp_f32 v122, v122")
    A("v_mul_f32 v120, v121, v122")
    for r in range(16):
        op = "mul" if r < 4 else "fmac"
        A(f"v_{op}_f32_dpp v{124 + (r & 3)}, v120, v{DW + r} row_newbcast:{r} {FULL}")
    A("v_pk_add_f32 v[124:125], v[124:125], v[126:127]")
    A("v_add_f32 v124, v124, v125")
    store_quad(124, 22, fl=st3, addr2=21 if (dup is not None and dup3) else None)
    stamp_at(7)
    stamp_store()
    A("s_endpgm")
    A("L_final:")
    A("s_barrier")
    A("s_sub_u32 s15, s7, 14\ns_lshl_b32 s4, s6, 1\ns_add_u32 s15, s15, s4")
    A("v_and_b32 v16, 7, v0\nv_lshrrev_b32 v17, 3, v0\nv_lshlrev_b32 v17, 11, v17\nv_lshl_add_u32 v17, v16, 4, v17")
    A("v_and_b32 v22, 31, v0\ns_lshl_b32 s4, s15, 6\nv_lshl_add_u32 v18, v22, 1, s4")
    A("v_lshlrev_b32 v22, 2, v22")
    sigma(23, 24)
    A("v_lshl_add_u32 v23, v16, 2, v23\nv_lshl_add_u32 v19, v23, 1, s4")
    A(f"ds_read_u16_d16_hi v19, v19 offset:{L_X}")
    A("s_lshl_b32 s4, s3, 7\nv_lshl_add_u32 v23, v23, 2, s4")
    if dup is None:
        A(f"s_lshl_b32 s4, s3, 15\ns_add_u32 s4, s4, {WS_P3}")
        A("s_cmp_eq_u32 s3, 7")
        A(f"s_cselect_b32 s4, {WS_P2}, s4")
        A("s_lshl_b32 s5, s15, 7\ns_add_u32 s4, s4, s5")
        A("v_add_u32 v20, s4, v17\nv_add_u32 v21, 0x4000, v20")
    else:
        A("v_lshrrev_b32 v24, 5, v0\nv_lshlrev_b32 v24, 13, v24")
        mycopy("s8")
        A(f"s_lshl_b32 s4, s3, {16 if dup3 else 15}\ns_add_u32 s4, s4, {WS_P3}")
        A("s_cmp_eq_u32 s3, 7")
        A(f"s_cselect_b32 s4, {WS_P2}, s4")
        if dup3:
            A("s_add_u32 s4, s4, s8\ns_mov_b32 s9, 0x8000")
        else:
            A("s_cselect_b32 s8, s8, 0\ns_movk_i32 s9, 0x4000\ns_cselect_b32 s9, 0x8000, s9\ns_cselect_b32 s5, -1, 0\ns_add_u32 s4, s4, s8\nv_and_b32 v24, s5, v24")
        A("s_lshl_b32 s5, s15, 7\ns_add_u32 s4, s4, s5")
        A("v_add3_u32 v20, v17, v24, s4\nv_add_u32 v21, s9, v20")
    loads = [f"global_load_dwordx4 v[{120 + 4 * i}:{123 + 4 * i}], v{20 + i}, s[38:39] {ld3}" for i in range(2)]
    if dsleep is not None:
        A("s_cmp_eq_u32 s3, 7")
        A("s_cbranch_scc1 L_dgo")
        A("s_barrier")
        A(f"s_sleep {dsleep}")
        A("L_dgo:")
    poll("L_poll3", loads, range(120, 128), 16)
    if dsleep is not None:
        A("s_cmp_eq_u32 s3, 7")
        A("s_cbranch_scc0 L_dgo2")
        A("s_barrier")
        A("L_dgo2:")
    stamp_at(6)
    for e in range(4):
        A(f"v_add_f32 v{120 + e}, v{120 + e}, v{124 + e}")
    scatter4(120)
    A(f"v_add_f32_dpp v120, v120, v120 row_ror:8 {FULL}")
    A("s_cmp_eq_u32 s3, 7")
    A("s_cbranch_scc0 L_dnoh")
    A("s_waitcnt lgkmcnt(0)")
    A("v_add_f32 v120, v120, v19")
    rbf(120)
    A("L_dnoh:")
    A("s_mov_b32 exec_lo, 0x00ff00ff\ns_mov_b32 exec_hi, 0x00ff00ff")
    A(f"ds_write_b32 v23, v120 offset:{L_B}")
    A("s_mov_b64 exec, -1")
    A("s_cmp_eq_u32 s3, 0")
    A("s_waitcnt lgkmcnt(0)")
    A("s_barrier")
    A("s_cbranch_scc0 L_ddone")
    for i in range(8):
        A(f"ds_read_b32 v{120 + i}, v22 offset:{L_B + 128 * i}")
    A("s_waitcnt lgkmcnt(0)")
    for i in range(2):
        A(f"v_pk_add_f32 v[{120 + 2 * i}:{121 + 2 * i}], v[{120 + 2 * i}:{121 + 2 * i}], v[{124 + 2 * i}:{125 + 2 * i}]")
    A("v_pk_add_f32 v[120:121], v[120:121], v[122:123]")
    A("v_add_f32 v120, v120, v121")
    if perturb:
        import struct
        kind, val = perturb
        h = hex(struct.unpack("<I", struct.pack("<f", val))[0])
        if kind == "add": A(f"v_add_f32 v120, {h}, v120")
        if kind == "mul": A(f"v_mul_f32 v120, {h}, v120")
        if kind == "one":
            A("s_cmp_eq_u32 s15, 0\ns_cselect_b32 s4, 1, 0\ns_mov_b32 s5, 0\ns_mov_b64 exec, s[4:5]")
            A(f"v_add_f32 v120, {h}, v120\ns_mov_b64 exec, -1")
    A(f"v_mov_b32_dpp v121, v120 quad_perm:[1,0,3,2] {FULL}")
    A("v_cvt_pk_bf16_f32 v120, v120, v121")
    A("s_mov_b64 exec, 0x55555555")
    A("global_store_dword v18, v120, s[34:35]" + (" " + outfl if outfl else ""))
    A("L_ddone:")
    stamp_at(7)
    stamp_store()
    A("s_endpgm")

    for _ in range(pad3):
        A("s_nop 0")
    A("L_service:")
    A("s_setprio 3")
    A(f"v_mov_b32 v98, {L_F}\nv_mov_b32 v99, 0")
    A("ds_write_b32 v98, v99")
    A("ds_write_b32 v98, v99 offset:8")
    A("ds_write_b32 v98, v99 offset:12")
    A("ds_write_b32 v98, v99 offset:20")
    if not qearly:
        A("s_waitcnt lgkmcnt(0)")
        A("s_barrier")
    for i in range(4):
        A(f"v_mov_b32 v{100 + i}, -1")
    roles()
    p1slot("s4")
    A("v_add_u32 v104, s4, v9")
    A("s_cmp_eq_u32 s7, 0")
    A("s_waitcnt lgkmcnt(0)")
    if "svcoff" in xp:
        A("s_barrier\ns_branch L_svcbar" if qearly else "s_branch L_svcbar")
    A("s_cbranch_scc0 L_qcleared")
    A(f"s_lshl_b32 s10, s60, 13\nv_add_u32 v3, s10, v9\nv_add_u32 v8, 0x1000, v3")
    for i in range(8):
        A(f"global_store_dwordx4 v{3 if i < 4 else 8}, v[100:103], s[38:39] offset:{1024 * (i & 3)} sc1")
    A(f"s_lshl_b32 s10, s60, 7\ns_add_u32 s10, s10, {WS_F}\nv_add_u32 v3, s10, v9")
    A(f"s_lshl_b32 s10, s6, 7\ns_add_u32 s10, s10, {WS_G}\nv_add_u32 v8, s10, v9")
    A("s_mov_b64 exec, 0xff")
    A("global_store_dwordx4 v3, v[100:103], s[38:39] sc1")
    A("global_store_dwordx4 v8, v[100:103], s[38:39] sc1")
    if adapt or rankpre:
        A(f"global_store_dwordx4 v8, v[100:103], s[38:39] offset:{WS_R - WS_G - 4096 + 4096 - 0 if WS_R - WS_G < 4096 else 0} sc1" if False else f"v_add_u32 v8, {WS_R - WS_G}, v8\nglobal_store_dwordx4 v8, v[100:103], s[38:39] sc1")
    if dup == "auto" and vpos:
        A(f"v_add_u32 v8, {WS_V - WS_R}, v8\nglobal_store_dwordx4 v8, v[100:103], s[38:39] sc1")
    A("s_mov_b64 exec, -1")
    A("L_qcleared:")
    if qearly:
        A("s_barrier")
    nyoung = 0
    if "noclear" not in xp and sclr is None:
        A("global_store_dwordx4 v104, v[100:103], s[38:39] sc1")
        A("global_store_dwordx4 v104, v[100:103], s[38:39] offset:1024 sc1")
        nyoung += 2
        A("s_cmp_lt_u32 s7, 14")
        A("s_cbranch_scc0 L_noclr3")
        A(f"s_lshl_b32 s4, s15, 11\ns_add_u32 s4, s4, {WS_P3}\nv_add_u32 v105, s4, v9")
        A("global_store_dwordx4 v105, v[100:103], s[38:39] sc1")
        A("global_store_dwordx4 v105, v[100:103], s[38:39] offset:1024 sc1")
        A("L_noclr3:")
        A("s_cmp_ge_u32 s7, 16")
        A("s_cbranch_scc0 L_noclr2")
        A(f"s_lshl_b32 s4, s13, 11\ns_lshl_b32 s5, s14, 8\ns_add_u32 s4, s4, s5\ns_add_u32 s4, s4, {WS_P2}\nv_add_u32 v105, s4, v9")
        A("s_mov_b64 exec, 0xffff")
        A("global_store_dwordx4 v105, v[100:103], s[38:39] sc1")
        A("s_mov_b64 exec, -1")
        A("L_noclr2:")
    stamp_at(1)
    A("v_lshlrev_b32 v96, 5, v0")
    A("s_cmp_eq_u32 s7, 0")
    A("s_cbranch_scc0 L_noqflag")
    A("s_lshl_b32 s4, s60, 5\nv_mov_b32 v104, s4\nv_mov_b32 v105, 1")
    A(f"s_waitcnt vmcnt({4 if ('noclear' not in xp and sclr is None) else 0})")
    A("s_mov_b64 exec, 1")
    A("global_store_dword v104, v105, s[36:37] sc1")
    A("s_mov_b64 exec, -1")
    A("L_noqflag:")
    ldswait("L_waitwq", 12, 8)

    def firstlook():
        A("s_mov_b64 exec, 0xff")
        A("global_load_dword v97, v96, s[36:37] sc1")
        A("s_mov_b64 exec, -1")
    if qearly:
        firstlook()
    A(f"ds_read_b128 v[4:7], v9 offset:{L_X}")
    A("s_waitcnt lgkmcnt(0)")
    stamp_at(2)
    X = list(range(8, 16))
    X[1] = 3
    for i in range(4):
        A(f"v_lshlrev_b32 v{X[2 * i]}, 16, v{4 + i}")
        A(f"v_and_b32 v{X[2 * i + 1]}, 0xffff0000, v{4 + i}")
    ln_stats(X, 16, 17, 18, 19, 20, list(range(22, 30)))
    ln_apply(X, 16, 17, 18, list(range(22, 30)))
    for i in range(4):
        A(f"v_cvt_pk_bf16_f32 v{4 + i}, v{X[2 * i]}, v{X[2 * i + 1]}")
    A(f"ds_write_b128 v9, v[4:7] offset:{L_HN}")
    A(f"s_and_b32 s4, s7, {KS - 1}\ns_lshl_b32 s4, s4, {10 - KL}\nv_lshrrev_b32 v17, 4, v0\nv_lshl_add_u32 v16, v17, 4, s4")
    A("v_bfe_u32 v18, v0, 2, 2\nv_lshl_add_u32 v17, v17, 3, v18\nv_lshlrev_b32 v17, 7, v17\nv_and_b32 v18, 3, v0\nv_lshl_add_u32 v17, v18, 3, v17")
    A("s_waitcnt lgkmcnt(0)")
    NK = NQ // 4
    for k in range(NK):
        A(f"ds_read_b128 v[{32 + 4 * k}:{35 + 4 * k}], v16 offset:{L_HN + 64 * k}")
    stamp_at(3)
    if not qearly:
        firstlook()
    for k in range(NK):
        A("s_waitcnt lgkmcnt(0)")
        b = 64 + 16 * (k & 1)
        for tau in range(4):
            for t in range(2):
                r = b + 4 * tau + 2 * t
                A(f"ds_read_b64_tr_b16 v[{r}:{r + 1}], v17 offset:{L_W + 4096 * k + 512 * t + 32 * tau}")
        if k > 0:
            bp = 64 + 16 * ((k - 1) & 1)
            for tau in range(4):
                c = "0" if k == 1 else f"v[{112 + 4 * tau}:{115 + 4 * tau}]"
                A(f"v_mfma_f32_16x16x32_bf16 v[{112 + 4 * tau}:{115 + 4 * tau}], v[{28 + 4 * k}:{31 + 4 * k}], v[{bp + 4 * tau}:{bp + 4 * tau + 3}], {c}")
    A("s_waitcnt lgkmcnt(0)")
    for tau in range(4):
        A(f"v_mfma_f32_16x16x32_bf16 v[{112 + 4 * tau}:{115 + 4 * tau}], v[{28 + 4 * NK}:{31 + 4 * NK}], v[{80 + 4 * tau}:{83 + 4 * tau}], v[{112 + 4 * tau}:{115 + 4 * tau}]")
    A(f"s_lshl_b32 s4, s60, {11 + KL}\ns_and_b32 s5, s7, {KS - 1}\ns_lshl_b32 s5, s5, 11\ns_add_u32 s4, s4, s5\ns_lshr_b32 s5, s7, {KL}\ns_lshl_b32 s5, s5, 8\ns_add_u32 s4, s4, s5")
    A("v_lshl_add_u32 v17, v0, 2, s4")
    for tau in range(1, 4):
        A(f"v_mov_b32_dpp v112, v{112 + 4 * tau} quad_perm:[0,1,2,3] row_mask:{hex(1 << tau)} bank_mask:0xf")
    for i in (1, 2, 3):
        A(f"v_mov_b32_dpp v{112 + i}, v112 quad_perm:[{i},{i},{i},{i}] {FULL}")
    A("L_qdone:")
    A(f"s_lshl_b32 s4, s60, 5\ns_add_u32 s4, s4, s7\ns_lshl_b32 s4, s4, 2\ns_add_u32 s4, s4, {WS_F}\nv_mov_b32 v18, s4")
    A(f"s_lshl_b32 s4, s6, {11 + KL}\nv_add_u32 v19, s4, v9\nv_add_u32 v20, 0x1000, v19")
    A("s_getreg_b32 s62, hwreg(HW_REG_XCC_ID, 0, 4)\nv_mov_b32 v21, s62")
    A("s_lshl_b32 s4, 1, s60\ns_lshl_b32 s5, 1, s6\ns_or_b32 s4, s4, s5")
    if adapt:
        A(f"s_add_u32 s5, s7, {qrot}\ns_and_b32 s5, s5, 7\ns_lshl_b32 s5, 1, s5\ns_or_b32 s4, s4, s5")
    A("s_mov_b32 s5, 0")
    stamp_at(4)
    if "svc1" in xp: A("s_branch L_svcbar2")
    A("L_pollf:")
    A("s_waitcnt vmcnt(0) lgkmcnt(0)")
    A("v_cmp_ne_u32 vcc, 1, v97")
    A("s_and_b32 s57, vcc_lo, s4")
    A("s_cbranch_scc0 L_pollf_ok")
    A(f"s_add_u32 s5, s5, 1\ns_cmp_lt_u32 s5, {SPIN_MAX}\ns_cbranch_scc0 L_pollf_ok")
    A("s_sleep 8")
    A("s_mov_b64 exec, 0xff")
    A("global_load_dword v97, v96, s[36:37] sc1")
    A("s_mov_b64 exec, -1")
    A("s_branch L_pollf")
    A("L_pollf_ok:")
    if KS == 2:
        A("s_cmp_lt_u32 s7, 16")
        A("s_cbranch_scc0 L_noqpub")
    A("s_mov_b32 exec_lo, 0x11111111\ns_mov_b32 exec_hi, 0x11111111")
    A("global_store_dwordx4 v17, v[112:115], s[38:39] sc1")
    A("L_noqpub:")
    A("s_mov_b64 exec, 1")
    A("global_store_dword v18, v21, s[38:39] sc1")
    A("s_mov_b64 exec, -1")
    stamp_at(5)
    if "svc2" in xp: A("s_branch L_svcbar2")
    if warm:
        if warm == "one":
            A("s_cmp_eq_u32 s7, 1")
            A("s_cbranch_scc0 L_nowarm")
        A("s_getpc_b64 s[48:49]")
        A("L_pc:")
        A(f"s_sub_u32 s48, s48, L_pc-{NAME}_kernel\ns_subb_u32 s49, s49, 0")
        A(f"s_mov_b32 s4, L_codeend-{NAME}_kernel-16\nv_mov_b32 v2, v9\ns_mov_b32 s5, 0")
        A("L_warm:")
        A("v_min_u32 v3, s4, v2")
        A("global_load_dwordx4 v[128:131], v3, s[48:49]")
        A("v_add_u32 v2, 1024, v2\ns_add_u32 s5, s5, 1024\ns_cmp_lt_u32 s5, s4\ns_cbranch_scc1 L_warm")
        A("L_nowarm:")
    if adapt:
        A(f"s_and_b32 s4, s7, 7\ns_lshl_b32 s4, s4, 7\ns_add_u32 s4, s4, {WS_R}\nv_mov_b32 v26, s4\nv_mov_b32 v27, 1")
    ldswait("L_waitpos", 8)
    if adapt:
        A("s_mov_b64 exec, 1")
        A("global_atomic_add v28, v26, v27, s[38:39] sc0 sc1")
        A("s_mov_b64 exec, -1")
    poll("L_pollq", [f"global_load_dwordx4 v[{32 + 4 * i}:{35 + 4 * i}], v{19 + (i >> 2)}, s[38:39] offset:{1024 * (i & 3)} sc1" for i in range(2 * KS)],
         range(32, 32 + 8 * KS), 16, slp=qsleep)
    stamp_at(6)
    for e in range(8):
        A(f"v_add_f32 v{32 + e}, v{32 + e}, v{40 + e}")
        if KS == 4:
            A(f"v_add_f32 v{48 + e}, v{48 + e}, v{56 + e}")
    if KS == 4:
        for e in range(8):
            A(f"v_add_f32 v{32 + e}, v{32 + e}, v{48 + e}")
    for e in range(4):
        A(f"v_cvt_pk_bf16_f32 v{40 + e}, v{32 + 2 * e}, v{33 + 2 * e}")
    A("v_lshlrev_b32 v16, 3, v0")
    A(f"ds_write_b64 v16, v[40:41] offset:{L_Q}")
    A(f"ds_write_b64 v16, v[42:43] offset:{L_Q + 512}")
    if adapt:
        A("v_readfirstlane_b32 s4, v28")
        A("s_add_u32 s4, s4, 2")
        A("v_mov_b32 v99, s4")
    else:
        A("v_mov_b32 v99, 1")
    A("s_waitcnt lgkmcnt(0)")
    A("ds_write_b32 v98, v99")
    stamp_at(7)
    if "svc4" in xp: A("s_branch L_svcbar2")
    A("s_mov_b32 s5, 0")
    A("L_pollf2:")
    A("s_mov_b64 exec, 0xff")
    A("global_load_dword v97, v96, s[36:37] sc1")
    A("s_waitcnt vmcnt(0)")
    A("v_cmp_ne_u32 vcc, 1, v97")
    A("s_mov_b64 exec, -1")
    A("s_cbranch_vccz L_pollf2_ok")
    A(f"s_add_u32 s5, s5, 1\ns_cmp_lt_u32 s5, {SPIN_MAX}\ns_cbranch_scc1 L_pollf2")
    A("L_pollf2_ok:")
    stamp_at(8)
    A(f"v_add_u32 v19, {WS_F}, v9")
    poll("L_pollall", ["global_load_dwordx4 v[32:35], v19, s[38:39] sc1"], range(32, 36), 16, slp=16)
    stamp_at(9)
    A("v_xor_b32 v32, v32, v21\nv_xor_b32 v33, v33, v21\nv_xor_b32 v34, v34, v21\nv_xor_b32 v35, v35, v21")
    A("v_or_b32 v32, v32, v33\nv_or3_b32 v32, v32, v34, v35")
    A("v_cmp_ne_u32 vcc, 0, v32")
    A("s_lshl_b32 s4, s60, 3\ns_lshr_b64 s[4:5], vcc, s4\ns_and_b32 s4, s4, 0xff")
    A("s_cselect_b32 s4, 0, 1" if local and "far" not in xp else "s_mov_b32 s4, 0")
    A("L_svcend:")
    A("s_mov_b32 s63, s4")
    if dup == "auto":
        A(f"s_andn2_b32 s8, s7, 4\ns_lshl_b32 s9, s6, 5\ns_add_u32 s8, s8, s9\ns_lshl_b32 s8, s8, 11\ns_and_b32 s9, s7, 4\ns_lshl_b32 s9, s9, 8")
        A(f"s_add_u32 s8, s8, s9\ns_add_u32 s8, s8, {WS_P1}\ns_add_u32 s12, s38, s8\ns_addc_u32 s13, s39, 0\ns_mov_b32 s10, 0")
        A("s_waitcnt lgkmcnt(0)")
        for t in range(ntr):
            A("s_mov_b32 s8, 0\ns_mov_b32 s9, 0")
            o0, o1 = 128 * t, 128 * t + 8192
            A(f"s_load_dword s9, s[12:13], {o1}\ns_load_dword s8, s[12:13], {o0}" if t & 1 else f"s_load_dword s8, s[12:13], {o0}\ns_load_dword s9, s[12:13], {o1}")
            A("s_waitcnt lgkmcnt(1)")
            A("s_sub_u32 s11, s9, s8")
            A("s_waitcnt lgkmcnt(0)")
            A("s_add_u32 s10, s10, s11")
        if vpos:
            A("s_cmp_eq_u32 s63, 1")
            A("s_cbranch_scc0 L_novote")
            A(f"s_lshl_b32 s8, s6, 7\ns_add_u32 s8, s8, {WS_V}\nv_and_b32 v16, 31, v0\nv_lshl_add_u32 v16, v16, 2, s8")
            A("s_lshl_b32 s9, s7, 2\ns_add_u32 s8, s8, s9\nv_mov_b32 v17, s8\ns_add_u32 s10, s10, 16\nv_mov_b32 v18, s10")
            A("s_mov_b64 exec, 1\nglobal_store_dword v17, v18, s[38:39]\ns_mov_b64 exec, -1")
            ldswait("L_waitv", 20)
            A("global_load_dword v18, v16, s[38:39] sc1")
            A("s_waitcnt vmcnt(0)")
            A("v_cmp_lt_i32 vcc, 16, v18")
            A("s_bcnt1_i32_b64 s10, vcc")
            A("v_cmp_gt_u32 vcc, 16, v18")
            A("s_bcnt1_i32_b64 s8, vcc")
            A("s_sub_u32 s10, s10, s8")
            A("L_novote:")
        A("s_cmp_lt_i32 s10, 0\ns_cselect_b32 s10, 0x2000, 0\nv_mov_b32 v99, s10")
        A("ds_write_b32 v98, v99 offset:16")
        roles()
    A("v_mov_b32 v99, s63")
    A("ds_write_b32 v98, v99 offset:4")
    A(f"s_lshl_b32 s4, s6, 7\ns_add_u32 s4, s4, {WS_G}\nv_and_b32 v16, 31, v0\nv_lshl_add_u32 v16, v16, 2, s4")
    A("s_lshl_b32 s5, s7, 2\ns_add_u32 s4, s4, s5\nv_mov_b32 v17, s4\nv_mov_b32 v18, 0")
    A(f"s_and_b32 s4, s7, {0 if rankpre else 15}\ns_mul_i32 s4, s4, {32 * 3584}\ns_mul_i32 s5, s6, 448\ns_andn2_b32 s5, s5, 127\ns_add_u32 s4, s4, s5")
    A("v_lshrrev_b32 v21, 5, v0\nv_mul_u32_u24 v21, 3584, v21\nv_and_b32 v22, 31, v0\nv_lshl_add_u32 v21, v22, 4, v21\nv_add_u32 v21, s4, v21")
    if rankpre:
        A(f"s_lshl_b32 s4, s6, 7\ns_add_u32 s4, s4, {WS_R}\nv_mov_b32 v26, s4\nv_mov_b32 v27, 1")
        A("s_lshl_b32 s4, s7, 1\ns_sub_u32 s4, s4, 1\nv_mov_b32 v28, 0")
    A("v_lshrrev_b32 v22, 1, v0\nv_mul_u32_u24 v22, 3584, v22\nv_and_b32 v23, 1, v0\nv_lshl_add_u32 v22, v23, 4, v22\ns_lshl_b32 s4, s15, 5\nv_add_u32 v22, s4, v22")
    A("s_lshl_b32 s4, s15, 14\nv_add_u32 v23, s4, v9")
    A("s_waitcnt lgkmcnt(0)")
    A("s_barrier")
    assert gate and dsplit

    def wloop(label, n, lds, body):
        A(f"s_mov_b32 s5, {n}")
        if lds is not None:
            A(f"s_mov_b32 m0, {lds}")
        A(f"{label}:")
        body()
        A(f"s_sub_u32 s5, s5, 1\ns_cmp_lg_u32 s5, 0\ns_cbranch_scc1 {label}")

    def b_pre():
        A("global_load_dwordx4 v[32:35], v21, s[28:29]")
        A("global_load_dwordx4 v[32:35], v21, s[30:31]")
        A("v_add_u32 v21, 7168, v21")

    def b_down():
        A(f"global_load_lds_dwordx4 v23, s[32:33]{wntf}")
        A("v_add_u32 v23, 1024, v23\ns_add_u32 m0, m0, 1024")

    def b_gu():
        A("global_load_lds_dwordx4 v22, s[28:29]")
        A("s_add_u32 m0, m0, 16384")
        A("global_load_lds_dwordx4 v22, s[30:31]")
        A(f"v_add_u32 v22, {32 * 3584}, v22\ns_sub_u32 m0, m0, {16384 - 1024}")

    def only(cond, label, body):
        A(cond)
        A(f"s_cbranch_scc0 {label}")
        body()
        A(f"{label}:")
    after_pre = 0
    for k, step in enumerate(pm):
        if step in "SgG" and not gsync:
            continue
        if step in "PDU" and "now" in xp:
            continue
        if step == "D" and dlate:
            continue
        if step == "S":
            def sig():
                A("s_mov_b64 exec, 1\nglobal_store_dword v17, v18, s[38:39]")
                if rankpre:
                    only("s_cmp_lt_u32 s7, 16", "L_norank", lambda: A("global_atomic_add v28, v26, v27, s[38:39] sc0 sc1"))
                A("s_mov_b64 exec, -1")
            only("s_cmp_eq_u32 s63, 1", "L_nosig", sig)
        elif step in "12":
            A("s_barrier")

        elif step == "g":
            only("s_cmp_eq_u32 s63, 1", f"L_nog{k}", lambda: A("global_load_dword v19, v16, s[38:39] sc1"))
        elif step == "G":
            def gwait():
                A("s_mov_b32 s5, 0")
                A("L_pollg:")
                A("s_waitcnt vmcnt(0)")
                A("v_cmp_eq_u32 vcc, -1, v19")
                if gmiss:
                    A(f"s_bcnt1_i32_b32 s4, vcc_lo\ns_cmp_le_u32 s4, {gmiss}\ns_cbranch_scc1 L_gok")
                else:
                    A("s_cbranch_vccz L_gok")
                A(f"s_add_u32 s5, s5, 1\ns_cmp_lt_u32 s5, {SPIN_MAX}\ns_cbranch_scc0 L_gok")
                A(f"s_sleep {gsleep}")
                A("global_load_dword v19, v16, s[38:39] sc1")
                A("s_branch L_pollg")
            only("s_cmp_eq_u32 s63, 1", "L_gok", gwait)
            stamp_at(10)
        elif step == "P":
            if pref and not rankpre:
                only("s_cmp_lt_u32 s7, 16", "L_nopre", lambda: wloop("L_wpre", 16, None, b_pre))
            if pref and rankpre:
                def pre():
                    A("s_waitcnt vmcnt(0)")
                    A("v_readfirstlane_b32 s8, v28")
                    A("s_add_u32 s8, s8, 1\ns_mul_i32 s9, s8, 3\ns_lshl_b32 s4, s8, 1\ns_add_u32 s4, s4, 8")
                    A("s_cmp_lt_u32 s8, 8\ns_cselect_b32 s9, s9, s4\ns_cselect_b32 s5, 24, 16")
                    A("s_cmp_lt_u32 s8, 12\ns_cselect_b32 s5, s5, 0")
                    A("s_lshl_b32 s4, s7, 1\ns_cmp_eq_u32 s63, 1\ns_cselect_b32 s9, s9, s4\ns_cselect_b32 s5, s5, 16")
                    A(f"s_mul_i32 s9, s9, {16 * 3584}\nv_add_u32 v21, s9, v21")
                    A("s_cmp_eq_u32 s5, 0\ns_cbranch_scc1 L_nopre")
                    A("L_wpre:")
                    b_pre()
                    A("s_sub_u32 s5, s5, 1\ns_cmp_lg_u32 s5, 0\ns_cbranch_scc1 L_wpre")
                    A("s_waitcnt vmcnt(40)")
                only("s_cmp_lt_u32 s7, 16", "L_nopre", pre)
            after_pre = 0
        elif step == "D":
            only("s_cmp_lt_u32 s7, 14", "L_nodown", lambda: wloop("L_wdown", 16, L_W + 32768, b_down))
            after_pre = 16
        elif step == "w":
            A(f"s_waitcnt vmcnt({after_pre})")
            stamp_at(11)
        elif step == "z":
            A(f"s_sleep {cdelay}")
        elif step == "U":
            only("s_cmp_lt_u32 s7, 14", "L_nogu", lambda: wloop("L_wgu", 16, L_W, b_gu))
    only("s_cmp_lt_u32 s7, 14", "L_wdone", lambda: A("s_barrier" if dlate else "s_waitcnt vmcnt(32)\ns_barrier"))
    A("s_waitcnt vmcnt(0)")
    stamp_at(12)
    if stamps:
        A("s_waitcnt lgkmcnt(0)")
        for i in range(16):
            A(f"v_writelane_b32 v4, s{64 + 2 * i}, {i}")
        A(f"v_lshlrev_b32 v5, 2, v0\nds_write_b32 v5, v4 offset:{L_G}\ns_waitcnt lgkmcnt(0)")
    A("s_barrier")
    A("s_endpgm")
    A("L_svcbar:")
    A("L_svcbar2:")
    A("v_mov_b32 v99, 1")
    A("ds_write_b32 v98, v99")
    A("s_mov_b32 s4, 0")
    A("s_branch L_svcend")
    A("L_end:")
    A("s_endpgm")
    A("L_codeend:")

    body = fix(C)
    out = HEADER
    out += f"; @launch grid=(256,1,1) block=(576,1,1) lds={LDS_BYTES}\n"
    out += '.amdgcn_target "amdgcn-amd-amdhsa--gfx950"\n.text\n'
    out += f".globl {NAME}_kernel\n.p2align 8\n.type {NAME}_kernel,@function\n{NAME}_kernel:\n"
    out += "\n".join(("" if l.endswith(":") else "    ") + l for l in body) + "\n"
    out += f""".section .rodata,"a"
.p2align 6
.amdhsa_kernel {NAME}_kernel
  .amdhsa_next_free_vgpr 168
  .amdhsa_next_free_sgpr 96
  .amdhsa_accum_offset 168
  .amdhsa_group_segment_fixed_size 0
  .amdhsa_kernarg_size 96
  .amdhsa_user_sgpr_count 2
  .amdhsa_user_sgpr_kernarg_segment_ptr 1
  .amdhsa_system_sgpr_workgroup_id_x 1
  .amdhsa_float_denorm_mode_32 3
.end_amdhsa_kernel
"""
    return out


if __name__ == "__main__":
    cfg = eval("dict(" + (sys.argv[2] if len(sys.argv) > 2 else "") + ")")
    open(sys.argv[1], "w").write(gen(**cfg))
```

```python
import sys
from asmlib import fix, VM

NAME = "sequential_preLN__gqa_block_cached__glu_gated_geglu__decode"
HEADER = open("cdna_kernels/" + NAME + ".s.ref").read().split("; Override launch")[0]

WS_Q = 0x0
WS_F = 0x10000
WS_G = 0x11000
WS_R = 0x12000
WS_V = 0x13000
WS_P1 = 0x20000
P1_STRIDE = 2048
WS_P2 = 0xB0000
WS_P3 = 0xC0000
WS_STAMP = 0x200000
L_Q = 0
L_X = 1024
L_M = 2048
L_L = 2176
L_F = 2304
L_B = 2560
L_H = 4608
L_HN = 6656
L_G = 7680
L_W = 8704
L_K = L_W + 49152
KRING = 3
VRING = 5
LDS_BYTES = L_K + 8 * KRING * 4096

LOG2E = 0x3FB8AA3B
SCALE = 0x3DB504F3
FULL = "row_mask:0xf bank_mask:0xf"
SPIN_MAX = 200000


def gen(D=3, D2=4, nt=True, inter="wgtile", stamps=False, wnt=True, warm='one', sleep=1, qsleep=4,
        xp=(), masked=True, qrot=4, local=True, qpos=18, pref=True, fold=True, bpos=None, bwait=False, ppos=None, kfirst=True, wb=False, pad1=0, pad2=0, pad3=0, gsync=True, gsleep=2, cdelay=0, opos=None, enc=None, dsplit=True, early=False, gate=True, sclr='after', qearly=True, lpos='b1b', order=None, pm='S1g2GPU', dsleep=None, cfast=False, adapt=None, d2from=32, D3=None, d3from=56, split=False, dup='auto', dup3=True, rankpre=True, gmiss=16, ntr=2, vpos=52, dlate=True, outfl='', jitter=None, p1plain=False, clrpos=3, wqfirst=False, dseq=None):
    C = []
    A = C.append
    ntf = " nt" if nt else ""
    wntf = " nt" if wnt else ""
    D2 = D if D2 is None else D2
    hmap = "xcd"; KS = 4; ld2 = ld3 = st2 = st3 = "sc1"; peel = False; late4 = True; cpos = ("end",) * 6; fastln = True; perturb = None
    bpos = (D + max(3, clrpos) if kfirst else D) if bpos is None else bpos
    KL = KS.bit_length() - 1
    NQ = 64 // KS
    QR = 2048 * KS

    def stamp_at(k):
        if stamps:
            A(f"s_memrealtime s[{64 + 2 * k}:{65 + 2 * k}]")

    def stamp_store():
        if not stamps:
            return
        A("s_waitcnt lgkmcnt(0)")
        if stamps == "dbg":
            lab = f"L_dbg{len(C)}"
            A("s_and_b32 s4, s3, 7\ns_cmp_eq_u32 s4, 0")
            A(f"s_cbranch_scc0 {lab}")
            A("s_not_b32 s64, s64")
            A("s_cmp_eq_u32 s3, 8")
            sel0 = (0, 1, 2, 4, 5, 6, 7)
            sel8 = (2, 4, 5, 6, 7, 8, 9)
            A("s_mov_b64 exec, -1")
            for i in range(7):
                A(f"s_cselect_b32 s4, s{64 + 2 * sel8[i]}, s{64 + 2 * sel0[i]}")
                A(f"v_writelane_b32 v4, s4, {i}")
            A("s_lshl_b32 s4, s3, 2\ns_add_u32 s4, s4, 4\nv_lshl_add_u32 v1, v0, 2, s4")
            A("s_mov_b64 exec, 0x7f")
            A("global_atomic_umax v1, v4, s[36:37] sc1")
            A(f"{lab}:")
            return
        lab = f"L_st{len(C)}"
        A(f"s_cmp_eq_u32 s3, 1\ns_cbranch_scc0 {lab}")
        A(f"s_mov_b64 exec, 0xffff\nv_lshlrev_b32 v5, 2, v0\nds_read_b32 v4, v5 offset:{L_G}")
        A(f"s_lshl_b32 s4, s2, 4\ns_add_u32 s4, s4, 8\ns_lshl_b32 s4, s4, 6\ns_add_u32 s4, s4, {WS_STAMP}\nv_add_u32 v5, s4, v5")
        A("s_waitcnt lgkmcnt(0)\nglobal_store_dword v5, v4, s[38:39]\ns_nop 1")
        A(f"{lab}:")
        A("s_mov_b64 exec, 1")
        A("s_lshl_b32 s4, s2, 4\ns_add_u32 s4, s4, s3\ns_lshl_b32 s4, s4, 6")
        A(f"s_add_u32 s4, s4, {WS_STAMP}")
        A("v_mov_b32 v1, s4")
        A("s_getreg_b32 s94, hwreg(HW_REG_XCC_ID)")
        A("s_lshl_b32 s92, s62, 16\ns_add_u32 s92, s92, s59\ns_lshl_b32 s4, s49, 11\ns_add_u32 s92, s92, s4")
        for q in range(4):
            for i in range(4):
                A(f"v_mov_b32 v{4 + i}, s{64 + 2 * (4 * q + i)}")
            A(f"global_store_dwordx4 v1, v[4:7], s[38:39] offset:{16 * q}")
            A("s_nop 1")

    def rowsum(a, op="add"):
        for s in (8, 4, 2, 1):
            A(f"v_{op}_f32_dpp v{a}, v{a}, v{a} row_ror:{s} {FULL}")

    def xrow(a, t, op="add"):
        A(f"v_mov_b32 v{t}, v{a}")
        A(f"v_permlane16_swap_b32 v{a}, v{t}")
        A(f"v_{op}_f32 v{a}, v{a}, v{t}")
        A(f"v_mov_b32 v{t}, v{a}")
        A(f"v_permlane32_swap_b32 v{a}, v{t}")
        A(f"v_{op}_f32 v{a}, v{a}, v{t}")

    def scatter4(r):
        A(f"v_permlane32_swap_b32 v{r}, v{r + 1}\nv_permlane32_swap_b32 v{r + 2}, v{r + 3}")
        A(f"v_add_f32 v{r}, v{r}, v{r + 1}\nv_add_f32 v{r + 2}, v{r + 2}, v{r + 3}")
        A(f"v_permlane16_swap_b32 v{r}, v{r + 2}")
        A(f"v_add_f32 v{r}, v{r}, v{r + 2}")

    def sigma(dst, t):
        A(f"v_bfe_u32 v{dst}, v0, 4, 1\nv_lshrrev_b32 v{t}, 5, v0\nv_lshl_add_u32 v{dst}, v{dst}, 1, v{t}")

    def rbf(a):
        A(f"v_cvt_pk_bf16_f32 v{a}, v{a}, v{a}")
        A(f"v_lshlrev_b32 v{a}, 16, v{a}")

    def ln_stats(vals, mean, den, rden, t0, t1, tmp):
        A(f"v_add_f32 v{t0}, v{vals[0]}, v{vals[1]}")
        A(f"v_add_f32 v{t1}, v{vals[2]}, v{vals[3]}")
        A(f"v_add_f32 v{mean}, v{vals[4]}, v{vals[5]}")
        A(f"v_add_f32 v{den}, v{vals[6]}, v{vals[7]}")
        A(f"v_add_f32 v{t0}, v{t0}, v{t1}")
        A(f"v_add_f32 v{mean}, v{mean}, v{den}")
        A(f"v_add_f32 v{mean}, v{mean}, v{t0}")
        rowsum(mean)
        xrow(mean, t0)
        A(f"v_mul_f32 v{mean}, 0x3b000000, v{mean}")
        for i in range(8):
            A(f"v_sub_f32 v{tmp[i]}, v{vals[i]}, v{mean}")
        A(f"v_mul_f32 v{den}, v{tmp[0]}, v{tmp[0]}")
        A(f"v_mul_f32 v{t1}, v{tmp[1]}, v{tmp[1]}")
        for i in range(2, 8, 2):
            A(f"v_fmac_f32 v{den}, v{tmp[i]}, v{tmp[i]}")
            A(f"v_fmac_f32 v{t1}, v{tmp[i + 1]}, v{tmp[i + 1]}")
        A(f"v_add_f32 v{den}, v{den}, v{t1}")
        rowsum(den)
        xrow(den, t0)
        A(f"v_mul_f32 v{den}, 0x3b000000, v{den}")
        A(f"v_cvt_pk_bf16_f32 v{t0}, v{mean}, v{den}")
        A(f"v_lshlrev_b32 v{mean}, 16, v{t0}")
        A(f"v_and_b32 v{den}, 0xffff0000, v{t0}")
        A(f"v_add_f32 v{den}, 0x3727c5ac, v{den}")
        rbf(den)
        A(f"v_sqrt_f32 v{t0}, v{den}")
        A(f"v_rsq_f32 v{t1}, v{den}")
        A(f"v_fma_f32 v{den}, -v{t0}, v{t0}, v{den}")
        A(f"v_mul_f32 v{t1}, 0.5, v{t1}")
        A(f"v_fma_f32 v{den}, v{den}, v{t1}, v{t0}")
        rbf(den)
        A(f"v_rcp_f32 v{rden}, v{den}")

    def ln_apply(xs, mean, den, rden, ts):
        for x in xs:
            A(f"v_sub_f32 v{x}, v{x}, v{mean}")
        for x in xs:
            A(f"v_cvt_pk_bf16_f32 v{x}, v{x}, v{x}")
        for x in xs:
            A(f"v_lshlrev_b32 v{x}, 16, v{x}")
        for x, t in zip(xs, ts):
            A(f"v_mul_f32 v{t}, v{x}, v{rden}")
        for x, t in zip(xs, ts):
            A(f"v_fma_f32 v{x}, -v{t}, v{den}, v{x}")
        for x, t in zip(xs, ts):
            A(f"v_fma_f32 v{x}, v{x}, v{rden}, v{t}")

    def ln2():
        A("v_mov_b32 v133, v132")
        for i in range(4):
            A(f"v_pk_add_f32 v[{124 + 2 * i}:{125 + 2 * i}], v[{124 + 2 * i}:{125 + 2 * i}], v[132:133] neg_lo:[0,1] neg_hi:[0,1]")
        A("v_pk_add_f32 v[134:135], v[124:125], v[126:127]")
        A("v_pk_mul_f32 v[136:137], v[124:125], v[124:125]")
        A("v_pk_add_f32 v[138:139], v[128:129], v[130:131]")
        A("v_pk_fma_f32 v[136:137], v[126:127], v[126:127], v[136:137]")
        A("v_pk_add_f32 v[134:135], v[134:135], v[138:139]")
        A("v_pk_fma_f32 v[136:137], v[128:129], v[128:129], v[136:137]")
        A("v_add_f32 v16, v134, v135")
        A("v_pk_fma_f32 v[136:137], v[130:131], v[130:131], v[136:137]")
        A("v_add_f32 v17, v136, v137")
        for m in ("row_shr:1", "row_shr:2", "row_shr:4", "row_shr:8"):
            A(f"v_add_f32_dpp v16, v16, v16 {m} {FULL} bound_ctrl:0")
            A(f"v_add_f32_dpp v17, v17, v17 {m} {FULL} bound_ctrl:0")
        for m in ("row_bcast:15 row_mask:0xa", "row_bcast:31 row_mask:0xc"):
            A(f"v_add_f32_dpp v16, v16, v16 {m} bank_mask:0xf")
            A(f"v_add_f32_dpp v17, v17, v17 {m} bank_mask:0xf")
        A("v_readlane_b32 s4, v16, 63")
        A("v_readlane_b32 s5, v17, 63")
        A("v_mov_b32 v18, 0x3b000000")
        A("v_mul_f32 v16, s4, v18")
        A("v_mul_f32 v17, s5, v18")
        A("v_fma_f32 v17, -v16, v16, v17")
        A("v_add_f32 v16, v16, v132")
        A("v_max_f32 v17, 0, v17")
        A("v_cvt_pk_bf16_f32 v18, v16, v17")
        A("v_and_b32 v17, 0xffff0000, v18")
        A("v_lshlrev_b32 v16, 16, v18")
        A("v_add_f32 v17, 0x3727c5ac, v17")
        A("v_sub_f32 v120, v120, v16")
        A("v_cvt_pk_bf16_f32 v18, v120, v17")
        A("v_and_b32 v17, 0xffff0000, v18")
        A("v_sqrt_f32 v17, v17")
        A("v_lshlrev_b32 v120, 16, v18")
        rbf(17)
        A("v_rcp_f32 v18, v17")
        A("v_mul_f32 v19, v120, v18")
        A("v_fma_f32 v120, -v19, v17, v120")
        A("v_fma_f32 v120, v120, v18, v19")

    def poll(label, loads, regs, t, slp=None, between=None):
        slp = sleep if slp is None else slp
        A("s_mov_b32 s59, 0")
        if between:
            for l in loads:
                A(l)
            between()
            A(f"s_branch {label}_chk")
        A(f"{label}:")
        for l in loads:
            A(l)
        if between:
            A(f"{label}_chk:")
        A("s_waitcnt vmcnt(0)")
        regs = list(regs)
        if len(regs) == 1:
            t = regs[0]
            rest = []
        elif len(regs) % 2 == 0:
            A(f"v_max_u32 v{t}, v{regs[0]}, v{regs[1]}")
            rest = regs[2:]
        else:
            A(f"v_max3_u32 v{t}, v{regs[0]}, v{regs[1]}, v{regs[2]}")
            rest = regs[3:]
        for i in range(0, len(rest), 2):
            A(f"v_max3_u32 v{t}, v{t}, v{rest[i]}, v{rest[i + 1]}")
        A(f"v_cmp_eq_u32 vcc, -1, v{t}")
        A(f"s_branch {label}_ok" if ("svc3" in xp and label in ("L_pollq", "L_pollall")) else f"s_cbranch_vccz {label}_ok")
        A("s_add_u32 s59, s59, 1")
        A(f"s_cmp_lt_u32 s59, {SPIN_MAX}")
        A(f"s_cbranch_scc0 {label}_ok")
        if masked:
            A("s_mov_b64 exec, vcc")
        if slp:
            A(f"s_sleep {slp}")
        A(f"s_branch {label}")
        A(f"{label}_ok:")
        if masked:
            A("s_mov_b64 exec, -1")

    def ldswait(label, off, val=None):
        A(f"v_mov_b32 v24, {L_F}\ns_mov_b32 s5, 0")
        A(f"{label}:")
        A(f"ds_read_b32 v25, v24 offset:{off}")
        A("s_waitcnt lgkmcnt(0)")
        A("v_cmp_ne_u32 vcc, 0, v25" if val is None else f"v_cmp_eq_u32 vcc, {val}, v25")
        A(f"s_cbranch_vccnz {label}_ok")
        A(f"s_add_u32 s5, s5, 1\ns_cmp_lt_u32 s5, {SPIN_MAX * 64}\ns_cbranch_scc0 {label}_ok")
        A("s_sleep 1")
        A(f"s_branch {label}")
        A(f"{label}_ok:")

    def store_quad(val, addr, lo="0x11111111", hi="0x11111111", fl="sc1", addr2=None):
        for i in (1, 2, 3):
            A(f"v_mov_b32_dpp v{val + i}, v{val} quad_perm:[{i},{i},{i},{i}] {FULL}")
        A(f"s_mov_b32 exec_lo, {lo}\ns_mov_b32 exec_hi, {hi}")
        A(f"global_store_dwordx4 v{addr}, v[{val}:{val + 3}], s[38:39] {fl}")
        if addr2 is not None:
            A(f"global_store_dwordx4 v{addr2}, v[{val}:{val + 3}], s[38:39] {fl}")
        A("s_mov_b64 exec, -1")

    def roles():
        brot = 0 if local else 4
        A(f"s_add_u32 s61, s6, {brot}\ns_and_b32 s61, s61, 7")
        A("s_bfe_u32 s13, s7, 0x10003\ns_lshl_b32 s4, s61, 1\ns_add_u32 s13, s13, s4")
        A("s_and_b32 s14, s7, 7")
        A("s_mul_i32 s15, s6, 14\ns_add_u32 s15, s15, s7")

    def rowoff(dst, row, tmp, on=True):
        if dup is None or not on:
            A(f"s_lshl_b32 {dst}, {row}, 11")
        else:
            A(f"s_lshr_b32 {tmp}, {row}, 2\ns_lshl_b32 {tmp}, {tmp}, 14\ns_and_b32 {dst}, {row}, 3\ns_lshl_b32 {dst}, {dst}, 11\ns_add_u32 {dst}, {dst}, {tmp}")

    def mycopy(dst):
        if dup == "auto":
            A(f"s_mov_b32 {dst}, s49")
        else:
            A(f"s_lshr_b32 {dst}, s6, 2\ns_xor_b32 {dst}, {dst}, {dup}\ns_lshl_b32 {dst}, {dst}, 13")

    def p1slot(dst):
        A(f"s_lshl_b32 {dst}, s6, 5\ns_add_u32 {dst}, {dst}, s7\ns_mul_i32 {dst}, {dst}, {P1_STRIDE}\ns_add_u32 {dst}, {dst}, {WS_P1}")

    stamp_at(0)
    A("s_load_dwordx16 s[16:31], s[0:1], 0")
    A("s_load_dwordx8 s[32:39], s[0:1], 64")
    A("s_cmp_ge_u32 s2, 256")
    A("s_cbranch_scc1 L_end")
    A("v_lshrrev_b32 v1, 6, v0")
    A("v_and_b32 v0, 63, v0")
    A("v_readfirstlane_b32 s3, v1")
    A("s_and_b32 s6, s2, 7")
    A("s_lshr_b32 s7, s2, 3")
    A(f"s_add_u32 s60, s6, {qrot}\ns_and_b32 s60, s60, 7")
    A("v_lshlrev_b32 v9, 4, v0")
    A("s_cmp_eq_u32 s3, 8")
    A("s_cbranch_scc1 L_service")
    def wqaddr():
        A("v_lshrrev_b32 v10, 3, v0\nv_and_b32 v11, 7, v0\nv_lshlrev_b32 v10, 13, v10\nv_lshl_add_u32 v10, v11, 4, v10")
        A("s_and_b32 s4, s7, 3\ns_lshl_b32 s4, s4, 3\ns_add_u32 s4, s4, s3\ns_lshl_b32 s4, s4, 7\ns_add_u32 s4, s4, s60\ns_lshl_b32 s4, s4, 3")
        A("s_lshr_b32 s5, s7, 2\ns_add_u32 s4, s4, s5\ns_lshl_b32 s4, s4, 7")
        A("v_add_u32 v10, s4, v10\nv_add_u32 v11, 0x10000, v10")
        A(f"s_lshl_b32 s57, s3, 11\ns_add_u32 m0, s57, {L_W}")

    def clears(b=12):
        n0 = len(C)
        clears0()
        if b != 12:
            for i in range(n0, len(C)):
                for r in (17, 16, 15, 14, 13, 12):
                    C[i] = C[i].replace(f"v{r},", f"v{r - 12 + b},").replace(f"v{r}\n", f"v{r - 12 + b}\n")
                    if C[i].endswith(f"v{r}"):
                        C[i] = C[i][:-len(f"v{r}")] + f"v{r - 12 + b}"

    def clears0():
        for i in range(4):
            A(f"v_mov_b32 v{12 + i}, -1")
        roles()
        p1slot("s4")
        rowoff("s5", "s15", "s8", dup3)
        A(f"s_add_u32 s5, s5, {WS_P3 - 256}")
        rowoff("s8", "s13", "s9")
        A(f"s_lshl_b32 s9, s14, 8\ns_add_u32 s8, s8, s9\ns_add_u32 s8, s8, {WS_P2 - 256}")
        A("s_cmp_ge_u32 s7, 16\ns_cselect_b32 s5, s8, s5\ns_cselect_b32 s8, 1, 8\ns_cselect_b32 s9, 32, 14")
        A("s_cmp_lt_u32 s7, s9\ns_cselect_b32 s8, s8, 0\ns_cmp_lt_u32 s3, s8\ns_cselect_b32 s8, -1, 0xffff")
        if dup is not None:
            A("s_cselect_b32 s9, 0xffff, 0")
            if not dup3:
                A("s_cmp_ge_u32 s7, 16\ns_cselect_b32 s9, s9, 0")
        A("v_mov_b32 v16, s4\nv_mov_b32 v17, s5\nv_cmp_gt_u32 vcc, 16, v0\ns_lshl_b32 s4, s3, 8")
        A("v_cndmask_b32 v16, v17, v16, vcc\nv_add3_u32 v16, v16, v9, s4")
        if dup is not None:
            A(f"v_lshrrev_b32 v17, 5, v0\nv_mul_u32_u24 v17, {8192 - 256}, v17\nv_add_u32 v16, v16, v17")

    def clearstore(b=12):
        if p1plain:
            A("s_mov_b64 exec, 0xffff")
            if p1plain != "none":
                A("global_store_dwordx4 v16, v[12:15], s[38:39]")
            A("s_andn2_b32 s8, s8, 0xffff\ns_cbranch_scc0 L_noc2")
        A("s_mov_b32 exec_lo, s8\ns_mov_b32 exec_hi, " + ("0" if dup is None else "s9"))
        A(f"global_store_dwordx4 v{b + 4}, v[{b}:{b + 3}], s[38:39] sc1")
        A("L_noc2:")
        A("s_mov_b64 exec, -1")

    def wqload():
        A("s_cmp_eq_u32 s3, 0")
        A("s_cbranch_scc0 L_nox")
        A(f"s_mov_b32 m0, {L_X}")
        A("global_load_lds_dwordx4 v9, s[16:17]")
        A(f"s_mov_b32 m0, {L_W}")
        A("s_nop 0")
        A("L_nox:")
        A(f"global_load_lds_dwordx4 v10, s[22:23]{wntf}")
        A("s_add_u32 m0, m0, 1024")
        A(f"global_load_lds_dwordx4 v11, s[22:23]{wntf}")
    if not kfirst:
        wqaddr()
    vKS = (1, 2, 3, 4)
    vKR = (5, 6, 7, 8)
    vV, vM, vML, vL = 9, 10, 11, 12
    PK = (13, 14)
    vAl = 15
    SEL = (16, 17, 18, 19)
    S = (20, 21, 22, 23)
    T = (24, 25, 26, 27)
    BB = 28
    vT2 = 38
    ACC = (40, 44)
    QF = 48
    KF = 64
    VR = [80 + 16 * i for i in range(VRING)]
    A("v_lshrrev_b32 v24, 4, v0")
    A("v_lshlrev_b32 v25, 6, v24")
    A(f"v_xor_b32 v{vKS[0]}, v{vV}, v25")
    for i in (1, 2, 3):
        A(f"v_xor_b32 v{vKS[i]}, {16 * i}, v{vKS[0]}")
    if split:
        A(f"v_add_u32 v{vKS[2]}, 6144, v{vKS[2]}\nv_add_u32 v{vKS[3]}, 6144, v{vKS[3]}\nv_add_u32 v39, 6144, v{vV}")
    A("s_lshl_b32 s10, s6, 23")
    if inter == "wgtile":
        if split:
            A("s_lshl_b32 s11, s7, 18\ns_add_u32 s10, s10, s11\ns_and_b32 s11, s3, 3\ns_lshl_b32 s11, s11, 11\ns_add_u32 s10, s10, s11")
            A("s_lshr_b32 s11, s3, 2\ns_lshl_b32 s11, s11, 14\ns_add_u32 s10, s10, s11")
        else:
            A("s_lshl_b32 s11, s7, 18\ns_add_u32 s10, s10, s11\ns_lshl_b32 s11, s3, 12\ns_add_u32 s10, s10, s11")
        step = 8 * 4096
    elif inter == "contig":
        A("s_lshl_b32 s11, s7, 18\ns_add_u32 s10, s10, s11\ns_lshl_b32 s11, s3, 15\ns_add_u32 s10, s10, s11")
        step = 4096
    elif inter == "global":
        A("s_lshl_b32 s11, s7, 15\ns_add_u32 s10, s10, s11\ns_lshl_b32 s11, s3, 12\ns_add_u32 s10, s10, s11")
        step = 256 * 4096
    A("s_mov_b32 s11, s10")
    A(f"s_mul_i32 s56, s3, {KRING * 4096}\ns_add_u32 s56, s56, {L_K}")
    A("s_mov_b32 s42, 0x4000000\ns_mov_b32 s43, 0x20000")
    if kfirst:
        A("s_mov_b32 m0, s56")
    if sclr == "first" and "noclear" not in xp:
        clears()
    A("s_waitcnt lgkmcnt(0)")
    stamp_at(12)
    if sclr == "first" and "noclear" not in xp:
        clearstore()
    if not kfirst:
        A("s_barrier")
        wqload()
        A("s_mov_b32 m0, s56")
    A("s_mov_b32 s40, s18\ns_and_b32 s41, s19, 0xffff")
    stamp_at(11)
    vm = VM()
    ids = {}
    m0k = [0]
    order = (order or "K0 V0 K1 V1 K2 V2 V3 V4 K3 K4 K5 V5 K6 V6 K7 V7").split()
    seq = [(g[0], int(g[1]), u) for g in order for u in range(4)]
    NPRE = 4 * (KRING + VRING)

    def W(opid):
        w = vm.wait(opid)
        if w:
            A(w)

    def load(n):
        mat, t, u = seq[n]
        d = D if n < d2from else D2
        if D3 and n >= d3from:
            d = D3
        if dseq and n > bpos:
            d = int(dseq[n])
        if adapt and n >= NPRE and n in adapt[2]:
            W(ids[seq[n - d - 1]])
            A(f"s_cbranch_vccnz L_ad{n}")
            A(f"s_waitcnt vmcnt({d - 1})")
            A(f"L_ad{n}:")
        elif n >= d:
            W(ids[seq[n - d]])
            if adapt and n >= NPRE and n in adapt[3]:
                A(f"s_cmp_le_u32 s9, {adapt[0]}")
                A(f"s_cbranch_scc0 L_ad{n}")
                A(f"s_waitcnt vmcnt({d - 2})")
                A(f"L_ad{n}:")
        if opos and n in opos and "now" not in xp:
            for i, p in enumerate(opos):
                if p == n:
                    A(f"global_load_dwordx4 v[164:167], v161, s[24:25] offset:{1024 * i}")
        if mat == "K":
            if m0k[0] != t:
                m0k[0] = t
                A(f"s_add_u32 m0, s56, {4096 * (t % KRING)}")
            A(f"buffer_load_dwordx4 v{vKS[u]}, s[40:43], s10 offen offset:{1024 * u}{ntf} lds")
            if u == 3:
                A(f"s_add_u32 s10, s10, {step}")
        else:
            r = VR[t % VRING] + 4 * u
            A(f"buffer_load_dwordx4 v[{r}:{r + 3}], v{39 if (split and u >= 2) else vV}, s[44:47], s11 offen offset:{1024 * u}{ntf}")
            if u == 3:
                A(f"s_add_u32 s11, s11, {step}")
        ids[seq[n]] = vm.issue()
        if n == qpos:
            A(f"v_mov_b32 v39, {L_F}\nds_write_b32 v39, v39 offset:8")
        if n == vpos and dup == "auto" and vpos:
            A("ds_write_b32 v39, v39 offset:20")

    def consts():
        A("v_and_b32 v24, 3, v0")
        A("v_mov_b32 v25, 0x0c0c0c0c")
        for k, (lo, e0) in enumerate(((0x0100, 0), (0x0100, 2), (0x0302, 0), (0x0302, 2))):
            A(f"v_mov_b32 v26, {hex(0x0c0c0000 | lo)}")
            A(f"v_mov_b32 v27, {hex((lo << 16) | 0x0c0c)}")
            A(f"v_cmp_eq_u32 vcc, {e0}, v24")
            A(f"v_cndmask_b32 v{SEL[k]}, v25, v26, vcc")
            A(f"v_cmp_eq_u32 vcc, {e0 + 1}, v24")
            A(f"v_cndmask_b32 v{SEL[k]}, v{SEL[k]}, v27, vcc")
        for z in (0, 1, 4, 5, 8, 9):
            A(f"v_mov_b32 v{BB + z}, 0")
        A(f"s_mov_b32 s12, {hex(LOG2E)}")
        A("v_bfe_u32 v25, v0, 2, 2")
        A("v_lshrrev_b32 v26, 4, v0")
        A("v_lshlrev_b32 v27, 8, v25")
        A(f"v_lshl_add_u32 v{vT2}, v26, 4, v27")
        A("v_lshl_add_u32 v25, v24, 2, v25")
        A("v_and_b32 v27, 15, v0")
        A("v_xor_b32 v26, v26, v27")
        A("v_lshlrev_b32 v26, 4, v26")
        A("v_lshl_add_u32 v26, v25, 8, v26")
        for u in range(4):
            A(f"v_xor_b32 v{vKR[u]}, {64 * u}, v26")
            A(f"v_add_u32 v{vKR[u]}, s56, v{vKR[u]}")
        roles()
        A("s_lshl_b32 s58, s3, 12")
        if dlate:
            A(f"s_min_u32 s4, s15, 111\ns_lshl_b32 s4, s4, 3\ns_add_u32 s4, s4, s3\ns_lshl_b32 s4, s4, 11\nv_add_u32 v162, s4, v{vV}")
        A("s_lshl_b32 s4, s13, 3\ns_add_u32 s4, s4, s3\ns_lshl_b32 s4, s4, 15\ns_lshl_b32 s5, s14, 7\ns_add_u32 s4, s4, s5")
        A("v_lshrrev_b32 v160, 3, v0\nv_and_b32 v161, 7, v0\nv_lshlrev_b32 v160, 10, v160\nv_lshl_add_u32 v160, v161, 4, v160\nv_add_u32 v160, s4, v160")
        A(f"s_lshl_b32 s4, s61, 5\ns_add_u32 s4, s4, s7\ns_lshl_b32 s4, s4, 3\ns_add_u32 s4, s4, s3\ns_lshl_b32 s4, s4, 11\nv_add_u32 v161, s4, v{vV}")

    def late():
        if "now" in xp:
            return
        if dlate:
            A("s_cmp_lt_u32 s7, 14")
            A("s_cbranch_scc0 L_late_b")
            for i in range(2):
                A(f"s_add_u32 m0, s57, {L_W + 32768 + 1024 * i}")
                A(f"global_load_lds_dwordx4 v162, s[32:33] offset:0{wntf}")
                if i == 0:
                    A("v_add_u32 v162, 1024, v162")
            A("s_mov_b64 exec, 1")
            A("global_load_dword v163, v162, s[32:33]\nglobal_load_dword v163, v162, s[32:33]")
            A("s_branch L_late_done")
            A("L_late_b:")
        A("s_cmp_ge_u32 s7, 16")
        A("s_cselect_b64 exec, -1, 1")
        for i in range(4):
            A(f"s_add_u32 m0, s58, {L_W + 1024 * i}")
            A(f"global_load_lds_dwordx4 v160, s[24:25]{wntf if not opos else ''}")
            vm.issue()
            if i < 3:
                A("v_add_u32 v160, 0x2000, v160")
        A("L_late_done:")
        A("s_mov_b64 exec, -1")

    def qk(t, last=False):
        W(ids[("K", t, 3)])
        if "nocomp" in xp and not last:
            return
        k = KF
        for u in range(4):
            A(f"ds_read_b128 v[{k + 4 * u}:{k + 4 * u + 3}], v{vKR[u]} offset:{4096 * (t % KRING)}")
        for u in range(4):
            c = "0" if u == 0 else f"v[{S[0]}:{S[3]}]"
            A("s_waitcnt lgkmcnt(0)" if stamps else f"s_waitcnt lgkmcnt({3 - u})")
            A(f"v_mfma_f32_16x16x32_bf16 v[{S[0]}:{S[3]}], v[{k + 4 * u}:{k + 4 * u + 3}], v[{QF + 4 * u}:{QF + 4 * u + 3}], {c}")
        if last:
            A("v_bfe_u32 v26, v0, 2, 2")
            A("v_lshlrev_b32 v26, 5, v26")
            A("s_lshl_b32 s4, s3, 2")
            A("v_add_u32 v27, s4, v26")
        for rnd in range(2):
            A(f"v_cvt_pk_bf16_f32 v{T[0]}, v{S[0]}, v{S[1]}")
            A(f"v_cvt_pk_bf16_f32 v{T[1]}, v{S[2]}, v{S[3]}")
            A(f"v_lshlrev_b32 v{S[0]}, 16, v{T[0]}")
            A(f"v_and_b32 v{S[1]}, 0xffff0000, v{T[0]}")
            A(f"v_lshlrev_b32 v{S[2]}, 16, v{T[1]}")
            A(f"v_and_b32 v{S[3]}, 0xffff0000, v{T[1]}")
            if rnd == 0:
                for r in range(4):
                    A(f"v_mul_f32 v{S[r]}, {hex(SCALE)}, v{S[r]}")
        if t == 0:
            A(f"v_max_f32 v{vM}, v{S[0]}, v{S[1]}")
            A(f"v_max3_f32 v{vM}, v{vM}, v{S[2]}, v{S[3]}")
        else:
            A(f"v_max3_f32 v{vM}, v{vM}, v{S[0]}, v{S[1]}")
            A(f"v_max3_f32 v{vM}, v{vM}, v{S[2]}, v{S[3]}")
        xrow(vM, T[0], "max")
        if last:
            A("s_mov_b64 exec, 0x1111")
            A(f"ds_write_b32 v27, v{vM} offset:{L_M}")
            A("s_mov_b64 exec, -1")
            A("s_waitcnt lgkmcnt(0)")
            A("s_barrier")
            if lpos == "b1":
                late()
            k0 = KF
            A(f"ds_read_b128 v[{k0}:{k0 + 3}], v26 offset:{L_M}")
            A(f"ds_read_b128 v[{k0 + 4}:{k0 + 7}], v26 offset:{L_M + 16}")
            A("s_waitcnt lgkmcnt(0)")
            A(f"v_max3_f32 v{vM}, v{k0}, v{k0 + 1}, v{k0 + 2}")
            A(f"v_max3_f32 v{vM}, v{vM}, v{k0 + 3}, v{k0 + 4}")
            A(f"v_max3_f32 v{vM}, v{vM}, v{k0 + 5}, v{k0 + 6}")
            A(f"v_max_f32 v{vM}, v{vM}, v{k0 + 7}")
        if t > 0:
            A(f"v_mov_b32 v{vAl}, v{vML}")
        A(f"v_mul_f32 v{vML}, s12, v{vM}")
        if t > 0:
            A(f"v_sub_f32 v{vAl}, v{vAl}, v{vML}")
            A(f"v_exp_f32 v{vAl}, v{vAl}")
        for r in range(4):
            A(f"v_fma_f32 v{S[r]}, v{S[r]}, s12, -v{vML}")
        for r in range(4):
            A(f"v_exp_f32 v{S[r]}, v{S[r]}")
        if t > 0:
            for a in range(8):
                A(f"v_mul_f32 v{ACC[0] + a}, v{vAl}, v{ACC[0] + a}")
        A(f"v_add_f32 v{T[0]}, v{S[0]}, v{S[1]}")
        A(f"v_add_f32 v{T[1]}, v{S[2]}, v{S[3]}")
        A(f"v_cvt_pk_bf16_f32 v{PK[0]}, v{S[0]}, v{S[1]}")
        A(f"v_cvt_pk_bf16_f32 v{PK[1]}, v{S[2]}, v{S[3]}")
        if t == 0:
            A(f"v_add_f32 v{vL}, v{T[0]}, v{T[1]}")
        else:
            A(f"v_add_f32 v{T[0]}, v{T[0]}, v{T[1]}")
            A(f"v_fma_f32 v{vL}, v{vL}, v{vAl}, v{T[0]}")
        if last:
            xrow(vL, T[0])
            A("s_mov_b64 exec, 0x1111")
            A(f"ds_write_b32 v27, v{vL} offset:{L_L}")
            A("s_mov_b64 exec, -1")
            A("s_and_b32 s4, s3, 1\ns_lshl_b32 s4, s4, 6\nv_lshrrev_b32 v26, 5, v0\nv_lshl_add_u32 v26, v26, 5, s4")
            A(f"v_mov_b32 v27, {L_F}")
            A("s_waitcnt lgkmcnt(0)")
            A("s_barrier")
            if lpos == "b1b":
                late()
            A(f"ds_read_b128 v[64:67], v26 offset:{L_M}")
            A(f"ds_read_b128 v[68:71], v26 offset:{L_M + 16}")
            A(f"ds_read_b128 v[72:75], v26 offset:{L_L}")
            A(f"ds_read_b128 v[76:79], v26 offset:{L_L + 16}")
            A("ds_read2_b32 v[26:27], v27 offset0:4 offset1:1")
            A("s_waitcnt lgkmcnt(0)")
            A("v_max3_f32 v64, v64, v65, v66\nv_max3_f32 v64, v64, v67, v68\nv_max3_f32 v64, v64, v69, v70\nv_max_f32 v64, v64, v71")
            for i in range(4):
                A(f"v_add_f32 v{72 + i}, v{72 + i}, v{76 + i}")
            A("v_add_f32 v72, v72, v73\nv_add_f32 v74, v74, v75\nv_add_f32 v72, v72, v74")
            A("v_readfirstlane_b32 s62, v27")
            A("v_readfirstlane_b32 s49, v26")
            A("v_log_f32 v73, v72")
            A(f"v_rcp_f32 v{vAl}, v72")
            A(f"v_mul_f32 v64, s12, v64")
            A(f"v_add_f32 v{vL}, v64, v73")
            A(f"v_and_b32 v{vM}, 3, v0\nv_add_u32 v{vM}, 0x07060501, v{vM}")
            A("s_mov_b32 s50, 0x88888888\ns_mov_b32 s51, 0x88888888")

    def pv(t, last=False):
        v = VR[t % VRING]
        if "nocomp" in xp and not last:
            W(ids[("V", t, 3)])
            return

        def perm(i):
            b = BB + 2 + 4 * (i & 1)
            A(f"v_perm_b32 v{b}, v{PK[i >> 1]}, v{PK[i >> 1]}, v{SEL[2 * (i & 1)]}")
            A(f"v_perm_b32 v{b + 1}, v{PK[i >> 1]}, v{PK[i >> 1]}, v{SEL[2 * (i & 1) + 1]}")
        perm(0)
        perm(1)
        if not last:
            W(ids[("V", t, 3)])
        else:
            A(f"v_add_u32 v64, s56, v{vV}")
            A("v_and_b32 v65, 15, v0\nv_bfe_u32 v66, v0, 4, 1\nv_mul_u32_u24 v66, 272, v66\nv_add_u32 v65, v65, v66")
            A("v_lshrrev_b32 v66, 5, v0\nv_lshl_add_u32 v65, v66, 4, v65\ns_lshl_b32 s4, s3, 7")
            A(f"s_add_u32 s4, s4, {L_K}\nv_lshl_add_u32 v65, v65, 2, s4")
            A(f"v_add_u32 v66, {4 * KRING * 4096}, v65")
            p1slot("s4")
            A("s_lshl_b32 s5, s3, 8\ns_add_u32 s5, s5, s4\nv_lshl_add_u32 v67, v0, 2, s5")
        for i in range(4):
            if last:
                W(ids[("V", t, i)])
            b = BB + 2 + 4 * (i & 1)
            for h in range(2):
                c = "0" if (t == 0 and i == 0) else f"v[{ACC[h]}:{ACC[h] + 3}]"
                bb = b if h == 0 else b - 2
                A(f"v_mfma_f32_16x16x32_bf16 v[{ACC[h]}:{ACC[h] + 3}], v[{v + 4 * i}:{v + 4 * i + 3}], v[{bb}:{bb + 3}], {c}")
            if i < 2:
                perm(i + 2)

    for n in range(NPRE):
        load(n)
        if n == 3:
            A("s_mov_b32 s44, s20\ns_and_b32 s45, s21, 0xffff\ns_mov_b32 s46, 0x4000000\ns_mov_b32 s47, 0x20000")
            if sclr == "after" and "noclear" not in xp and clrpos == 3 and not wqfirst:
                clears()
                clearstore()
            if kfirst:
                wqaddr()
                wqload()
                m0k[0] = None
            if sclr == "after" and "noclear" not in xp and clrpos == 3 and wqfirst:
                clears()
                clearstore()
            if kfirst:
                A("s_barrier")
        if n == clrpos and clrpos > 3 and sclr == "after" and "noclear" not in xp:
            clears(72)
            clearstore(72)
        if n == max(D - 1, 3):
            consts()
        if n == bpos:
            stamp_at(13)
            A(f"v_mov_b32 v24, {L_F}\nv_mov_b32 v25, 1\ns_mov_b64 exec, 1\nds_add_u32 v24, v25 offset:12\ns_mov_b64 exec, -1")
        if n == qpos and False:
            A(f"v_mov_b32 v24, {L_F}\nds_write_b32 v24, v24 offset:8")
    stamp_at(1)
    ldswait("L_waitq", 0)
    if adapt:
        lo, hi, lsites, tsites = adapt
        A("v_readfirstlane_b32 s9, v25")
        A(f"v_cmp_lt_u32 vcc, {hi}, v25")
        if stamps:
            A("s_mov_b32 s88, s9")
    stamp_at(2)
    for u in range(4):
        A(f"ds_read_b128 v[{QF + 4 * u}:{QF + 4 * u + 3}], v{vT2} offset:{L_Q + 64 * u}")
    A("s_waitcnt lgkmcnt(0)")
    blocks = []
    for t in range(7):
        blocks += [(qk, t, ("K", t, 3)), (pv, t, ("V", t, 3))]
    bi = 0
    for n in range(NPRE, len(seq)):
        mat, t, u = seq[n]
        needb = {"K": 2 * (t - KRING) + 1, "V": 2 * (t - VRING) + 2}[mat]
        while bi < needb:
            blocks[bi][0](blocks[bi][1])
            bi += 1
        load(n)
        if bi < len(blocks) and blocks[bi][2] in ids and ids[blocks[bi][2]] <= vm.done:
            blocks[bi][0](blocks[bi][1])
            bi += 1
    if lpos == "v7":
        late()
    while bi < len(blocks):
        blocks[bi][0](blocks[bi][1])
        bi += 1
    for _ in range(pad1):
        A("s_nop 0")
    qk(7, last=True)
    stamp_at(3)
    pv(7, last=True)
    stamp_at(4)
    A(f"ds_write_b128 v64, v[{ACC[0]}:{ACC[0] + 3}]")
    A(f"ds_write_b128 v64, v[{ACC[1]}:{ACC[1] + 3}] offset:1088")
    A("s_waitcnt lgkmcnt(0)")
    A("s_barrier")
    R0 = 72
    for i in range(8):
        A(f"ds_read_b32 v{R0 + i}, v{65 + (i >> 2)} offset:{KRING * 4096 * (i & 3)}")
    A("s_cmp_eq_u32 s62, 1")
    A("s_waitcnt lgkmcnt(0)")
    for i in range(2):
        A(f"v_pk_add_f32 v[{R0 + 2 * i}:{R0 + 2 * i + 1}], v[{R0 + 2 * i}:{R0 + 2 * i + 1}], v[{R0 + 4 + 2 * i}:{R0 + 5 + 2 * i}]")
    A(f"v_pk_add_f32 v[{R0}:{R0 + 1}], v[{R0}:{R0 + 1}], v[{R0 + 2}:{R0 + 3}]")
    A(f"v_add_f32 v{R0}, v{R0}, v{R0 + 1}")
    A(f"v_mul_f32 v{R0}, v{R0}, v{vAl}")
    A(f"v_mov_b32_dpp v{R0 + 1}, v{R0} quad_perm:[3,3,3,3] {FULL}")
    A(f"v_perm_b32 v{R0}, v{R0}, v{R0 + 1}, v{vM}")
    A(f"v_cndmask_b32 v{R0}, v{R0}, v{vL}, s[50:51]")
    A("s_cbranch_scc0 L_pubfar")
    A(f"global_store_dword v67, v{R0}, s[38:39]")
    A("L_published:")
    for _ in range(pad2):
        A("s_nop 0")
    stamp_at(5)
    A("s_cmp_lt_u32 s7, 14")
    A("s_cbranch_scc1 L_ffn")
    A("s_cmp_lt_u32 s7, 16")
    A("s_cbranch_scc1 L_final")
    A(f"s_lshl_b32 s4, s61, 5\nv_lshrrev_b32 v16, 3, v0\nv_add_u32 v16, s4, v16\nv_mul_u32_u24 v16, {P1_STRIDE}, v16")
    A("s_and_b32 s4, s13, 1\ns_lshl_b32 s4, s4, 1\ns_lshr_b32 s5, s3, 2\ns_add_u32 s4, s4, s5")
    A(f"s_and_b32 s5, s3, 3\ns_lshl_b32 s5, s5, 2\ns_add_u32 s4, s4, s5\ns_lshl_b32 s4, s4, 7\ns_add_u32 s4, s4, {WS_P1}")
    A("v_and_b32 v17, 7, v0\nv_lshl_add_u32 v16, v17, 4, v16\nv_add_u32 v24, s4, v16")
    for pi in range(1, 4):
        A(f"v_add_u32 v{24 + pi}, {8 * pi * P1_STRIDE}, v24")
    A("s_mov_b32 s52, 0x04000c0c\ns_mov_b32 s53, 0x0706000c")
    A("s_mov_b32 s54, 0xffff0000\ns_mov_b32 s55, 0xffff0000\ns_mov_b32 s50, 0\ns_mov_b32 s51, -1")
    sigma(16, 17)
    A("v_bfe_u32 v17, v0, 2, 2\nv_lshl_add_u32 v16, v16, 3, v17\nv_lshlrev_b32 v16, 7, v16")
    A("v_and_b32 v17, 3, v0\nv_lshl_add_u32 v16, v17, 3, v16\nv_add_u32 v16, s58, v16")
    WB = 88

    A("v_mov_b32 v30, v16")
    A("s_lshl_b32 s4, s3, 8\nv_lshl_add_u32 v18, v0, 2, s4")
    rowoff("s4", "s13", "s5")
    A(f"s_lshl_b32 s5, s14, 8\ns_add_u32 s4, s4, s5\ns_add_u32 s4, s4, {WS_P2}")
    if dup is not None:
        mycopy("s5")
        A("s_xor_b32 s5, s5, 0x2000\ns_add_u32 s4, s4, s5")
    A("v_lshlrev_b32 v19, 2, v0\nv_add_u32 v28, s4, v19")
    if dup is not None:
        A("v_xor_b32 v29, 0x2000, v28")
    D0 = 120
    loads = [f"global_load_dwordx4 v[{D0 + 4 * pi}:{D0 + 4 * pi + 3}], v{24 + pi}, s[38:39] sc1" for pi in range(4)]
    def bweights():
        if not bwait:
            A("s_waitcnt vmcnt(4)")
        for tau in range(4):
            for t in range(2):
                r = WB + 4 * tau + 2 * t
                A(f"ds_read_b64_tr_b16 v[{r}:{r + 1}], v30 offset:{L_W + 512 * t + 32 * tau}")
    if bwait:
        A("s_waitcnt vmcnt(1)")
    if gate:
        A("s_barrier")
    stamp_at(8)
    poll("L_poll1", loads, range(120, 136), 31, between=bweights)
    stamp_at(6)
    A(f"v_max3_f32 v16, v{D0 + 3}, v{D0 + 7}, v{D0 + 11}\nv_max_f32 v16, v16, v{D0 + 15}")
    for pi in range(2):
        A(f"v_perm_b32 v{136 + pi}, v{D0 + 4 * pi + 2}, v{D0 + 4 * pi + 1}, s52")
    A(f"v_max_f32_dpp v16, v16, v16 row_ror:8 {FULL}")
    A("v_mov_b32 v17, v16")
    for pi in range(2, 4):
        A(f"v_perm_b32 v{136 + pi}, v{D0 + 4 * pi + 2}, v{D0 + 4 * pi + 1}, s52")
    A("v_permlane16_swap_b32 v16, v17")
    A("v_max_f32 v16, v16, v17")
    A("v_mov_b32 v17, v16")
    A("v_permlane32_swap_b32 v16, v17")
    A("v_max_f32 v16, v16, v17")
    for pi in range(4):
        A(f"v_sub_f32 v{140 + pi}, v{D0 + 4 * pi + 3}, v16")
    for pi in range(4):
        A(f"v_exp_f32 v{140 + pi}, v{140 + pi}")
        A(f"v_perm_b32 v{D0 + 4 * pi + 3}, v{136 + pi}, v{D0 + 4 * pi}, s53")
    A("v_pk_add_f32 v[16:17], v[140:141], v[142:143]")
    for hlf in range(2):
        A(f"v_pk_mul_f32 v[{D0 + 2 * hlf}:{D0 + 2 * hlf + 1}], v[140:141], v[{D0 + 2 * hlf}:{D0 + 2 * hlf + 1}] op_sel_hi:[0,1]")
    A("v_add_f32 v16, v16, v17")
    for pi in range(1, 4):
        w = f"v[{140 + (pi & 2)}:{141 + (pi & 2)}]"
        sel = "op_sel:[1,0,0] op_sel_hi:[1,1,1]" if pi & 1 else "op_sel_hi:[0,1,1]"
        for hlf in range(2):
            r = D0 + 2 * hlf
            A(f"v_pk_fma_f32 v[{r}:{r + 1}], {w}, v[{r + 4 * pi}:{r + 4 * pi + 1}], v[{r}:{r + 1}] {sel}")
        if pi == 1:
            A(f"v_add_f32_dpp v16, v16, v16 row_ror:8 {FULL}")
    A("v_mov_b32 v17, v16")
    A(f"v_permlane32_swap_b32 v{D0}, v{D0 + 1}\nv_permlane32_swap_b32 v{D0 + 2}, v{D0 + 3}\nv_permlane32_swap_b32 v16, v17")
    A(f"v_add_f32 v{D0}, v{D0}, v{D0 + 1}\nv_add_f32 v{D0 + 2}, v{D0 + 2}, v{D0 + 3}\nv_add_f32 v16, v16, v17")
    A("v_mov_b32 v17, v16")
    A(f"v_permlane16_swap_b32 v{D0}, v{D0 + 2}\nv_permlane16_swap_b32 v16, v17")
    A(f"v_add_f32 v{D0}, v{D0}, v{D0 + 2}\nv_add_f32 v16, v16, v17")
    A(f"v_add_f32_dpp v{D0}, v{D0}, v{D0} row_ror:8 {FULL}")
    A("v_rcp_f32 v16, v16")
    A(f"v_mul_f32 v{D0}, v{D0}, v16")
    A(f"v_mov_b32_dpp v{D0 + 1}, v{D0} quad_perm:[1,0,3,2] {FULL}")
    A(f"v_cvt_pk_bf16_f32 v{D0}, v{D0}, v{D0 + 1}")
    for e in range(4):
        A(f"v_mov_b32_dpp v{124 + e}, v{D0} row_newbcast:{2 * e} {FULL}")
    A("s_waitcnt lgkmcnt(0)")
    for tau in range(4):
        A(f"v_mfma_f32_16x16x32_bf16 v[{128 + 4 * tau}:{131 + 4 * tau}], v[124:127], v[{WB + 4 * tau}:{WB + 4 * tau + 3}], 0")
    A("v_cndmask_b32 v128, v128, v132, s[54:55]")
    A("v_cndmask_b32 v136, v136, v140, s[54:55]")
    A("v_cndmask_b32 v128, v128, v136, s[50:51]")
    A(f"ds_write_b32 v18, v128 offset:{L_B}")
    A("s_cmp_eq_u32 s3, 0")
    A("s_waitcnt lgkmcnt(0)")
    A("s_barrier")
    A("s_cbranch_scc0 L_bdone")
    for i in range(8):
        A(f"ds_read_b32 v{120 + i}, v19 offset:{L_B + 256 * i}")
    A("s_waitcnt lgkmcnt(0)")
    for i in range(2):
        A(f"v_pk_add_f32 v[{120 + 2 * i}:{121 + 2 * i}], v[{120 + 2 * i}:{121 + 2 * i}], v[{124 + 2 * i}:{125 + 2 * i}]")
    A("v_pk_add_f32 v[120:121], v[120:121], v[122:123]")
    A("v_add_f32 v120, v120, v121")
    store_quad(120, 28, fl=st2, addr2=None if dup is None else 29)
    A("L_bdone:")
    if wb:
        A("s_cmp_eq_u32 s3, 1\ns_cbranch_scc0 L_nowb\ns_cmp_eq_u32 s7, 16\ns_cbranch_scc0 L_nowb")
        A("buffer_wbl2 sc1")
        A("L_nowb:")
    stamp_at(7)
    stamp_store()
    A("s_endpgm")
    A("L_pubfar:")
    A("s_nop 0")
    store_quad(R0, 67)
    A("s_branch L_published")
    A("L_ffn:")
    vCol = 65
    A("v_and_b32 v17, 7, v0\nv_bfe_u32 v16, v0, 3, 2\nv_lshl_add_u32 v16, v17, 2, v16")
    A("v_and_b32 v18, 32, v0\nv_add_u32 v16, v16, v18")
    A(f"s_lshl_b32 s4, s3, 6\nv_add_u32 v{vCol}, s4, v16")
    A(f"v_lshlrev_b32 v29, 1, v{vCol}")
    A(f"ds_read_u16_d16_hi v64, v29 offset:{L_X}")
    A(f"s_lshl_b32 s4, s3, 8\ns_add_u32 s4, s4, {WS_P2}")
    if dup is None:
        A("v_lshrrev_b32 v18, 3, v0\nv_lshlrev_b32 v19, 12, v18\nv_lshl_add_u32 v16, v17, 4, v19\nv_add_u32 v20, s4, v16")
    else:
        mycopy("s5")
        A("s_add_u32 s4, s4, s5")
        A("v_lshrrev_b32 v18, 4, v0\nv_lshlrev_b32 v19, 14, v18\nv_bfe_u32 v18, v0, 3, 1\nv_lshl_add_u32 v19, v18, 12, v19\nv_lshl_add_u32 v16, v17, 4, v19\nv_add_u32 v20, s4, v16")
    A("v_lshrrev_b32 v18, 4, v0\nv_and_b32 v17, 15, v0")
    rowoff("s4", "s15", "s5", dup3)
    A(f"s_add_u32 s4, s4, {WS_P3}\ns_lshl_b32 s5, s3, 8\ns_add_u32 s4, s4, s5")
    if dup is not None and dup3:
        mycopy("s5")
        A("s_xor_b32 s5, s5, 0x2000\ns_add_u32 s4, s4, s5")
    A("v_lshl_add_u32 v22, v0, 2, s4")
    if dup is not None and dup3:
        A("v_xor_b32 v21, 0x2000, v22")
    A("s_lshl_b32 s5, s3, 4\nv_mov_b32 v23, s5")
    A("v_and_b32 v24, 7, v0\nv_lshlrev_b32 v24, 4, v24")
    A("s_mov_b32 s63, 0x42800000\ns_mov_b32 s54, 0xffff0000\ns_mov_b32 s55, 0xffff0000")
    A("v_mov_b32 v67, 0x3b000000\nv_mov_b32 v68, 0x3727c5ac\nv_mov_b32 v69, 0xbdd2d3e8\nv_mov_b32 v70, 0xc0135761")
    for i in range(4):
        A(f"v_mov_b32 v{72 + i}, 0x3f803f80")
    A("s_lshl_b32 s4, s3, 7\nv_lshl_add_u32 v25, v18, 4, s4")
    A("v_lshlrev_b32 v27, 2, v0\ns_lshl_b32 s5, s3, 8\nv_add_u32 v26, s5, v27")
    A("v_lshl_add_u32 v28, v0, 1, s4")
    if cfast:
        A("v_bfe_u32 v16, v0, 2, 2\nv_lshlrev_b32 v16, 2, v16\nv_bfe_u32 v19, v0, 4, 1\nv_lshl_add_u32 v16, v19, 1, v16")
        A("v_and_b32 v19, 32, v0\nv_add_u32 v16, v16, v19\nv_lshlrev_b32 v16, 5, v16")
    else:
        A("v_bfe_u32 v16, v0, 2, 2\nv_lshl_add_u32 v16, v18, 3, v16\nv_lshlrev_b32 v16, 5, v16")
    A("v_and_b32 v17, 3, v0\nv_lshl_add_u32 v16, v17, 3, v16\nv_add_u32 v16, s57, v16")
    GW = 88
    DW = 104

    def dreads():
        for r in range(16):
            if r == 14:
                A("s_waitcnt lgkmcnt(0)")
            A(f"ds_read_u16_d16_hi v{DW + r}, v28 offset:{L_W + 32768 + 1024 * r}")
    if dsplit:
        if dlate:
            A("s_waitcnt vmcnt(1)")
        A("s_barrier")
        dreads()
        A("s_waitcnt lgkmcnt(0)")
    A("s_barrier")
    stamp_at(11)

    def cweights():
        for mat in range(2):
            for kap in range(2):
                for t in range(2):
                    r = GW + 8 * mat + 4 * kap + 2 * t
                    A(f"ds_read_b64_tr_b16 v[{r}:{r + 1}], v16 offset:{L_W + 16384 * mat + ((32 * kap + 512 * t) if cfast else (1024 * kap + 128 * t))}")
        if cfast:
            stamp_at(13)
            return
        colsums()

    def colsums():
        A("s_waitcnt lgkmcnt(0)")
        A(f"v_mfma_f32_16x16x32_bf16 v[140:143], v[72:75], v[{GW}:{GW + 3}], 0")
        A(f"v_mfma_f32_16x16x32_bf16 v[144:147], v[72:75], v[{GW + 8}:{GW + 11}], 0")
        A(f"v_mfma_f32_16x16x32_bf16 v[140:143], v[72:75], v[{GW + 4}:{GW + 7}], v[140:143]")
        A(f"v_mfma_f32_16x16x32_bf16 v[144:147], v[72:75], v[{GW + 12}:{GW + 15}], v[144:147]")
        if not cfast:
            A("v_cndmask_b32 v66, v140, v144, s[54:55]")
            stamp_at(13)
    loads = [f"global_load_dwordx4 v[{120 + 4 * i}:{123 + 4 * i}], v20, s[38:39] offset:{2048 * (i >> 1) + 128 * (i & 1)} {ld2}" for i in range(4)]
    poll("L_poll2", loads, range(120, 136), 31, between=cweights)
    stamp_at(6)
    if cfast:
        n0 = len(C)
        colsums()
        cs = C[n0:]
        del C[n0:]
        A(cs[0])
    for e in range(4):
        if cfast:
            A(cs[1 + e])
        A(f"v_pk_add_f32 v[{120 + 2 * e}:{121 + 2 * e}], v[{120 + 2 * e}:{121 + 2 * e}], v[{128 + 2 * e}:{129 + 2 * e}]")
    for e in range(4):
        A(f"v_permlane32_swap_b32 v{120 + e}, v{124 + e}")
    A("v_pk_add_f32 v[120:121], v[120:121], v[124:125]\nv_pk_add_f32 v[122:123], v[122:123], v[126:127]")
    A("v_permlane16_swap_b32 v120, v122\nv_permlane16_swap_b32 v121, v123")
    A("v_pk_add_f32 v[122:123], v[120:121], v[122:123]")
    A("v_add_f32_dpp v120, v122, v122 row_ror:8 row_mask:0xf bank_mask:0x3")
    A("v_add_f32_dpp v120, v123, v123 row_ror:8 row_mask:0xf bank_mask:0xc")
    A("v_add_f32 v120, v120, v64")
    if cfast:
        A(f"v_mov_b32_dpp v122, v120 quad_perm:[1,0,3,2] {FULL}")
        A("v_cndmask_b32 v66, v140, v144, s[54:55]")
        A("v_cvt_pk_bf16_f32 v121, v120, v122")
        A("v_lshlrev_b32 v120, 16, v121")
        for e in range(8):
            A(f"v_mov_b32_dpp v{124 + e}, v121 row_newbcast:{2 * e} {FULL}")
            if e == 0:
                A("v_readfirstlane_b32 s4, v120")
    else:
        A("v_cvt_pk_bf16_f32 v121, v120, v120")
        A(f"ds_write_b16 v29, v121 offset:{L_HN}")
        A("v_lshlrev_b32 v120, 16, v121")
        A("v_readfirstlane_b32 s4, v120")
        A("s_waitcnt lgkmcnt(0)")
        A(f"ds_read_b128 v[124:127], v25 offset:{L_HN}")
        A(f"ds_read_b128 v[128:131], v25 offset:{L_HN + 64}")
    A("v_subrev_f32 v148, s4, v120")
    A("v_mov_b32 v150, s4")
    A("v_mul_f32 v149, v148, v148")
    steps = [f"{m} {FULL}" for m in ("row_shr:1", "row_shr:2", "row_shr:4", "row_shr:8")] + ["row_bcast:15 row_mask:0xa bank_mask:0xf", "row_bcast:31 row_mask:0xc bank_mask:0xf"]
    mf = [f"v_mfma_f32_16x16x32_bf16 v[132:135], v[124:127], v[{GW}:{GW + 3}], 0",
          f"v_mfma_f32_16x16x32_bf16 v[136:139], v[124:127], v[{GW + 8}:{GW + 11}], 0",
          f"v_mfma_f32_16x16x32_bf16 v[132:135], v[128:131], v[{GW + 4}:{GW + 7}], v[132:135]",
          f"v_mfma_f32_16x16x32_bf16 v[136:139], v[128:131], v[{GW + 12}:{GW + 15}], v[136:139]"]
    for k, m in enumerate(steps):
        A(f"v_add_f32_dpp v148, v148, v148 {m}")
        A(f"v_add_f32_dpp v149, v149, v149 {m}")
        if k == (0 if cfast else 1):
            if not cfast:
                A("s_waitcnt lgkmcnt(0)")
            stamp_at(8)
            A(mf[0])
            A(mf[1])
        if k == (1 if cfast else 2):
            A(mf[2])
            A(mf[3])
    A("s_mov_b32 exec_lo, 0\ns_mov_b32 exec_hi, 0x80000000")
    A(f"ds_write_b96 v23, v[148:150] offset:{L_H}")
    A("s_mov_b32 exec_lo, -1\ns_mov_b32 exec_hi, 0")
    A("v_cndmask_b32 v66, v132, v136, s[54:55]")
    A("s_mov_b64 exec, -1")
    A(f"ds_write_b32 v26, v66 offset:{L_B}")
    A("s_waitcnt lgkmcnt(0)")
    stamp_at(9)
    A("s_barrier")
    A(f"ds_read_b96 v[124:126], v24 offset:{L_H}")
    for i in range(8):
        A(f"ds_read_b32 v{128 + i}, v27 offset:{L_B + 256 * i}")
    A("s_waitcnt lgkmcnt(0)" if stamps else "s_waitcnt lgkmcnt(8)")
    stamp_at(10)
    x8 = ("quad_perm:[1,0,3,2]", "quad_perm:[2,3,0,1]", "row_half_mirror")
    A("v_fma_f32 v127, v126, s63, v124")
    A("v_add_f32 v124, v124, v124")
    A("s_waitcnt lgkmcnt(0)" if stamps else "s_waitcnt lgkmcnt(4)")
    A(f"v_add_f32_dpp v127, v127, v127 {x8[0]} {FULL}")
    A("v_pk_add_f32 v[128:129], v[128:129], v[130:131]")
    A("s_waitcnt lgkmcnt(0)")
    A(f"v_add_f32_dpp v127, v127, v127 {x8[1]} {FULL}")
    A("v_pk_add_f32 v[132:133], v[132:133], v[134:135]")
    A("v_pk_add_f32 v[128:129], v[128:129], v[132:133]")
    A(f"v_add_f32_dpp v127, v127, v127 {x8[2]} {FULL}")
    A("v_add_f32 v120, v128, v129")
    A("v_add_f32 v121, v128, v129")
    A("v_mul_f32 v127, 0x3b000000, v127")
    A("v_sub_f32 v126, v127, v126")
    A("v_permlane32_swap_b32 v120, v121")
    A("v_fma_f32 v124, v126, s63, -v124")
    A("v_fma_f32 v125, v126, v124, v125")
    A("v_fma_f32 v122, -v127, v121, v120")
    A("v_fma_f32 v121, -v127, v121, v120")
    A(f"v_add_f32_dpp v125, v125, v125 {x8[0]} {FULL}")
    A("v_mov_b32 v120, v122")
    A(f"v_add_f32_dpp v125, v125, v125 {x8[1]} {FULL}")
    A("v_permlane16_swap_b32 v120, v121")
    A(f"v_add_f32_dpp v125, v125, v125 {x8[2]} {FULL}")
    A("v_fma_f32 v125, v125, v67, v68")
    A("v_rsq_f32 v125, v125")
    A("v_mul_f32 v120, v120, v125")
    A("v_mul_f32 v121, v121, v125")
    A("v_mul_f32 v122, v120, v120")
    A("v_mul_f32 v121, v120, v121")
    A("v_fma_f32 v122, v122, v69, v70")
    A("v_mul_f32 v122, v122, v120")
    A("v_exp_f32 v122, v122")
    A("v_add_f32 v122, 1.0, v122")
    A("v_rcp_f32 v122, v122")
    A("v_mul_f32 v120, v121, v122")
    for r in range(16):
        op = "mul" if r < 4 else "fmac"
        A(f"v_{op}_f32_dpp v{124 + (r & 3)}, v120, v{DW + r} row_newbcast:{r} {FULL}")
    A("v_pk_add_f32 v[124:125], v[124:125], v[126:127]")
    A("v_add_f32 v124, v124, v125")
    store_quad(124, 22, fl=st3, addr2=21 if (dup is not None and dup3) else None)
    stamp_at(7)
    stamp_store()
    A("s_endpgm")
    A("L_final:")
    A("s_barrier")
    A("s_sub_u32 s15, s7, 14\ns_lshl_b32 s4, s6, 1\ns_add_u32 s15, s15, s4")
    A("v_and_b32 v16, 7, v0\nv_lshrrev_b32 v17, 3, v0\nv_lshlrev_b32 v17, 11, v17\nv_lshl_add_u32 v17, v16, 4, v17")
    A("v_and_b32 v22, 31, v0\ns_lshl_b32 s4, s15, 6\nv_lshl_add_u32 v18, v22, 1, s4")
    A("v_lshlrev_b32 v22, 2, v22")
    sigma(23, 24)
    A("v_lshl_add_u32 v23, v16, 2, v23\nv_lshl_add_u32 v19, v23, 1, s4")
    A(f"ds_read_u16_d16_hi v19, v19 offset:{L_X}")
    A("s_lshl_b32 s4, s3, 7\nv_lshl_add_u32 v23, v23, 2, s4")
    if dup is None:
        A(f"s_lshl_b32 s4, s3, 15\ns_add_u32 s4, s4, {WS_P3}")
        A("s_cmp_eq_u32 s3, 7")
        A(f"s_cselect_b32 s4, {WS_P2}, s4")
        A("s_lshl_b32 s5, s15, 7\ns_add_u32 s4, s4, s5")
        A("v_add_u32 v20, s4, v17\nv_add_u32 v21, 0x4000, v20")
    else:
        A("v_lshrrev_b32 v24, 5, v0\nv_lshlrev_b32 v24, 13, v24")
        mycopy("s8")
        A(f"s_lshl_b32 s4, s3, {16 if dup3 else 15}\ns_add_u32 s4, s4, {WS_P3}")
        A("s_cmp_eq_u32 s3, 7")
        A(f"s_cselect_b32 s4, {WS_P2}, s4")
        if dup3:
            A("s_add_u32 s4, s4, s8\ns_mov_b32 s9, 0x8000")
        else:
            A("s_cselect_b32 s8, s8, 0\ns_movk_i32 s9, 0x4000\ns_cselect_b32 s9, 0x8000, s9\ns_cselect_b32 s5, -1, 0\ns_add_u32 s4, s4, s8\nv_and_b32 v24, s5, v24")
        A("s_lshl_b32 s5, s15, 7\ns_add_u32 s4, s4, s5")
        A("v_add3_u32 v20, v17, v24, s4\nv_add_u32 v21, s9, v20")
    loads = [f"global_load_dwordx4 v[{120 + 4 * i}:{123 + 4 * i}], v{20 + i}, s[38:39] {ld3}" for i in range(2)]
    if dsleep is not None:
        A("s_cmp_eq_u32 s3, 7")
        A("s_cbranch_scc1 L_dgo")
        A("s_barrier")
        A(f"s_sleep {dsleep}")
        A("L_dgo:")
    poll("L_poll3", loads, range(120, 128), 16)
    if dsleep is not None:
        A("s_cmp_eq_u32 s3, 7")
        A("s_cbranch_scc0 L_dgo2")
        A("s_barrier")
        A("L_dgo2:")
    stamp_at(6)
    for e in range(4):
        A(f"v_add_f32 v{120 + e}, v{120 + e}, v{124 + e}")
    scatter4(120)
    A(f"v_add_f32_dpp v120, v120, v120 row_ror:8 {FULL}")
    A("s_cmp_eq_u32 s3, 7")
    A("s_cbranch_scc0 L_dnoh")
    A("s_waitcnt lgkmcnt(0)")
    A("v_add_f32 v120, v120, v19")
    rbf(120)
    A("L_dnoh:")
    A("s_mov_b32 exec_lo, 0x00ff00ff\ns_mov_b32 exec_hi, 0x00ff00ff")
    A(f"ds_write_b32 v23, v120 offset:{L_B}")
    A("s_mov_b64 exec, -1")
    A("s_cmp_eq_u32 s3, 0")
    A("s_waitcnt lgkmcnt(0)")
    A("s_barrier")
    A("s_cbranch_scc0 L_ddone")
    for i in range(8):
        A(f"ds_read_b32 v{120 + i}, v22 offset:{L_B + 128 * i}")
    A("s_waitcnt lgkmcnt(0)")
    for i in range(2):
        A(f"v_pk_add_f32 v[{120 + 2 * i}:{121 + 2 * i}], v[{120 + 2 * i}:{121 + 2 * i}], v[{124 + 2 * i}:{125 + 2 * i}]")
    A("v_pk_add_f32 v[120:121], v[120:121], v[122:123]")
    A("v_add_f32 v120, v120, v121")
    if perturb:
        import struct
        kind, val = perturb
        h = hex(struct.unpack("<I", struct.pack("<f", val))[0])
        if kind == "add": A(f"v_add_f32 v120, {h}, v120")
        if kind == "mul": A(f"v_mul_f32 v120, {h}, v120")
        if kind == "one":
            A("s_cmp_eq_u32 s15, 0\ns_cselect_b32 s4, 1, 0\ns_mov_b32 s5, 0\ns_mov_b64 exec, s[4:5]")
            A(f"v_add_f32 v120, {h}, v120\ns_mov_b64 exec, -1")
    A(f"v_mov_b32_dpp v121, v120 quad_perm:[1,0,3,2] {FULL}")
    A("v_cvt_pk_bf16_f32 v120, v120, v121")
    A("s_mov_b64 exec, 0x55555555")
    A("global_store_dword v18, v120, s[34:35]" + (" " + outfl if outfl else ""))
    A("L_ddone:")
    stamp_at(7)
    stamp_store()
    A("s_endpgm")

    for _ in range(pad3):
        A("s_nop 0")
    A("L_service:")
    A("s_setprio 3")
    A(f"v_mov_b32 v98, {L_F}\nv_mov_b32 v99, 0")
    A("ds_write_b32 v98, v99")
    A("ds_write_b32 v98, v99 offset:8")
    A("ds_write_b32 v98, v99 offset:12")
    A("ds_write_b32 v98, v99 offset:20")
    if not qearly:
        A("s_waitcnt lgkmcnt(0)")
        A("s_barrier")
    for i in range(4):
        A(f"v_mov_b32 v{100 + i}, -1")
    roles()
    p1slot("s4")
    A("v_add_u32 v104, s4, v9")
    A("s_cmp_eq_u32 s7, 0")
    A("s_waitcnt lgkmcnt(0)")
    if "svcoff" in xp:
        A("s_barrier\ns_branch L_svcbar" if qearly else "s_branch L_svcbar")
    A("s_cbranch_scc0 L_qcleared")
    A(f"s_lshl_b32 s10, s60, 13\nv_add_u32 v3, s10, v9\nv_add_u32 v8, 0x1000, v3")
    for i in range(8):
        A(f"global_store_dwordx4 v{3 if i < 4 else 8}, v[100:103], s[38:39] offset:{1024 * (i & 3)} sc1")
    A(f"s_lshl_b32 s10, s60, 7\ns_add_u32 s10, s10, {WS_F}\nv_add_u32 v3, s10, v9")
    A(f"s_lshl_b32 s10, s6, 7\ns_add_u32 s10, s10, {WS_G}\nv_add_u32 v8, s10, v9")
    A("s_mov_b64 exec, 0xff")
    A("global_store_dwordx4 v3, v[100:103], s[38:39] sc1")
    A("global_store_dwordx4 v8, v[100:103], s[38:39] sc1")
    if adapt or rankpre:
        A(f"global_store_dwordx4 v8, v[100:103], s[38:39] offset:{WS_R - WS_G - 4096 + 4096 - 0 if WS_R - WS_G < 4096 else 0} sc1" if False else f"v_add_u32 v8, {WS_R - WS_G}, v8\nglobal_store_dwordx4 v8, v[100:103], s[38:39] sc1")
    if dup == "auto" and vpos:
        A(f"v_add_u32 v8, {WS_V - WS_R}, v8\nglobal_store_dwordx4 v8, v[100:103], s[38:39] sc1")
    A("s_mov_b64 exec, -1")
    A("L_qcleared:")
    if qearly:
        A("s_barrier")
    nyoung = 0
    if "noclear" not in xp and sclr is None:
        A("global_store_dwordx4 v104, v[100:103], s[38:39] sc1")
        A("global_store_dwordx4 v104, v[100:103], s[38:39] offset:1024 sc1")
        nyoung += 2
        A("s_cmp_lt_u32 s7, 14")
        A("s_cbranch_scc0 L_noclr3")
        A(f"s_lshl_b32 s4, s15, 11\ns_add_u32 s4, s4, {WS_P3}\nv_add_u32 v105, s4, v9")
        A("global_store_dwordx4 v105, v[100:103], s[38:39] sc1")
        A("global_store_dwordx4 v105, v[100:103], s[38:39] offset:1024 sc1")
        A("L_noclr3:")
        A("s_cmp_ge_u32 s7, 16")
        A("s_cbranch_scc0 L_noclr2")
        A(f"s_lshl_b32 s4, s13, 11\ns_lshl_b32 s5, s14, 8\ns_add_u32 s4, s4, s5\ns_add_u32 s4, s4, {WS_P2}\nv_add_u32 v105, s4, v9")
        A("s_mov_b64 exec, 0xffff")
        A("global_store_dwordx4 v105, v[100:103], s[38:39] sc1")
        A("s_mov_b64 exec, -1")
        A("L_noclr2:")
    stamp_at(1)
    A("v_lshlrev_b32 v96, 5, v0")
    A("s_cmp_eq_u32 s7, 0")
    A("s_cbranch_scc0 L_noqflag")
    A("s_lshl_b32 s4, s60, 5\nv_mov_b32 v104, s4\nv_mov_b32 v105, 1")
    A(f"s_waitcnt vmcnt({4 if ('noclear' not in xp and sclr is None) else 0})")
    A("s_mov_b64 exec, 1")
    A("global_store_dword v104, v105, s[36:37] sc1")
    A("s_mov_b64 exec, -1")
    A("L_noqflag:")
    ldswait("L_waitwq", 12, 8)

    def firstlook():
        A("s_mov_b64 exec, 0xff")
        A("global_load_dword v97, v96, s[36:37] sc1")
        A("s_mov_b64 exec, -1")
    if qearly:
        firstlook()
    A(f"ds_read_b128 v[4:7], v9 offset:{L_X}")
    A("s_waitcnt lgkmcnt(0)")
    stamp_at(2)
    X = list(range(8, 16))
    X[1] = 3
    for i in range(4):
        A(f"v_lshlrev_b32 v{X[2 * i]}, 16, v{4 + i}")
        A(f"v_and_b32 v{X[2 * i + 1]}, 0xffff0000, v{4 + i}")
    ln_stats(X, 16, 17, 18, 19, 20, list(range(22, 30)))
    ln_apply(X, 16, 17, 18, list(range(22, 30)))
    for i in range(4):
        A(f"v_cvt_pk_bf16_f32 v{4 + i}, v{X[2 * i]}, v{X[2 * i + 1]}")
    A(f"ds_write_b128 v9, v[4:7] offset:{L_HN}")
    A(f"s_and_b32 s4, s7, {KS - 1}\ns_lshl_b32 s4, s4, {10 - KL}\nv_lshrrev_b32 v17, 4, v0\nv_lshl_add_u32 v16, v17, 4, s4")
    A("v_bfe_u32 v18, v0, 2, 2\nv_lshl_add_u32 v17, v17, 3, v18\nv_lshlrev_b32 v17, 7, v17\nv_and_b32 v18, 3, v0\nv_lshl_add_u32 v17, v18, 3, v17")
    A("s_waitcnt lgkmcnt(0)")
    NK = NQ // 4
    for k in range(NK):
        A(f"ds_read_b128 v[{32 + 4 * k}:{35 + 4 * k}], v16 offset:{L_HN + 64 * k}")
    stamp_at(3)
    if not qearly:
        firstlook()
    for k in range(NK):
        A("s_waitcnt lgkmcnt(0)")
        b = 64 + 16 * (k & 1)
        for tau in range(4):
            for t in range(2):
                r = b + 4 * tau + 2 * t
                A(f"ds_read_b64_tr_b16 v[{r}:{r + 1}], v17 offset:{L_W + 4096 * k + 512 * t + 32 * tau}")
        if k > 0:
            bp = 64 + 16 * ((k - 1) & 1)
            for tau in range(4):
                c = "0" if k == 1 else f"v[{112 + 4 * tau}:{115 + 4 * tau}]"
                A(f"v_mfma_f32_16x16x32_bf16 v[{112 + 4 * tau}:{115 + 4 * tau}], v[{28 + 4 * k}:{31 + 4 * k}], v[{bp + 4 * tau}:{bp + 4 * tau + 3}], {c}")
    A("s_waitcnt lgkmcnt(0)")
    for tau in range(4):
        A(f"v_mfma_f32_16x16x32_bf16 v[{112 + 4 * tau}:{115 + 4 * tau}], v[{28 + 4 * NK}:{31 + 4 * NK}], v[{80 + 4 * tau}:{83 + 4 * tau}], v[{112 + 4 * tau}:{115 + 4 * tau}]")
    A(f"s_lshl_b32 s4, s60, {11 + KL}\ns_and_b32 s5, s7, {KS - 1}\ns_lshl_b32 s5, s5, 11\ns_add_u32 s4, s4, s5\ns_lshr_b32 s5, s7, {KL}\ns_lshl_b32 s5, s5, 8\ns_add_u32 s4, s4, s5")
    A("v_lshl_add_u32 v17, v0, 2, s4")
    for tau in range(1, 4):
        A(f"v_mov_b32_dpp v112, v{112 + 4 * tau} quad_perm:[0,1,2,3] row_mask:{hex(1 << tau)} bank_mask:0xf")
    for i in (1, 2, 3):
        A(f"v_mov_b32_dpp v{112 + i}, v112 quad_perm:[{i},{i},{i},{i}] {FULL}")
    A("L_qdone:")
    A(f"s_lshl_b32 s4, s60, 5\ns_add_u32 s4, s4, s7\ns_lshl_b32 s4, s4, 2\ns_add_u32 s4, s4, {WS_F}\nv_mov_b32 v18, s4")
    A(f"s_lshl_b32 s4, s6, {11 + KL}\nv_add_u32 v19, s4, v9\nv_add_u32 v20, 0x1000, v19")
    A("s_getreg_b32 s62, hwreg(HW_REG_XCC_ID, 0, 4)\nv_mov_b32 v21, s62")
    A("s_lshl_b32 s4, 1, s60\ns_lshl_b32 s5, 1, s6\ns_or_b32 s4, s4, s5")
    if adapt:
        A(f"s_add_u32 s5, s7, {qrot}\ns_and_b32 s5, s5, 7\ns_lshl_b32 s5, 1, s5\ns_or_b32 s4, s4, s5")
    A("s_mov_b32 s5, 0")
    stamp_at(4)
    if "svc1" in xp: A("s_branch L_svcbar2")
    A("L_pollf:")
    A("s_waitcnt vmcnt(0) lgkmcnt(0)")
    A("v_cmp_ne_u32 vcc, 1, v97")
    A("s_and_b32 s57, vcc_lo, s4")
    A("s_cbranch_scc0 L_pollf_ok")
    A(f"s_add_u32 s5, s5, 1\ns_cmp_lt_u32 s5, {SPIN_MAX}\ns_cbranch_scc0 L_pollf_ok")
    A("s_sleep 8")
    A("s_mov_b64 exec, 0xff")
    A("global_load_dword v97, v96, s[36:37] sc1")
    A("s_mov_b64 exec, -1")
    A("s_branch L_pollf")
    A("L_pollf_ok:")
    if KS == 2:
        A("s_cmp_lt_u32 s7, 16")
        A("s_cbranch_scc0 L_noqpub")
    A("s_mov_b32 exec_lo, 0x11111111\ns_mov_b32 exec_hi, 0x11111111")
    A("global_store_dwordx4 v17, v[112:115], s[38:39] sc1")
    A("L_noqpub:")
    A("s_mov_b64 exec, 1")
    A("global_store_dword v18, v21, s[38:39] sc1")
    A("s_mov_b64 exec, -1")
    stamp_at(5)
    if "svc2" in xp: A("s_branch L_svcbar2")
    if warm:
        if warm == "one":
            A("s_cmp_eq_u32 s7, 1")
            A("s_cbranch_scc0 L_nowarm")
        A("s_getpc_b64 s[48:49]")
        A("L_pc:")
        A(f"s_sub_u32 s48, s48, L_pc-{NAME}_kernel\ns_subb_u32 s49, s49, 0")
        A(f"s_mov_b32 s4, L_codeend-{NAME}_kernel-16\nv_mov_b32 v2, v9\ns_mov_b32 s5, 0")
        A("L_warm:")
        A("v_min_u32 v3, s4, v2")
        A("global_load_dwordx4 v[128:131], v3, s[48:49]")
        A("v_add_u32 v2, 1024, v2\ns_add_u32 s5, s5, 1024\ns_cmp_lt_u32 s5, s4\ns_cbranch_scc1 L_warm")
        A("L_nowarm:")
    if adapt:
        A(f"s_and_b32 s4, s7, 7\ns_lshl_b32 s4, s4, 7\ns_add_u32 s4, s4, {WS_R}\nv_mov_b32 v26, s4\nv_mov_b32 v27, 1")
    ldswait("L_waitpos", 8)
    if adapt:
        A("s_mov_b64 exec, 1")
        A("global_atomic_add v28, v26, v27, s[38:39] sc0 sc1")
        A("s_mov_b64 exec, -1")
    poll("L_pollq", [f"global_load_dwordx4 v[{32 + 4 * i}:{35 + 4 * i}], v{19 + (i >> 2)}, s[38:39] offset:{1024 * (i & 3)} sc1" for i in range(2 * KS)],
         range(32, 32 + 8 * KS), 16, slp=qsleep)
    stamp_at(6)
    for e in range(8):
        A(f"v_add_f32 v{32 + e}, v{32 + e}, v{40 + e}")
        if KS == 4:
            A(f"v_add_f32 v{48 + e}, v{48 + e}, v{56 + e}")
    if KS == 4:
        for e in range(8):
            A(f"v_add_f32 v{32 + e}, v{32 + e}, v{48 + e}")
    for e in range(4):
        A(f"v_cvt_pk_bf16_f32 v{40 + e}, v{32 + 2 * e}, v{33 + 2 * e}")
    A("v_lshlrev_b32 v16, 3, v0")
    A(f"ds_write_b64 v16, v[40:41] offset:{L_Q}")
    A(f"ds_write_b64 v16, v[42:43] offset:{L_Q + 512}")
    if adapt:
        A("v_readfirstlane_b32 s4, v28")
        A("s_add_u32 s4, s4, 2")
        A("v_mov_b32 v99, s4")
    else:
        A("v_mov_b32 v99, 1")
    A("s_waitcnt lgkmcnt(0)")
    A("ds_write_b32 v98, v99")
    stamp_at(7)
    if "svc4" in xp: A("s_branch L_svcbar2")
    A("s_mov_b32 s5, 0")
    A("L_pollf2:")
    A("s_mov_b64 exec, 0xff")
    A("global_load_dword v97, v96, s[36:37] sc1")
    A("s_waitcnt vmcnt(0)")
    A("v_cmp_ne_u32 vcc, 1, v97")
    A("s_mov_b64 exec, -1")
    A("s_cbranch_vccz L_pollf2_ok")
    A(f"s_add_u32 s5, s5, 1\ns_cmp_lt_u32 s5, {SPIN_MAX}\ns_cbranch_scc1 L_pollf2")
    A("L_pollf2_ok:")
    stamp_at(8)
    A(f"v_add_u32 v19, {WS_F}, v9")
    poll("L_pollall", ["global_load_dwordx4 v[32:35], v19, s[38:39] sc1"], range(32, 36), 16, slp=16)
    stamp_at(9)
    A("v_xor_b32 v32, v32, v21\nv_xor_b32 v33, v33, v21\nv_xor_b32 v34, v34, v21\nv_xor_b32 v35, v35, v21")
    A("v_or_b32 v32, v32, v33\nv_or3_b32 v32, v32, v34, v35")
    A("v_cmp_ne_u32 vcc, 0, v32")
    A("s_lshl_b32 s4, s60, 3\ns_lshr_b64 s[4:5], vcc, s4\ns_and_b32 s4, s4, 0xff")
    A("s_cselect_b32 s4, 0, 1" if local and "far" not in xp else "s_mov_b32 s4, 0")
    A("L_svcend:")
    A("s_mov_b32 s63, s4")
    if dup == "auto":
        A(f"s_andn2_b32 s8, s7, 4\ns_lshl_b32 s9, s6, 5\ns_add_u32 s8, s8, s9\ns_lshl_b32 s8, s8, 11\ns_and_b32 s9, s7, 4\ns_lshl_b32 s9, s9, 8")
        A(f"s_add_u32 s8, s8, s9\ns_add_u32 s8, s8, {WS_P1}\ns_add_u32 s12, s38, s8\ns_addc_u32 s13, s39, 0\ns_mov_b32 s10, 0")
        A("s_waitcnt lgkmcnt(0)")
        for t in range(ntr):
            A("s_mov_b32 s8, 0\ns_mov_b32 s9, 0")
            o0, o1 = 128 * t, 128 * t + 8192
            A(f"s_load_dword s9, s[12:13], {o1}\ns_load_dword s8, s[12:13], {o0}" if t & 1 else f"s_load_dword s8, s[12:13], {o0}\ns_load_dword s9, s[12:13], {o1}")
            A("s_waitcnt lgkmcnt(1)")
            A("s_sub_u32 s11, s9, s8")
            A("s_waitcnt lgkmcnt(0)")
            A("s_add_u32 s10, s10, s11")
        if vpos:
            A("s_cmp_eq_u32 s63, 1")
            A("s_cbranch_scc0 L_novote")
            A(f"s_lshl_b32 s8, s6, 7\ns_add_u32 s8, s8, {WS_V}\nv_and_b32 v16, 31, v0\nv_lshl_add_u32 v16, v16, 2, s8")
            A("s_lshl_b32 s9, s7, 2\ns_add_u32 s8, s8, s9\nv_mov_b32 v17, s8\ns_add_u32 s10, s10, 16\nv_mov_b32 v18, s10")
            A("s_mov_b64 exec, 1\nglobal_store_dword v17, v18, s[38:39]\ns_mov_b64 exec, -1")
            ldswait("L_waitv", 20)
            A("global_load_dword v18, v16, s[38:39] sc1")
            A("s_waitcnt vmcnt(0)")
            A("v_cmp_lt_i32 vcc, 16, v18")
            A("s_bcnt1_i32_b64 s10, vcc")
            A("v_cmp_gt_u32 vcc, 16, v18")
            A("s_bcnt1_i32_b64 s8, vcc")
            A("s_sub_u32 s10, s10, s8")
            A("L_novote:")
        A("s_cmp_lt_i32 s10, 0\ns_cselect_b32 s10, 0x2000, 0\nv_mov_b32 v99, s10")
        A("ds_write_b32 v98, v99 offset:16")
        roles()
    A("v_mov_b32 v99, s63")
    A("ds_write_b32 v98, v99 offset:4")
    A(f"s_lshl_b32 s4, s6, 7\ns_add_u32 s4, s4, {WS_G}\nv_and_b32 v16, 31, v0\nv_lshl_add_u32 v16, v16, 2, s4")
    A("s_lshl_b32 s5, s7, 2\ns_add_u32 s4, s4, s5\nv_mov_b32 v17, s4\nv_mov_b32 v18, 0")
    A(f"s_and_b32 s4, s7, {0 if rankpre else 15}\ns_mul_i32 s4, s4, {32 * 3584}\ns_mul_i32 s5, s6, 448\ns_andn2_b32 s5, s5, 127\ns_add_u32 s4, s4, s5")
    A("v_lshrrev_b32 v21, 5, v0\nv_mul_u32_u24 v21, 3584, v21\nv_and_b32 v22, 31, v0\nv_lshl_add_u32 v21, v22, 4, v21\nv_add_u32 v21, s4, v21")
    if rankpre:
        A(f"s_lshl_b32 s4, s6, 7\ns_add_u32 s4, s4, {WS_R}\nv_mov_b32 v26, s4\nv_mov_b32 v27, 1")
        A("s_lshl_b32 s4, s7, 1\ns_sub_u32 s4, s4, 1\nv_mov_b32 v28, 0")
    A("v_lshrrev_b32 v22, 1, v0\nv_mul_u32_u24 v22, 3584, v22\nv_and_b32 v23, 1, v0\nv_lshl_add_u32 v22, v23, 4, v22\ns_lshl_b32 s4, s15, 5\nv_add_u32 v22, s4, v22")
    A("s_lshl_b32 s4, s15, 14\nv_add_u32 v23, s4, v9")
    A("s_waitcnt lgkmcnt(0)")
    A("s_barrier")
    assert gate and dsplit

    def wloop(label, n, lds, body):
        A(f"s_mov_b32 s5, {n}")
        if lds is not None:
            A(f"s_mov_b32 m0, {lds}")
        A(f"{label}:")
        body()
        A(f"s_sub_u32 s5, s5, 1\ns_cmp_lg_u32 s5, 0\ns_cbranch_scc1 {label}")

    def b_pre():
        A("global_load_dwordx4 v[32:35], v21, s[28:29]")
        A("global_load_dwordx4 v[32:35], v21, s[30:31]")
        A("v_add_u32 v21, 7168, v21")

    def b_down():
        A(f"global_load_lds_dwordx4 v23, s[32:33]{wntf}")
        A("v_add_u32 v23, 1024, v23\ns_add_u32 m0, m0, 1024")

    def b_gu():
        A("global_load_lds_dwordx4 v22, s[28:29]")
        A("s_add_u32 m0, m0, 16384")
        A("global_load_lds_dwordx4 v22, s[30:31]")
        A(f"v_add_u32 v22, {32 * 3584}, v22\ns_sub_u32 m0, m0, {16384 - 1024}")

    def only(cond, label, body):
        A(cond)
        A(f"s_cbranch_scc0 {label}")
        body()
        A(f"{label}:")
    after_pre = 0
    for k, step in enumerate(pm):
        if step in "SgG" and not gsync:
            continue
        if step in "PDU" and "now" in xp:
            continue
        if step == "D" and dlate:
            continue
        if step == "S":
            def sig():
                A("s_mov_b64 exec, 1\nglobal_store_dword v17, v18, s[38:39]")
                if rankpre:
                    only("s_cmp_lt_u32 s7, 16", "L_norank", lambda: A("global_atomic_add v28, v26, v27, s[38:39] sc0 sc1"))
                A("s_mov_b64 exec, -1")
            only("s_cmp_eq_u32 s63, 1", "L_nosig", sig)
        elif step in "12":
            A("s_barrier")

        elif step == "g":
            only("s_cmp_eq_u32 s63, 1", f"L_nog{k}", lambda: A("global_load_dword v19, v16, s[38:39] sc1"))
        elif step == "G":
            def gwait():
                A("s_mov_b32 s5, 0")
                A("L_pollg:")
                A("s_waitcnt vmcnt(0)")
                A("v_cmp_eq_u32 vcc, -1, v19")
                if gmiss:
                    A(f"s_bcnt1_i32_b32 s4, vcc_lo\ns_cmp_le_u32 s4, {gmiss}\ns_cbranch_scc1 L_gok")
                else:
                    A("s_cbranch_vccz L_gok")
                A(f"s_add_u32 s5, s5, 1\ns_cmp_lt_u32 s5, {SPIN_MAX}\ns_cbranch_scc0 L_gok")
                A(f"s_sleep {gsleep}")
                A("global_load_dword v19, v16, s[38:39] sc1")
                A("s_branch L_pollg")
            only("s_cmp_eq_u32 s63, 1", "L_gok", gwait)
            stamp_at(10)
        elif step == "P":
            if pref and not rankpre:
                only("s_cmp_lt_u32 s7, 16", "L_nopre", lambda: wloop("L_wpre", 16, None, b_pre))
            if pref and rankpre:
                def pre():
                    A("s_waitcnt vmcnt(0)")
                    A("v_readfirstlane_b32 s8, v28")
                    A("s_add_u32 s8, s8, 1\ns_mul_i32 s9, s8, 3\ns_lshl_b32 s4, s8, 1\ns_add_u32 s4, s4, 8")
                    A("s_cmp_lt_u32 s8, 8\ns_cselect_b32 s9, s9, s4\ns_cselect_b32 s5, 24, 16")
                    A("s_cmp_lt_u32 s8, 12\ns_cselect_b32 s5, s5, 0")
                    A("s_lshl_b32 s4, s7, 1\ns_cmp_eq_u32 s63, 1\ns_cselect_b32 s9, s9, s4\ns_cselect_b32 s5, s5, 16")
                    A(f"s_mul_i32 s9, s9, {16 * 3584}\nv_add_u32 v21, s9, v21")
                    A("s_cmp_eq_u32 s5, 0\ns_cbranch_scc1 L_nopre")
                    A("L_wpre:")
                    b_pre()
                    A("s_sub_u32 s5, s5, 1\ns_cmp_lg_u32 s5, 0\ns_cbranch_scc1 L_wpre")
                    A("s_waitcnt vmcnt(40)")
                only("s_cmp_lt_u32 s7, 16", "L_nopre", pre)
            after_pre = 0
        elif step == "D":
            only("s_cmp_lt_u32 s7, 14", "L_nodown", lambda: wloop("L_wdown", 16, L_W + 32768, b_down))
            after_pre = 16
        elif step == "w":
            A(f"s_waitcnt vmcnt({after_pre})")
            stamp_at(11)
        elif step == "z":
            A(f"s_sleep {cdelay}")
        elif step == "U":
            only("s_cmp_lt_u32 s7, 14", "L_nogu", lambda: wloop("L_wgu", 16, L_W, b_gu))
    only("s_cmp_lt_u32 s7, 14", "L_wdone", lambda: A("s_barrier" if dlate else "s_waitcnt vmcnt(32)\ns_barrier"))
    A("s_waitcnt vmcnt(0)")
    stamp_at(12)
    if stamps:
        A("s_waitcnt lgkmcnt(0)")
        for i in range(16):
            A(f"v_writelane_b32 v4, s{64 + 2 * i}, {i}")
        A(f"v_lshlrev_b32 v5, 2, v0\nds_write_b32 v5, v4 offset:{L_G}\ns_waitcnt lgkmcnt(0)")
    A("s_barrier")
    A("s_endpgm")
    A("L_svcbar:")
    A("L_svcbar2:")
    A("v_mov_b32 v99, 1")
    A("ds_write_b32 v98, v99")
    A("s_mov_b32 s4, 0")
    A("s_branch L_svcend")
    A("L_end:")
    A("s_endpgm")
    A("L_codeend:")

    if jitter is not None:
        import random
        rnd = random.Random(jitter)
        C2 = []
        k = 0
        for blk in C:
            for ln in blk.split("\n"):
                if ln.startswith(("s_barrier", "global_store", "global_atomic")) and rnd.random() < 0.7:
                    k += 1
                    C2.append(f"s_cselect_b32 s91, 1, 0\ns_mul_i32 s90, s2, {rnd.randrange(3, 99, 2)}\ns_add_u32 s90, s90, s3\ns_mul_i32 s90, s90, {rnd.randrange(1001, 99999, 2)}")
                    C2.append(f"s_lshr_b32 s90, s90, 5\ns_and_b32 s90, s90, {rnd.choice((3, 7, 15, 63))}\ns_cmp_eq_u32 s90, 1\ns_cbranch_scc0 L_jit{k}\ns_sleep {rnd.choice((2, 10, 40, 120))}\nL_jit{k}:\ns_cmp_eq_u32 s91, 1")
                C2.append(ln)
        C = C2
    body = fix(C)
    out = HEADER
    out += f"; @launch grid=(256,1,1) block=(576,1,1) lds={LDS_BYTES}\n"
    out += '.amdgcn_target "amdgcn-amd-amdhsa--gfx950"\n.text\n'
    out += f".globl {NAME}_kernel\n.p2align 8\n.type {NAME}_kernel,@function\n{NAME}_kernel:\n"
    out += "\n".join(("" if l.endswith(":") else "    ") + l for l in body) + "\n"
    out += f""".section .rodata,"a"
.p2align 6
.amdhsa_kernel {NAME}_kernel
  .amdhsa_next_free_vgpr 168
  .amdhsa_next_free_sgpr 96
  .amdhsa_accum_offset 168
  .amdhsa_group_segment_fixed_size 0
  .amdhsa_kernarg_size 96
  .amdhsa_user_sgpr_count 2
  .amdhsa_user_sgpr_kernarg_segment_ptr 1
  .amdhsa_system_sgpr_workgroup_id_x 1
  .amdhsa_float_denorm_mode_32 3
.end_amdhsa_kernel
"""
    return out


if __name__ == "__main__":
    cfg = eval("dict(" + (sys.argv[2] if len(sys.argv) > 2 else "") + ")")
    open(sys.argv[1], "w").write(gen(**cfg))
```

```python
import sys
from asmlib import fix, VM

NAME = "sequential_preLN__gqa_block_cached__glu_gated_geglu__decode"
HEADER = open("cdna_kernels/" + NAME + ".s.ref").read().split("; Override launch")[0]

WS_Q = 0x0
WS_F = 0x10000
WS_G = 0x11000
WS_R = 0x12000
WS_V = 0x13000
WS_P1 = 0x20000
P1_STRIDE = 2048
WS_P2 = 0xB0000
WS_P3 = 0xC0000
WS_STAMP = 0x200000
L_Q = 0
L_X = 1024
L_M = 2048
L_L = 2176
L_F = 2304
L_B = 2560
L_H = 4608
L_HN = 6656
L_G = 7680
L_W = 8704
L_K = L_W + 49152
KRING = 3
VRING = 5
LDS_BYTES = L_K + 8 * KRING * 4096

LOG2E = 0x3FB8AA3B
SCALE = 0x3DB504F3
FULL = "row_mask:0xf bank_mask:0xf"
SPIN_MAX = 200000


def gen(D=3, D2=3, nt=True, inter="wgtile", stamps=False, wnt=True, warm='one', sleep=1, qsleep=4,
        xp=(), masked=True, qrot=4, local=True, qpos=18, pref=True, fold=True, bpos=None, bwait=False, ppos=None, kfirst=True, wb=False, pad1=0, pad2=0, pad3=0, gsync=True, gsleep=2, cdelay=0, opos=None, enc=None, dsplit=True, early=False, gate=True, sclr='after', qearly=True, lpos='b1b', order=None, pm='Sg2GPU', dsleep=None, cfast=False, adapt=None, d2from=32, D3=None, d3from=56, split=False, dup='auto', dup3=True, rankpre=True, gmiss=20, ntr=2, vpos=44, dlate=True, outfl='', jitter=None, p1plain=False, clrpos=3, wqfirst=False, dseq=None, NB=3, bar1c=True, lp=('c', 'c', 'c', 'c'), dlast=False, csd=False, c4=True, b4=False, bprep=True):
    C = []
    A = C.append
    if dlast:
        pm = pm + "D"
    ntf = " nt" if nt else ""
    wntf = " nt" if wnt else ""
    D2 = D if D2 is None else D2
    hmap = "xcd"; KS = 4; ld2 = ld3 = st2 = st3 = "sc1"; peel = False; late4 = True; cpos = ("end",) * 6; fastln = True; perturb = None
    bpos = (D + max(3, clrpos) if kfirst else D) if bpos is None else bpos
    KL = KS.bit_length() - 1
    NQ = 64 // KS
    QR = 2048 * KS

    def stamp_at(k):
        if stamps:
            A(f"s_memrealtime s[{64 + 2 * k}:{65 + 2 * k}]")

    def stamp_store():
        if not stamps:
            return
        A("s_waitcnt lgkmcnt(0)")
        if stamps == "dbg":
            lab = f"L_dbg{len(C)}"
            A("s_and_b32 s4, s3, 7\ns_cmp_eq_u32 s4, 0")
            A(f"s_cbranch_scc0 {lab}")
            A("s_not_b32 s64, s64")
            A("s_cmp_eq_u32 s3, 8")
            sel0 = (0, 1, 2, 4, 5, 6, 7)
            sel8 = (2, 4, 5, 6, 7, 8, 9)
            A("s_mov_b64 exec, -1")
            for i in range(7):
                A(f"s_cselect_b32 s4, s{64 + 2 * sel8[i]}, s{64 + 2 * sel0[i]}")
                A(f"v_writelane_b32 v4, s4, {i}")
            A("s_lshl_b32 s4, s3, 2\ns_add_u32 s4, s4, 4\nv_lshl_add_u32 v1, v0, 2, s4")
            A("s_mov_b64 exec, 0x7f")
            A("global_atomic_umax v1, v4, s[36:37] sc1")
            A(f"{lab}:")
            return
        lab = f"L_st{len(C)}"
        A(f"s_cmp_eq_u32 s3, 1\ns_cbranch_scc0 {lab}")
        A(f"s_mov_b64 exec, 0xffff\nv_lshlrev_b32 v5, 2, v0\nds_read_b32 v4, v5 offset:{L_G}")
        A(f"s_lshl_b32 s4, s2, 4\ns_add_u32 s4, s4, 8\ns_lshl_b32 s4, s4, 6\ns_add_u32 s4, s4, {WS_STAMP}\nv_add_u32 v5, s4, v5")
        A("s_waitcnt lgkmcnt(0)\nglobal_store_dword v5, v4, s[38:39]\ns_nop 1")
        A(f"{lab}:")
        A("s_mov_b64 exec, 1")
        A("s_lshl_b32 s4, s2, 4\ns_add_u32 s4, s4, s3\ns_lshl_b32 s4, s4, 6")
        A(f"s_add_u32 s4, s4, {WS_STAMP}")
        A("v_mov_b32 v1, s4")
        A("s_getreg_b32 s94, hwreg(HW_REG_XCC_ID)")
        A("s_lshl_b32 s92, s62, 16\ns_add_u32 s92, s92, s59\ns_lshl_b32 s4, s49, 11\ns_add_u32 s92, s92, s4")
        for q in range(4):
            for i in range(4):
                A(f"v_mov_b32 v{4 + i}, s{64 + 2 * (4 * q + i)}")
            A(f"global_store_dwordx4 v1, v[4:7], s[38:39] offset:{16 * q}")
            A("s_nop 1")

    def rowsum(a, op="add"):
        for s in (8, 4, 2, 1):
            A(f"v_{op}_f32_dpp v{a}, v{a}, v{a} row_ror:{s} {FULL}")

    def xrow(a, t, op="add"):
        A(f"v_mov_b32 v{t}, v{a}")
        A(f"v_permlane16_swap_b32 v{a}, v{t}")
        A(f"v_{op}_f32 v{a}, v{a}, v{t}")
        A(f"v_mov_b32 v{t}, v{a}")
        A(f"v_permlane32_swap_b32 v{a}, v{t}")
        A(f"v_{op}_f32 v{a}, v{a}, v{t}")

    def scatter4(r):
        A(f"v_permlane32_swap_b32 v{r}, v{r + 1}\nv_permlane32_swap_b32 v{r + 2}, v{r + 3}")
        A(f"v_add_f32 v{r}, v{r}, v{r + 1}\nv_add_f32 v{r + 2}, v{r + 2}, v{r + 3}")
        A(f"v_permlane16_swap_b32 v{r}, v{r + 2}")
        A(f"v_add_f32 v{r}, v{r}, v{r + 2}")

    def sigma(dst, t):
        A(f"v_bfe_u32 v{dst}, v0, 4, 1\nv_lshrrev_b32 v{t}, 5, v0\nv_lshl_add_u32 v{dst}, v{dst}, 1, v{t}")

    def rbf(a):
        A(f"v_cvt_pk_bf16_f32 v{a}, v{a}, v{a}")
        A(f"v_lshlrev_b32 v{a}, 16, v{a}")

    def ln_stats(vals, mean, den, rden, t0, t1, tmp):
        A(f"v_add_f32 v{t0}, v{vals[0]}, v{vals[1]}")
        A(f"v_add_f32 v{t1}, v{vals[2]}, v{vals[3]}")
        A(f"v_add_f32 v{mean}, v{vals[4]}, v{vals[5]}")
        A(f"v_add_f32 v{den}, v{vals[6]}, v{vals[7]}")
        A(f"v_add_f32 v{t0}, v{t0}, v{t1}")
        A(f"v_add_f32 v{mean}, v{mean}, v{den}")
        A(f"v_add_f32 v{mean}, v{mean}, v{t0}")
        rowsum(mean)
        xrow(mean, t0)
        A(f"v_mul_f32 v{mean}, 0x3b000000, v{mean}")
        for i in range(8):
            A(f"v_sub_f32 v{tmp[i]}, v{vals[i]}, v{mean}")
        A(f"v_mul_f32 v{den}, v{tmp[0]}, v{tmp[0]}")
        A(f"v_mul_f32 v{t1}, v{tmp[1]}, v{tmp[1]}")
        for i in range(2, 8, 2):
            A(f"v_fmac_f32 v{den}, v{tmp[i]}, v{tmp[i]}")
            A(f"v_fmac_f32 v{t1}, v{tmp[i + 1]}, v{tmp[i + 1]}")
        A(f"v_add_f32 v{den}, v{den}, v{t1}")
        rowsum(den)
        xrow(den, t0)
        A(f"v_mul_f32 v{den}, 0x3b000000, v{den}")
        A(f"v_cvt_pk_bf16_f32 v{t0}, v{mean}, v{den}")
        A(f"v_lshlrev_b32 v{mean}, 16, v{t0}")
        A(f"v_and_b32 v{den}, 0xffff0000, v{t0}")
        A(f"v_add_f32 v{den}, 0x3727c5ac, v{den}")
        rbf(den)
        A(f"v_sqrt_f32 v{t0}, v{den}")
        A(f"v_rsq_f32 v{t1}, v{den}")
        A(f"v_fma_f32 v{den}, -v{t0}, v{t0}, v{den}")
        A(f"v_mul_f32 v{t1}, 0.5, v{t1}")
        A(f"v_fma_f32 v{den}, v{den}, v{t1}, v{t0}")
        rbf(den)
        A(f"v_rcp_f32 v{rden}, v{den}")

    def ln_apply(xs, mean, den, rden, ts):
        for x in xs:
            A(f"v_sub_f32 v{x}, v{x}, v{mean}")
        for x in xs:
            A(f"v_cvt_pk_bf16_f32 v{x}, v{x}, v{x}")
        for x in xs:
            A(f"v_lshlrev_b32 v{x}, 16, v{x}")
        for x, t in zip(xs, ts):
            A(f"v_mul_f32 v{t}, v{x}, v{rden}")
        for x, t in zip(xs, ts):
            A(f"v_fma_f32 v{x}, -v{t}, v{den}, v{x}")
        for x, t in zip(xs, ts):
            A(f"v_fma_f32 v{x}, v{x}, v{rden}, v{t}")

    def ln2():
        A("v_mov_b32 v133, v132")
        for i in range(4):
            A(f"v_pk_add_f32 v[{124 + 2 * i}:{125 + 2 * i}], v[{124 + 2 * i}:{125 + 2 * i}], v[132:133] neg_lo:[0,1] neg_hi:[0,1]")
        A("v_pk_add_f32 v[134:135], v[124:125], v[126:127]")
        A("v_pk_mul_f32 v[136:137], v[124:125], v[124:125]")
        A("v_pk_add_f32 v[138:139], v[128:129], v[130:131]")
        A("v_pk_fma_f32 v[136:137], v[126:127], v[126:127], v[136:137]")
        A("v_pk_add_f32 v[134:135], v[134:135], v[138:139]")
        A("v_pk_fma_f32 v[136:137], v[128:129], v[128:129], v[136:137]")
        A("v_add_f32 v16, v134, v135")
        A("v_pk_fma_f32 v[136:137], v[130:131], v[130:131], v[136:137]")
        A("v_add_f32 v17, v136, v137")
        for m in ("row_shr:1", "row_shr:2", "row_shr:4", "row_shr:8"):
            A(f"v_add_f32_dpp v16, v16, v16 {m} {FULL} bound_ctrl:0")
            A(f"v_add_f32_dpp v17, v17, v17 {m} {FULL} bound_ctrl:0")
        for m in ("row_bcast:15 row_mask:0xa", "row_bcast:31 row_mask:0xc"):
            A(f"v_add_f32_dpp v16, v16, v16 {m} bank_mask:0xf")
            A(f"v_add_f32_dpp v17, v17, v17 {m} bank_mask:0xf")
        A("v_readlane_b32 s4, v16, 63")
        A("v_readlane_b32 s5, v17, 63")
        A("v_mov_b32 v18, 0x3b000000")
        A("v_mul_f32 v16, s4, v18")
        A("v_mul_f32 v17, s5, v18")
        A("v_fma_f32 v17, -v16, v16, v17")
        A("v_add_f32 v16, v16, v132")
        A("v_max_f32 v17, 0, v17")
        A("v_cvt_pk_bf16_f32 v18, v16, v17")
        A("v_and_b32 v17, 0xffff0000, v18")
        A("v_lshlrev_b32 v16, 16, v18")
        A("v_add_f32 v17, 0x3727c5ac, v17")
        A("v_sub_f32 v120, v120, v16")
        A("v_cvt_pk_bf16_f32 v18, v120, v17")
        A("v_and_b32 v17, 0xffff0000, v18")
        A("v_sqrt_f32 v17, v17")
        A("v_lshlrev_b32 v120, 16, v18")
        rbf(17)
        A("v_rcp_f32 v18, v17")
        A("v_mul_f32 v19, v120, v18")
        A("v_fma_f32 v120, -v19, v17, v120")
        A("v_fma_f32 v120, v120, v18, v19")

    def poll(label, loads, regs, t, slp=None, between=None):
        slp = sleep if slp is None else slp
        A("s_mov_b32 s59, 0")
        if between:
            for l in loads:
                A(l)
            between()
            A(f"s_branch {label}_chk")
        A(f"{label}:")
        for l in loads:
            A(l)
        if between:
            A(f"{label}_chk:")
        A("s_waitcnt vmcnt(0)")
        regs = list(regs)
        if len(regs) == 1:
            t = regs[0]
            rest = []
        elif len(regs) % 2 == 0:
            A(f"v_max_u32 v{t}, v{regs[0]}, v{regs[1]}")
            rest = regs[2:]
        else:
            A(f"v_max3_u32 v{t}, v{regs[0]}, v{regs[1]}, v{regs[2]}")
            rest = regs[3:]
        for i in range(0, len(rest), 2):
            A(f"v_max3_u32 v{t}, v{t}, v{rest[i]}, v{rest[i + 1]}")
        A(f"v_cmp_eq_u32 vcc, -1, v{t}")
        A(f"s_branch {label}_ok" if ("svc3" in xp and label in ("L_pollq", "L_pollall")) else f"s_cbranch_vccz {label}_ok")
        A("s_add_u32 s59, s59, 1")
        A(f"s_cmp_lt_u32 s59, {SPIN_MAX}")
        A(f"s_cbranch_scc0 {label}_ok")
        if masked:
            A("s_mov_b64 exec, vcc")
        if slp:
            A(f"s_sleep {slp}")
        A(f"s_branch {label}")
        A(f"{label}_ok:")
        if masked:
            A("s_mov_b64 exec, -1")

    def ldswait(label, off, val=None):
        A(f"v_mov_b32 v24, {L_F}\ns_mov_b32 s5, 0")
        A(f"{label}:")
        A(f"ds_read_b32 v25, v24 offset:{off}")
        A("s_waitcnt lgkmcnt(0)")
        A("v_cmp_ne_u32 vcc, 0, v25" if val is None else f"v_cmp_eq_u32 vcc, {val}, v25")
        A(f"s_cbranch_vccnz {label}_ok")
        A(f"s_add_u32 s5, s5, 1\ns_cmp_lt_u32 s5, {SPIN_MAX * 64}\ns_cbranch_scc0 {label}_ok")
        A("s_sleep 1")
        A(f"s_branch {label}")
        A(f"{label}_ok:")

    def store_quad(val, addr, lo="0x11111111", hi="0x11111111", fl="sc1", addr2=None):
        for i in (1, 2, 3):
            A(f"v_mov_b32_dpp v{val + i}, v{val} quad_perm:[{i},{i},{i},{i}] {FULL}")
        A(f"s_mov_b32 exec_lo, {lo}\ns_mov_b32 exec_hi, {hi}")
        A(f"global_store_dwordx4 v{addr}, v[{val}:{val + 3}], s[38:39] {fl}")
        if addr2 is not None:
            A(f"global_store_dwordx4 v{addr2}, v[{val}:{val + 3}], s[38:39] {fl}")
        A("s_mov_b64 exec, -1")

    def roles():
        brot = 0 if local else 4
        A(f"s_add_u32 s61, s6, {brot}\ns_and_b32 s61, s61, 7")
        A("s_bfe_u32 s13, s7, 0x10003\ns_lshl_b32 s4, s61, 1\ns_add_u32 s13, s13, s4")
        A("s_and_b32 s14, s7, 7")
        A("s_mul_i32 s15, s6, 14\ns_add_u32 s15, s15, s7")

    def rowoff(dst, row, tmp, on=True):
        if dup is None or not on:
            A(f"s_lshl_b32 {dst}, {row}, 11")
        else:
            A(f"s_lshr_b32 {tmp}, {row}, 2\ns_lshl_b32 {tmp}, {tmp}, 14\ns_and_b32 {dst}, {row}, 3\ns_lshl_b32 {dst}, {dst}, 11\ns_add_u32 {dst}, {dst}, {tmp}")

    def mycopy(dst):
        if dup == "auto":
            A(f"s_mov_b32 {dst}, s49")
        else:
            A(f"s_lshr_b32 {dst}, s6, 2\ns_xor_b32 {dst}, {dst}, {dup}\ns_lshl_b32 {dst}, {dst}, 13")

    def p1slot(dst):
        A(f"s_lshl_b32 {dst}, s6, 5\ns_add_u32 {dst}, {dst}, s7\ns_mul_i32 {dst}, {dst}, {P1_STRIDE}\ns_add_u32 {dst}, {dst}, {WS_P1}")

    stamp_at(0)
    A("s_load_dwordx16 s[16:31], s[0:1], 0")
    A("s_load_dwordx8 s[32:39], s[0:1], 64")
    A("s_cmp_ge_u32 s2, 256")
    A("s_cbranch_scc1 L_end")
    A("v_lshrrev_b32 v1, 6, v0")
    A("v_and_b32 v0, 63, v0")
    A("v_readfirstlane_b32 s3, v1")
    A("s_and_b32 s6, s2, 7")
    A("s_lshr_b32 s7, s2, 3")
    A(f"s_add_u32 s60, s6, {qrot}\ns_and_b32 s60, s60, 7")
    A("v_lshlrev_b32 v9, 4, v0")
    A("s_cmp_eq_u32 s3, 8")
    A("s_cbranch_scc1 L_service")
    def wqaddr():
        A("v_lshrrev_b32 v10, 3, v0\nv_and_b32 v11, 7, v0\nv_lshlrev_b32 v10, 13, v10\nv_lshl_add_u32 v10, v11, 4, v10")
        A("s_and_b32 s4, s7, 3\ns_lshl_b32 s4, s4, 3\ns_add_u32 s4, s4, s3\ns_lshl_b32 s4, s4, 7\ns_add_u32 s4, s4, s60\ns_lshl_b32 s4, s4, 3")
        A("s_lshr_b32 s5, s7, 2\ns_add_u32 s4, s4, s5\ns_lshl_b32 s4, s4, 7")
        A("v_add_u32 v10, s4, v10\nv_add_u32 v11, 0x10000, v10")
        A(f"s_lshl_b32 s57, s3, 11\ns_add_u32 m0, s57, {L_W}")

    def clears(b=12):
        n0 = len(C)
        clears0()
        if b != 12:
            for i in range(n0, len(C)):
                for r in (17, 16, 15, 14, 13, 12):
                    C[i] = C[i].replace(f"v{r},", f"v{r - 12 + b},").replace(f"v{r}\n", f"v{r - 12 + b}\n")
                    if C[i].endswith(f"v{r}"):
                        C[i] = C[i][:-len(f"v{r}")] + f"v{r - 12 + b}"

    def clears0():
        for i in range(4):
            A(f"v_mov_b32 v{12 + i}, -1")
        roles()
        p1slot("s4")
        rowoff("s5", "s15", "s8", dup3)
        A(f"s_add_u32 s5, s5, {WS_P3 - 256}")
        rowoff("s8", "s13", "s9")
        A(f"s_lshl_b32 s9, s14, 8\ns_add_u32 s8, s8, s9\ns_add_u32 s8, s8, {WS_P2 - 256}")
        A("s_cmp_ge_u32 s7, 16\ns_cselect_b32 s5, s8, s5\ns_cselect_b32 s8, 1, 8\ns_cselect_b32 s9, 32, 14")
        A("s_cmp_lt_u32 s7, s9\ns_cselect_b32 s8, s8, 0\ns_cmp_lt_u32 s3, s8\ns_cselect_b32 s8, -1, 0xffff")
        if dup is not None:
            A("s_cselect_b32 s9, 0xffff, 0")
            if not dup3:
                A("s_cmp_ge_u32 s7, 16\ns_cselect_b32 s9, s9, 0")
        A("v_mov_b32 v16, s4\nv_mov_b32 v17, s5\nv_cmp_gt_u32 vcc, 16, v0\ns_lshl_b32 s4, s3, 8")
        A("v_cndmask_b32 v16, v17, v16, vcc\nv_add3_u32 v16, v16, v9, s4")
        if dup is not None:
            A(f"v_lshrrev_b32 v17, 5, v0\nv_mul_u32_u24 v17, {8192 - 256}, v17\nv_add_u32 v16, v16, v17")

    def clearstore(b=12):
        if p1plain:
            A("s_mov_b64 exec, 0xffff")
            if p1plain != "none":
                A("global_store_dwordx4 v16, v[12:15], s[38:39]")
            A("s_andn2_b32 s8, s8, 0xffff\ns_cbranch_scc0 L_noc2")
        A("s_mov_b32 exec_lo, s8\ns_mov_b32 exec_hi, " + ("0" if dup is None else "s9"))
        A(f"global_store_dwordx4 v{b + 4}, v[{b}:{b + 3}], s[38:39] sc1")
        A("L_noc2:")
        A("s_mov_b64 exec, -1")

    def wqload():
        A("s_cmp_eq_u32 s3, 0")
        A("s_cbranch_scc0 L_nox")
        A(f"s_mov_b32 m0, {L_X}")
        A("global_load_lds_dwordx4 v9, s[16:17]")
        A(f"s_mov_b32 m0, {L_W}")
        A("s_nop 0")
        A("L_nox:")
        A(f"global_load_lds_dwordx4 v10, s[22:23]{wntf}")
        A("s_add_u32 m0, m0, 1024")
        A(f"global_load_lds_dwordx4 v11, s[22:23]{wntf}")
    if not kfirst:
        wqaddr()
    vKS = (1, 2, 3, 4)
    vKR = (5, 6, 7, 8)
    vV, vM, vML, vL = 9, 10, 11, 12
    PK = (13, 14)
    vAl = 15
    SEL = (16, 17, 18, 19)
    S = (20, 21, 22, 23)
    T = (24, 25, 26, 27)
    BB = 28
    vT2 = 38
    ACC = (40, 44)
    QF = 48
    KF = 64
    VR = [80 + 16 * i for i in range(VRING)]
    A("v_lshrrev_b32 v24, 4, v0")
    A("v_lshlrev_b32 v25, 6, v24")
    A(f"v_xor_b32 v{vKS[0]}, v{vV}, v25")
    for i in (1, 2, 3):
        A(f"v_xor_b32 v{vKS[i]}, {16 * i}, v{vKS[0]}")
    if split:
        A(f"v_add_u32 v{vKS[2]}, 6144, v{vKS[2]}\nv_add_u32 v{vKS[3]}, 6144, v{vKS[3]}\nv_add_u32 v39, 6144, v{vV}")
    A("s_lshl_b32 s10, s6, 23")
    if inter == "wgtile":
        if split:
            A("s_lshl_b32 s11, s7, 18\ns_add_u32 s10, s10, s11\ns_and_b32 s11, s3, 3\ns_lshl_b32 s11, s11, 11\ns_add_u32 s10, s10, s11")
            A("s_lshr_b32 s11, s3, 2\ns_lshl_b32 s11, s11, 14\ns_add_u32 s10, s10, s11")
        else:
            A("s_lshl_b32 s11, s7, 18\ns_add_u32 s10, s10, s11\ns_lshl_b32 s11, s3, 12\ns_add_u32 s10, s10, s11")
        step = 8 * 4096
    elif inter == "contig":
        A("s_lshl_b32 s11, s7, 18\ns_add_u32 s10, s10, s11\ns_lshl_b32 s11, s3, 15\ns_add_u32 s10, s10, s11")
        step = 4096
    elif inter == "global":
        A("s_lshl_b32 s11, s7, 15\ns_add_u32 s10, s10, s11\ns_lshl_b32 s11, s3, 12\ns_add_u32 s10, s10, s11")
        step = 256 * 4096
    A("s_mov_b32 s11, s10")
    A(f"s_mul_i32 s56, s3, {KRING * 4096}\ns_add_u32 s56, s56, {L_K}")
    A("s_mov_b32 s42, 0x4000000\ns_mov_b32 s43, 0x20000")
    if kfirst:
        A("s_mov_b32 m0, s56")
    if sclr == "first" and "noclear" not in xp:
        clears()
    A("s_waitcnt lgkmcnt(0)")
    stamp_at(12)
    if sclr == "first" and "noclear" not in xp:
        clearstore()
    if not kfirst:
        A("s_barrier")
        wqload()
        A("s_mov_b32 m0, s56")
    A("s_mov_b32 s40, s18\ns_and_b32 s41, s19, 0xffff")
    stamp_at(11)
    vm = VM()
    ids = {}
    m0k = [0]
    order = (order or {3: "K0 V0 K1 V1 K2 V2 V3 V4 K3 K4 K5 K6 K7 V5 V6 V7", 2: "K0 V0 K1 V1 K2 V2 V3 V4 K3 K4 K5 V5 K6 K7 V6 V7"}[NB]).split()
    seq = [(g[0], int(g[1]), u) for g in order for u in range(4)]
    NPRE = 4 * (KRING + VRING)

    def W(opid):
        w = vm.wait(opid)
        if w:
            A(w)

    def load(n):
        mat, t, u = seq[n]
        d = D if n < d2from else D2
        if D3 and n >= d3from:
            d = D3
        if dseq and n > bpos:
            d = int(dseq[n])
        if adapt and n >= NPRE and n in adapt[2]:
            W(ids[seq[n - d - 1]])
            A(f"s_cbranch_vccnz L_ad{n}")
            A(f"s_waitcnt vmcnt({d - 1})")
            A(f"L_ad{n}:")
        elif n >= d:
            W(ids[seq[n - d]])
            if adapt and n >= NPRE and n in adapt[3]:
                A(f"s_cmp_le_u32 s9, {adapt[0]}")
                A(f"s_cbranch_scc0 L_ad{n}")
                A(f"s_waitcnt vmcnt({d - 2})")
                A(f"L_ad{n}:")
        if opos and n in opos and "now" not in xp:
            for i, p in enumerate(opos):
                if p == n:
                    A(f"global_load_dwordx4 v[164:167], v161, s[24:25] offset:{1024 * i}")
        if mat == "K":
            if m0k[0] != t:
                m0k[0] = t
                A(f"s_add_u32 m0, s56, {4096 * (t % KRING)}")
            A(f"buffer_load_dwordx4 v{vKS[u]}, s[40:43], s10 offen offset:{1024 * u}{ntf} lds")
            if u == 3:
                A(f"s_add_u32 s10, s10, {step}")
        else:
            r = VR[t % VRING] + 4 * u
            A(f"buffer_load_dwordx4 v[{r}:{r + 3}], v{39 if (split and u >= 2) else vV}, s[44:47], s11 offen offset:{1024 * u}{ntf}")
            if u == 3:
                A(f"s_add_u32 s11, s11, {step}")
        ids[seq[n]] = vm.issue()
        if n == qpos:
            A(f"v_mov_b32 v39, {L_F}\nds_write_b32 v39, v39 offset:8")
        if n == vpos and dup == "auto" and vpos:
            A("ds_write_b32 v39, v39 offset:20")

    def consts():
        A("v_and_b32 v24, 3, v0")
        A("v_mov_b32 v25, 0x0c0c0c0c")
        for k, (lo, e0) in enumerate(((0x0100, 0), (0x0100, 2), (0x0302, 0), (0x0302, 2))):
            A(f"v_mov_b32 v26, {hex(0x0c0c0000 | lo)}")
            A(f"v_mov_b32 v27, {hex((lo << 16) | 0x0c0c)}")
            A(f"v_cmp_eq_u32 vcc, {e0}, v24")
            A(f"v_cndmask_b32 v{SEL[k]}, v25, v26, vcc")
            A(f"v_cmp_eq_u32 vcc, {e0 + 1}, v24")
            A(f"v_cndmask_b32 v{SEL[k]}, v{SEL[k]}, v27, vcc")
        for z in (0, 1, 4, 5, 8, 9):
            A(f"v_mov_b32 v{BB + z}, 0")
        A(f"s_mov_b32 s12, {hex(LOG2E)}")
        A("v_bfe_u32 v25, v0, 2, 2")
        A("v_lshrrev_b32 v26, 4, v0")
        A("v_lshlrev_b32 v27, 8, v25")
        A(f"v_lshl_add_u32 v{vT2}, v26, 4, v27")
        A("v_lshl_add_u32 v25, v24, 2, v25")
        A("v_and_b32 v27, 15, v0")
        A("v_xor_b32 v26, v26, v27")
        A("v_lshlrev_b32 v26, 4, v26")
        A("v_lshl_add_u32 v26, v25, 8, v26")
        for u in range(4):
            A(f"v_xor_b32 v{vKR[u]}, {64 * u}, v26")
            A(f"v_add_u32 v{vKR[u]}, s56, v{vKR[u]}")
        roles()
        A("s_lshl_b32 s58, s3, 12")
        if dlate:
            A(f"s_min_u32 s4, s15, 111\ns_lshl_b32 s4, s4, 3\ns_add_u32 s4, s4, s3\ns_lshl_b32 s4, s4, 11\nv_add_u32 v162, s4, v{vV}")
        A("s_lshl_b32 s4, s13, 3\ns_add_u32 s4, s4, s3\ns_lshl_b32 s4, s4, 15\ns_lshl_b32 s5, s14, 7\ns_add_u32 s4, s4, s5")
        A("v_lshrrev_b32 v160, 3, v0\nv_and_b32 v161, 7, v0\nv_lshlrev_b32 v160, 10, v160\nv_lshl_add_u32 v160, v161, 4, v160\nv_add_u32 v160, s4, v160")
        A(f"s_lshl_b32 s4, s61, 5\ns_add_u32 s4, s4, s7\ns_lshl_b32 s4, s4, 3\ns_add_u32 s4, s4, s3\ns_lshl_b32 s4, s4, 11\nv_add_u32 v161, s4, v{vV}")

    def late(pos="c"):
        ops = [i for i in range(4) if lp[i] == pos]
        if "now" in xp or not ops:
            return
        if not dlast:
            A("s_cmp_lt_u32 s7, 14")
            A(f"s_cbranch_scc0 L_late_b{pos}")
        for i in (ops if not dlast else ()):
            if i < 2:
                A(f"s_add_u32 m0, s57, {L_W + 32768 + 1024 * i}")
                A(f"global_load_lds_dwordx4 v162, s[32:33]{wntf}")
                if i == 0:
                    A("v_add_u32 v162, 1024, v162")
            else:
                A("s_mov_b64 exec, 1")
                A("global_load_dword v163, v162, s[32:33]")
        if not dlast:
            A(f"s_branch L_late_done{pos}")
        A(f"L_late_b{pos}:")
        A("s_cmp_ge_u32 s7, 16")
        A("s_cselect_b64 exec, -1, 1")
        for i in ops:
            A(f"s_add_u32 m0, s58, {L_W + 1024 * i}")
            A(f"global_load_lds_dwordx4 v160, s[24:25] offset:0{wntf}")
            vm.issue()
            if i < 3:
                A("v_add_u32 v160, 0x2000, v160")
        A(f"L_late_done{pos}:")
        A("s_mov_b64 exec, -1")
        m0k[0] = None

    T0 = 8 - NB
    SS = {t: tuple(range(144 + 4 * (t - T0), 148 + 4 * (t - T0))) for t in range(T0, 8)}
    PKS = {t: (128 + 2 * (t - T0), 129 + 2 * (t - T0)) for t in range(T0, 8)}

    def scores(t, S):
        W(ids[("K", t, 3)])
        k = KF
        for u in range(4):
            A(f"ds_read_b128 v[{k + 4 * u}:{k + 4 * u + 3}], v{vKR[u]} offset:{4096 * (t % KRING)}")
        for u in range(4):
            c = "0" if u == 0 else f"v[{S[0]}:{S[3]}]"
            A("s_waitcnt lgkmcnt(0)" if stamps else f"s_waitcnt lgkmcnt({3 - u})")
            A(f"v_mfma_f32_16x16x32_bf16 v[{S[0]}:{S[3]}], v[{k + 4 * u}:{k + 4 * u + 3}], v[{QF + 4 * u}:{QF + 4 * u + 3}], {c}")
        for rnd in range(2):
            A(f"v_cvt_pk_bf16_f32 v{T[0]}, v{S[0]}, v{S[1]}")
            A(f"v_cvt_pk_bf16_f32 v{T[1]}, v{S[2]}, v{S[3]}")
            A(f"v_lshlrev_b32 v{S[0]}, 16, v{T[0]}")
            A(f"v_and_b32 v{S[1]}, 0xffff0000, v{T[0]}")
            A(f"v_lshlrev_b32 v{S[2]}, 16, v{T[1]}")
            A(f"v_and_b32 v{S[3]}, 0xffff0000, v{T[1]}")
            if rnd == 0:
                for r in range(4):
                    A(f"v_mul_f32 v{S[r]}, {hex(SCALE)}, v{S[r]}")
        if t == 0:
            A(f"v_max_f32 v{vM}, v{S[0]}, v{S[1]}")
            A(f"v_max3_f32 v{vM}, v{vM}, v{S[2]}, v{S[3]}")
        else:
            A(f"v_max3_f32 v{vM}, v{vM}, v{S[0]}, v{S[1]}")
            A(f"v_max3_f32 v{vM}, v{vM}, v{S[2]}, v{S[3]}")

    def probs(tiles, first):
        if not first:
            A(f"v_mov_b32 v{vAl}, v{vML}")
        A(f"v_mul_f32 v{vML}, s12, v{vM}")
        if not first:
            A(f"v_sub_f32 v{vAl}, v{vAl}, v{vML}")
            A(f"v_exp_f32 v{vAl}, v{vAl}")
        for S, P in tiles:
            for r in range(4):
                A(f"v_fma_f32 v{S[r]}, v{S[r]}, s12, -v{vML}")
        for S, P in tiles:
            for r in range(4):
                A(f"v_exp_f32 v{S[r]}, v{S[r]}")
        if not first:
            for a in range(8):
                A(f"v_mul_f32 v{ACC[0] + a}, v{vAl}, v{ACC[0] + a}")
            A(f"v_mul_f32 v{vL}, v{vL}, v{vAl}")
        for i, (S, P) in enumerate(tiles):
            A(f"v_add_f32 v{T[0]}, v{S[0]}, v{S[1]}")
            A(f"v_add_f32 v{T[1]}, v{S[2]}, v{S[3]}")
            A(f"v_cvt_pk_bf16_f32 v{P[0]}, v{S[0]}, v{S[1]}")
            A(f"v_cvt_pk_bf16_f32 v{P[1]}, v{S[2]}, v{S[3]}")
            if first and i == 0:
                A(f"v_add_f32 v{vL}, v{T[0]}, v{T[1]}")
            else:
                A(f"v_add_f32 v{T[0]}, v{T[0]}, v{T[1]}")
                A(f"v_add_f32 v{vL}, v{vL}, v{T[0]}")

    def qk(t):
        scores(t, S)
        xrow(vM, T[0], "max")
        probs([(S, PK)], t == 0)

    def sc(t):
        scores(t, SS[t])
        if t == 7:
            xrow(vM, T[0], "max")
            A("v_bfe_u32 v26, v0, 2, 2\nv_lshlrev_b32 v26, 5, v26\ns_lshl_b32 s4, s3, 2\nv_add_u32 v27, s4, v26")
            A("s_mov_b64 exec, 0x1111")
            A(f"ds_write_b32 v27, v{vM} offset:{L_M}")
            A("s_mov_b64 exec, -1")

    def fin1(t):
        A("s_waitcnt lgkmcnt(0)")
        A("s_barrier")
        k0 = KF
        A(f"ds_read_b128 v[{k0}:{k0 + 3}], v26 offset:{L_M}")
        A(f"ds_read_b128 v[{k0 + 4}:{k0 + 7}], v26 offset:{L_M + 16}")
        A("s_waitcnt lgkmcnt(0)")
        A(f"v_max3_f32 v{vM}, v{k0}, v{k0 + 1}, v{k0 + 2}")
        A(f"v_max3_f32 v{vM}, v{vM}, v{k0 + 3}, v{k0 + 4}")
        A(f"v_max3_f32 v{vM}, v{vM}, v{k0 + 5}, v{k0 + 6}")
        A(f"v_max_f32 v{vM}, v{vM}, v{k0 + 7}")
        probs([(SS[t], PKS[t]) for t in range(T0, 8)], False)
        xrow(vL, T[0])
        A("s_mov_b64 exec, 0x1111")
        A(f"ds_write_b32 v27, v{vL} offset:{L_L}")
        A("s_mov_b64 exec, -1")

    def fin2(t):
        A("s_and_b32 s4, s3, 1\ns_lshl_b32 s4, s4, 6\nv_lshrrev_b32 v26, 5, v0\nv_lshl_add_u32 v26, v26, 5, s4")
        A(f"v_mov_b32 v27, {L_F}")
        A("s_waitcnt lgkmcnt(0)")
        A("s_barrier")
        A(f"ds_read_b128 v[64:67], v26 offset:{L_M}")
        A(f"ds_read_b128 v[68:71], v26 offset:{L_M + 16}")
        A(f"ds_read_b128 v[72:75], v26 offset:{L_L}")
        A(f"ds_read_b128 v[76:79], v26 offset:{L_L + 16}")
        A("ds_read2_b32 v[26:27], v27 offset0:4 offset1:1")
        A("s_waitcnt lgkmcnt(0)")
        A("v_max3_f32 v64, v64, v65, v66\nv_max3_f32 v64, v64, v67, v68\nv_max3_f32 v64, v64, v69, v70\nv_max_f32 v64, v64, v71")
        for i in range(4):
            A(f"v_add_f32 v{72 + i}, v{72 + i}, v{76 + i}")
        A("v_add_f32 v72, v72, v73\nv_add_f32 v74, v74, v75\nv_add_f32 v72, v72, v74")
        A("v_readfirstlane_b32 s62, v27")
        A("v_readfirstlane_b32 s49, v26")
        A("v_log_f32 v73, v72")
        A(f"v_rcp_f32 v{vAl}, v72")
        A(f"v_mul_f32 v64, s12, v64")
        A(f"v_add_f32 v{vL}, v64, v73")
        A(f"v_and_b32 v{vM}, 3, v0\nv_add_u32 v{vM}, 0x07060501, v{vM}")
        A("s_mov_b32 s50, 0x88888888\ns_mov_b32 s51, 0x88888888")

    def fin3(t):
        A(f"v_add_u32 v64, s56, v{vV}")
        A("v_and_b32 v65, 15, v0\nv_bfe_u32 v66, v0, 4, 1\nv_mul_u32_u24 v66, 272, v66\nv_add_u32 v65, v65, v66")
        A("v_lshrrev_b32 v66, 5, v0\nv_lshl_add_u32 v65, v66, 4, v65\ns_lshl_b32 s4, s3, 7")
        A(f"s_add_u32 s4, s4, {L_K}\nv_lshl_add_u32 v65, v65, 2, s4")
        A(f"v_add_u32 v66, {4 * KRING * 4096}, v65")
        p1slot("s4")
        A("s_lshl_b32 s5, s3, 8\ns_add_u32 s5, s5, s4\nv_lshl_add_u32 v67, v0, 2, s5")

    def prepB():
        A(f"s_lshl_b32 s4, s61, 5\nv_lshrrev_b32 v57, 3, v0\nv_add_u32 v57, s4, v57\nv_mul_u32_u24 v57, {P1_STRIDE}, v57")
        if b4:
            A("s_and_b32 s4, s13, 1\ns_lshl_b32 s4, s4, 1\ns_bfe_u32 s5, s3, 0x10001\ns_add_u32 s4, s4, s5")
            A(f"s_and_b32 s5, s3, 1\ns_lshl_b32 s5, s5, 3\ns_add_u32 s4, s4, s5\ns_lshl_b32 s4, s4, 7\ns_add_u32 s4, s4, {WS_P1}")
        else:
            A("s_and_b32 s4, s13, 1\ns_lshl_b32 s4, s4, 1\ns_lshr_b32 s5, s3, 2\ns_add_u32 s4, s4, s5")
            A(f"s_and_b32 s5, s3, 3\ns_lshl_b32 s5, s5, 2\ns_add_u32 s4, s4, s5\ns_lshl_b32 s4, s4, 7\ns_add_u32 s4, s4, {WS_P1}")
        A("v_and_b32 v58, 7, v0\nv_lshl_add_u32 v57, v58, 4, v57\nv_add_u32 v48, s4, v57")
        for pi in range(1, 4):
            A(f"v_add_u32 v{48 + pi}, {8 * pi * P1_STRIDE}, v48")
        A("s_mov_b32 s52, 0x04000c0c\ns_mov_b32 s53, 0x0706000c")
        A("s_mov_b32 s54, 0xffff0000\ns_mov_b32 s55, 0xffff0000\ns_mov_b32 s8, 0\ns_mov_b32 s9, -1")
        sigma(57, 58)
        A("v_bfe_u32 v58, v0, 2, 2\nv_lshl_add_u32 v57, v57, 3, v58\nv_lshlrev_b32 v57, 7, v57")
        A(f"v_and_b32 v58, 3, v0\nv_lshl_add_u32 v57, v58, 3, v57\ns_lshl_b32 s4, s3, {13 if b4 else 12}\nv_add_u32 v52, s4, v57")
        A("v_lshlrev_b32 v54, 2, v0\ns_lshl_b32 s4, s3, 8\nv_add_u32 v53, s4, v54")
        rowoff("s4", "s13", "s5")
        A(f"s_lshl_b32 s5, s14, 8\ns_add_u32 s4, s4, s5\ns_add_u32 s4, s4, {WS_P2}")
        if dup is not None:
            mycopy("s5")
            A("s_xor_b32 s5, s5, 0x2000\ns_add_u32 s4, s4, s5")
        A("v_add_u32 v55, s4, v54")
        A("v_xor_b32 v56, 0x2000, v55")

    def fin4(t):
        if bprep:
            prepB()

    def pv(t, last=False):
        v = VR[t % VRING]
        P = PKS.get(t, PK)

        def perm(i):
            b = BB + 2 + 4 * (i & 1)
            A(f"v_perm_b32 v{b}, v{P[i >> 1]}, v{P[i >> 1]}, v{SEL[2 * (i & 1)]}")
            A(f"v_perm_b32 v{b + 1}, v{P[i >> 1]}, v{P[i >> 1]}, v{SEL[2 * (i & 1) + 1]}")
        perm(0)
        perm(1)
        if not last:
            W(ids[("V", t, 3)])
        for i in range(4):
            if last:
                W(ids[("V", t, i)])
            b = BB + 2 + 4 * (i & 1)
            for h in range(2):
                c = "0" if (t == 0 and i == 0) else f"v[{ACC[h]}:{ACC[h] + 3}]"
                bb = b if h == 0 else b - 2
                A(f"v_mfma_f32_16x16x32_bf16 v[{ACC[h]}:{ACC[h] + 3}], v[{v + 4 * i}:{v + 4 * i + 3}], v[{bb}:{bb + 3}], {c}")
            if i < 2:
                perm(i + 2)

    for n in range(NPRE):
        load(n)
        if n == 3:
            A("s_mov_b32 s44, s20\ns_and_b32 s45, s21, 0xffff\ns_mov_b32 s46, 0x4000000\ns_mov_b32 s47, 0x20000")
            if sclr == "after" and "noclear" not in xp and clrpos == 3 and not wqfirst:
                clears()
                clearstore()
            if kfirst:
                wqaddr()
                wqload()
                m0k[0] = None
            if sclr == "after" and "noclear" not in xp and clrpos == 3 and wqfirst:
                clears()
                clearstore()
            if kfirst:
                A("s_barrier")
        if n == clrpos and clrpos > 3 and sclr == "after" and "noclear" not in xp:
            clears(72)
            clearstore(72)
        if n == max(D - 1, 3):
            consts()
        if n == bpos:
            stamp_at(13)
            A(f"v_mov_b32 v24, {L_F}\nv_mov_b32 v25, 1\ns_mov_b64 exec, 1\nds_add_u32 v24, v25 offset:12\ns_mov_b64 exec, -1")
        if n == qpos and False:
            A(f"v_mov_b32 v24, {L_F}\nds_write_b32 v24, v24 offset:8")
    stamp_at(1)
    ldswait("L_waitq", 0)
    if adapt:
        lo, hi, lsites, tsites = adapt
        A("v_readfirstlane_b32 s9, v25")
        A(f"v_cmp_lt_u32 vcc, {hi}, v25")
        if stamps:
            A("s_mov_b32 s88, s9")
    stamp_at(2)
    for u in range(4):
        A(f"ds_read_b128 v[{QF + 4 * u}:{QF + 4 * u + 3}], v{vT2} offset:{L_Q + 64 * u}")
    A("s_waitcnt lgkmcnt(0)")
    blocks = []
    for t in range(T0):
        blocks += [(qk, t, ("K", t, 3)), (pv, t, ("V", t, 3))]
    for t in range(T0, 8):
        blocks += [(sc, t, ("K", t, 3))]
    blocks += [(fin1, 7, ("K", 7, 3)), (fin2, 7, ("K", 7, 3)), (fin3, 7, ("K", 7, 3)), (fin4, 7, ("K", 7, 3))]
    for t in range(T0, 7):
        blocks += [(pv, t, ("V", t, 3))]
    bi = 0
    for n in range(NPRE, len(seq)):
        mat, t, u = seq[n]
        needb = {"K": 2 * (t - KRING) + 1, "V": 2 * (t - VRING) + 2}[mat]
        while bi < needb:
            blocks[bi][0](blocks[bi][1])
            bi += 1
        load(n)
        late(n)
        if n < len(seq) - 1 and bi < len(blocks) and blocks[bi][2] in ids and ids[blocks[bi][2]] <= vm.done:
            blocks[bi][0](blocks[bi][1])
            bi += 1
    while bi < len(blocks) and blocks[bi][0] is not pv:
        blocks[bi][0](blocks[bi][1])
        bi += 1
    if bar1c:
        A("s_barrier")
        late()
    else:
        late()
        A("s_barrier")
    while bi < len(blocks):
        blocks[bi][0](blocks[bi][1])
        bi += 1
    stamp_at(3)
    pv(7, last=True)
    stamp_at(4)
    A(f"ds_write_b128 v64, v[{ACC[0]}:{ACC[0] + 3}]")
    A(f"ds_write_b128 v64, v[{ACC[1]}:{ACC[1] + 3}] offset:1088")
    A("s_waitcnt lgkmcnt(0)")
    A("s_barrier")
    R0 = 72
    for i in range(8):
        A(f"ds_read_b32 v{R0 + i}, v{65 + (i >> 2)} offset:{KRING * 4096 * (i & 3)}")
    A("s_cmp_eq_u32 s62, 1")
    A("s_waitcnt lgkmcnt(0)")
    for i in range(2):
        A(f"v_pk_add_f32 v[{R0 + 2 * i}:{R0 + 2 * i + 1}], v[{R0 + 2 * i}:{R0 + 2 * i + 1}], v[{R0 + 4 + 2 * i}:{R0 + 5 + 2 * i}]")
    A(f"v_pk_add_f32 v[{R0}:{R0 + 1}], v[{R0}:{R0 + 1}], v[{R0 + 2}:{R0 + 3}]")
    A(f"v_add_f32 v{R0}, v{R0}, v{R0 + 1}")
    A(f"v_mul_f32 v{R0}, v{R0}, v{vAl}")
    A(f"v_mov_b32_dpp v{R0 + 1}, v{R0} quad_perm:[3,3,3,3] {FULL}")
    A(f"v_perm_b32 v{R0}, v{R0}, v{R0 + 1}, v{vM}")
    A(f"v_cndmask_b32 v{R0}, v{R0}, v{vL}, s[50:51]")
    A("s_cbranch_scc0 L_pubfar")
    A(f"global_store_dword v67, v{R0}, s[38:39]")
    A("L_published:")
    for _ in range(pad2):
        A("s_nop 0")
    stamp_at(5)
    A("s_cmp_lt_u32 s7, 14")
    A("s_cbranch_scc1 L_ffn")
    A("s_cmp_lt_u32 s7, 16")
    A("s_cbranch_scc1 L_final")
    if not bprep:
        prepB()
    NKK = 2 if b4 else 1
    WB = 80
    D0 = 120
    TP = 152
    WW = 160
    AA = 112
    AC = 32
    loads = [f"global_load_dwordx4 v[{D0 + 16 * kk + 4 * pi}:{D0 + 16 * kk + 4 * pi + 3}], v{48 + pi}, s[38:39] offset:{512 * kk} sc1" for pi in range(4) for kk in range(NKK)]

    def bweights():
        A(f"s_waitcnt vmcnt({4 * NKK})")
        if b4:
            A("s_barrier")
        for kk in range(NKK):
            for tau in range(4):
                for t in range(2):
                    r = WB + 16 * kk + 4 * tau + 2 * t
                    if kk == 1 and tau == 3 and t == 0:
                        A("s_waitcnt lgkmcnt(0)")
                    A(f"ds_read_b64_tr_b16 v[{r}:{r + 1}], v52 offset:{L_W + 4096 * kk + 512 * t + 32 * tau}")
    A("s_barrier")
    if b4:
        A("s_cmp_lt_u32 s3, 4")
        A("s_cbranch_scc1 L_bgo")
        A("s_waitcnt vmcnt(0)")
        A("s_barrier")
        A("s_branch L_bdone")
        A("L_bgo:")
    stamp_at(8)
    poll("L_poll1", loads, range(D0, D0 + 16 * NKK), 31, between=bweights)
    stamp_at(6)
    pm1 = [f"v_perm_b32 v{TP + 4 * kk + pi}, v{D0 + 16 * kk + 4 * pi + 2}, v{D0 + 16 * kk + 4 * pi + 1}, s52" for kk in range(NKK) for pi in range(4)]
    A(f"v_max3_f32 v16, v{D0 + 3}, v{D0 + 7}, v{D0 + 11}\nv_max_f32 v16, v16, v{D0 + 15}")
    A(pm1.pop(0))
    A(pm1.pop(0))
    A(f"v_max_f32_dpp v16, v16, v16 row_ror:8 {FULL}")
    A("v_mov_b32 v17, v16")
    A(pm1.pop(0))
    A(pm1.pop(0))
    A("v_permlane16_swap_b32 v16, v17")
    A("v_max_f32 v16, v16, v17")
    A("v_mov_b32 v17, v16")
    for x in pm1[:2]:
        A(x)
    A("v_permlane32_swap_b32 v16, v17")
    A("v_max_f32 v16, v16, v17")
    for pi in range(4):
        A(f"v_sub_f32 v{WW + pi}, v{D0 + 4 * pi + 3}, v16")
    for x in pm1[2:]:
        A(x)
    for pi in range(4):
        A(f"v_exp_f32 v{WW + pi}, v{WW + pi}")
        for kk in range(NKK):
            A(f"v_perm_b32 v{D0 + 16 * kk + 4 * pi + 3}, v{TP + 4 * kk + pi}, v{D0 + 16 * kk + 4 * pi}, s53")
    A(f"v_pk_add_f32 v[16:17], v[{WW}:{WW + 1}], v[{WW + 2}:{WW + 3}]")
    for kk in range(NKK):
        for hlf in range(2):
            r = D0 + 16 * kk + 2 * hlf
            A(f"v_pk_mul_f32 v[{r}:{r + 1}], v[{WW}:{WW + 1}], v[{r}:{r + 1}] op_sel_hi:[0,1]")
    A("v_add_f32 v16, v16, v17")
    for pi in range(1, 4):
        w = f"v[{WW + (pi & 2)}:{WW + 1 + (pi & 2)}]"
        sel = "op_sel:[1,0,0] op_sel_hi:[1,1,1]" if pi & 1 else "op_sel_hi:[0,1,1]"
        for kk in range(NKK):
            for hlf in range(2):
                r = D0 + 16 * kk + 2 * hlf
                A(f"v_pk_fma_f32 v[{r}:{r + 1}], {w}, v[{r + 4 * pi}:{r + 4 * pi + 1}], v[{r}:{r + 1}] {sel}")
        if pi == 1:
            A(f"v_add_f32_dpp v16, v16, v16 row_ror:8 {FULL}")
    A("v_mov_b32 v17, v16")
    for kk in range(NKK):
        d = D0 + 16 * kk
        A(f"v_permlane32_swap_b32 v{d}, v{d + 1}\nv_permlane32_swap_b32 v{d + 2}, v{d + 3}")
    A("v_permlane32_swap_b32 v16, v17")
    A("v_add_f32 v16, v16, v17")
    A("v_mov_b32 v17, v16")
    for kk in range(NKK):
        d = D0 + 16 * kk
        A(f"v_add_f32 v{d}, v{d}, v{d + 1}\nv_add_f32 v{d + 2}, v{d + 2}, v{d + 3}")
    A("v_permlane16_swap_b32 v16, v17")
    A("v_add_f32 v16, v16, v17")
    for kk in range(NKK):
        d = D0 + 16 * kk
        A(f"v_permlane16_swap_b32 v{d}, v{d + 2}")
    A("v_rcp_f32 v16, v16")
    for kk in range(NKK):
        d = D0 + 16 * kk
        A(f"v_add_f32 v{d}, v{d}, v{d + 2}")
    for kk in range(NKK):
        d = D0 + 16 * kk
        A(f"v_add_f32_dpp v{d}, v{d}, v{d} row_ror:8 {FULL}")
    for kk in range(NKK):
        d = D0 + 16 * kk
        A(f"v_mul_f32 v{d}, v{d}, v16")
    for kk in range(NKK):
        d = D0 + 16 * kk
        A(f"v_mov_b32_dpp v{d + 1}, v{d} quad_perm:[1,0,3,2] {FULL}")
    for kk in range(NKK):
        d = D0 + 16 * kk
        A(f"v_cvt_pk_bf16_f32 v{d}, v{d}, v{d + 1}")
    for kk in range(NKK):
        for e in range(4):
            A(f"v_mov_b32_dpp v{AA + 4 * kk + e}, v{D0 + 16 * kk} row_newbcast:{2 * e} {FULL}")
    A("s_waitcnt lgkmcnt(0)")
    for kk in range(NKK):
        for tau in range(4):
            c = "0" if kk == 0 else f"v[{AC + 4 * tau}:{AC + 4 * tau + 3}]"
            b = WB + 16 * kk + 4 * tau
            A(f"v_mfma_f32_16x16x32_bf16 v[{AC + 4 * tau}:{AC + 4 * tau + 3}], v[{AA + 4 * kk}:{AA + 4 * kk + 3}], v[{b}:{b + 3}], {c}")
    A(f"v_cndmask_b32 v{AC}, v{AC}, v{AC + 4}, s[54:55]")
    A(f"v_cndmask_b32 v{AC + 8}, v{AC + 8}, v{AC + 12}, s[54:55]")
    A(f"v_cndmask_b32 v{AC}, v{AC}, v{AC + 8}, s[8:9]")
    A(f"ds_write_b32 v53, v{AC} offset:{L_B}")
    A("s_cmp_eq_u32 s3, 0")
    A("s_waitcnt lgkmcnt(0)")
    A("s_barrier")
    A("s_cbranch_scc0 L_bdone")
    NW = 8 // NKK
    for i in range(NW):
        A(f"ds_read_b32 v{120 + i}, v54 offset:{L_B + 256 * i}")
    A("s_waitcnt lgkmcnt(0)")
    if NW == 8:
        for i in range(2):
            A(f"v_pk_add_f32 v[{120 + 2 * i}:{121 + 2 * i}], v[{120 + 2 * i}:{121 + 2 * i}], v[{124 + 2 * i}:{125 + 2 * i}]")
    A("v_pk_add_f32 v[120:121], v[120:121], v[122:123]")
    A("v_add_f32 v120, v120, v121")
    store_quad(120, 55, fl=st2, addr2=None if dup is None else 56)
    A("L_bdone:")
    if wb:
        A("s_cmp_eq_u32 s3, 1\ns_cbranch_scc0 L_nowb\ns_cmp_eq_u32 s7, 16\ns_cbranch_scc0 L_nowb")
        A("buffer_wbl2 sc1")
        A("L_nowb:")
    stamp_at(7)
    stamp_store()
    A("s_endpgm")
    A("L_pubfar:")
    A("s_nop 0")
    store_quad(R0, 67)
    A("s_branch L_published")
    A("L_ffn:")
    vCol = 65
    A("v_and_b32 v17, 7, v0\nv_bfe_u32 v16, v0, 3, 2\nv_lshl_add_u32 v16, v17, 2, v16")
    A("v_and_b32 v18, 32, v0\nv_add_u32 v16, v16, v18")
    A(f"s_lshl_b32 s4, s3, 6\nv_add_u32 v{vCol}, s4, v16")
    A(f"v_lshlrev_b32 v29, 1, v{vCol}")
    A(f"ds_read_u16_d16_hi v64, v29 offset:{L_X}")
    A(f"s_lshl_b32 s4, s3, 8\ns_add_u32 s4, s4, {WS_P2}")
    if dup is None:
        A("v_lshrrev_b32 v18, 3, v0\nv_lshlrev_b32 v19, 12, v18\nv_lshl_add_u32 v16, v17, 4, v19\nv_add_u32 v20, s4, v16")
    else:
        mycopy("s5")
        A("s_add_u32 s4, s4, s5")
        A("v_lshrrev_b32 v18, 4, v0\nv_lshlrev_b32 v19, 14, v18\nv_bfe_u32 v18, v0, 3, 1\nv_lshl_add_u32 v19, v18, 12, v19\nv_lshl_add_u32 v16, v17, 4, v19\nv_add_u32 v20, s4, v16")
    A("v_lshrrev_b32 v18, 4, v0\nv_and_b32 v17, 15, v0")
    rowoff("s4", "s15", "s5", dup3)
    A(f"s_add_u32 s4, s4, {WS_P3}\ns_lshl_b32 s5, s3, {9 if c4 else 8}\ns_and_b32 s5, s5, 0x7ff\ns_add_u32 s4, s4, s5")
    if dup is not None and dup3:
        mycopy("s5")
        A("s_xor_b32 s5, s5, 0x2000\ns_add_u32 s4, s4, s5")
    A(f"v_lshl_add_u32 v22, v0, {3 if c4 else 2}, s4")
    if dup is not None and dup3:
        A("v_xor_b32 v21, 0x2000, v22")
    A("s_lshl_b32 s5, s3, 4\nv_mov_b32 v23, s5")
    A("v_and_b32 v24, 7, v0\nv_lshlrev_b32 v24, 4, v24")
    A("s_mov_b32 s63, 0x42800000\ns_mov_b32 s54, 0xffff0000\ns_mov_b32 s55, 0xffff0000")
    A("v_mov_b32 v67, 0x3b000000\nv_mov_b32 v68, 0x3727c5ac\nv_mov_b32 v69, 0xbdd2d3e8\nv_mov_b32 v70, 0xc0135761")
    for i in range(4):
        A(f"v_mov_b32 v{72 + i}, 0x3f803f80")
    A("s_lshl_b32 s4, s3, 7\nv_lshl_add_u32 v25, v18, 4, s4")
    A("v_lshlrev_b32 v27, 2, v0\ns_lshl_b32 s5, s3, 8\nv_add_u32 v26, s5, v27")
    A("v_lshl_add_u32 v28, v0, 1, s4")
    if cfast:
        A("v_bfe_u32 v16, v0, 2, 2\nv_lshlrev_b32 v16, 2, v16\nv_bfe_u32 v19, v0, 4, 1\nv_lshl_add_u32 v16, v19, 1, v16")
        A("v_and_b32 v19, 32, v0\nv_add_u32 v16, v16, v19\nv_lshlrev_b32 v16, 5, v16")
    else:
        A("v_bfe_u32 v16, v0, 2, 2\nv_lshl_add_u32 v16, v18, 3, v16\nv_lshlrev_b32 v16, 5, v16")
    A("v_and_b32 v17, 3, v0\nv_lshl_add_u32 v16, v17, 3, v16\nv_add_u32 v16, s57, v16")
    GW = 88
    DW = 104

    DW2 = 144

    def dreads():
        if c4:
            A("s_lshl_b32 s5, s3, 8\nv_lshl_add_u32 v28, v0, 2, s5")
            A("v_and_b32 v28, 0x3ff, v28")
            for r in range(16):
                if r == 14:
                    A("s_waitcnt lgkmcnt(0)")
                A(f"ds_read_b32 v{DW + r}, v28 offset:{L_W + 32768 + 1024 * r}")
            A("s_waitcnt lgkmcnt(0)")
            for r in range(16):
                A(f"v_and_b32 v{40 + r}, 0xffff0000, v{DW + r}")
                A(f"v_lshlrev_b32 v{DW + r}, 16, v{DW + r}")
            return
        for r in range(16):
            if r == 14:
                A("s_waitcnt lgkmcnt(0)")
            A(f"ds_read_u16_d16_hi v{DW + r}, v28 offset:{L_W + 32768 + 1024 * r}")
    if dsplit and not dlast:
        if dlate:
            A("s_waitcnt vmcnt(1)")
        A("s_barrier")
        dreads()
        A("s_waitcnt lgkmcnt(0)")
    A("s_barrier")
    stamp_at(11)

    def cweights():
        for mat in range(2):
            for kap in range(2):
                for t in range(2):
                    r = GW + 8 * mat + 4 * kap + 2 * t
                    A(f"ds_read_b64_tr_b16 v[{r}:{r + 1}], v16 offset:{L_W + 16384 * mat + ((32 * kap + 512 * t) if cfast else (1024 * kap + 128 * t))}")
        if cfast or csd:
            stamp_at(13)
            return
        colsums()

    def colsums():
        A("s_waitcnt lgkmcnt(0)")
        A(f"v_mfma_f32_16x16x32_bf16 v[140:143], v[72:75], v[{GW}:{GW + 3}], 0")
        A(f"v_mfma_f32_16x16x32_bf16 v[144:147], v[72:75], v[{GW + 8}:{GW + 11}], 0")
        A(f"v_mfma_f32_16x16x32_bf16 v[140:143], v[72:75], v[{GW + 4}:{GW + 7}], v[140:143]")
        A(f"v_mfma_f32_16x16x32_bf16 v[144:147], v[72:75], v[{GW + 12}:{GW + 15}], v[144:147]")
        if not (cfast or csd):
            A("v_cndmask_b32 v66, v140, v144, s[54:55]")
            stamp_at(13)
    loads = [f"global_load_dwordx4 v[{120 + 4 * i}:{123 + 4 * i}], v20, s[38:39] offset:{2048 * (i >> 1) + 128 * (i & 1)} {ld2}" for i in range(4)]
    poll("L_poll2", loads, range(120, 136), 31, between=cweights)
    stamp_at(6)
    if cfast or csd:
        n0 = len(C)
        colsums()
        cs = C[n0:]
        del C[n0:]
        A(cs[0])
    for e in range(4):
        if cfast or csd:
            A(cs[1 + e])
        A(f"v_pk_add_f32 v[{120 + 2 * e}:{121 + 2 * e}], v[{120 + 2 * e}:{121 + 2 * e}], v[{128 + 2 * e}:{129 + 2 * e}]")
    for e in range(4):
        A(f"v_permlane32_swap_b32 v{120 + e}, v{124 + e}")
    A("v_pk_add_f32 v[120:121], v[120:121], v[124:125]\nv_pk_add_f32 v[122:123], v[122:123], v[126:127]")
    A("v_permlane16_swap_b32 v120, v122\nv_permlane16_swap_b32 v121, v123")
    A("v_pk_add_f32 v[122:123], v[120:121], v[122:123]")
    A("v_add_f32_dpp v120, v122, v122 row_ror:8 row_mask:0xf bank_mask:0x3")
    A("v_add_f32_dpp v120, v123, v123 row_ror:8 row_mask:0xf bank_mask:0xc")
    A("v_add_f32 v120, v120, v64")
    if cfast:
        A(f"v_mov_b32_dpp v122, v120 quad_perm:[1,0,3,2] {FULL}")
        A("v_cndmask_b32 v66, v140, v144, s[54:55]")
        A("v_cvt_pk_bf16_f32 v121, v120, v122")
        A("v_lshlrev_b32 v120, 16, v121")
        for e in range(8):
            A(f"v_mov_b32_dpp v{124 + e}, v121 row_newbcast:{2 * e} {FULL}")
            if e == 0:
                A("v_readfirstlane_b32 s4, v120")
    else:
        A("v_cvt_pk_bf16_f32 v121, v120, v120")
        A(f"ds_write_b16 v29, v121 offset:{L_HN}")
        A("v_lshlrev_b32 v120, 16, v121")
        if csd:
            A("v_cndmask_b32 v66, v140, v144, s[54:55]")
        A("v_readfirstlane_b32 s4, v120")
        A("s_waitcnt lgkmcnt(0)")
        A(f"ds_read_b128 v[124:127], v25 offset:{L_HN}")
        A(f"ds_read_b128 v[128:131], v25 offset:{L_HN + 64}")
    A("v_subrev_f32 v148, s4, v120")
    A("v_mov_b32 v150, s4")
    A("v_mul_f32 v149, v148, v148")
    steps = [f"{m} {FULL}" for m in ("row_shr:1", "row_shr:2", "row_shr:4", "row_shr:8")] + ["row_bcast:15 row_mask:0xa bank_mask:0xf", "row_bcast:31 row_mask:0xc bank_mask:0xf"]
    mf = [f"v_mfma_f32_16x16x32_bf16 v[132:135], v[124:127], v[{GW}:{GW + 3}], 0",
          f"v_mfma_f32_16x16x32_bf16 v[136:139], v[124:127], v[{GW + 8}:{GW + 11}], 0",
          f"v_mfma_f32_16x16x32_bf16 v[132:135], v[128:131], v[{GW + 4}:{GW + 7}], v[132:135]",
          f"v_mfma_f32_16x16x32_bf16 v[136:139], v[128:131], v[{GW + 12}:{GW + 15}], v[136:139]"]
    for k, m in enumerate(steps):
        A(f"v_add_f32_dpp v148, v148, v148 {m}")
        A(f"v_add_f32_dpp v149, v149, v149 {m}")
        if k == (0 if cfast else 1):
            if not cfast:
                A("s_waitcnt lgkmcnt(0)")
            stamp_at(8)
            A(mf[0])
            A(mf[1])
        if k == (1 if cfast else 2):
            A(mf[2])
            A(mf[3])
    A("s_mov_b32 exec_lo, 0\ns_mov_b32 exec_hi, 0x80000000")
    A(f"ds_write_b96 v23, v[148:150] offset:{L_H}")
    A("s_mov_b32 exec_lo, -1\ns_mov_b32 exec_hi, 0")
    A("v_cndmask_b32 v66, v132, v136, s[54:55]")
    A("s_mov_b64 exec, -1")
    A(f"ds_write_b32 v26, v66 offset:{L_B}")
    A("s_waitcnt lgkmcnt(0)")
    stamp_at(9)
    if c4:
        A("s_cmp_lt_u32 s3, 4")
    A("s_barrier")
    if c4:
        A("s_cbranch_scc0 L_cdone")
    A(f"ds_read_b96 v[124:126], v24 offset:{L_H}")
    for i in range(8):
        A(f"ds_read_b32 v{128 + i}, v27 offset:{L_B + 256 * i}")
    nd = 0
    if dlast:
        nd = 6
        for r in range(nd):
            A(f"ds_read_u16_d16_hi v{DW + r}, v28 offset:{L_W + 32768 + 1024 * r}")
    A("s_waitcnt lgkmcnt(0)" if stamps else f"s_waitcnt lgkmcnt({8 + nd})")
    stamp_at(10)
    x8 = ("quad_perm:[1,0,3,2]", "quad_perm:[2,3,0,1]", "row_half_mirror")
    A("v_fma_f32 v127, v126, s63, v124")
    A("v_add_f32 v124, v124, v124")
    A("s_waitcnt lgkmcnt(0)" if stamps else f"s_waitcnt lgkmcnt({4 + nd})")
    A(f"v_add_f32_dpp v127, v127, v127 {x8[0]} {FULL}")
    A("v_pk_add_f32 v[128:129], v[128:129], v[130:131]")
    A("s_waitcnt lgkmcnt(0)" if stamps else f"s_waitcnt lgkmcnt({nd})")
    if dlast:
        for r in range(nd, 15):
            A(f"ds_read_u16_d16_hi v{DW + r}, v28 offset:{L_W + 32768 + 1024 * r}")
    A(f"v_add_f32_dpp v127, v127, v127 {x8[1]} {FULL}")
    A("v_pk_add_f32 v[132:133], v[132:133], v[134:135]")
    A("v_pk_add_f32 v[128:129], v[128:129], v[132:133]")
    A(f"v_add_f32_dpp v127, v127, v127 {x8[2]} {FULL}")
    A("v_add_f32 v120, v128, v129")
    A("v_add_f32 v121, v128, v129")
    A("v_mul_f32 v127, 0x3b000000, v127")
    A("v_sub_f32 v126, v127, v126")
    A("v_permlane32_swap_b32 v120, v121")
    A("v_fma_f32 v124, v126, s63, -v124")
    A("v_fma_f32 v125, v126, v124, v125")
    A("v_fma_f32 v122, -v127, v121, v120")
    A("v_fma_f32 v121, -v127, v121, v120")
    A(f"v_add_f32_dpp v125, v125, v125 {x8[0]} {FULL}")
    A("v_mov_b32 v120, v122")
    A(f"v_add_f32_dpp v125, v125, v125 {x8[1]} {FULL}")
    A("v_permlane16_swap_b32 v120, v121")
    A(f"v_add_f32_dpp v125, v125, v125 {x8[2]} {FULL}")
    if dlast:
        A("s_waitcnt lgkmcnt(0)")
        A(f"ds_read_u16_d16_hi v{DW + 15}, v28 offset:{L_W + 32768 + 1024 * 15}")
    A("v_fma_f32 v125, v125, v67, v68")
    A("v_rsq_f32 v125, v125")
    A("v_mul_f32 v120, v120, v125")
    A("v_mul_f32 v121, v121, v125")
    A("v_mul_f32 v122, v120, v120")
    A("v_mul_f32 v121, v120, v121")
    A("v_fma_f32 v122, v122, v69, v70")
    A("v_mul_f32 v122, v122, v120")
    A("v_exp_f32 v122, v122")
    A("v_add_f32 v122, 1.0, v122")
    A("v_rcp_f32 v122, v122")
    A("v_mul_f32 v120, v121, v122")
    if dlast:
        A("s_waitcnt lgkmcnt(0)")
    if c4:
        for r in range(16):
            op = "mul" if r < 2 else "fmac"
            A(f"v_{op}_f32_dpp v{124 + 2 * (r & 1)}, v120, v{DW + r} row_newbcast:{r} {FULL}")
            A(f"v_{op}_f32_dpp v{125 + 2 * (r & 1)}, v120, v{40 + r} row_newbcast:{r} {FULL}")
        A("v_pk_add_f32 v[124:125], v[124:125], v[126:127]")
        A(f"v_mov_b32_dpp v126, v124 quad_perm:[1,1,3,3] {FULL}")
        A(f"v_mov_b32_dpp v127, v125 quad_perm:[1,1,3,3] {FULL}")
        A("s_mov_b32 exec_lo, 0x55555555\ns_mov_b32 exec_hi, 0x55555555")
        A("global_store_dwordx4 v22, v[124:127], s[38:39] sc1")
        if dup is not None and dup3:
            A("global_store_dwordx4 v21, v[124:127], s[38:39] sc1")
        A("s_mov_b64 exec, -1")
    else:
        for r in range(16):
            op = "mul" if r < 4 else "fmac"
            A(f"v_{op}_f32_dpp v{124 + (r & 3)}, v120, v{DW + r} row_newbcast:{r} {FULL}")
        A("v_pk_add_f32 v[124:125], v[124:125], v[126:127]")
        A("v_add_f32 v124, v124, v125")
        store_quad(124, 22, fl=st3, addr2=21 if (dup is not None and dup3) else None)
    A("L_cdone:")
    stamp_at(7)
    stamp_store()
    A("s_endpgm")
    A("L_final:")
    A("s_barrier")
    A("s_sub_u32 s15, s7, 14\ns_lshl_b32 s4, s6, 1\ns_add_u32 s15, s15, s4")
    A("v_and_b32 v16, 7, v0\nv_lshrrev_b32 v17, 3, v0\nv_lshlrev_b32 v17, 11, v17\nv_lshl_add_u32 v17, v16, 4, v17")
    A("v_and_b32 v22, 31, v0\ns_lshl_b32 s4, s15, 6\nv_lshl_add_u32 v18, v22, 1, s4")
    A("v_lshlrev_b32 v22, 2, v22")
    sigma(23, 24)
    A("v_lshl_add_u32 v23, v16, 2, v23\nv_lshl_add_u32 v19, v23, 1, s4")
    A(f"ds_read_u16_d16_hi v19, v19 offset:{L_X}")
    A("s_lshl_b32 s4, s3, 7\nv_lshl_add_u32 v23, v23, 2, s4")
    if dup is None:
        A(f"s_lshl_b32 s4, s3, 15\ns_add_u32 s4, s4, {WS_P3}")
        A("s_cmp_eq_u32 s3, 7")
        A(f"s_cselect_b32 s4, {WS_P2}, s4")
        A("s_lshl_b32 s5, s15, 7\ns_add_u32 s4, s4, s5")
        A("v_add_u32 v20, s4, v17\nv_add_u32 v21, 0x4000, v20")
    else:
        A("v_lshrrev_b32 v24, 5, v0\nv_lshlrev_b32 v24, 13, v24")
        mycopy("s8")
        A(f"s_lshl_b32 s4, s3, {16 if dup3 else 15}\ns_add_u32 s4, s4, {WS_P3}")
        A("s_cmp_eq_u32 s3, 7")
        A(f"s_cselect_b32 s4, {WS_P2}, s4")
        if dup3:
            A("s_add_u32 s4, s4, s8\ns_mov_b32 s9, 0x8000")
        else:
            A("s_cselect_b32 s8, s8, 0\ns_movk_i32 s9, 0x4000\ns_cselect_b32 s9, 0x8000, s9\ns_cselect_b32 s5, -1, 0\ns_add_u32 s4, s4, s8\nv_and_b32 v24, s5, v24")
        A("s_lshl_b32 s5, s15, 7\ns_add_u32 s4, s4, s5")
        A("v_add3_u32 v20, v17, v24, s4\nv_add_u32 v21, s9, v20")
    loads = [f"global_load_dwordx4 v[{120 + 4 * i}:{123 + 4 * i}], v{20 + i}, s[38:39] {ld3}" for i in range(2)]
    if dsleep is not None:
        A("s_cmp_eq_u32 s3, 7")
        A("s_cbranch_scc1 L_dgo")
        A("s_barrier")
        A(f"s_sleep {dsleep}")
        A("L_dgo:")
    poll("L_poll3", loads, range(120, 128), 16)
    if dsleep is not None:
        A("s_cmp_eq_u32 s3, 7")
        A("s_cbranch_scc0 L_dgo2")
        A("s_barrier")
        A("L_dgo2:")
    stamp_at(6)
    for e in range(4):
        A(f"v_add_f32 v{120 + e}, v{120 + e}, v{124 + e}")
    scatter4(120)
    A(f"v_add_f32_dpp v120, v120, v120 row_ror:8 {FULL}")
    A("s_cmp_eq_u32 s3, 7")
    A("s_cbranch_scc0 L_dnoh")
    A("s_waitcnt lgkmcnt(0)")
    A("v_add_f32 v120, v120, v19")
    rbf(120)
    A("L_dnoh:")
    A("s_mov_b32 exec_lo, 0x00ff00ff\ns_mov_b32 exec_hi, 0x00ff00ff")
    A(f"ds_write_b32 v23, v120 offset:{L_B}")
    A("s_mov_b64 exec, -1")
    A("s_cmp_eq_u32 s3, 0")
    A("s_waitcnt lgkmcnt(0)")
    A("s_barrier")
    A("s_cbranch_scc0 L_ddone")
    for i in range(8):
        A(f"ds_read_b32 v{120 + i}, v22 offset:{L_B + 128 * i}")
    A("s_waitcnt lgkmcnt(0)")
    for i in range(2):
        A(f"v_pk_add_f32 v[{120 + 2 * i}:{121 + 2 * i}], v[{120 + 2 * i}:{121 + 2 * i}], v[{124 + 2 * i}:{125 + 2 * i}]")
    A("v_pk_add_f32 v[120:121], v[120:121], v[122:123]")
    A("v_add_f32 v120, v120, v121")
    if perturb:
        import struct
        kind, val = perturb
        h = hex(struct.unpack("<I", struct.pack("<f", val))[0])
        if kind == "add": A(f"v_add_f32 v120, {h}, v120")
        if kind == "mul": A(f"v_mul_f32 v120, {h}, v120")
        if kind == "one":
            A("s_cmp_eq_u32 s15, 0\ns_cselect_b32 s4, 1, 0\ns_mov_b32 s5, 0\ns_mov_b64 exec, s[4:5]")
            A(f"v_add_f32 v120, {h}, v120\ns_mov_b64 exec, -1")
    A(f"v_mov_b32_dpp v121, v120 quad_perm:[1,0,3,2] {FULL}")
    A("v_cvt_pk_bf16_f32 v120, v120, v121")
    A("s_mov_b64 exec, 0x55555555")
    A("global_store_dword v18, v120, s[34:35]" + (" " + outfl if outfl else ""))
    A("L_ddone:")
    stamp_at(7)
    stamp_store()
    A("s_endpgm")

    for _ in range(pad3):
        A("s_nop 0")
    A("L_service:")
    A("s_setprio 3")
    A(f"v_mov_b32 v98, {L_F}\nv_mov_b32 v99, 0")
    A("ds_write_b32 v98, v99")
    A("ds_write_b32 v98, v99 offset:8")
    A("ds_write_b32 v98, v99 offset:12")
    A("ds_write_b32 v98, v99 offset:20")
    if not qearly:
        A("s_waitcnt lgkmcnt(0)")
        A("s_barrier")
    for i in range(4):
        A(f"v_mov_b32 v{100 + i}, -1")
    roles()
    p1slot("s4")
    A("v_add_u32 v104, s4, v9")
    A("s_cmp_eq_u32 s7, 0")
    A("s_waitcnt lgkmcnt(0)")
    if "svcoff" in xp:
        A("s_barrier\ns_branch L_svcbar" if qearly else "s_branch L_svcbar")
    A("s_cbranch_scc0 L_qcleared")
    A(f"s_lshl_b32 s10, s60, 13\nv_add_u32 v3, s10, v9\nv_add_u32 v8, 0x1000, v3")
    for i in range(8):
        A(f"global_store_dwordx4 v{3 if i < 4 else 8}, v[100:103], s[38:39] offset:{1024 * (i & 3)} sc1")
    A(f"s_lshl_b32 s10, s60, 7\ns_add_u32 s10, s10, {WS_F}\nv_add_u32 v3, s10, v9")
    A(f"s_lshl_b32 s10, s6, 7\ns_add_u32 s10, s10, {WS_G}\nv_add_u32 v8, s10, v9")
    A("s_mov_b64 exec, 0xff")
    A("global_store_dwordx4 v3, v[100:103], s[38:39] sc1")
    A("global_store_dwordx4 v8, v[100:103], s[38:39] sc1")
    if adapt or rankpre:
        A(f"global_store_dwordx4 v8, v[100:103], s[38:39] offset:{WS_R - WS_G - 4096 + 4096 - 0 if WS_R - WS_G < 4096 else 0} sc1" if False else f"v_add_u32 v8, {WS_R - WS_G}, v8\nglobal_store_dwordx4 v8, v[100:103], s[38:39] sc1")
    if dup == "auto" and vpos:
        A(f"v_add_u32 v8, {WS_V - WS_R}, v8\nglobal_store_dwordx4 v8, v[100:103], s[38:39] sc1")
    A("s_mov_b64 exec, -1")
    A("L_qcleared:")
    if qearly:
        A("s_barrier")
    nyoung = 0
    if "noclear" not in xp and sclr is None:
        A("global_store_dwordx4 v104, v[100:103], s[38:39] sc1")
        A("global_store_dwordx4 v104, v[100:103], s[38:39] offset:1024 sc1")
        nyoung += 2
        A("s_cmp_lt_u32 s7, 14")
        A("s_cbranch_scc0 L_noclr3")
        A(f"s_lshl_b32 s4, s15, 11\ns_add_u32 s4, s4, {WS_P3}\nv_add_u32 v105, s4, v9")
        A("global_store_dwordx4 v105, v[100:103], s[38:39] sc1")
        A("global_store_dwordx4 v105, v[100:103], s[38:39] offset:1024 sc1")
        A("L_noclr3:")
        A("s_cmp_ge_u32 s7, 16")
        A("s_cbranch_scc0 L_noclr2")
        A(f"s_lshl_b32 s4, s13, 11\ns_lshl_b32 s5, s14, 8\ns_add_u32 s4, s4, s5\ns_add_u32 s4, s4, {WS_P2}\nv_add_u32 v105, s4, v9")
        A("s_mov_b64 exec, 0xffff")
        A("global_store_dwordx4 v105, v[100:103], s[38:39] sc1")
        A("s_mov_b64 exec, -1")
        A("L_noclr2:")
    stamp_at(1)
    A("v_lshlrev_b32 v96, 5, v0")
    A("s_cmp_eq_u32 s7, 0")
    A("s_cbranch_scc0 L_noqflag")
    A("s_lshl_b32 s4, s60, 5\nv_mov_b32 v104, s4\nv_mov_b32 v105, 1")
    A(f"s_waitcnt vmcnt({4 if ('noclear' not in xp and sclr is None) else 0})")
    A("s_mov_b64 exec, 1")
    A("global_store_dword v104, v105, s[36:37] sc1")
    A("s_mov_b64 exec, -1")
    A("L_noqflag:")
    ldswait("L_waitwq", 12, 8)

    def firstlook():
        A("s_mov_b64 exec, 0xff")
        A("global_load_dword v97, v96, s[36:37] sc1")
        A("s_mov_b64 exec, -1")
    if qearly:
        firstlook()
    A(f"ds_read_b128 v[4:7], v9 offset:{L_X}")
    A("s_waitcnt lgkmcnt(0)")
    stamp_at(2)
    X = list(range(8, 16))
    X[1] = 3
    for i in range(4):
        A(f"v_lshlrev_b32 v{X[2 * i]}, 16, v{4 + i}")
        A(f"v_and_b32 v{X[2 * i + 1]}, 0xffff0000, v{4 + i}")
    ln_stats(X, 16, 17, 18, 19, 20, list(range(22, 30)))
    ln_apply(X, 16, 17, 18, list(range(22, 30)))
    for i in range(4):
        A(f"v_cvt_pk_bf16_f32 v{4 + i}, v{X[2 * i]}, v{X[2 * i + 1]}")
    A(f"ds_write_b128 v9, v[4:7] offset:{L_HN}")
    A(f"s_and_b32 s4, s7, {KS - 1}\ns_lshl_b32 s4, s4, {10 - KL}\nv_lshrrev_b32 v17, 4, v0\nv_lshl_add_u32 v16, v17, 4, s4")
    A("v_bfe_u32 v18, v0, 2, 2\nv_lshl_add_u32 v17, v17, 3, v18\nv_lshlrev_b32 v17, 7, v17\nv_and_b32 v18, 3, v0\nv_lshl_add_u32 v17, v18, 3, v17")
    A("s_waitcnt lgkmcnt(0)")
    NK = NQ // 4
    for k in range(NK):
        A(f"ds_read_b128 v[{32 + 4 * k}:{35 + 4 * k}], v16 offset:{L_HN + 64 * k}")
    stamp_at(3)
    if not qearly:
        firstlook()
    for k in range(NK):
        A("s_waitcnt lgkmcnt(0)")
        b = 64 + 16 * (k & 1)
        for tau in range(4):
            for t in range(2):
                r = b + 4 * tau + 2 * t
                A(f"ds_read_b64_tr_b16 v[{r}:{r + 1}], v17 offset:{L_W + 4096 * k + 512 * t + 32 * tau}")
        if k > 0:
            bp = 64 + 16 * ((k - 1) & 1)
            for tau in range(4):
                c = "0" if k == 1 else f"v[{112 + 4 * tau}:{115 + 4 * tau}]"
                A(f"v_mfma_f32_16x16x32_bf16 v[{112 + 4 * tau}:{115 + 4 * tau}], v[{28 + 4 * k}:{31 + 4 * k}], v[{bp + 4 * tau}:{bp + 4 * tau + 3}], {c}")
    A("s_waitcnt lgkmcnt(0)")
    for tau in range(4):
        A(f"v_mfma_f32_16x16x32_bf16 v[{112 + 4 * tau}:{115 + 4 * tau}], v[{28 + 4 * NK}:{31 + 4 * NK}], v[{80 + 4 * tau}:{83 + 4 * tau}], v[{112 + 4 * tau}:{115 + 4 * tau}]")
    A(f"s_lshl_b32 s4, s60, {11 + KL}\ns_and_b32 s5, s7, {KS - 1}\ns_lshl_b32 s5, s5, 11\ns_add_u32 s4, s4, s5\ns_lshr_b32 s5, s7, {KL}\ns_lshl_b32 s5, s5, 8\ns_add_u32 s4, s4, s5")
    A("v_lshl_add_u32 v17, v0, 2, s4")
    for tau in range(1, 4):
        A(f"v_mov_b32_dpp v112, v{112 + 4 * tau} quad_perm:[0,1,2,3] row_mask:{hex(1 << tau)} bank_mask:0xf")
    for i in (1, 2, 3):
        A(f"v_mov_b32_dpp v{112 + i}, v112 quad_perm:[{i},{i},{i},{i}] {FULL}")
    A("L_qdone:")
    A(f"s_lshl_b32 s4, s60, 5\ns_add_u32 s4, s4, s7\ns_lshl_b32 s4, s4, 2\ns_add_u32 s4, s4, {WS_F}\nv_mov_b32 v18, s4")
    A(f"s_lshl_b32 s4, s6, {11 + KL}\nv_add_u32 v19, s4, v9\nv_add_u32 v20, 0x1000, v19")
    A("s_getreg_b32 s62, hwreg(HW_REG_XCC_ID, 0, 4)\nv_mov_b32 v21, s62")
    A("s_lshl_b32 s4, 1, s60\ns_lshl_b32 s5, 1, s6\ns_or_b32 s4, s4, s5")
    if adapt:
        A(f"s_add_u32 s5, s7, {qrot}\ns_and_b32 s5, s5, 7\ns_lshl_b32 s5, 1, s5\ns_or_b32 s4, s4, s5")
    A("s_mov_b32 s5, 0")
    stamp_at(4)
    if "svc1" in xp: A("s_branch L_svcbar2")
    A("L_pollf:")
    A("s_waitcnt vmcnt(0) lgkmcnt(0)")
    A("v_cmp_ne_u32 vcc, 1, v97")
    A("s_and_b32 s57, vcc_lo, s4")
    A("s_cbranch_scc0 L_pollf_ok")
    A(f"s_add_u32 s5, s5, 1\ns_cmp_lt_u32 s5, {SPIN_MAX}\ns_cbranch_scc0 L_pollf_ok")
    A("s_sleep 8")
    A("s_mov_b64 exec, 0xff")
    A("global_load_dword v97, v96, s[36:37] sc1")
    A("s_mov_b64 exec, -1")
    A("s_branch L_pollf")
    A("L_pollf_ok:")
    if KS == 2:
        A("s_cmp_lt_u32 s7, 16")
        A("s_cbranch_scc0 L_noqpub")
    A("s_mov_b32 exec_lo, 0x11111111\ns_mov_b32 exec_hi, 0x11111111")
    A("global_store_dwordx4 v17, v[112:115], s[38:39] sc1")
    A("L_noqpub:")
    A("s_mov_b64 exec, 1")
    A("global_store_dword v18, v21, s[38:39] sc1")
    A("s_mov_b64 exec, -1")
    stamp_at(5)
    if "svc2" in xp: A("s_branch L_svcbar2")
    if warm:
        if warm == "one":
            A("s_cmp_eq_u32 s7, 1")
            A("s_cbranch_scc0 L_nowarm")
        A("s_getpc_b64 s[48:49]")
        A("L_pc:")
        A(f"s_sub_u32 s48, s48, L_pc-{NAME}_kernel\ns_subb_u32 s49, s49, 0")
        A(f"s_mov_b32 s4, L_codeend-{NAME}_kernel-16\nv_mov_b32 v2, v9\ns_mov_b32 s5, 0")
        A("L_warm:")
        A("v_min_u32 v3, s4, v2")
        A("global_load_dwordx4 v[128:131], v3, s[48:49]")
        A("v_add_u32 v2, 1024, v2\ns_add_u32 s5, s5, 1024\ns_cmp_lt_u32 s5, s4\ns_cbranch_scc1 L_warm")
        A("L_nowarm:")
    if adapt:
        A(f"s_and_b32 s4, s7, 7\ns_lshl_b32 s4, s4, 7\ns_add_u32 s4, s4, {WS_R}\nv_mov_b32 v26, s4\nv_mov_b32 v27, 1")
    ldswait("L_waitpos", 8)
    if adapt:
        A("s_mov_b64 exec, 1")
        A("global_atomic_add v28, v26, v27, s[38:39] sc0 sc1")
        A("s_mov_b64 exec, -1")
    poll("L_pollq", [f"global_load_dwordx4 v[{32 + 4 * i}:{35 + 4 * i}], v{19 + (i >> 2)}, s[38:39] offset:{1024 * (i & 3)} sc1" for i in range(2 * KS)],
         range(32, 32 + 8 * KS), 16, slp=qsleep)
    stamp_at(6)
    for e in range(8):
        A(f"v_add_f32 v{32 + e}, v{32 + e}, v{40 + e}")
        if KS == 4:
            A(f"v_add_f32 v{48 + e}, v{48 + e}, v{56 + e}")
    if KS == 4:
        for e in range(8):
            A(f"v_add_f32 v{32 + e}, v{32 + e}, v{48 + e}")
    for e in range(4):
        A(f"v_cvt_pk_bf16_f32 v{40 + e}, v{32 + 2 * e}, v{33 + 2 * e}")
    A("v_lshlrev_b32 v16, 3, v0")
    A(f"ds_write_b64 v16, v[40:41] offset:{L_Q}")
    A(f"ds_write_b64 v16, v[42:43] offset:{L_Q + 512}")
    if adapt:
        A("v_readfirstlane_b32 s4, v28")
        A("s_add_u32 s4, s4, 2")
        A("v_mov_b32 v99, s4")
    else:
        A("v_mov_b32 v99, 1")
    A("s_waitcnt lgkmcnt(0)")
    A("ds_write_b32 v98, v99")
    stamp_at(7)
    if "svc4" in xp: A("s_branch L_svcbar2")
    A("s_mov_b32 s5, 0")
    A("L_pollf2:")
    A("s_mov_b64 exec, 0xff")
    A("global_load_dword v97, v96, s[36:37] sc1")
    A("s_waitcnt vmcnt(0)")
    A("v_cmp_ne_u32 vcc, 1, v97")
    A("s_mov_b64 exec, -1")
    A("s_cbranch_vccz L_pollf2_ok")
    A(f"s_add_u32 s5, s5, 1\ns_cmp_lt_u32 s5, {SPIN_MAX}\ns_cbranch_scc1 L_pollf2")
    A("L_pollf2_ok:")
    stamp_at(8)
    A(f"v_add_u32 v19, {WS_F}, v9")
    poll("L_pollall", ["global_load_dwordx4 v[32:35], v19, s[38:39] sc1"], range(32, 36), 16, slp=16)
    stamp_at(9)
    A("v_xor_b32 v32, v32, v21\nv_xor_b32 v33, v33, v21\nv_xor_b32 v34, v34, v21\nv_xor_b32 v35, v35, v21")
    A("v_or_b32 v32, v32, v33\nv_or3_b32 v32, v32, v34, v35")
    A("v_cmp_ne_u32 vcc, 0, v32")
    A("s_lshl_b32 s4, s60, 3\ns_lshr_b64 s[4:5], vcc, s4\ns_and_b32 s4, s4, 0xff")
    A("s_cselect_b32 s4, 0, 1" if local and "far" not in xp else "s_mov_b32 s4, 0")
    A("L_svcend:")
    A("s_mov_b32 s63, s4")
    if dup == "auto":
        A(f"s_andn2_b32 s8, s7, 4\ns_lshl_b32 s9, s6, 5\ns_add_u32 s8, s8, s9\ns_lshl_b32 s8, s8, 11\ns_and_b32 s9, s7, 4\ns_lshl_b32 s9, s9, 8")
        A(f"s_add_u32 s8, s8, s9\ns_add_u32 s8, s8, {WS_P1}\ns_add_u32 s12, s38, s8\ns_addc_u32 s13, s39, 0\ns_mov_b32 s10, 0")
        A("s_waitcnt lgkmcnt(0)")
        for t in range(ntr):
            A("s_mov_b32 s8, 0\ns_mov_b32 s9, 0")
            o0, o1 = 128 * t, 128 * t + 8192
            A(f"s_load_dword s9, s[12:13], {o1}\ns_load_dword s8, s[12:13], {o0}" if t & 1 else f"s_load_dword s8, s[12:13], {o0}\ns_load_dword s9, s[12:13], {o1}")
            A("s_waitcnt lgkmcnt(1)")
            A("s_sub_u32 s11, s9, s8")
            A("s_waitcnt lgkmcnt(0)")
            A("s_add_u32 s10, s10, s11")
        if vpos:
            A("s_cmp_eq_u32 s63, 1")
            A("s_cbranch_scc0 L_novote")
            A(f"s_lshl_b32 s8, s6, 7\ns_add_u32 s8, s8, {WS_V}\nv_and_b32 v16, 31, v0\nv_lshl_add_u32 v16, v16, 2, s8")
            A("s_lshl_b32 s9, s7, 2\ns_add_u32 s8, s8, s9\nv_mov_b32 v17, s8\ns_add_u32 s10, s10, 16\nv_mov_b32 v18, s10")
            A("s_mov_b64 exec, 1\nglobal_store_dword v17, v18, s[38:39]\ns_mov_b64 exec, -1")
            ldswait("L_waitv", 20)
            A("global_load_dword v18, v16, s[38:39] sc1")
            A("s_waitcnt vmcnt(0)")
            A("v_cmp_lt_i32 vcc, 16, v18")
            A("s_bcnt1_i32_b64 s10, vcc")
            A("v_cmp_gt_u32 vcc, 16, v18")
            A("s_bcnt1_i32_b64 s8, vcc")
            A("s_sub_u32 s10, s10, s8")
            A("L_novote:")
        A("s_cmp_lt_i32 s10, 0\ns_cselect_b32 s10, 0x2000, 0\nv_mov_b32 v99, s10")
        A("ds_write_b32 v98, v99 offset:16")
        roles()
    A("v_mov_b32 v99, s63")
    A("ds_write_b32 v98, v99 offset:4")
    A(f"s_lshl_b32 s4, s6, 7\ns_add_u32 s4, s4, {WS_G}\nv_and_b32 v16, 31, v0\nv_lshl_add_u32 v16, v16, 2, s4")
    A("s_lshl_b32 s5, s7, 2\ns_add_u32 s4, s4, s5\nv_mov_b32 v17, s4\nv_mov_b32 v18, 0")
    A(f"s_and_b32 s4, s7, {0 if rankpre else 15}\ns_mul_i32 s4, s4, {32 * 3584}\ns_mul_i32 s5, s6, 448\ns_andn2_b32 s5, s5, 127\ns_add_u32 s4, s4, s5")
    A("v_lshrrev_b32 v21, 5, v0\nv_mul_u32_u24 v21, 3584, v21\nv_and_b32 v22, 31, v0\nv_lshl_add_u32 v21, v22, 4, v21\nv_add_u32 v21, s4, v21")
    if rankpre:
        A(f"s_lshl_b32 s4, s6, 7\ns_add_u32 s4, s4, {WS_R}\nv_mov_b32 v26, s4\nv_mov_b32 v27, 1")
        A("s_lshl_b32 s4, s7, 1\ns_sub_u32 s4, s4, 1\nv_mov_b32 v28, 0")
    A("v_lshrrev_b32 v22, 1, v0\nv_mul_u32_u24 v22, 3584, v22\nv_and_b32 v23, 1, v0\nv_lshl_add_u32 v22, v23, 4, v22\ns_lshl_b32 s4, s15, 5\nv_add_u32 v22, s4, v22")
    A("s_lshl_b32 s4, s15, 14\nv_add_u32 v23, s4, v9")
    A("s_waitcnt lgkmcnt(0)")
    A("s_barrier")
    A("s_barrier")
    A("s_barrier")
    assert gate and dsplit

    def wloop(label, n, lds, body):
        A(f"s_mov_b32 s5, {n}")
        if lds is not None:
            A(f"s_mov_b32 m0, {lds}")
        A(f"{label}:")
        body()
        A(f"s_sub_u32 s5, s5, 1\ns_cmp_lg_u32 s5, 0\ns_cbranch_scc1 {label}")

    def b_pre():
        A("global_load_dwordx4 v[32:35], v21, s[28:29]")
        A("global_load_dwordx4 v[32:35], v21, s[30:31]")
        A("v_add_u32 v21, 7168, v21")

    def b_down():
        A(f"global_load_lds_dwordx4 v23, s[32:33]{wntf}")
        A("v_add_u32 v23, 1024, v23\ns_add_u32 m0, m0, 1024")

    def b_gu():
        A("global_load_lds_dwordx4 v22, s[28:29]")
        A("s_add_u32 m0, m0, 16384")
        A("global_load_lds_dwordx4 v22, s[30:31]")
        A(f"v_add_u32 v22, {32 * 3584}, v22\ns_sub_u32 m0, m0, {16384 - 1024}")

    def only(cond, label, body):
        A(cond)
        A(f"s_cbranch_scc0 {label}")
        body()
        A(f"{label}:")
    after_pre = 0
    for k, step in enumerate(pm):
        if step in "SgG" and not gsync:
            continue
        if step in "PDU" and "now" in xp:
            continue
        if step == "D" and dlate and not dlast:
            continue
        if step == "S":
            def sig():
                A("s_mov_b64 exec, 1\nglobal_store_dword v17, v18, s[38:39]")
                if rankpre:
                    only("s_cmp_lt_u32 s7, 16", "L_norank", lambda: A("global_atomic_add v28, v26, v27, s[38:39] sc0 sc1"))
                A("s_mov_b64 exec, -1")
            only("s_cmp_eq_u32 s63, 1", "L_nosig", sig)
        elif step in "12":
            A("s_barrier")

        elif step == "g":
            only("s_cmp_eq_u32 s63, 1", f"L_nog{k}", lambda: A("global_load_dword v19, v16, s[38:39] sc1"))
        elif step == "G":
            def gwait():
                A("s_mov_b32 s5, 0")
                A("L_pollg:")
                A("s_waitcnt vmcnt(0)")
                A("v_cmp_eq_u32 vcc, -1, v19")
                if gmiss:
                    A(f"s_bcnt1_i32_b32 s4, vcc_lo\ns_cmp_le_u32 s4, {gmiss}\ns_cbranch_scc1 L_gok")
                else:
                    A("s_cbranch_vccz L_gok")
                A(f"s_add_u32 s5, s5, 1\ns_cmp_lt_u32 s5, {SPIN_MAX}\ns_cbranch_scc0 L_gok")
                A(f"s_sleep {gsleep}")
                A("global_load_dword v19, v16, s[38:39] sc1")
                A("s_branch L_pollg")
            only("s_cmp_eq_u32 s63, 1", "L_gok", gwait)
            stamp_at(10)
        elif step == "P":
            if pref and not rankpre:
                only("s_cmp_lt_u32 s7, 16", "L_nopre", lambda: wloop("L_wpre", 16, None, b_pre))
            if pref and rankpre:
                def pre():
                    A("s_waitcnt vmcnt(0)")
                    A("v_readfirstlane_b32 s8, v28")
                    A("s_add_u32 s8, s8, 1\ns_mul_i32 s9, s8, 3\ns_lshl_b32 s4, s8, 1\ns_add_u32 s4, s4, 8")
                    A("s_cmp_lt_u32 s8, 8\ns_cselect_b32 s9, s9, s4\ns_cselect_b32 s5, 24, 16")
                    A("s_cmp_lt_u32 s8, 12\ns_cselect_b32 s5, s5, 0")
                    A("s_lshl_b32 s4, s7, 1\ns_cmp_eq_u32 s63, 1\ns_cselect_b32 s9, s9, s4\ns_cselect_b32 s5, s5, 16")
                    A(f"s_mul_i32 s9, s9, {16 * 3584}\nv_add_u32 v21, s9, v21")
                    A("s_cmp_eq_u32 s5, 0\ns_cbranch_scc1 L_nopre")
                    A("L_wpre:")
                    b_pre()
                    A("s_sub_u32 s5, s5, 1\ns_cmp_lg_u32 s5, 0\ns_cbranch_scc1 L_wpre")
                    A("s_waitcnt vmcnt(30)")
                only("s_cmp_lt_u32 s7, 16", "L_nopre", pre)
            after_pre = 0
        elif step == "D":
            A("s_waitcnt vmcnt(46)")
            only("s_cmp_lt_u32 s7, 14", "L_nodown", lambda: wloop("L_wdown", 16, L_W + 32768, b_down))
            after_pre = 16
        elif step == "w":
            A(f"s_waitcnt vmcnt({after_pre})")
            stamp_at(11)
        elif step == "z":
            A(f"s_sleep {cdelay}")
        elif step == "U":
            only("s_cmp_lt_u32 s7, 14", "L_nogu", lambda: wloop("L_wgu", 16, L_W, b_gu))
    only("s_cmp_lt_u32 s7, 14", "L_wdone", lambda: A("s_waitcnt vmcnt(16)\ns_barrier" if dlast else "s_barrier" if dlate else "s_waitcnt vmcnt(32)\ns_barrier"))
    A("s_waitcnt vmcnt(0)")
    stamp_at(12)
    if stamps:
        A("s_waitcnt lgkmcnt(0)")
        for i in range(16):
            A(f"v_writelane_b32 v4, s{64 + 2 * i}, {i}")
        A(f"v_lshlrev_b32 v5, 2, v0\nds_write_b32 v5, v4 offset:{L_G}\ns_waitcnt lgkmcnt(0)")
    A("s_barrier")
    A("s_endpgm")
    A("L_svcbar:")
    A("L_svcbar2:")
    A("v_mov_b32 v99, 1")
    A("ds_write_b32 v98, v99")
    A("s_mov_b32 s4, 0")
    A("s_branch L_svcend")
    A("L_end:")
    A("s_endpgm")
    A("L_codeend:")

    if jitter is not None:
        import random
        rnd = random.Random(jitter)
        C2 = []
        k = 0
        for blk in C:
            for ln in blk.split("\n"):
                if ln.startswith(("s_barrier", "global_store", "global_atomic")) and rnd.random() < 0.7:
                    k += 1
                    C2.append(f"s_cselect_b32 s91, 1, 0\ns_mul_i32 s90, s2, {rnd.randrange(3, 99, 2)}\ns_add_u32 s90, s90, s3\ns_mul_i32 s90, s90, {rnd.randrange(1001, 99999, 2)}")
                    C2.append(f"s_lshr_b32 s90, s90, 5\ns_and_b32 s90, s90, {rnd.choice((3, 7, 15, 63))}\ns_cmp_eq_u32 s90, 1\ns_cbranch_scc0 L_jit{k}\ns_sleep {rnd.choice((2, 10, 40, 120))}\nL_jit{k}:\ns_cmp_eq_u32 s91, 1")
                C2.append(ln)
        C = C2
    body = fix(C)
    out = HEADER
    out += f"; @launch grid=(256,1,1) block=(576,1,1) lds={LDS_BYTES}\n"
    out += '.amdgcn_target "amdgcn-amd-amdhsa--gfx950"\n.text\n'
    out += f".globl {NAME}_kernel\n.p2align 8\n.type {NAME}_kernel,@function\n{NAME}_kernel:\n"
    out += "\n".join(("" if l.endswith(":") else "    ") + l for l in body) + "\n"
    out += f""".section .rodata,"a"
.p2align 6
.amdhsa_kernel {NAME}_kernel
  .amdhsa_next_free_vgpr 168
  .amdhsa_next_free_sgpr 96
  .amdhsa_accum_offset 168
  .amdhsa_group_segment_fixed_size 0
  .amdhsa_kernarg_size 96
  .amdhsa_user_sgpr_count 2
  .amdhsa_user_sgpr_kernarg_segment_ptr 1
  .amdhsa_system_sgpr_workgroup_id_x 1
  .amdhsa_float_denorm_mode_32 3
.end_amdhsa_kernel
"""
    return out


if __name__ == "__main__":
    cfg = eval("dict(" + (sys.argv[2] if len(sys.argv) > 2 else "") + ")")
    open(sys.argv[1], "w").write(gen(**cfg))
```

```python
import sys
from asmlib import fix, VM

NAME = "sequential_preLN__gqa_block_cached__glu_gated_geglu__decode"
HEADER = open("cdna_kernels/" + NAME + ".s.ref").read().split("; Override launch")[0]

WS_Q = 0x0
WS_F = 0x10000
WS_G = 0x11000
WS_R = 0x12000
WS_V = 0x13000
WS_P1 = 0x20000
P1_STRIDE = 2048
WS_P2 = 0xB0000
WS_P3 = 0xC0000
WS_STAMP = 0x200000
L_Q = 0
L_X = 1024
L_M = 2048
L_L = 2176
L_F = 2304
L_B = 2560
L_H = 4608
L_HN = 6656
L_G = 7680
L_W = 8704
L_K = L_W + 49152
KRING = 3
VRING = 5
LDS_BYTES = L_K + 8 * KRING * 4096

LOG2E = 0x3FB8AA3B
SCALE = 0x3DB504F3
FULL = "row_mask:0xf bank_mask:0xf"
SPIN_MAX = 200000


def gen(D=3, D2=3, nt=True, inter="global", stamps=False, wnt=True, warm='one', sleep=1, qsleep=4,
        xp=(), masked=True, qrot=4, local=True, qpos=18, pref=True, fold=True, bpos=None, bwait=False, ppos=None, kfirst=True, wb=False, pad1=0, pad2=0, pad3=0, gsync=True, gsleep=2, cdelay=0, opos=None, enc=None, dsplit=True, early=False, gate=True, sclr='after', qearly=True, lpos='b1b', order=None, pm='Sg2GPU', dsleep=None, cfast=False, adapt=None, d2from=32, D3=None, d3from=56, split=False, dup='auto', dup3=True, rankpre=True, gmiss=16, ntr=2, vpos=44, dlate=True, outfl='', jitter=None, p1plain=False, clrpos=3, wqfirst=False, dseq=None, NB=3, bar1c=True, lp=('c', 'c', 'c', 'c'), dlast=False, csd=False, c4=True, b4=False, bprep=True, txor=None, clrbal=True, crot=0):
    C = []
    A = C.append
    if dlast:
        pm = pm + "D"
    ntf = " nt" if nt else ""
    wntf = " nt" if wnt else ""
    D2 = D if D2 is None else D2
    hmap = "xcd"; KS = 4; ld2 = ld3 = st2 = st3 = "sc1"; peel = False; late4 = True; cpos = ("end",) * 6; fastln = True; perturb = None
    bpos = (D + max(3, clrpos) if kfirst else D) if bpos is None else bpos
    KL = KS.bit_length() - 1
    NQ = 64 // KS
    QR = 2048 * KS

    def stamp_at(k):
        if stamps:
            A(f"s_memrealtime s[{64 + 2 * k}:{65 + 2 * k}]")

    def stamp_store():
        if not stamps:
            return
        A("s_waitcnt lgkmcnt(0)")
        if stamps == "dbg":
            lab = f"L_dbg{len(C)}"
            A("s_and_b32 s4, s3, 7\ns_cmp_eq_u32 s4, 0")
            A(f"s_cbranch_scc0 {lab}")
            A("s_not_b32 s64, s64")
            A("s_cmp_eq_u32 s3, 8")
            sel0 = (0, 1, 2, 4, 5, 6, 7)
            sel8 = (2, 4, 5, 6, 7, 8, 9)
            A("s_mov_b64 exec, -1")
            for i in range(7):
                A(f"s_cselect_b32 s4, s{64 + 2 * sel8[i]}, s{64 + 2 * sel0[i]}")
                A(f"v_writelane_b32 v4, s4, {i}")
            A("s_lshl_b32 s4, s3, 2\ns_add_u32 s4, s4, 4\nv_lshl_add_u32 v1, v0, 2, s4")
            A("s_mov_b64 exec, 0x7f")
            A("global_atomic_umax v1, v4, s[36:37] sc1")
            A(f"{lab}:")
            return
        lab = f"L_st{len(C)}"
        A(f"s_cmp_eq_u32 s3, 1\ns_cbranch_scc0 {lab}")
        A(f"s_mov_b64 exec, 0xffff\nv_lshlrev_b32 v5, 2, v0\nds_read_b32 v4, v5 offset:{L_G}")
        A(f"s_lshl_b32 s4, s2, 4\ns_add_u32 s4, s4, 8\ns_lshl_b32 s4, s4, 6\ns_add_u32 s4, s4, {WS_STAMP}\nv_add_u32 v5, s4, v5")
        A("s_waitcnt lgkmcnt(0)\nglobal_store_dword v5, v4, s[38:39]\ns_nop 1")
        A(f"{lab}:")
        A("s_mov_b64 exec, 1")
        A("s_lshl_b32 s4, s2, 4\ns_add_u32 s4, s4, s3\ns_lshl_b32 s4, s4, 6")
        A(f"s_add_u32 s4, s4, {WS_STAMP}")
        A("v_mov_b32 v1, s4")
        A("s_getreg_b32 s94, hwreg(HW_REG_XCC_ID)")
        A("s_lshl_b32 s92, s62, 16\ns_add_u32 s92, s92, s59\ns_lshl_b32 s4, s49, 11\ns_add_u32 s92, s92, s4")
        for q in range(4):
            for i in range(4):
                A(f"v_mov_b32 v{4 + i}, s{64 + 2 * (4 * q + i)}")
            A(f"global_store_dwordx4 v1, v[4:7], s[38:39] offset:{16 * q}")
            A("s_nop 1")

    def rowsum(a, op="add"):
        for s in (8, 4, 2, 1):
            A(f"v_{op}_f32_dpp v{a}, v{a}, v{a} row_ror:{s} {FULL}")

    def xrow(a, t, op="add"):
        A(f"v_mov_b32 v{t}, v{a}")
        A(f"v_permlane16_swap_b32 v{a}, v{t}")
        A(f"v_{op}_f32 v{a}, v{a}, v{t}")
        A(f"v_mov_b32 v{t}, v{a}")
        A(f"v_permlane32_swap_b32 v{a}, v{t}")
        A(f"v_{op}_f32 v{a}, v{a}, v{t}")

    def scatter4(r):
        A(f"v_permlane32_swap_b32 v{r}, v{r + 1}\nv_permlane32_swap_b32 v{r + 2}, v{r + 3}")
        A(f"v_add_f32 v{r}, v{r}, v{r + 1}\nv_add_f32 v{r + 2}, v{r + 2}, v{r + 3}")
        A(f"v_permlane16_swap_b32 v{r}, v{r + 2}")
        A(f"v_add_f32 v{r}, v{r}, v{r + 2}")

    def sigma(dst, t):
        A(f"v_bfe_u32 v{dst}, v0, 4, 1\nv_lshrrev_b32 v{t}, 5, v0\nv_lshl_add_u32 v{dst}, v{dst}, 1, v{t}")

    def rbf(a):
        A(f"v_cvt_pk_bf16_f32 v{a}, v{a}, v{a}")
        A(f"v_lshlrev_b32 v{a}, 16, v{a}")

    def ln_stats(vals, mean, den, rden, t0, t1, tmp):
        A(f"v_add_f32 v{t0}, v{vals[0]}, v{vals[1]}")
        A(f"v_add_f32 v{t1}, v{vals[2]}, v{vals[3]}")
        A(f"v_add_f32 v{mean}, v{vals[4]}, v{vals[5]}")
        A(f"v_add_f32 v{den}, v{vals[6]}, v{vals[7]}")
        A(f"v_add_f32 v{t0}, v{t0}, v{t1}")
        A(f"v_add_f32 v{mean}, v{mean}, v{den}")
        A(f"v_add_f32 v{mean}, v{mean}, v{t0}")
        rowsum(mean)
        xrow(mean, t0)
        A(f"v_mul_f32 v{mean}, 0x3b000000, v{mean}")
        for i in range(8):
            A(f"v_sub_f32 v{tmp[i]}, v{vals[i]}, v{mean}")
        A(f"v_mul_f32 v{den}, v{tmp[0]}, v{tmp[0]}")
        A(f"v_mul_f32 v{t1}, v{tmp[1]}, v{tmp[1]}")
        for i in range(2, 8, 2):
            A(f"v_fmac_f32 v{den}, v{tmp[i]}, v{tmp[i]}")
            A(f"v_fmac_f32 v{t1}, v{tmp[i + 1]}, v{tmp[i + 1]}")
        A(f"v_add_f32 v{den}, v{den}, v{t1}")
        rowsum(den)
        xrow(den, t0)
        A(f"v_mul_f32 v{den}, 0x3b000000, v{den}")
        A(f"v_cvt_pk_bf16_f32 v{t0}, v{mean}, v{den}")
        A(f"v_lshlrev_b32 v{mean}, 16, v{t0}")
        A(f"v_and_b32 v{den}, 0xffff0000, v{t0}")
        A(f"v_add_f32 v{den}, 0x3727c5ac, v{den}")
        rbf(den)
        A(f"v_sqrt_f32 v{t0}, v{den}")
        A(f"v_rsq_f32 v{t1}, v{den}")
        A(f"v_fma_f32 v{den}, -v{t0}, v{t0}, v{den}")
        A(f"v_mul_f32 v{t1}, 0.5, v{t1}")
        A(f"v_fma_f32 v{den}, v{den}, v{t1}, v{t0}")
        rbf(den)
        A(f"v_rcp_f32 v{rden}, v{den}")

    def ln_apply(xs, mean, den, rden, ts):
        for x in xs:
            A(f"v_sub_f32 v{x}, v{x}, v{mean}")
        for x in xs:
            A(f"v_cvt_pk_bf16_f32 v{x}, v{x}, v{x}")
        for x in xs:
            A(f"v_lshlrev_b32 v{x}, 16, v{x}")
        for x, t in zip(xs, ts):
            A(f"v_mul_f32 v{t}, v{x}, v{rden}")
        for x, t in zip(xs, ts):
            A(f"v_fma_f32 v{x}, -v{t}, v{den}, v{x}")
        for x, t in zip(xs, ts):
            A(f"v_fma_f32 v{x}, v{x}, v{rden}, v{t}")

    def ln2():
        A("v_mov_b32 v133, v132")
        for i in range(4):
            A(f"v_pk_add_f32 v[{124 + 2 * i}:{125 + 2 * i}], v[{124 + 2 * i}:{125 + 2 * i}], v[132:133] neg_lo:[0,1] neg_hi:[0,1]")
        A("v_pk_add_f32 v[134:135], v[124:125], v[126:127]")
        A("v_pk_mul_f32 v[136:137], v[124:125], v[124:125]")
        A("v_pk_add_f32 v[138:139], v[128:129], v[130:131]")
        A("v_pk_fma_f32 v[136:137], v[126:127], v[126:127], v[136:137]")
        A("v_pk_add_f32 v[134:135], v[134:135], v[138:139]")
        A("v_pk_fma_f32 v[136:137], v[128:129], v[128:129], v[136:137]")
        A("v_add_f32 v16, v134, v135")
        A("v_pk_fma_f32 v[136:137], v[130:131], v[130:131], v[136:137]")
        A("v_add_f32 v17, v136, v137")
        for m in ("row_shr:1", "row_shr:2", "row_shr:4", "row_shr:8"):
            A(f"v_add_f32_dpp v16, v16, v16 {m} {FULL} bound_ctrl:0")
            A(f"v_add_f32_dpp v17, v17, v17 {m} {FULL} bound_ctrl:0")
        for m in ("row_bcast:15 row_mask:0xa", "row_bcast:31 row_mask:0xc"):
            A(f"v_add_f32_dpp v16, v16, v16 {m} bank_mask:0xf")
            A(f"v_add_f32_dpp v17, v17, v17 {m} bank_mask:0xf")
        A("v_readlane_b32 s4, v16, 63")
        A("v_readlane_b32 s5, v17, 63")
        A("v_mov_b32 v18, 0x3b000000")
        A("v_mul_f32 v16, s4, v18")
        A("v_mul_f32 v17, s5, v18")
        A("v_fma_f32 v17, -v16, v16, v17")
        A("v_add_f32 v16, v16, v132")
        A("v_max_f32 v17, 0, v17")
        A("v_cvt_pk_bf16_f32 v18, v16, v17")
        A("v_and_b32 v17, 0xffff0000, v18")
        A("v_lshlrev_b32 v16, 16, v18")
        A("v_add_f32 v17, 0x3727c5ac, v17")
        A("v_sub_f32 v120, v120, v16")
        A("v_cvt_pk_bf16_f32 v18, v120, v17")
        A("v_and_b32 v17, 0xffff0000, v18")
        A("v_sqrt_f32 v17, v17")
        A("v_lshlrev_b32 v120, 16, v18")
        rbf(17)
        A("v_rcp_f32 v18, v17")
        A("v_mul_f32 v19, v120, v18")
        A("v_fma_f32 v120, -v19, v17, v120")
        A("v_fma_f32 v120, v120, v18, v19")

    def poll(label, loads, regs, t, slp=None, between=None):
        slp = sleep if slp is None else slp
        A("s_mov_b32 s59, 0")
        if between:
            for l in loads:
                A(l)
            between()
            A(f"s_branch {label}_chk")
        A(f"{label}:")
        for l in loads:
            A(l)
        if between:
            A(f"{label}_chk:")
        A("s_waitcnt vmcnt(0)")
        regs = list(regs)
        if len(regs) == 1:
            t = regs[0]
            rest = []
        elif len(regs) % 2 == 0:
            A(f"v_max_u32 v{t}, v{regs[0]}, v{regs[1]}")
            rest = regs[2:]
        else:
            A(f"v_max3_u32 v{t}, v{regs[0]}, v{regs[1]}, v{regs[2]}")
            rest = regs[3:]
        for i in range(0, len(rest), 2):
            A(f"v_max3_u32 v{t}, v{t}, v{rest[i]}, v{rest[i + 1]}")
        A(f"v_cmp_eq_u32 vcc, -1, v{t}")
        A(f"s_branch {label}_ok" if ("svc3" in xp and label in ("L_pollq", "L_pollall")) else f"s_cbranch_vccz {label}_ok")
        A("s_add_u32 s59, s59, 1")
        A(f"s_cmp_lt_u32 s59, {SPIN_MAX}")
        A(f"s_cbranch_scc0 {label}_ok")
        if masked:
            A("s_mov_b64 exec, vcc")
        if slp:
            A(f"s_sleep {slp}")
        A(f"s_branch {label}")
        A(f"{label}_ok:")
        if masked:
            A("s_mov_b64 exec, -1")

    def ldswait(label, off, val=None):
        A(f"v_mov_b32 v24, {L_F}\ns_mov_b32 s5, 0")
        A(f"{label}:")
        A(f"ds_read_b32 v25, v24 offset:{off}")
        A("s_waitcnt lgkmcnt(0)")
        A("v_cmp_ne_u32 vcc, 0, v25" if val is None else f"v_cmp_eq_u32 vcc, {val}, v25")
        A(f"s_cbranch_vccnz {label}_ok")
        A(f"s_add_u32 s5, s5, 1\ns_cmp_lt_u32 s5, {SPIN_MAX * 64}\ns_cbranch_scc0 {label}_ok")
        A("s_sleep 1")
        A(f"s_branch {label}")
        A(f"{label}_ok:")

    def store_quad(val, addr, lo="0x11111111", hi="0x11111111", fl="sc1", addr2=None):
        for i in (1, 2, 3):
            A(f"v_mov_b32_dpp v{val + i}, v{val} quad_perm:[{i},{i},{i},{i}] {FULL}")
        A(f"s_mov_b32 exec_lo, {lo}\ns_mov_b32 exec_hi, {hi}")
        A(f"global_store_dwordx4 v{addr}, v[{val}:{val + 3}], s[38:39] {fl}")
        if addr2 is not None:
            A(f"global_store_dwordx4 v{addr2}, v[{val}:{val + 3}], s[38:39] {fl}")
        A("s_mov_b64 exec, -1")

    def roles():
        brot = 0 if local else 4
        A(f"s_add_u32 s61, s6, {brot}\ns_and_b32 s61, s61, 7")
        A("s_bfe_u32 s13, s7, 0x10003\ns_lshl_b32 s4, s61, 1\ns_add_u32 s13, s13, s4")
        A("s_and_b32 s14, s7, 7")
        A("s_mul_i32 s15, s6, 14\ns_add_u32 s15, s15, s7")

    def rowoff(dst, row, tmp, on=True):
        if dup is None or not on:
            A(f"s_lshl_b32 {dst}, {row}, 11")
        else:
            A(f"s_lshr_b32 {tmp}, {row}, 2\ns_lshl_b32 {tmp}, {tmp}, 14\ns_and_b32 {dst}, {row}, 3\ns_lshl_b32 {dst}, {dst}, 11\ns_add_u32 {dst}, {dst}, {tmp}")

    def mycopy(dst):
        if dup == "auto":
            A(f"s_mov_b32 {dst}, s49")
        else:
            A(f"s_lshr_b32 {dst}, s6, 2\ns_xor_b32 {dst}, {dst}, {dup}\ns_lshl_b32 {dst}, {dst}, 13")

    def p1slot(dst):
        A(f"s_lshl_b32 {dst}, s6, 5\ns_add_u32 {dst}, {dst}, s7\ns_mul_i32 {dst}, {dst}, {P1_STRIDE}\ns_add_u32 {dst}, {dst}, {WS_P1}")

    stamp_at(0)
    A("s_load_dwordx16 s[16:31], s[0:1], 0")
    A("s_load_dwordx8 s[32:39], s[0:1], 64")
    A("s_cmp_ge_u32 s2, 256")
    A("s_cbranch_scc1 L_end")
    A("v_lshrrev_b32 v1, 6, v0")
    A("v_and_b32 v0, 63, v0")
    A("v_readfirstlane_b32 s3, v1")
    A("s_and_b32 s6, s2, 7")
    A("s_lshr_b32 s7, s2, 3")
    A(f"s_add_u32 s60, s6, {qrot}\ns_and_b32 s60, s60, 7")
    A("v_lshlrev_b32 v9, 4, v0")
    A("s_cmp_eq_u32 s3, 8")
    A("s_cbranch_scc1 L_service")
    def wqaddr():
        A("v_lshrrev_b32 v10, 3, v0\nv_and_b32 v11, 7, v0\nv_lshlrev_b32 v10, 13, v10\nv_lshl_add_u32 v10, v11, 4, v10")
        A("s_and_b32 s4, s7, 3\ns_lshl_b32 s4, s4, 3\ns_add_u32 s4, s4, s3\ns_lshl_b32 s4, s4, 7\ns_add_u32 s4, s4, s60\ns_lshl_b32 s4, s4, 3")
        A("s_lshr_b32 s5, s7, 2\ns_add_u32 s4, s4, s5\ns_lshl_b32 s4, s4, 7")
        A("v_add_u32 v10, s4, v10\nv_add_u32 v11, 0x10000, v10")
        A(f"s_lshl_b32 s57, s3, 11\ns_add_u32 m0, s57, {L_W}")

    def clears(b=12):
        n0 = len(C)
        clears0()
        if b != 12:
            for i in range(n0, len(C)):
                for r in (17, 16, 15, 14, 13, 12):
                    C[i] = C[i].replace(f"v{r},", f"v{r - 12 + b},").replace(f"v{r}\n", f"v{r - 12 + b}\n")
                    if C[i].endswith(f"v{r}"):
                        C[i] = C[i][:-len(f"v{r}")] + f"v{r - 12 + b}"

    def clears1():
        for i in range(4):
            A(f"v_mov_b32 v{12 + i}, -1")
        roles()
        p1slot("s4")
        A("s_and_b32 s9, s7, 15\ns_mul_i32 s8, s6, 14\ns_add_u32 s8, s8, s9")
        rowoff("s5", "s8", "s48")
        A(f"s_lshr_b32 s8, s7, 4\ns_lshl_b32 s8, s8, 13\ns_add_u32 s5, s5, s8\ns_add_u32 s5, s5, {WS_P3 - 256}")
        A("v_mov_b32 v16, s4\nv_mov_b32 v17, s5\nv_cmp_gt_u32 vcc, 16, v0\ns_lshl_b32 s4, s3, 8")
        A("v_cndmask_b32 v16, v17, v16, vcc\nv_add3_u32 v16, v16, v9, s4")
        rowoff("s4", "s13", "s48")
        A(f"s_lshl_b32 s5, s14, 8\ns_add_u32 s4, s4, s5\ns_add_u32 s4, s4, {WS_P2 - 512}")
        A(f"v_bfe_u32 v17, v0, 4, 1\nv_mul_u32_u24 v17, {8192 - 256}, v17\nv_add3_u32 v17, v17, v9, s4\nv_cmp_gt_u32 vcc, 32, v0")
        A("s_cmp_lt_u32 s9, 14\ns_cselect_b32 s8, -1, 0xffff")
        A("v_cndmask_b32 v16, v17, v16, vcc")
        A("s_lshr_b32 s9, s7, 4\ns_cmp_lt_u32 s3, s9\ns_cselect_b32 s9, -1, 0")

    def clears0():
        if clrbal and dup is not None and dup3:
            return clears1()
        for i in range(4):
            A(f"v_mov_b32 v{12 + i}, -1")
        roles()
        p1slot("s4")
        rowoff("s5", "s15", "s8", dup3)
        A(f"s_add_u32 s5, s5, {WS_P3 - 256}")
        rowoff("s8", "s13", "s9")
        A(f"s_lshl_b32 s9, s14, 8\ns_add_u32 s8, s8, s9\ns_add_u32 s8, s8, {WS_P2 - 256}")
        A("s_cmp_ge_u32 s7, 16\ns_cselect_b32 s5, s8, s5\ns_cselect_b32 s8, 1, 8\ns_cselect_b32 s9, 32, 14")
        A("s_cmp_lt_u32 s7, s9\ns_cselect_b32 s8, s8, 0\ns_cmp_lt_u32 s3, s8\ns_cselect_b32 s8, -1, 0xffff")
        if dup is not None:
            A("s_cselect_b32 s9, 0xffff, 0")
            if not dup3:
                A("s_cmp_ge_u32 s7, 16\ns_cselect_b32 s9, s9, 0")
        A("v_mov_b32 v16, s4\nv_mov_b32 v17, s5\nv_cmp_gt_u32 vcc, 16, v0\ns_lshl_b32 s4, s3, 8")
        A("v_cndmask_b32 v16, v17, v16, vcc\nv_add3_u32 v16, v16, v9, s4")
        if dup is not None:
            A(f"v_lshrrev_b32 v17, 5, v0\nv_mul_u32_u24 v17, {8192 - 256}, v17\nv_add_u32 v16, v16, v17")

    def clearstore(b=12):
        if p1plain:
            A("s_mov_b64 exec, 0xffff")
            if p1plain != "none":
                A("global_store_dwordx4 v16, v[12:15], s[38:39]")
            A("s_andn2_b32 s8, s8, 0xffff\ns_cbranch_scc0 L_noc2")
        A("s_mov_b32 exec_lo, s8\ns_mov_b32 exec_hi, " + ("0" if dup is None else "s9"))
        A(f"global_store_dwordx4 v{b + 4}, v[{b}:{b + 3}], s[38:39] sc1")
        A("L_noc2:")
        A("s_mov_b64 exec, -1")

    def wqload():
        A("s_cmp_eq_u32 s3, 0")
        A("s_cbranch_scc0 L_nox")
        A(f"s_mov_b32 m0, {L_X}")
        A("global_load_lds_dwordx4 v9, s[16:17]")
        A(f"s_mov_b32 m0, {L_W}")
        A("s_nop 0")
        A("L_nox:")
        A(f"global_load_lds_dwordx4 v10, s[22:23]{wntf}")
        A("s_add_u32 m0, m0, 1024")
        A(f"global_load_lds_dwordx4 v11, s[22:23]{wntf}")
    if not kfirst:
        wqaddr()
    vKS = (1, 2, 3, 4)
    vKR = (5, 6, 7, 8)
    vV, vM, vML, vL = 9, 10, 11, 12
    PK = (13, 14)
    vAl = 15
    SEL = (16, 17, 18, 19)
    S = (20, 21, 22, 23)
    T = (24, 25, 26, 27)
    BB = 28
    vT2 = 38
    ACC = (40, 44)
    QF = 48
    KF = 64
    VR = [80 + 16 * i for i in range(VRING)]
    A("v_lshrrev_b32 v24, 4, v0")
    A("v_lshlrev_b32 v25, 6, v24")
    A(f"v_xor_b32 v{vKS[0]}, v{vV}, v25")
    for i in (1, 2, 3):
        A(f"v_xor_b32 v{vKS[i]}, {16 * i}, v{vKS[0]}")
    if split:
        A(f"v_add_u32 v{vKS[2]}, 6144, v{vKS[2]}\nv_add_u32 v{vKS[3]}, 6144, v{vKS[3]}\nv_add_u32 v39, 6144, v{vV}")
    A("s_lshl_b32 s10, s6, 23")
    ipat = {"wgtile": "wwwtttccccc", "contig": "tttwwwccccc", "global": "wwwcccccttt"}.get(inter, inter)
    assert sorted(ipat) == sorted("wwwtttccccc") and not split
    if crot:
        A(f"s_lshl_b32 s4, s7, {crot}\ns_lshr_b32 s5, s7, {5 - crot}\ns_or_b32 s4, s4, s5\ns_and_b32 s4, s4, 31")
    for k, reg in (("w", "s3"), ("c", "s4" if crot else "s7")):
        pos = [i for i, ch in enumerate(ipat) if ch == k]
        b = 0
        while b < len(pos):
            e = b
            while e + 1 < len(pos) and pos[e + 1] == pos[e] + 1:
                e += 1
            if b == 0 and e == len(pos) - 1:
                A(f"s_lshl_b32 s11, {reg}, {12 + pos[0]}")
            else:
                A(f"s_bfe_u32 s11, {reg}, {hex(((e - b + 1) << 16) | b)}\ns_lshl_b32 s11, s11, {12 + pos[b]}")
            A("s_add_u32 s10, s10, s11")
            b = e + 1
    tpos = [i for i, ch in enumerate(ipat) if ch == "t"]

    def toff(t):
        return sum(((t >> b) & 1) << (12 + p) for b, p in enumerate(tpos))
    if txor:
        assert tpos == list(range(tpos[0], tpos[0] + 3))
        A({"c": "s_and_b32 s11, s7, 7", "x": "s_mov_b32 s11, s6", "cx": "s_xor_b32 s11, s7, s6\ns_and_b32 s11, s11, 7",
           "ch": "s_lshr_b32 s11, s7, 2", "chx": "s_lshr_b32 s11, s7, 2\ns_xor_b32 s11, s11, s6"}[txor])
        A(f"s_lshl_b32 s11, s11, {12 + tpos[0]}\ns_add_u32 s10, s10, s11")
    A("s_mov_b32 s11, s10")
    A(f"s_mul_i32 s56, s3, {KRING * 4096}\ns_add_u32 s56, s56, {L_K}")
    A("s_mov_b32 s42, 0x4000000\ns_mov_b32 s43, 0x20000")
    if kfirst:
        A("s_mov_b32 m0, s56")
    if sclr == "first" and "noclear" not in xp:
        clears()
    A("s_waitcnt lgkmcnt(0)")
    stamp_at(12)
    if sclr == "first" and "noclear" not in xp:
        clearstore()
    if not kfirst:
        A("s_barrier")
        wqload()
        A("s_mov_b32 m0, s56")
    A("s_mov_b32 s40, s18\ns_and_b32 s41, s19, 0xffff")
    stamp_at(11)
    vm = VM()
    ids = {}
    m0k = [0]
    order = (order or {3: "K0 V0 K1 V1 K2 V2 V3 V4 K3 K4 K5 K6 K7 V5 V6 V7", 2: "K0 V0 K1 V1 K2 V2 V3 V4 K3 K4 K5 V5 K6 K7 V6 V7"}[NB]).split()
    seq = [(g[0], int(g[1]), u) for g in order for u in range(4)]
    NPRE = 4 * (KRING + VRING)

    def W(opid):
        w = vm.wait(opid)
        if w:
            A(w)

    def load(n):
        mat, t, u = seq[n]
        d = D if n < d2from else D2
        if D3 and n >= d3from:
            d = D3
        if dseq and n > bpos:
            d = int(dseq[n])
        if adapt and n >= NPRE and n in adapt[2]:
            W(ids[seq[n - d - 1]])
            A(f"s_cbranch_vccnz L_ad{n}")
            A(f"s_waitcnt vmcnt({d - 1})")
            A(f"L_ad{n}:")
        elif n >= d:
            W(ids[seq[n - d]])
            if adapt and n >= NPRE and n in adapt[3]:
                A(f"s_cmp_le_u32 s9, {adapt[0]}")
                A(f"s_cbranch_scc0 L_ad{n}")
                A(f"s_waitcnt vmcnt({d - 2})")
                A(f"L_ad{n}:")
        if opos and n in opos and "now" not in xp:
            for i, p in enumerate(opos):
                if p == n:
                    A(f"global_load_dwordx4 v[164:167], v161, s[24:25] offset:{1024 * i}")
        if mat == "K":
            if m0k[0] != t:
                m0k[0] = t
                A(f"s_add_u32 m0, s56, {4096 * (t % KRING)}")
            A(f"buffer_load_dwordx4 v{vKS[u]}, s[40:43], s10 offen offset:{1024 * u}{ntf} lds")
            if u == 3 and t < 7:
                A(f"s_xor_b32 s10, s10, {hex(toff(t + 1) ^ toff(t))}")
        else:
            r = VR[t % VRING] + 4 * u
            A(f"buffer_load_dwordx4 v[{r}:{r + 3}], v{39 if (split and u >= 2) else vV}, s[44:47], s11 offen offset:{1024 * u}{ntf}")
            if u == 3 and t < 7:
                A(f"s_xor_b32 s11, s11, {hex(toff(t + 1) ^ toff(t))}")
        ids[seq[n]] = vm.issue()
        if n == qpos:
            A(f"v_mov_b32 v39, {L_F}\nds_write_b32 v39, v39 offset:8")
        if n == vpos and dup == "auto" and vpos:
            A("ds_write_b32 v39, v39 offset:20")

    def consts():
        A("v_and_b32 v24, 3, v0")
        A("v_mov_b32 v25, 0x0c0c0c0c")
        for k, (lo, e0) in enumerate(((0x0100, 0), (0x0100, 2), (0x0302, 0), (0x0302, 2))):
            A(f"v_mov_b32 v26, {hex(0x0c0c0000 | lo)}")
            A(f"v_mov_b32 v27, {hex((lo << 16) | 0x0c0c)}")
            A(f"v_cmp_eq_u32 vcc, {e0}, v24")
            A(f"v_cndmask_b32 v{SEL[k]}, v25, v26, vcc")
            A(f"v_cmp_eq_u32 vcc, {e0 + 1}, v24")
            A(f"v_cndmask_b32 v{SEL[k]}, v{SEL[k]}, v27, vcc")
        for z in (0, 1, 4, 5, 8, 9):
            A(f"v_mov_b32 v{BB + z}, 0")
        A(f"s_mov_b32 s12, {hex(LOG2E)}")
        A("v_bfe_u32 v25, v0, 2, 2")
        A("v_lshrrev_b32 v26, 4, v0")
        A("v_lshlrev_b32 v27, 8, v25")
        A(f"v_lshl_add_u32 v{vT2}, v26, 4, v27")
        A("v_lshl_add_u32 v25, v24, 2, v25")
        A("v_and_b32 v27, 15, v0")
        A("v_xor_b32 v26, v26, v27")
        A("v_lshlrev_b32 v26, 4, v26")
        A("v_lshl_add_u32 v26, v25, 8, v26")
        for u in range(4):
            A(f"v_xor_b32 v{vKR[u]}, {64 * u}, v26")
            A(f"v_add_u32 v{vKR[u]}, s56, v{vKR[u]}")
        roles()
        A("s_lshl_b32 s58, s3, 12")
        if dlate:
            A(f"s_min_u32 s4, s15, 111\ns_lshl_b32 s4, s4, 3\ns_add_u32 s4, s4, s3\ns_lshl_b32 s4, s4, 11\nv_add_u32 v162, s4, v{vV}")
        A("s_lshl_b32 s4, s13, 3\ns_add_u32 s4, s4, s3\ns_lshl_b32 s4, s4, 15\ns_lshl_b32 s5, s14, 7\ns_add_u32 s4, s4, s5")
        A("v_lshrrev_b32 v160, 3, v0\nv_and_b32 v161, 7, v0\nv_lshlrev_b32 v160, 10, v160\nv_lshl_add_u32 v160, v161, 4, v160\nv_add_u32 v160, s4, v160")
        A(f"s_lshl_b32 s4, s61, 5\ns_add_u32 s4, s4, s7\ns_lshl_b32 s4, s4, 3\ns_add_u32 s4, s4, s3\ns_lshl_b32 s4, s4, 11\nv_add_u32 v161, s4, v{vV}")

    def late(pos="c"):
        ops = [i for i in range(4) if lp[i] == pos]
        if "now" in xp or not ops:
            return
        if not dlast:
            A("s_cmp_lt_u32 s7, 14")
            A(f"s_cbranch_scc0 L_late_b{pos}")
        for i in (ops if not dlast else ()):
            if i < 2:
                A(f"s_add_u32 m0, s57, {L_W + 32768 + 1024 * i}")
                A(f"global_load_lds_dwordx4 v162, s[32:33]{wntf}")
                if i == 0:
                    A("v_add_u32 v162, 1024, v162")
            else:
                A("s_mov_b64 exec, 1")
                A("global_load_dword v163, v162, s[32:33]")
        if not dlast:
            A(f"s_branch L_late_done{pos}")
        A(f"L_late_b{pos}:")
        A("s_cmp_ge_u32 s7, 16")
        A("s_cselect_b64 exec, -1, 1")
        for i in ops:
            A(f"s_add_u32 m0, s58, {L_W + 1024 * i}")
            A(f"global_load_lds_dwordx4 v160, s[24:25] offset:0{wntf}")
            vm.issue()
            if i < 3:
                A("v_add_u32 v160, 0x2000, v160")
        A(f"L_late_done{pos}:")
        A("s_mov_b64 exec, -1")
        m0k[0] = None

    T0 = 8 - NB
    SS = {t: tuple(range(144 + 4 * (t - T0), 148 + 4 * (t - T0))) for t in range(T0, 8)}
    PKS = {t: (128 + 2 * (t - T0), 129 + 2 * (t - T0)) for t in range(T0, 8)}

    def scores(t, S):
        W(ids[("K", t, 3)])
        k = KF
        for u in range(4):
            A(f"ds_read_b128 v[{k + 4 * u}:{k + 4 * u + 3}], v{vKR[u]} offset:{4096 * (t % KRING)}")
        for u in range(4):
            c = "0" if u == 0 else f"v[{S[0]}:{S[3]}]"
            A("s_waitcnt lgkmcnt(0)" if stamps else f"s_waitcnt lgkmcnt({3 - u})")
            A(f"v_mfma_f32_16x16x32_bf16 v[{S[0]}:{S[3]}], v[{k + 4 * u}:{k + 4 * u + 3}], v[{QF + 4 * u}:{QF + 4 * u + 3}], {c}")
        for rnd in range(2):
            A(f"v_cvt_pk_bf16_f32 v{T[0]}, v{S[0]}, v{S[1]}")
            A(f"v_cvt_pk_bf16_f32 v{T[1]}, v{S[2]}, v{S[3]}")
            A(f"v_lshlrev_b32 v{S[0]}, 16, v{T[0]}")
            A(f"v_and_b32 v{S[1]}, 0xffff0000, v{T[0]}")
            A(f"v_lshlrev_b32 v{S[2]}, 16, v{T[1]}")
            A(f"v_and_b32 v{S[3]}, 0xffff0000, v{T[1]}")
            if rnd == 0:
                for r in range(4):
                    A(f"v_mul_f32 v{S[r]}, {hex(SCALE)}, v{S[r]}")
        if t == 0:
            A(f"v_max_f32 v{vM}, v{S[0]}, v{S[1]}")
            A(f"v_max3_f32 v{vM}, v{vM}, v{S[2]}, v{S[3]}")
        else:
            A(f"v_max3_f32 v{vM}, v{vM}, v{S[0]}, v{S[1]}")
            A(f"v_max3_f32 v{vM}, v{vM}, v{S[2]}, v{S[3]}")

    def probs(tiles, first):
        if not first:
            A(f"v_mov_b32 v{vAl}, v{vML}")
        A(f"v_mul_f32 v{vML}, s12, v{vM}")
        if not first:
            A(f"v_sub_f32 v{vAl}, v{vAl}, v{vML}")
            A(f"v_exp_f32 v{vAl}, v{vAl}")
        for S, P in tiles:
            for r in range(4):
                A(f"v_fma_f32 v{S[r]}, v{S[r]}, s12, -v{vML}")
        for S, P in tiles:
            for r in range(4):
                A(f"v_exp_f32 v{S[r]}, v{S[r]}")
        if not first:
            for a in range(8):
                A(f"v_mul_f32 v{ACC[0] + a}, v{vAl}, v{ACC[0] + a}")
            A(f"v_mul_f32 v{vL}, v{vL}, v{vAl}")
        for i, (S, P) in enumerate(tiles):
            A(f"v_add_f32 v{T[0]}, v{S[0]}, v{S[1]}")
            A(f"v_add_f32 v{T[1]}, v{S[2]}, v{S[3]}")
            A(f"v_cvt_pk_bf16_f32 v{P[0]}, v{S[0]}, v{S[1]}")
            A(f"v_cvt_pk_bf16_f32 v{P[1]}, v{S[2]}, v{S[3]}")
            if first and i == 0:
                A(f"v_add_f32 v{vL}, v{T[0]}, v{T[1]}")
            else:
                A(f"v_add_f32 v{T[0]}, v{T[0]}, v{T[1]}")
                A(f"v_add_f32 v{vL}, v{vL}, v{T[0]}")

    def qk(t):
        scores(t, S)
        xrow(vM, T[0], "max")
        probs([(S, PK)], t == 0)

    def sc(t):
        scores(t, SS[t])
        if t == 7:
            xrow(vM, T[0], "max")
            A("v_bfe_u32 v26, v0, 2, 2\nv_lshlrev_b32 v26, 5, v26\ns_lshl_b32 s4, s3, 2\nv_add_u32 v27, s4, v26")
            A("s_mov_b64 exec, 0x1111")
            A(f"ds_write_b32 v27, v{vM} offset:{L_M}")
            A("s_mov_b64 exec, -1")

    def fin1(t):
        A("s_waitcnt lgkmcnt(0)")
        A("s_barrier")
        k0 = KF
        A(f"ds_read_b128 v[{k0}:{k0 + 3}], v26 offset:{L_M}")
        A(f"ds_read_b128 v[{k0 + 4}:{k0 + 7}], v26 offset:{L_M + 16}")
        A("s_waitcnt lgkmcnt(0)")
        A(f"v_max3_f32 v{vM}, v{k0}, v{k0 + 1}, v{k0 + 2}")
        A(f"v_max3_f32 v{vM}, v{vM}, v{k0 + 3}, v{k0 + 4}")
        A(f"v_max3_f32 v{vM}, v{vM}, v{k0 + 5}, v{k0 + 6}")
        A(f"v_max_f32 v{vM}, v{vM}, v{k0 + 7}")
        probs([(SS[t], PKS[t]) for t in range(T0, 8)], False)
        xrow(vL, T[0])
        A("s_mov_b64 exec, 0x1111")
        A(f"ds_write_b32 v27, v{vL} offset:{L_L}")
        A("s_mov_b64 exec, -1")

    def fin2(t):
        A("s_and_b32 s4, s3, 1\ns_lshl_b32 s4, s4, 6\nv_lshrrev_b32 v26, 5, v0\nv_lshl_add_u32 v26, v26, 5, s4")
        A(f"v_mov_b32 v27, {L_F}")
        A("s_waitcnt lgkmcnt(0)")
        A("s_barrier")
        A(f"ds_read_b128 v[64:67], v26 offset:{L_M}")
        A(f"ds_read_b128 v[68:71], v26 offset:{L_M + 16}")
        A(f"ds_read_b128 v[72:75], v26 offset:{L_L}")
        A(f"ds_read_b128 v[76:79], v26 offset:{L_L + 16}")
        A("ds_read2_b32 v[26:27], v27 offset0:4 offset1:1")
        A("s_waitcnt lgkmcnt(0)")
        A("v_max3_f32 v64, v64, v65, v66\nv_max3_f32 v64, v64, v67, v68\nv_max3_f32 v64, v64, v69, v70\nv_max_f32 v64, v64, v71")
        for i in range(4):
            A(f"v_add_f32 v{72 + i}, v{72 + i}, v{76 + i}")
        A("v_add_f32 v72, v72, v73\nv_add_f32 v74, v74, v75\nv_add_f32 v72, v72, v74")
        A("v_readfirstlane_b32 s62, v27")
        A("v_readfirstlane_b32 s49, v26")
        A("v_log_f32 v73, v72")
        A(f"v_rcp_f32 v{vAl}, v72")
        A(f"v_mul_f32 v64, s12, v64")
        A(f"v_add_f32 v{vL}, v64, v73")
        A(f"v_and_b32 v{vM}, 3, v0\nv_add_u32 v{vM}, 0x07060501, v{vM}")
        A("s_mov_b32 s50, 0x88888888\ns_mov_b32 s51, 0x88888888")

    def fin3(t):
        A(f"v_add_u32 v64, s56, v{vV}")
        A("v_and_b32 v65, 15, v0\nv_bfe_u32 v66, v0, 4, 1\nv_mul_u32_u24 v66, 272, v66\nv_add_u32 v65, v65, v66")
        A("v_lshrrev_b32 v66, 5, v0\nv_lshl_add_u32 v65, v66, 4, v65\ns_lshl_b32 s4, s3, 7")
        A(f"s_add_u32 s4, s4, {L_K}\nv_lshl_add_u32 v65, v65, 2, s4")
        A(f"v_add_u32 v66, {4 * KRING * 4096}, v65")
        p1slot("s4")
        A("s_lshl_b32 s5, s3, 8\ns_add_u32 s5, s5, s4\nv_lshl_add_u32 v67, v0, 2, s5")

    def prepB():
        A(f"s_lshl_b32 s4, s61, 5\nv_lshrrev_b32 v57, 3, v0\nv_add_u32 v57, s4, v57\nv_mul_u32_u24 v57, {P1_STRIDE}, v57")
        if b4:
            A("s_and_b32 s4, s13, 1\ns_lshl_b32 s4, s4, 1\ns_bfe_u32 s5, s3, 0x10001\ns_add_u32 s4, s4, s5")
            A(f"s_and_b32 s5, s3, 1\ns_lshl_b32 s5, s5, 3\ns_add_u32 s4, s4, s5\ns_lshl_b32 s4, s4, 7\ns_add_u32 s4, s4, {WS_P1}")
        else:
            A("s_and_b32 s4, s13, 1\ns_lshl_b32 s4, s4, 1\ns_lshr_b32 s5, s3, 2\ns_add_u32 s4, s4, s5")
            A(f"s_and_b32 s5, s3, 3\ns_lshl_b32 s5, s5, 2\ns_add_u32 s4, s4, s5\ns_lshl_b32 s4, s4, 7\ns_add_u32 s4, s4, {WS_P1}")
        A("v_and_b32 v58, 7, v0\nv_lshl_add_u32 v57, v58, 4, v57\nv_add_u32 v48, s4, v57")
        for pi in range(1, 4):
            A(f"v_add_u32 v{48 + pi}, {8 * pi * P1_STRIDE}, v48")
        A("s_mov_b32 s52, 0x04000c0c\ns_mov_b32 s53, 0x0706000c")
        A("s_mov_b32 s54, 0xffff0000\ns_mov_b32 s55, 0xffff0000\ns_mov_b32 s8, 0\ns_mov_b32 s9, -1")
        sigma(57, 58)
        A("v_bfe_u32 v58, v0, 2, 2\nv_lshl_add_u32 v57, v57, 3, v58\nv_lshlrev_b32 v57, 7, v57")
        A(f"v_and_b32 v58, 3, v0\nv_lshl_add_u32 v57, v58, 3, v57\ns_lshl_b32 s4, s3, {13 if b4 else 12}\nv_add_u32 v52, s4, v57")
        A("v_lshlrev_b32 v54, 2, v0\ns_lshl_b32 s4, s3, 8\nv_add_u32 v53, s4, v54")
        rowoff("s4", "s13", "s5")
        A(f"s_lshl_b32 s5, s14, 8\ns_add_u32 s4, s4, s5\ns_add_u32 s4, s4, {WS_P2}")
        if dup is not None:
            mycopy("s5")
            A("s_xor_b32 s5, s5, 0x2000\ns_add_u32 s4, s4, s5")
        A("v_add_u32 v55, s4, v54")
        A("v_xor_b32 v56, 0x2000, v55")

    def fin4(t):
        if bprep:
            prepB()

    def pv(t, last=False):
        v = VR[t % VRING]
        P = PKS.get(t, PK)

        def perm(i):
            b = BB + 2 + 4 * (i & 1)
            A(f"v_perm_b32 v{b}, v{P[i >> 1]}, v{P[i >> 1]}, v{SEL[2 * (i & 1)]}")
            A(f"v_perm_b32 v{b + 1}, v{P[i >> 1]}, v{P[i >> 1]}, v{SEL[2 * (i & 1) + 1]}")
        perm(0)
        perm(1)
        if not last:
            W(ids[("V", t, 3)])
        for i in range(4):
            if last:
                W(ids[("V", t, i)])
            b = BB + 2 + 4 * (i & 1)
            for h in range(2):
                c = "0" if (t == 0 and i == 0) else f"v[{ACC[h]}:{ACC[h] + 3}]"
                bb = b if h == 0 else b - 2
                A(f"v_mfma_f32_16x16x32_bf16 v[{ACC[h]}:{ACC[h] + 3}], v[{v + 4 * i}:{v + 4 * i + 3}], v[{bb}:{bb + 3}], {c}")
            if i < 2:
                perm(i + 2)

    for n in range(NPRE):
        load(n)
        if n == 3:
            A("s_mov_b32 s44, s20\ns_and_b32 s45, s21, 0xffff\ns_mov_b32 s46, 0x4000000\ns_mov_b32 s47, 0x20000")
            if sclr == "after" and "noclear" not in xp and clrpos == 3 and not wqfirst:
                clears()
                clearstore()
            if kfirst:
                wqaddr()
                wqload()
                m0k[0] = None
            if sclr == "after" and "noclear" not in xp and clrpos == 3 and wqfirst:
                clears()
                clearstore()
            if kfirst:
                A("s_barrier")
        if n == clrpos and clrpos > 3 and sclr == "after" and "noclear" not in xp:
            clears(72)
            clearstore(72)
        if n == max(D - 1, 3):
            consts()
        if n == bpos:
            stamp_at(13)
            A(f"v_mov_b32 v24, {L_F}\nv_mov_b32 v25, 1\ns_mov_b64 exec, 1\nds_add_u32 v24, v25 offset:12\ns_mov_b64 exec, -1")
        if n == qpos and False:
            A(f"v_mov_b32 v24, {L_F}\nds_write_b32 v24, v24 offset:8")
    stamp_at(1)
    ldswait("L_waitq", 0)
    if adapt:
        lo, hi, lsites, tsites = adapt
        A("v_readfirstlane_b32 s9, v25")
        A(f"v_cmp_lt_u32 vcc, {hi}, v25")
        if stamps:
            A("s_mov_b32 s88, s9")
    stamp_at(2)
    for u in range(4):
        A(f"ds_read_b128 v[{QF + 4 * u}:{QF + 4 * u + 3}], v{vT2} offset:{L_Q + 64 * u}")
    A("s_waitcnt lgkmcnt(0)")
    blocks = []
    for t in range(T0):
        blocks += [(qk, t, ("K", t, 3)), (pv, t, ("V", t, 3))]
    for t in range(T0, 8):
        blocks += [(sc, t, ("K", t, 3))]
    blocks += [(fin1, 7, ("K", 7, 3)), (fin2, 7, ("K", 7, 3)), (fin3, 7, ("K", 7, 3)), (fin4, 7, ("K", 7, 3))]
    for t in range(T0, 7):
        blocks += [(pv, t, ("V", t, 3))]
    bi = 0
    for n in range(NPRE, len(seq)):
        mat, t, u = seq[n]
        needb = {"K": 2 * (t - KRING) + 1, "V": 2 * (t - VRING) + 2}[mat]
        while bi < needb:
            blocks[bi][0](blocks[bi][1])
            bi += 1
        load(n)
        late(n)
        if n < len(seq) - 1 and bi < len(blocks) and blocks[bi][2] in ids and ids[blocks[bi][2]] <= vm.done:
            blocks[bi][0](blocks[bi][1])
            bi += 1
    while bi < len(blocks) and blocks[bi][0] is not pv:
        blocks[bi][0](blocks[bi][1])
        bi += 1
    if bar1c:
        A("s_barrier")
        late()
    else:
        late()
        A("s_barrier")
    while bi < len(blocks):
        blocks[bi][0](blocks[bi][1])
        bi += 1
    stamp_at(3)
    pv(7, last=True)
    stamp_at(4)
    A(f"ds_write_b128 v64, v[{ACC[0]}:{ACC[0] + 3}]")
    A(f"ds_write_b128 v64, v[{ACC[1]}:{ACC[1] + 3}] offset:1088")
    A("s_waitcnt lgkmcnt(0)")
    A("s_barrier")
    R0 = 72
    for i in range(8):
        A(f"ds_read_b32 v{R0 + i}, v{65 + (i >> 2)} offset:{KRING * 4096 * (i & 3)}")
    A("s_cmp_eq_u32 s62, 1")
    A("s_waitcnt lgkmcnt(0)")
    for i in range(2):
        A(f"v_pk_add_f32 v[{R0 + 2 * i}:{R0 + 2 * i + 1}], v[{R0 + 2 * i}:{R0 + 2 * i + 1}], v[{R0 + 4 + 2 * i}:{R0 + 5 + 2 * i}]")
    A(f"v_pk_add_f32 v[{R0}:{R0 + 1}], v[{R0}:{R0 + 1}], v[{R0 + 2}:{R0 + 3}]")
    A(f"v_add_f32 v{R0}, v{R0}, v{R0 + 1}")
    A(f"v_mul_f32 v{R0}, v{R0}, v{vAl}")
    A(f"v_mov_b32_dpp v{R0 + 1}, v{R0} quad_perm:[3,3,3,3] {FULL}")
    A(f"v_perm_b32 v{R0}, v{R0}, v{R0 + 1}, v{vM}")
    A(f"v_cndmask_b32 v{R0}, v{R0}, v{vL}, s[50:51]")
    A("s_cbranch_scc0 L_pubfar")
    A(f"global_store_dword v67, v{R0}, s[38:39]")
    A("L_published:")
    for _ in range(pad2):
        A("s_nop 0")
    stamp_at(5)
    A("s_cmp_lt_u32 s7, 14")
    A("s_cbranch_scc1 L_ffn")
    A("s_cmp_lt_u32 s7, 16")
    A("s_cbranch_scc1 L_final")
    if not bprep:
        prepB()
    NKK = 2 if b4 else 1
    WB = 80
    D0 = 120
    TP = 152
    WW = 160
    AA = 112
    AC = 32
    loads = [f"global_load_dwordx4 v[{D0 + 16 * kk + 4 * pi}:{D0 + 16 * kk + 4 * pi + 3}], v{48 + pi}, s[38:39] offset:{512 * kk} sc1" for pi in range(4) for kk in range(NKK)]

    def bweights():
        A(f"s_waitcnt vmcnt({4 * NKK})")
        if b4:
            A("s_barrier")
        for kk in range(NKK):
            for tau in range(4):
                for t in range(2):
                    r = WB + 16 * kk + 4 * tau + 2 * t
                    if kk == 1 and tau == 3 and t == 0:
                        A("s_waitcnt lgkmcnt(0)")
                    A(f"ds_read_b64_tr_b16 v[{r}:{r + 1}], v52 offset:{L_W + 4096 * kk + 512 * t + 32 * tau}")
    A("s_barrier")
    if b4:
        A("s_cmp_lt_u32 s3, 4")
        A("s_cbranch_scc1 L_bgo")
        A("s_waitcnt vmcnt(0)")
        A("s_barrier")
        A("s_branch L_bdone")
        A("L_bgo:")
    stamp_at(8)
    poll("L_poll1", loads, range(D0, D0 + 16 * NKK), 31, between=bweights)
    stamp_at(6)
    pm1 = [f"v_perm_b32 v{TP + 4 * kk + pi}, v{D0 + 16 * kk + 4 * pi + 2}, v{D0 + 16 * kk + 4 * pi + 1}, s52" for kk in range(NKK) for pi in range(4)]
    A(f"v_max3_f32 v16, v{D0 + 3}, v{D0 + 7}, v{D0 + 11}\nv_max_f32 v16, v16, v{D0 + 15}")
    A(pm1.pop(0))
    A(pm1.pop(0))
    A(f"v_max_f32_dpp v16, v16, v16 row_ror:8 {FULL}")
    A("v_mov_b32 v17, v16")
    A(pm1.pop(0))
    A(pm1.pop(0))
    A("v_permlane16_swap_b32 v16, v17")
    A("v_max_f32 v16, v16, v17")
    A("v_mov_b32 v17, v16")
    for x in pm1[:2]:
        A(x)
    A("v_permlane32_swap_b32 v16, v17")
    A("v_max_f32 v16, v16, v17")
    for pi in range(4):
        A(f"v_sub_f32 v{WW + pi}, v{D0 + 4 * pi + 3}, v16")
    for x in pm1[2:]:
        A(x)
    for pi in range(4):
        A(f"v_exp_f32 v{WW + pi}, v{WW + pi}")
        for kk in range(NKK):
            A(f"v_perm_b32 v{D0 + 16 * kk + 4 * pi + 3}, v{TP + 4 * kk + pi}, v{D0 + 16 * kk + 4 * pi}, s53")
    A(f"v_pk_add_f32 v[16:17], v[{WW}:{WW + 1}], v[{WW + 2}:{WW + 3}]")
    for kk in range(NKK):
        for hlf in range(2):
            r = D0 + 16 * kk + 2 * hlf
            A(f"v_pk_mul_f32 v[{r}:{r + 1}], v[{WW}:{WW + 1}], v[{r}:{r + 1}] op_sel_hi:[0,1]")
    A("v_add_f32 v16, v16, v17")
    for pi in range(1, 4):
        w = f"v[{WW + (pi & 2)}:{WW + 1 + (pi & 2)}]"
        sel = "op_sel:[1,0,0] op_sel_hi:[1,1,1]" if pi & 1 else "op_sel_hi:[0,1,1]"
        for kk in range(NKK):
            for hlf in range(2):
                r = D0 + 16 * kk + 2 * hlf
                A(f"v_pk_fma_f32 v[{r}:{r + 1}], {w}, v[{r + 4 * pi}:{r + 4 * pi + 1}], v[{r}:{r + 1}] {sel}")
        if pi == 1:
            A(f"v_add_f32_dpp v16, v16, v16 row_ror:8 {FULL}")
    A("v_mov_b32 v17, v16")
    for kk in range(NKK):
        d = D0 + 16 * kk
        A(f"v_permlane32_swap_b32 v{d}, v{d + 1}\nv_permlane32_swap_b32 v{d + 2}, v{d + 3}")
    A("v_permlane32_swap_b32 v16, v17")
    A("v_add_f32 v16, v16, v17")
    A("v_mov_b32 v17, v16")
    for kk in range(NKK):
        d = D0 + 16 * kk
        A(f"v_add_f32 v{d}, v{d}, v{d + 1}\nv_add_f32 v{d + 2}, v{d + 2}, v{d + 3}")
    A("v_permlane16_swap_b32 v16, v17")
    A("v_add_f32 v16, v16, v17")
    for kk in range(NKK):
        d = D0 + 16 * kk
        A(f"v_permlane16_swap_b32 v{d}, v{d + 2}")
    A("v_rcp_f32 v16, v16")
    for kk in range(NKK):
        d = D0 + 16 * kk
        A(f"v_add_f32 v{d}, v{d}, v{d + 2}")
    for kk in range(NKK):
        d = D0 + 16 * kk
        A(f"v_add_f32_dpp v{d}, v{d}, v{d} row_ror:8 {FULL}")
    for kk in range(NKK):
        d = D0 + 16 * kk
        A(f"v_mul_f32 v{d}, v{d}, v16")
    for kk in range(NKK):
        d = D0 + 16 * kk
        A(f"v_mov_b32_dpp v{d + 1}, v{d} quad_perm:[1,0,3,2] {FULL}")
    for kk in range(NKK):
        d = D0 + 16 * kk
        A(f"v_cvt_pk_bf16_f32 v{d}, v{d}, v{d + 1}")
    for kk in range(NKK):
        for e in range(4):
            A(f"v_mov_b32_dpp v{AA + 4 * kk + e}, v{D0 + 16 * kk} row_newbcast:{2 * e} {FULL}")
    A("s_waitcnt lgkmcnt(0)")
    for kk in range(NKK):
        for tau in range(4):
            c = "0" if kk == 0 else f"v[{AC + 4 * tau}:{AC + 4 * tau + 3}]"
            b = WB + 16 * kk + 4 * tau
            A(f"v_mfma_f32_16x16x32_bf16 v[{AC + 4 * tau}:{AC + 4 * tau + 3}], v[{AA + 4 * kk}:{AA + 4 * kk + 3}], v[{b}:{b + 3}], {c}")
    A(f"v_cndmask_b32 v{AC}, v{AC}, v{AC + 4}, s[54:55]")
    A(f"v_cndmask_b32 v{AC + 8}, v{AC + 8}, v{AC + 12}, s[54:55]")
    A(f"v_cndmask_b32 v{AC}, v{AC}, v{AC + 8}, s[8:9]")
    A(f"ds_write_b32 v53, v{AC} offset:{L_B}")
    A("s_cmp_eq_u32 s3, 0")
    A("s_waitcnt lgkmcnt(0)")
    A("s_barrier")
    A("s_cbranch_scc0 L_bdone")
    NW = 8 // NKK
    for i in range(NW):
        A(f"ds_read_b32 v{120 + i}, v54 offset:{L_B + 256 * i}")
    A("s_waitcnt lgkmcnt(0)")
    if NW == 8:
        for i in range(2):
            A(f"v_pk_add_f32 v[{120 + 2 * i}:{121 + 2 * i}], v[{120 + 2 * i}:{121 + 2 * i}], v[{124 + 2 * i}:{125 + 2 * i}]")
    A("v_pk_add_f32 v[120:121], v[120:121], v[122:123]")
    A("v_add_f32 v120, v120, v121")
    store_quad(120, 55, fl=st2, addr2=None if dup is None else 56)
    A("L_bdone:")
    if wb:
        A("s_cmp_eq_u32 s3, 1\ns_cbranch_scc0 L_nowb\ns_cmp_eq_u32 s7, 16\ns_cbranch_scc0 L_nowb")
        A("buffer_wbl2 sc1")
        A("L_nowb:")
    stamp_at(7)
    stamp_store()
    A("s_endpgm")
    A("L_pubfar:")
    A("s_nop 0")
    store_quad(R0, 67)
    A("s_branch L_published")
    A("L_ffn:")
    vCol = 65
    A("v_and_b32 v17, 7, v0\nv_bfe_u32 v16, v0, 3, 2\nv_lshl_add_u32 v16, v17, 2, v16")
    A("v_and_b32 v18, 32, v0\nv_add_u32 v16, v16, v18")
    A(f"s_lshl_b32 s4, s3, 6\nv_add_u32 v{vCol}, s4, v16")
    A(f"v_lshlrev_b32 v29, 1, v{vCol}")
    A(f"ds_read_u16_d16_hi v64, v29 offset:{L_X}")
    A(f"s_lshl_b32 s4, s3, 8\ns_add_u32 s4, s4, {WS_P2}")
    if dup is None:
        A("v_lshrrev_b32 v18, 3, v0\nv_lshlrev_b32 v19, 12, v18\nv_lshl_add_u32 v16, v17, 4, v19\nv_add_u32 v20, s4, v16")
    else:
        mycopy("s5")
        A("s_add_u32 s4, s4, s5")
        A("v_lshrrev_b32 v18, 4, v0\nv_lshlrev_b32 v19, 14, v18\nv_bfe_u32 v18, v0, 3, 1\nv_lshl_add_u32 v19, v18, 12, v19\nv_lshl_add_u32 v16, v17, 4, v19\nv_add_u32 v20, s4, v16")
    A("v_lshrrev_b32 v18, 4, v0\nv_and_b32 v17, 15, v0")
    rowoff("s4", "s15", "s5", dup3)
    A(f"s_add_u32 s4, s4, {WS_P3}\ns_lshl_b32 s5, s3, {9 if c4 else 8}\ns_and_b32 s5, s5, 0x7ff\ns_add_u32 s4, s4, s5")
    if dup is not None and dup3:
        mycopy("s5")
        A("s_xor_b32 s5, s5, 0x2000\ns_add_u32 s4, s4, s5")
    A(f"v_lshl_add_u32 v22, v0, {3 if c4 else 2}, s4")
    if dup is not None and dup3:
        A("v_xor_b32 v21, 0x2000, v22")
    A("s_lshl_b32 s5, s3, 4\nv_mov_b32 v23, s5")
    A("v_and_b32 v24, 7, v0\nv_lshlrev_b32 v24, 4, v24")
    A("s_mov_b32 s63, 0x42800000\ns_mov_b32 s54, 0xffff0000\ns_mov_b32 s55, 0xffff0000")
    A("v_mov_b32 v67, 0x3b000000\nv_mov_b32 v68, 0x3727c5ac\nv_mov_b32 v69, 0xbdd2d3e8\nv_mov_b32 v70, 0xc0135761")
    for i in range(4):
        A(f"v_mov_b32 v{72 + i}, 0x3f803f80")
    A("s_lshl_b32 s4, s3, 7\nv_lshl_add_u32 v25, v18, 4, s4")
    A("v_lshlrev_b32 v27, 2, v0\ns_lshl_b32 s5, s3, 8\nv_add_u32 v26, s5, v27")
    A("v_lshl_add_u32 v28, v0, 1, s4")
    if cfast:
        A("v_bfe_u32 v16, v0, 2, 2\nv_lshlrev_b32 v16, 2, v16\nv_bfe_u32 v19, v0, 4, 1\nv_lshl_add_u32 v16, v19, 1, v16")
        A("v_and_b32 v19, 32, v0\nv_add_u32 v16, v16, v19\nv_lshlrev_b32 v16, 5, v16")
    else:
        A("v_bfe_u32 v16, v0, 2, 2\nv_lshl_add_u32 v16, v18, 3, v16\nv_lshlrev_b32 v16, 5, v16")
    A("v_and_b32 v17, 3, v0\nv_lshl_add_u32 v16, v17, 3, v16\nv_add_u32 v16, s57, v16")
    GW = 88
    DW = 104

    DW2 = 144

    def dreads():
        if c4:
            A("s_lshl_b32 s5, s3, 8\nv_lshl_add_u32 v28, v0, 2, s5")
            A("v_and_b32 v28, 0x3ff, v28")
            for r in range(16):
                if r == 14:
                    A("s_waitcnt lgkmcnt(0)")
                A(f"ds_read_b32 v{DW + r}, v28 offset:{L_W + 32768 + 1024 * r}")
            A("s_waitcnt lgkmcnt(0)")
            for r in range(16):
                A(f"v_and_b32 v{40 + r}, 0xffff0000, v{DW + r}")
                A(f"v_lshlrev_b32 v{DW + r}, 16, v{DW + r}")
            return
        for r in range(16):
            if r == 14:
                A("s_waitcnt lgkmcnt(0)")
            A(f"ds_read_u16_d16_hi v{DW + r}, v28 offset:{L_W + 32768 + 1024 * r}")
    if dsplit and not dlast:
        if dlate:
            A("s_waitcnt vmcnt(1)")
        A("s_barrier")
        dreads()
        A("s_waitcnt lgkmcnt(0)")
    A("s_barrier")
    stamp_at(11)

    def cweights():
        for mat in range(2):
            for kap in range(2):
                for t in range(2):
                    r = GW + 8 * mat + 4 * kap + 2 * t
                    A(f"ds_read_b64_tr_b16 v[{r}:{r + 1}], v16 offset:{L_W + 16384 * mat + ((32 * kap + 512 * t) if cfast else (1024 * kap + 128 * t))}")
        if cfast or csd:
            stamp_at(13)
            return
        colsums()

    def colsums():
        A("s_waitcnt lgkmcnt(0)")
        A(f"v_mfma_f32_16x16x32_bf16 v[140:143], v[72:75], v[{GW}:{GW + 3}], 0")
        A(f"v_mfma_f32_16x16x32_bf16 v[144:147], v[72:75], v[{GW + 8}:{GW + 11}], 0")
        A(f"v_mfma_f32_16x16x32_bf16 v[140:143], v[72:75], v[{GW + 4}:{GW + 7}], v[140:143]")
        A(f"v_mfma_f32_16x16x32_bf16 v[144:147], v[72:75], v[{GW + 12}:{GW + 15}], v[144:147]")
        if not (cfast or csd):
            A("v_cndmask_b32 v66, v140, v144, s[54:55]")
            stamp_at(13)
    loads = [f"global_load_dwordx4 v[{120 + 4 * i}:{123 + 4 * i}], v20, s[38:39] offset:{2048 * (i >> 1) + 128 * (i & 1)} {ld2}" for i in range(4)]
    poll("L_poll2", loads, range(120, 136), 31, between=cweights)
    stamp_at(6)
    if cfast or csd:
        n0 = len(C)
        colsums()
        cs = C[n0:]
        del C[n0:]
        A(cs[0])
    for e in range(4):
        if cfast or csd:
            A(cs[1 + e])
        A(f"v_pk_add_f32 v[{120 + 2 * e}:{121 + 2 * e}], v[{120 + 2 * e}:{121 + 2 * e}], v[{128 + 2 * e}:{129 + 2 * e}]")
    for e in range(4):
        A(f"v_permlane32_swap_b32 v{120 + e}, v{124 + e}")
    A("v_pk_add_f32 v[120:121], v[120:121], v[124:125]\nv_pk_add_f32 v[122:123], v[122:123], v[126:127]")
    A("v_permlane16_swap_b32 v120, v122\nv_permlane16_swap_b32 v121, v123")
    A("v_pk_add_f32 v[122:123], v[120:121], v[122:123]")
    A("v_add_f32_dpp v120, v122, v122 row_ror:8 row_mask:0xf bank_mask:0x3")
    A("v_add_f32_dpp v120, v123, v123 row_ror:8 row_mask:0xf bank_mask:0xc")
    A("v_add_f32 v120, v120, v64")
    if cfast:
        A(f"v_mov_b32_dpp v122, v120 quad_perm:[1,0,3,2] {FULL}")
        A("v_cndmask_b32 v66, v140, v144, s[54:55]")
        A("v_cvt_pk_bf16_f32 v121, v120, v122")
        A("v_lshlrev_b32 v120, 16, v121")
        for e in range(8):
            A(f"v_mov_b32_dpp v{124 + e}, v121 row_newbcast:{2 * e} {FULL}")
            if e == 0:
                A("v_readfirstlane_b32 s4, v120")
    else:
        A("v_cvt_pk_bf16_f32 v121, v120, v120")
        A(f"ds_write_b16 v29, v121 offset:{L_HN}")
        A("v_lshlrev_b32 v120, 16, v121")
        if csd:
            A("v_cndmask_b32 v66, v140, v144, s[54:55]")
        A("v_readfirstlane_b32 s4, v120")
        A("s_waitcnt lgkmcnt(0)")
        A(f"ds_read_b128 v[124:127], v25 offset:{L_HN}")
        A(f"ds_read_b128 v[128:131], v25 offset:{L_HN + 64}")
    A("v_subrev_f32 v148, s4, v120")
    A("v_mov_b32 v150, s4")
    A("v_mul_f32 v149, v148, v148")
    steps = [f"{m} {FULL}" for m in ("row_shr:1", "row_shr:2", "row_shr:4", "row_shr:8")] + ["row_bcast:15 row_mask:0xa bank_mask:0xf", "row_bcast:31 row_mask:0xc bank_mask:0xf"]
    mf = [f"v_mfma_f32_16x16x32_bf16 v[132:135], v[124:127], v[{GW}:{GW + 3}], 0",
          f"v_mfma_f32_16x16x32_bf16 v[136:139], v[124:127], v[{GW + 8}:{GW + 11}], 0",
          f"v_mfma_f32_16x16x32_bf16 v[132:135], v[128:131], v[{GW + 4}:{GW + 7}], v[132:135]",
          f"v_mfma_f32_16x16x32_bf16 v[136:139], v[128:131], v[{GW + 12}:{GW + 15}], v[136:139]"]
    for k, m in enumerate(steps):
        A(f"v_add_f32_dpp v148, v148, v148 {m}")
        A(f"v_add_f32_dpp v149, v149, v149 {m}")
        if k == (0 if cfast else 1):
            if not cfast:
                A("s_waitcnt lgkmcnt(0)")
            stamp_at(8)
            A(mf[0])
            A(mf[1])
        if k == (1 if cfast else 2):
            A(mf[2])
            A(mf[3])
    A("s_mov_b32 exec_lo, 0\ns_mov_b32 exec_hi, 0x80000000")
    A(f"ds_write_b96 v23, v[148:150] offset:{L_H}")
    A("s_mov_b32 exec_lo, -1\ns_mov_b32 exec_hi, 0")
    A("v_cndmask_b32 v66, v132, v136, s[54:55]")
    A("s_mov_b64 exec, -1")
    A(f"ds_write_b32 v26, v66 offset:{L_B}")
    A("s_waitcnt lgkmcnt(0)")
    stamp_at(9)
    if c4:
        A("s_cmp_lt_u32 s3, 4")
    A("s_barrier")
    if c4:
        A("s_cbranch_scc0 L_cdone")
    A(f"ds_read_b96 v[124:126], v24 offset:{L_H}")
    for i in range(8):
        A(f"ds_read_b32 v{128 + i}, v27 offset:{L_B + 256 * i}")
    nd = 0
    if dlast:
        nd = 6
        for r in range(nd):
            A(f"ds_read_u16_d16_hi v{DW + r}, v28 offset:{L_W + 32768 + 1024 * r}")
    A("s_waitcnt lgkmcnt(0)" if stamps else f"s_waitcnt lgkmcnt({8 + nd})")
    stamp_at(10)
    x8 = ("quad_perm:[1,0,3,2]", "quad_perm:[2,3,0,1]", "row_half_mirror")
    A("v_fma_f32 v127, v126, s63, v124")
    A("v_add_f32 v124, v124, v124")
    A("s_waitcnt lgkmcnt(0)" if stamps else f"s_waitcnt lgkmcnt({4 + nd})")
    A(f"v_add_f32_dpp v127, v127, v127 {x8[0]} {FULL}")
    A("v_pk_add_f32 v[128:129], v[128:129], v[130:131]")
    A("s_waitcnt lgkmcnt(0)" if stamps else f"s_waitcnt lgkmcnt({nd})")
    if dlast:
        for r in range(nd, 15):
            A(f"ds_read_u16_d16_hi v{DW + r}, v28 offset:{L_W + 32768 + 1024 * r}")
    A(f"v_add_f32_dpp v127, v127, v127 {x8[1]} {FULL}")
    A("v_pk_add_f32 v[132:133], v[132:133], v[134:135]")
    A("v_pk_add_f32 v[128:129], v[128:129], v[132:133]")
    A(f"v_add_f32_dpp v127, v127, v127 {x8[2]} {FULL}")
    A("v_add_f32 v120, v128, v129")
    A("v_add_f32 v121, v128, v129")
    A("v_mul_f32 v127, 0x3b000000, v127")
    A("v_sub_f32 v126, v127, v126")
    A("v_permlane32_swap_b32 v120, v121")
    A("v_fma_f32 v124, v126, s63, -v124")
    A("v_fma_f32 v125, v126, v124, v125")
    A("v_fma_f32 v122, -v127, v121, v120")
    A("v_fma_f32 v121, -v127, v121, v120")
    A(f"v_add_f32_dpp v125, v125, v125 {x8[0]} {FULL}")
    A("v_mov_b32 v120, v122")
    A(f"v_add_f32_dpp v125, v125, v125 {x8[1]} {FULL}")
    A("v_permlane16_swap_b32 v120, v121")
    A(f"v_add_f32_dpp v125, v125, v125 {x8[2]} {FULL}")
    if dlast:
        A("s_waitcnt lgkmcnt(0)")
        A(f"ds_read_u16_d16_hi v{DW + 15}, v28 offset:{L_W + 32768 + 1024 * 15}")
    A("v_fma_f32 v125, v125, v67, v68")
    A("v_rsq_f32 v125, v125")
    A("v_mul_f32 v120, v120, v125")
    A("v_mul_f32 v121, v121, v125")
    A("v_mul_f32 v122, v120, v120")
    A("v_mul_f32 v121, v120, v121")
    A("v_fma_f32 v122, v122, v69, v70")
    A("v_mul_f32 v122, v122, v120")
    A("v_exp_f32 v122, v122")
    A("v_add_f32 v122, 1.0, v122")
    A("v_rcp_f32 v122, v122")
    A("v_mul_f32 v120, v121, v122")
    if dlast:
        A("s_waitcnt lgkmcnt(0)")
    if c4:
        for r in range(16):
            op = "mul" if r < 2 else "fmac"
            A(f"v_{op}_f32_dpp v{124 + 2 * (r & 1)}, v120, v{DW + r} row_newbcast:{r} {FULL}")
            A(f"v_{op}_f32_dpp v{125 + 2 * (r & 1)}, v120, v{40 + r} row_newbcast:{r} {FULL}")
        A("v_pk_add_f32 v[124:125], v[124:125], v[126:127]")
        A(f"v_mov_b32_dpp v126, v124 quad_perm:[1,1,3,3] {FULL}")
        A(f"v_mov_b32_dpp v127, v125 quad_perm:[1,1,3,3] {FULL}")
        A("s_mov_b32 exec_lo, 0x55555555\ns_mov_b32 exec_hi, 0x55555555")
        A("global_store_dwordx4 v22, v[124:127], s[38:39] sc1")
        if dup is not None and dup3:
            A("global_store_dwordx4 v21, v[124:127], s[38:39] sc1")
        A("s_mov_b64 exec, -1")
    else:
        for r in range(16):
            op = "mul" if r < 4 else "fmac"
            A(f"v_{op}_f32_dpp v{124 + (r & 3)}, v120, v{DW + r} row_newbcast:{r} {FULL}")
        A("v_pk_add_f32 v[124:125], v[124:125], v[126:127]")
        A("v_add_f32 v124, v124, v125")
        store_quad(124, 22, fl=st3, addr2=21 if (dup is not None and dup3) else None)
    A("L_cdone:")
    stamp_at(7)
    stamp_store()
    A("s_endpgm")
    A("L_final:")
    A("s_barrier")
    A("s_sub_u32 s15, s7, 14\ns_lshl_b32 s4, s6, 1\ns_add_u32 s15, s15, s4")
    A("v_and_b32 v16, 7, v0\nv_lshrrev_b32 v17, 3, v0\nv_lshlrev_b32 v17, 11, v17\nv_lshl_add_u32 v17, v16, 4, v17")
    A("v_and_b32 v22, 31, v0\ns_lshl_b32 s4, s15, 6\nv_lshl_add_u32 v18, v22, 1, s4")
    A("v_lshlrev_b32 v22, 2, v22")
    sigma(23, 24)
    A("v_lshl_add_u32 v23, v16, 2, v23\nv_lshl_add_u32 v19, v23, 1, s4")
    A(f"ds_read_u16_d16_hi v19, v19 offset:{L_X}")
    A("s_lshl_b32 s4, s3, 7\nv_lshl_add_u32 v23, v23, 2, s4")
    if dup is None:
        A(f"s_lshl_b32 s4, s3, 15\ns_add_u32 s4, s4, {WS_P3}")
        A("s_cmp_eq_u32 s3, 7")
        A(f"s_cselect_b32 s4, {WS_P2}, s4")
        A("s_lshl_b32 s5, s15, 7\ns_add_u32 s4, s4, s5")
        A("v_add_u32 v20, s4, v17\nv_add_u32 v21, 0x4000, v20")
    else:
        A("v_lshrrev_b32 v24, 5, v0\nv_lshlrev_b32 v24, 13, v24")
        mycopy("s8")
        A(f"s_lshl_b32 s4, s3, {16 if dup3 else 15}\ns_add_u32 s4, s4, {WS_P3}")
        A("s_cmp_eq_u32 s3, 7")
        A(f"s_cselect_b32 s4, {WS_P2}, s4")
        if dup3:
            A("s_add_u32 s4, s4, s8\ns_mov_b32 s9, 0x8000")
        else:
            A("s_cselect_b32 s8, s8, 0\ns_movk_i32 s9, 0x4000\ns_cselect_b32 s9, 0x8000, s9\ns_cselect_b32 s5, -1, 0\ns_add_u32 s4, s4, s8\nv_and_b32 v24, s5, v24")
        A("s_lshl_b32 s5, s15, 7\ns_add_u32 s4, s4, s5")
        A("v_add3_u32 v20, v17, v24, s4\nv_add_u32 v21, s9, v20")
    loads = [f"global_load_dwordx4 v[{120 + 4 * i}:{123 + 4 * i}], v{20 + i}, s[38:39] {ld3}" for i in range(2)]
    if dsleep is not None:
        A("s_cmp_eq_u32 s3, 7")
        A("s_cbranch_scc1 L_dgo")
        A("s_barrier")
        A(f"s_sleep {dsleep}")
        A("L_dgo:")
    poll("L_poll3", loads, range(120, 128), 16)
    if dsleep is not None:
        A("s_cmp_eq_u32 s3, 7")
        A("s_cbranch_scc0 L_dgo2")
        A("s_barrier")
        A("L_dgo2:")
    stamp_at(6)
    for e in range(4):
        A(f"v_add_f32 v{120 + e}, v{120 + e}, v{124 + e}")
    scatter4(120)
    A(f"v_add_f32_dpp v120, v120, v120 row_ror:8 {FULL}")
    A("s_cmp_eq_u32 s3, 7")
    A("s_cbranch_scc0 L_dnoh")
    A("s_waitcnt lgkmcnt(0)")
    A("v_add_f32 v120, v120, v19")
    rbf(120)
    A("L_dnoh:")
    A("s_mov_b32 exec_lo, 0x00ff00ff\ns_mov_b32 exec_hi, 0x00ff00ff")
    A(f"ds_write_b32 v23, v120 offset:{L_B}")
    A("s_mov_b64 exec, -1")
    A("s_cmp_eq_u32 s3, 0")
    A("s_waitcnt lgkmcnt(0)")
    A("s_barrier")
    A("s_cbranch_scc0 L_ddone")
    for i in range(8):
        A(f"ds_read_b32 v{120 + i}, v22 offset:{L_B + 128 * i}")
    A("s_waitcnt lgkmcnt(0)")
    for i in range(2):
        A(f"v_pk_add_f32 v[{120 + 2 * i}:{121 + 2 * i}], v[{120 + 2 * i}:{121 + 2 * i}], v[{124 + 2 * i}:{125 + 2 * i}]")
    A("v_pk_add_f32 v[120:121], v[120:121], v[122:123]")
    A("v_add_f32 v120, v120, v121")
    if perturb:
        import struct
        kind, val = perturb
        h = hex(struct.unpack("<I", struct.pack("<f", val))[0])
        if kind == "add": A(f"v_add_f32 v120, {h}, v120")
        if kind == "mul": A(f"v_mul_f32 v120, {h}, v120")
        if kind == "one":
            A("s_cmp_eq_u32 s15, 0\ns_cselect_b32 s4, 1, 0\ns_mov_b32 s5, 0\ns_mov_b64 exec, s[4:5]")
            A(f"v_add_f32 v120, {h}, v120\ns_mov_b64 exec, -1")
    A(f"v_mov_b32_dpp v121, v120 quad_perm:[1,0,3,2] {FULL}")
    A("v_cvt_pk_bf16_f32 v120, v120, v121")
    A("s_mov_b64 exec, 0x55555555")
    A("global_store_dword v18, v120, s[34:35]" + (" " + outfl if outfl else ""))
    A("L_ddone:")
    stamp_at(7)
    stamp_store()
    A("s_endpgm")

    for _ in range(pad3):
        A("s_nop 0")
    A("L_service:")
    A("s_setprio 3")
    A(f"v_mov_b32 v98, {L_F}\nv_mov_b32 v99, 0")
    A("ds_write_b32 v98, v99")
    A("ds_write_b32 v98, v99 offset:8")
    A("ds_write_b32 v98, v99 offset:12")
    A("ds_write_b32 v98, v99 offset:20")
    if not qearly:
        A("s_waitcnt lgkmcnt(0)")
        A("s_barrier")
    for i in range(4):
        A(f"v_mov_b32 v{100 + i}, -1")
    roles()
    p1slot("s4")
    A("v_add_u32 v104, s4, v9")
    A("s_cmp_eq_u32 s7, 0")
    A("s_waitcnt lgkmcnt(0)")
    if "svcoff" in xp:
        A("s_barrier\ns_branch L_svcbar" if qearly else "s_branch L_svcbar")
    A("s_cbranch_scc0 L_qcleared")
    A(f"s_lshl_b32 s10, s60, 13\nv_add_u32 v3, s10, v9\nv_add_u32 v8, 0x1000, v3")
    for i in range(8):
        A(f"global_store_dwordx4 v{3 if i < 4 else 8}, v[100:103], s[38:39] offset:{1024 * (i & 3)} sc1")
    A(f"s_lshl_b32 s10, s60, 7\ns_add_u32 s10, s10, {WS_F}\nv_add_u32 v3, s10, v9")
    A(f"s_lshl_b32 s10, s6, 7\ns_add_u32 s10, s10, {WS_G}\nv_add_u32 v8, s10, v9")
    A("s_mov_b64 exec, 0xff")
    A("global_store_dwordx4 v3, v[100:103], s[38:39] sc1")
    A("global_store_dwordx4 v8, v[100:103], s[38:39] sc1")
    if adapt or rankpre:
        A(f"global_store_dwordx4 v8, v[100:103], s[38:39] offset:{WS_R - WS_G - 4096 + 4096 - 0 if WS_R - WS_G < 4096 else 0} sc1" if False else f"v_add_u32 v8, {WS_R - WS_G}, v8\nglobal_store_dwordx4 v8, v[100:103], s[38:39] sc1")
    if dup == "auto" and vpos:
        A(f"v_add_u32 v8, {WS_V - WS_R}, v8\nglobal_store_dwordx4 v8, v[100:103], s[38:39] sc1")
    A("s_mov_b64 exec, -1")
    A("L_qcleared:")
    if qearly:
        A("s_barrier")
    nyoung = 0
    if "noclear" not in xp and sclr is None:
        A("global_store_dwordx4 v104, v[100:103], s[38:39] sc1")
        A("global_store_dwordx4 v104, v[100:103], s[38:39] offset:1024 sc1")
        nyoung += 2
        A("s_cmp_lt_u32 s7, 14")
        A("s_cbranch_scc0 L_noclr3")
        A(f"s_lshl_b32 s4, s15, 11\ns_add_u32 s4, s4, {WS_P3}\nv_add_u32 v105, s4, v9")
        A("global_store_dwordx4 v105, v[100:103], s[38:39] sc1")
        A("global_store_dwordx4 v105, v[100:103], s[38:39] offset:1024 sc1")
        A("L_noclr3:")
        A("s_cmp_ge_u32 s7, 16")
        A("s_cbranch_scc0 L_noclr2")
        A(f"s_lshl_b32 s4, s13, 11\ns_lshl_b32 s5, s14, 8\ns_add_u32 s4, s4, s5\ns_add_u32 s4, s4, {WS_P2}\nv_add_u32 v105, s4, v9")
        A("s_mov_b64 exec, 0xffff")
        A("global_store_dwordx4 v105, v[100:103], s[38:39] sc1")
        A("s_mov_b64 exec, -1")
        A("L_noclr2:")
    stamp_at(1)
    A("v_lshlrev_b32 v96, 5, v0")
    A("s_cmp_eq_u32 s7, 0")
    A("s_cbranch_scc0 L_noqflag")
    A("s_lshl_b32 s4, s60, 5\nv_mov_b32 v104, s4\nv_mov_b32 v105, 1")
    A(f"s_waitcnt vmcnt({4 if ('noclear' not in xp and sclr is None) else 0})")
    A("s_mov_b64 exec, 1")
    A("global_store_dword v104, v105, s[36:37] sc1")
    A("s_mov_b64 exec, -1")
    A("L_noqflag:")
    ldswait("L_waitwq", 12, 8)

    def firstlook():
        A("s_mov_b64 exec, 0xff")
        A("global_load_dword v97, v96, s[36:37] sc1")
        A("s_mov_b64 exec, -1")
    if qearly:
        firstlook()
    A(f"ds_read_b128 v[4:7], v9 offset:{L_X}")
    A("s_waitcnt lgkmcnt(0)")
    stamp_at(2)
    X = list(range(8, 16))
    X[1] = 3
    for i in range(4):
        A(f"v_lshlrev_b32 v{X[2 * i]}, 16, v{4 + i}")
        A(f"v_and_b32 v{X[2 * i + 1]}, 0xffff0000, v{4 + i}")
    ln_stats(X, 16, 17, 18, 19, 20, list(range(22, 30)))
    ln_apply(X, 16, 17, 18, list(range(22, 30)))
    for i in range(4):
        A(f"v_cvt_pk_bf16_f32 v{4 + i}, v{X[2 * i]}, v{X[2 * i + 1]}")
    A(f"ds_write_b128 v9, v[4:7] offset:{L_HN}")
    A(f"s_and_b32 s4, s7, {KS - 1}\ns_lshl_b32 s4, s4, {10 - KL}\nv_lshrrev_b32 v17, 4, v0\nv_lshl_add_u32 v16, v17, 4, s4")
    A("v_bfe_u32 v18, v0, 2, 2\nv_lshl_add_u32 v17, v17, 3, v18\nv_lshlrev_b32 v17, 7, v17\nv_and_b32 v18, 3, v0\nv_lshl_add_u32 v17, v18, 3, v17")
    A("s_waitcnt lgkmcnt(0)")
    NK = NQ // 4
    for k in range(NK):
        A(f"ds_read_b128 v[{32 + 4 * k}:{35 + 4 * k}], v16 offset:{L_HN + 64 * k}")
    stamp_at(3)
    if not qearly:
        firstlook()
    for k in range(NK):
        A("s_waitcnt lgkmcnt(0)")
        b = 64 + 16 * (k & 1)
        for tau in range(4):
            for t in range(2):
                r = b + 4 * tau + 2 * t
                A(f"ds_read_b64_tr_b16 v[{r}:{r + 1}], v17 offset:{L_W + 4096 * k + 512 * t + 32 * tau}")
        if k > 0:
            bp = 64 + 16 * ((k - 1) & 1)
            for tau in range(4):
                c = "0" if k == 1 else f"v[{112 + 4 * tau}:{115 + 4 * tau}]"
                A(f"v_mfma_f32_16x16x32_bf16 v[{112 + 4 * tau}:{115 + 4 * tau}], v[{28 + 4 * k}:{31 + 4 * k}], v[{bp + 4 * tau}:{bp + 4 * tau + 3}], {c}")
    A("s_waitcnt lgkmcnt(0)")
    for tau in range(4):
        A(f"v_mfma_f32_16x16x32_bf16 v[{112 + 4 * tau}:{115 + 4 * tau}], v[{28 + 4 * NK}:{31 + 4 * NK}], v[{80 + 4 * tau}:{83 + 4 * tau}], v[{112 + 4 * tau}:{115 + 4 * tau}]")
    A(f"s_lshl_b32 s4, s60, {11 + KL}\ns_and_b32 s5, s7, {KS - 1}\ns_lshl_b32 s5, s5, 11\ns_add_u32 s4, s4, s5\ns_lshr_b32 s5, s7, {KL}\ns_lshl_b32 s5, s5, 8\ns_add_u32 s4, s4, s5")
    A("v_lshl_add_u32 v17, v0, 2, s4")
    for tau in range(1, 4):
        A(f"v_mov_b32_dpp v112, v{112 + 4 * tau} quad_perm:[0,1,2,3] row_mask:{hex(1 << tau)} bank_mask:0xf")
    for i in (1, 2, 3):
        A(f"v_mov_b32_dpp v{112 + i}, v112 quad_perm:[{i},{i},{i},{i}] {FULL}")
    A("L_qdone:")
    A(f"s_lshl_b32 s4, s60, 5\ns_add_u32 s4, s4, s7\ns_lshl_b32 s4, s4, 2\ns_add_u32 s4, s4, {WS_F}\nv_mov_b32 v18, s4")
    A(f"s_lshl_b32 s4, s6, {11 + KL}\nv_add_u32 v19, s4, v9\nv_add_u32 v20, 0x1000, v19")
    A("s_getreg_b32 s62, hwreg(HW_REG_XCC_ID, 0, 4)\nv_mov_b32 v21, s62")
    A("s_lshl_b32 s4, 1, s60\ns_lshl_b32 s5, 1, s6\ns_or_b32 s4, s4, s5")
    if adapt:
        A(f"s_add_u32 s5, s7, {qrot}\ns_and_b32 s5, s5, 7\ns_lshl_b32 s5, 1, s5\ns_or_b32 s4, s4, s5")
    A("s_mov_b32 s5, 0")
    stamp_at(4)
    if "svc1" in xp: A("s_branch L_svcbar2")
    A("L_pollf:")
    A("s_waitcnt vmcnt(0) lgkmcnt(0)")
    A("v_cmp_ne_u32 vcc, 1, v97")
    A("s_and_b32 s57, vcc_lo, s4")
    A("s_cbranch_scc0 L_pollf_ok")
    A(f"s_add_u32 s5, s5, 1\ns_cmp_lt_u32 s5, {SPIN_MAX}\ns_cbranch_scc0 L_pollf_ok")
    A("s_sleep 8")
    A("s_mov_b64 exec, 0xff")
    A("global_load_dword v97, v96, s[36:37] sc1")
    A("s_mov_b64 exec, -1")
    A("s_branch L_pollf")
    A("L_pollf_ok:")
    if KS == 2:
        A("s_cmp_lt_u32 s7, 16")
        A("s_cbranch_scc0 L_noqpub")
    A("s_mov_b32 exec_lo, 0x11111111\ns_mov_b32 exec_hi, 0x11111111")
    A("global_store_dwordx4 v17, v[112:115], s[38:39] sc1")
    A("L_noqpub:")
    A("s_mov_b64 exec, 1")
    A("global_store_dword v18, v21, s[38:39] sc1")
    A("s_mov_b64 exec, -1")
    stamp_at(5)
    if "svc2" in xp: A("s_branch L_svcbar2")
    if warm:
        if warm == "one":
            A("s_cmp_eq_u32 s7, 1")
            A("s_cbranch_scc0 L_nowarm")
        A("s_getpc_b64 s[48:49]")
        A("L_pc:")
        A(f"s_sub_u32 s48, s48, L_pc-{NAME}_kernel\ns_subb_u32 s49, s49, 0")
        A(f"s_mov_b32 s4, L_codeend-{NAME}_kernel-16\nv_mov_b32 v2, v9\ns_mov_b32 s5, 0")
        A("L_warm:")
        A("v_min_u32 v3, s4, v2")
        A("global_load_dwordx4 v[128:131], v3, s[48:49]")
        A("v_add_u32 v2, 1024, v2\ns_add_u32 s5, s5, 1024\ns_cmp_lt_u32 s5, s4\ns_cbranch_scc1 L_warm")
        A("L_nowarm:")
    if adapt:
        A(f"s_and_b32 s4, s7, 7\ns_lshl_b32 s4, s4, 7\ns_add_u32 s4, s4, {WS_R}\nv_mov_b32 v26, s4\nv_mov_b32 v27, 1")
    ldswait("L_waitpos", 8)
    if adapt:
        A("s_mov_b64 exec, 1")
        A("global_atomic_add v28, v26, v27, s[38:39] sc0 sc1")
        A("s_mov_b64 exec, -1")
    poll("L_pollq", [f"global_load_dwordx4 v[{32 + 4 * i}:{35 + 4 * i}], v{19 + (i >> 2)}, s[38:39] offset:{1024 * (i & 3)} sc1" for i in range(2 * KS)],
         range(32, 32 + 8 * KS), 16, slp=qsleep)
    stamp_at(6)
    for e in range(8):
        A(f"v_add_f32 v{32 + e}, v{32 + e}, v{40 + e}")
        if KS == 4:
            A(f"v_add_f32 v{48 + e}, v{48 + e}, v{56 + e}")
    if KS == 4:
        for e in range(8):
            A(f"v_add_f32 v{32 + e}, v{32 + e}, v{48 + e}")
    for e in range(4):
        A(f"v_cvt_pk_bf16_f32 v{40 + e}, v{32 + 2 * e}, v{33 + 2 * e}")
    A("v_lshlrev_b32 v16, 3, v0")
    A(f"ds_write_b64 v16, v[40:41] offset:{L_Q}")
    A(f"ds_write_b64 v16, v[42:43] offset:{L_Q + 512}")
    if adapt:
        A("v_readfirstlane_b32 s4, v28")
        A("s_add_u32 s4, s4, 2")
        A("v_mov_b32 v99, s4")
    else:
        A("v_mov_b32 v99, 1")
    A("s_waitcnt lgkmcnt(0)")
    A("ds_write_b32 v98, v99")
    stamp_at(7)
    if "svc4" in xp: A("s_branch L_svcbar2")
    A("s_mov_b32 s5, 0")
    A("L_pollf2:")
    A("s_mov_b64 exec, 0xff")
    A("global_load_dword v97, v96, s[36:37] sc1")
    A("s_waitcnt vmcnt(0)")
    A("v_cmp_ne_u32 vcc, 1, v97")
    A("s_mov_b64 exec, -1")
    A("s_cbranch_vccz L_pollf2_ok")
    A(f"s_add_u32 s5, s5, 1\ns_cmp_lt_u32 s5, {SPIN_MAX}\ns_cbranch_scc1 L_pollf2")
    A("L_pollf2_ok:")
    stamp_at(8)
    A(f"v_add_u32 v19, {WS_F}, v9")
    poll("L_pollall", ["global_load_dwordx4 v[32:35], v19, s[38:39] sc1"], range(32, 36), 16, slp=16)
    stamp_at(9)
    A("v_xor_b32 v32, v32, v21\nv_xor_b32 v33, v33, v21\nv_xor_b32 v34, v34, v21\nv_xor_b32 v35, v35, v21")
    A("v_or_b32 v32, v32, v33\nv_or3_b32 v32, v32, v34, v35")
    A("v_cmp_ne_u32 vcc, 0, v32")
    A("s_lshl_b32 s4, s60, 3\ns_lshr_b64 s[4:5], vcc, s4\ns_and_b32 s4, s4, 0xff")
    A("s_cselect_b32 s4, 0, 1" if local and "far" not in xp else "s_mov_b32 s4, 0")
    A("L_svcend:")
    A("s_mov_b32 s63, s4")
    if dup == "auto":
        A(f"s_andn2_b32 s8, s7, 4\ns_lshl_b32 s9, s6, 5\ns_add_u32 s8, s8, s9\ns_lshl_b32 s8, s8, 11\ns_and_b32 s9, s7, 4\ns_lshl_b32 s9, s9, 8")
        A(f"s_add_u32 s8, s8, s9\ns_add_u32 s8, s8, {WS_P1}\ns_add_u32 s12, s38, s8\ns_addc_u32 s13, s39, 0\ns_mov_b32 s10, 0")
        A("s_waitcnt lgkmcnt(0)")
        for t in range(ntr):
            A("s_mov_b32 s8, 0\ns_mov_b32 s9, 0")
            o0, o1 = 128 * t, 128 * t + 8192
            A(f"s_load_dword s9, s[12:13], {o1}\ns_load_dword s8, s[12:13], {o0}" if t & 1 else f"s_load_dword s8, s[12:13], {o0}\ns_load_dword s9, s[12:13], {o1}")
            A("s_waitcnt lgkmcnt(1)")
            A("s_sub_u32 s11, s9, s8")
            A("s_waitcnt lgkmcnt(0)")
            A("s_add_u32 s10, s10, s11")
        if vpos:
            A("s_cmp_eq_u32 s63, 1")
            A("s_cbranch_scc0 L_novote")
            A(f"s_lshl_b32 s8, s6, 7\ns_add_u32 s8, s8, {WS_V}\nv_and_b32 v16, 31, v0\nv_lshl_add_u32 v16, v16, 2, s8")
            A("s_lshl_b32 s9, s7, 2\ns_add_u32 s8, s8, s9\nv_mov_b32 v17, s8\ns_add_u32 s10, s10, 16\nv_mov_b32 v18, s10")
            A("s_mov_b64 exec, 1\nglobal_store_dword v17, v18, s[38:39]\ns_mov_b64 exec, -1")
            ldswait("L_waitv", 20)
            A("global_load_dword v18, v16, s[38:39] sc1")
            A("s_waitcnt vmcnt(0)")
            A("v_cmp_lt_i32 vcc, 16, v18")
            A("s_bcnt1_i32_b64 s10, vcc")
            A("v_cmp_gt_u32 vcc, 16, v18")
            A("s_bcnt1_i32_b64 s8, vcc")
            A("s_sub_u32 s10, s10, s8")
            A("L_novote:")
        A("s_cmp_lt_i32 s10, 0\ns_cselect_b32 s10, 0x2000, 0\nv_mov_b32 v99, s10")
        A("ds_write_b32 v98, v99 offset:16")
        roles()
    A("v_mov_b32 v99, s63")
    A("ds_write_b32 v98, v99 offset:4")
    A(f"s_lshl_b32 s4, s6, 7\ns_add_u32 s4, s4, {WS_G}\nv_and_b32 v16, 31, v0\nv_lshl_add_u32 v16, v16, 2, s4")
    A("s_lshl_b32 s5, s7, 2\ns_add_u32 s4, s4, s5\nv_mov_b32 v17, s4\nv_mov_b32 v18, 0")
    A(f"s_and_b32 s4, s7, {0 if rankpre else 15}\ns_mul_i32 s4, s4, {32 * 3584}\ns_mul_i32 s5, s6, 448\ns_andn2_b32 s5, s5, 127\ns_add_u32 s4, s4, s5")
    A("v_lshrrev_b32 v21, 5, v0\nv_mul_u32_u24 v21, 3584, v21\nv_and_b32 v22, 31, v0\nv_lshl_add_u32 v21, v22, 4, v21\nv_add_u32 v21, s4, v21")
    if rankpre:
        A(f"s_lshl_b32 s4, s6, 7\ns_add_u32 s4, s4, {WS_R}\nv_mov_b32 v26, s4\nv_mov_b32 v27, 1")
        A("s_lshl_b32 s4, s7, 1\ns_sub_u32 s4, s4, 1\nv_mov_b32 v28, 0")
    A("v_lshrrev_b32 v22, 1, v0\nv_mul_u32_u24 v22, 3584, v22\nv_and_b32 v23, 1, v0\nv_lshl_add_u32 v22, v23, 4, v22\ns_lshl_b32 s4, s15, 5\nv_add_u32 v22, s4, v22")
    A("s_lshl_b32 s4, s15, 14\nv_add_u32 v23, s4, v9")
    A("s_waitcnt lgkmcnt(0)")
    A("s_barrier")
    A("s_barrier")
    A("s_barrier")
    assert gate and dsplit

    def wloop(label, n, lds, body):
        A(f"s_mov_b32 s5, {n}")
        if lds is not None:
            A(f"s_mov_b32 m0, {lds}")
        A(f"{label}:")
        body()
        A(f"s_sub_u32 s5, s5, 1\ns_cmp_lg_u32 s5, 0\ns_cbranch_scc1 {label}")

    def b_pre():
        A("global_load_dwordx4 v[32:35], v21, s[28:29]")
        A("global_load_dwordx4 v[32:35], v21, s[30:31]")
        A("v_add_u32 v21, 7168, v21")

    def b_down():
        A(f"global_load_lds_dwordx4 v23, s[32:33]{wntf}")
        A("v_add_u32 v23, 1024, v23\ns_add_u32 m0, m0, 1024")

    def b_gu():
        A("global_load_lds_dwordx4 v22, s[28:29]")
        A("s_add_u32 m0, m0, 16384")
        A("global_load_lds_dwordx4 v22, s[30:31]")
        A(f"v_add_u32 v22, {32 * 3584}, v22\ns_sub_u32 m0, m0, {16384 - 1024}")

    def only(cond, label, body):
        A(cond)
        A(f"s_cbranch_scc0 {label}")
        body()
        A(f"{label}:")
    after_pre = 0
    for k, step in enumerate(pm):
        if step in "SgG" and not gsync:
            continue
        if step in "PDU" and "now" in xp:
            continue
        if step == "D" and dlate and not dlast:
            continue
        if step == "S":
            def sig():
                A("s_mov_b64 exec, 1\nglobal_store_dword v17, v18, s[38:39]")
                if rankpre:
                    only("s_cmp_lt_u32 s7, 16", "L_norank", lambda: A("global_atomic_add v28, v26, v27, s[38:39] sc0 sc1"))
                A("s_mov_b64 exec, -1")
            only("s_cmp_eq_u32 s63, 1", "L_nosig", sig)
        elif step in "12":
            A("s_barrier")

        elif step == "g":
            only("s_cmp_eq_u32 s63, 1", f"L_nog{k}", lambda: A("global_load_dword v19, v16, s[38:39] sc1"))
        elif step == "G":
            def gwait():
                A("s_mov_b32 s5, 0")
                A("L_pollg:")
                A("s_waitcnt vmcnt(0)")
                A("v_cmp_eq_u32 vcc, -1, v19")
                if gmiss:
                    A(f"s_bcnt1_i32_b32 s4, vcc_lo\ns_cmp_le_u32 s4, {gmiss}\ns_cbranch_scc1 L_gok")
                else:
                    A("s_cbranch_vccz L_gok")
                A(f"s_add_u32 s5, s5, 1\ns_cmp_lt_u32 s5, {SPIN_MAX}\ns_cbranch_scc0 L_gok")
                A(f"s_sleep {gsleep}")
                A("global_load_dword v19, v16, s[38:39] sc1")
                A("s_branch L_pollg")
            only("s_cmp_eq_u32 s63, 1", "L_gok", gwait)
            stamp_at(10)
        elif step == "P":
            if pref and not rankpre:
                only("s_cmp_lt_u32 s7, 16", "L_nopre", lambda: wloop("L_wpre", 16, None, b_pre))
            if pref and rankpre:
                def pre():
                    A("s_waitcnt vmcnt(0)")
                    A("v_readfirstlane_b32 s8, v28")
                    A("s_add_u32 s8, s8, 1\ns_mul_i32 s9, s8, 3\ns_lshl_b32 s4, s8, 1\ns_add_u32 s4, s4, 8")
                    A("s_cmp_lt_u32 s8, 8\ns_cselect_b32 s9, s9, s4\ns_cselect_b32 s5, 24, 16")
                    A("s_cmp_lt_u32 s8, 12\ns_cselect_b32 s5, s5, 0")
                    A("s_lshl_b32 s4, s7, 1\ns_cmp_eq_u32 s63, 1\ns_cselect_b32 s9, s9, s4\ns_cselect_b32 s5, s5, 16")
                    A(f"s_mul_i32 s9, s9, {16 * 3584}\nv_add_u32 v21, s9, v21")
                    A("s_cmp_eq_u32 s5, 0\ns_cbranch_scc1 L_nopre")
                    A("L_wpre:")
                    b_pre()
                    A("s_sub_u32 s5, s5, 1\ns_cmp_lg_u32 s5, 0\ns_cbranch_scc1 L_wpre")
                    A("s_waitcnt vmcnt(30)")
                only("s_cmp_lt_u32 s7, 16", "L_nopre", pre)
            after_pre = 0
        elif step == "D":
            A("s_waitcnt vmcnt(46)")
            only("s_cmp_lt_u32 s7, 14", "L_nodown", lambda: wloop("L_wdown", 16, L_W + 32768, b_down))
            after_pre = 16
        elif step == "w":
            A(f"s_waitcnt vmcnt({after_pre})")
            stamp_at(11)
        elif step == "z":
            A(f"s_sleep {cdelay}")
        elif step == "U":
            only("s_cmp_lt_u32 s7, 14", "L_nogu", lambda: wloop("L_wgu", 16, L_W, b_gu))
    only("s_cmp_lt_u32 s7, 14", "L_wdone", lambda: A("s_waitcnt vmcnt(16)\ns_barrier" if dlast else "s_barrier" if dlate else "s_waitcnt vmcnt(32)\ns_barrier"))
    A("s_waitcnt vmcnt(0)")
    stamp_at(12)
    if stamps:
        A("s_waitcnt lgkmcnt(0)")
        for i in range(16):
            A(f"v_writelane_b32 v4, s{64 + 2 * i}, {i}")
        A(f"v_lshlrev_b32 v5, 2, v0\nds_write_b32 v5, v4 offset:{L_G}\ns_waitcnt lgkmcnt(0)")
    A("s_barrier")
    A("s_endpgm")
    A("L_svcbar:")
    A("L_svcbar2:")
    A("v_mov_b32 v99, 1")
    A("ds_write_b32 v98, v99")
    A("s_mov_b32 s4, 0")
    A("s_branch L_svcend")
    A("L_end:")
    A("s_endpgm")
    A("L_codeend:")

    if jitter is not None:
        import random
        rnd = random.Random(jitter)
        C2 = []
        k = 0
        for blk in C:
            for ln in blk.split("\n"):
                if ln.startswith(("s_barrier", "global_store", "global_atomic")) and rnd.random() < 0.7:
                    k += 1
                    C2.append(f"s_cselect_b32 s91, 1, 0\ns_mul_i32 s90, s2, {rnd.randrange(3, 99, 2)}\ns_add_u32 s90, s90, s3\ns_mul_i32 s90, s90, {rnd.randrange(1001, 99999, 2)}")
                    C2.append(f"s_lshr_b32 s90, s90, 5\ns_and_b32 s90, s90, {rnd.choice((3, 7, 15, 63))}\ns_cmp_eq_u32 s90, 1\ns_cbranch_scc0 L_jit{k}\ns_sleep {rnd.choice((2, 10, 40, 120))}\nL_jit{k}:\ns_cmp_eq_u32 s91, 1")
                C2.append(ln)
        C = C2
    body = fix(C)
    out = HEADER
    out += f"; @launch grid=(256,1,1) block=(576,1,1) lds={LDS_BYTES}\n"
    out += '.amdgcn_target "amdgcn-amd-amdhsa--gfx950"\n.text\n'
    out += f".globl {NAME}_kernel\n.p2align 8\n.type {NAME}_kernel,@function\n{NAME}_kernel:\n"
    out += "\n".join(("" if l.endswith(":") else "    ") + l for l in body) + "\n"
    out += f""".section .rodata,"a"
.p2align 6
.amdhsa_kernel {NAME}_kernel
  .amdhsa_next_free_vgpr 168
  .amdhsa_next_free_sgpr 96
  .amdhsa_accum_offset 168
  .amdhsa_group_segment_fixed_size 0
  .amdhsa_kernarg_size 96
  .amdhsa_user_sgpr_count 2
  .amdhsa_user_sgpr_kernarg_segment_ptr 1
  .amdhsa_system_sgpr_workgroup_id_x 1
  .amdhsa_float_denorm_mode_32 3
.end_amdhsa_kernel
"""
    return out


if __name__ == "__main__":
    cfg = eval("dict(" + (sys.argv[2] if len(sys.argv) > 2 else "") + ")")
    open(sys.argv[1], "w").write(gen(**cfg))
```

```python
import sys
from asmlib import fix, VM

NAME = "sequential_preLN__gqa_block_cached__glu_gated_geglu__decode"
HEADER = open("cdna_kernels/" + NAME + ".s.ref").read().split("; Override launch")[0]

WS_Q = 0x0
WS_F = 0x10000
WS_G = 0x11000
WS_R = 0x12000
WS_V = 0x13000
WS_P1 = 0x20000
P1_STRIDE = 2048
WS_P2 = 0xB0000
WS_P3 = 0xC0000
WS_STAMP = 0x200000
L_Q = 0
L_X = 1024
L_M = 2048
L_L = 2176
L_F = 2304
L_B = 2560
L_H = 4608
L_HN = 6656
L_G = 7680
L_W = 8704
L_K = L_W + 49152
KRING = 3
VRING = 5
LDS_BYTES = L_K + 8 * KRING * 4096

LOG2E = 0x3FB8AA3B
SCALE = 0x3DB504F3
FULL = "row_mask:0xf bank_mask:0xf"
SPIN_MAX = 200000


def gen(D=3, D2=3, nt=True, inter="global", stamps=False, wnt=True, warm='one', sleep=1, qsleep=4,
        xp=(), masked=True, qrot=4, local=True, qpos=18, pref=True, fold=True, bpos=None, bwait=False, ppos=None, kfirst=True, wb=False, pad1=0, pad2=0, pad3=0, gsync=True, gsleep=2, cdelay=0, opos=None, enc=None, dsplit=True, early=False, gate=True, sclr='after', qearly=True, lpos='b1b', order=None, pm='Sg2GPU', dsleep=None, cfast=False, adapt=None, d2from=32, D3=None, d3from=56, split=False, dup='auto', dup3=True, rankpre=True, gmiss=16, ntr=2, vpos=44, dlate=True, outfl='', jitter=None, p1plain=False, clrpos=3, wqfirst=False, dseq=None, NB=3, bar1c=True, lp=('c', 'c', 'c', 'c'), dlast=False, csd=False, c4=True, b4=False, bprep=True, txor=None, clrbal=True, crot=0):
    C = []
    A = C.append
    if dlast:
        pm = pm + "D"
    ntf = " nt" if nt else ""
    wntf = " nt" if wnt else ""
    D2 = D if D2 is None else D2
    hmap = "xcd"; KS = 4; ld2 = ld3 = st2 = st3 = "sc1"; peel = False; late4 = True; cpos = ("end",) * 6; fastln = True; perturb = None
    bpos = (D + max(3, clrpos) if kfirst else D) if bpos is None else bpos
    KL = KS.bit_length() - 1
    NQ = 64 // KS
    QR = 2048 * KS

    def stamp_at(k):
        if stamps:
            A(f"s_memrealtime s[{64 + 2 * k}:{65 + 2 * k}]")

    def stamp_store():
        if not stamps or stamps == "enc":
            return
        A("s_waitcnt lgkmcnt(0)")
        if stamps == "dbg":
            lab = f"L_dbg{len(C)}"
            A("s_and_b32 s4, s3, 7\ns_cmp_eq_u32 s4, 0")
            A(f"s_cbranch_scc0 {lab}")
            A("s_not_b32 s64, s64")
            A("s_cmp_eq_u32 s3, 8")
            sel0 = (0, 1, 2, 4, 5, 6, 7)
            sel8 = (2, 4, 5, 6, 7, 8, 9)
            A("s_mov_b64 exec, -1")
            for i in range(7):
                A(f"s_cselect_b32 s4, s{64 + 2 * sel8[i]}, s{64 + 2 * sel0[i]}")
                A(f"v_writelane_b32 v4, s4, {i}")
            A("s_lshl_b32 s4, s3, 2\ns_add_u32 s4, s4, 4\nv_lshl_add_u32 v1, v0, 2, s4")
            A("s_mov_b64 exec, 0x7f")
            A("global_atomic_umax v1, v4, s[36:37] sc1")
            A(f"{lab}:")
            return
        lab = f"L_st{len(C)}"
        A(f"s_cmp_eq_u32 s3, 1\ns_cbranch_scc0 {lab}")
        A(f"s_mov_b64 exec, 0xffff\nv_lshlrev_b32 v5, 2, v0\nds_read_b32 v4, v5 offset:{L_G}")
        A(f"s_lshl_b32 s4, s2, 4\ns_add_u32 s4, s4, 8\ns_lshl_b32 s4, s4, 6\ns_add_u32 s4, s4, {WS_STAMP}\nv_add_u32 v5, s4, v5")
        A("s_waitcnt lgkmcnt(0)\nglobal_store_dword v5, v4, s[38:39]\ns_nop 1")
        A(f"{lab}:")
        A("s_mov_b64 exec, 1")
        A("s_lshl_b32 s4, s2, 4\ns_add_u32 s4, s4, s3\ns_lshl_b32 s4, s4, 6")
        A(f"s_add_u32 s4, s4, {WS_STAMP}")
        A("v_mov_b32 v1, s4")
        A("s_getreg_b32 s94, hwreg(HW_REG_XCC_ID)")
        A("s_lshl_b32 s92, s62, 16\ns_add_u32 s92, s92, s59\ns_lshl_b32 s4, s49, 11\ns_add_u32 s92, s92, s4")
        for q in range(4):
            for i in range(4):
                A(f"v_mov_b32 v{4 + i}, s{64 + 2 * (4 * q + i)}")
            A(f"global_store_dwordx4 v1, v[4:7], s[38:39] offset:{16 * q}")
            A("s_nop 1")

    def rowsum(a, op="add"):
        for s in (8, 4, 2, 1):
            A(f"v_{op}_f32_dpp v{a}, v{a}, v{a} row_ror:{s} {FULL}")

    def xrow(a, t, op="add"):
        A(f"v_mov_b32 v{t}, v{a}")
        A(f"v_permlane16_swap_b32 v{a}, v{t}")
        A(f"v_{op}_f32 v{a}, v{a}, v{t}")
        A(f"v_mov_b32 v{t}, v{a}")
        A(f"v_permlane32_swap_b32 v{a}, v{t}")
        A(f"v_{op}_f32 v{a}, v{a}, v{t}")

    def scatter4(r):
        A(f"v_permlane32_swap_b32 v{r}, v{r + 1}\nv_permlane32_swap_b32 v{r + 2}, v{r + 3}")
        A(f"v_add_f32 v{r}, v{r}, v{r + 1}\nv_add_f32 v{r + 2}, v{r + 2}, v{r + 3}")
        A(f"v_permlane16_swap_b32 v{r}, v{r + 2}")
        A(f"v_add_f32 v{r}, v{r}, v{r + 2}")

    def sigma(dst, t):
        A(f"v_bfe_u32 v{dst}, v0, 4, 1\nv_lshrrev_b32 v{t}, 5, v0\nv_lshl_add_u32 v{dst}, v{dst}, 1, v{t}")

    def rbf(a):
        A(f"v_cvt_pk_bf16_f32 v{a}, v{a}, v{a}")
        A(f"v_lshlrev_b32 v{a}, 16, v{a}")

    def ln_stats(vals, mean, den, rden, t0, t1, tmp):
        A(f"v_add_f32 v{t0}, v{vals[0]}, v{vals[1]}")
        A(f"v_add_f32 v{t1}, v{vals[2]}, v{vals[3]}")
        A(f"v_add_f32 v{mean}, v{vals[4]}, v{vals[5]}")
        A(f"v_add_f32 v{den}, v{vals[6]}, v{vals[7]}")
        A(f"v_add_f32 v{t0}, v{t0}, v{t1}")
        A(f"v_add_f32 v{mean}, v{mean}, v{den}")
        A(f"v_add_f32 v{mean}, v{mean}, v{t0}")
        rowsum(mean)
        xrow(mean, t0)
        A(f"v_mul_f32 v{mean}, 0x3b000000, v{mean}")
        for i in range(8):
            A(f"v_sub_f32 v{tmp[i]}, v{vals[i]}, v{mean}")
        A(f"v_mul_f32 v{den}, v{tmp[0]}, v{tmp[0]}")
        A(f"v_mul_f32 v{t1}, v{tmp[1]}, v{tmp[1]}")
        for i in range(2, 8, 2):
            A(f"v_fmac_f32 v{den}, v{tmp[i]}, v{tmp[i]}")
            A(f"v_fmac_f32 v{t1}, v{tmp[i + 1]}, v{tmp[i + 1]}")
        A(f"v_add_f32 v{den}, v{den}, v{t1}")
        rowsum(den)
        xrow(den, t0)
        A(f"v_mul_f32 v{den}, 0x3b000000, v{den}")
        A(f"v_cvt_pk_bf16_f32 v{t0}, v{mean}, v{den}")
        A(f"v_lshlrev_b32 v{mean}, 16, v{t0}")
        A(f"v_and_b32 v{den}, 0xffff0000, v{t0}")
        A(f"v_add_f32 v{den}, 0x3727c5ac, v{den}")
        rbf(den)
        A(f"v_sqrt_f32 v{t0}, v{den}")
        A(f"v_rsq_f32 v{t1}, v{den}")
        A(f"v_fma_f32 v{den}, -v{t0}, v{t0}, v{den}")
        A(f"v_mul_f32 v{t1}, 0.5, v{t1}")
        A(f"v_fma_f32 v{den}, v{den}, v{t1}, v{t0}")
        rbf(den)
        A(f"v_rcp_f32 v{rden}, v{den}")

    def ln_apply(xs, mean, den, rden, ts):
        for x in xs:
            A(f"v_sub_f32 v{x}, v{x}, v{mean}")
        for x in xs:
            A(f"v_cvt_pk_bf16_f32 v{x}, v{x}, v{x}")
        for x in xs:
            A(f"v_lshlrev_b32 v{x}, 16, v{x}")
        for x, t in zip(xs, ts):
            A(f"v_mul_f32 v{t}, v{x}, v{rden}")
        for x, t in zip(xs, ts):
            A(f"v_fma_f32 v{x}, -v{t}, v{den}, v{x}")
        for x, t in zip(xs, ts):
            A(f"v_fma_f32 v{x}, v{x}, v{rden}, v{t}")

    def ln2():
        A("v_mov_b32 v133, v132")
        for i in range(4):
            A(f"v_pk_add_f32 v[{124 + 2 * i}:{125 + 2 * i}], v[{124 + 2 * i}:{125 + 2 * i}], v[132:133] neg_lo:[0,1] neg_hi:[0,1]")
        A("v_pk_add_f32 v[134:135], v[124:125], v[126:127]")
        A("v_pk_mul_f32 v[136:137], v[124:125], v[124:125]")
        A("v_pk_add_f32 v[138:139], v[128:129], v[130:131]")
        A("v_pk_fma_f32 v[136:137], v[126:127], v[126:127], v[136:137]")
        A("v_pk_add_f32 v[134:135], v[134:135], v[138:139]")
        A("v_pk_fma_f32 v[136:137], v[128:129], v[128:129], v[136:137]")
        A("v_add_f32 v16, v134, v135")
        A("v_pk_fma_f32 v[136:137], v[130:131], v[130:131], v[136:137]")
        A("v_add_f32 v17, v136, v137")
        for m in ("row_shr:1", "row_shr:2", "row_shr:4", "row_shr:8"):
            A(f"v_add_f32_dpp v16, v16, v16 {m} {FULL} bound_ctrl:0")
            A(f"v_add_f32_dpp v17, v17, v17 {m} {FULL} bound_ctrl:0")
        for m in ("row_bcast:15 row_mask:0xa", "row_bcast:31 row_mask:0xc"):
            A(f"v_add_f32_dpp v16, v16, v16 {m} bank_mask:0xf")
            A(f"v_add_f32_dpp v17, v17, v17 {m} bank_mask:0xf")
        A("v_readlane_b32 s4, v16, 63")
        A("v_readlane_b32 s5, v17, 63")
        A("v_mov_b32 v18, 0x3b000000")
        A("v_mul_f32 v16, s4, v18")
        A("v_mul_f32 v17, s5, v18")
        A("v_fma_f32 v17, -v16, v16, v17")
        A("v_add_f32 v16, v16, v132")
        A("v_max_f32 v17, 0, v17")
        A("v_cvt_pk_bf16_f32 v18, v16, v17")
        A("v_and_b32 v17, 0xffff0000, v18")
        A("v_lshlrev_b32 v16, 16, v18")
        A("v_add_f32 v17, 0x3727c5ac, v17")
        A("v_sub_f32 v120, v120, v16")
        A("v_cvt_pk_bf16_f32 v18, v120, v17")
        A("v_and_b32 v17, 0xffff0000, v18")
        A("v_sqrt_f32 v17, v17")
        A("v_lshlrev_b32 v120, 16, v18")
        rbf(17)
        A("v_rcp_f32 v18, v17")
        A("v_mul_f32 v19, v120, v18")
        A("v_fma_f32 v120, -v19, v17, v120")
        A("v_fma_f32 v120, v120, v18, v19")

    def poll(label, loads, regs, t, slp=None, between=None):
        slp = sleep if slp is None else slp
        A("s_mov_b32 s59, 0")
        if between:
            for l in loads:
                A(l)
            between()
            A(f"s_branch {label}_chk")
        A(f"{label}:")
        for l in loads:
            A(l)
        if between:
            A(f"{label}_chk:")
        A("s_waitcnt vmcnt(0)")
        regs = list(regs)
        if len(regs) == 1:
            t = regs[0]
            rest = []
        elif len(regs) % 2 == 0:
            A(f"v_max_u32 v{t}, v{regs[0]}, v{regs[1]}")
            rest = regs[2:]
        else:
            A(f"v_max3_u32 v{t}, v{regs[0]}, v{regs[1]}, v{regs[2]}")
            rest = regs[3:]
        for i in range(0, len(rest), 2):
            A(f"v_max3_u32 v{t}, v{t}, v{rest[i]}, v{rest[i + 1]}")
        A(f"v_cmp_eq_u32 vcc, -1, v{t}")
        A(f"s_branch {label}_ok" if ("svc3" in xp and label in ("L_pollq", "L_pollall")) else f"s_cbranch_vccz {label}_ok")
        A("s_add_u32 s59, s59, 1")
        A(f"s_cmp_lt_u32 s59, {SPIN_MAX}")
        A(f"s_cbranch_scc0 {label}_ok")
        if masked:
            A("s_mov_b64 exec, vcc")
        if slp:
            A(f"s_sleep {slp}")
        A(f"s_branch {label}")
        A(f"{label}_ok:")
        if masked:
            A("s_mov_b64 exec, -1")

    def ldswait(label, off, val=None):
        A(f"v_mov_b32 v24, {L_F}\ns_mov_b32 s5, 0")
        A(f"{label}:")
        A(f"ds_read_b32 v25, v24 offset:{off}")
        A("s_waitcnt lgkmcnt(0)")
        A("v_cmp_ne_u32 vcc, 0, v25" if val is None else f"v_cmp_eq_u32 vcc, {val}, v25")
        A(f"s_cbranch_vccnz {label}_ok")
        A(f"s_add_u32 s5, s5, 1\ns_cmp_lt_u32 s5, {SPIN_MAX * 64}\ns_cbranch_scc0 {label}_ok")
        A("s_sleep 1")
        A(f"s_branch {label}")
        A(f"{label}_ok:")

    def store_quad(val, addr, lo="0x11111111", hi="0x11111111", fl="sc1", addr2=None):
        for i in (1, 2, 3):
            A(f"v_mov_b32_dpp v{val + i}, v{val} quad_perm:[{i},{i},{i},{i}] {FULL}")
        A(f"s_mov_b32 exec_lo, {lo}\ns_mov_b32 exec_hi, {hi}")
        A(f"global_store_dwordx4 v{addr}, v[{val}:{val + 3}], s[38:39] {fl}")
        if addr2 is not None:
            A(f"global_store_dwordx4 v{addr2}, v[{val}:{val + 3}], s[38:39] {fl}")
        A("s_mov_b64 exec, -1")

    def roles():
        brot = 0 if local else 4
        A(f"s_add_u32 s61, s6, {brot}\ns_and_b32 s61, s61, 7")
        A("s_bfe_u32 s13, s7, 0x10003\ns_lshl_b32 s4, s61, 1\ns_add_u32 s13, s13, s4")
        A("s_and_b32 s14, s7, 7")
        A("s_mul_i32 s15, s6, 14\ns_add_u32 s15, s15, s7")

    def rowoff(dst, row, tmp, on=True):
        if dup is None or not on:
            A(f"s_lshl_b32 {dst}, {row}, 11")
        else:
            A(f"s_lshr_b32 {tmp}, {row}, 2\ns_lshl_b32 {tmp}, {tmp}, 14\ns_and_b32 {dst}, {row}, 3\ns_lshl_b32 {dst}, {dst}, 11\ns_add_u32 {dst}, {dst}, {tmp}")

    def mycopy(dst):
        if dup == "auto":
            A(f"s_mov_b32 {dst}, s49")
        else:
            A(f"s_lshr_b32 {dst}, s6, 2\ns_xor_b32 {dst}, {dst}, {dup}\ns_lshl_b32 {dst}, {dst}, 13")

    def p1slot(dst):
        A(f"s_lshl_b32 {dst}, s6, 5\ns_add_u32 {dst}, {dst}, s7\ns_mul_i32 {dst}, {dst}, {P1_STRIDE}\ns_add_u32 {dst}, {dst}, {WS_P1}")

    stamp_at(0)
    A("s_load_dwordx16 s[16:31], s[0:1], 0")
    A("s_load_dwordx8 s[32:39], s[0:1], 64")
    A("s_cmp_ge_u32 s2, 256")
    A("s_cbranch_scc1 L_end")
    A("v_lshrrev_b32 v1, 6, v0")
    A("v_and_b32 v0, 63, v0")
    A("v_readfirstlane_b32 s3, v1")
    A("s_and_b32 s6, s2, 7")
    A("s_lshr_b32 s7, s2, 3")
    A(f"s_add_u32 s60, s6, {qrot}\ns_and_b32 s60, s60, 7")
    A("v_lshlrev_b32 v9, 4, v0")
    A("s_cmp_eq_u32 s3, 8")
    A("s_cbranch_scc1 L_service")
    def wqaddr():
        A("v_lshrrev_b32 v10, 3, v0\nv_and_b32 v11, 7, v0\nv_lshlrev_b32 v10, 13, v10\nv_lshl_add_u32 v10, v11, 4, v10")
        A("s_and_b32 s4, s7, 3\ns_lshl_b32 s4, s4, 3\ns_add_u32 s4, s4, s3\ns_lshl_b32 s4, s4, 7\ns_add_u32 s4, s4, s60\ns_lshl_b32 s4, s4, 3")
        A("s_lshr_b32 s5, s7, 2\ns_add_u32 s4, s4, s5\ns_lshl_b32 s4, s4, 7")
        A("v_add_u32 v10, s4, v10\nv_add_u32 v11, 0x10000, v10")
        A(f"s_lshl_b32 s57, s3, 11\ns_add_u32 m0, s57, {L_W}")

    def clears(b=12):
        n0 = len(C)
        clears0()
        if b != 12:
            for i in range(n0, len(C)):
                for r in (17, 16, 15, 14, 13, 12):
                    C[i] = C[i].replace(f"v{r},", f"v{r - 12 + b},").replace(f"v{r}\n", f"v{r - 12 + b}\n")
                    if C[i].endswith(f"v{r}"):
                        C[i] = C[i][:-len(f"v{r}")] + f"v{r - 12 + b}"

    def clears1():
        for i in range(4):
            A(f"v_mov_b32 v{12 + i}, -1")
        roles()
        p1slot("s4")
        A("s_and_b32 s9, s7, 15\ns_mul_i32 s8, s6, 14\ns_add_u32 s8, s8, s9")
        rowoff("s5", "s8", "s48")
        A(f"s_lshr_b32 s8, s7, 4\ns_lshl_b32 s8, s8, 13\ns_add_u32 s5, s5, s8\ns_add_u32 s5, s5, {WS_P3 - 256}")
        A("v_mov_b32 v16, s4\nv_mov_b32 v17, s5\nv_cmp_gt_u32 vcc, 16, v0\ns_lshl_b32 s4, s3, 8")
        A("v_cndmask_b32 v16, v17, v16, vcc\nv_add3_u32 v16, v16, v9, s4")
        rowoff("s4", "s13", "s48")
        A(f"s_lshl_b32 s5, s14, 8\ns_add_u32 s4, s4, s5\ns_add_u32 s4, s4, {WS_P2 - 512}")
        A(f"v_bfe_u32 v17, v0, 4, 1\nv_mul_u32_u24 v17, {8192 - 256}, v17\nv_add3_u32 v17, v17, v9, s4\nv_cmp_gt_u32 vcc, 32, v0")
        A("s_cmp_lt_u32 s9, 14\ns_cselect_b32 s8, -1, 0xffff")
        A("v_cndmask_b32 v16, v17, v16, vcc")
        A("s_lshr_b32 s9, s7, 4\ns_cmp_lt_u32 s3, s9\ns_cselect_b32 s9, -1, 0")

    def clears0():
        if clrbal and dup is not None and dup3:
            return clears1()
        for i in range(4):
            A(f"v_mov_b32 v{12 + i}, -1")
        roles()
        p1slot("s4")
        rowoff("s5", "s15", "s8", dup3)
        A(f"s_add_u32 s5, s5, {WS_P3 - 256}")
        rowoff("s8", "s13", "s9")
        A(f"s_lshl_b32 s9, s14, 8\ns_add_u32 s8, s8, s9\ns_add_u32 s8, s8, {WS_P2 - 256}")
        A("s_cmp_ge_u32 s7, 16\ns_cselect_b32 s5, s8, s5\ns_cselect_b32 s8, 1, 8\ns_cselect_b32 s9, 32, 14")
        A("s_cmp_lt_u32 s7, s9\ns_cselect_b32 s8, s8, 0\ns_cmp_lt_u32 s3, s8\ns_cselect_b32 s8, -1, 0xffff")
        if dup is not None:
            A("s_cselect_b32 s9, 0xffff, 0")
            if not dup3:
                A("s_cmp_ge_u32 s7, 16\ns_cselect_b32 s9, s9, 0")
        A("v_mov_b32 v16, s4\nv_mov_b32 v17, s5\nv_cmp_gt_u32 vcc, 16, v0\ns_lshl_b32 s4, s3, 8")
        A("v_cndmask_b32 v16, v17, v16, vcc\nv_add3_u32 v16, v16, v9, s4")
        if dup is not None:
            A(f"v_lshrrev_b32 v17, 5, v0\nv_mul_u32_u24 v17, {8192 - 256}, v17\nv_add_u32 v16, v16, v17")

    def clearstore(b=12):
        if p1plain:
            A("s_mov_b64 exec, 0xffff")
            if p1plain != "none":
                A("global_store_dwordx4 v16, v[12:15], s[38:39]")
            A("s_andn2_b32 s8, s8, 0xffff\ns_cbranch_scc0 L_noc2")
        A("s_mov_b32 exec_lo, s8\ns_mov_b32 exec_hi, " + ("0" if dup is None else "s9"))
        A(f"global_store_dwordx4 v{b + 4}, v[{b}:{b + 3}], s[38:39] sc1")
        A("L_noc2:")
        A("s_mov_b64 exec, -1")

    def wqload():
        A("s_cmp_eq_u32 s3, 0")
        A("s_cbranch_scc0 L_nox")
        A(f"s_mov_b32 m0, {L_X}")
        A("global_load_lds_dwordx4 v9, s[16:17]")
        A(f"s_mov_b32 m0, {L_W}")
        A("s_nop 0")
        A("L_nox:")
        A(f"global_load_lds_dwordx4 v10, s[22:23]{wntf}")
        A("s_add_u32 m0, m0, 1024")
        A(f"global_load_lds_dwordx4 v11, s[22:23]{wntf}")
    if not kfirst:
        wqaddr()
    vKS = (1, 2, 3, 4)
    vKR = (5, 6, 7, 8)
    vV, vM, vML, vL = 9, 10, 11, 12
    PK = (13, 14)
    vAl = 15
    SEL = (16, 17, 18, 19)
    S = (20, 21, 22, 23)
    T = (24, 25, 26, 27)
    BB = 28
    vT2 = 38
    ACC = (40, 44)
    QF = 48
    KF = 64
    VR = [80 + 16 * i for i in range(VRING)]
    A("v_lshrrev_b32 v24, 4, v0")
    A("v_lshlrev_b32 v25, 6, v24")
    A(f"v_xor_b32 v{vKS[0]}, v{vV}, v25")
    for i in (1, 2, 3):
        A(f"v_xor_b32 v{vKS[i]}, {16 * i}, v{vKS[0]}")
    if split:
        A(f"v_add_u32 v{vKS[2]}, 6144, v{vKS[2]}\nv_add_u32 v{vKS[3]}, 6144, v{vKS[3]}\nv_add_u32 v39, 6144, v{vV}")
    A("s_lshl_b32 s10, s6, 23")
    ipat = {"wgtile": "wwwtttccccc", "contig": "tttwwwccccc", "global": "wwwcccccttt"}.get(inter, inter)
    assert sorted(ipat) == sorted("wwwtttccccc") and not split
    if crot:
        A(f"s_lshl_b32 s4, s7, {crot}\ns_lshr_b32 s5, s7, {5 - crot}\ns_or_b32 s4, s4, s5\ns_and_b32 s4, s4, 31")
    for k, reg in (("w", "s3"), ("c", "s4" if crot else "s7")):
        pos = [i for i, ch in enumerate(ipat) if ch == k]
        b = 0
        while b < len(pos):
            e = b
            while e + 1 < len(pos) and pos[e + 1] == pos[e] + 1:
                e += 1
            if b == 0 and e == len(pos) - 1:
                A(f"s_lshl_b32 s11, {reg}, {12 + pos[0]}")
            else:
                A(f"s_bfe_u32 s11, {reg}, {hex(((e - b + 1) << 16) | b)}\ns_lshl_b32 s11, s11, {12 + pos[b]}")
            A("s_add_u32 s10, s10, s11")
            b = e + 1
    tpos = [i for i, ch in enumerate(ipat) if ch == "t"]

    def toff(t):
        return sum(((t >> b) & 1) << (12 + p) for b, p in enumerate(tpos))
    if txor:
        assert tpos == list(range(tpos[0], tpos[0] + 3))
        A({"c": "s_and_b32 s11, s7, 7", "x": "s_mov_b32 s11, s6", "cx": "s_xor_b32 s11, s7, s6\ns_and_b32 s11, s11, 7",
           "ch": "s_lshr_b32 s11, s7, 2", "chx": "s_lshr_b32 s11, s7, 2\ns_xor_b32 s11, s11, s6"}[txor])
        A(f"s_lshl_b32 s11, s11, {12 + tpos[0]}\ns_add_u32 s10, s10, s11")
    A("s_mov_b32 s11, s10")
    A(f"s_mul_i32 s56, s3, {KRING * 4096}\ns_add_u32 s56, s56, {L_K}")
    A("s_mov_b32 s42, 0x4000000\ns_mov_b32 s43, 0x20000")
    if kfirst:
        A("s_mov_b32 m0, s56")
    if sclr == "first" and "noclear" not in xp:
        clears()
    A("s_waitcnt lgkmcnt(0)")
    stamp_at(12)
    if sclr == "first" and "noclear" not in xp:
        clearstore()
    if not kfirst:
        A("s_barrier")
        wqload()
        A("s_mov_b32 m0, s56")
    A("s_mov_b32 s40, s18\ns_and_b32 s41, s19, 0xffff")
    stamp_at(11)
    vm = VM()
    ids = {}
    m0k = [0]
    order = (order or {3: "K0 V0 K1 V1 K2 V2 V3 V4 K3 K4 K5 K6 K7 V5 V6 V7", 2: "K0 V0 K1 V1 K2 V2 V3 V4 K3 K4 K5 V5 K6 K7 V6 V7"}[NB]).split()
    seq = [(g[0], int(g[1]), u) for g in order for u in range(4)]
    NPRE = 4 * (KRING + VRING)

    def W(opid):
        w = vm.wait(opid)
        if w:
            A(w)

    def load(n):
        mat, t, u = seq[n]
        d = D if n < d2from else D2
        if D3 and n >= d3from:
            d = D3
        if dseq and n > bpos:
            d = int(dseq[n])
        if adapt and n >= NPRE and n in adapt[2]:
            W(ids[seq[n - d - 1]])
            A(f"s_cbranch_vccnz L_ad{n}")
            A(f"s_waitcnt vmcnt({d - 1})")
            A(f"L_ad{n}:")
        elif n >= d:
            W(ids[seq[n - d]])
            if adapt and n >= NPRE and n in adapt[3]:
                A(f"s_cmp_le_u32 s9, {adapt[0]}")
                A(f"s_cbranch_scc0 L_ad{n}")
                A(f"s_waitcnt vmcnt({d - 2})")
                A(f"L_ad{n}:")
        if opos and n in opos and "now" not in xp:
            for i, p in enumerate(opos):
                if p == n:
                    A(f"global_load_dwordx4 v[164:167], v161, s[24:25] offset:{1024 * i}")
        if mat == "K":
            if m0k[0] != t:
                m0k[0] = t
                A(f"s_add_u32 m0, s56, {4096 * (t % KRING)}")
            A(f"buffer_load_dwordx4 v{vKS[u]}, s[40:43], s10 offen offset:{1024 * u}{ntf} lds")
            if u == 3 and t < 7:
                A(f"s_xor_b32 s10, s10, {hex(toff(t + 1) ^ toff(t))}")
        else:
            r = VR[t % VRING] + 4 * u
            A(f"buffer_load_dwordx4 v[{r}:{r + 3}], v{39 if (split and u >= 2) else vV}, s[44:47], s11 offen offset:{1024 * u}{ntf}")
            if u == 3 and t < 7:
                A(f"s_xor_b32 s11, s11, {hex(toff(t + 1) ^ toff(t))}")
        ids[seq[n]] = vm.issue()
        if n == qpos:
            A(f"v_mov_b32 v39, {L_F}\nds_write_b32 v39, v39 offset:8")
        if n == vpos and dup == "auto" and vpos:
            A("ds_write_b32 v39, v39 offset:20")

    def consts():
        A("v_and_b32 v24, 3, v0")
        A("v_mov_b32 v25, 0x0c0c0c0c")
        for k, (lo, e0) in enumerate(((0x0100, 0), (0x0100, 2), (0x0302, 0), (0x0302, 2))):
            A(f"v_mov_b32 v26, {hex(0x0c0c0000 | lo)}")
            A(f"v_mov_b32 v27, {hex((lo << 16) | 0x0c0c)}")
            A(f"v_cmp_eq_u32 vcc, {e0}, v24")
            A(f"v_cndmask_b32 v{SEL[k]}, v25, v26, vcc")
            A(f"v_cmp_eq_u32 vcc, {e0 + 1}, v24")
            A(f"v_cndmask_b32 v{SEL[k]}, v{SEL[k]}, v27, vcc")
        for z in (0, 1, 4, 5, 8, 9):
            A(f"v_mov_b32 v{BB + z}, 0")
        A(f"s_mov_b32 s12, {hex(LOG2E)}")
        A("v_bfe_u32 v25, v0, 2, 2")
        A("v_lshrrev_b32 v26, 4, v0")
        A("v_lshlrev_b32 v27, 8, v25")
        A(f"v_lshl_add_u32 v{vT2}, v26, 4, v27")
        A("v_lshl_add_u32 v25, v24, 2, v25")
        A("v_and_b32 v27, 15, v0")
        A("v_xor_b32 v26, v26, v27")
        A("v_lshlrev_b32 v26, 4, v26")
        A("v_lshl_add_u32 v26, v25, 8, v26")
        for u in range(4):
            A(f"v_xor_b32 v{vKR[u]}, {64 * u}, v26")
            A(f"v_add_u32 v{vKR[u]}, s56, v{vKR[u]}")
        roles()
        A("s_lshl_b32 s58, s3, 12")
        if dlate:
            A(f"s_min_u32 s4, s15, 111\ns_lshl_b32 s4, s4, 3\ns_add_u32 s4, s4, s3\ns_lshl_b32 s4, s4, 11\nv_add_u32 v162, s4, v{vV}")
        A("s_lshl_b32 s4, s13, 3\ns_add_u32 s4, s4, s3\ns_lshl_b32 s4, s4, 15\ns_lshl_b32 s5, s14, 7\ns_add_u32 s4, s4, s5")
        A("v_lshrrev_b32 v160, 3, v0\nv_and_b32 v161, 7, v0\nv_lshlrev_b32 v160, 10, v160\nv_lshl_add_u32 v160, v161, 4, v160\nv_add_u32 v160, s4, v160")
        A(f"s_lshl_b32 s4, s61, 5\ns_add_u32 s4, s4, s7\ns_lshl_b32 s4, s4, 3\ns_add_u32 s4, s4, s3\ns_lshl_b32 s4, s4, 11\nv_add_u32 v161, s4, v{vV}")

    def late(pos="c"):
        ops = [i for i in range(4) if lp[i] == pos]
        if "now" in xp or not ops:
            return
        if not dlast:
            A("s_cmp_lt_u32 s7, 14")
            A(f"s_cbranch_scc0 L_late_b{pos}")
        for i in (ops if not dlast else ()):
            if i < 2:
                A(f"s_add_u32 m0, s57, {L_W + 32768 + 1024 * i}")
                A(f"global_load_lds_dwordx4 v162, s[32:33]{wntf}")
                if i == 0:
                    A("v_add_u32 v162, 1024, v162")
            else:
                A("s_mov_b64 exec, 1")
                A("global_load_dword v163, v162, s[32:33]")
        if not dlast:
            A(f"s_branch L_late_done{pos}")
        A(f"L_late_b{pos}:")
        A("s_cmp_ge_u32 s7, 16")
        A("s_cselect_b64 exec, -1, 1")
        for i in ops:
            A(f"s_add_u32 m0, s58, {L_W + 1024 * i}")
            A(f"global_load_lds_dwordx4 v160, s[24:25] offset:0{wntf}")
            vm.issue()
            if i < 3:
                A("v_add_u32 v160, 0x2000, v160")
        A(f"L_late_done{pos}:")
        A("s_mov_b64 exec, -1")
        m0k[0] = None

    T0 = 8 - NB
    SS = {t: tuple(range(144 + 4 * (t - T0), 148 + 4 * (t - T0))) for t in range(T0, 8)}
    PKS = {t: (128 + 2 * (t - T0), 129 + 2 * (t - T0)) for t in range(T0, 8)}

    def scores(t, S):
        W(ids[("K", t, 3)])
        k = KF
        for u in range(4):
            A(f"ds_read_b128 v[{k + 4 * u}:{k + 4 * u + 3}], v{vKR[u]} offset:{4096 * (t % KRING)}")
        for u in range(4):
            c = "0" if u == 0 else f"v[{S[0]}:{S[3]}]"
            A("s_waitcnt lgkmcnt(0)" if stamps else f"s_waitcnt lgkmcnt({3 - u})")
            A(f"v_mfma_f32_16x16x32_bf16 v[{S[0]}:{S[3]}], v[{k + 4 * u}:{k + 4 * u + 3}], v[{QF + 4 * u}:{QF + 4 * u + 3}], {c}")
        for rnd in range(2):
            A(f"v_cvt_pk_bf16_f32 v{T[0]}, v{S[0]}, v{S[1]}")
            A(f"v_cvt_pk_bf16_f32 v{T[1]}, v{S[2]}, v{S[3]}")
            A(f"v_lshlrev_b32 v{S[0]}, 16, v{T[0]}")
            A(f"v_and_b32 v{S[1]}, 0xffff0000, v{T[0]}")
            A(f"v_lshlrev_b32 v{S[2]}, 16, v{T[1]}")
            A(f"v_and_b32 v{S[3]}, 0xffff0000, v{T[1]}")
            if rnd == 0:
                for r in range(4):
                    A(f"v_mul_f32 v{S[r]}, {hex(SCALE)}, v{S[r]}")
        if t == 0:
            A(f"v_max_f32 v{vM}, v{S[0]}, v{S[1]}")
            A(f"v_max3_f32 v{vM}, v{vM}, v{S[2]}, v{S[3]}")
        else:
            A(f"v_max3_f32 v{vM}, v{vM}, v{S[0]}, v{S[1]}")
            A(f"v_max3_f32 v{vM}, v{vM}, v{S[2]}, v{S[3]}")

    def probs(tiles, first):
        if not first:
            A(f"v_mov_b32 v{vAl}, v{vML}")
        A(f"v_mul_f32 v{vML}, s12, v{vM}")
        if not first:
            A(f"v_sub_f32 v{vAl}, v{vAl}, v{vML}")
            A(f"v_exp_f32 v{vAl}, v{vAl}")
        for S, P in tiles:
            for r in range(4):
                A(f"v_fma_f32 v{S[r]}, v{S[r]}, s12, -v{vML}")
        for S, P in tiles:
            for r in range(4):
                A(f"v_exp_f32 v{S[r]}, v{S[r]}")
        if not first:
            for a in range(8):
                A(f"v_mul_f32 v{ACC[0] + a}, v{vAl}, v{ACC[0] + a}")
            A(f"v_mul_f32 v{vL}, v{vL}, v{vAl}")
        for i, (S, P) in enumerate(tiles):
            A(f"v_add_f32 v{T[0]}, v{S[0]}, v{S[1]}")
            A(f"v_add_f32 v{T[1]}, v{S[2]}, v{S[3]}")
            A(f"v_cvt_pk_bf16_f32 v{P[0]}, v{S[0]}, v{S[1]}")
            A(f"v_cvt_pk_bf16_f32 v{P[1]}, v{S[2]}, v{S[3]}")
            if first and i == 0:
                A(f"v_add_f32 v{vL}, v{T[0]}, v{T[1]}")
            else:
                A(f"v_add_f32 v{T[0]}, v{T[0]}, v{T[1]}")
                A(f"v_add_f32 v{vL}, v{vL}, v{T[0]}")

    def qk(t):
        scores(t, S)
        xrow(vM, T[0], "max")
        probs([(S, PK)], t == 0)

    def sc(t):
        scores(t, SS[t])
        if t == 7:
            xrow(vM, T[0], "max")
            A("v_bfe_u32 v26, v0, 2, 2\nv_lshlrev_b32 v26, 5, v26\ns_lshl_b32 s4, s3, 2\nv_add_u32 v27, s4, v26")
            A("s_mov_b64 exec, 0x1111")
            A(f"ds_write_b32 v27, v{vM} offset:{L_M}")
            A("s_mov_b64 exec, -1")

    def fin1(t):
        A("s_waitcnt lgkmcnt(0)")
        A("s_barrier")
        k0 = KF
        A(f"ds_read_b128 v[{k0}:{k0 + 3}], v26 offset:{L_M}")
        A(f"ds_read_b128 v[{k0 + 4}:{k0 + 7}], v26 offset:{L_M + 16}")
        A("s_waitcnt lgkmcnt(0)")
        A(f"v_max3_f32 v{vM}, v{k0}, v{k0 + 1}, v{k0 + 2}")
        A(f"v_max3_f32 v{vM}, v{vM}, v{k0 + 3}, v{k0 + 4}")
        A(f"v_max3_f32 v{vM}, v{vM}, v{k0 + 5}, v{k0 + 6}")
        A(f"v_max_f32 v{vM}, v{vM}, v{k0 + 7}")
        probs([(SS[t], PKS[t]) for t in range(T0, 8)], False)
        xrow(vL, T[0])
        A("s_mov_b64 exec, 0x1111")
        A(f"ds_write_b32 v27, v{vL} offset:{L_L}")
        A("s_mov_b64 exec, -1")

    def fin2(t):
        A("s_and_b32 s4, s3, 1\ns_lshl_b32 s4, s4, 6\nv_lshrrev_b32 v26, 5, v0\nv_lshl_add_u32 v26, v26, 5, s4")
        A(f"v_mov_b32 v27, {L_F}")
        A("s_waitcnt lgkmcnt(0)")
        A("s_barrier")
        A(f"ds_read_b128 v[64:67], v26 offset:{L_M}")
        A(f"ds_read_b128 v[68:71], v26 offset:{L_M + 16}")
        A(f"ds_read_b128 v[72:75], v26 offset:{L_L}")
        A(f"ds_read_b128 v[76:79], v26 offset:{L_L + 16}")
        A("ds_read2_b32 v[26:27], v27 offset0:4 offset1:1")
        A("s_waitcnt lgkmcnt(0)")
        A("v_max3_f32 v64, v64, v65, v66\nv_max3_f32 v64, v64, v67, v68\nv_max3_f32 v64, v64, v69, v70\nv_max_f32 v64, v64, v71")
        for i in range(4):
            A(f"v_add_f32 v{72 + i}, v{72 + i}, v{76 + i}")
        A("v_add_f32 v72, v72, v73\nv_add_f32 v74, v74, v75\nv_add_f32 v72, v72, v74")
        A("v_readfirstlane_b32 s62, v27")
        A("v_readfirstlane_b32 s49, v26")
        A("v_log_f32 v73, v72")
        A(f"v_rcp_f32 v{vAl}, v72")
        A(f"v_mul_f32 v64, s12, v64")
        A(f"v_add_f32 v{vL}, v64, v73")
        A(f"v_and_b32 v{vM}, 3, v0\nv_add_u32 v{vM}, 0x07060501, v{vM}")
        A("s_mov_b32 s50, 0x88888888\ns_mov_b32 s51, 0x88888888")

    def fin3(t):
        A(f"v_add_u32 v64, s56, v{vV}")
        A("v_and_b32 v65, 15, v0\nv_bfe_u32 v66, v0, 4, 1\nv_mul_u32_u24 v66, 272, v66\nv_add_u32 v65, v65, v66")
        A("v_lshrrev_b32 v66, 5, v0\nv_lshl_add_u32 v65, v66, 4, v65\ns_lshl_b32 s4, s3, 7")
        A(f"s_add_u32 s4, s4, {L_K}\nv_lshl_add_u32 v65, v65, 2, s4")
        A(f"v_add_u32 v66, {4 * KRING * 4096}, v65")
        p1slot("s4")
        A("s_lshl_b32 s5, s3, 8\ns_add_u32 s5, s5, s4\nv_lshl_add_u32 v67, v0, 2, s5")

    def prepB():
        A(f"s_lshl_b32 s4, s61, 5\nv_lshrrev_b32 v57, 3, v0\nv_add_u32 v57, s4, v57\nv_mul_u32_u24 v57, {P1_STRIDE}, v57")
        if b4:
            A("s_and_b32 s4, s13, 1\ns_lshl_b32 s4, s4, 1\ns_bfe_u32 s5, s3, 0x10001\ns_add_u32 s4, s4, s5")
            A(f"s_and_b32 s5, s3, 1\ns_lshl_b32 s5, s5, 3\ns_add_u32 s4, s4, s5\ns_lshl_b32 s4, s4, 7\ns_add_u32 s4, s4, {WS_P1}")
        else:
            A("s_and_b32 s4, s13, 1\ns_lshl_b32 s4, s4, 1\ns_lshr_b32 s5, s3, 2\ns_add_u32 s4, s4, s5")
            A(f"s_and_b32 s5, s3, 3\ns_lshl_b32 s5, s5, 2\ns_add_u32 s4, s4, s5\ns_lshl_b32 s4, s4, 7\ns_add_u32 s4, s4, {WS_P1}")
        A("v_and_b32 v58, 7, v0\nv_lshl_add_u32 v57, v58, 4, v57\nv_add_u32 v48, s4, v57")
        for pi in range(1, 4):
            A(f"v_add_u32 v{48 + pi}, {8 * pi * P1_STRIDE}, v48")
        A("s_mov_b32 s52, 0x04000c0c\ns_mov_b32 s53, 0x0706000c")
        A("s_mov_b32 s54, 0xffff0000\ns_mov_b32 s55, 0xffff0000\ns_mov_b32 s8, 0\ns_mov_b32 s9, -1")
        sigma(57, 58)
        A("v_bfe_u32 v58, v0, 2, 2\nv_lshl_add_u32 v57, v57, 3, v58\nv_lshlrev_b32 v57, 7, v57")
        A(f"v_and_b32 v58, 3, v0\nv_lshl_add_u32 v57, v58, 3, v57\ns_lshl_b32 s4, s3, {13 if b4 else 12}\nv_add_u32 v52, s4, v57")
        A("v_lshlrev_b32 v54, 2, v0\ns_lshl_b32 s4, s3, 8\nv_add_u32 v53, s4, v54")
        rowoff("s4", "s13", "s5")
        A(f"s_lshl_b32 s5, s14, 8\ns_add_u32 s4, s4, s5\ns_add_u32 s4, s4, {WS_P2}")
        if dup is not None:
            mycopy("s5")
            A("s_xor_b32 s5, s5, 0x2000\ns_add_u32 s4, s4, s5")
        A("v_add_u32 v55, s4, v54")
        A("v_xor_b32 v56, 0x2000, v55")

    def fin4(t):
        if bprep:
            prepB()

    def pv(t, last=False):
        v = VR[t % VRING]
        P = PKS.get(t, PK)

        def perm(i):
            b = BB + 2 + 4 * (i & 1)
            A(f"v_perm_b32 v{b}, v{P[i >> 1]}, v{P[i >> 1]}, v{SEL[2 * (i & 1)]}")
            A(f"v_perm_b32 v{b + 1}, v{P[i >> 1]}, v{P[i >> 1]}, v{SEL[2 * (i & 1) + 1]}")
        perm(0)
        perm(1)
        if not last:
            W(ids[("V", t, 3)])
        for i in range(4):
            if last:
                W(ids[("V", t, i)])
            b = BB + 2 + 4 * (i & 1)
            for h in range(2):
                c = "0" if (t == 0 and i == 0) else f"v[{ACC[h]}:{ACC[h] + 3}]"
                bb = b if h == 0 else b - 2
                A(f"v_mfma_f32_16x16x32_bf16 v[{ACC[h]}:{ACC[h] + 3}], v[{v + 4 * i}:{v + 4 * i + 3}], v[{bb}:{bb + 3}], {c}")
            if i < 2:
                perm(i + 2)

    for n in range(NPRE):
        load(n)
        if n == 3:
            A("s_mov_b32 s44, s20\ns_and_b32 s45, s21, 0xffff\ns_mov_b32 s46, 0x4000000\ns_mov_b32 s47, 0x20000")
            if sclr == "after" and "noclear" not in xp and clrpos == 3 and not wqfirst:
                clears()
                clearstore()
            if kfirst:
                wqaddr()
                wqload()
                m0k[0] = None
            if sclr == "after" and "noclear" not in xp and clrpos == 3 and wqfirst:
                clears()
                clearstore()
            if kfirst:
                A("s_barrier")
        if n == clrpos and clrpos > 3 and sclr == "after" and "noclear" not in xp:
            clears(72)
            clearstore(72)
        if n == max(D - 1, 3):
            consts()
        if n == bpos:
            stamp_at(13)
            A(f"v_mov_b32 v24, {L_F}\nv_mov_b32 v25, 1\ns_mov_b64 exec, 1\nds_add_u32 v24, v25 offset:12\ns_mov_b64 exec, -1")
        if n == qpos and False:
            A(f"v_mov_b32 v24, {L_F}\nds_write_b32 v24, v24 offset:8")
    stamp_at(1)
    ldswait("L_waitq", 0)
    if adapt:
        lo, hi, lsites, tsites = adapt
        A("v_readfirstlane_b32 s9, v25")
        A(f"v_cmp_lt_u32 vcc, {hi}, v25")
        if stamps:
            A("s_mov_b32 s88, s9")
    stamp_at(2)
    for u in range(4):
        A(f"ds_read_b128 v[{QF + 4 * u}:{QF + 4 * u + 3}], v{vT2} offset:{L_Q + 64 * u}")
    A("s_waitcnt lgkmcnt(0)")
    blocks = []
    for t in range(T0):
        blocks += [(qk, t, ("K", t, 3)), (pv, t, ("V", t, 3))]
    for t in range(T0, 8):
        blocks += [(sc, t, ("K", t, 3))]
    blocks += [(fin1, 7, ("K", 7, 3)), (fin2, 7, ("K", 7, 3)), (fin3, 7, ("K", 7, 3)), (fin4, 7, ("K", 7, 3))]
    for t in range(T0, 7):
        blocks += [(pv, t, ("V", t, 3))]
    bi = 0
    for n in range(NPRE, len(seq)):
        mat, t, u = seq[n]
        needb = {"K": 2 * (t - KRING) + 1, "V": 2 * (t - VRING) + 2}[mat]
        while bi < needb:
            blocks[bi][0](blocks[bi][1])
            bi += 1
        load(n)
        late(n)
        if n < len(seq) - 1 and bi < len(blocks) and blocks[bi][2] in ids and ids[blocks[bi][2]] <= vm.done:
            blocks[bi][0](blocks[bi][1])
            bi += 1
    while bi < len(blocks) and blocks[bi][0] is not pv:
        blocks[bi][0](blocks[bi][1])
        bi += 1
    if bar1c:
        A("s_barrier")
        late()
    else:
        late()
        A("s_barrier")
    while bi < len(blocks):
        blocks[bi][0](blocks[bi][1])
        bi += 1
    stamp_at(3)
    pv(7, last=True)
    stamp_at(4)
    A(f"ds_write_b128 v64, v[{ACC[0]}:{ACC[0] + 3}]")
    A(f"ds_write_b128 v64, v[{ACC[1]}:{ACC[1] + 3}] offset:1088")
    A("s_waitcnt lgkmcnt(0)")
    A("s_barrier")
    R0 = 72
    for i in range(8):
        A(f"ds_read_b32 v{R0 + i}, v{65 + (i >> 2)} offset:{KRING * 4096 * (i & 3)}")
    A("s_cmp_eq_u32 s62, 1")
    A("s_waitcnt lgkmcnt(0)")
    for i in range(2):
        A(f"v_pk_add_f32 v[{R0 + 2 * i}:{R0 + 2 * i + 1}], v[{R0 + 2 * i}:{R0 + 2 * i + 1}], v[{R0 + 4 + 2 * i}:{R0 + 5 + 2 * i}]")
    A(f"v_pk_add_f32 v[{R0}:{R0 + 1}], v[{R0}:{R0 + 1}], v[{R0 + 2}:{R0 + 3}]")
    A(f"v_add_f32 v{R0}, v{R0}, v{R0 + 1}")
    A(f"v_mul_f32 v{R0}, v{R0}, v{vAl}")
    A(f"v_mov_b32_dpp v{R0 + 1}, v{R0} quad_perm:[3,3,3,3] {FULL}")
    A(f"v_perm_b32 v{R0}, v{R0}, v{R0 + 1}, v{vM}")
    A(f"v_cndmask_b32 v{R0}, v{R0}, v{vL}, s[50:51]")
    A("s_cbranch_scc0 L_pubfar")
    A(f"global_store_dword v67, v{R0}, s[38:39]")
    A("L_published:")
    for _ in range(pad2):
        A("s_nop 0")
    stamp_at(5)
    A("s_cmp_lt_u32 s7, 14")
    A("s_cbranch_scc1 L_ffn")
    A("s_cmp_lt_u32 s7, 16")
    A("s_cbranch_scc1 L_final")
    if not bprep:
        prepB()
    NKK = 2 if b4 else 1
    WB = 80
    D0 = 120
    TP = 152
    WW = 160
    AA = 112
    AC = 32
    loads = [f"global_load_dwordx4 v[{D0 + 16 * kk + 4 * pi}:{D0 + 16 * kk + 4 * pi + 3}], v{48 + pi}, s[38:39] offset:{512 * kk} sc1" for pi in range(4) for kk in range(NKK)]

    def bweights():
        A(f"s_waitcnt vmcnt({4 * NKK})")
        if b4:
            A("s_barrier")
        for kk in range(NKK):
            for tau in range(4):
                for t in range(2):
                    r = WB + 16 * kk + 4 * tau + 2 * t
                    if kk == 1 and tau == 3 and t == 0:
                        A("s_waitcnt lgkmcnt(0)")
                    A(f"ds_read_b64_tr_b16 v[{r}:{r + 1}], v52 offset:{L_W + 4096 * kk + 512 * t + 32 * tau}")
    A("s_barrier")
    if b4:
        A("s_cmp_lt_u32 s3, 4")
        A("s_cbranch_scc1 L_bgo")
        A("s_waitcnt vmcnt(0)")
        A("s_barrier")
        A("s_branch L_bdone")
        A("L_bgo:")
    stamp_at(8)
    poll("L_poll1", loads, range(D0, D0 + 16 * NKK), 31, between=bweights)
    stamp_at(6)
    pm1 = [f"v_perm_b32 v{TP + 4 * kk + pi}, v{D0 + 16 * kk + 4 * pi + 2}, v{D0 + 16 * kk + 4 * pi + 1}, s52" for kk in range(NKK) for pi in range(4)]
    A(f"v_max3_f32 v16, v{D0 + 3}, v{D0 + 7}, v{D0 + 11}\nv_max_f32 v16, v16, v{D0 + 15}")
    A(pm1.pop(0))
    A(pm1.pop(0))
    A(f"v_max_f32_dpp v16, v16, v16 row_ror:8 {FULL}")
    A("v_mov_b32 v17, v16")
    A(pm1.pop(0))
    A(pm1.pop(0))
    A("v_permlane16_swap_b32 v16, v17")
    A("v_max_f32 v16, v16, v17")
    A("v_mov_b32 v17, v16")
    for x in pm1[:2]:
        A(x)
    A("v_permlane32_swap_b32 v16, v17")
    A("v_max_f32 v16, v16, v17")
    for pi in range(4):
        A(f"v_sub_f32 v{WW + pi}, v{D0 + 4 * pi + 3}, v16")
    for x in pm1[2:]:
        A(x)
    for pi in range(4):
        A(f"v_exp_f32 v{WW + pi}, v{WW + pi}")
        for kk in range(NKK):
            A(f"v_perm_b32 v{D0 + 16 * kk + 4 * pi + 3}, v{TP + 4 * kk + pi}, v{D0 + 16 * kk + 4 * pi}, s53")
    A(f"v_pk_add_f32 v[16:17], v[{WW}:{WW + 1}], v[{WW + 2}:{WW + 3}]")
    for kk in range(NKK):
        for hlf in range(2):
            r = D0 + 16 * kk + 2 * hlf
            A(f"v_pk_mul_f32 v[{r}:{r + 1}], v[{WW}:{WW + 1}], v[{r}:{r + 1}] op_sel_hi:[0,1]")
    A("v_add_f32 v16, v16, v17")
    for pi in range(1, 4):
        w = f"v[{WW + (pi & 2)}:{WW + 1 + (pi & 2)}]"
        sel = "op_sel:[1,0,0] op_sel_hi:[1,1,1]" if pi & 1 else "op_sel_hi:[0,1,1]"
        for kk in range(NKK):
            for hlf in range(2):
                r = D0 + 16 * kk + 2 * hlf
                A(f"v_pk_fma_f32 v[{r}:{r + 1}], {w}, v[{r + 4 * pi}:{r + 4 * pi + 1}], v[{r}:{r + 1}] {sel}")
        if pi == 1:
            A(f"v_add_f32_dpp v16, v16, v16 row_ror:8 {FULL}")
    A("v_mov_b32 v17, v16")
    for kk in range(NKK):
        d = D0 + 16 * kk
        A(f"v_permlane32_swap_b32 v{d}, v{d + 1}\nv_permlane32_swap_b32 v{d + 2}, v{d + 3}")
    A("v_permlane32_swap_b32 v16, v17")
    A("v_add_f32 v16, v16, v17")
    A("v_mov_b32 v17, v16")
    for kk in range(NKK):
        d = D0 + 16 * kk
        A(f"v_add_f32 v{d}, v{d}, v{d + 1}\nv_add_f32 v{d + 2}, v{d + 2}, v{d + 3}")
    A("v_permlane16_swap_b32 v16, v17")
    A("v_add_f32 v16, v16, v17")
    for kk in range(NKK):
        d = D0 + 16 * kk
        A(f"v_permlane16_swap_b32 v{d}, v{d + 2}")
    A("v_rcp_f32 v16, v16")
    for kk in range(NKK):
        d = D0 + 16 * kk
        A(f"v_add_f32 v{d}, v{d}, v{d + 2}")
    for kk in range(NKK):
        d = D0 + 16 * kk
        A(f"v_add_f32_dpp v{d}, v{d}, v{d} row_ror:8 {FULL}")
    for kk in range(NKK):
        d = D0 + 16 * kk
        A(f"v_mul_f32 v{d}, v{d}, v16")
    for kk in range(NKK):
        d = D0 + 16 * kk
        A(f"v_mov_b32_dpp v{d + 1}, v{d} quad_perm:[1,0,3,2] {FULL}")
    for kk in range(NKK):
        d = D0 + 16 * kk
        A(f"v_cvt_pk_bf16_f32 v{d}, v{d}, v{d + 1}")
    for kk in range(NKK):
        for e in range(4):
            A(f"v_mov_b32_dpp v{AA + 4 * kk + e}, v{D0 + 16 * kk} row_newbcast:{2 * e} {FULL}")
    A("s_waitcnt lgkmcnt(0)")
    for kk in range(NKK):
        for tau in range(4):
            c = "0" if kk == 0 else f"v[{AC + 4 * tau}:{AC + 4 * tau + 3}]"
            b = WB + 16 * kk + 4 * tau
            A(f"v_mfma_f32_16x16x32_bf16 v[{AC + 4 * tau}:{AC + 4 * tau + 3}], v[{AA + 4 * kk}:{AA + 4 * kk + 3}], v[{b}:{b + 3}], {c}")
    A(f"v_cndmask_b32 v{AC}, v{AC}, v{AC + 4}, s[54:55]")
    A(f"v_cndmask_b32 v{AC + 8}, v{AC + 8}, v{AC + 12}, s[54:55]")
    A(f"v_cndmask_b32 v{AC}, v{AC}, v{AC + 8}, s[8:9]")
    A(f"ds_write_b32 v53, v{AC} offset:{L_B}")
    A("s_cmp_eq_u32 s3, 0")
    A("s_waitcnt lgkmcnt(0)")
    A("s_barrier")
    A("s_cbranch_scc0 L_bdone")
    NW = 8 // NKK
    for i in range(NW):
        A(f"ds_read_b32 v{120 + i}, v54 offset:{L_B + 256 * i}")
    A("s_waitcnt lgkmcnt(0)")
    if NW == 8:
        for i in range(2):
            A(f"v_pk_add_f32 v[{120 + 2 * i}:{121 + 2 * i}], v[{120 + 2 * i}:{121 + 2 * i}], v[{124 + 2 * i}:{125 + 2 * i}]")
    A("v_pk_add_f32 v[120:121], v[120:121], v[122:123]")
    A("v_add_f32 v120, v120, v121")
    store_quad(120, 55, fl=st2, addr2=None if dup is None else 56)
    A("L_bdone:")
    if wb:
        A("s_cmp_eq_u32 s3, 1\ns_cbranch_scc0 L_nowb\ns_cmp_eq_u32 s7, 16\ns_cbranch_scc0 L_nowb")
        A("buffer_wbl2 sc1")
        A("L_nowb:")
    stamp_at(7)
    stamp_store()
    A("s_endpgm")
    A("L_pubfar:")
    A("s_nop 0")
    store_quad(R0, 67)
    A("s_branch L_published")
    A("L_ffn:")
    vCol = 65
    A("v_and_b32 v17, 7, v0\nv_bfe_u32 v16, v0, 3, 2\nv_lshl_add_u32 v16, v17, 2, v16")
    A("v_and_b32 v18, 32, v0\nv_add_u32 v16, v16, v18")
    A(f"s_lshl_b32 s4, s3, 6\nv_add_u32 v{vCol}, s4, v16")
    A(f"v_lshlrev_b32 v29, 1, v{vCol}")
    A(f"ds_read_u16_d16_hi v64, v29 offset:{L_X}")
    A(f"s_lshl_b32 s4, s3, 8\ns_add_u32 s4, s4, {WS_P2}")
    if dup is None:
        A("v_lshrrev_b32 v18, 3, v0\nv_lshlrev_b32 v19, 12, v18\nv_lshl_add_u32 v16, v17, 4, v19\nv_add_u32 v20, s4, v16")
    else:
        mycopy("s5")
        A("s_add_u32 s4, s4, s5")
        A("v_lshrrev_b32 v18, 4, v0\nv_lshlrev_b32 v19, 14, v18\nv_bfe_u32 v18, v0, 3, 1\nv_lshl_add_u32 v19, v18, 12, v19\nv_lshl_add_u32 v16, v17, 4, v19\nv_add_u32 v20, s4, v16")
    A("v_lshrrev_b32 v18, 4, v0\nv_and_b32 v17, 15, v0")
    rowoff("s4", "s15", "s5", dup3)
    A(f"s_add_u32 s4, s4, {WS_P3}\ns_lshl_b32 s5, s3, {9 if c4 else 8}\ns_and_b32 s5, s5, 0x7ff\ns_add_u32 s4, s4, s5")
    if dup is not None and dup3:
        mycopy("s5")
        A("s_xor_b32 s5, s5, 0x2000\ns_add_u32 s4, s4, s5")
    A(f"v_lshl_add_u32 v22, v0, {3 if c4 else 2}, s4")
    if dup is not None and dup3:
        A("v_xor_b32 v21, 0x2000, v22")
    A("s_lshl_b32 s5, s3, 4\nv_mov_b32 v23, s5")
    A("v_and_b32 v24, 7, v0\nv_lshlrev_b32 v24, 4, v24")
    A("s_mov_b32 s63, 0x42800000\ns_mov_b32 s54, 0xffff0000\ns_mov_b32 s55, 0xffff0000")
    A("v_mov_b32 v67, 0x3b000000\nv_mov_b32 v68, 0x3727c5ac\nv_mov_b32 v69, 0xbdd2d3e8\nv_mov_b32 v70, 0xc0135761")
    for i in range(4):
        A(f"v_mov_b32 v{72 + i}, 0x3f803f80")
    A("s_lshl_b32 s4, s3, 7\nv_lshl_add_u32 v25, v18, 4, s4")
    A("v_lshlrev_b32 v27, 2, v0\ns_lshl_b32 s5, s3, 8\nv_add_u32 v26, s5, v27")
    A("v_lshl_add_u32 v28, v0, 1, s4")
    if cfast:
        A("v_bfe_u32 v16, v0, 2, 2\nv_lshlrev_b32 v16, 2, v16\nv_bfe_u32 v19, v0, 4, 1\nv_lshl_add_u32 v16, v19, 1, v16")
        A("v_and_b32 v19, 32, v0\nv_add_u32 v16, v16, v19\nv_lshlrev_b32 v16, 5, v16")
    else:
        A("v_bfe_u32 v16, v0, 2, 2\nv_lshl_add_u32 v16, v18, 3, v16\nv_lshlrev_b32 v16, 5, v16")
    A("v_and_b32 v17, 3, v0\nv_lshl_add_u32 v16, v17, 3, v16\nv_add_u32 v16, s57, v16")
    GW = 88
    DW = 104

    DW2 = 144

    def dreads():
        if c4:
            A("s_lshl_b32 s5, s3, 8\nv_lshl_add_u32 v28, v0, 2, s5")
            A("v_and_b32 v28, 0x3ff, v28")
            for r in range(16):
                if r == 14:
                    A("s_waitcnt lgkmcnt(0)")
                A(f"ds_read_b32 v{DW + r}, v28 offset:{L_W + 32768 + 1024 * r}")
            A("s_waitcnt lgkmcnt(0)")
            for r in range(16):
                A(f"v_and_b32 v{40 + r}, 0xffff0000, v{DW + r}")
                A(f"v_lshlrev_b32 v{DW + r}, 16, v{DW + r}")
            return
        for r in range(16):
            if r == 14:
                A("s_waitcnt lgkmcnt(0)")
            A(f"ds_read_u16_d16_hi v{DW + r}, v28 offset:{L_W + 32768 + 1024 * r}")
    if dsplit and not dlast:
        if dlate:
            A("s_waitcnt vmcnt(1)")
        A("s_barrier")
        dreads()
        A("s_waitcnt lgkmcnt(0)")
    A("s_barrier")
    stamp_at(11)

    def cweights():
        for mat in range(2):
            for kap in range(2):
                for t in range(2):
                    r = GW + 8 * mat + 4 * kap + 2 * t
                    A(f"ds_read_b64_tr_b16 v[{r}:{r + 1}], v16 offset:{L_W + 16384 * mat + ((32 * kap + 512 * t) if cfast else (1024 * kap + 128 * t))}")
        if cfast or csd:
            stamp_at(13)
            return
        colsums()

    def colsums():
        A("s_waitcnt lgkmcnt(0)")
        A(f"v_mfma_f32_16x16x32_bf16 v[140:143], v[72:75], v[{GW}:{GW + 3}], 0")
        A(f"v_mfma_f32_16x16x32_bf16 v[144:147], v[72:75], v[{GW + 8}:{GW + 11}], 0")
        A(f"v_mfma_f32_16x16x32_bf16 v[140:143], v[72:75], v[{GW + 4}:{GW + 7}], v[140:143]")
        A(f"v_mfma_f32_16x16x32_bf16 v[144:147], v[72:75], v[{GW + 12}:{GW + 15}], v[144:147]")
        if not (cfast or csd):
            A("v_cndmask_b32 v66, v140, v144, s[54:55]")
            stamp_at(13)
    loads = [f"global_load_dwordx4 v[{120 + 4 * i}:{123 + 4 * i}], v20, s[38:39] offset:{2048 * (i >> 1) + 128 * (i & 1)} {ld2}" for i in range(4)]
    poll("L_poll2", loads, range(120, 136), 31, between=cweights)
    stamp_at(6)
    if cfast or csd:
        n0 = len(C)
        colsums()
        cs = C[n0:]
        del C[n0:]
        A(cs[0])
    for e in range(4):
        if cfast or csd:
            A(cs[1 + e])
        A(f"v_pk_add_f32 v[{120 + 2 * e}:{121 + 2 * e}], v[{120 + 2 * e}:{121 + 2 * e}], v[{128 + 2 * e}:{129 + 2 * e}]")
    for e in range(4):
        A(f"v_permlane32_swap_b32 v{120 + e}, v{124 + e}")
    A("v_pk_add_f32 v[120:121], v[120:121], v[124:125]\nv_pk_add_f32 v[122:123], v[122:123], v[126:127]")
    A("v_permlane16_swap_b32 v120, v122\nv_permlane16_swap_b32 v121, v123")
    A("v_pk_add_f32 v[122:123], v[120:121], v[122:123]")
    A("v_add_f32_dpp v120, v122, v122 row_ror:8 row_mask:0xf bank_mask:0x3")
    A("v_add_f32_dpp v120, v123, v123 row_ror:8 row_mask:0xf bank_mask:0xc")
    A("v_add_f32 v120, v120, v64")
    if cfast:
        A(f"v_mov_b32_dpp v122, v120 quad_perm:[1,0,3,2] {FULL}")
        A("v_cndmask_b32 v66, v140, v144, s[54:55]")
        A("v_cvt_pk_bf16_f32 v121, v120, v122")
        A("v_lshlrev_b32 v120, 16, v121")
        for e in range(8):
            A(f"v_mov_b32_dpp v{124 + e}, v121 row_newbcast:{2 * e} {FULL}")
            if e == 0:
                A("v_readfirstlane_b32 s4, v120")
    else:
        A("v_cvt_pk_bf16_f32 v121, v120, v120")
        A(f"ds_write_b16 v29, v121 offset:{L_HN}")
        A("v_lshlrev_b32 v120, 16, v121")
        if csd:
            A("v_cndmask_b32 v66, v140, v144, s[54:55]")
        A("v_readfirstlane_b32 s4, v120")
        A("s_waitcnt lgkmcnt(0)")
        A(f"ds_read_b128 v[124:127], v25 offset:{L_HN}")
        A(f"ds_read_b128 v[128:131], v25 offset:{L_HN + 64}")
    A("v_subrev_f32 v148, s4, v120")
    A("v_mov_b32 v150, s4")
    A("v_mul_f32 v149, v148, v148")
    steps = [f"{m} {FULL}" for m in ("row_shr:1", "row_shr:2", "row_shr:4", "row_shr:8")] + ["row_bcast:15 row_mask:0xa bank_mask:0xf", "row_bcast:31 row_mask:0xc bank_mask:0xf"]
    mf = [f"v_mfma_f32_16x16x32_bf16 v[132:135], v[124:127], v[{GW}:{GW + 3}], 0",
          f"v_mfma_f32_16x16x32_bf16 v[136:139], v[124:127], v[{GW + 8}:{GW + 11}], 0",
          f"v_mfma_f32_16x16x32_bf16 v[132:135], v[128:131], v[{GW + 4}:{GW + 7}], v[132:135]",
          f"v_mfma_f32_16x16x32_bf16 v[136:139], v[128:131], v[{GW + 12}:{GW + 15}], v[136:139]"]
    for k, m in enumerate(steps):
        A(f"v_add_f32_dpp v148, v148, v148 {m}")
        A(f"v_add_f32_dpp v149, v149, v149 {m}")
        if k == (0 if cfast else 1):
            if not cfast:
                A("s_waitcnt lgkmcnt(0)")
            stamp_at(8)
            A(mf[0])
            A(mf[1])
        if k == (1 if cfast else 2):
            A(mf[2])
            A(mf[3])
    A("s_mov_b32 exec_lo, 0\ns_mov_b32 exec_hi, 0x80000000")
    A(f"ds_write_b96 v23, v[148:150] offset:{L_H}")
    A("s_mov_b32 exec_lo, -1\ns_mov_b32 exec_hi, 0")
    A("v_cndmask_b32 v66, v132, v136, s[54:55]")
    A("s_mov_b64 exec, -1")
    A(f"ds_write_b32 v26, v66 offset:{L_B}")
    A("s_waitcnt lgkmcnt(0)")
    stamp_at(9)
    if c4:
        A("s_cmp_lt_u32 s3, 4")
    A("s_barrier")
    if c4:
        A("s_cbranch_scc0 L_cdone")
    A(f"ds_read_b96 v[124:126], v24 offset:{L_H}")
    for i in range(8):
        A(f"ds_read_b32 v{128 + i}, v27 offset:{L_B + 256 * i}")
    nd = 0
    if dlast:
        nd = 6
        for r in range(nd):
            A(f"ds_read_u16_d16_hi v{DW + r}, v28 offset:{L_W + 32768 + 1024 * r}")
    A("s_waitcnt lgkmcnt(0)" if stamps else f"s_waitcnt lgkmcnt({8 + nd})")
    stamp_at(10)
    x8 = ("quad_perm:[1,0,3,2]", "quad_perm:[2,3,0,1]", "row_half_mirror")
    A("v_fma_f32 v127, v126, s63, v124")
    A("v_add_f32 v124, v124, v124")
    A("s_waitcnt lgkmcnt(0)" if stamps else f"s_waitcnt lgkmcnt({4 + nd})")
    A(f"v_add_f32_dpp v127, v127, v127 {x8[0]} {FULL}")
    A("v_pk_add_f32 v[128:129], v[128:129], v[130:131]")
    A("s_waitcnt lgkmcnt(0)" if stamps else f"s_waitcnt lgkmcnt({nd})")
    if dlast:
        for r in range(nd, 15):
            A(f"ds_read_u16_d16_hi v{DW + r}, v28 offset:{L_W + 32768 + 1024 * r}")
    A(f"v_add_f32_dpp v127, v127, v127 {x8[1]} {FULL}")
    A("v_pk_add_f32 v[132:133], v[132:133], v[134:135]")
    A("v_pk_add_f32 v[128:129], v[128:129], v[132:133]")
    A(f"v_add_f32_dpp v127, v127, v127 {x8[2]} {FULL}")
    A("v_add_f32 v120, v128, v129")
    A("v_add_f32 v121, v128, v129")
    A("v_mul_f32 v127, 0x3b000000, v127")
    A("v_sub_f32 v126, v127, v126")
    A("v_permlane32_swap_b32 v120, v121")
    A("v_fma_f32 v124, v126, s63, -v124")
    A("v_fma_f32 v125, v126, v124, v125")
    A("v_fma_f32 v122, -v127, v121, v120")
    A("v_fma_f32 v121, -v127, v121, v120")
    A(f"v_add_f32_dpp v125, v125, v125 {x8[0]} {FULL}")
    A("v_mov_b32 v120, v122")
    A(f"v_add_f32_dpp v125, v125, v125 {x8[1]} {FULL}")
    A("v_permlane16_swap_b32 v120, v121")
    A(f"v_add_f32_dpp v125, v125, v125 {x8[2]} {FULL}")
    if dlast:
        A("s_waitcnt lgkmcnt(0)")
        A(f"ds_read_u16_d16_hi v{DW + 15}, v28 offset:{L_W + 32768 + 1024 * 15}")
    A("v_fma_f32 v125, v125, v67, v68")
    A("v_rsq_f32 v125, v125")
    A("v_mul_f32 v120, v120, v125")
    A("v_mul_f32 v121, v121, v125")
    A("v_mul_f32 v122, v120, v120")
    A("v_mul_f32 v121, v120, v121")
    A("v_fma_f32 v122, v122, v69, v70")
    A("v_mul_f32 v122, v122, v120")
    A("v_exp_f32 v122, v122")
    A("v_add_f32 v122, 1.0, v122")
    A("v_rcp_f32 v122, v122")
    A("v_mul_f32 v120, v121, v122")
    if dlast:
        A("s_waitcnt lgkmcnt(0)")
    if c4:
        for r in range(16):
            op = "mul" if r < 2 else "fmac"
            A(f"v_{op}_f32_dpp v{124 + 2 * (r & 1)}, v120, v{DW + r} row_newbcast:{r} {FULL}")
            A(f"v_{op}_f32_dpp v{125 + 2 * (r & 1)}, v120, v{40 + r} row_newbcast:{r} {FULL}")
        A("v_pk_add_f32 v[124:125], v[124:125], v[126:127]")
        A(f"v_mov_b32_dpp v126, v124 quad_perm:[1,1,3,3] {FULL}")
        A(f"v_mov_b32_dpp v127, v125 quad_perm:[1,1,3,3] {FULL}")
        A("s_mov_b32 exec_lo, 0x55555555\ns_mov_b32 exec_hi, 0x55555555")
        A("global_store_dwordx4 v22, v[124:127], s[38:39] sc1")
        if dup is not None and dup3:
            A("global_store_dwordx4 v21, v[124:127], s[38:39] sc1")
        A("s_mov_b64 exec, -1")
    else:
        for r in range(16):
            op = "mul" if r < 4 else "fmac"
            A(f"v_{op}_f32_dpp v{124 + (r & 3)}, v120, v{DW + r} row_newbcast:{r} {FULL}")
        A("v_pk_add_f32 v[124:125], v[124:125], v[126:127]")
        A("v_add_f32 v124, v124, v125")
        store_quad(124, 22, fl=st3, addr2=21 if (dup is not None and dup3) else None)
    A("L_cdone:")
    stamp_at(7)
    stamp_store()
    A("s_endpgm")
    A("L_final:")
    A("s_barrier")
    A("s_sub_u32 s15, s7, 14\ns_lshl_b32 s4, s6, 1\ns_add_u32 s15, s15, s4")
    A("v_and_b32 v16, 7, v0\nv_lshrrev_b32 v17, 3, v0\nv_lshlrev_b32 v17, 11, v17\nv_lshl_add_u32 v17, v16, 4, v17")
    A("v_and_b32 v22, 31, v0\ns_lshl_b32 s4, s15, 6\nv_lshl_add_u32 v18, v22, 1, s4")
    A("v_lshlrev_b32 v22, 2, v22")
    sigma(23, 24)
    A("v_lshl_add_u32 v23, v16, 2, v23\nv_lshl_add_u32 v19, v23, 1, s4")
    A(f"ds_read_u16_d16_hi v19, v19 offset:{L_X}")
    A("s_lshl_b32 s4, s3, 7\nv_lshl_add_u32 v23, v23, 2, s4")
    if dup is None:
        A(f"s_lshl_b32 s4, s3, 15\ns_add_u32 s4, s4, {WS_P3}")
        A("s_cmp_eq_u32 s3, 7")
        A(f"s_cselect_b32 s4, {WS_P2}, s4")
        A("s_lshl_b32 s5, s15, 7\ns_add_u32 s4, s4, s5")
        A("v_add_u32 v20, s4, v17\nv_add_u32 v21, 0x4000, v20")
    else:
        A("v_lshrrev_b32 v24, 5, v0\nv_lshlrev_b32 v24, 13, v24")
        mycopy("s8")
        A(f"s_lshl_b32 s4, s3, {16 if dup3 else 15}\ns_add_u32 s4, s4, {WS_P3}")
        A("s_cmp_eq_u32 s3, 7")
        A(f"s_cselect_b32 s4, {WS_P2}, s4")
        if dup3:
            A("s_add_u32 s4, s4, s8\ns_mov_b32 s9, 0x8000")
        else:
            A("s_cselect_b32 s8, s8, 0\ns_movk_i32 s9, 0x4000\ns_cselect_b32 s9, 0x8000, s9\ns_cselect_b32 s5, -1, 0\ns_add_u32 s4, s4, s8\nv_and_b32 v24, s5, v24")
        A("s_lshl_b32 s5, s15, 7\ns_add_u32 s4, s4, s5")
        A("v_add3_u32 v20, v17, v24, s4\nv_add_u32 v21, s9, v20")
    loads = [f"global_load_dwordx4 v[{120 + 4 * i}:{123 + 4 * i}], v{20 + i}, s[38:39] {ld3}" for i in range(2)]
    if dsleep is not None:
        A("s_cmp_eq_u32 s3, 7")
        A("s_cbranch_scc1 L_dgo")
        A("s_barrier")
        A(f"s_sleep {dsleep}")
        A("L_dgo:")
    poll("L_poll3", loads, range(120, 128), 16)
    if dsleep is not None:
        A("s_cmp_eq_u32 s3, 7")
        A("s_cbranch_scc0 L_dgo2")
        A("s_barrier")
        A("L_dgo2:")
    stamp_at(6)
    for e in range(4):
        A(f"v_add_f32 v{120 + e}, v{120 + e}, v{124 + e}")
    scatter4(120)
    A(f"v_add_f32_dpp v120, v120, v120 row_ror:8 {FULL}")
    A("s_cmp_eq_u32 s3, 7")
    A("s_cbranch_scc0 L_dnoh")
    A("s_waitcnt lgkmcnt(0)")
    A("v_add_f32 v120, v120, v19")
    rbf(120)
    A("L_dnoh:")
    A("s_mov_b32 exec_lo, 0x00ff00ff\ns_mov_b32 exec_hi, 0x00ff00ff")
    A(f"ds_write_b32 v23, v120 offset:{L_B}")
    A("s_mov_b64 exec, -1")
    A("s_cmp_eq_u32 s3, 0")
    A("s_waitcnt lgkmcnt(0)")
    A("s_barrier")
    A("s_cbranch_scc0 L_ddone")
    for i in range(8):
        A(f"ds_read_b32 v{120 + i}, v22 offset:{L_B + 128 * i}")
    A("s_waitcnt lgkmcnt(0)")
    for i in range(2):
        A(f"v_pk_add_f32 v[{120 + 2 * i}:{121 + 2 * i}], v[{120 + 2 * i}:{121 + 2 * i}], v[{124 + 2 * i}:{125 + 2 * i}]")
    A("v_pk_add_f32 v[120:121], v[120:121], v[122:123]")
    A("v_add_f32 v120, v120, v121")
    if perturb:
        import struct
        kind, val = perturb
        h = hex(struct.unpack("<I", struct.pack("<f", val))[0])
        if kind == "add": A(f"v_add_f32 v120, {h}, v120")
        if kind == "mul": A(f"v_mul_f32 v120, {h}, v120")
        if kind == "one":
            A("s_cmp_eq_u32 s15, 0\ns_cselect_b32 s4, 1, 0\ns_mov_b32 s5, 0\ns_mov_b64 exec, s[4:5]")
            A(f"v_add_f32 v120, {h}, v120\ns_mov_b64 exec, -1")
    A(f"v_mov_b32_dpp v121, v120 quad_perm:[1,0,3,2] {FULL}")
    A("v_cvt_pk_bf16_f32 v120, v120, v121")
    A("s_mov_b64 exec, 0x55555555")
    A("global_store_dword v18, v120, s[34:35]" + (" " + outfl if outfl else ""))
    stamp_at(7)
    if enc:
        a, b, mult = enc
        A("s_waitcnt lgkmcnt(0)")
        A(f"s_sub_u32 s4, s{64 + 2 * a}, s{64 + 2 * b}\ns_mul_i32 s4, s4, {mult}\ns_min_u32 s4, s4, 40000")
        A("L_enc:\ns_memrealtime s[8:9]\ns_waitcnt lgkmcnt(0)\ns_sub_u32 s5, s8, s78\ns_cmp_lt_u32 s5, s4\ns_cbranch_scc1 L_enc")
    A("L_ddone:")
    stamp_at(7)
    stamp_store()
    A("s_endpgm")

    for _ in range(pad3):
        A("s_nop 0")
    A("L_service:")
    A("s_setprio 3")
    A(f"v_mov_b32 v98, {L_F}\nv_mov_b32 v99, 0")
    A("ds_write_b32 v98, v99")
    A("ds_write_b32 v98, v99 offset:8")
    A("ds_write_b32 v98, v99 offset:12")
    A("ds_write_b32 v98, v99 offset:20")
    if not qearly:
        A("s_waitcnt lgkmcnt(0)")
        A("s_barrier")
    for i in range(4):
        A(f"v_mov_b32 v{100 + i}, -1")
    roles()
    p1slot("s4")
    A("v_add_u32 v104, s4, v9")
    A("s_cmp_eq_u32 s7, 0")
    A("s_waitcnt lgkmcnt(0)")
    if "svcoff" in xp:
        A("s_barrier\ns_branch L_svcbar" if qearly else "s_branch L_svcbar")
    A("s_cbranch_scc0 L_qcleared")
    A(f"s_lshl_b32 s10, s60, 13\nv_add_u32 v3, s10, v9\nv_add_u32 v8, 0x1000, v3")
    for i in range(8):
        A(f"global_store_dwordx4 v{3 if i < 4 else 8}, v[100:103], s[38:39] offset:{1024 * (i & 3)} sc1")
    A(f"s_lshl_b32 s10, s60, 7\ns_add_u32 s10, s10, {WS_F}\nv_add_u32 v3, s10, v9")
    A(f"s_lshl_b32 s10, s6, 7\ns_add_u32 s10, s10, {WS_G}\nv_add_u32 v8, s10, v9")
    A("s_mov_b64 exec, 0xff")
    A("global_store_dwordx4 v3, v[100:103], s[38:39] sc1")
    A("global_store_dwordx4 v8, v[100:103], s[38:39] sc1")
    if adapt or rankpre:
        A(f"global_store_dwordx4 v8, v[100:103], s[38:39] offset:{WS_R - WS_G - 4096 + 4096 - 0 if WS_R - WS_G < 4096 else 0} sc1" if False else f"v_add_u32 v8, {WS_R - WS_G}, v8\nglobal_store_dwordx4 v8, v[100:103], s[38:39] sc1")
    if dup == "auto" and vpos:
        A(f"v_add_u32 v8, {WS_V - WS_R}, v8\nglobal_store_dwordx4 v8, v[100:103], s[38:39] sc1")
    A("s_mov_b64 exec, -1")
    A("L_qcleared:")
    if qearly:
        A("s_barrier")
    nyoung = 0
    if "noclear" not in xp and sclr is None:
        A("global_store_dwordx4 v104, v[100:103], s[38:39] sc1")
        A("global_store_dwordx4 v104, v[100:103], s[38:39] offset:1024 sc1")
        nyoung += 2
        A("s_cmp_lt_u32 s7, 14")
        A("s_cbranch_scc0 L_noclr3")
        A(f"s_lshl_b32 s4, s15, 11\ns_add_u32 s4, s4, {WS_P3}\nv_add_u32 v105, s4, v9")
        A("global_store_dwordx4 v105, v[100:103], s[38:39] sc1")
        A("global_store_dwordx4 v105, v[100:103], s[38:39] offset:1024 sc1")
        A("L_noclr3:")
        A("s_cmp_ge_u32 s7, 16")
        A("s_cbranch_scc0 L_noclr2")
        A(f"s_lshl_b32 s4, s13, 11\ns_lshl_b32 s5, s14, 8\ns_add_u32 s4, s4, s5\ns_add_u32 s4, s4, {WS_P2}\nv_add_u32 v105, s4, v9")
        A("s_mov_b64 exec, 0xffff")
        A("global_store_dwordx4 v105, v[100:103], s[38:39] sc1")
        A("s_mov_b64 exec, -1")
        A("L_noclr2:")
    stamp_at(1)
    A("v_lshlrev_b32 v96, 5, v0")
    A("s_cmp_eq_u32 s7, 0")
    A("s_cbranch_scc0 L_noqflag")
    A("s_lshl_b32 s4, s60, 5\nv_mov_b32 v104, s4\nv_mov_b32 v105, 1")
    A(f"s_waitcnt vmcnt({4 if ('noclear' not in xp and sclr is None) else 0})")
    A("s_mov_b64 exec, 1")
    A("global_store_dword v104, v105, s[36:37] sc1")
    A("s_mov_b64 exec, -1")
    A("L_noqflag:")
    ldswait("L_waitwq", 12, 8)

    def firstlook():
        A("s_mov_b64 exec, 0xff")
        A("global_load_dword v97, v96, s[36:37] sc1")
        A("s_mov_b64 exec, -1")
    if qearly:
        firstlook()
    A(f"ds_read_b128 v[4:7], v9 offset:{L_X}")
    A("s_waitcnt lgkmcnt(0)")
    stamp_at(2)
    X = list(range(8, 16))
    X[1] = 3
    for i in range(4):
        A(f"v_lshlrev_b32 v{X[2 * i]}, 16, v{4 + i}")
        A(f"v_and_b32 v{X[2 * i + 1]}, 0xffff0000, v{4 + i}")
    ln_stats(X, 16, 17, 18, 19, 20, list(range(22, 30)))
    ln_apply(X, 16, 17, 18, list(range(22, 30)))
    for i in range(4):
        A(f"v_cvt_pk_bf16_f32 v{4 + i}, v{X[2 * i]}, v{X[2 * i + 1]}")
    A(f"ds_write_b128 v9, v[4:7] offset:{L_HN}")
    A(f"s_and_b32 s4, s7, {KS - 1}\ns_lshl_b32 s4, s4, {10 - KL}\nv_lshrrev_b32 v17, 4, v0\nv_lshl_add_u32 v16, v17, 4, s4")
    A("v_bfe_u32 v18, v0, 2, 2\nv_lshl_add_u32 v17, v17, 3, v18\nv_lshlrev_b32 v17, 7, v17\nv_and_b32 v18, 3, v0\nv_lshl_add_u32 v17, v18, 3, v17")
    A("s_waitcnt lgkmcnt(0)")
    NK = NQ // 4
    for k in range(NK):
        A(f"ds_read_b128 v[{32 + 4 * k}:{35 + 4 * k}], v16 offset:{L_HN + 64 * k}")
    stamp_at(3)
    if not qearly:
        firstlook()
    for k in range(NK):
        A("s_waitcnt lgkmcnt(0)")
        b = 64 + 16 * (k & 1)
        for tau in range(4):
            for t in range(2):
                r = b + 4 * tau + 2 * t
                A(f"ds_read_b64_tr_b16 v[{r}:{r + 1}], v17 offset:{L_W + 4096 * k + 512 * t + 32 * tau}")
        if k > 0:
            bp = 64 + 16 * ((k - 1) & 1)
            for tau in range(4):
                c = "0" if k == 1 else f"v[{112 + 4 * tau}:{115 + 4 * tau}]"
                A(f"v_mfma_f32_16x16x32_bf16 v[{112 + 4 * tau}:{115 + 4 * tau}], v[{28 + 4 * k}:{31 + 4 * k}], v[{bp + 4 * tau}:{bp + 4 * tau + 3}], {c}")
    A("s_waitcnt lgkmcnt(0)")
    for tau in range(4):
        A(f"v_mfma_f32_16x16x32_bf16 v[{112 + 4 * tau}:{115 + 4 * tau}], v[{28 + 4 * NK}:{31 + 4 * NK}], v[{80 + 4 * tau}:{83 + 4 * tau}], v[{112 + 4 * tau}:{115 + 4 * tau}]")
    A(f"s_lshl_b32 s4, s60, {11 + KL}\ns_and_b32 s5, s7, {KS - 1}\ns_lshl_b32 s5, s5, 11\ns_add_u32 s4, s4, s5\ns_lshr_b32 s5, s7, {KL}\ns_lshl_b32 s5, s5, 8\ns_add_u32 s4, s4, s5")
    A("v_lshl_add_u32 v17, v0, 2, s4")
    for tau in range(1, 4):
        A(f"v_mov_b32_dpp v112, v{112 + 4 * tau} quad_perm:[0,1,2,3] row_mask:{hex(1 << tau)} bank_mask:0xf")
    for i in (1, 2, 3):
        A(f"v_mov_b32_dpp v{112 + i}, v112 quad_perm:[{i},{i},{i},{i}] {FULL}")
    A("L_qdone:")
    A(f"s_lshl_b32 s4, s60, 5\ns_add_u32 s4, s4, s7\ns_lshl_b32 s4, s4, 2\ns_add_u32 s4, s4, {WS_F}\nv_mov_b32 v18, s4")
    A(f"s_lshl_b32 s4, s6, {11 + KL}\nv_add_u32 v19, s4, v9\nv_add_u32 v20, 0x1000, v19")
    A("s_getreg_b32 s62, hwreg(HW_REG_XCC_ID, 0, 4)\nv_mov_b32 v21, s62")
    A("s_lshl_b32 s4, 1, s60\ns_lshl_b32 s5, 1, s6\ns_or_b32 s4, s4, s5")
    if adapt:
        A(f"s_add_u32 s5, s7, {qrot}\ns_and_b32 s5, s5, 7\ns_lshl_b32 s5, 1, s5\ns_or_b32 s4, s4, s5")
    A("s_mov_b32 s5, 0")
    stamp_at(4)
    if "svc1" in xp: A("s_branch L_svcbar2")
    A("L_pollf:")
    A("s_waitcnt vmcnt(0) lgkmcnt(0)")
    A("v_cmp_ne_u32 vcc, 1, v97")
    A("s_and_b32 s57, vcc_lo, s4")
    A("s_cbranch_scc0 L_pollf_ok")
    A(f"s_add_u32 s5, s5, 1\ns_cmp_lt_u32 s5, {SPIN_MAX}\ns_cbranch_scc0 L_pollf_ok")
    A("s_sleep 8")
    A("s_mov_b64 exec, 0xff")
    A("global_load_dword v97, v96, s[36:37] sc1")
    A("s_mov_b64 exec, -1")
    A("s_branch L_pollf")
    A("L_pollf_ok:")
    if KS == 2:
        A("s_cmp_lt_u32 s7, 16")
        A("s_cbranch_scc0 L_noqpub")
    A("s_mov_b32 exec_lo, 0x11111111\ns_mov_b32 exec_hi, 0x11111111")
    A("global_store_dwordx4 v17, v[112:115], s[38:39] sc1")
    A("L_noqpub:")
    A("s_mov_b64 exec, 1")
    A("global_store_dword v18, v21, s[38:39] sc1")
    A("s_mov_b64 exec, -1")
    stamp_at(5)
    if "svc2" in xp: A("s_branch L_svcbar2")
    if warm:
        if warm == "one":
            A("s_cmp_eq_u32 s7, 1")
            A("s_cbranch_scc0 L_nowarm")
        A("s_getpc_b64 s[48:49]")
        A("L_pc:")
        A(f"s_sub_u32 s48, s48, L_pc-{NAME}_kernel\ns_subb_u32 s49, s49, 0")
        A(f"s_mov_b32 s4, L_codeend-{NAME}_kernel-16\nv_mov_b32 v2, v9\ns_mov_b32 s5, 0")
        A("L_warm:")
        A("v_min_u32 v3, s4, v2")
        A("global_load_dwordx4 v[128:131], v3, s[48:49]")
        A("v_add_u32 v2, 1024, v2\ns_add_u32 s5, s5, 1024\ns_cmp_lt_u32 s5, s4\ns_cbranch_scc1 L_warm")
        A("L_nowarm:")
    if adapt:
        A(f"s_and_b32 s4, s7, 7\ns_lshl_b32 s4, s4, 7\ns_add_u32 s4, s4, {WS_R}\nv_mov_b32 v26, s4\nv_mov_b32 v27, 1")
    ldswait("L_waitpos", 8)
    if adapt:
        A("s_mov_b64 exec, 1")
        A("global_atomic_add v28, v26, v27, s[38:39] sc0 sc1")
        A("s_mov_b64 exec, -1")
    poll("L_pollq", [f"global_load_dwordx4 v[{32 + 4 * i}:{35 + 4 * i}], v{19 + (i >> 2)}, s[38:39] offset:{1024 * (i & 3)} sc1" for i in range(2 * KS)],
         range(32, 32 + 8 * KS), 16, slp=qsleep)
    stamp_at(6)
    for e in range(8):
        A(f"v_add_f32 v{32 + e}, v{32 + e}, v{40 + e}")
        if KS == 4:
            A(f"v_add_f32 v{48 + e}, v{48 + e}, v{56 + e}")
    if KS == 4:
        for e in range(8):
            A(f"v_add_f32 v{32 + e}, v{32 + e}, v{48 + e}")
    for e in range(4):
        A(f"v_cvt_pk_bf16_f32 v{40 + e}, v{32 + 2 * e}, v{33 + 2 * e}")
    A("v_lshlrev_b32 v16, 3, v0")
    A(f"ds_write_b64 v16, v[40:41] offset:{L_Q}")
    A(f"ds_write_b64 v16, v[42:43] offset:{L_Q + 512}")
    if adapt:
        A("v_readfirstlane_b32 s4, v28")
        A("s_add_u32 s4, s4, 2")
        A("v_mov_b32 v99, s4")
    else:
        A("v_mov_b32 v99, 1")
    A("s_waitcnt lgkmcnt(0)")
    A("ds_write_b32 v98, v99")
    stamp_at(7)
    if "svc4" in xp: A("s_branch L_svcbar2")
    A("s_mov_b32 s5, 0")
    A("L_pollf2:")
    A("s_mov_b64 exec, 0xff")
    A("global_load_dword v97, v96, s[36:37] sc1")
    A("s_waitcnt vmcnt(0)")
    A("v_cmp_ne_u32 vcc, 1, v97")
    A("s_mov_b64 exec, -1")
    A("s_cbranch_vccz L_pollf2_ok")
    A(f"s_add_u32 s5, s5, 1\ns_cmp_lt_u32 s5, {SPIN_MAX}\ns_cbranch_scc1 L_pollf2")
    A("L_pollf2_ok:")
    stamp_at(8)
    A(f"v_add_u32 v19, {WS_F}, v9")
    poll("L_pollall", ["global_load_dwordx4 v[32:35], v19, s[38:39] sc1"], range(32, 36), 16, slp=16)
    stamp_at(9)
    A("v_xor_b32 v32, v32, v21\nv_xor_b32 v33, v33, v21\nv_xor_b32 v34, v34, v21\nv_xor_b32 v35, v35, v21")
    A("v_or_b32 v32, v32, v33\nv_or3_b32 v32, v32, v34, v35")
    A("v_cmp_ne_u32 vcc, 0, v32")
    A("s_lshl_b32 s4, s60, 3\ns_lshr_b64 s[4:5], vcc, s4\ns_and_b32 s4, s4, 0xff")
    A("s_cselect_b32 s4, 0, 1" if local and "far" not in xp else "s_mov_b32 s4, 0")
    A("L_svcend:")
    A("s_mov_b32 s63, s4")
    if dup == "auto":
        A(f"s_andn2_b32 s8, s7, 4\ns_lshl_b32 s9, s6, 5\ns_add_u32 s8, s8, s9\ns_lshl_b32 s8, s8, 11\ns_and_b32 s9, s7, 4\ns_lshl_b32 s9, s9, 8")
        A(f"s_add_u32 s8, s8, s9\ns_add_u32 s8, s8, {WS_P1}\ns_add_u32 s12, s38, s8\ns_addc_u32 s13, s39, 0\ns_mov_b32 s10, 0")
        A("s_waitcnt lgkmcnt(0)")
        for t in range(ntr):
            A("s_mov_b32 s8, 0\ns_mov_b32 s9, 0")
            o0, o1 = 128 * t, 128 * t + 8192
            A(f"s_load_dword s9, s[12:13], {o1}\ns_load_dword s8, s[12:13], {o0}" if t & 1 else f"s_load_dword s8, s[12:13], {o0}\ns_load_dword s9, s[12:13], {o1}")
            A("s_waitcnt lgkmcnt(1)")
            A("s_sub_u32 s11, s9, s8")
            A("s_waitcnt lgkmcnt(0)")
            A("s_add_u32 s10, s10, s11")
        if vpos:
            A("s_cmp_eq_u32 s63, 1")
            A("s_cbranch_scc0 L_novote")
            A(f"s_lshl_b32 s8, s6, 7\ns_add_u32 s8, s8, {WS_V}\nv_and_b32 v16, 31, v0\nv_lshl_add_u32 v16, v16, 2, s8")
            A("s_lshl_b32 s9, s7, 2\ns_add_u32 s8, s8, s9\nv_mov_b32 v17, s8\ns_add_u32 s10, s10, 16\nv_mov_b32 v18, s10")
            A("s_mov_b64 exec, 1\nglobal_store_dword v17, v18, s[38:39]\ns_mov_b64 exec, -1")
            ldswait("L_waitv", 20)
            A("global_load_dword v18, v16, s[38:39] sc1")
            A("s_waitcnt vmcnt(0)")
            A("v_cmp_lt_i32 vcc, 16, v18")
            A("s_bcnt1_i32_b64 s10, vcc")
            A("v_cmp_gt_u32 vcc, 16, v18")
            A("s_bcnt1_i32_b64 s8, vcc")
            A("s_sub_u32 s10, s10, s8")
            A("L_novote:")
        A("s_cmp_lt_i32 s10, 0\ns_cselect_b32 s10, 0x2000, 0\nv_mov_b32 v99, s10")
        A("ds_write_b32 v98, v99 offset:16")
        roles()
    A("v_mov_b32 v99, s63")
    A("ds_write_b32 v98, v99 offset:4")
    A(f"s_lshl_b32 s4, s6, 7\ns_add_u32 s4, s4, {WS_G}\nv_and_b32 v16, 31, v0\nv_lshl_add_u32 v16, v16, 2, s4")
    A("s_lshl_b32 s5, s7, 2\ns_add_u32 s4, s4, s5\nv_mov_b32 v17, s4\nv_mov_b32 v18, 0")
    A(f"s_and_b32 s4, s7, {0 if rankpre else 15}\ns_mul_i32 s4, s4, {32 * 3584}\ns_mul_i32 s5, s6, 448\ns_andn2_b32 s5, s5, 127\ns_add_u32 s4, s4, s5")
    A("v_lshrrev_b32 v21, 5, v0\nv_mul_u32_u24 v21, 3584, v21\nv_and_b32 v22, 31, v0\nv_lshl_add_u32 v21, v22, 4, v21\nv_add_u32 v21, s4, v21")
    if rankpre:
        A(f"s_lshl_b32 s4, s6, 7\ns_add_u32 s4, s4, {WS_R}\nv_mov_b32 v26, s4\nv_mov_b32 v27, 1")
        A("s_lshl_b32 s4, s7, 1\ns_sub_u32 s4, s4, 1\nv_mov_b32 v28, 0")
    A("v_lshrrev_b32 v22, 1, v0\nv_mul_u32_u24 v22, 3584, v22\nv_and_b32 v23, 1, v0\nv_lshl_add_u32 v22, v23, 4, v22\ns_lshl_b32 s4, s15, 5\nv_add_u32 v22, s4, v22")
    A("s_lshl_b32 s4, s15, 14\nv_add_u32 v23, s4, v9")
    A("s_waitcnt lgkmcnt(0)")
    A("s_barrier")
    A("s_barrier")
    A("s_barrier")
    assert gate and dsplit

    def wloop(label, n, lds, body):
        A(f"s_mov_b32 s5, {n}")
        if lds is not None:
            A(f"s_mov_b32 m0, {lds}")
        A(f"{label}:")
        body()
        A(f"s_sub_u32 s5, s5, 1\ns_cmp_lg_u32 s5, 0\ns_cbranch_scc1 {label}")

    def b_pre():
        A("global_load_dwordx4 v[32:35], v21, s[28:29]")
        A("global_load_dwordx4 v[32:35], v21, s[30:31]")
        A("v_add_u32 v21, 7168, v21")

    def b_down():
        A(f"global_load_lds_dwordx4 v23, s[32:33]{wntf}")
        A("v_add_u32 v23, 1024, v23\ns_add_u32 m0, m0, 1024")

    def b_gu():
        A("global_load_lds_dwordx4 v22, s[28:29]")
        A("s_add_u32 m0, m0, 16384")
        A("global_load_lds_dwordx4 v22, s[30:31]")
        A(f"v_add_u32 v22, {32 * 3584}, v22\ns_sub_u32 m0, m0, {16384 - 1024}")

    def only(cond, label, body):
        A(cond)
        A(f"s_cbranch_scc0 {label}")
        body()
        A(f"{label}:")
    after_pre = 0
    for k, step in enumerate(pm):
        if step in "SgG" and not gsync:
            continue
        if step in "PDU" and "now" in xp:
            continue
        if step == "D" and dlate and not dlast:
            continue
        if step == "S":
            def sig():
                A("s_mov_b64 exec, 1\nglobal_store_dword v17, v18, s[38:39]")
                if rankpre:
                    only("s_cmp_lt_u32 s7, 16", "L_norank", lambda: A("global_atomic_add v28, v26, v27, s[38:39] sc0 sc1"))
                A("s_mov_b64 exec, -1")
            only("s_cmp_eq_u32 s63, 1", "L_nosig", sig)
        elif step in "12":
            A("s_barrier")

        elif step == "g":
            only("s_cmp_eq_u32 s63, 1", f"L_nog{k}", lambda: A("global_load_dword v19, v16, s[38:39] sc1"))
        elif step == "G":
            def gwait():
                A("s_mov_b32 s5, 0")
                A("L_pollg:")
                A("s_waitcnt vmcnt(0)")
                A("v_cmp_eq_u32 vcc, -1, v19")
                if gmiss:
                    A(f"s_bcnt1_i32_b32 s4, vcc_lo\ns_cmp_le_u32 s4, {gmiss}\ns_cbranch_scc1 L_gok")
                else:
                    A("s_cbranch_vccz L_gok")
                A(f"s_add_u32 s5, s5, 1\ns_cmp_lt_u32 s5, {SPIN_MAX}\ns_cbranch_scc0 L_gok")
                A(f"s_sleep {gsleep}")
                A("global_load_dword v19, v16, s[38:39] sc1")
                A("s_branch L_pollg")
            only("s_cmp_eq_u32 s63, 1", "L_gok", gwait)
            stamp_at(10)
        elif step == "P":
            if pref and not rankpre:
                only("s_cmp_lt_u32 s7, 16", "L_nopre", lambda: wloop("L_wpre", 16, None, b_pre))
            if pref and rankpre:
                def pre():
                    A("s_waitcnt vmcnt(0)")
                    A("v_readfirstlane_b32 s8, v28")
                    A("s_add_u32 s8, s8, 1\ns_mul_i32 s9, s8, 3\ns_lshl_b32 s4, s8, 1\ns_add_u32 s4, s4, 8")
                    A("s_cmp_lt_u32 s8, 8\ns_cselect_b32 s9, s9, s4\ns_cselect_b32 s5, 24, 16")
                    A("s_cmp_lt_u32 s8, 12\ns_cselect_b32 s5, s5, 0")
                    A("s_lshl_b32 s4, s7, 1\ns_cmp_eq_u32 s63, 1\ns_cselect_b32 s9, s9, s4\ns_cselect_b32 s5, s5, 16")
                    A(f"s_mul_i32 s9, s9, {16 * 3584}\nv_add_u32 v21, s9, v21")
                    A("s_cmp_eq_u32 s5, 0\ns_cbranch_scc1 L_nopre")
                    A("L_wpre:")
                    b_pre()
                    A("s_sub_u32 s5, s5, 1\ns_cmp_lg_u32 s5, 0\ns_cbranch_scc1 L_wpre")
                    A("s_waitcnt vmcnt(30)")
                only("s_cmp_lt_u32 s7, 16", "L_nopre", pre)
            after_pre = 0
        elif step == "D":
            A("s_waitcnt vmcnt(46)")
            only("s_cmp_lt_u32 s7, 14", "L_nodown", lambda: wloop("L_wdown", 16, L_W + 32768, b_down))
            after_pre = 16
        elif step == "w":
            A(f"s_waitcnt vmcnt({after_pre})")
            stamp_at(11)
        elif step == "z":
            A(f"s_sleep {cdelay}")
        elif step == "U":
            only("s_cmp_lt_u32 s7, 14", "L_nogu", lambda: wloop("L_wgu", 16, L_W, b_gu))
    only("s_cmp_lt_u32 s7, 14", "L_wdone", lambda: A("s_waitcnt vmcnt(16)\ns_barrier" if dlast else "s_barrier" if dlate else "s_waitcnt vmcnt(32)\ns_barrier"))
    A("s_waitcnt vmcnt(0)")
    stamp_at(12)
    if stamps:
        A("s_waitcnt lgkmcnt(0)")
        for i in range(16):
            A(f"v_writelane_b32 v4, s{64 + 2 * i}, {i}")
        A(f"v_lshlrev_b32 v5, 2, v0\nds_write_b32 v5, v4 offset:{L_G}\ns_waitcnt lgkmcnt(0)")
    A("s_barrier")
    A("s_endpgm")
    A("L_svcbar:")
    A("L_svcbar2:")
    A("v_mov_b32 v99, 1")
    A("ds_write_b32 v98, v99")
    A("s_mov_b32 s4, 0")
    A("s_branch L_svcend")
    A("L_end:")
    A("s_endpgm")
    A("L_codeend:")

    if jitter is not None:
        import random
        rnd = random.Random(jitter)
        C2 = []
        k = 0
        for blk in C:
            for ln in blk.split("\n"):
                if ln.startswith(("s_barrier", "global_store", "global_atomic")) and rnd.random() < 0.7:
                    k += 1
                    C2.append(f"s_cselect_b32 s91, 1, 0\ns_mul_i32 s90, s2, {rnd.randrange(3, 99, 2)}\ns_add_u32 s90, s90, s3\ns_mul_i32 s90, s90, {rnd.randrange(1001, 99999, 2)}")
                    C2.append(f"s_lshr_b32 s90, s90, 5\ns_and_b32 s90, s90, {rnd.choice((3, 7, 15, 63))}\ns_cmp_eq_u32 s90, 1\ns_cbranch_scc0 L_jit{k}\ns_sleep {rnd.choice((2, 10, 40, 120))}\nL_jit{k}:\ns_cmp_eq_u32 s91, 1")
                C2.append(ln)
        C = C2
    body = fix(C)
    out = HEADER
    out += f"; @launch grid=(256,1,1) block=(576,1,1) lds={LDS_BYTES}\n"
    out += '.amdgcn_target "amdgcn-amd-amdhsa--gfx950"\n.text\n'
    out += f".globl {NAME}_kernel\n.p2align 8\n.type {NAME}_kernel,@function\n{NAME}_kernel:\n"
    out += "\n".join(("" if l.endswith(":") else "    ") + l for l in body) + "\n"
    out += f""".section .rodata,"a"
.p2align 6
.amdhsa_kernel {NAME}_kernel
  .amdhsa_next_free_vgpr 168
  .amdhsa_next_free_sgpr 96
  .amdhsa_accum_offset 168
  .amdhsa_group_segment_fixed_size 0
  .amdhsa_kernarg_size 96
  .amdhsa_user_sgpr_count 2
  .amdhsa_user_sgpr_kernarg_segment_ptr 1
  .amdhsa_system_sgpr_workgroup_id_x 1
  .amdhsa_float_denorm_mode_32 3
.end_amdhsa_kernel
"""
    return out


if __name__ == "__main__":
    cfg = eval("dict(" + (sys.argv[2] if len(sys.argv) > 2 else "") + ")")
    open(sys.argv[1], "w").write(gen(**cfg))
```

```python
import sys
from asmlib import fix, VM

NAME = "sequential_preLN__gqa_block_cached__glu_gated_geglu__decode"
HEADER = open("cdna_kernels/" + NAME + ".s.ref").read().split("; Override launch")[0]

WS_Q = 0x0
WS_F = 0x10000
WS_G = 0x11000
WS_R = 0x12000
WS_V = 0x13000
WS_P1 = 0x20000
P1_STRIDE = 2048
WS_P2 = 0xB0000
WS_P3 = 0xC0000
WS_STAMP = 0x200000
L_Q = 0
L_X = 1024
L_M = 2048
L_L = 2176
L_F = 2304
L_B = 2560
L_H = 4608
L_HN = 6656
L_G = 7680
L_W = 8704
L_K = L_W + 49152
KRING = 3
VRING = 5
LDS_BYTES = L_K + 8 * KRING * 4096

DOC = r'''
; ---------------------------------------------------------------------------------------------------------------------
; One launch, 256 workgroups (one per CU) of 8 streaming waves + 1 service wave.  x = wg & 7, y = wg >> 3.
;
; Streaming waves: workgroup (x, y) owns 1024 keys of KV head x (8 rounds of one 16-key tile per wave).  K tiles go to
;   S^T = K q^T by MFMA (4 heads x 4 copies across the 16 columns), scores rounded to bf16 where the reference rounds,
; Service wave: LayerNorm(x), a 64 x 128 block of the q projection, exchange of q through d_ws, prefetch of the FFN weights.
;       stage D  (y = 14, 15) sums the FFN partials, adds the residual, writes 32 outputs
; Hand-offs: every slot is first set to 0xffffffff by this launch; readers start polling only after a chain of flags that
;   ids published in this launch shows all 32 workgroups of a head on one die, P1 and the helper flags use that die's L2.
; ---------------------------------------------------------------------------------------------------------------------
'''
LOG2E = 0x3FB8AA3B
SCALE = 0x3DB504F3
FULL = "row_mask:0xf bank_mask:0xf"
SPIN_MAX = 200000


def gen(D=3, D2=3, nt=True, inter="global", stamps=False, wnt=True, warm='one', sleep=1, qsleep=4,
        xp=(), masked=True, qrot=4, local=True, qpos=18, pref=True, fold=True, bpos=None, bwait=False, ppos=None, kfirst=True, wb=False, pad1=0, pad2=0, pad3=0, gsync=True, gsleep=2, cdelay=0, opos=None, enc=None, dsplit=True, early=False, gate=True, sclr='after', qearly=True, lpos='b1b', order=None, pm='Sg2GPU', dsleep=None, cfast=False, adapt=None, d2from=32, D3=None, d3from=56, split=False, dup='auto', dup3=True, rankpre=True, gmiss=16, ntr=2, vpos=44, dlate=True, outfl='', jitter=None, p1plain=False, clrpos=3, wqfirst=False, dseq=None, NB=3, bar1c=True, lp=('c', 'c', 'c', 'c'), dlast=False, csd=False, c4=True, b4=False, bprep=True, txor=None, clrbal=True, crot=0, Dinit=None, boost=()):
    C = []
    A = C.append
    if dlast:
        pm = pm + "D"
    ntf = " nt" if nt else ""
    wntf = " nt" if wnt else ""
    D2 = D if D2 is None else D2
    hmap = "xcd"; KS = 4; ld2 = ld3 = st2 = st3 = "sc1"; peel = False; late4 = True; cpos = ("end",) * 6; fastln = True; perturb = None
    Dinit = D if Dinit is None else Dinit
    bpos = (Dinit + max(3, clrpos) if kfirst else D) if bpos is None else bpos
    KL = KS.bit_length() - 1
    NQ = 64 // KS
    QR = 2048 * KS

    def stamp_at(k):
        if stamps:
            A(f"s_memrealtime s[{64 + 2 * k}:{65 + 2 * k}]")

    def stamp_store():
        if not stamps or stamps == "enc":
            return
        A("s_waitcnt lgkmcnt(0)")
        if stamps == "dbg":
            lab = f"L_dbg{len(C)}"
            A("s_and_b32 s4, s3, 7\ns_cmp_eq_u32 s4, 0")
            A(f"s_cbranch_scc0 {lab}")
            A("s_not_b32 s64, s64")
            A("s_cmp_eq_u32 s3, 8")
            sel0 = (0, 1, 2, 4, 5, 6, 7)
            sel8 = (2, 4, 5, 6, 7, 8, 9)
            A("s_mov_b64 exec, -1")
            for i in range(7):
                A(f"s_cselect_b32 s4, s{64 + 2 * sel8[i]}, s{64 + 2 * sel0[i]}")
                A(f"v_writelane_b32 v4, s4, {i}")
            A("s_lshl_b32 s4, s3, 2\ns_add_u32 s4, s4, 4\nv_lshl_add_u32 v1, v0, 2, s4")
            A("s_mov_b64 exec, 0x7f")
            A("global_atomic_umax v1, v4, s[36:37] sc1")
            A(f"{lab}:")
            return
        lab = f"L_st{len(C)}"
        A(f"s_cmp_eq_u32 s3, 1\ns_cbranch_scc0 {lab}")
        A(f"s_mov_b64 exec, 0xffff\nv_lshlrev_b32 v5, 2, v0\nds_read_b32 v4, v5 offset:{L_G}")
        A(f"s_lshl_b32 s4, s2, 4\ns_add_u32 s4, s4, 8\ns_lshl_b32 s4, s4, 6\ns_add_u32 s4, s4, {WS_STAMP}\nv_add_u32 v5, s4, v5")
        A("s_waitcnt lgkmcnt(0)\nglobal_store_dword v5, v4, s[38:39]\ns_nop 1")
        A(f"{lab}:")
        A("s_mov_b64 exec, 1")
        A("s_lshl_b32 s4, s2, 4\ns_add_u32 s4, s4, s3\ns_lshl_b32 s4, s4, 6")
        A(f"s_add_u32 s4, s4, {WS_STAMP}")
        A("v_mov_b32 v1, s4")
        A("s_getreg_b32 s94, hwreg(HW_REG_XCC_ID)")
        A("s_lshl_b32 s92, s62, 16\ns_add_u32 s92, s92, s59\ns_lshl_b32 s4, s49, 11\ns_add_u32 s92, s92, s4")
        for q in range(4):
            for i in range(4):
                A(f"v_mov_b32 v{4 + i}, s{64 + 2 * (4 * q + i)}")
            A(f"global_store_dwordx4 v1, v[4:7], s[38:39] offset:{16 * q}")
            A("s_nop 1")

    def rowsum(a, op="add"):
        for s in (8, 4, 2, 1):
            A(f"v_{op}_f32_dpp v{a}, v{a}, v{a} row_ror:{s} {FULL}")

    def xrow(a, t, op="add"):
        A(f"v_mov_b32 v{t}, v{a}")
        A(f"v_permlane16_swap_b32 v{a}, v{t}")
        A(f"v_{op}_f32 v{a}, v{a}, v{t}")
        A(f"v_mov_b32 v{t}, v{a}")
        A(f"v_permlane32_swap_b32 v{a}, v{t}")
        A(f"v_{op}_f32 v{a}, v{a}, v{t}")

    def scatter4(r):
        A(f"v_permlane32_swap_b32 v{r}, v{r + 1}\nv_permlane32_swap_b32 v{r + 2}, v{r + 3}")
        A(f"v_add_f32 v{r}, v{r}, v{r + 1}\nv_add_f32 v{r + 2}, v{r + 2}, v{r + 3}")
        A(f"v_permlane16_swap_b32 v{r}, v{r + 2}")
        A(f"v_add_f32 v{r}, v{r}, v{r + 2}")

    def sigma(dst, t):
        A(f"v_bfe_u32 v{dst}, v0, 4, 1\nv_lshrrev_b32 v{t}, 5, v0\nv_lshl_add_u32 v{dst}, v{dst}, 1, v{t}")

    def rbf(a):
        A(f"v_cvt_pk_bf16_f32 v{a}, v{a}, v{a}")
        A(f"v_lshlrev_b32 v{a}, 16, v{a}")

    def ln_stats(vals, mean, den, rden, t0, t1, tmp):
        A(f"v_add_f32 v{t0}, v{vals[0]}, v{vals[1]}")
        A(f"v_add_f32 v{t1}, v{vals[2]}, v{vals[3]}")
        A(f"v_add_f32 v{mean}, v{vals[4]}, v{vals[5]}")
        A(f"v_add_f32 v{den}, v{vals[6]}, v{vals[7]}")
        A(f"v_add_f32 v{t0}, v{t0}, v{t1}")
        A(f"v_add_f32 v{mean}, v{mean}, v{den}")
        A(f"v_add_f32 v{mean}, v{mean}, v{t0}")
        rowsum(mean)
        xrow(mean, t0)
        A(f"v_mul_f32 v{mean}, 0x3b000000, v{mean}")
        for i in range(8):
            A(f"v_sub_f32 v{tmp[i]}, v{vals[i]}, v{mean}")
        A(f"v_mul_f32 v{den}, v{tmp[0]}, v{tmp[0]}")
        A(f"v_mul_f32 v{t1}, v{tmp[1]}, v{tmp[1]}")
        for i in range(2, 8, 2):
            A(f"v_fmac_f32 v{den}, v{tmp[i]}, v{tmp[i]}")
            A(f"v_fmac_f32 v{t1}, v{tmp[i + 1]}, v{tmp[i + 1]}")
        A(f"v_add_f32 v{den}, v{den}, v{t1}")
        rowsum(den)
        xrow(den, t0)
        A(f"v_mul_f32 v{den}, 0x3b000000, v{den}")
        A(f"v_cvt_pk_bf16_f32 v{t0}, v{mean}, v{den}")
        A(f"v_lshlrev_b32 v{mean}, 16, v{t0}")
        A(f"v_and_b32 v{den}, 0xffff0000, v{t0}")
        A(f"v_add_f32 v{den}, 0x3727c5ac, v{den}")
        rbf(den)
        A(f"v_sqrt_f32 v{t0}, v{den}")
        A(f"v_rsq_f32 v{t1}, v{den}")
        A(f"v_fma_f32 v{den}, -v{t0}, v{t0}, v{den}")
        A(f"v_mul_f32 v{t1}, 0.5, v{t1}")
        A(f"v_fma_f32 v{den}, v{den}, v{t1}, v{t0}")
        rbf(den)
        A(f"v_rcp_f32 v{rden}, v{den}")

    def ln_apply(xs, mean, den, rden, ts):
        for x in xs:
            A(f"v_sub_f32 v{x}, v{x}, v{mean}")
        for x in xs:
            A(f"v_cvt_pk_bf16_f32 v{x}, v{x}, v{x}")
        for x in xs:
            A(f"v_lshlrev_b32 v{x}, 16, v{x}")
        for x, t in zip(xs, ts):
            A(f"v_mul_f32 v{t}, v{x}, v{rden}")
        for x, t in zip(xs, ts):
            A(f"v_fma_f32 v{x}, -v{t}, v{den}, v{x}")
        for x, t in zip(xs, ts):
            A(f"v_fma_f32 v{x}, v{x}, v{rden}, v{t}")

    def ln2():
        A("v_mov_b32 v133, v132")
        for i in range(4):
            A(f"v_pk_add_f32 v[{124 + 2 * i}:{125 + 2 * i}], v[{124 + 2 * i}:{125 + 2 * i}], v[132:133] neg_lo:[0,1] neg_hi:[0,1]")
        A("v_pk_add_f32 v[134:135], v[124:125], v[126:127]")
        A("v_pk_mul_f32 v[136:137], v[124:125], v[124:125]")
        A("v_pk_add_f32 v[138:139], v[128:129], v[130:131]")
        A("v_pk_fma_f32 v[136:137], v[126:127], v[126:127], v[136:137]")
        A("v_pk_add_f32 v[134:135], v[134:135], v[138:139]")
        A("v_pk_fma_f32 v[136:137], v[128:129], v[128:129], v[136:137]")
        A("v_add_f32 v16, v134, v135")
        A("v_pk_fma_f32 v[136:137], v[130:131], v[130:131], v[136:137]")
        A("v_add_f32 v17, v136, v137")
        for m in ("row_shr:1", "row_shr:2", "row_shr:4", "row_shr:8"):
            A(f"v_add_f32_dpp v16, v16, v16 {m} {FULL} bound_ctrl:0")
            A(f"v_add_f32_dpp v17, v17, v17 {m} {FULL} bound_ctrl:0")
        for m in ("row_bcast:15 row_mask:0xa", "row_bcast:31 row_mask:0xc"):
            A(f"v_add_f32_dpp v16, v16, v16 {m} bank_mask:0xf")
            A(f"v_add_f32_dpp v17, v17, v17 {m} bank_mask:0xf")
        A("v_readlane_b32 s4, v16, 63")
        A("v_readlane_b32 s5, v17, 63")
        A("v_mov_b32 v18, 0x3b000000")
        A("v_mul_f32 v16, s4, v18")
        A("v_mul_f32 v17, s5, v18")
        A("v_fma_f32 v17, -v16, v16, v17")
        A("v_add_f32 v16, v16, v132")
        A("v_max_f32 v17, 0, v17")
        A("v_cvt_pk_bf16_f32 v18, v16, v17")
        A("v_and_b32 v17, 0xffff0000, v18")
        A("v_lshlrev_b32 v16, 16, v18")
        A("v_add_f32 v17, 0x3727c5ac, v17")
        A("v_sub_f32 v120, v120, v16")
        A("v_cvt_pk_bf16_f32 v18, v120, v17")
        A("v_and_b32 v17, 0xffff0000, v18")
        A("v_sqrt_f32 v17, v17")
        A("v_lshlrev_b32 v120, 16, v18")
        rbf(17)
        A("v_rcp_f32 v18, v17")
        A("v_mul_f32 v19, v120, v18")
        A("v_fma_f32 v120, -v19, v17, v120")
        A("v_fma_f32 v120, v120, v18, v19")

    def poll(label, loads, regs, t, slp=None, between=None):
        slp = sleep if slp is None else slp
        A("s_mov_b32 s59, 0")
        if between:
            for l in loads:
                A(l)
            between()
            A(f"s_branch {label}_chk")
        A(f"{label}:")
        for l in loads:
            A(l)
        if between:
            A(f"{label}_chk:")
        A("s_waitcnt vmcnt(0)")
        regs = list(regs)
        if len(regs) == 1:
            t = regs[0]
            rest = []
        elif len(regs) % 2 == 0:
            A(f"v_max_u32 v{t}, v{regs[0]}, v{regs[1]}")
            rest = regs[2:]
        else:
            A(f"v_max3_u32 v{t}, v{regs[0]}, v{regs[1]}, v{regs[2]}")
            rest = regs[3:]
        for i in range(0, len(rest), 2):
            A(f"v_max3_u32 v{t}, v{t}, v{rest[i]}, v{rest[i + 1]}")
        A(f"v_cmp_eq_u32 vcc, -1, v{t}")
        A(f"s_branch {label}_ok" if ("svc3" in xp and label in ("L_pollq", "L_pollall")) else f"s_cbranch_vccz {label}_ok")
        A("s_add_u32 s59, s59, 1")
        A(f"s_cmp_lt_u32 s59, {SPIN_MAX}")
        A(f"s_cbranch_scc0 {label}_ok")
        if masked:
            A("s_mov_b64 exec, vcc")
        if slp:
            A(f"s_sleep {slp}")
        A(f"s_branch {label}")
        A(f"{label}_ok:")
        if masked:
            A("s_mov_b64 exec, -1")

    def ldswait(label, off, val=None):
        A(f"v_mov_b32 v24, {L_F}\ns_mov_b32 s5, 0")
        A(f"{label}:")
        A(f"ds_read_b32 v25, v24 offset:{off}")
        A("s_waitcnt lgkmcnt(0)")
        A("v_cmp_ne_u32 vcc, 0, v25" if val is None else f"v_cmp_eq_u32 vcc, {val}, v25")
        A(f"s_cbranch_vccnz {label}_ok")
        A(f"s_add_u32 s5, s5, 1\ns_cmp_lt_u32 s5, {SPIN_MAX * 64}\ns_cbranch_scc0 {label}_ok")
        A("s_sleep 1")
        A(f"s_branch {label}")
        A(f"{label}_ok:")

    def store_quad(val, addr, lo="0x11111111", hi="0x11111111", fl="sc1", addr2=None):
        for i in (1, 2, 3):
            A(f"v_mov_b32_dpp v{val + i}, v{val} quad_perm:[{i},{i},{i},{i}] {FULL}")
        A(f"s_mov_b32 exec_lo, {lo}\ns_mov_b32 exec_hi, {hi}")
        A(f"global_store_dwordx4 v{addr}, v[{val}:{val + 3}], s[38:39] {fl}")
        if addr2 is not None:
            A(f"global_store_dwordx4 v{addr2}, v[{val}:{val + 3}], s[38:39] {fl}")
        A("s_mov_b64 exec, -1")

    def roles():
        brot = 0 if local else 4
        A(f"s_add_u32 s61, s6, {brot}\ns_and_b32 s61, s61, 7")
        A("s_bfe_u32 s13, s7, 0x10003\ns_lshl_b32 s4, s61, 1\ns_add_u32 s13, s13, s4")
        A("s_and_b32 s14, s7, 7")
        A("s_mul_i32 s15, s6, 14\ns_add_u32 s15, s15, s7")

    def rowoff(dst, row, tmp, on=True):
        if dup is None or not on:
            A(f"s_lshl_b32 {dst}, {row}, 11")
        else:
            A(f"s_lshr_b32 {tmp}, {row}, 2\ns_lshl_b32 {tmp}, {tmp}, 14\ns_and_b32 {dst}, {row}, 3\ns_lshl_b32 {dst}, {dst}, 11\ns_add_u32 {dst}, {dst}, {tmp}")

    def mycopy(dst):
        if dup == "auto":
            A(f"s_mov_b32 {dst}, s49")
        else:
            A(f"s_lshr_b32 {dst}, s6, 2\ns_xor_b32 {dst}, {dst}, {dup}\ns_lshl_b32 {dst}, {dst}, 13")

    def p1slot(dst):
        A(f"s_lshl_b32 {dst}, s6, 5\ns_add_u32 {dst}, {dst}, s7\ns_mul_i32 {dst}, {dst}, {P1_STRIDE}\ns_add_u32 {dst}, {dst}, {WS_P1}")

    stamp_at(0)
    A("s_load_dwordx16 s[16:31], s[0:1], 0")
    A("s_load_dwordx8 s[32:39], s[0:1], 64")
    A("s_cmp_ge_u32 s2, 256")
    A("s_cbranch_scc1 L_end")
    A("v_lshrrev_b32 v1, 6, v0")
    A("v_and_b32 v0, 63, v0")
    A("v_readfirstlane_b32 s3, v1")
    A("s_and_b32 s6, s2, 7")
    A("s_lshr_b32 s7, s2, 3")
    A(f"s_add_u32 s60, s6, {qrot}\ns_and_b32 s60, s60, 7")
    A("v_lshlrev_b32 v9, 4, v0")
    A("s_cmp_eq_u32 s3, 8")
    A("s_cbranch_scc1 L_service")
    def wqaddr():
        A("v_lshrrev_b32 v10, 3, v0\nv_and_b32 v11, 7, v0\nv_lshlrev_b32 v10, 13, v10\nv_lshl_add_u32 v10, v11, 4, v10")
        A("s_and_b32 s4, s7, 3\ns_lshl_b32 s4, s4, 3\ns_add_u32 s4, s4, s3\ns_lshl_b32 s4, s4, 7\ns_add_u32 s4, s4, s60\ns_lshl_b32 s4, s4, 3")
        A("s_lshr_b32 s5, s7, 2\ns_add_u32 s4, s4, s5\ns_lshl_b32 s4, s4, 7")
        A("v_add_u32 v10, s4, v10\nv_add_u32 v11, 0x10000, v10")
        A(f"s_lshl_b32 s57, s3, 11\ns_add_u32 m0, s57, {L_W}")

    def clears(b=12):
        n0 = len(C)
        clears0()
        if b != 12:
            for i in range(n0, len(C)):
                for r in (17, 16, 15, 14, 13, 12):
                    C[i] = C[i].replace(f"v{r},", f"v{r - 12 + b},").replace(f"v{r}\n", f"v{r - 12 + b}\n")
                    if C[i].endswith(f"v{r}"):
                        C[i] = C[i][:-len(f"v{r}")] + f"v{r - 12 + b}"

    def clears1():
        for i in range(4):
            A(f"v_mov_b32 v{12 + i}, -1")
        roles()
        p1slot("s4")
        A("s_and_b32 s9, s7, 15\ns_mul_i32 s8, s6, 14\ns_add_u32 s8, s8, s9")
        rowoff("s5", "s8", "s48")
        A(f"s_lshr_b32 s8, s7, 4\ns_lshl_b32 s8, s8, 13\ns_add_u32 s5, s5, s8\ns_add_u32 s5, s5, {WS_P3 - 256}")
        A("v_mov_b32 v16, s4\nv_mov_b32 v17, s5\nv_cmp_gt_u32 vcc, 16, v0\ns_lshl_b32 s4, s3, 8")
        A("v_cndmask_b32 v16, v17, v16, vcc\nv_add3_u32 v16, v16, v9, s4")
        rowoff("s4", "s13", "s48")
        A(f"s_lshl_b32 s5, s14, 8\ns_add_u32 s4, s4, s5\ns_add_u32 s4, s4, {WS_P2 - 512}")
        A(f"v_bfe_u32 v17, v0, 4, 1\nv_mul_u32_u24 v17, {8192 - 256}, v17\nv_add3_u32 v17, v17, v9, s4\nv_cmp_gt_u32 vcc, 32, v0")
        A("s_cmp_lt_u32 s9, 14\ns_cselect_b32 s8, -1, 0xffff")
        A("v_cndmask_b32 v16, v17, v16, vcc")
        A("s_lshr_b32 s9, s7, 4\ns_cmp_lt_u32 s3, s9\ns_cselect_b32 s9, -1, 0")

    def clears0():
        if clrbal and dup is not None and dup3:
            return clears1()
        for i in range(4):
            A(f"v_mov_b32 v{12 + i}, -1")
        roles()
        p1slot("s4")
        rowoff("s5", "s15", "s8", dup3)
        A(f"s_add_u32 s5, s5, {WS_P3 - 256}")
        rowoff("s8", "s13", "s9")
        A(f"s_lshl_b32 s9, s14, 8\ns_add_u32 s8, s8, s9\ns_add_u32 s8, s8, {WS_P2 - 256}")
        A("s_cmp_ge_u32 s7, 16\ns_cselect_b32 s5, s8, s5\ns_cselect_b32 s8, 1, 8\ns_cselect_b32 s9, 32, 14")
        A("s_cmp_lt_u32 s7, s9\ns_cselect_b32 s8, s8, 0\ns_cmp_lt_u32 s3, s8\ns_cselect_b32 s8, -1, 0xffff")
        if dup is not None:
            A("s_cselect_b32 s9, 0xffff, 0")
            if not dup3:
                A("s_cmp_ge_u32 s7, 16\ns_cselect_b32 s9, s9, 0")
        A("v_mov_b32 v16, s4\nv_mov_b32 v17, s5\nv_cmp_gt_u32 vcc, 16, v0\ns_lshl_b32 s4, s3, 8")
        A("v_cndmask_b32 v16, v17, v16, vcc\nv_add3_u32 v16, v16, v9, s4")
        if dup is not None:
            A(f"v_lshrrev_b32 v17, 5, v0\nv_mul_u32_u24 v17, {8192 - 256}, v17\nv_add_u32 v16, v16, v17")

    def clearstore(b=12):
        if p1plain:
            A("s_mov_b64 exec, 0xffff")
            if p1plain != "none":
                A("global_store_dwordx4 v16, v[12:15], s[38:39]")
            A("s_andn2_b32 s8, s8, 0xffff\ns_cbranch_scc0 L_noc2")
        A("s_mov_b32 exec_lo, s8\ns_mov_b32 exec_hi, " + ("0" if dup is None else "s9"))
        A(f"global_store_dwordx4 v{b + 4}, v[{b}:{b + 3}], s[38:39] sc1")
        A("L_noc2:")
        A("s_mov_b64 exec, -1")

    def wqload():
        A("s_cmp_eq_u32 s3, 0")
        A("s_cbranch_scc0 L_nox")
        A(f"s_mov_b32 m0, {L_X}")
        A("global_load_lds_dwordx4 v9, s[16:17]")
        A(f"s_mov_b32 m0, {L_W}")
        A("s_nop 0")
        A("L_nox:")
        A(f"global_load_lds_dwordx4 v10, s[22:23]{wntf}")
        A("s_add_u32 m0, m0, 1024")
        A(f"global_load_lds_dwordx4 v11, s[22:23]{wntf}")
    if not kfirst:
        wqaddr()
    vKS = (1, 2, 3, 4)
    vKR = (5, 6, 7, 8)
    vV, vM, vML, vL = 9, 10, 11, 12
    PK = (13, 14)
    vAl = 15
    SEL = (16, 17, 18, 19)
    S = (20, 21, 22, 23)
    T = (24, 25, 26, 27)
    BB = 28
    vT2 = 38
    ACC = (40, 44)
    QF = 48
    KF = 64
    VR = [80 + 16 * i for i in range(VRING)]
    A("v_lshrrev_b32 v24, 4, v0")
    A("v_lshlrev_b32 v25, 6, v24")
    A(f"v_xor_b32 v{vKS[0]}, v{vV}, v25")
    for i in (1, 2, 3):
        A(f"v_xor_b32 v{vKS[i]}, {16 * i}, v{vKS[0]}")
    if split:
        A(f"v_add_u32 v{vKS[2]}, 6144, v{vKS[2]}\nv_add_u32 v{vKS[3]}, 6144, v{vKS[3]}\nv_add_u32 v39, 6144, v{vV}")
    A("s_lshl_b32 s10, s6, 23")
    ipat = {"wgtile": "wwwtttccccc", "contig": "tttwwwccccc", "global": "wwwcccccttt"}.get(inter, inter)
    assert sorted(ipat) == sorted("wwwtttccccc") and not split
    if crot:
        A(f"s_lshl_b32 s4, s7, {crot}\ns_lshr_b32 s5, s7, {5 - crot}\ns_or_b32 s4, s4, s5\ns_and_b32 s4, s4, 31")
    for k, reg in (("w", "s3"), ("c", "s4" if crot else "s7")):
        pos = [i for i, ch in enumerate(ipat) if ch == k]
        b = 0
        while b < len(pos):
            e = b
            while e + 1 < len(pos) and pos[e + 1] == pos[e] + 1:
                e += 1
            if b == 0 and e == len(pos) - 1:
                A(f"s_lshl_b32 s11, {reg}, {12 + pos[0]}")
            else:
                A(f"s_bfe_u32 s11, {reg}, {hex(((e - b + 1) << 16) | b)}\ns_lshl_b32 s11, s11, {12 + pos[b]}")
            A("s_add_u32 s10, s10, s11")
            b = e + 1
    tpos = [i for i, ch in enumerate(ipat) if ch == "t"]

    def toff(t):
        return sum(((t >> b) & 1) << (12 + p) for b, p in enumerate(tpos))
    if txor:
        assert tpos == list(range(tpos[0], tpos[0] + 3))
        A({"c": "s_and_b32 s11, s7, 7", "x": "s_mov_b32 s11, s6", "cx": "s_xor_b32 s11, s7, s6\ns_and_b32 s11, s11, 7",
           "ch": "s_lshr_b32 s11, s7, 2", "chx": "s_lshr_b32 s11, s7, 2\ns_xor_b32 s11, s11, s6"}[txor])
        A(f"s_lshl_b32 s11, s11, {12 + tpos[0]}\ns_add_u32 s10, s10, s11")
    A("s_mov_b32 s11, s10")
    A(f"s_mul_i32 s56, s3, {KRING * 4096}\ns_add_u32 s56, s56, {L_K}")
    A("s_mov_b32 s42, 0x4000000\ns_mov_b32 s43, 0x20000")
    if kfirst:
        A("s_mov_b32 m0, s56")
    if sclr == "first" and "noclear" not in xp:
        clears()
    A("s_waitcnt lgkmcnt(0)")
    stamp_at(12)
    if sclr == "first" and "noclear" not in xp:
        clearstore()
    if not kfirst:
        A("s_barrier")
        wqload()
        A("s_mov_b32 m0, s56")
    A("s_mov_b32 s40, s18\ns_and_b32 s41, s19, 0xffff")
    stamp_at(11)
    vm = VM()
    ids = {}
    m0k = [0]
    order = (order or {3: "K0 V0 K1 V1 K2 V2 V3 V4 K3 K4 K5 K6 K7 V5 V6 V7", 2: "K0 V0 K1 V1 K2 V2 V3 V4 K3 K4 K5 V5 K6 K7 V6 V7"}[NB]).split()
    seq = [(g[0], int(g[1]), u) for g in order for u in range(4)]
    NPRE = 4 * (KRING + VRING)

    def W(opid):
        w = vm.wait(opid)
        if w:
            A(w)

    def load(n):
        mat, t, u = seq[n]
        d = D if n < d2from else D2
        if D3 and n >= d3from:
            d = D3
        if n <= bpos:
            d = Dinit
        if dseq and n > bpos:
            d = int(dseq[n])
        if n in boost:
            W(ids[seq[n - d - 1]])
            A(f"s_bitcmp1_b32 s48, 0\ns_cbranch_scc1 L_bo{n}")
            A(f"s_waitcnt vmcnt({vm.n - ids[seq[n - d]]})")
            A(f"L_bo{n}:")
        elif adapt and n >= NPRE and n in adapt[2]:
            W(ids[seq[n - d - 1]])
            A(f"s_cbranch_vccnz L_ad{n}")
            A(f"s_waitcnt vmcnt({d - 1})")
            A(f"L_ad{n}:")
        elif n >= d:
            W(ids[seq[n - d]])
            if adapt and n >= NPRE and n in adapt[3]:
                A(f"s_cmp_le_u32 s9, {adapt[0]}")
                A(f"s_cbranch_scc0 L_ad{n}")
                A(f"s_waitcnt vmcnt({d - 2})")
                A(f"L_ad{n}:")
        if opos and n in opos and "now" not in xp:
            for i, p in enumerate(opos):
                if p == n:
                    A(f"global_load_dwordx4 v[164:167], v161, s[24:25] offset:{1024 * i}")
        if mat == "K":
            if m0k[0] != t:
                m0k[0] = t
                A(f"s_add_u32 m0, s56, {4096 * (t % KRING)}")
            A(f"buffer_load_dwordx4 v{vKS[u]}, s[40:43], s10 offen offset:{1024 * u}{ntf} lds")
            if u == 3 and t < 7:
                A(f"s_xor_b32 s10, s10, {hex(toff(t + 1) ^ toff(t))}")
        else:
            r = VR[t % VRING] + 4 * u
            A(f"buffer_load_dwordx4 v[{r}:{r + 3}], v{39 if (split and u >= 2) else vV}, s[44:47], s11 offen offset:{1024 * u}{ntf}")
            if u == 3 and t < 7:
                A(f"s_xor_b32 s11, s11, {hex(toff(t + 1) ^ toff(t))}")
        ids[seq[n]] = vm.issue()
        if n == qpos:
            A(f"v_mov_b32 v39, {L_F}\nds_write_b32 v39, v39 offset:8")
        if n == vpos and dup == "auto" and vpos:
            A("ds_write_b32 v39, v39 offset:20")

    def consts():
        A("v_and_b32 v24, 3, v0")
        A("v_mov_b32 v25, 0x0c0c0c0c")
        for k, (lo, e0) in enumerate(((0x0100, 0), (0x0100, 2), (0x0302, 0), (0x0302, 2))):
            A(f"v_mov_b32 v26, {hex(0x0c0c0000 | lo)}")
            A(f"v_mov_b32 v27, {hex((lo << 16) | 0x0c0c)}")
            A(f"v_cmp_eq_u32 vcc, {e0}, v24")
            A(f"v_cndmask_b32 v{SEL[k]}, v25, v26, vcc")
            A(f"v_cmp_eq_u32 vcc, {e0 + 1}, v24")
            A(f"v_cndmask_b32 v{SEL[k]}, v{SEL[k]}, v27, vcc")
        for z in (0, 1, 4, 5, 8, 9):
            A(f"v_mov_b32 v{BB + z}, 0")
        A(f"s_mov_b32 s12, {hex(LOG2E)}")
        if boost:
            A("s_getreg_b32 s48, hwreg(HW_REG_XCC_ID, 0, 4)")
        A("v_bfe_u32 v25, v0, 2, 2")
        A("v_lshrrev_b32 v26, 4, v0")
        A("v_lshlrev_b32 v27, 8, v25")
        A(f"v_lshl_add_u32 v{vT2}, v26, 4, v27")
        A("v_lshl_add_u32 v25, v24, 2, v25")
        A("v_and_b32 v27, 15, v0")
        A("v_xor_b32 v26, v26, v27")
        A("v_lshlrev_b32 v26, 4, v26")
        A("v_lshl_add_u32 v26, v25, 8, v26")
        for u in range(4):
            A(f"v_xor_b32 v{vKR[u]}, {64 * u}, v26")
            A(f"v_add_u32 v{vKR[u]}, s56, v{vKR[u]}")
        roles()
        A("s_lshl_b32 s58, s3, 12")
        if dlate:
            A(f"s_min_u32 s4, s15, 111\ns_lshl_b32 s4, s4, 3\ns_add_u32 s4, s4, s3\ns_lshl_b32 s4, s4, 11\nv_add_u32 v162, s4, v{vV}")
        A("s_lshl_b32 s4, s13, 3\ns_add_u32 s4, s4, s3\ns_lshl_b32 s4, s4, 15\ns_lshl_b32 s5, s14, 7\ns_add_u32 s4, s4, s5")
        A("v_lshrrev_b32 v160, 3, v0\nv_and_b32 v161, 7, v0\nv_lshlrev_b32 v160, 10, v160\nv_lshl_add_u32 v160, v161, 4, v160\nv_add_u32 v160, s4, v160")
        A(f"s_lshl_b32 s4, s61, 5\ns_add_u32 s4, s4, s7\ns_lshl_b32 s4, s4, 3\ns_add_u32 s4, s4, s3\ns_lshl_b32 s4, s4, 11\nv_add_u32 v161, s4, v{vV}")

    def late(pos="c"):
        ops = [i for i in range(4) if lp[i] == pos]
        if "now" in xp or not ops:
            return
        if not dlast:
            A("s_cmp_lt_u32 s7, 14")
            A(f"s_cbranch_scc0 L_late_b{pos}")
        for i in (ops if not dlast else ()):
            if i < 2:
                A(f"s_add_u32 m0, s57, {L_W + 32768 + 1024 * i}")
                A(f"global_load_lds_dwordx4 v162, s[32:33]{wntf}")
                if i == 0:
                    A("v_add_u32 v162, 1024, v162")
            else:
                A("s_mov_b64 exec, 1")
                A("global_load_dword v163, v162, s[32:33]")
        if not dlast:
            A(f"s_branch L_late_done{pos}")
        A(f"L_late_b{pos}:")
        A("s_cmp_ge_u32 s7, 16")
        A("s_cselect_b64 exec, -1, 1")
        for i in ops:
            A(f"s_add_u32 m0, s58, {L_W + 1024 * i}")
            A(f"global_load_lds_dwordx4 v160, s[24:25] offset:0{wntf}")
            vm.issue()
            if i < 3:
                A("v_add_u32 v160, 0x2000, v160")
        A(f"L_late_done{pos}:")
        A("s_mov_b64 exec, -1")
        m0k[0] = None

    T0 = 8 - NB
    SS = {t: tuple(range(144 + 4 * (t - T0), 148 + 4 * (t - T0))) for t in range(T0, 8)}
    PKS = {t: (128 + 2 * (t - T0), 129 + 2 * (t - T0)) for t in range(T0, 8)}

    def scores(t, S):
        W(ids[("K", t, 3)])
        k = KF
        for u in range(4):
            A(f"ds_read_b128 v[{k + 4 * u}:{k + 4 * u + 3}], v{vKR[u]} offset:{4096 * (t % KRING)}")
        for u in range(4):
            c = "0" if u == 0 else f"v[{S[0]}:{S[3]}]"
            A("s_waitcnt lgkmcnt(0)" if stamps else f"s_waitcnt lgkmcnt({3 - u})")
            A(f"v_mfma_f32_16x16x32_bf16 v[{S[0]}:{S[3]}], v[{k + 4 * u}:{k + 4 * u + 3}], v[{QF + 4 * u}:{QF + 4 * u + 3}], {c}")
        for rnd in range(2):
            A(f"v_cvt_pk_bf16_f32 v{T[0]}, v{S[0]}, v{S[1]}")
            A(f"v_cvt_pk_bf16_f32 v{T[1]}, v{S[2]}, v{S[3]}")
            A(f"v_lshlrev_b32 v{S[0]}, 16, v{T[0]}")
            A(f"v_and_b32 v{S[1]}, 0xffff0000, v{T[0]}")
            A(f"v_lshlrev_b32 v{S[2]}, 16, v{T[1]}")
            A(f"v_and_b32 v{S[3]}, 0xffff0000, v{T[1]}")
            if rnd == 0:
                for r in range(4):
                    A(f"v_mul_f32 v{S[r]}, {hex(SCALE)}, v{S[r]}")
        if t == 0:
            A(f"v_max_f32 v{vM}, v{S[0]}, v{S[1]}")
            A(f"v_max3_f32 v{vM}, v{vM}, v{S[2]}, v{S[3]}")
        else:
            A(f"v_max3_f32 v{vM}, v{vM}, v{S[0]}, v{S[1]}")
            A(f"v_max3_f32 v{vM}, v{vM}, v{S[2]}, v{S[3]}")

    def probs(tiles, first):
        if not first:
            A(f"v_mov_b32 v{vAl}, v{vML}")
        A(f"v_mul_f32 v{vML}, s12, v{vM}")
        if not first:
            A(f"v_sub_f32 v{vAl}, v{vAl}, v{vML}")
            A(f"v_exp_f32 v{vAl}, v{vAl}")
        for S, P in tiles:
            for r in range(4):
                A(f"v_fma_f32 v{S[r]}, v{S[r]}, s12, -v{vML}")
        for S, P in tiles:
            for r in range(4):
                A(f"v_exp_f32 v{S[r]}, v{S[r]}")
        if not first:
            for a in range(8):
                A(f"v_mul_f32 v{ACC[0] + a}, v{vAl}, v{ACC[0] + a}")
            A(f"v_mul_f32 v{vL}, v{vL}, v{vAl}")
        for i, (S, P) in enumerate(tiles):
            A(f"v_add_f32 v{T[0]}, v{S[0]}, v{S[1]}")
            A(f"v_add_f32 v{T[1]}, v{S[2]}, v{S[3]}")
            A(f"v_cvt_pk_bf16_f32 v{P[0]}, v{S[0]}, v{S[1]}")
            A(f"v_cvt_pk_bf16_f32 v{P[1]}, v{S[2]}, v{S[3]}")
            if first and i == 0:
                A(f"v_add_f32 v{vL}, v{T[0]}, v{T[1]}")
            else:
                A(f"v_add_f32 v{T[0]}, v{T[0]}, v{T[1]}")
                A(f"v_add_f32 v{vL}, v{vL}, v{T[0]}")

    def qk(t):
        scores(t, S)
        xrow(vM, T[0], "max")
        probs([(S, PK)], t == 0)

    def sc(t):
        scores(t, SS[t])
        if t == 7:
            xrow(vM, T[0], "max")
            A("v_bfe_u32 v26, v0, 2, 2\nv_lshlrev_b32 v26, 5, v26\ns_lshl_b32 s4, s3, 2\nv_add_u32 v27, s4, v26")
            A("s_mov_b64 exec, 0x1111")
            A(f"ds_write_b32 v27, v{vM} offset:{L_M}")
            A("s_mov_b64 exec, -1")

    def fin1(t):
        A("s_waitcnt lgkmcnt(0)")
        A("s_barrier")
        k0 = KF
        A(f"ds_read_b128 v[{k0}:{k0 + 3}], v26 offset:{L_M}")
        A(f"ds_read_b128 v[{k0 + 4}:{k0 + 7}], v26 offset:{L_M + 16}")
        A("s_waitcnt lgkmcnt(0)")
        A(f"v_max3_f32 v{vM}, v{k0}, v{k0 + 1}, v{k0 + 2}")
        A(f"v_max3_f32 v{vM}, v{vM}, v{k0 + 3}, v{k0 + 4}")
        A(f"v_max3_f32 v{vM}, v{vM}, v{k0 + 5}, v{k0 + 6}")
        A(f"v_max_f32 v{vM}, v{vM}, v{k0 + 7}")
        probs([(SS[t], PKS[t]) for t in range(T0, 8)], False)
        xrow(vL, T[0])
        A("s_mov_b64 exec, 0x1111")
        A(f"ds_write_b32 v27, v{vL} offset:{L_L}")
        A("s_mov_b64 exec, -1")

    def fin2(t):
        A("s_and_b32 s4, s3, 1\ns_lshl_b32 s4, s4, 6\nv_lshrrev_b32 v26, 5, v0\nv_lshl_add_u32 v26, v26, 5, s4")
        A(f"v_mov_b32 v27, {L_F}")
        A("s_waitcnt lgkmcnt(0)")
        A("s_barrier")
        A(f"ds_read_b128 v[64:67], v26 offset:{L_M}")
        A(f"ds_read_b128 v[68:71], v26 offset:{L_M + 16}")
        A(f"ds_read_b128 v[72:75], v26 offset:{L_L}")
        A(f"ds_read_b128 v[76:79], v26 offset:{L_L + 16}")
        A("ds_read2_b32 v[26:27], v27 offset0:4 offset1:1")
        A("s_waitcnt lgkmcnt(0)")
        A("v_max3_f32 v64, v64, v65, v66\nv_max3_f32 v64, v64, v67, v68\nv_max3_f32 v64, v64, v69, v70\nv_max_f32 v64, v64, v71")
        for i in range(4):
            A(f"v_add_f32 v{72 + i}, v{72 + i}, v{76 + i}")
        A("v_add_f32 v72, v72, v73\nv_add_f32 v74, v74, v75\nv_add_f32 v72, v72, v74")
        A("v_readfirstlane_b32 s62, v27")
        A("v_readfirstlane_b32 s49, v26")
        A("v_log_f32 v73, v72")
        A(f"v_rcp_f32 v{vAl}, v72")
        A(f"v_mul_f32 v64, s12, v64")
        A(f"v_add_f32 v{vL}, v64, v73")
        A(f"v_and_b32 v{vM}, 3, v0\nv_add_u32 v{vM}, 0x07060501, v{vM}")
        A("s_mov_b32 s50, 0x88888888\ns_mov_b32 s51, 0x88888888")

    def fin3(t):
        A(f"v_add_u32 v64, s56, v{vV}")
        A("v_and_b32 v65, 15, v0\nv_bfe_u32 v66, v0, 4, 1\nv_mul_u32_u24 v66, 272, v66\nv_add_u32 v65, v65, v66")
        A("v_lshrrev_b32 v66, 5, v0\nv_lshl_add_u32 v65, v66, 4, v65\ns_lshl_b32 s4, s3, 7")
        A(f"s_add_u32 s4, s4, {L_K}\nv_lshl_add_u32 v65, v65, 2, s4")
        A(f"v_add_u32 v66, {4 * KRING * 4096}, v65")
        p1slot("s4")
        A("s_lshl_b32 s5, s3, 8\ns_add_u32 s5, s5, s4\nv_lshl_add_u32 v67, v0, 2, s5")

    def prepB():
        A(f"s_lshl_b32 s4, s61, 5\nv_lshrrev_b32 v57, 3, v0\nv_add_u32 v57, s4, v57\nv_mul_u32_u24 v57, {P1_STRIDE}, v57")
        if b4:
            A("s_and_b32 s4, s13, 1\ns_lshl_b32 s4, s4, 1\ns_bfe_u32 s5, s3, 0x10001\ns_add_u32 s4, s4, s5")
            A(f"s_and_b32 s5, s3, 1\ns_lshl_b32 s5, s5, 3\ns_add_u32 s4, s4, s5\ns_lshl_b32 s4, s4, 7\ns_add_u32 s4, s4, {WS_P1}")
        else:
            A("s_and_b32 s4, s13, 1\ns_lshl_b32 s4, s4, 1\ns_lshr_b32 s5, s3, 2\ns_add_u32 s4, s4, s5")
            A(f"s_and_b32 s5, s3, 3\ns_lshl_b32 s5, s5, 2\ns_add_u32 s4, s4, s5\ns_lshl_b32 s4, s4, 7\ns_add_u32 s4, s4, {WS_P1}")
        A("v_and_b32 v58, 7, v0\nv_lshl_add_u32 v57, v58, 4, v57\nv_add_u32 v48, s4, v57")
        for pi in range(1, 4):
            A(f"v_add_u32 v{48 + pi}, {8 * pi * P1_STRIDE}, v48")
        A("s_mov_b32 s52, 0x04000c0c\ns_mov_b32 s53, 0x0706000c")
        A("s_mov_b32 s54, 0xffff0000\ns_mov_b32 s55, 0xffff0000\ns_mov_b32 s8, 0\ns_mov_b32 s9, -1")
        sigma(57, 58)
        A("v_bfe_u32 v58, v0, 2, 2\nv_lshl_add_u32 v57, v57, 3, v58\nv_lshlrev_b32 v57, 7, v57")
        A(f"v_and_b32 v58, 3, v0\nv_lshl_add_u32 v57, v58, 3, v57\ns_lshl_b32 s4, s3, {13 if b4 else 12}\nv_add_u32 v52, s4, v57")
        A("v_lshlrev_b32 v54, 2, v0\ns_lshl_b32 s4, s3, 8\nv_add_u32 v53, s4, v54")
        rowoff("s4", "s13", "s5")
        A(f"s_lshl_b32 s5, s14, 8\ns_add_u32 s4, s4, s5\ns_add_u32 s4, s4, {WS_P2}")
        if dup is not None:
            mycopy("s5")
            A("s_xor_b32 s5, s5, 0x2000\ns_add_u32 s4, s4, s5")
        A("v_add_u32 v55, s4, v54")
        A("v_xor_b32 v56, 0x2000, v55")

    def fin4(t):
        if bprep:
            prepB()

    def pv(t, last=False):
        v = VR[t % VRING]
        P = PKS.get(t, PK)

        def perm(i):
            b = BB + 2 + 4 * (i & 1)
            A(f"v_perm_b32 v{b}, v{P[i >> 1]}, v{P[i >> 1]}, v{SEL[2 * (i & 1)]}")
            A(f"v_perm_b32 v{b + 1}, v{P[i >> 1]}, v{P[i >> 1]}, v{SEL[2 * (i & 1) + 1]}")
        perm(0)
        perm(1)
        if not last:
            W(ids[("V", t, 3)])
        for i in range(4):
            if last:
                W(ids[("V", t, i)])
            b = BB + 2 + 4 * (i & 1)
            for h in range(2):
                c = "0" if (t == 0 and i == 0) else f"v[{ACC[h]}:{ACC[h] + 3}]"
                bb = b if h == 0 else b - 2
                A(f"v_mfma_f32_16x16x32_bf16 v[{ACC[h]}:{ACC[h] + 3}], v[{v + 4 * i}:{v + 4 * i + 3}], v[{bb}:{bb + 3}], {c}")
            if i < 2:
                perm(i + 2)

    for n in range(NPRE):
        load(n)
        if n == 3:
            A("s_mov_b32 s44, s20\ns_and_b32 s45, s21, 0xffff\ns_mov_b32 s46, 0x4000000\ns_mov_b32 s47, 0x20000")
            if sclr == "after" and "noclear" not in xp and clrpos == 3 and not wqfirst:
                clears()
                clearstore()
            if kfirst:
                wqaddr()
                wqload()
                m0k[0] = None
            if sclr == "after" and "noclear" not in xp and clrpos == 3 and wqfirst:
                clears()
                clearstore()
            if kfirst:
                A("s_barrier")
        if n == clrpos and clrpos > 3 and sclr == "after" and "noclear" not in xp:
            clears(72)
            clearstore(72)
        if n == max(Dinit - 1, 3):
            consts()
        if n == bpos:
            stamp_at(13)
            A(f"v_mov_b32 v24, {L_F}\nv_mov_b32 v25, 1\ns_mov_b64 exec, 1\nds_add_u32 v24, v25 offset:12\ns_mov_b64 exec, -1")
        if n == qpos and False:
            A(f"v_mov_b32 v24, {L_F}\nds_write_b32 v24, v24 offset:8")
    stamp_at(1)
    ldswait("L_waitq", 0)
    if adapt:
        lo, hi, lsites, tsites = adapt
        A("v_readfirstlane_b32 s9, v25")
        A(f"v_cmp_lt_u32 vcc, {hi}, v25")
        if stamps:
            A("s_mov_b32 s88, s9")
    stamp_at(2)
    for u in range(4):
        A(f"ds_read_b128 v[{QF + 4 * u}:{QF + 4 * u + 3}], v{vT2} offset:{L_Q + 64 * u}")
    A("s_waitcnt lgkmcnt(0)")
    blocks = []
    for t in range(T0):
        blocks += [(qk, t, ("K", t, 3)), (pv, t, ("V", t, 3))]
    for t in range(T0, 8):
        blocks += [(sc, t, ("K", t, 3))]
    blocks += [(fin1, 7, ("K", 7, 3)), (fin2, 7, ("K", 7, 3)), (fin3, 7, ("K", 7, 3)), (fin4, 7, ("K", 7, 3))]
    for t in range(T0, 7):
        blocks += [(pv, t, ("V", t, 3))]
    bi = 0
    for n in range(NPRE, len(seq)):
        mat, t, u = seq[n]
        needb = {"K": 2 * (t - KRING) + 1, "V": 2 * (t - VRING) + 2}[mat]
        while bi < needb:
            blocks[bi][0](blocks[bi][1])
            bi += 1
        load(n)
        late(n)
        if n < len(seq) - 1 and bi < len(blocks) and blocks[bi][2] in ids and ids[blocks[bi][2]] <= vm.done:
            blocks[bi][0](blocks[bi][1])
            bi += 1
    while bi < len(blocks) and blocks[bi][0] is not pv:
        blocks[bi][0](blocks[bi][1])
        bi += 1
    if bar1c:
        A("s_barrier")
        late()
    else:
        late()
        A("s_barrier")
    while bi < len(blocks):
        blocks[bi][0](blocks[bi][1])
        bi += 1
    stamp_at(3)
    pv(7, last=True)
    stamp_at(4)
    A(f"ds_write_b128 v64, v[{ACC[0]}:{ACC[0] + 3}]")
    A(f"ds_write_b128 v64, v[{ACC[1]}:{ACC[1] + 3}] offset:1088")
    A("s_waitcnt lgkmcnt(0)")
    A("s_barrier")
    R0 = 72
    for i in range(8):
        A(f"ds_read_b32 v{R0 + i}, v{65 + (i >> 2)} offset:{KRING * 4096 * (i & 3)}")
    A("s_cmp_eq_u32 s62, 1")
    A("s_waitcnt lgkmcnt(0)")
    for i in range(2):
        A(f"v_pk_add_f32 v[{R0 + 2 * i}:{R0 + 2 * i + 1}], v[{R0 + 2 * i}:{R0 + 2 * i + 1}], v[{R0 + 4 + 2 * i}:{R0 + 5 + 2 * i}]")
    A(f"v_pk_add_f32 v[{R0}:{R0 + 1}], v[{R0}:{R0 + 1}], v[{R0 + 2}:{R0 + 3}]")
    A(f"v_add_f32 v{R0}, v{R0}, v{R0 + 1}")
    A(f"v_mul_f32 v{R0}, v{R0}, v{vAl}")
    A(f"v_mov_b32_dpp v{R0 + 1}, v{R0} quad_perm:[3,3,3,3] {FULL}")
    A(f"v_perm_b32 v{R0}, v{R0}, v{R0 + 1}, v{vM}")
    A(f"v_cndmask_b32 v{R0}, v{R0}, v{vL}, s[50:51]")
    A("s_cbranch_scc0 L_pubfar")
    A(f"global_store_dword v67, v{R0}, s[38:39]")
    A("L_published:")
    for _ in range(pad2):
        A("s_nop 0")
    stamp_at(5)
    A("s_cmp_lt_u32 s7, 14")
    A("s_cbranch_scc1 L_ffn")
    A("s_cmp_lt_u32 s7, 16")
    A("s_cbranch_scc1 L_final")
    if not bprep:
        prepB()
    NKK = 2 if b4 else 1
    WB = 80
    D0 = 120
    TP = 152
    WW = 160
    AA = 112
    AC = 32
    loads = [f"global_load_dwordx4 v[{D0 + 16 * kk + 4 * pi}:{D0 + 16 * kk + 4 * pi + 3}], v{48 + pi}, s[38:39] offset:{512 * kk} sc1" for pi in range(4) for kk in range(NKK)]

    def bweights():
        A(f"s_waitcnt vmcnt({4 * NKK})")
        if b4:
            A("s_barrier")
        for kk in range(NKK):
            for tau in range(4):
                for t in range(2):
                    r = WB + 16 * kk + 4 * tau + 2 * t
                    if kk == 1 and tau == 3 and t == 0:
                        A("s_waitcnt lgkmcnt(0)")
                    A(f"ds_read_b64_tr_b16 v[{r}:{r + 1}], v52 offset:{L_W + 4096 * kk + 512 * t + 32 * tau}")
    A("s_barrier")
    if b4:
        A("s_cmp_lt_u32 s3, 4")
        A("s_cbranch_scc1 L_bgo")
        A("s_waitcnt vmcnt(0)")
        A("s_barrier")
        A("s_branch L_bdone")
        A("L_bgo:")
    stamp_at(8)
    poll("L_poll1", loads, range(D0, D0 + 16 * NKK), 31, between=bweights)
    stamp_at(6)
    pm1 = [f"v_perm_b32 v{TP + 4 * kk + pi}, v{D0 + 16 * kk + 4 * pi + 2}, v{D0 + 16 * kk + 4 * pi + 1}, s52" for kk in range(NKK) for pi in range(4)]
    A(f"v_max3_f32 v16, v{D0 + 3}, v{D0 + 7}, v{D0 + 11}\nv_max_f32 v16, v16, v{D0 + 15}")
    A(pm1.pop(0))
    A(pm1.pop(0))
    A(f"v_max_f32_dpp v16, v16, v16 row_ror:8 {FULL}")
    A("v_mov_b32 v17, v16")
    A(pm1.pop(0))
    A(pm1.pop(0))
    A("v_permlane16_swap_b32 v16, v17")
    A("v_max_f32 v16, v16, v17")
    A("v_mov_b32 v17, v16")
    for x in pm1[:2]:
        A(x)
    A("v_permlane32_swap_b32 v16, v17")
    A("v_max_f32 v16, v16, v17")
    for pi in range(4):
        A(f"v_sub_f32 v{WW + pi}, v{D0 + 4 * pi + 3}, v16")
    for x in pm1[2:]:
        A(x)
    for pi in range(4):
        A(f"v_exp_f32 v{WW + pi}, v{WW + pi}")
        for kk in range(NKK):
            A(f"v_perm_b32 v{D0 + 16 * kk + 4 * pi + 3}, v{TP + 4 * kk + pi}, v{D0 + 16 * kk + 4 * pi}, s53")
    A(f"v_pk_add_f32 v[16:17], v[{WW}:{WW + 1}], v[{WW + 2}:{WW + 3}]")
    for kk in range(NKK):
        for hlf in range(2):
            r = D0 + 16 * kk + 2 * hlf
            A(f"v_pk_mul_f32 v[{r}:{r + 1}], v[{WW}:{WW + 1}], v[{r}:{r + 1}] op_sel_hi:[0,1]")
    A("v_add_f32 v16, v16, v17")
    for pi in range(1, 4):
        w = f"v[{WW + (pi & 2)}:{WW + 1 + (pi & 2)}]"
        sel = "op_sel:[1,0,0] op_sel_hi:[1,1,1]" if pi & 1 else "op_sel_hi:[0,1,1]"
        for kk in range(NKK):
            for hlf in range(2):
                r = D0 + 16 * kk + 2 * hlf
                A(f"v_pk_fma_f32 v[{r}:{r + 1}], {w}, v[{r + 4 * pi}:{r + 4 * pi + 1}], v[{r}:{r + 1}] {sel}")
        if pi == 1:
            A(f"v_add_f32_dpp v16, v16, v16 row_ror:8 {FULL}")
    A("v_mov_b32 v17, v16")
    for kk in range(NKK):
        d = D0 + 16 * kk
        A(f"v_permlane32_swap_b32 v{d}, v{d + 1}\nv_permlane32_swap_b32 v{d + 2}, v{d + 3}")
    A("v_permlane32_swap_b32 v16, v17")
    A("v_add_f32 v16, v16, v17")
    A("v_mov_b32 v17, v16")
    for kk in range(NKK):
        d = D0 + 16 * kk
        A(f"v_add_f32 v{d}, v{d}, v{d + 1}\nv_add_f32 v{d + 2}, v{d + 2}, v{d + 3}")
    A("v_permlane16_swap_b32 v16, v17")
    A("v_add_f32 v16, v16, v17")
    for kk in range(NKK):
        d = D0 + 16 * kk
        A(f"v_permlane16_swap_b32 v{d}, v{d + 2}")
    A("v_rcp_f32 v16, v16")
    for kk in range(NKK):
        d = D0 + 16 * kk
        A(f"v_add_f32 v{d}, v{d}, v{d + 2}")
    for kk in range(NKK):
        d = D0 + 16 * kk
        A(f"v_add_f32_dpp v{d}, v{d}, v{d} row_ror:8 {FULL}")
    for kk in range(NKK):
        d = D0 + 16 * kk
        A(f"v_mul_f32 v{d}, v{d}, v16")
    for kk in range(NKK):
        d = D0 + 16 * kk
        A(f"v_mov_b32_dpp v{d + 1}, v{d} quad_perm:[1,0,3,2] {FULL}")
    for kk in range(NKK):
        d = D0 + 16 * kk
        A(f"v_cvt_pk_bf16_f32 v{d}, v{d}, v{d + 1}")
    for kk in range(NKK):
        for e in range(4):
            A(f"v_mov_b32_dpp v{AA + 4 * kk + e}, v{D0 + 16 * kk} row_newbcast:{2 * e} {FULL}")
    A("s_waitcnt lgkmcnt(0)")
    for kk in range(NKK):
        for tau in range(4):
            c = "0" if kk == 0 else f"v[{AC + 4 * tau}:{AC + 4 * tau + 3}]"
            b = WB + 16 * kk + 4 * tau
            A(f"v_mfma_f32_16x16x32_bf16 v[{AC + 4 * tau}:{AC + 4 * tau + 3}], v[{AA + 4 * kk}:{AA + 4 * kk + 3}], v[{b}:{b + 3}], {c}")
    A(f"v_cndmask_b32 v{AC}, v{AC}, v{AC + 4}, s[54:55]")
    A(f"v_cndmask_b32 v{AC + 8}, v{AC + 8}, v{AC + 12}, s[54:55]")
    A(f"v_cndmask_b32 v{AC}, v{AC}, v{AC + 8}, s[8:9]")
    A(f"ds_write_b32 v53, v{AC} offset:{L_B}")
    A("s_cmp_eq_u32 s3, 0")
    A("s_waitcnt lgkmcnt(0)")
    A("s_barrier")
    A("s_cbranch_scc0 L_bdone")
    NW = 8 // NKK
    for i in range(NW):
        A(f"ds_read_b32 v{120 + i}, v54 offset:{L_B + 256 * i}")
    A("s_waitcnt lgkmcnt(0)")
    if NW == 8:
        for i in range(2):
            A(f"v_pk_add_f32 v[{120 + 2 * i}:{121 + 2 * i}], v[{120 + 2 * i}:{121 + 2 * i}], v[{124 + 2 * i}:{125 + 2 * i}]")
    A("v_pk_add_f32 v[120:121], v[120:121], v[122:123]")
    A("v_add_f32 v120, v120, v121")
    store_quad(120, 55, fl=st2, addr2=None if dup is None else 56)
    A("L_bdone:")
    if wb:
        A("s_cmp_eq_u32 s3, 1\ns_cbranch_scc0 L_nowb\ns_cmp_eq_u32 s7, 16\ns_cbranch_scc0 L_nowb")
        A("buffer_wbl2 sc1")
        A("L_nowb:")
    stamp_at(7)
    stamp_store()
    A("s_endpgm")
    A("L_pubfar:")
    A("s_nop 0")
    store_quad(R0, 67)
    A("s_branch L_published")
    A("L_ffn:")
    vCol = 65
    A("v_and_b32 v17, 7, v0\nv_bfe_u32 v16, v0, 3, 2\nv_lshl_add_u32 v16, v17, 2, v16")
    A("v_and_b32 v18, 32, v0\nv_add_u32 v16, v16, v18")
    A(f"s_lshl_b32 s4, s3, 6\nv_add_u32 v{vCol}, s4, v16")
    A(f"v_lshlrev_b32 v29, 1, v{vCol}")
    A(f"ds_read_u16_d16_hi v64, v29 offset:{L_X}")
    A(f"s_lshl_b32 s4, s3, 8\ns_add_u32 s4, s4, {WS_P2}")
    if dup is None:
        A("v_lshrrev_b32 v18, 3, v0\nv_lshlrev_b32 v19, 12, v18\nv_lshl_add_u32 v16, v17, 4, v19\nv_add_u32 v20, s4, v16")
    else:
        mycopy("s5")
        A("s_add_u32 s4, s4, s5")
        A("v_lshrrev_b32 v18, 4, v0\nv_lshlrev_b32 v19, 14, v18\nv_bfe_u32 v18, v0, 3, 1\nv_lshl_add_u32 v19, v18, 12, v19\nv_lshl_add_u32 v16, v17, 4, v19\nv_add_u32 v20, s4, v16")
    A("v_lshrrev_b32 v18, 4, v0\nv_and_b32 v17, 15, v0")
    rowoff("s4", "s15", "s5", dup3)
    A(f"s_add_u32 s4, s4, {WS_P3}\ns_lshl_b32 s5, s3, {9 if c4 else 8}\ns_and_b32 s5, s5, 0x7ff\ns_add_u32 s4, s4, s5")
    if dup is not None and dup3:
        mycopy("s5")
        A("s_xor_b32 s5, s5, 0x2000\ns_add_u32 s4, s4, s5")
    A(f"v_lshl_add_u32 v22, v0, {3 if c4 else 2}, s4")
    if dup is not None and dup3:
        A("v_xor_b32 v21, 0x2000, v22")
    A("s_lshl_b32 s5, s3, 4\nv_mov_b32 v23, s5")
    A("v_and_b32 v24, 7, v0\nv_lshlrev_b32 v24, 4, v24")
    A("s_mov_b32 s63, 0x42800000\ns_mov_b32 s54, 0xffff0000\ns_mov_b32 s55, 0xffff0000")
    A("v_mov_b32 v67, 0x3b000000\nv_mov_b32 v68, 0x3727c5ac\nv_mov_b32 v69, 0xbdd2d3e8\nv_mov_b32 v70, 0xc0135761")
    for i in range(4):
        A(f"v_mov_b32 v{72 + i}, 0x3f803f80")
    A("s_lshl_b32 s4, s3, 7\nv_lshl_add_u32 v25, v18, 4, s4")
    A("v_lshlrev_b32 v27, 2, v0\ns_lshl_b32 s5, s3, 8\nv_add_u32 v26, s5, v27")
    A("v_lshl_add_u32 v28, v0, 1, s4")
    if cfast:
        A("v_bfe_u32 v16, v0, 2, 2\nv_lshlrev_b32 v16, 2, v16\nv_bfe_u32 v19, v0, 4, 1\nv_lshl_add_u32 v16, v19, 1, v16")
        A("v_and_b32 v19, 32, v0\nv_add_u32 v16, v16, v19\nv_lshlrev_b32 v16, 5, v16")
    else:
        A("v_bfe_u32 v16, v0, 2, 2\nv_lshl_add_u32 v16, v18, 3, v16\nv_lshlrev_b32 v16, 5, v16")
    A("v_and_b32 v17, 3, v0\nv_lshl_add_u32 v16, v17, 3, v16\nv_add_u32 v16, s57, v16")
    GW = 88
    DW = 104

    DW2 = 144

    def dreads():
        if c4:
            A("s_lshl_b32 s5, s3, 8\nv_lshl_add_u32 v28, v0, 2, s5")
            A("v_and_b32 v28, 0x3ff, v28")
            for r in range(16):
                if r == 14:
                    A("s_waitcnt lgkmcnt(0)")
                A(f"ds_read_b32 v{DW + r}, v28 offset:{L_W + 32768 + 1024 * r}")
            A("s_waitcnt lgkmcnt(0)")
            for r in range(16):
                A(f"v_and_b32 v{40 + r}, 0xffff0000, v{DW + r}")
                A(f"v_lshlrev_b32 v{DW + r}, 16, v{DW + r}")
            return
        for r in range(16):
            if r == 14:
                A("s_waitcnt lgkmcnt(0)")
            A(f"ds_read_u16_d16_hi v{DW + r}, v28 offset:{L_W + 32768 + 1024 * r}")
    if dsplit and not dlast:
        if dlate:
            A("s_waitcnt vmcnt(1)")
        A("s_barrier")
        dreads()
        A("s_waitcnt lgkmcnt(0)")
    A("s_barrier")
    stamp_at(11)

    def cweights():
        for mat in range(2):
            for kap in range(2):
                for t in range(2):
                    r = GW + 8 * mat + 4 * kap + 2 * t
                    A(f"ds_read_b64_tr_b16 v[{r}:{r + 1}], v16 offset:{L_W + 16384 * mat + ((32 * kap + 512 * t) if cfast else (1024 * kap + 128 * t))}")
        if cfast or csd:
            stamp_at(13)
            return
        colsums()

    def colsums():
        A("s_waitcnt lgkmcnt(0)")
        A(f"v_mfma_f32_16x16x32_bf16 v[140:143], v[72:75], v[{GW}:{GW + 3}], 0")
        A(f"v_mfma_f32_16x16x32_bf16 v[144:147], v[72:75], v[{GW + 8}:{GW + 11}], 0")
        A(f"v_mfma_f32_16x16x32_bf16 v[140:143], v[72:75], v[{GW + 4}:{GW + 7}], v[140:143]")
        A(f"v_mfma_f32_16x16x32_bf16 v[144:147], v[72:75], v[{GW + 12}:{GW + 15}], v[144:147]")
        if not (cfast or csd):
            A("v_cndmask_b32 v66, v140, v144, s[54:55]")
            stamp_at(13)
    loads = [f"global_load_dwordx4 v[{120 + 4 * i}:{123 + 4 * i}], v20, s[38:39] offset:{2048 * (i >> 1) + 128 * (i & 1)} {ld2}" for i in range(4)]
    poll("L_poll2", loads, range(120, 136), 31, between=cweights)
    stamp_at(6)
    if cfast or csd:
        n0 = len(C)
        colsums()
        cs = C[n0:]
        del C[n0:]
        A(cs[0])
    for e in range(4):
        if cfast or csd:
            A(cs[1 + e])
        A(f"v_pk_add_f32 v[{120 + 2 * e}:{121 + 2 * e}], v[{120 + 2 * e}:{121 + 2 * e}], v[{128 + 2 * e}:{129 + 2 * e}]")
    for e in range(4):
        A(f"v_permlane32_swap_b32 v{120 + e}, v{124 + e}")
    A("v_pk_add_f32 v[120:121], v[120:121], v[124:125]\nv_pk_add_f32 v[122:123], v[122:123], v[126:127]")
    A("v_permlane16_swap_b32 v120, v122\nv_permlane16_swap_b32 v121, v123")
    A("v_pk_add_f32 v[122:123], v[120:121], v[122:123]")
    A("v_add_f32_dpp v120, v122, v122 row_ror:8 row_mask:0xf bank_mask:0x3")
    A("v_add_f32_dpp v120, v123, v123 row_ror:8 row_mask:0xf bank_mask:0xc")
    A("v_add_f32 v120, v120, v64")
    if cfast:
        A(f"v_mov_b32_dpp v122, v120 quad_perm:[1,0,3,2] {FULL}")
        A("v_cndmask_b32 v66, v140, v144, s[54:55]")
        A("v_cvt_pk_bf16_f32 v121, v120, v122")
        A("v_lshlrev_b32 v120, 16, v121")
        for e in range(8):
            A(f"v_mov_b32_dpp v{124 + e}, v121 row_newbcast:{2 * e} {FULL}")
            if e == 0:
                A("v_readfirstlane_b32 s4, v120")
    else:
        A("v_cvt_pk_bf16_f32 v121, v120, v120")
        A(f"ds_write_b16 v29, v121 offset:{L_HN}")
        A("v_lshlrev_b32 v120, 16, v121")
        if csd:
            A("v_cndmask_b32 v66, v140, v144, s[54:55]")
        A("v_readfirstlane_b32 s4, v120")
        A("s_waitcnt lgkmcnt(0)")
        A(f"ds_read_b128 v[124:127], v25 offset:{L_HN}")
        A(f"ds_read_b128 v[128:131], v25 offset:{L_HN + 64}")
    A("v_subrev_f32 v148, s4, v120")
    A("v_mov_b32 v150, s4")
    A("v_mul_f32 v149, v148, v148")
    steps = [f"{m} {FULL}" for m in ("row_shr:1", "row_shr:2", "row_shr:4", "row_shr:8")] + ["row_bcast:15 row_mask:0xa bank_mask:0xf", "row_bcast:31 row_mask:0xc bank_mask:0xf"]
    mf = [f"v_mfma_f32_16x16x32_bf16 v[132:135], v[124:127], v[{GW}:{GW + 3}], 0",
          f"v_mfma_f32_16x16x32_bf16 v[136:139], v[124:127], v[{GW + 8}:{GW + 11}], 0",
          f"v_mfma_f32_16x16x32_bf16 v[132:135], v[128:131], v[{GW + 4}:{GW + 7}], v[132:135]",
          f"v_mfma_f32_16x16x32_bf16 v[136:139], v[128:131], v[{GW + 12}:{GW + 15}], v[136:139]"]
    for k, m in enumerate(steps):
        A(f"v_add_f32_dpp v148, v148, v148 {m}")
        A(f"v_add_f32_dpp v149, v149, v149 {m}")
        if k == (0 if cfast else 1):
            if not cfast:
                A("s_waitcnt lgkmcnt(0)")
            stamp_at(8)
            A(mf[0])
            A(mf[1])
        if k == (1 if cfast else 2):
            A(mf[2])
            A(mf[3])
    A("s_mov_b32 exec_lo, 0\ns_mov_b32 exec_hi, 0x80000000")
    A(f"ds_write_b96 v23, v[148:150] offset:{L_H}")
    A("s_mov_b32 exec_lo, -1\ns_mov_b32 exec_hi, 0")
    A("v_cndmask_b32 v66, v132, v136, s[54:55]")
    A("s_mov_b64 exec, -1")
    A(f"ds_write_b32 v26, v66 offset:{L_B}")
    A("s_waitcnt lgkmcnt(0)")
    stamp_at(9)
    if c4:
        A("s_cmp_lt_u32 s3, 4")
    A("s_barrier")
    if c4:
        A("s_cbranch_scc0 L_cdone")
    A(f"ds_read_b96 v[124:126], v24 offset:{L_H}")
    for i in range(8):
        A(f"ds_read_b32 v{128 + i}, v27 offset:{L_B + 256 * i}")
    nd = 0
    if dlast:
        nd = 6
        for r in range(nd):
            A(f"ds_read_u16_d16_hi v{DW + r}, v28 offset:{L_W + 32768 + 1024 * r}")
    A("s_waitcnt lgkmcnt(0)" if stamps else f"s_waitcnt lgkmcnt({8 + nd})")
    stamp_at(10)
    x8 = ("quad_perm:[1,0,3,2]", "quad_perm:[2,3,0,1]", "row_half_mirror")
    A("v_fma_f32 v127, v126, s63, v124")
    A("v_add_f32 v124, v124, v124")
    A("s_waitcnt lgkmcnt(0)" if stamps else f"s_waitcnt lgkmcnt({4 + nd})")
    A(f"v_add_f32_dpp v127, v127, v127 {x8[0]} {FULL}")
    A("v_pk_add_f32 v[128:129], v[128:129], v[130:131]")
    A("s_waitcnt lgkmcnt(0)" if stamps else f"s_waitcnt lgkmcnt({nd})")
    if dlast:
        for r in range(nd, 15):
            A(f"ds_read_u16_d16_hi v{DW + r}, v28 offset:{L_W + 32768 + 1024 * r}")
    A(f"v_add_f32_dpp v127, v127, v127 {x8[1]} {FULL}")
    A("v_pk_add_f32 v[132:133], v[132:133], v[134:135]")
    A("v_pk_add_f32 v[128:129], v[128:129], v[132:133]")
    A(f"v_add_f32_dpp v127, v127, v127 {x8[2]} {FULL}")
    A("v_add_f32 v120, v128, v129")
    A("v_add_f32 v121, v128, v129")
    A("v_mul_f32 v127, 0x3b000000, v127")
    A("v_sub_f32 v126, v127, v126")
    A("v_permlane32_swap_b32 v120, v121")
    A("v_fma_f32 v124, v126, s63, -v124")
    A("v_fma_f32 v125, v126, v124, v125")
    A("v_fma_f32 v122, -v127, v121, v120")
    A("v_fma_f32 v121, -v127, v121, v120")
    A(f"v_add_f32_dpp v125, v125, v125 {x8[0]} {FULL}")
    A("v_mov_b32 v120, v122")
    A(f"v_add_f32_dpp v125, v125, v125 {x8[1]} {FULL}")
    A("v_permlane16_swap_b32 v120, v121")
    A(f"v_add_f32_dpp v125, v125, v125 {x8[2]} {FULL}")
    if dlast:
        A("s_waitcnt lgkmcnt(0)")
        A(f"ds_read_u16_d16_hi v{DW + 15}, v28 offset:{L_W + 32768 + 1024 * 15}")
    A("v_fma_f32 v125, v125, v67, v68")
    A("v_rsq_f32 v125, v125")
    A("v_mul_f32 v120, v120, v125")
    A("v_mul_f32 v121, v121, v125")
    A("v_mul_f32 v122, v120, v120")
    A("v_mul_f32 v121, v120, v121")
    A("v_fma_f32 v122, v122, v69, v70")
    A("v_mul_f32 v122, v122, v120")
    A("v_exp_f32 v122, v122")
    A("v_add_f32 v122, 1.0, v122")
    A("v_rcp_f32 v122, v122")
    A("v_mul_f32 v120, v121, v122")
    if dlast:
        A("s_waitcnt lgkmcnt(0)")
    if c4:
        for r in range(16):
            op = "mul" if r < 2 else "fmac"
            A(f"v_{op}_f32_dpp v{124 + 2 * (r & 1)}, v120, v{DW + r} row_newbcast:{r} {FULL}")
            A(f"v_{op}_f32_dpp v{125 + 2 * (r & 1)}, v120, v{40 + r} row_newbcast:{r} {FULL}")
        A("v_pk_add_f32 v[124:125], v[124:125], v[126:127]")
        A(f"v_mov_b32_dpp v126, v124 quad_perm:[1,1,3,3] {FULL}")
        A(f"v_mov_b32_dpp v127, v125 quad_perm:[1,1,3,3] {FULL}")
        A("s_mov_b32 exec_lo, 0x55555555\ns_mov_b32 exec_hi, 0x55555555")
        A("global_store_dwordx4 v22, v[124:127], s[38:39] sc1")
        if dup is not None and dup3:
            A("global_store_dwordx4 v21, v[124:127], s[38:39] sc1")
        A("s_mov_b64 exec, -1")
    else:
        for r in range(16):
            op = "mul" if r < 4 else "fmac"
            A(f"v_{op}_f32_dpp v{124 + (r & 3)}, v120, v{DW + r} row_newbcast:{r} {FULL}")
        A("v_pk_add_f32 v[124:125], v[124:125], v[126:127]")
        A("v_add_f32 v124, v124, v125")
        store_quad(124, 22, fl=st3, addr2=21 if (dup is not None and dup3) else None)
    A("L_cdone:")
    stamp_at(7)
    stamp_store()
    A("s_endpgm")
    A("L_final:")
    A("s_barrier")
    A("s_sub_u32 s15, s7, 14\ns_lshl_b32 s4, s6, 1\ns_add_u32 s15, s15, s4")
    A("v_and_b32 v16, 7, v0\nv_lshrrev_b32 v17, 3, v0\nv_lshlrev_b32 v17, 11, v17\nv_lshl_add_u32 v17, v16, 4, v17")
    A("v_and_b32 v22, 31, v0\ns_lshl_b32 s4, s15, 6\nv_lshl_add_u32 v18, v22, 1, s4")
    A("v_lshlrev_b32 v22, 2, v22")
    sigma(23, 24)
    A("v_lshl_add_u32 v23, v16, 2, v23\nv_lshl_add_u32 v19, v23, 1, s4")
    A(f"ds_read_u16_d16_hi v19, v19 offset:{L_X}")
    A("s_lshl_b32 s4, s3, 7\nv_lshl_add_u32 v23, v23, 2, s4")
    if dup is None:
        A(f"s_lshl_b32 s4, s3, 15\ns_add_u32 s4, s4, {WS_P3}")
        A("s_cmp_eq_u32 s3, 7")
        A(f"s_cselect_b32 s4, {WS_P2}, s4")
        A("s_lshl_b32 s5, s15, 7\ns_add_u32 s4, s4, s5")
        A("v_add_u32 v20, s4, v17\nv_add_u32 v21, 0x4000, v20")
    else:
        A("v_lshrrev_b32 v24, 5, v0\nv_lshlrev_b32 v24, 13, v24")
        mycopy("s8")
        A(f"s_lshl_b32 s4, s3, {16 if dup3 else 15}\ns_add_u32 s4, s4, {WS_P3}")
        A("s_cmp_eq_u32 s3, 7")
        A(f"s_cselect_b32 s4, {WS_P2}, s4")
        if dup3:
            A("s_add_u32 s4, s4, s8\ns_mov_b32 s9, 0x8000")
        else:
            A("s_cselect_b32 s8, s8, 0\ns_movk_i32 s9, 0x4000\ns_cselect_b32 s9, 0x8000, s9\ns_cselect_b32 s5, -1, 0\ns_add_u32 s4, s4, s8\nv_and_b32 v24, s5, v24")
        A("s_lshl_b32 s5, s15, 7\ns_add_u32 s4, s4, s5")
        A("v_add3_u32 v20, v17, v24, s4\nv_add_u32 v21, s9, v20")
    loads = [f"global_load_dwordx4 v[{120 + 4 * i}:{123 + 4 * i}], v{20 + i}, s[38:39] {ld3}" for i in range(2)]
    if dsleep is not None:
        A("s_cmp_eq_u32 s3, 7")
        A("s_cbranch_scc1 L_dgo")
        A("s_barrier")
        A(f"s_sleep {dsleep}")
        A("L_dgo:")
    poll("L_poll3", loads, range(120, 128), 16)
    if dsleep is not None:
        A("s_cmp_eq_u32 s3, 7")
        A("s_cbranch_scc0 L_dgo2")
        A("s_barrier")
        A("L_dgo2:")
    stamp_at(6)
    for e in range(4):
        A(f"v_add_f32 v{120 + e}, v{120 + e}, v{124 + e}")
    scatter4(120)
    A(f"v_add_f32_dpp v120, v120, v120 row_ror:8 {FULL}")
    A("s_cmp_eq_u32 s3, 7")
    A("s_cbranch_scc0 L_dnoh")
    A("s_waitcnt lgkmcnt(0)")
    A("v_add_f32 v120, v120, v19")
    rbf(120)
    A("L_dnoh:")
    A("s_mov_b32 exec_lo, 0x00ff00ff\ns_mov_b32 exec_hi, 0x00ff00ff")
    A(f"ds_write_b32 v23, v120 offset:{L_B}")
    A("s_mov_b64 exec, -1")
    A("s_cmp_eq_u32 s3, 0")
    A("s_waitcnt lgkmcnt(0)")
    A("s_barrier")
    A("s_cbranch_scc0 L_ddone")
    for i in range(8):
        A(f"ds_read_b32 v{120 + i}, v22 offset:{L_B + 128 * i}")
    A("s_waitcnt lgkmcnt(0)")
    for i in range(2):
        A(f"v_pk_add_f32 v[{120 + 2 * i}:{121 + 2 * i}], v[{120 + 2 * i}:{121 + 2 * i}], v[{124 + 2 * i}:{125 + 2 * i}]")
    A("v_pk_add_f32 v[120:121], v[120:121], v[122:123]")
    A("v_add_f32 v120, v120, v121")
    if perturb:
        import struct
        kind, val = perturb
        h = hex(struct.unpack("<I", struct.pack("<f", val))[0])
        if kind == "add": A(f"v_add_f32 v120, {h}, v120")
        if kind == "mul": A(f"v_mul_f32 v120, {h}, v120")
        if kind == "one":
            A("s_cmp_eq_u32 s15, 0\ns_cselect_b32 s4, 1, 0\ns_mov_b32 s5, 0\ns_mov_b64 exec, s[4:5]")
            A(f"v_add_f32 v120, {h}, v120\ns_mov_b64 exec, -1")
    A(f"v_mov_b32_dpp v121, v120 quad_perm:[1,0,3,2] {FULL}")
    A("v_cvt_pk_bf16_f32 v120, v120, v121")
    A("s_mov_b64 exec, 0x55555555")
    A("global_store_dword v18, v120, s[34:35]" + (" " + outfl if outfl else ""))
    stamp_at(7)
    if enc:
        a, b, mult = enc
        A("s_waitcnt lgkmcnt(0)")
        A(f"s_sub_u32 s4, s{64 + 2 * a}, s{64 + 2 * b}\ns_mul_i32 s4, s4, {mult}\ns_min_u32 s4, s4, 40000")
        A("L_enc:\ns_memrealtime s[8:9]\ns_waitcnt lgkmcnt(0)\ns_sub_u32 s5, s8, s78\ns_cmp_lt_u32 s5, s4\ns_cbranch_scc1 L_enc")
    A("L_ddone:")
    stamp_at(7)
    stamp_store()
    A("s_endpgm")

    for _ in range(pad3):
        A("s_nop 0")
    A("L_service:")
    A("s_setprio 3")
    A(f"v_mov_b32 v98, {L_F}\nv_mov_b32 v99, 0")
    A("ds_write_b32 v98, v99")
    A("ds_write_b32 v98, v99 offset:8")
    A("ds_write_b32 v98, v99 offset:12")
    A("ds_write_b32 v98, v99 offset:20")
    if not qearly:
        A("s_waitcnt lgkmcnt(0)")
        A("s_barrier")
    for i in range(4):
        A(f"v_mov_b32 v{100 + i}, -1")
    roles()
    p1slot("s4")
    A("v_add_u32 v104, s4, v9")
    A("s_cmp_eq_u32 s7, 0")
    A("s_waitcnt lgkmcnt(0)")
    if "svcoff" in xp:
        A("s_barrier\ns_branch L_svcbar" if qearly else "s_branch L_svcbar")
    A("s_cbranch_scc0 L_qcleared")
    A(f"s_lshl_b32 s10, s60, 13\nv_add_u32 v3, s10, v9\nv_add_u32 v8, 0x1000, v3")
    for i in range(8):
        A(f"global_store_dwordx4 v{3 if i < 4 else 8}, v[100:103], s[38:39] offset:{1024 * (i & 3)} sc1")
    A(f"s_lshl_b32 s10, s60, 7\ns_add_u32 s10, s10, {WS_F}\nv_add_u32 v3, s10, v9")
    A(f"s_lshl_b32 s10, s6, 7\ns_add_u32 s10, s10, {WS_G}\nv_add_u32 v8, s10, v9")
    A("s_mov_b64 exec, 0xff")
    A("global_store_dwordx4 v3, v[100:103], s[38:39] sc1")
    A("global_store_dwordx4 v8, v[100:103], s[38:39] sc1")
    if adapt or rankpre:
        A(f"global_store_dwordx4 v8, v[100:103], s[38:39] offset:{WS_R - WS_G - 4096 + 4096 - 0 if WS_R - WS_G < 4096 else 0} sc1" if False else f"v_add_u32 v8, {WS_R - WS_G}, v8\nglobal_store_dwordx4 v8, v[100:103], s[38:39] sc1")
    if dup == "auto" and vpos:
        A(f"v_add_u32 v8, {WS_V - WS_R}, v8\nglobal_store_dwordx4 v8, v[100:103], s[38:39] sc1")
    A("s_mov_b64 exec, -1")
    A("L_qcleared:")
    if qearly:
        A("s_barrier")
    nyoung = 0
    if "noclear" not in xp and sclr is None:
        A("global_store_dwordx4 v104, v[100:103], s[38:39] sc1")
        A("global_store_dwordx4 v104, v[100:103], s[38:39] offset:1024 sc1")
        nyoung += 2
        A("s_cmp_lt_u32 s7, 14")
        A("s_cbranch_scc0 L_noclr3")
        A(f"s_lshl_b32 s4, s15, 11\ns_add_u32 s4, s4, {WS_P3}\nv_add_u32 v105, s4, v9")
        A("global_store_dwordx4 v105, v[100:103], s[38:39] sc1")
        A("global_store_dwordx4 v105, v[100:103], s[38:39] offset:1024 sc1")
        A("L_noclr3:")
        A("s_cmp_ge_u32 s7, 16")
        A("s_cbranch_scc0 L_noclr2")
        A(f"s_lshl_b32 s4, s13, 11\ns_lshl_b32 s5, s14, 8\ns_add_u32 s4, s4, s5\ns_add_u32 s4, s4, {WS_P2}\nv_add_u32 v105, s4, v9")
        A("s_mov_b64 exec, 0xffff")
        A("global_store_dwordx4 v105, v[100:103], s[38:39] sc1")
        A("s_mov_b64 exec, -1")
        A("L_noclr2:")
    stamp_at(1)
    A("v_lshlrev_b32 v96, 5, v0")
    A("s_cmp_eq_u32 s7, 0")
    A("s_cbranch_scc0 L_noqflag")
    A("s_lshl_b32 s4, s60, 5\nv_mov_b32 v104, s4\nv_mov_b32 v105, 1")
    A(f"s_waitcnt vmcnt({4 if ('noclear' not in xp and sclr is None) else 0})")
    A("s_mov_b64 exec, 1")
    A("global_store_dword v104, v105, s[36:37] sc1")
    A("s_mov_b64 exec, -1")
    A("L_noqflag:")
    ldswait("L_waitwq", 12, 8)

    def firstlook():
        A("s_mov_b64 exec, 0xff")
        A("global_load_dword v97, v96, s[36:37] sc1")
        A("s_mov_b64 exec, -1")
    if qearly:
        firstlook()
    A(f"ds_read_b128 v[4:7], v9 offset:{L_X}")
    A("s_waitcnt lgkmcnt(0)")
    stamp_at(2)
    X = list(range(8, 16))
    X[1] = 3
    for i in range(4):
        A(f"v_lshlrev_b32 v{X[2 * i]}, 16, v{4 + i}")
        A(f"v_and_b32 v{X[2 * i + 1]}, 0xffff0000, v{4 + i}")
    ln_stats(X, 16, 17, 18, 19, 20, list(range(22, 30)))
    ln_apply(X, 16, 17, 18, list(range(22, 30)))
    for i in range(4):
        A(f"v_cvt_pk_bf16_f32 v{4 + i}, v{X[2 * i]}, v{X[2 * i + 1]}")
    A(f"ds_write_b128 v9, v[4:7] offset:{L_HN}")
    A(f"s_and_b32 s4, s7, {KS - 1}\ns_lshl_b32 s4, s4, {10 - KL}\nv_lshrrev_b32 v17, 4, v0\nv_lshl_add_u32 v16, v17, 4, s4")
    A("v_bfe_u32 v18, v0, 2, 2\nv_lshl_add_u32 v17, v17, 3, v18\nv_lshlrev_b32 v17, 7, v17\nv_and_b32 v18, 3, v0\nv_lshl_add_u32 v17, v18, 3, v17")
    A("s_waitcnt lgkmcnt(0)")
    NK = NQ // 4
    for k in range(NK):
        A(f"ds_read_b128 v[{32 + 4 * k}:{35 + 4 * k}], v16 offset:{L_HN + 64 * k}")
    stamp_at(3)
    if not qearly:
        firstlook()
    for k in range(NK):
        A("s_waitcnt lgkmcnt(0)")
        b = 64 + 16 * (k & 1)
        for tau in range(4):
            for t in range(2):
                r = b + 4 * tau + 2 * t
                A(f"ds_read_b64_tr_b16 v[{r}:{r + 1}], v17 offset:{L_W + 4096 * k + 512 * t + 32 * tau}")
        if k > 0:
            bp = 64 + 16 * ((k - 1) & 1)
            for tau in range(4):
                c = "0" if k == 1 else f"v[{112 + 4 * tau}:{115 + 4 * tau}]"
                A(f"v_mfma_f32_16x16x32_bf16 v[{112 + 4 * tau}:{115 + 4 * tau}], v[{28 + 4 * k}:{31 + 4 * k}], v[{bp + 4 * tau}:{bp + 4 * tau + 3}], {c}")
    A("s_waitcnt lgkmcnt(0)")
    for tau in range(4):
        A(f"v_mfma_f32_16x16x32_bf16 v[{112 + 4 * tau}:{115 + 4 * tau}], v[{28 + 4 * NK}:{31 + 4 * NK}], v[{80 + 4 * tau}:{83 + 4 * tau}], v[{112 + 4 * tau}:{115 + 4 * tau}]")
    A(f"s_lshl_b32 s4, s60, {11 + KL}\ns_and_b32 s5, s7, {KS - 1}\ns_lshl_b32 s5, s5, 11\ns_add_u32 s4, s4, s5\ns_lshr_b32 s5, s7, {KL}\ns_lshl_b32 s5, s5, 8\ns_add_u32 s4, s4, s5")
    A("v_lshl_add_u32 v17, v0, 2, s4")
    for tau in range(1, 4):
        A(f"v_mov_b32_dpp v112, v{112 + 4 * tau} quad_perm:[0,1,2,3] row_mask:{hex(1 << tau)} bank_mask:0xf")
    for i in (1, 2, 3):
        A(f"v_mov_b32_dpp v{112 + i}, v112 quad_perm:[{i},{i},{i},{i}] {FULL}")
    A("L_qdone:")
    A(f"s_lshl_b32 s4, s60, 5\ns_add_u32 s4, s4, s7\ns_lshl_b32 s4, s4, 2\ns_add_u32 s4, s4, {WS_F}\nv_mov_b32 v18, s4")
    A(f"s_lshl_b32 s4, s6, {11 + KL}\nv_add_u32 v19, s4, v9\nv_add_u32 v20, 0x1000, v19")
    A("s_getreg_b32 s62, hwreg(HW_REG_XCC_ID, 0, 4)\nv_mov_b32 v21, s62")
    A("s_lshl_b32 s4, 1, s60\ns_lshl_b32 s5, 1, s6\ns_or_b32 s4, s4, s5")
    if adapt:
        A(f"s_add_u32 s5, s7, {qrot}\ns_and_b32 s5, s5, 7\ns_lshl_b32 s5, 1, s5\ns_or_b32 s4, s4, s5")
    A("s_mov_b32 s5, 0")
    stamp_at(4)
    if "svc1" in xp: A("s_branch L_svcbar2")
    A("L_pollf:")
    A("s_waitcnt vmcnt(0) lgkmcnt(0)")
    A("v_cmp_ne_u32 vcc, 1, v97")
    A("s_and_b32 s57, vcc_lo, s4")
    A("s_cbranch_scc0 L_pollf_ok")
    A(f"s_add_u32 s5, s5, 1\ns_cmp_lt_u32 s5, {SPIN_MAX}\ns_cbranch_scc0 L_pollf_ok")
    A("s_sleep 8")
    A("s_mov_b64 exec, 0xff")
    A("global_load_dword v97, v96, s[36:37] sc1")
    A("s_mov_b64 exec, -1")
    A("s_branch L_pollf")
    A("L_pollf_ok:")
    if KS == 2:
        A("s_cmp_lt_u32 s7, 16")
        A("s_cbranch_scc0 L_noqpub")
    A("s_mov_b32 exec_lo, 0x11111111\ns_mov_b32 exec_hi, 0x11111111")
    A("global_store_dwordx4 v17, v[112:115], s[38:39] sc1")
    A("L_noqpub:")
    A("s_mov_b64 exec, 1")
    A("global_store_dword v18, v21, s[38:39] sc1")
    A("s_mov_b64 exec, -1")
    stamp_at(5)
    if "svc2" in xp: A("s_branch L_svcbar2")
    if warm:
        if warm == "one":
            A("s_cmp_eq_u32 s7, 1")
            A("s_cbranch_scc0 L_nowarm")
        A("s_getpc_b64 s[48:49]")
        A("L_pc:")
        A(f"s_sub_u32 s48, s48, L_pc-{NAME}_kernel\ns_subb_u32 s49, s49, 0")
        A(f"s_mov_b32 s4, L_codeend-{NAME}_kernel-16\nv_mov_b32 v2, v9\ns_mov_b32 s5, 0")
        A("L_warm:")
        A("v_min_u32 v3, s4, v2")
        A("global_load_dwordx4 v[128:131], v3, s[48:49]")
        A("v_add_u32 v2, 1024, v2\ns_add_u32 s5, s5, 1024\ns_cmp_lt_u32 s5, s4\ns_cbranch_scc1 L_warm")
        A("L_nowarm:")
    if adapt:
        A(f"s_and_b32 s4, s7, 7\ns_lshl_b32 s4, s4, 7\ns_add_u32 s4, s4, {WS_R}\nv_mov_b32 v26, s4\nv_mov_b32 v27, 1")
    ldswait("L_waitpos", 8)
    if adapt:
        A("s_mov_b64 exec, 1")
        A("global_atomic_add v28, v26, v27, s[38:39] sc0 sc1")
        A("s_mov_b64 exec, -1")
    poll("L_pollq", [f"global_load_dwordx4 v[{32 + 4 * i}:{35 + 4 * i}], v{19 + (i >> 2)}, s[38:39] offset:{1024 * (i & 3)} sc1" for i in range(2 * KS)],
         range(32, 32 + 8 * KS), 16, slp=qsleep)
    stamp_at(6)
    for e in range(8):
        A(f"v_add_f32 v{32 + e}, v{32 + e}, v{40 + e}")
        if KS == 4:
            A(f"v_add_f32 v{48 + e}, v{48 + e}, v{56 + e}")
    if KS == 4:
        for e in range(8):
            A(f"v_add_f32 v{32 + e}, v{32 + e}, v{48 + e}")
    for e in range(4):
        A(f"v_cvt_pk_bf16_f32 v{40 + e}, v{32 + 2 * e}, v{33 + 2 * e}")
    A("v_lshlrev_b32 v16, 3, v0")
    A(f"ds_write_b64 v16, v[40:41] offset:{L_Q}")
    A(f"ds_write_b64 v16, v[42:43] offset:{L_Q + 512}")
    if adapt:
        A("v_readfirstlane_b32 s4, v28")
        A("s_add_u32 s4, s4, 2")
        A("v_mov_b32 v99, s4")
    else:
        A("v_mov_b32 v99, 1")
    A("s_waitcnt lgkmcnt(0)")
    A("ds_write_b32 v98, v99")
    stamp_at(7)
    if "svc4" in xp: A("s_branch L_svcbar2")
    A("s_mov_b32 s5, 0")
    A("L_pollf2:")
    A("s_mov_b64 exec, 0xff")
    A("global_load_dword v97, v96, s[36:37] sc1")
    A("s_waitcnt vmcnt(0)")
    A("v_cmp_ne_u32 vcc, 1, v97")
    A("s_mov_b64 exec, -1")
    A("s_cbranch_vccz L_pollf2_ok")
    A(f"s_add_u32 s5, s5, 1\ns_cmp_lt_u32 s5, {SPIN_MAX}\ns_cbranch_scc1 L_pollf2")
    A("L_pollf2_ok:")
    stamp_at(8)
    A(f"v_add_u32 v19, {WS_F}, v9")
    poll("L_pollall", ["global_load_dwordx4 v[32:35], v19, s[38:39] sc1"], range(32, 36), 16, slp=16)
    stamp_at(9)
    A("v_xor_b32 v32, v32, v21\nv_xor_b32 v33, v33, v21\nv_xor_b32 v34, v34, v21\nv_xor_b32 v35, v35, v21")
    A("v_or_b32 v32, v32, v33\nv_or3_b32 v32, v32, v34, v35")
    A("v_cmp_ne_u32 vcc, 0, v32")
    A("s_lshl_b32 s4, s60, 3\ns_lshr_b64 s[4:5], vcc, s4\ns_and_b32 s4, s4, 0xff")
    A("s_cselect_b32 s4, 0, 1" if local and "far" not in xp else "s_mov_b32 s4, 0")
    A("L_svcend:")
    A("s_mov_b32 s63, s4")
    if dup == "auto":
        A(f"s_andn2_b32 s8, s7, 4\ns_lshl_b32 s9, s6, 5\ns_add_u32 s8, s8, s9\ns_lshl_b32 s8, s8, 11\ns_and_b32 s9, s7, 4\ns_lshl_b32 s9, s9, 8")
        A(f"s_add_u32 s8, s8, s9\ns_add_u32 s8, s8, {WS_P1}\ns_add_u32 s12, s38, s8\ns_addc_u32 s13, s39, 0\ns_mov_b32 s10, 0")
        A("s_waitcnt lgkmcnt(0)")
        for t in range(ntr):
            A("s_mov_b32 s8, 0\ns_mov_b32 s9, 0")
            o0, o1 = 128 * t, 128 * t + 8192
            A(f"s_load_dword s9, s[12:13], {o1}\ns_load_dword s8, s[12:13], {o0}" if t & 1 else f"s_load_dword s8, s[12:13], {o0}\ns_load_dword s9, s[12:13], {o1}")
            A("s_waitcnt lgkmcnt(1)")
            A("s_sub_u32 s11, s9, s8")
            A("s_waitcnt lgkmcnt(0)")
            A("s_add_u32 s10, s10, s11")
        if vpos:
            A("s_cmp_eq_u32 s63, 1")
            A("s_cbranch_scc0 L_novote")
            A(f"s_lshl_b32 s8, s6, 7\ns_add_u32 s8, s8, {WS_V}\nv_and_b32 v16, 31, v0\nv_lshl_add_u32 v16, v16, 2, s8")
            A("s_lshl_b32 s9, s7, 2\ns_add_u32 s8, s8, s9\nv_mov_b32 v17, s8\ns_add_u32 s10, s10, 16\nv_mov_b32 v18, s10")
            A("s_mov_b64 exec, 1\nglobal_store_dword v17, v18, s[38:39]\ns_mov_b64 exec, -1")
            ldswait("L_waitv", 20)
            A("global_load_dword v18, v16, s[38:39] sc1")
            A("s_waitcnt vmcnt(0)")
            A("v_cmp_lt_i32 vcc, 16, v18")
            A("s_bcnt1_i32_b64 s10, vcc")
            A("v_cmp_gt_u32 vcc, 16, v18")
            A("s_bcnt1_i32_b64 s8, vcc")
            A("s_sub_u32 s10, s10, s8")
            A("L_novote:")
        A("s_cmp_lt_i32 s10, 0\ns_cselect_b32 s10, 0x2000, 0\nv_mov_b32 v99, s10")
        A("ds_write_b32 v98, v99 offset:16")
        roles()
    A("v_mov_b32 v99, s63")
    A("ds_write_b32 v98, v99 offset:4")
    A(f"s_lshl_b32 s4, s6, 7\ns_add_u32 s4, s4, {WS_G}\nv_and_b32 v16, 31, v0\nv_lshl_add_u32 v16, v16, 2, s4")
    A("s_lshl_b32 s5, s7, 2\ns_add_u32 s4, s4, s5\nv_mov_b32 v17, s4\nv_mov_b32 v18, 0")
    A(f"s_and_b32 s4, s7, {0 if rankpre else 15}\ns_mul_i32 s4, s4, {32 * 3584}\ns_mul_i32 s5, s6, 448\ns_andn2_b32 s5, s5, 127\ns_add_u32 s4, s4, s5")
    A("v_lshrrev_b32 v21, 5, v0\nv_mul_u32_u24 v21, 3584, v21\nv_and_b32 v22, 31, v0\nv_lshl_add_u32 v21, v22, 4, v21\nv_add_u32 v21, s4, v21")
    if rankpre:
        A(f"s_lshl_b32 s4, s6, 7\ns_add_u32 s4, s4, {WS_R}\nv_mov_b32 v26, s4\nv_mov_b32 v27, 1")
        A("s_lshl_b32 s4, s7, 1\ns_sub_u32 s4, s4, 1\nv_mov_b32 v28, 0")
    A("v_lshrrev_b32 v22, 1, v0\nv_mul_u32_u24 v22, 3584, v22\nv_and_b32 v23, 1, v0\nv_lshl_add_u32 v22, v23, 4, v22\ns_lshl_b32 s4, s15, 5\nv_add_u32 v22, s4, v22")
    A("s_lshl_b32 s4, s15, 14\nv_add_u32 v23, s4, v9")
    A("s_waitcnt lgkmcnt(0)")
    A("s_barrier")
    A("s_barrier")
    A("s_barrier")
    assert gate and dsplit

    def wloop(label, n, lds, body):
        A(f"s_mov_b32 s5, {n}")
        if lds is not None:
            A(f"s_mov_b32 m0, {lds}")
        A(f"{label}:")
        body()
        A(f"s_sub_u32 s5, s5, 1\ns_cmp_lg_u32 s5, 0\ns_cbranch_scc1 {label}")

    def b_pre():
        A("global_load_dwordx4 v[32:35], v21, s[28:29]")
        A("global_load_dwordx4 v[32:35], v21, s[30:31]")
        A("v_add_u32 v21, 7168, v21")

    def b_down():
        A(f"global_load_lds_dwordx4 v23, s[32:33]{wntf}")
        A("v_add_u32 v23, 1024, v23\ns_add_u32 m0, m0, 1024")

    def b_gu():
        A("global_load_lds_dwordx4 v22, s[28:29]")
        A("s_add_u32 m0, m0, 16384")
        A("global_load_lds_dwordx4 v22, s[30:31]")
        A(f"v_add_u32 v22, {32 * 3584}, v22\ns_sub_u32 m0, m0, {16384 - 1024}")

    def only(cond, label, body):
        A(cond)
        A(f"s_cbranch_scc0 {label}")
        body()
        A(f"{label}:")
    after_pre = 0
    for k, step in enumerate(pm):
        if step in "SgG" and not gsync:
            continue
        if step in "PDU" and "now" in xp:
            continue
        if step == "D" and dlate and not dlast:
            continue
        if step == "S":
            def sig():
                A("s_mov_b64 exec, 1\nglobal_store_dword v17, v18, s[38:39]")
                if rankpre:
                    only("s_cmp_lt_u32 s7, 16", "L_norank", lambda: A("global_atomic_add v28, v26, v27, s[38:39] sc0 sc1"))
                A("s_mov_b64 exec, -1")
            only("s_cmp_eq_u32 s63, 1", "L_nosig", sig)
        elif step in "12":
            A("s_barrier")

        elif step == "g":
            only("s_cmp_eq_u32 s63, 1", f"L_nog{k}", lambda: A("global_load_dword v19, v16, s[38:39] sc1"))
        elif step == "G":
            def gwait():
                A("s_mov_b32 s5, 0")
                A("L_pollg:")
                A("s_waitcnt vmcnt(0)")
                A("v_cmp_eq_u32 vcc, -1, v19")
                if gmiss:
                    A(f"s_bcnt1_i32_b32 s4, vcc_lo\ns_cmp_le_u32 s4, {gmiss}\ns_cbranch_scc1 L_gok")
                else:
                    A("s_cbranch_vccz L_gok")
                A(f"s_add_u32 s5, s5, 1\ns_cmp_lt_u32 s5, {SPIN_MAX}\ns_cbranch_scc0 L_gok")
                A(f"s_sleep {gsleep}")
                A("global_load_dword v19, v16, s[38:39] sc1")
                A("s_branch L_pollg")
            only("s_cmp_eq_u32 s63, 1", "L_gok", gwait)
            stamp_at(10)
        elif step == "P":
            if pref and not rankpre:
                only("s_cmp_lt_u32 s7, 16", "L_nopre", lambda: wloop("L_wpre", 16, None, b_pre))
            if pref and rankpre:
                def pre():
                    A("s_waitcnt vmcnt(0)")
                    A("v_readfirstlane_b32 s8, v28")
                    A("s_add_u32 s8, s8, 1\ns_mul_i32 s9, s8, 3\ns_lshl_b32 s4, s8, 1\ns_add_u32 s4, s4, 8")
                    A("s_cmp_lt_u32 s8, 8\ns_cselect_b32 s9, s9, s4\ns_cselect_b32 s5, 24, 16")
                    A("s_cmp_lt_u32 s8, 12\ns_cselect_b32 s5, s5, 0")
                    A("s_lshl_b32 s4, s7, 1\ns_cmp_eq_u32 s63, 1\ns_cselect_b32 s9, s9, s4\ns_cselect_b32 s5, s5, 16")
                    A(f"s_mul_i32 s9, s9, {16 * 3584}\nv_add_u32 v21, s9, v21")
                    A("s_cmp_eq_u32 s5, 0\ns_cbranch_scc1 L_nopre")
                    A("L_wpre:")
                    b_pre()
                    A("s_sub_u32 s5, s5, 1\ns_cmp_lg_u32 s5, 0\ns_cbranch_scc1 L_wpre")
                    A("s_waitcnt vmcnt(30)")
                only("s_cmp_lt_u32 s7, 16", "L_nopre", pre)
            after_pre = 0
        elif step == "D":
            A("s_waitcnt vmcnt(46)")
            only("s_cmp_lt_u32 s7, 14", "L_nodown", lambda: wloop("L_wdown", 16, L_W + 32768, b_down))
            after_pre = 16
        elif step == "w":
            A(f"s_waitcnt vmcnt({after_pre})")
            stamp_at(11)
        elif step == "z":
            A(f"s_sleep {cdelay}")
        elif step == "U":
            only("s_cmp_lt_u32 s7, 14", "L_nogu", lambda: wloop("L_wgu", 16, L_W, b_gu))
    only("s_cmp_lt_u32 s7, 14", "L_wdone", lambda: A("s_waitcnt vmcnt(16)\ns_barrier" if dlast else "s_barrier" if dlate else "s_waitcnt vmcnt(32)\ns_barrier"))
    A("s_waitcnt vmcnt(0)")
    stamp_at(12)
    if stamps:
        A("s_waitcnt lgkmcnt(0)")
        for i in range(16):
            A(f"v_writelane_b32 v4, s{64 + 2 * i}, {i}")
        A(f"v_lshlrev_b32 v5, 2, v0\nds_write_b32 v5, v4 offset:{L_G}\ns_waitcnt lgkmcnt(0)")
    A("s_barrier")
    A("s_endpgm")
    A("L_svcbar:")
    A("L_svcbar2:")
    A("v_mov_b32 v99, 1")
    A("ds_write_b32 v98, v99")
    A("s_mov_b32 s4, 0")
    A("s_branch L_svcend")
    A("L_end:")
    A("s_endpgm")
    A("L_codeend:")

    if jitter is not None:
        import random
        rnd = random.Random(jitter)
        C2 = []
        k = 0
        for blk in C:
            for ln in blk.split("\n"):
                if ln.startswith(("s_barrier", "global_store", "global_atomic")) and rnd.random() < 0.7:
                    k += 1
                    C2.append(f"s_cselect_b32 s91, 1, 0\ns_mul_i32 s90, s2, {rnd.randrange(3, 99, 2)}\ns_add_u32 s90, s90, s3\ns_mul_i32 s90, s90, {rnd.randrange(1001, 99999, 2)}")
                    C2.append(f"s_lshr_b32 s90, s90, 5\ns_and_b32 s90, s90, {rnd.choice((3, 7, 15, 63))}\ns_cmp_eq_u32 s90, 1\ns_cbranch_scc0 L_jit{k}\ns_sleep {rnd.choice((2, 10, 40, 120))}\nL_jit{k}:\ns_cmp_eq_u32 s91, 1")
                C2.append(ln)
        C = C2
    body = fix(C)
    out = HEADER
    out += f"; @launch grid=(256,1,1) block=(576,1,1) lds={LDS_BYTES}\n"
    out += DOC.lstrip("\n")
    out += '.amdgcn_target "amdgcn-amd-amdhsa--gfx950"\n.text\n'
    out += f".globl {NAME}_kernel\n.p2align 8\n.type {NAME}_kernel,@function\n{NAME}_kernel:\n"
    out += "\n".join(("" if l.endswith(":") else "    ") + l for l in body) + "\n"
    out += f""".section .rodata,"a"
.p2align 6
.amdhsa_kernel {NAME}_kernel
  .amdhsa_next_free_vgpr 168
  .amdhsa_next_free_sgpr 96
  .amdhsa_accum_offset 168
  .amdhsa_group_segment_fixed_size 0
  .amdhsa_kernarg_size 96
  .amdhsa_user_sgpr_count 2
  .amdhsa_user_sgpr_kernarg_segment_ptr 1
  .amdhsa_system_sgpr_workgroup_id_x 1
  .amdhsa_float_denorm_mode_32 3
.end_amdhsa_kernel
"""
    return out


if __name__ == "__main__":
    cfg = eval("dict(" + (sys.argv[2] if len(sys.argv) > 2 else "") + ")")
    open(sys.argv[1], "w").write(gen(**cfg))
```

```python
import sys
from asmlib import fix, VM

NAME = "sequential_preLN__gqa_block_cached__glu_gated_geglu__decode"
HEADER = open("cdna_kernels/" + NAME + ".s.ref").read().split("; Override launch")[0]

WS_Q = 0x0
WS_F = 0x10000
WS_G = 0x11000
WS_R = 0x12000
WS_V = 0x13000
WS_P1 = 0x20000
P1_STRIDE = 2048
WS_P2 = 0xB0000
WS_P3 = 0xC0000
WS_STAMP = 0x200000
L_Q = 0
L_X = 1024
L_M = 2048
L_L = 2176
L_F = 2304
L_B = 2560
L_H = 4608
L_HN = 6656
L_G = 7680
L_W = 8704
L_K = L_W + 49152
KRING = 3
VRING = 5
LDS_BYTES = L_K + 8 * KRING * 4096

DOC = r'''
; ---------------------------------------------------------------------------------------------------------------------
; One launch, 256 workgroups (one per CU) of 8 streaming waves + 1 service wave.  x = wg & 7, y = wg >> 3.
;
; Streaming waves: workgroup (x, y) owns 1024 keys of KV head x (8 rounds of one 16-key tile per wave).  K tiles go to
;   S^T = K q^T by MFMA (4 heads x 4 copies across the 16 columns), scores rounded to bf16 where the reference rounds,
; Service wave: LayerNorm(x), a 64 x 128 block of the q projection, exchange of q through d_ws, prefetch of the FFN weights.
;       stage D  (y = 14, 15) sums the FFN partials, adds the residual, writes 32 outputs
; Hand-offs: every slot is first set to 0xffffffff by this launch; readers start polling only after a chain of flags that
;   ids published in this launch shows all 32 workgroups of a head on one die, P1 and the helper flags use that die's L2.
; ---------------------------------------------------------------------------------------------------------------------
'''
LOG2E = 0x3FB8AA3B
SCALE = 0x3DB504F3
FULL = "row_mask:0xf bank_mask:0xf"
SPIN_MAX = 200000


def gen(D=3, D2=3, nt=True, inter="global", stamps=False, wnt=True, warm='one', sleep=1, qsleep=4,
        xp=(), masked=True, qrot=4, local=True, qpos=18, pref=True, fold=True, bpos=None, bwait=False, ppos=None, kfirst=True, wb=False, pad1=0, pad2=0, pad3=0, gsync=True, gsleep=2, cdelay=0, opos=None, enc=None, dsplit=True, early=False, gate=True, sclr='after', qearly=True, lpos='b1b', order=None, pm='Sg2GPU', dsleep=None, cfast=False, adapt=None, d2from=32, D3=None, d3from=56, split=False, dup='auto', dup3=True, rankpre=True, gmiss=16, ntr=2, vpos=44, dlate=True, outfl='', jitter=None, p1plain=False, clrpos=3, wqfirst=False, dseq=None, NB=3, bar1c=True, lp=('c', 'c', 'c', 'c'), dlast=False, csd=False, c4=True, b4=False, bprep=True, txor=None, clrbal=True, crot=0, Dinit=None, boost=()):
    C = []
    A = C.append
    if dlast:
        pm = pm + "D"
    ntf = " nt" if nt else ""
    wntf = " nt" if wnt else ""
    D2 = D if D2 is None else D2
    hmap = "xcd"; KS = 4; ld2 = ld3 = st2 = st3 = "sc1"; peel = False; late4 = True; cpos = ("end",) * 6; fastln = True; perturb = None
    Dinit = D if Dinit is None else Dinit
    bpos = (Dinit + max(3, clrpos) if kfirst else D) if bpos is None else bpos
    KL = KS.bit_length() - 1
    NQ = 64 // KS
    QR = 2048 * KS

    def stamp_at(k):
        if stamps:
            A(f"s_memrealtime s[{64 + 2 * k}:{65 + 2 * k}]")

    def stamp_store():
        if not stamps or stamps == "enc":
            return
        A("s_waitcnt lgkmcnt(0)")
        if stamps == "dbg":
            lab = f"L_dbg{len(C)}"
            A("s_and_b32 s4, s3, 7\ns_cmp_eq_u32 s4, 0")
            A(f"s_cbranch_scc0 {lab}")
            A("s_not_b32 s64, s64")
            A("s_cmp_eq_u32 s3, 8")
            sel0 = (0, 1, 2, 4, 5, 6, 7)
            sel8 = (2, 4, 5, 6, 7, 8, 9)
            A("s_mov_b64 exec, -1")
            for i in range(7):
                A(f"s_cselect_b32 s4, s{64 + 2 * sel8[i]}, s{64 + 2 * sel0[i]}")
                A(f"v_writelane_b32 v4, s4, {i}")
            A("s_lshl_b32 s4, s3, 2\ns_add_u32 s4, s4, 4\nv_lshl_add_u32 v1, v0, 2, s4")
            A("s_mov_b64 exec, 0x7f")
            A("global_atomic_umax v1, v4, s[36:37] sc1")
            A(f"{lab}:")
            return
        lab = f"L_st{len(C)}"
        A(f"s_cmp_eq_u32 s3, 1\ns_cbranch_scc0 {lab}")
        A(f"s_mov_b64 exec, 0xffff\nv_lshlrev_b32 v5, 2, v0\nds_read_b32 v4, v5 offset:{L_G}")
        A(f"s_lshl_b32 s4, s2, 4\ns_add_u32 s4, s4, 8\ns_lshl_b32 s4, s4, 6\ns_add_u32 s4, s4, {WS_STAMP}\nv_add_u32 v5, s4, v5")
        A("s_waitcnt lgkmcnt(0)\nglobal_store_dword v5, v4, s[38:39]\ns_nop 1")
        A(f"{lab}:")
        A("s_mov_b64 exec, 1")
        A("s_lshl_b32 s4, s2, 4\ns_add_u32 s4, s4, s3\ns_lshl_b32 s4, s4, 6")
        A(f"s_add_u32 s4, s4, {WS_STAMP}")
        A("v_mov_b32 v1, s4")
        A("s_getreg_b32 s94, hwreg(HW_REG_XCC_ID)")
        A("s_lshl_b32 s92, s62, 16\ns_add_u32 s92, s92, s59\ns_lshl_b32 s4, s49, 11\ns_add_u32 s92, s92, s4")
        for q in range(4):
            for i in range(4):
                A(f"v_mov_b32 v{4 + i}, s{64 + 2 * (4 * q + i)}")
            A(f"global_store_dwordx4 v1, v[4:7], s[38:39] offset:{16 * q}")
            A("s_nop 1")

    def rowsum(a, op="add"):
        for s in (8, 4, 2, 1):
            A(f"v_{op}_f32_dpp v{a}, v{a}, v{a} row_ror:{s} {FULL}")

    def xrow(a, t, op="add"):
        A(f"v_mov_b32 v{t}, v{a}")
        A(f"v_permlane16_swap_b32 v{a}, v{t}")
        A(f"v_{op}_f32 v{a}, v{a}, v{t}")
        A(f"v_mov_b32 v{t}, v{a}")
        A(f"v_permlane32_swap_b32 v{a}, v{t}")
        A(f"v_{op}_f32 v{a}, v{a}, v{t}")

    def scatter4(r):
        A(f"v_permlane32_swap_b32 v{r}, v{r + 1}\nv_permlane32_swap_b32 v{r + 2}, v{r + 3}")
        A(f"v_add_f32 v{r}, v{r}, v{r + 1}\nv_add_f32 v{r + 2}, v{r + 2}, v{r + 3}")
        A(f"v_permlane16_swap_b32 v{r}, v{r + 2}")
        A(f"v_add_f32 v{r}, v{r}, v{r + 2}")

    def sigma(dst, t):
        A(f"v_bfe_u32 v{dst}, v0, 4, 1\nv_lshrrev_b32 v{t}, 5, v0\nv_lshl_add_u32 v{dst}, v{dst}, 1, v{t}")

    def rbf(a):
        A(f"v_cvt_pk_bf16_f32 v{a}, v{a}, v{a}")
        A(f"v_lshlrev_b32 v{a}, 16, v{a}")

    def ln_stats(vals, mean, den, rden, t0, t1, tmp):
        A(f"v_add_f32 v{t0}, v{vals[0]}, v{vals[1]}")
        A(f"v_add_f32 v{t1}, v{vals[2]}, v{vals[3]}")
        A(f"v_add_f32 v{mean}, v{vals[4]}, v{vals[5]}")
        A(f"v_add_f32 v{den}, v{vals[6]}, v{vals[7]}")
        A(f"v_add_f32 v{t0}, v{t0}, v{t1}")
        A(f"v_add_f32 v{mean}, v{mean}, v{den}")
        A(f"v_add_f32 v{mean}, v{mean}, v{t0}")
        rowsum(mean)
        xrow(mean, t0)
        A(f"v_mul_f32 v{mean}, 0x3b000000, v{mean}")
        for i in range(8):
            A(f"v_sub_f32 v{tmp[i]}, v{vals[i]}, v{mean}")
        A(f"v_mul_f32 v{den}, v{tmp[0]}, v{tmp[0]}")
        A(f"v_mul_f32 v{t1}, v{tmp[1]}, v{tmp[1]}")
        for i in range(2, 8, 2):
            A(f"v_fmac_f32 v{den}, v{tmp[i]}, v{tmp[i]}")
            A(f"v_fmac_f32 v{t1}, v{tmp[i + 1]}, v{tmp[i + 1]}")
        A(f"v_add_f32 v{den}, v{den}, v{t1}")
        rowsum(den)
        xrow(den, t0)
        A(f"v_mul_f32 v{den}, 0x3b000000, v{den}")
        A(f"v_cvt_pk_bf16_f32 v{t0}, v{mean}, v{den}")
        A(f"v_lshlrev_b32 v{mean}, 16, v{t0}")
        A(f"v_and_b32 v{den}, 0xffff0000, v{t0}")
        A(f"v_add_f32 v{den}, 0x3727c5ac, v{den}")
        rbf(den)
        A(f"v_sqrt_f32 v{t0}, v{den}")
        A(f"v_rsq_f32 v{t1}, v{den}")
        A(f"v_fma_f32 v{den}, -v{t0}, v{t0}, v{den}")
        A(f"v_mul_f32 v{t1}, 0.5, v{t1}")
        A(f"v_fma_f32 v{den}, v{den}, v{t1}, v{t0}")
        rbf(den)
        A(f"v_rcp_f32 v{rden}, v{den}")

    def ln_apply(xs, mean, den, rden, ts):
        for x in xs:
            A(f"v_sub_f32 v{x}, v{x}, v{mean}")
        for x in xs:
            A(f"v_cvt_pk_bf16_f32 v{x}, v{x}, v{x}")
        for x in xs:
            A(f"v_lshlrev_b32 v{x}, 16, v{x}")
        for x, t in zip(xs, ts):
            A(f"v_mul_f32 v{t}, v{x}, v{rden}")
        for x, t in zip(xs, ts):
            A(f"v_fma_f32 v{x}, -v{t}, v{den}, v{x}")
        for x, t in zip(xs, ts):
            A(f"v_fma_f32 v{x}, v{x}, v{rden}, v{t}")

    def ln2():
        A("v_mov_b32 v133, v132")
        for i in range(4):
            A(f"v_pk_add_f32 v[{124 + 2 * i}:{125 + 2 * i}], v[{124 + 2 * i}:{125 + 2 * i}], v[132:133] neg_lo:[0,1] neg_hi:[0,1]")
        A("v_pk_add_f32 v[134:135], v[124:125], v[126:127]")
        A("v_pk_mul_f32 v[136:137], v[124:125], v[124:125]")
        A("v_pk_add_f32 v[138:139], v[128:129], v[130:131]")
        A("v_pk_fma_f32 v[136:137], v[126:127], v[126:127], v[136:137]")
        A("v_pk_add_f32 v[134:135], v[134:135], v[138:139]")
        A("v_pk_fma_f32 v[136:137], v[128:129], v[128:129], v[136:137]")
        A("v_add_f32 v16, v134, v135")
        A("v_pk_fma_f32 v[136:137], v[130:131], v[130:131], v[136:137]")
        A("v_add_f32 v17, v136, v137")
        for m in ("row_shr:1", "row_shr:2", "row_shr:4", "row_shr:8"):
            A(f"v_add_f32_dpp v16, v16, v16 {m} {FULL} bound_ctrl:0")
            A(f"v_add_f32_dpp v17, v17, v17 {m} {FULL} bound_ctrl:0")
        for m in ("row_bcast:15 row_mask:0xa", "row_bcast:31 row_mask:0xc"):
            A(f"v_add_f32_dpp v16, v16, v16 {m} bank_mask:0xf")
            A(f"v_add_f32_dpp v17, v17, v17 {m} bank_mask:0xf")
        A("v_readlane_b32 s4, v16, 63")
        A("v_readlane_b32 s5, v17, 63")
        A("v_mov_b32 v18, 0x3b000000")
        A("v_mul_f32 v16, s4, v18")
        A("v_mul_f32 v17, s5, v18")
        A("v_fma_f32 v17, -v16, v16, v17")
        A("v_add_f32 v16, v16, v132")
        A("v_max_f32 v17, 0, v17")
        A("v_cvt_pk_bf16_f32 v18, v16, v17")
        A("v_and_b32 v17, 0xffff0000, v18")
        A("v_lshlrev_b32 v16, 16, v18")
        A("v_add_f32 v17, 0x3727c5ac, v17")
        A("v_sub_f32 v120, v120, v16")
        A("v_cvt_pk_bf16_f32 v18, v120, v17")
        A("v_and_b32 v17, 0xffff0000, v18")
        A("v_sqrt_f32 v17, v17")
        A("v_lshlrev_b32 v120, 16, v18")
        rbf(17)
        A("v_rcp_f32 v18, v17")
        A("v_mul_f32 v19, v120, v18")
        A("v_fma_f32 v120, -v19, v17, v120")
        A("v_fma_f32 v120, v120, v18, v19")

    def poll(label, loads, regs, t, slp=None, between=None):
        slp = sleep if slp is None else slp
        A("s_mov_b32 s59, 0")
        if between:
            for l in loads:
                A(l)
            between()
            A(f"s_branch {label}_chk")
        A(f"{label}:")
        for l in loads:
            A(l)
        if between:
            A(f"{label}_chk:")
        A("s_waitcnt vmcnt(0)")
        regs = list(regs)
        if len(regs) == 1:
            t = regs[0]
            rest = []
        elif len(regs) % 2 == 0:
            A(f"v_max_u32 v{t}, v{regs[0]}, v{regs[1]}")
            rest = regs[2:]
        else:
            A(f"v_max3_u32 v{t}, v{regs[0]}, v{regs[1]}, v{regs[2]}")
            rest = regs[3:]
        for i in range(0, len(rest), 2):
            A(f"v_max3_u32 v{t}, v{t}, v{rest[i]}, v{rest[i + 1]}")
        A(f"v_cmp_eq_u32 vcc, -1, v{t}")
        A(f"s_branch {label}_ok" if ("svc3" in xp and label in ("L_pollq", "L_pollall")) else f"s_cbranch_vccz {label}_ok")
        A("s_add_u32 s59, s59, 1")
        A(f"s_cmp_lt_u32 s59, {SPIN_MAX}")
        A(f"s_cbranch_scc0 {label}_ok")
        if masked:
            A("s_mov_b64 exec, vcc")
        if slp:
            A(f"s_sleep {slp}")
        A(f"s_branch {label}")
        A(f"{label}_ok:")
        if masked:
            A("s_mov_b64 exec, -1")

    def ldswait(label, off, val=None):
        A(f"v_mov_b32 v24, {L_F}\ns_mov_b32 s5, 0")
        A(f"{label}:")
        A(f"ds_read_b32 v25, v24 offset:{off}")
        A("s_waitcnt lgkmcnt(0)")
        A("v_cmp_ne_u32 vcc, 0, v25" if val is None else f"v_cmp_eq_u32 vcc, {val}, v25")
        A(f"s_cbranch_vccnz {label}_ok")
        A(f"s_add_u32 s5, s5, 1\ns_cmp_lt_u32 s5, {SPIN_MAX * 64}\ns_cbranch_scc0 {label}_ok")
        A("s_sleep 1")
        A(f"s_branch {label}")
        A(f"{label}_ok:")

    def store_quad(val, addr, lo="0x11111111", hi="0x11111111", fl="sc1", addr2=None):
        for i in (1, 2, 3):
            A(f"v_mov_b32_dpp v{val + i}, v{val} quad_perm:[{i},{i},{i},{i}] {FULL}")
        A(f"s_mov_b32 exec_lo, {lo}\ns_mov_b32 exec_hi, {hi}")
        A(f"global_store_dwordx4 v{addr}, v[{val}:{val + 3}], s[38:39] {fl}")
        if addr2 is not None:
            A(f"global_store_dwordx4 v{addr2}, v[{val}:{val + 3}], s[38:39] {fl}")
        A("s_mov_b64 exec, -1")

    def roles():
        brot = 0 if local else 4
        A(f"s_add_u32 s61, s6, {brot}\ns_and_b32 s61, s61, 7")
        A("s_bfe_u32 s13, s7, 0x10003\ns_lshl_b32 s4, s61, 1\ns_add_u32 s13, s13, s4")
        A("s_and_b32 s14, s7, 7")
        A("s_mul_i32 s15, s6, 14\ns_add_u32 s15, s15, s7")

    def rowoff(dst, row, tmp, on=True):
        if dup is None or not on:
            A(f"s_lshl_b32 {dst}, {row}, 11")
        else:
            A(f"s_lshr_b32 {tmp}, {row}, 2\ns_lshl_b32 {tmp}, {tmp}, 14\ns_and_b32 {dst}, {row}, 3\ns_lshl_b32 {dst}, {dst}, 11\ns_add_u32 {dst}, {dst}, {tmp}")

    def mycopy(dst):
        if dup == "auto":
            A(f"s_mov_b32 {dst}, s49")
        else:
            A(f"s_lshr_b32 {dst}, s6, 2\ns_xor_b32 {dst}, {dst}, {dup}\ns_lshl_b32 {dst}, {dst}, 13")

    def p1slot(dst):
        A(f"s_lshl_b32 {dst}, s6, 5\ns_add_u32 {dst}, {dst}, s7\ns_mul_i32 {dst}, {dst}, {P1_STRIDE}\ns_add_u32 {dst}, {dst}, {WS_P1}")

    stamp_at(0)
    A("s_load_dwordx16 s[16:31], s[0:1], 0")
    A("s_load_dwordx8 s[32:39], s[0:1], 64")
    A("s_cmp_ge_u32 s2, 256")
    A("s_cbranch_scc1 L_end")
    A("v_lshrrev_b32 v1, 6, v0")
    A("v_and_b32 v0, 63, v0")
    A("v_readfirstlane_b32 s3, v1")
    A("s_and_b32 s6, s2, 7")
    A("s_lshr_b32 s7, s2, 3")
    A(f"s_add_u32 s60, s6, {qrot}\ns_and_b32 s60, s60, 7")
    A("v_lshlrev_b32 v9, 4, v0")
    A("s_cmp_eq_u32 s3, 8")
    A("s_cbranch_scc1 L_service")
    def wqaddr():
        A("v_lshrrev_b32 v10, 3, v0\nv_and_b32 v11, 7, v0\nv_lshlrev_b32 v10, 13, v10\nv_lshl_add_u32 v10, v11, 4, v10")
        A("s_and_b32 s4, s7, 3\ns_lshl_b32 s4, s4, 3\ns_add_u32 s4, s4, s3\ns_lshl_b32 s4, s4, 7\ns_add_u32 s4, s4, s60\ns_lshl_b32 s4, s4, 3")
        A("s_lshr_b32 s5, s7, 2\ns_add_u32 s4, s4, s5\ns_lshl_b32 s4, s4, 7")
        A("v_add_u32 v10, s4, v10\nv_add_u32 v11, 0x10000, v10")
        A(f"s_lshl_b32 s57, s3, 11\ns_add_u32 m0, s57, {L_W}")

    def clears(b=12):
        n0 = len(C)
        clears0()
        if b != 12:
            for i in range(n0, len(C)):
                for r in (17, 16, 15, 14, 13, 12):
                    C[i] = C[i].replace(f"v{r},", f"v{r - 12 + b},").replace(f"v{r}\n", f"v{r - 12 + b}\n")
                    if C[i].endswith(f"v{r}"):
                        C[i] = C[i][:-len(f"v{r}")] + f"v{r - 12 + b}"

    def clears1():
        for i in range(4):
            A(f"v_mov_b32 v{12 + i}, -1")
        roles()
        p1slot("s4")
        A("s_and_b32 s9, s7, 15\ns_mul_i32 s8, s6, 14\ns_add_u32 s8, s8, s9")
        rowoff("s5", "s8", "s48")
        A(f"s_lshr_b32 s8, s7, 4\ns_lshl_b32 s8, s8, 13\ns_add_u32 s5, s5, s8\ns_add_u32 s5, s5, {WS_P3 - 256}")
        A("v_mov_b32 v16, s4\nv_mov_b32 v17, s5\nv_cmp_gt_u32 vcc, 16, v0\ns_lshl_b32 s4, s3, 8")
        A("v_cndmask_b32 v16, v17, v16, vcc\nv_add3_u32 v16, v16, v9, s4")
        rowoff("s4", "s13", "s48")
        A(f"s_lshl_b32 s5, s14, 8\ns_add_u32 s4, s4, s5\ns_add_u32 s4, s4, {WS_P2 - 512}")
        A(f"v_bfe_u32 v17, v0, 4, 1\nv_mul_u32_u24 v17, {8192 - 256}, v17\nv_add3_u32 v17, v17, v9, s4\nv_cmp_gt_u32 vcc, 32, v0")
        A("s_cmp_lt_u32 s9, 14\ns_cselect_b32 s8, -1, 0xffff")
        A("v_cndmask_b32 v16, v17, v16, vcc")
        A("s_lshr_b32 s9, s7, 4\ns_cmp_lt_u32 s3, s9\ns_cselect_b32 s9, -1, 0")

    def clears0():
        if clrbal and dup is not None and dup3:
            return clears1()
        for i in range(4):
            A(f"v_mov_b32 v{12 + i}, -1")
        roles()
        p1slot("s4")
        rowoff("s5", "s15", "s8", dup3)
        A(f"s_add_u32 s5, s5, {WS_P3 - 256}")
        rowoff("s8", "s13", "s9")
        A(f"s_lshl_b32 s9, s14, 8\ns_add_u32 s8, s8, s9\ns_add_u32 s8, s8, {WS_P2 - 256}")
        A("s_cmp_ge_u32 s7, 16\ns_cselect_b32 s5, s8, s5\ns_cselect_b32 s8, 1, 8\ns_cselect_b32 s9, 32, 14")
        A("s_cmp_lt_u32 s7, s9\ns_cselect_b32 s8, s8, 0\ns_cmp_lt_u32 s3, s8\ns_cselect_b32 s8, -1, 0xffff")
        if dup is not None:
            A("s_cselect_b32 s9, 0xffff, 0")
            if not dup3:
                A("s_cmp_ge_u32 s7, 16\ns_cselect_b32 s9, s9, 0")
        A("v_mov_b32 v16, s4\nv_mov_b32 v17, s5\nv_cmp_gt_u32 vcc, 16, v0\ns_lshl_b32 s4, s3, 8")
        A("v_cndmask_b32 v16, v17, v16, vcc\nv_add3_u32 v16, v16, v9, s4")
        if dup is not None:
            A(f"v_lshrrev_b32 v17, 5, v0\nv_mul_u32_u24 v17, {8192 - 256}, v17\nv_add_u32 v16, v16, v17")

    def clearstore(b=12):
        if p1plain:
            A("s_mov_b64 exec, 0xffff")
            if p1plain != "none":
                A("global_store_dwordx4 v16, v[12:15], s[38:39]")
            A("s_andn2_b32 s8, s8, 0xffff\ns_cbranch_scc0 L_noc2")
        A("s_mov_b32 exec_lo, s8\ns_mov_b32 exec_hi, " + ("0" if dup is None else "s9"))
        A(f"global_store_dwordx4 v{b + 4}, v[{b}:{b + 3}], s[38:39] sc1")
        A("L_noc2:")
        A("s_mov_b64 exec, -1")

    def wqload():
        A("s_cmp_eq_u32 s3, 0")
        A("s_cbranch_scc0 L_nox")
        A(f"s_mov_b32 m0, {L_X}")
        A("global_load_lds_dwordx4 v9, s[16:17]")
        A(f"s_mov_b32 m0, {L_W}")
        A("s_nop 0")
        A("L_nox:")
        A(f"global_load_lds_dwordx4 v10, s[22:23]{wntf}")
        A("s_add_u32 m0, m0, 1024")
        A(f"global_load_lds_dwordx4 v11, s[22:23]{wntf}")
    if not kfirst:
        wqaddr()
    vKS = (1, 2, 3, 4)
    vKR = (5, 6, 7, 8)
    vV, vM, vML, vL = 9, 10, 11, 12
    PK = (13, 14)
    vAl = 15
    SEL = (16, 17, 18, 19)
    S = (20, 21, 22, 23)
    T = (24, 25, 26, 27)
    BB = 28
    vT2 = 38
    ACC = (40, 44)
    QF = 48
    KF = 64
    VR = [80 + 16 * i for i in range(VRING)]
    A("v_lshrrev_b32 v24, 4, v0")
    A("v_lshlrev_b32 v25, 6, v24")
    A(f"v_xor_b32 v{vKS[0]}, v{vV}, v25")
    for i in (1, 2, 3):
        A(f"v_xor_b32 v{vKS[i]}, {16 * i}, v{vKS[0]}")
    if split:
        A(f"v_add_u32 v{vKS[2]}, 6144, v{vKS[2]}\nv_add_u32 v{vKS[3]}, 6144, v{vKS[3]}\nv_add_u32 v39, 6144, v{vV}")
    A("s_lshl_b32 s10, s6, 23")
    ipat = {"wgtile": "wwwtttccccc", "contig": "tttwwwccccc", "global": "wwwcccccttt"}.get(inter, inter)
    assert sorted(ipat) == sorted("wwwtttccccc") and not split
    if crot:
        A(f"s_lshl_b32 s4, s7, {crot}\ns_lshr_b32 s5, s7, {5 - crot}\ns_or_b32 s4, s4, s5\ns_and_b32 s4, s4, 31")
    for k, reg in (("w", "s3"), ("c", "s4" if crot else "s7")):
        pos = [i for i, ch in enumerate(ipat) if ch == k]
        b = 0
        while b < len(pos):
            e = b
            while e + 1 < len(pos) and pos[e + 1] == pos[e] + 1:
                e += 1
            if b == 0 and e == len(pos) - 1:
                A(f"s_lshl_b32 s11, {reg}, {12 + pos[0]}")
            else:
                A(f"s_bfe_u32 s11, {reg}, {hex(((e - b + 1) << 16) | b)}\ns_lshl_b32 s11, s11, {12 + pos[b]}")
            A("s_add_u32 s10, s10, s11")
            b = e + 1
    tpos = [i for i, ch in enumerate(ipat) if ch == "t"]

    def toff(t):
        return sum(((t >> b) & 1) << (12 + p) for b, p in enumerate(tpos))
    if txor:
        assert tpos == list(range(tpos[0], tpos[0] + 3))
        A({"c": "s_and_b32 s11, s7, 7", "x": "s_mov_b32 s11, s6", "cx": "s_xor_b32 s11, s7, s6\ns_and_b32 s11, s11, 7",
           "ch": "s_lshr_b32 s11, s7, 2", "chx": "s_lshr_b32 s11, s7, 2\ns_xor_b32 s11, s11, s6"}[txor])
        A(f"s_lshl_b32 s11, s11, {12 + tpos[0]}\ns_add_u32 s10, s10, s11")
    A("s_mov_b32 s11, s10")
    A(f"s_mul_i32 s56, s3, {KRING * 4096}\ns_add_u32 s56, s56, {L_K}")
    A("s_mov_b32 s42, 0x4000000\ns_mov_b32 s43, 0x20000")
    if kfirst:
        A("s_mov_b32 m0, s56")
    if sclr == "first" and "noclear" not in xp:
        clears()
    A("s_waitcnt lgkmcnt(0)")
    stamp_at(12)
    if sclr == "first" and "noclear" not in xp:
        clearstore()
    if not kfirst:
        A("s_barrier")
        wqload()
        A("s_mov_b32 m0, s56")
    A("s_mov_b32 s40, s18\ns_and_b32 s41, s19, 0xffff")
    stamp_at(11)
    vm = VM()
    ids = {}
    m0k = [0]
    order = (order or {3: "K0 V0 K1 V1 K2 V2 V3 V4 K3 K4 K5 K6 K7 V5 V6 V7", 2: "K0 V0 K1 V1 K2 V2 V3 V4 K3 K4 K5 V5 K6 K7 V6 V7"}[NB]).split()
    seq = [(g[0], int(g[1]), u) for g in order for u in range(4)]
    NPRE = 4 * (KRING + VRING)

    def W(opid):
        w = vm.wait(opid)
        if w:
            A(w)

    def load(n):
        mat, t, u = seq[n]
        d = D if n < d2from else D2
        if D3 and n >= d3from:
            d = D3
        if n <= bpos:
            d = Dinit
        if dseq and n > bpos:
            d = int(dseq[n])
        if n in boost:
            W(ids[seq[n - d - 1]])
            A(f"s_bitcmp1_b32 s48, 0\ns_cbranch_scc1 L_bo{n}")
            A(f"s_waitcnt vmcnt({vm.n - ids[seq[n - d]]})")
            A(f"L_bo{n}:")
        elif adapt and n >= NPRE and n in adapt[2]:
            W(ids[seq[n - d - 1]])
            A(f"s_cbranch_vccnz L_ad{n}")
            A(f"s_waitcnt vmcnt({d - 1})")
            A(f"L_ad{n}:")
        elif n >= d:
            W(ids[seq[n - d]])
            if adapt and n >= NPRE and n in adapt[3]:
                A(f"s_cmp_le_u32 s9, {adapt[0]}")
                A(f"s_cbranch_scc0 L_ad{n}")
                A(f"s_waitcnt vmcnt({d - 2})")
                A(f"L_ad{n}:")
        if opos and n in opos and "now" not in xp:
            for i, p in enumerate(opos):
                if p == n:
                    A(f"global_load_dwordx4 v[164:167], v161, s[24:25] offset:{1024 * i}")
        if mat == "K":
            if m0k[0] != t:
                m0k[0] = t
                A(f"s_add_u32 m0, s56, {4096 * (t % KRING)}")
            A(f"buffer_load_dwordx4 v{vKS[u]}, s[40:43], s10 offen offset:{1024 * u}{ntf} lds")
            if u == 3 and t < 7:
                A(f"s_xor_b32 s10, s10, {hex(toff(t + 1) ^ toff(t))}")
        else:
            r = VR[t % VRING] + 4 * u
            A(f"buffer_load_dwordx4 v[{r}:{r + 3}], v{39 if (split and u >= 2) else vV}, s[44:47], s11 offen offset:{1024 * u}{ntf}")
            if u == 3 and t < 7:
                A(f"s_xor_b32 s11, s11, {hex(toff(t + 1) ^ toff(t))}")
        ids[seq[n]] = vm.issue()
        if n == qpos:
            A(f"v_mov_b32 v39, {L_F}\nds_write_b32 v39, v39 offset:8")
        if n == vpos and dup == "auto" and vpos:
            A("ds_write_b32 v39, v39 offset:20")

    def consts():
        A("v_and_b32 v24, 3, v0")
        A("v_mov_b32 v25, 0x0c0c0c0c")
        for k, (lo, e0) in enumerate(((0x0100, 0), (0x0100, 2), (0x0302, 0), (0x0302, 2))):
            A(f"v_mov_b32 v26, {hex(0x0c0c0000 | lo)}")
            A(f"v_mov_b32 v27, {hex((lo << 16) | 0x0c0c)}")
            A(f"v_cmp_eq_u32 vcc, {e0}, v24")
            A(f"v_cndmask_b32 v{SEL[k]}, v25, v26, vcc")
            A(f"v_cmp_eq_u32 vcc, {e0 + 1}, v24")
            A(f"v_cndmask_b32 v{SEL[k]}, v{SEL[k]}, v27, vcc")
        for z in (0, 1, 4, 5, 8, 9):
            A(f"v_mov_b32 v{BB + z}, 0")
        A(f"s_mov_b32 s12, {hex(LOG2E)}")
        if boost:
            A("s_getreg_b32 s48, hwreg(HW_REG_XCC_ID, 0, 4)")
        A("v_bfe_u32 v25, v0, 2, 2")
        A("v_lshrrev_b32 v26, 4, v0")
        A("v_lshlrev_b32 v27, 8, v25")
        A(f"v_lshl_add_u32 v{vT2}, v26, 4, v27")
        A("v_lshl_add_u32 v25, v24, 2, v25")
        A("v_and_b32 v27, 15, v0")
        A("v_xor_b32 v26, v26, v27")
        A("v_lshlrev_b32 v26, 4, v26")
        A("v_lshl_add_u32 v26, v25, 8, v26")
        for u in range(4):
            A(f"v_xor_b32 v{vKR[u]}, {64 * u}, v26")
            A(f"v_add_u32 v{vKR[u]}, s56, v{vKR[u]}")
        roles()
        A("s_lshl_b32 s58, s3, 12")
        if dlate:
            A(f"s_min_u32 s4, s15, 111\ns_lshl_b32 s4, s4, 3\ns_add_u32 s4, s4, s3\ns_lshl_b32 s4, s4, 11\nv_add_u32 v162, s4, v{vV}")
        A("s_lshl_b32 s4, s13, 3\ns_add_u32 s4, s4, s3\ns_lshl_b32 s4, s4, 15\ns_lshl_b32 s5, s14, 7\ns_add_u32 s4, s4, s5")
        A("v_lshrrev_b32 v160, 3, v0\nv_and_b32 v161, 7, v0\nv_lshlrev_b32 v160, 10, v160\nv_lshl_add_u32 v160, v161, 4, v160\nv_add_u32 v160, s4, v160")
        A(f"s_lshl_b32 s4, s61, 5\ns_add_u32 s4, s4, s7\ns_lshl_b32 s4, s4, 3\ns_add_u32 s4, s4, s3\ns_lshl_b32 s4, s4, 11\nv_add_u32 v161, s4, v{vV}")

    def late(pos="c"):
        ops = [i for i in range(4) if lp[i] == pos]
        if "now" in xp or not ops:
            return
        if not dlast:
            A("s_cmp_lt_u32 s7, 14")
            A(f"s_cbranch_scc0 L_late_b{pos}")
        for i in (ops if not dlast else ()):
            if i < 2:
                A(f"s_add_u32 m0, s57, {L_W + 32768 + 1024 * i}")
                A(f"global_load_lds_dwordx4 v162, s[32:33]{wntf}")
                if i == 0:
                    A("v_add_u32 v162, 1024, v162")
            else:
                A("s_mov_b64 exec, 1")
                A("global_load_dword v163, v162, s[32:33]")
        if not dlast:
            A(f"s_branch L_late_done{pos}")
        A(f"L_late_b{pos}:")
        A("s_cmp_ge_u32 s7, 16")
        A("s_cselect_b64 exec, -1, 1")
        for i in ops:
            A(f"s_add_u32 m0, s58, {L_W + 1024 * i}")
            A(f"global_load_lds_dwordx4 v160, s[24:25] offset:0{wntf}")
            vm.issue()
            if i < 3:
                A("v_add_u32 v160, 0x2000, v160")
        A(f"L_late_done{pos}:")
        A("s_mov_b64 exec, -1")
        m0k[0] = None

    T0 = 8 - NB
    SS = {t: tuple(range(144 + 4 * (t - T0), 148 + 4 * (t - T0))) for t in range(T0, 8)}
    PKS = {t: (128 + 2 * (t - T0), 129 + 2 * (t - T0)) for t in range(T0, 8)}

    def scores(t, S):
        W(ids[("K", t, 3)])
        k = KF
        for u in range(4):
            A(f"ds_read_b128 v[{k + 4 * u}:{k + 4 * u + 3}], v{vKR[u]} offset:{4096 * (t % KRING)}")
        for u in range(4):
            c = "0" if u == 0 else f"v[{S[0]}:{S[3]}]"
            A("s_waitcnt lgkmcnt(0)" if stamps else f"s_waitcnt lgkmcnt({3 - u})")
            A(f"v_mfma_f32_16x16x32_bf16 v[{S[0]}:{S[3]}], v[{k + 4 * u}:{k + 4 * u + 3}], v[{QF + 4 * u}:{QF + 4 * u + 3}], {c}")
        for rnd in range(2):
            A(f"v_cvt_pk_bf16_f32 v{T[0]}, v{S[0]}, v{S[1]}")
            A(f"v_cvt_pk_bf16_f32 v{T[1]}, v{S[2]}, v{S[3]}")
            A(f"v_lshlrev_b32 v{S[0]}, 16, v{T[0]}")
            A(f"v_and_b32 v{S[1]}, 0xffff0000, v{T[0]}")
            A(f"v_lshlrev_b32 v{S[2]}, 16, v{T[1]}")
            A(f"v_and_b32 v{S[3]}, 0xffff0000, v{T[1]}")
            if rnd == 0:
                for r in range(4):
                    A(f"v_mul_f32 v{S[r]}, {hex(SCALE)}, v{S[r]}")
        if t == 0:
            A(f"v_max_f32 v{vM}, v{S[0]}, v{S[1]}")
            A(f"v_max3_f32 v{vM}, v{vM}, v{S[2]}, v{S[3]}")
        else:
            A(f"v_max3_f32 v{vM}, v{vM}, v{S[0]}, v{S[1]}")
            A(f"v_max3_f32 v{vM}, v{vM}, v{S[2]}, v{S[3]}")

    def probs(tiles, first):
        if not first:
            A(f"v_mov_b32 v{vAl}, v{vML}")
        A(f"v_mul_f32 v{vML}, s12, v{vM}")
        if not first:
            A(f"v_sub_f32 v{vAl}, v{vAl}, v{vML}")
            A(f"v_exp_f32 v{vAl}, v{vAl}")
        for S, P in tiles:
            for r in range(4):
                A(f"v_fma_f32 v{S[r]}, v{S[r]}, s12, -v{vML}")
        for S, P in tiles:
            for r in range(4):
                A(f"v_exp_f32 v{S[r]}, v{S[r]}")
        if not first:
            for a in range(8):
                A(f"v_mul_f32 v{ACC[0] + a}, v{vAl}, v{ACC[0] + a}")
            A(f"v_mul_f32 v{vL}, v{vL}, v{vAl}")
        for i, (S, P) in enumerate(tiles):
            A(f"v_add_f32 v{T[0]}, v{S[0]}, v{S[1]}")
            A(f"v_add_f32 v{T[1]}, v{S[2]}, v{S[3]}")
            A(f"v_cvt_pk_bf16_f32 v{P[0]}, v{S[0]}, v{S[1]}")
            A(f"v_cvt_pk_bf16_f32 v{P[1]}, v{S[2]}, v{S[3]}")
            if first and i == 0:
                A(f"v_add_f32 v{vL}, v{T[0]}, v{T[1]}")
            else:
                A(f"v_add_f32 v{T[0]}, v{T[0]}, v{T[1]}")
                A(f"v_add_f32 v{vL}, v{vL}, v{T[0]}")

    def qk(t):
        scores(t, S)
        xrow(vM, T[0], "max")
        probs([(S, PK)], t == 0)

    def sc(t):
        scores(t, SS[t])
        if t == 7:
            xrow(vM, T[0], "max")
            A("v_bfe_u32 v26, v0, 2, 2\nv_lshlrev_b32 v26, 5, v26\ns_lshl_b32 s4, s3, 2\nv_add_u32 v27, s4, v26")
            A("s_mov_b64 exec, 0x1111")
            A(f"ds_write_b32 v27, v{vM} offset:{L_M}")
            A("s_mov_b64 exec, -1")

    def fin1(t):
        A("s_waitcnt lgkmcnt(0)")
        A("s_barrier")
        k0 = KF
        A(f"ds_read_b128 v[{k0}:{k0 + 3}], v26 offset:{L_M}")
        A(f"ds_read_b128 v[{k0 + 4}:{k0 + 7}], v26 offset:{L_M + 16}")
        A("s_waitcnt lgkmcnt(0)")
        A(f"v_max3_f32 v{vM}, v{k0}, v{k0 + 1}, v{k0 + 2}")
        A(f"v_max3_f32 v{vM}, v{vM}, v{k0 + 3}, v{k0 + 4}")
        A(f"v_max3_f32 v{vM}, v{vM}, v{k0 + 5}, v{k0 + 6}")
        A(f"v_max_f32 v{vM}, v{vM}, v{k0 + 7}")
        probs([(SS[t], PKS[t]) for t in range(T0, 8)], False)
        xrow(vL, T[0])
        A("s_mov_b64 exec, 0x1111")
        A(f"ds_write_b32 v27, v{vL} offset:{L_L}")
        A("s_mov_b64 exec, -1")

    def fin2(t):
        A("s_and_b32 s4, s3, 1\ns_lshl_b32 s4, s4, 6\nv_lshrrev_b32 v26, 5, v0\nv_lshl_add_u32 v26, v26, 5, s4")
        A(f"v_mov_b32 v27, {L_F}")
        A("s_waitcnt lgkmcnt(0)")
        A("s_barrier")
        A(f"ds_read_b128 v[64:67], v26 offset:{L_M}")
        A(f"ds_read_b128 v[68:71], v26 offset:{L_M + 16}")
        A(f"ds_read_b128 v[72:75], v26 offset:{L_L}")
        A(f"ds_read_b128 v[76:79], v26 offset:{L_L + 16}")
        A("ds_read2_b32 v[26:27], v27 offset0:4 offset1:1")
        A("s_waitcnt lgkmcnt(0)")
        A("v_max3_f32 v64, v64, v65, v66\nv_max3_f32 v64, v64, v67, v68\nv_max3_f32 v64, v64, v69, v70\nv_max_f32 v64, v64, v71")
        for i in range(4):
            A(f"v_add_f32 v{72 + i}, v{72 + i}, v{76 + i}")
        A("v_add_f32 v72, v72, v73\nv_add_f32 v74, v74, v75\nv_add_f32 v72, v72, v74")
        A("v_readfirstlane_b32 s62, v27")
        A("v_readfirstlane_b32 s49, v26")
        A("v_log_f32 v73, v72")
        A(f"v_rcp_f32 v{vAl}, v72")
        A(f"v_mul_f32 v64, s12, v64")
        A(f"v_add_f32 v{vL}, v64, v73")
        A(f"v_and_b32 v{vM}, 3, v0\nv_add_u32 v{vM}, 0x07060501, v{vM}")
        A("s_mov_b32 s50, 0x88888888\ns_mov_b32 s51, 0x88888888")

    def fin3(t):
        A(f"v_add_u32 v64, s56, v{vV}")
        A("v_and_b32 v65, 15, v0\nv_bfe_u32 v66, v0, 4, 1\nv_mul_u32_u24 v66, 272, v66\nv_add_u32 v65, v65, v66")
        A("v_lshrrev_b32 v66, 5, v0\nv_lshl_add_u32 v65, v66, 4, v65\ns_lshl_b32 s4, s3, 7")
        A(f"s_add_u32 s4, s4, {L_K}\nv_lshl_add_u32 v65, v65, 2, s4")
        A(f"v_add_u32 v66, {4 * KRING * 4096}, v65")
        p1slot("s4")
        A("s_lshl_b32 s5, s3, 8\ns_add_u32 s5, s5, s4\nv_lshl_add_u32 v67, v0, 2, s5")

    def prepB():
        A(f"s_lshl_b32 s4, s61, 5\nv_lshrrev_b32 v57, 3, v0\nv_add_u32 v57, s4, v57\nv_mul_u32_u24 v57, {P1_STRIDE}, v57")
        if b4:
            A("s_and_b32 s4, s13, 1\ns_lshl_b32 s4, s4, 1\ns_bfe_u32 s5, s3, 0x10001\ns_add_u32 s4, s4, s5")
            A(f"s_and_b32 s5, s3, 1\ns_lshl_b32 s5, s5, 3\ns_add_u32 s4, s4, s5\ns_lshl_b32 s4, s4, 7\ns_add_u32 s4, s4, {WS_P1}")
        else:
            A("s_and_b32 s4, s13, 1\ns_lshl_b32 s4, s4, 1\ns_lshr_b32 s5, s3, 2\ns_add_u32 s4, s4, s5")
            A(f"s_and_b32 s5, s3, 3\ns_lshl_b32 s5, s5, 2\ns_add_u32 s4, s4, s5\ns_lshl_b32 s4, s4, 7\ns_add_u32 s4, s4, {WS_P1}")
        A("v_and_b32 v58, 7, v0\nv_lshl_add_u32 v57, v58, 4, v57\nv_add_u32 v48, s4, v57")
        for pi in range(1, 4):
            A(f"v_add_u32 v{48 + pi}, {8 * pi * P1_STRIDE}, v48")
        A("s_mov_b32 s52, 0x04000c0c\ns_mov_b32 s53, 0x0706000c")
        A("s_mov_b32 s54, 0xffff0000\ns_mov_b32 s55, 0xffff0000\ns_mov_b32 s8, 0\ns_mov_b32 s9, -1")
        sigma(57, 58)
        A("v_bfe_u32 v58, v0, 2, 2\nv_lshl_add_u32 v57, v57, 3, v58\nv_lshlrev_b32 v57, 7, v57")
        A(f"v_and_b32 v58, 3, v0\nv_lshl_add_u32 v57, v58, 3, v57\ns_lshl_b32 s4, s3, {13 if b4 else 12}\nv_add_u32 v52, s4, v57")
        A("v_lshlrev_b32 v54, 2, v0\ns_lshl_b32 s4, s3, 8\nv_add_u32 v53, s4, v54")
        rowoff("s4", "s13", "s5")
        A(f"s_lshl_b32 s5, s14, 8\ns_add_u32 s4, s4, s5\ns_add_u32 s4, s4, {WS_P2}")
        if dup is not None:
            mycopy("s5")
            A("s_xor_b32 s5, s5, 0x2000\ns_add_u32 s4, s4, s5")
        A("v_add_u32 v55, s4, v54")
        A("v_xor_b32 v56, 0x2000, v55")

    def fin4(t):
        if bprep:
            prepB()

    def pv(t, last=False):
        v = VR[t % VRING]
        P = PKS.get(t, PK)

        def perm(i):
            b = BB + 2 + 4 * (i & 1)
            A(f"v_perm_b32 v{b}, v{P[i >> 1]}, v{P[i >> 1]}, v{SEL[2 * (i & 1)]}")
            A(f"v_perm_b32 v{b + 1}, v{P[i >> 1]}, v{P[i >> 1]}, v{SEL[2 * (i & 1) + 1]}")
        perm(0)
        perm(1)
        if not last:
            W(ids[("V", t, 3)])
        for i in range(4):
            if last:
                W(ids[("V", t, i)])
            b = BB + 2 + 4 * (i & 1)
            for h in range(2):
                c = "0" if (t == 0 and i == 0) else f"v[{ACC[h]}:{ACC[h] + 3}]"
                bb = b if h == 0 else b - 2
                A(f"v_mfma_f32_16x16x32_bf16 v[{ACC[h]}:{ACC[h] + 3}], v[{v + 4 * i}:{v + 4 * i + 3}], v[{bb}:{bb + 3}], {c}")
            if i < 2:
                perm(i + 2)

    for n in range(NPRE):
        load(n)
        if n == 3:
            A("s_mov_b32 s44, s20\ns_and_b32 s45, s21, 0xffff\ns_mov_b32 s46, 0x4000000\ns_mov_b32 s47, 0x20000")
            if sclr == "after" and "noclear" not in xp and clrpos == 3 and not wqfirst:
                clears()
                clearstore()
            if kfirst:
                wqaddr()
                wqload()
                m0k[0] = None
            if sclr == "after" and "noclear" not in xp and clrpos == 3 and wqfirst:
                clears()
                clearstore()
            if kfirst:
                A("s_barrier")
        if n == clrpos and clrpos > 3 and sclr == "after" and "noclear" not in xp:
            clears(72)
            clearstore(72)
        if n == max(Dinit - 1, 3):
            consts()
        if n == bpos:
            stamp_at(13)
            A(f"v_mov_b32 v24, {L_F}\nv_mov_b32 v25, 1\ns_mov_b64 exec, 1\nds_add_u32 v24, v25 offset:12\ns_mov_b64 exec, -1")
        if n == qpos and False:
            A(f"v_mov_b32 v24, {L_F}\nds_write_b32 v24, v24 offset:8")
    stamp_at(1)
    ldswait("L_waitq", 0)
    if adapt:
        lo, hi, lsites, tsites = adapt
        A("v_readfirstlane_b32 s9, v25")
        A(f"v_cmp_lt_u32 vcc, {hi}, v25")
        if stamps:
            A("s_mov_b32 s88, s9")
    stamp_at(2)
    for u in range(4):
        A(f"ds_read_b128 v[{QF + 4 * u}:{QF + 4 * u + 3}], v{vT2} offset:{L_Q + 64 * u}")
    A("s_waitcnt lgkmcnt(0)")
    blocks = []
    for t in range(T0):
        blocks += [(qk, t, ("K", t, 3)), (pv, t, ("V", t, 3))]
    for t in range(T0, 8):
        blocks += [(sc, t, ("K", t, 3))]
    blocks += [(fin1, 7, ("K", 7, 3)), (fin2, 7, ("K", 7, 3)), (fin3, 7, ("K", 7, 3)), (fin4, 7, ("K", 7, 3))]
    for t in range(T0, 7):
        blocks += [(pv, t, ("V", t, 3))]
    bi = 0
    for n in range(NPRE, len(seq)):
        mat, t, u = seq[n]
        needb = {"K": 2 * (t - KRING) + 1, "V": 2 * (t - VRING) + 2}[mat]
        while bi < needb:
            blocks[bi][0](blocks[bi][1])
            bi += 1
        load(n)
        late(n)
        if n < len(seq) - 1 and bi < len(blocks) and blocks[bi][2] in ids and ids[blocks[bi][2]] <= vm.done:
            blocks[bi][0](blocks[bi][1])
            bi += 1
    while bi < len(blocks) and blocks[bi][0] is not pv:
        blocks[bi][0](blocks[bi][1])
        bi += 1
    if bar1c:
        A("s_barrier")
        late()
    else:
        late()
        A("s_barrier")
    while bi < len(blocks):
        blocks[bi][0](blocks[bi][1])
        bi += 1
    stamp_at(3)
    pv(7, last=True)
    stamp_at(4)
    A(f"ds_write_b128 v64, v[{ACC[0]}:{ACC[0] + 3}]")
    A(f"ds_write_b128 v64, v[{ACC[1]}:{ACC[1] + 3}] offset:1088")
    A("s_waitcnt lgkmcnt(0)")
    A("s_barrier")
    R0 = 72
    for i in range(8):
        A(f"ds_read_b32 v{R0 + i}, v{65 + (i >> 2)} offset:{KRING * 4096 * (i & 3)}")
    A("s_cmp_eq_u32 s62, 1")
    A("s_waitcnt lgkmcnt(0)")
    for i in range(2):
        A(f"v_pk_add_f32 v[{R0 + 2 * i}:{R0 + 2 * i + 1}], v[{R0 + 2 * i}:{R0 + 2 * i + 1}], v[{R0 + 4 + 2 * i}:{R0 + 5 + 2 * i}]")
    A(f"v_pk_add_f32 v[{R0}:{R0 + 1}], v[{R0}:{R0 + 1}], v[{R0 + 2}:{R0 + 3}]")
    A(f"v_add_f32 v{R0}, v{R0}, v{R0 + 1}")
    A(f"v_mul_f32 v{R0}, v{R0}, v{vAl}")
    A(f"v_mov_b32_dpp v{R0 + 1}, v{R0} quad_perm:[3,3,3,3] {FULL}")
    A(f"v_perm_b32 v{R0}, v{R0}, v{R0 + 1}, v{vM}")
    A(f"v_cndmask_b32 v{R0}, v{R0}, v{vL}, s[50:51]")
    A("s_cbranch_scc0 L_pubfar")
    A(f"global_store_dword v67, v{R0}, s[38:39]")
    A("L_published:")
    for _ in range(pad2):
        A("s_nop 0")
    stamp_at(5)
    A("s_cmp_lt_u32 s7, 14")
    A("s_cbranch_scc1 L_ffn")
    A("s_cmp_lt_u32 s7, 16")
    A("s_cbranch_scc1 L_final")
    if not bprep:
        prepB()
    NKK = 2 if b4 else 1
    WB = 80
    D0 = 120
    TP = 152
    WW = 160
    AA = 112
    AC = 32
    loads = [f"global_load_dwordx4 v[{D0 + 16 * kk + 4 * pi}:{D0 + 16 * kk + 4 * pi + 3}], v{48 + pi}, s[38:39] offset:{512 * kk} sc1" for pi in range(4) for kk in range(NKK)]

    def bweights():
        A(f"s_waitcnt vmcnt({4 * NKK})")
        if b4:
            A("s_barrier")
        for kk in range(NKK):
            for tau in range(4):
                for t in range(2):
                    r = WB + 16 * kk + 4 * tau + 2 * t
                    if kk == 1 and tau == 3 and t == 0:
                        A("s_waitcnt lgkmcnt(0)")
                    A(f"ds_read_b64_tr_b16 v[{r}:{r + 1}], v52 offset:{L_W + 4096 * kk + 512 * t + 32 * tau}")
    A("s_barrier")
    if b4:
        A("s_cmp_lt_u32 s3, 4")
        A("s_cbranch_scc1 L_bgo")
        A("s_waitcnt vmcnt(0)")
        A("s_barrier")
        A("s_branch L_bdone")
        A("L_bgo:")
    stamp_at(8)
    poll("L_poll1", loads, range(D0, D0 + 16 * NKK), 31, between=bweights)
    stamp_at(6)
    pm1 = [f"v_perm_b32 v{TP + 4 * kk + pi}, v{D0 + 16 * kk + 4 * pi + 2}, v{D0 + 16 * kk + 4 * pi + 1}, s52" for kk in range(NKK) for pi in range(4)]
    A(f"v_max3_f32 v16, v{D0 + 3}, v{D0 + 7}, v{D0 + 11}\nv_max_f32 v16, v16, v{D0 + 15}")
    A(pm1.pop(0))
    A(pm1.pop(0))
    A(f"v_max_f32_dpp v16, v16, v16 row_ror:8 {FULL}")
    A("v_mov_b32 v17, v16")
    A(pm1.pop(0))
    A(pm1.pop(0))
    A("v_permlane16_swap_b32 v16, v17")
    A("v_max_f32 v16, v16, v17")
    A("v_mov_b32 v17, v16")
    for x in pm1[:2]:
        A(x)
    A("v_permlane32_swap_b32 v16, v17")
    A("v_max_f32 v16, v16, v17")
    for pi in range(4):
        A(f"v_sub_f32 v{WW + pi}, v{D0 + 4 * pi + 3}, v16")
    for x in pm1[2:]:
        A(x)
    for pi in range(4):
        A(f"v_exp_f32 v{WW + pi}, v{WW + pi}")
        for kk in range(NKK):
            A(f"v_perm_b32 v{D0 + 16 * kk + 4 * pi + 3}, v{TP + 4 * kk + pi}, v{D0 + 16 * kk + 4 * pi}, s53")
    A(f"v_pk_add_f32 v[16:17], v[{WW}:{WW + 1}], v[{WW + 2}:{WW + 3}]")
    for kk in range(NKK):
        for hlf in range(2):
            r = D0 + 16 * kk + 2 * hlf
            A(f"v_pk_mul_f32 v[{r}:{r + 1}], v[{WW}:{WW + 1}], v[{r}:{r + 1}] op_sel_hi:[0,1]")
    A("v_add_f32 v16, v16, v17")
    for pi in range(1, 4):
        w = f"v[{WW + (pi & 2)}:{WW + 1 + (pi & 2)}]"
        sel = "op_sel:[1,0,0] op_sel_hi:[1,1,1]" if pi & 1 else "op_sel_hi:[0,1,1]"
        for kk in range(NKK):
            for hlf in range(2):
                r = D0 + 16 * kk + 2 * hlf
                A(f"v_pk_fma_f32 v[{r}:{r + 1}], {w}, v[{r + 4 * pi}:{r + 4 * pi + 1}], v[{r}:{r + 1}] {sel}")
        if pi == 1:
            A(f"v_add_f32_dpp v16, v16, v16 row_ror:8 {FULL}")
    A("v_mov_b32 v17, v16")
    for kk in range(NKK):
        d = D0 + 16 * kk
        A(f"v_permlane32_swap_b32 v{d}, v{d + 1}\nv_permlane32_swap_b32 v{d + 2}, v{d + 3}")
    A("v_permlane32_swap_b32 v16, v17")
    A("v_add_f32 v16, v16, v17")
    A("v_mov_b32 v17, v16")
    for kk in range(NKK):
        d = D0 + 16 * kk
        A(f"v_add_f32 v{d}, v{d}, v{d + 1}\nv_add_f32 v{d + 2}, v{d + 2}, v{d + 3}")
    A("v_permlane16_swap_b32 v16, v17")
    A("v_add_f32 v16, v16, v17")
    for kk in range(NKK):
        d = D0 + 16 * kk
        A(f"v_permlane16_swap_b32 v{d}, v{d + 2}")
    A("v_rcp_f32 v16, v16")
    for kk in range(NKK):
        d = D0 + 16 * kk
        A(f"v_add_f32 v{d}, v{d}, v{d + 2}")
    for kk in range(NKK):
        d = D0 + 16 * kk
        A(f"v_add_f32_dpp v{d}, v{d}, v{d} row_ror:8 {FULL}")
    for kk in range(NKK):
        d = D0 + 16 * kk
        A(f"v_mul_f32 v{d}, v{d}, v16")
    for kk in range(NKK):
        d = D0 + 16 * kk
        A(f"v_mov_b32_dpp v{d + 1}, v{d} quad_perm:[1,0,3,2] {FULL}")
    for kk in range(NKK):
        d = D0 + 16 * kk
        A(f"v_cvt_pk_bf16_f32 v{d}, v{d}, v{d + 1}")
    for kk in range(NKK):
        for e in range(4):
            A(f"v_mov_b32_dpp v{AA + 4 * kk + e}, v{D0 + 16 * kk} row_newbcast:{2 * e} {FULL}")
    A("s_waitcnt lgkmcnt(0)")
    for kk in range(NKK):
        for tau in range(4):
            c = "0" if kk == 0 else f"v[{AC + 4 * tau}:{AC + 4 * tau + 3}]"
            b = WB + 16 * kk + 4 * tau
            A(f"v_mfma_f32_16x16x32_bf16 v[{AC + 4 * tau}:{AC + 4 * tau + 3}], v[{AA + 4 * kk}:{AA + 4 * kk + 3}], v[{b}:{b + 3}], {c}")
    A(f"v_cndmask_b32 v{AC}, v{AC}, v{AC + 4}, s[54:55]")
    A(f"v_cndmask_b32 v{AC + 8}, v{AC + 8}, v{AC + 12}, s[54:55]")
    A(f"v_cndmask_b32 v{AC}, v{AC}, v{AC + 8}, s[8:9]")
    A(f"ds_write_b32 v53, v{AC} offset:{L_B}")
    A("s_cmp_eq_u32 s3, 0")
    A("s_waitcnt lgkmcnt(0)")
    A("s_barrier")
    A("s_cbranch_scc0 L_bdone")
    NW = 8 // NKK
    for i in range(NW):
        A(f"ds_read_b32 v{120 + i}, v54 offset:{L_B + 256 * i}")
    A("s_waitcnt lgkmcnt(0)")
    if NW == 8:
        for i in range(2):
            A(f"v_pk_add_f32 v[{120 + 2 * i}:{121 + 2 * i}], v[{120 + 2 * i}:{121 + 2 * i}], v[{124 + 2 * i}:{125 + 2 * i}]")
    A("v_pk_add_f32 v[120:121], v[120:121], v[122:123]")
    A("v_add_f32 v120, v120, v121")
    store_quad(120, 55, fl=st2, addr2=None if dup is None else 56)
    A("L_bdone:")
    if wb:
        A("s_cmp_eq_u32 s3, 1\ns_cbranch_scc0 L_nowb\ns_cmp_eq_u32 s7, 16\ns_cbranch_scc0 L_nowb")
        A("buffer_wbl2 sc1")
        A("L_nowb:")
    stamp_at(7)
    stamp_store()
    A("s_endpgm")
    A("L_pubfar:")
    A("s_nop 0")
    store_quad(R0, 67)
    A("s_branch L_published")
    A("L_ffn:")
    vCol = 65
    A("v_and_b32 v17, 7, v0\nv_bfe_u32 v16, v0, 3, 2\nv_lshl_add_u32 v16, v17, 2, v16")
    A("v_and_b32 v18, 32, v0\nv_add_u32 v16, v16, v18")
    A(f"s_lshl_b32 s4, s3, 6\nv_add_u32 v{vCol}, s4, v16")
    A(f"v_lshlrev_b32 v29, 1, v{vCol}")
    A(f"ds_read_u16_d16_hi v64, v29 offset:{L_X}")
    A(f"s_lshl_b32 s4, s3, 8\ns_add_u32 s4, s4, {WS_P2}")
    if dup is None:
        A("v_lshrrev_b32 v18, 3, v0\nv_lshlrev_b32 v19, 12, v18\nv_lshl_add_u32 v16, v17, 4, v19\nv_add_u32 v20, s4, v16")
    else:
        mycopy("s5")
        A("s_add_u32 s4, s4, s5")
        A("v_lshrrev_b32 v18, 4, v0\nv_lshlrev_b32 v19, 14, v18\nv_bfe_u32 v18, v0, 3, 1\nv_lshl_add_u32 v19, v18, 12, v19\nv_lshl_add_u32 v16, v17, 4, v19\nv_add_u32 v20, s4, v16")
    A("v_lshrrev_b32 v18, 4, v0\nv_and_b32 v17, 15, v0")
    rowoff("s4", "s15", "s5", dup3)
    A(f"s_add_u32 s4, s4, {WS_P3}\ns_lshl_b32 s5, s3, {9 if c4 else 8}\ns_and_b32 s5, s5, 0x7ff\ns_add_u32 s4, s4, s5")
    if dup is not None and dup3:
        mycopy("s5")
        A("s_xor_b32 s5, s5, 0x2000\ns_add_u32 s4, s4, s5")
    A(f"v_lshl_add_u32 v22, v0, {3 if c4 else 2}, s4")
    if dup is not None and dup3:
        A("v_xor_b32 v21, 0x2000, v22")
    A("s_lshl_b32 s5, s3, 4\nv_mov_b32 v23, s5")
    A("v_and_b32 v24, 7, v0\nv_lshlrev_b32 v24, 4, v24")
    A("s_mov_b32 s63, 0x42800000\ns_mov_b32 s54, 0xffff0000\ns_mov_b32 s55, 0xffff0000")
    A("v_mov_b32 v67, 0x3b000000\nv_mov_b32 v68, 0x3727c5ac\nv_mov_b32 v69, 0xbdd2d3e8\nv_mov_b32 v70, 0xc0135761")
    for i in range(4):
        A(f"v_mov_b32 v{72 + i}, 0x3f803f80")
    A("s_lshl_b32 s4, s3, 7\nv_lshl_add_u32 v25, v18, 4, s4")
    A("v_lshlrev_b32 v27, 2, v0\ns_lshl_b32 s5, s3, 8\nv_add_u32 v26, s5, v27")
    A("v_lshl_add_u32 v28, v0, 1, s4")
    if cfast:
        A("v_bfe_u32 v16, v0, 2, 2\nv_lshlrev_b32 v16, 2, v16\nv_bfe_u32 v19, v0, 4, 1\nv_lshl_add_u32 v16, v19, 1, v16")
        A("v_and_b32 v19, 32, v0\nv_add_u32 v16, v16, v19\nv_lshlrev_b32 v16, 5, v16")
    else:
        A("v_bfe_u32 v16, v0, 2, 2\nv_lshl_add_u32 v16, v18, 3, v16\nv_lshlrev_b32 v16, 5, v16")
    A("v_and_b32 v17, 3, v0\nv_lshl_add_u32 v16, v17, 3, v16\nv_add_u32 v16, s57, v16")
    GW = 88
    DW = 104

    DW2 = 144

    def dreads():
        if c4:
            A("s_lshl_b32 s5, s3, 8\nv_lshl_add_u32 v28, v0, 2, s5")
            A("v_and_b32 v28, 0x3ff, v28")
            for r in range(16):
                if r == 14:
                    A("s_waitcnt lgkmcnt(0)")
                A(f"ds_read_b32 v{DW + r}, v28 offset:{L_W + 32768 + 1024 * r}")
            A("s_waitcnt lgkmcnt(0)")
            for r in range(16):
                A(f"v_and_b32 v{40 + r}, 0xffff0000, v{DW + r}")
                A(f"v_lshlrev_b32 v{DW + r}, 16, v{DW + r}")
            return
        for r in range(16):
            if r == 14:
                A("s_waitcnt lgkmcnt(0)")
            A(f"ds_read_u16_d16_hi v{DW + r}, v28 offset:{L_W + 32768 + 1024 * r}")
    if dsplit and not dlast:
        if dlate:
            A("s_waitcnt vmcnt(1)")
        A("s_barrier")
        dreads()
        A("s_waitcnt lgkmcnt(0)")
    A("s_barrier")
    stamp_at(11)

    def cweights():
        for mat in range(2):
            for kap in range(2):
                for t in range(2):
                    r = GW + 8 * mat + 4 * kap + 2 * t
                    A(f"ds_read_b64_tr_b16 v[{r}:{r + 1}], v16 offset:{L_W + 16384 * mat + ((32 * kap + 512 * t) if cfast else (1024 * kap + 128 * t))}")
        if cfast or csd:
            stamp_at(13)
            return
        colsums()

    def colsums():
        A("s_waitcnt lgkmcnt(0)")
        A(f"v_mfma_f32_16x16x32_bf16 v[140:143], v[72:75], v[{GW}:{GW + 3}], 0")
        A(f"v_mfma_f32_16x16x32_bf16 v[144:147], v[72:75], v[{GW + 8}:{GW + 11}], 0")
        A(f"v_mfma_f32_16x16x32_bf16 v[140:143], v[72:75], v[{GW + 4}:{GW + 7}], v[140:143]")
        A(f"v_mfma_f32_16x16x32_bf16 v[144:147], v[72:75], v[{GW + 12}:{GW + 15}], v[144:147]")
        if not (cfast or csd):
            A("v_cndmask_b32 v66, v140, v144, s[54:55]")
            stamp_at(13)
    loads = [f"global_load_dwordx4 v[{120 + 4 * i}:{123 + 4 * i}], v20, s[38:39] offset:{2048 * (i >> 1) + 128 * (i & 1)} {ld2}" for i in range(4)]
    poll("L_poll2", loads, range(120, 136), 31, between=cweights)
    stamp_at(6)
    if cfast or csd:
        n0 = len(C)
        colsums()
        cs = C[n0:]
        del C[n0:]
        A(cs[0])
    for e in range(4):
        if cfast or csd:
            A(cs[1 + e])
        A(f"v_pk_add_f32 v[{120 + 2 * e}:{121 + 2 * e}], v[{120 + 2 * e}:{121 + 2 * e}], v[{128 + 2 * e}:{129 + 2 * e}]")
    for e in range(4):
        A(f"v_permlane32_swap_b32 v{120 + e}, v{124 + e}")
    A("v_pk_add_f32 v[120:121], v[120:121], v[124:125]\nv_pk_add_f32 v[122:123], v[122:123], v[126:127]")
    A("v_permlane16_swap_b32 v120, v122\nv_permlane16_swap_b32 v121, v123")
    A("v_pk_add_f32 v[122:123], v[120:121], v[122:123]")
    A("v_add_f32_dpp v120, v122, v122 row_ror:8 row_mask:0xf bank_mask:0x3")
    A("v_add_f32_dpp v120, v123, v123 row_ror:8 row_mask:0xf bank_mask:0xc")
    A("v_add_f32 v120, v120, v64")
    if cfast:
        A(f"v_mov_b32_dpp v122, v120 quad_perm:[1,0,3,2] {FULL}")
        A("v_cndmask_b32 v66, v140, v144, s[54:55]")
        A("v_cvt_pk_bf16_f32 v121, v120, v122")
        A("v_lshlrev_b32 v120, 16, v121")
        for e in range(8):
            A(f"v_mov_b32_dpp v{124 + e}, v121 row_newbcast:{2 * e} {FULL}")
            if e == 0:
                A("v_readfirstlane_b32 s4, v120")
    else:
        A("v_cvt_pk_bf16_f32 v121, v120, v120")
        A(f"ds_write_b16 v29, v121 offset:{L_HN}")
        A("v_lshlrev_b32 v120, 16, v121")
        if csd:
            A("v_cndmask_b32 v66, v140, v144, s[54:55]")
        A("v_readfirstlane_b32 s4, v120")
        A("s_waitcnt lgkmcnt(0)")
        A(f"ds_read_b128 v[124:127], v25 offset:{L_HN}")
        A(f"ds_read_b128 v[128:131], v25 offset:{L_HN + 64}")
    A("v_subrev_f32 v148, s4, v120")
    A("v_mov_b32 v150, s4")
    A("v_mul_f32 v149, v148, v148")
    steps = [f"{m} {FULL}" for m in ("row_shr:1", "row_shr:2", "row_shr:4", "row_shr:8")] + ["row_bcast:15 row_mask:0xa bank_mask:0xf", "row_bcast:31 row_mask:0xc bank_mask:0xf"]
    mf = [f"v_mfma_f32_16x16x32_bf16 v[132:135], v[124:127], v[{GW}:{GW + 3}], 0",
          f"v_mfma_f32_16x16x32_bf16 v[136:139], v[124:127], v[{GW + 8}:{GW + 11}], 0",
          f"v_mfma_f32_16x16x32_bf16 v[132:135], v[128:131], v[{GW + 4}:{GW + 7}], v[132:135]",
          f"v_mfma_f32_16x16x32_bf16 v[136:139], v[128:131], v[{GW + 12}:{GW + 15}], v[136:139]"]
    for k, m in enumerate(steps):
        A(f"v_add_f32_dpp v148, v148, v148 {m}")
        A(f"v_add_f32_dpp v149, v149, v149 {m}")
        if k == (0 if cfast else 1):
            if not cfast:
                A("s_waitcnt lgkmcnt(0)")
            stamp_at(8)
            A(mf[0])
            A(mf[1])
        if k == (1 if cfast else 2):
            A(mf[2])
            A(mf[3])
    A("s_mov_b32 exec_lo, 0\ns_mov_b32 exec_hi, 0x80000000")
    A(f"ds_write_b96 v23, v[148:150] offset:{L_H}")
    A("s_mov_b32 exec_lo, -1\ns_mov_b32 exec_hi, 0")
    A("v_cndmask_b32 v66, v132, v136, s[54:55]")
    A("s_mov_b64 exec, -1")
    A(f"ds_write_b32 v26, v66 offset:{L_B}")
    A("s_waitcnt lgkmcnt(0)")
    stamp_at(9)
    if c4:
        A("s_cmp_lt_u32 s3, 4")
    A("s_barrier")
    if c4:
        A("s_cbranch_scc0 L_cdone")
    A(f"ds_read_b96 v[124:126], v24 offset:{L_H}")
    for i in range(8):
        A(f"ds_read_b32 v{128 + i}, v27 offset:{L_B + 256 * i}")
    nd = 0
    if dlast:
        nd = 6
        for r in range(nd):
            A(f"ds_read_u16_d16_hi v{DW + r}, v28 offset:{L_W + 32768 + 1024 * r}")
    A("s_waitcnt lgkmcnt(0)" if stamps else f"s_waitcnt lgkmcnt({8 + nd})")
    stamp_at(10)
    x8 = ("quad_perm:[1,0,3,2]", "quad_perm:[2,3,0,1]", "row_half_mirror")
    A("v_fma_f32 v127, v126, s63, v124")
    A("v_add_f32 v124, v124, v124")
    A("s_waitcnt lgkmcnt(0)" if stamps else f"s_waitcnt lgkmcnt({4 + nd})")
    A(f"v_add_f32_dpp v127, v127, v127 {x8[0]} {FULL}")
    A("v_pk_add_f32 v[128:129], v[128:129], v[130:131]")
    A("s_waitcnt lgkmcnt(0)" if stamps else f"s_waitcnt lgkmcnt({nd})")
    if dlast:
        for r in range(nd, 15):
            A(f"ds_read_u16_d16_hi v{DW + r}, v28 offset:{L_W + 32768 + 1024 * r}")
    A(f"v_add_f32_dpp v127, v127, v127 {x8[1]} {FULL}")
    A("v_pk_add_f32 v[132:133], v[132:133], v[134:135]")
    A("v_pk_add_f32 v[128:129], v[128:129], v[132:133]")
    A(f"v_add_f32_dpp v127, v127, v127 {x8[2]} {FULL}")
    A("v_add_f32 v120, v128, v129")
    A("v_add_f32 v121, v128, v129")
    A("v_mul_f32 v127, 0x3b000000, v127")
    A("v_sub_f32 v126, v127, v126")
    A("v_permlane32_swap_b32 v120, v121")
    A("v_fma_f32 v124, v126, s63, -v124")
    A("v_fma_f32 v125, v126, v124, v125")
    A("v_fma_f32 v122, -v127, v121, v120")
    A("v_fma_f32 v121, -v127, v121, v120")
    A(f"v_add_f32_dpp v125, v125, v125 {x8[0]} {FULL}")
    A("v_mov_b32 v120, v122")
    A(f"v_add_f32_dpp v125, v125, v125 {x8[1]} {FULL}")
    A("v_permlane16_swap_b32 v120, v121")
    A(f"v_add_f32_dpp v125, v125, v125 {x8[2]} {FULL}")
    if dlast:
        A("s_waitcnt lgkmcnt(0)")
        A(f"ds_read_u16_d16_hi v{DW + 15}, v28 offset:{L_W + 32768 + 1024 * 15}")
    A("v_fma_f32 v125, v125, v67, v68")
    A("v_rsq_f32 v125, v125")
    A("v_mul_f32 v120, v120, v125")
    A("v_mul_f32 v121, v121, v125")
    A("v_mul_f32 v122, v120, v120")
    A("v_mul_f32 v121, v120, v121")
    A("v_fma_f32 v122, v122, v69, v70")
    A("v_mul_f32 v122, v122, v120")
    A("v_exp_f32 v122, v122")
    A("v_add_f32 v122, 1.0, v122")
    A("v_rcp_f32 v122, v122")
    A("v_mul_f32 v120, v121, v122")
    if dlast:
        A("s_waitcnt lgkmcnt(0)")
    if c4:
        for r in range(16):
            op = "mul" if r < 2 else "fmac"
            A(f"v_{op}_f32_dpp v{124 + 2 * (r & 1)}, v120, v{DW + r} row_newbcast:{r} {FULL}")
            A(f"v_{op}_f32_dpp v{125 + 2 * (r & 1)}, v120, v{40 + r} row_newbcast:{r} {FULL}")
        A("v_pk_add_f32 v[124:125], v[124:125], v[126:127]")
        A(f"v_mov_b32_dpp v126, v124 quad_perm:[1,1,3,3] {FULL}")
        A(f"v_mov_b32_dpp v127, v125 quad_perm:[1,1,3,3] {FULL}")
        A("s_mov_b32 exec_lo, 0x55555555\ns_mov_b32 exec_hi, 0x55555555")
        A("global_store_dwordx4 v22, v[124:127], s[38:39] sc1")
        if dup is not None and dup3:
            A("global_store_dwordx4 v21, v[124:127], s[38:39] sc1")
        A("s_mov_b64 exec, -1")
    else:
        for r in range(16):
            op = "mul" if r < 4 else "fmac"
            A(f"v_{op}_f32_dpp v{124 + (r & 3)}, v120, v{DW + r} row_newbcast:{r} {FULL}")
        A("v_pk_add_f32 v[124:125], v[124:125], v[126:127]")
        A("v_add_f32 v124, v124, v125")
        store_quad(124, 22, fl=st3, addr2=21 if (dup is not None and dup3) else None)
    A("L_cdone:")
    stamp_at(7)
    stamp_store()
    A("s_endpgm")
    A("L_final:")
    A("s_barrier")
    A("s_sub_u32 s15, s7, 14\ns_lshl_b32 s4, s6, 1\ns_add_u32 s15, s15, s4")
    A("v_and_b32 v16, 7, v0\nv_lshrrev_b32 v17, 3, v0\nv_lshlrev_b32 v17, 11, v17\nv_lshl_add_u32 v17, v16, 4, v17")
    A("v_and_b32 v22, 31, v0\ns_lshl_b32 s4, s15, 6\nv_lshl_add_u32 v18, v22, 1, s4")
    A("v_lshlrev_b32 v22, 2, v22")
    sigma(23, 24)
    A("v_lshl_add_u32 v23, v16, 2, v23\nv_lshl_add_u32 v19, v23, 1, s4")
    A(f"ds_read_u16_d16_hi v19, v19 offset:{L_X}")
    A("s_lshl_b32 s4, s3, 7\nv_lshl_add_u32 v23, v23, 2, s4")
    if dup is None:
        A(f"s_lshl_b32 s4, s3, 15\ns_add_u32 s4, s4, {WS_P3}")
        A("s_cmp_eq_u32 s3, 7")
        A(f"s_cselect_b32 s4, {WS_P2}, s4")
        A("s_lshl_b32 s5, s15, 7\ns_add_u32 s4, s4, s5")
        A("v_add_u32 v20, s4, v17\nv_add_u32 v21, 0x4000, v20")
    else:
        A("v_lshrrev_b32 v24, 5, v0\nv_lshlrev_b32 v24, 13, v24")
        mycopy("s8")
        A(f"s_lshl_b32 s4, s3, {16 if dup3 else 15}\ns_add_u32 s4, s4, {WS_P3}")
        A("s_cmp_eq_u32 s3, 7")
        A(f"s_cselect_b32 s4, {WS_P2}, s4")
        if dup3:
            A("s_add_u32 s4, s4, s8\ns_mov_b32 s9, 0x8000")
        else:
            A("s_cselect_b32 s8, s8, 0\ns_movk_i32 s9, 0x4000\ns_cselect_b32 s9, 0x8000, s9\ns_cselect_b32 s5, -1, 0\ns_add_u32 s4, s4, s8\nv_and_b32 v24, s5, v24")
        A("s_lshl_b32 s5, s15, 7\ns_add_u32 s4, s4, s5")
        A("v_add3_u32 v20, v17, v24, s4\nv_add_u32 v21, s9, v20")
    loads = [f"global_load_dwordx4 v[{120 + 4 * i}:{123 + 4 * i}], v{20 + i}, s[38:39] {ld3}" for i in range(2)]
    if dsleep is not None:
        A("s_cmp_eq_u32 s3, 7")
        A("s_cbranch_scc1 L_dgo")
        A("s_barrier")
        A(f"s_sleep {dsleep}")
        A("L_dgo:")
    poll("L_poll3", loads, range(120, 128), 16)
    if dsleep is not None:
        A("s_cmp_eq_u32 s3, 7")
        A("s_cbranch_scc0 L_dgo2")
        A("s_barrier")
        A("L_dgo2:")
    stamp_at(6)
    for e in range(4):
        A(f"v_add_f32 v{120 + e}, v{120 + e}, v{124 + e}")
    scatter4(120)
    A(f"v_add_f32_dpp v120, v120, v120 row_ror:8 {FULL}")
    A("s_cmp_eq_u32 s3, 7")
    A("s_cbranch_scc0 L_dnoh")
    A("s_waitcnt lgkmcnt(0)")
    A("v_add_f32 v120, v120, v19")
    rbf(120)
    A("L_dnoh:")
    A("s_mov_b32 exec_lo, 0x00ff00ff\ns_mov_b32 exec_hi, 0x00ff00ff")
    A(f"ds_write_b32 v23, v120 offset:{L_B}")
    A("s_mov_b64 exec, -1")
    A("s_cmp_eq_u32 s3, 0")
    A("s_waitcnt lgkmcnt(0)")
    A("s_barrier")
    A("s_cbranch_scc0 L_ddone")
    for i in range(8):
        A(f"ds_read_b32 v{120 + i}, v22 offset:{L_B + 128 * i}")
    A("s_waitcnt lgkmcnt(0)")
    for i in range(2):
        A(f"v_pk_add_f32 v[{120 + 2 * i}:{121 + 2 * i}], v[{120 + 2 * i}:{121 + 2 * i}], v[{124 + 2 * i}:{125 + 2 * i}]")
    A("v_pk_add_f32 v[120:121], v[120:121], v[122:123]")
    A("v_add_f32 v120, v120, v121")
    if perturb:
        import struct
        kind, val = perturb
        h = hex(struct.unpack("<I", struct.pack("<f", val))[0])
        if kind == "add": A(f"v_add_f32 v120, {h}, v120")
        if kind == "mul": A(f"v_mul_f32 v120, {h}, v120")
        if kind == "one":
            A("s_cmp_eq_u32 s15, 0\ns_cselect_b32 s4, 1, 0\ns_mov_b32 s5, 0\ns_mov_b64 exec, s[4:5]")
            A(f"v_add_f32 v120, {h}, v120\ns_mov_b64 exec, -1")
    A(f"v_mov_b32_dpp v121, v120 quad_perm:[1,0,3,2] {FULL}")
    A("v_cvt_pk_bf16_f32 v120, v120, v121")
    A("s_mov_b64 exec, 0x55555555")
    A("global_store_dword v18, v120, s[34:35]" + (" " + outfl if outfl else ""))
    stamp_at(7)
    if enc:
        a, b, mult = enc
        A("s_waitcnt lgkmcnt(0)")
        if a == "fix":
            A(f"s_mov_b32 s78, s64\ns_mov_b32 s4, {mult}")
        else:
            A(f"s_sub_u32 s4, s{64 + 2 * a}, s{64 + 2 * b}\ns_mul_i32 s4, s4, {mult}\ns_min_u32 s4, s4, 40000")
        A("L_enc:\ns_memrealtime s[8:9]\ns_waitcnt lgkmcnt(0)\ns_sub_u32 s5, s8, s78\ns_cmp_lt_u32 s5, s4\ns_cbranch_scc1 L_enc")
    A("L_ddone:")
    stamp_at(7)
    stamp_store()
    A("s_endpgm")

    for _ in range(pad3):
        A("s_nop 0")
    A("L_service:")
    A("s_setprio 3")
    A(f"v_mov_b32 v98, {L_F}\nv_mov_b32 v99, 0")
    A("ds_write_b32 v98, v99")
    A("ds_write_b32 v98, v99 offset:8")
    A("ds_write_b32 v98, v99 offset:12")
    A("ds_write_b32 v98, v99 offset:20")
    if not qearly:
        A("s_waitcnt lgkmcnt(0)")
        A("s_barrier")
    for i in range(4):
        A(f"v_mov_b32 v{100 + i}, -1")
    roles()
    p1slot("s4")
    A("v_add_u32 v104, s4, v9")
    A("s_cmp_eq_u32 s7, 0")
    A("s_waitcnt lgkmcnt(0)")
    if "svcoff" in xp:
        A("s_barrier\ns_branch L_svcbar" if qearly else "s_branch L_svcbar")
    A("s_cbranch_scc0 L_qcleared")
    A(f"s_lshl_b32 s10, s60, 13\nv_add_u32 v3, s10, v9\nv_add_u32 v8, 0x1000, v3")
    for i in range(8):
        A(f"global_store_dwordx4 v{3 if i < 4 else 8}, v[100:103], s[38:39] offset:{1024 * (i & 3)} sc1")
    A(f"s_lshl_b32 s10, s60, 7\ns_add_u32 s10, s10, {WS_F}\nv_add_u32 v3, s10, v9")
    A(f"s_lshl_b32 s10, s6, 7\ns_add_u32 s10, s10, {WS_G}\nv_add_u32 v8, s10, v9")
    A("s_mov_b64 exec, 0xff")
    A("global_store_dwordx4 v3, v[100:103], s[38:39] sc1")
    A("global_store_dwordx4 v8, v[100:103], s[38:39] sc1")
    if adapt or rankpre:
        A(f"global_store_dwordx4 v8, v[100:103], s[38:39] offset:{WS_R - WS_G - 4096 + 4096 - 0 if WS_R - WS_G < 4096 else 0} sc1" if False else f"v_add_u32 v8, {WS_R - WS_G}, v8\nglobal_store_dwordx4 v8, v[100:103], s[38:39] sc1")
    if dup == "auto" and vpos:
        A(f"v_add_u32 v8, {WS_V - WS_R}, v8\nglobal_store_dwordx4 v8, v[100:103], s[38:39] sc1")
    A("s_mov_b64 exec, -1")
    A("L_qcleared:")
    if qearly:
        A("s_barrier")
    nyoung = 0
    if "noclear" not in xp and sclr is None:
        A("global_store_dwordx4 v104, v[100:103], s[38:39] sc1")
        A("global_store_dwordx4 v104, v[100:103], s[38:39] offset:1024 sc1")
        nyoung += 2
        A("s_cmp_lt_u32 s7, 14")
        A("s_cbranch_scc0 L_noclr3")
        A(f"s_lshl_b32 s4, s15, 11\ns_add_u32 s4, s4, {WS_P3}\nv_add_u32 v105, s4, v9")
        A("global_store_dwordx4 v105, v[100:103], s[38:39] sc1")
        A("global_store_dwordx4 v105, v[100:103], s[38:39] offset:1024 sc1")
        A("L_noclr3:")
        A("s_cmp_ge_u32 s7, 16")
        A("s_cbranch_scc0 L_noclr2")
        A(f"s_lshl_b32 s4, s13, 11\ns_lshl_b32 s5, s14, 8\ns_add_u32 s4, s4, s5\ns_add_u32 s4, s4, {WS_P2}\nv_add_u32 v105, s4, v9")
        A("s_mov_b64 exec, 0xffff")
        A("global_store_dwordx4 v105, v[100:103], s[38:39] sc1")
        A("s_mov_b64 exec, -1")
        A("L_noclr2:")
    stamp_at(1)
    A("v_lshlrev_b32 v96, 5, v0")
    A("s_cmp_eq_u32 s7, 0")
    A("s_cbranch_scc0 L_noqflag")
    A("s_lshl_b32 s4, s60, 5\nv_mov_b32 v104, s4\nv_mov_b32 v105, 1")
    A(f"s_waitcnt vmcnt({4 if ('noclear' not in xp and sclr is None) else 0})")
    A("s_mov_b64 exec, 1")
    A("global_store_dword v104, v105, s[36:37] sc1")
    A("s_mov_b64 exec, -1")
    A("L_noqflag:")
    ldswait("L_waitwq", 12, 8)

    def firstlook():
        A("s_mov_b64 exec, 0xff")
        A("global_load_dword v97, v96, s[36:37] sc1")
        A("s_mov_b64 exec, -1")
    if qearly:
        firstlook()
    A(f"ds_read_b128 v[4:7], v9 offset:{L_X}")
    A("s_waitcnt lgkmcnt(0)")
    stamp_at(2)
    X = list(range(8, 16))
    X[1] = 3
    for i in range(4):
        A(f"v_lshlrev_b32 v{X[2 * i]}, 16, v{4 + i}")
        A(f"v_and_b32 v{X[2 * i + 1]}, 0xffff0000, v{4 + i}")
    ln_stats(X, 16, 17, 18, 19, 20, list(range(22, 30)))
    ln_apply(X, 16, 17, 18, list(range(22, 30)))
    for i in range(4):
        A(f"v_cvt_pk_bf16_f32 v{4 + i}, v{X[2 * i]}, v{X[2 * i + 1]}")
    A(f"ds_write_b128 v9, v[4:7] offset:{L_HN}")
    A(f"s_and_b32 s4, s7, {KS - 1}\ns_lshl_b32 s4, s4, {10 - KL}\nv_lshrrev_b32 v17, 4, v0\nv_lshl_add_u32 v16, v17, 4, s4")
    A("v_bfe_u32 v18, v0, 2, 2\nv_lshl_add_u32 v17, v17, 3, v18\nv_lshlrev_b32 v17, 7, v17\nv_and_b32 v18, 3, v0\nv_lshl_add_u32 v17, v18, 3, v17")
    A("s_waitcnt lgkmcnt(0)")
    NK = NQ // 4
    for k in range(NK):
        A(f"ds_read_b128 v[{32 + 4 * k}:{35 + 4 * k}], v16 offset:{L_HN + 64 * k}")
    stamp_at(3)
    if not qearly:
        firstlook()
    for k in range(NK):
        A("s_waitcnt lgkmcnt(0)")
        b = 64 + 16 * (k & 1)
        for tau in range(4):
            for t in range(2):
                r = b + 4 * tau + 2 * t
                A(f"ds_read_b64_tr_b16 v[{r}:{r + 1}], v17 offset:{L_W + 4096 * k + 512 * t + 32 * tau}")
        if k > 0:
            bp = 64 + 16 * ((k - 1) & 1)
            for tau in range(4):
                c = "0" if k == 1 else f"v[{112 + 4 * tau}:{115 + 4 * tau}]"
                A(f"v_mfma_f32_16x16x32_bf16 v[{112 + 4 * tau}:{115 + 4 * tau}], v[{28 + 4 * k}:{31 + 4 * k}], v[{bp + 4 * tau}:{bp + 4 * tau + 3}], {c}")
    A("s_waitcnt lgkmcnt(0)")
    for tau in range(4):
        A(f"v_mfma_f32_16x16x32_bf16 v[{112 + 4 * tau}:{115 + 4 * tau}], v[{28 + 4 * NK}:{31 + 4 * NK}], v[{80 + 4 * tau}:{83 + 4 * tau}], v[{112 + 4 * tau}:{115 + 4 * tau}]")
    A(f"s_lshl_b32 s4, s60, {11 + KL}\ns_and_b32 s5, s7, {KS - 1}\ns_lshl_b32 s5, s5, 11\ns_add_u32 s4, s4, s5\ns_lshr_b32 s5, s7, {KL}\ns_lshl_b32 s5, s5, 8\ns_add_u32 s4, s4, s5")
    A("v_lshl_add_u32 v17, v0, 2, s4")
    for tau in range(1, 4):
        A(f"v_mov_b32_dpp v112, v{112 + 4 * tau} quad_perm:[0,1,2,3] row_mask:{hex(1 << tau)} bank_mask:0xf")
    for i in (1, 2, 3):
        A(f"v_mov_b32_dpp v{112 + i}, v112 quad_perm:[{i},{i},{i},{i}] {FULL}")
    A("L_qdone:")
    A(f"s_lshl_b32 s4, s60, 5\ns_add_u32 s4, s4, s7\ns_lshl_b32 s4, s4, 2\ns_add_u32 s4, s4, {WS_F}\nv_mov_b32 v18, s4")
    A(f"s_lshl_b32 s4, s6, {11 + KL}\nv_add_u32 v19, s4, v9\nv_add_u32 v20, 0x1000, v19")
    A("s_getreg_b32 s62, hwreg(HW_REG_XCC_ID, 0, 4)\nv_mov_b32 v21, s62")
    A("s_lshl_b32 s4, 1, s60\ns_lshl_b32 s5, 1, s6\ns_or_b32 s4, s4, s5")
    if adapt:
        A(f"s_add_u32 s5, s7, {qrot}\ns_and_b32 s5, s5, 7\ns_lshl_b32 s5, 1, s5\ns_or_b32 s4, s4, s5")
    A("s_mov_b32 s5, 0")
    stamp_at(4)
    if "svc1" in xp: A("s_branch L_svcbar2")
    A("L_pollf:")
    A("s_waitcnt vmcnt(0) lgkmcnt(0)")
    A("v_cmp_ne_u32 vcc, 1, v97")
    A("s_and_b32 s57, vcc_lo, s4")
    A("s_cbranch_scc0 L_pollf_ok")
    A(f"s_add_u32 s5, s5, 1\ns_cmp_lt_u32 s5, {SPIN_MAX}\ns_cbranch_scc0 L_pollf_ok")
    A("s_sleep 8")
    A("s_mov_b64 exec, 0xff")
    A("global_load_dword v97, v96, s[36:37] sc1")
    A("s_mov_b64 exec, -1")
    A("s_branch L_pollf")
    A("L_pollf_ok:")
    if KS == 2:
        A("s_cmp_lt_u32 s7, 16")
        A("s_cbranch_scc0 L_noqpub")
    A("s_mov_b32 exec_lo, 0x11111111\ns_mov_b32 exec_hi, 0x11111111")
    A("global_store_dwordx4 v17, v[112:115], s[38:39] sc1")
    A("L_noqpub:")
    A("s_mov_b64 exec, 1")
    A("global_store_dword v18, v21, s[38:39] sc1")
    A("s_mov_b64 exec, -1")
    stamp_at(5)
    if "svc2" in xp: A("s_branch L_svcbar2")
    if warm:
        if warm == "one":
            A("s_cmp_eq_u32 s7, 1")
            A("s_cbranch_scc0 L_nowarm")
        A("s_getpc_b64 s[48:49]")
        A("L_pc:")
        A(f"s_sub_u32 s48, s48, L_pc-{NAME}_kernel\ns_subb_u32 s49, s49, 0")
        A(f"s_mov_b32 s4, L_codeend-{NAME}_kernel-16\nv_mov_b32 v2, v9\ns_mov_b32 s5, 0")
        A("L_warm:")
        A("v_min_u32 v3, s4, v2")
        A("global_load_dwordx4 v[128:131], v3, s[48:49]")
        A("v_add_u32 v2, 1024, v2\ns_add_u32 s5, s5, 1024\ns_cmp_lt_u32 s5, s4\ns_cbranch_scc1 L_warm")
        A("L_nowarm:")
    if adapt:
        A(f"s_and_b32 s4, s7, 7\ns_lshl_b32 s4, s4, 7\ns_add_u32 s4, s4, {WS_R}\nv_mov_b32 v26, s4\nv_mov_b32 v27, 1")
    ldswait("L_waitpos", 8)
    if adapt:
        A("s_mov_b64 exec, 1")
        A("global_atomic_add v28, v26, v27, s[38:39] sc0 sc1")
        A("s_mov_b64 exec, -1")
    poll("L_pollq", [f"global_load_dwordx4 v[{32 + 4 * i}:{35 + 4 * i}], v{19 + (i >> 2)}, s[38:39] offset:{1024 * (i & 3)} sc1" for i in range(2 * KS)],
         range(32, 32 + 8 * KS), 16, slp=qsleep)
    stamp_at(6)
    for e in range(8):
        A(f"v_add_f32 v{32 + e}, v{32 + e}, v{40 + e}")
        if KS == 4:
            A(f"v_add_f32 v{48 + e}, v{48 + e}, v{56 + e}")
    if KS == 4:
        for e in range(8):
            A(f"v_add_f32 v{32 + e}, v{32 + e}, v{48 + e}")
    for e in range(4):
        A(f"v_cvt_pk_bf16_f32 v{40 + e}, v{32 + 2 * e}, v{33 + 2 * e}")
    A("v_lshlrev_b32 v16, 3, v0")
    A(f"ds_write_b64 v16, v[40:41] offset:{L_Q}")
    A(f"ds_write_b64 v16, v[42:43] offset:{L_Q + 512}")
    if adapt:
        A("v_readfirstlane_b32 s4, v28")
        A("s_add_u32 s4, s4, 2")
        A("v_mov_b32 v99, s4")
    else:
        A("v_mov_b32 v99, 1")
    A("s_waitcnt lgkmcnt(0)")
    A("ds_write_b32 v98, v99")
    stamp_at(7)
    if "svc4" in xp: A("s_branch L_svcbar2")
    A("s_mov_b32 s5, 0")
    A("L_pollf2:")
    A("s_mov_b64 exec, 0xff")
    A("global_load_dword v97, v96, s[36:37] sc1")
    A("s_waitcnt vmcnt(0)")
    A("v_cmp_ne_u32 vcc, 1, v97")
    A("s_mov_b64 exec, -1")
    A("s_cbranch_vccz L_pollf2_ok")
    A(f"s_add_u32 s5, s5, 1\ns_cmp_lt_u32 s5, {SPIN_MAX}\ns_cbranch_scc1 L_pollf2")
    A("L_pollf2_ok:")
    stamp_at(8)
    A(f"v_add_u32 v19, {WS_F}, v9")
    poll("L_pollall", ["global_load_dwordx4 v[32:35], v19, s[38:39] sc1"], range(32, 36), 16, slp=16)
    stamp_at(9)
    A("v_xor_b32 v32, v32, v21\nv_xor_b32 v33, v33, v21\nv_xor_b32 v34, v34, v21\nv_xor_b32 v35, v35, v21")
    A("v_or_b32 v32, v32, v33\nv_or3_b32 v32, v32, v34, v35")
    A("v_cmp_ne_u32 vcc, 0, v32")
    A("s_lshl_b32 s4, s60, 3\ns_lshr_b64 s[4:5], vcc, s4\ns_and_b32 s4, s4, 0xff")
    A("s_cselect_b32 s4, 0, 1" if local and "far" not in xp else "s_mov_b32 s4, 0")
    A("L_svcend:")
    A("s_mov_b32 s63, s4")
    if dup == "auto":
        A(f"s_andn2_b32 s8, s7, 4\ns_lshl_b32 s9, s6, 5\ns_add_u32 s8, s8, s9\ns_lshl_b32 s8, s8, 11\ns_and_b32 s9, s7, 4\ns_lshl_b32 s9, s9, 8")
        A(f"s_add_u32 s8, s8, s9\ns_add_u32 s8, s8, {WS_P1}\ns_add_u32 s12, s38, s8\ns_addc_u32 s13, s39, 0\ns_mov_b32 s10, 0")
        A("s_waitcnt lgkmcnt(0)")
        for t in range(ntr):
            A("s_mov_b32 s8, 0\ns_mov_b32 s9, 0")
            o0, o1 = 128 * t, 128 * t + 8192
            A(f"s_load_dword s9, s[12:13], {o1}\ns_load_dword s8, s[12:13], {o0}" if t & 1 else f"s_load_dword s8, s[12:13], {o0}\ns_load_dword s9, s[12:13], {o1}")
            A("s_waitcnt lgkmcnt(1)")
            A("s_sub_u32 s11, s9, s8")
            A("s_waitcnt lgkmcnt(0)")
            A("s_add_u32 s10, s10, s11")
        if vpos:
            A("s_cmp_eq_u32 s63, 1")
            A("s_cbranch_scc0 L_novote")
            A(f"s_lshl_b32 s8, s6, 7\ns_add_u32 s8, s8, {WS_V}\nv_and_b32 v16, 31, v0\nv_lshl_add_u32 v16, v16, 2, s8")
            A("s_lshl_b32 s9, s7, 2\ns_add_u32 s8, s8, s9\nv_mov_b32 v17, s8\ns_add_u32 s10, s10, 16\nv_mov_b32 v18, s10")
            A("s_mov_b64 exec, 1\nglobal_store_dword v17, v18, s[38:39]\ns_mov_b64 exec, -1")
            ldswait("L_waitv", 20)
            A("global_load_dword v18, v16, s[38:39] sc1")
            A("s_waitcnt vmcnt(0)")
            A("v_cmp_lt_i32 vcc, 16, v18")
            A("s_bcnt1_i32_b64 s10, vcc")
            A("v_cmp_gt_u32 vcc, 16, v18")
            A("s_bcnt1_i32_b64 s8, vcc")
            A("s_sub_u32 s10, s10, s8")
            A("L_novote:")
        A("s_cmp_lt_i32 s10, 0\ns_cselect_b32 s10, 0x2000, 0\nv_mov_b32 v99, s10")
        A("ds_write_b32 v98, v99 offset:16")
        roles()
    A("v_mov_b32 v99, s63")
    A("ds_write_b32 v98, v99 offset:4")
    A(f"s_lshl_b32 s4, s6, 7\ns_add_u32 s4, s4, {WS_G}\nv_and_b32 v16, 31, v0\nv_lshl_add_u32 v16, v16, 2, s4")
    A("s_lshl_b32 s5, s7, 2\ns_add_u32 s4, s4, s5\nv_mov_b32 v17, s4\nv_mov_b32 v18, 0")
    A(f"s_and_b32 s4, s7, {0 if rankpre else 15}\ns_mul_i32 s4, s4, {32 * 3584}\ns_mul_i32 s5, s6, 448\ns_andn2_b32 s5, s5, 127\ns_add_u32 s4, s4, s5")
    A("v_lshrrev_b32 v21, 5, v0\nv_mul_u32_u24 v21, 3584, v21\nv_and_b32 v22, 31, v0\nv_lshl_add_u32 v21, v22, 4, v21\nv_add_u32 v21, s4, v21")
    if rankpre:
        A(f"s_lshl_b32 s4, s6, 7\ns_add_u32 s4, s4, {WS_R}\nv_mov_b32 v26, s4\nv_mov_b32 v27, 1")
        A("s_lshl_b32 s4, s7, 1\ns_sub_u32 s4, s4, 1\nv_mov_b32 v28, 0")
    A("v_lshrrev_b32 v22, 1, v0\nv_mul_u32_u24 v22, 3584, v22\nv_and_b32 v23, 1, v0\nv_lshl_add_u32 v22, v23, 4, v22\ns_lshl_b32 s4, s15, 5\nv_add_u32 v22, s4, v22")
    A("s_lshl_b32 s4, s15, 14\nv_add_u32 v23, s4, v9")
    A("s_waitcnt lgkmcnt(0)")
    A("s_barrier")
    A("s_barrier")
    A("s_barrier")
    assert gate and dsplit

    def wloop(label, n, lds, body):
        A(f"s_mov_b32 s5, {n}")
        if lds is not None:
            A(f"s_mov_b32 m0, {lds}")
        A(f"{label}:")
        body()
        A(f"s_sub_u32 s5, s5, 1\ns_cmp_lg_u32 s5, 0\ns_cbranch_scc1 {label}")

    def b_pre():
        A("global_load_dwordx4 v[32:35], v21, s[28:29]")
        A("global_load_dwordx4 v[32:35], v21, s[30:31]")
        A("v_add_u32 v21, 7168, v21")

    def b_down():
        A(f"global_load_lds_dwordx4 v23, s[32:33]{wntf}")
        A("v_add_u32 v23, 1024, v23\ns_add_u32 m0, m0, 1024")

    def b_gu():
        A("global_load_lds_dwordx4 v22, s[28:29]")
        A("s_add_u32 m0, m0, 16384")
        A("global_load_lds_dwordx4 v22, s[30:31]")
        A(f"v_add_u32 v22, {32 * 3584}, v22\ns_sub_u32 m0, m0, {16384 - 1024}")

    def only(cond, label, body):
        A(cond)
        A(f"s_cbranch_scc0 {label}")
        body()
        A(f"{label}:")
    after_pre = 0
    for k, step in enumerate(pm):
        if step in "SgG" and not gsync:
            continue
        if step in "PDU" and "now" in xp:
            continue
        if step == "D" and dlate and not dlast:
            continue
        if step == "S":
            def sig():
                A("s_mov_b64 exec, 1\nglobal_store_dword v17, v18, s[38:39]")
                if rankpre:
                    only("s_cmp_lt_u32 s7, 16", "L_norank", lambda: A("global_atomic_add v28, v26, v27, s[38:39] sc0 sc1"))
                A("s_mov_b64 exec, -1")
            only("s_cmp_eq_u32 s63, 1", "L_nosig", sig)
        elif step in "12":
            A("s_barrier")

        elif step == "g":
            only("s_cmp_eq_u32 s63, 1", f"L_nog{k}", lambda: A("global_load_dword v19, v16, s[38:39] sc1"))
        elif step == "G":
            def gwait():
                A("s_mov_b32 s5, 0")
                A("L_pollg:")
                A("s_waitcnt vmcnt(0)")
                A("v_cmp_eq_u32 vcc, -1, v19")
                if gmiss:
                    A(f"s_bcnt1_i32_b32 s4, vcc_lo\ns_cmp_le_u32 s4, {gmiss}\ns_cbranch_scc1 L_gok")
                else:
                    A("s_cbranch_vccz L_gok")
                A(f"s_add_u32 s5, s5, 1\ns_cmp_lt_u32 s5, {SPIN_MAX}\ns_cbranch_scc0 L_gok")
                A(f"s_sleep {gsleep}")
                A("global_load_dword v19, v16, s[38:39] sc1")
                A("s_branch L_pollg")
            only("s_cmp_eq_u32 s63, 1", "L_gok", gwait)
            stamp_at(10)
        elif step == "P":
            if pref and not rankpre:
                only("s_cmp_lt_u32 s7, 16", "L_nopre", lambda: wloop("L_wpre", 16, None, b_pre))
            if pref and rankpre:
                def pre():
                    A("s_waitcnt vmcnt(0)")
                    A("v_readfirstlane_b32 s8, v28")
                    A("s_add_u32 s8, s8, 1\ns_mul_i32 s9, s8, 3\ns_lshl_b32 s4, s8, 1\ns_add_u32 s4, s4, 8")
                    A("s_cmp_lt_u32 s8, 8\ns_cselect_b32 s9, s9, s4\ns_cselect_b32 s5, 24, 16")
                    A("s_cmp_lt_u32 s8, 12\ns_cselect_b32 s5, s5, 0")
                    A("s_lshl_b32 s4, s7, 1\ns_cmp_eq_u32 s63, 1\ns_cselect_b32 s9, s9, s4\ns_cselect_b32 s5, s5, 16")
                    A(f"s_mul_i32 s9, s9, {16 * 3584}\nv_add_u32 v21, s9, v21")
                    A("s_cmp_eq_u32 s5, 0\ns_cbranch_scc1 L_nopre")
                    A("L_wpre:")
                    b_pre()
                    A("s_sub_u32 s5, s5, 1\ns_cmp_lg_u32 s5, 0\ns_cbranch_scc1 L_wpre")
                    A("s_waitcnt vmcnt(30)")
                only("s_cmp_lt_u32 s7, 16", "L_nopre", pre)
            after_pre = 0
        elif step == "D":
            A("s_waitcnt vmcnt(46)")
            only("s_cmp_lt_u32 s7, 14", "L_nodown", lambda: wloop("L_wdown", 16, L_W + 32768, b_down))
            after_pre = 16
        elif step == "w":
            A(f"s_waitcnt vmcnt({after_pre})")
            stamp_at(11)
        elif step == "z":
            A(f"s_sleep {cdelay}")
        elif step == "U":
            only("s_cmp_lt_u32 s7, 14", "L_nogu", lambda: wloop("L_wgu", 16, L_W, b_gu))
    only("s_cmp_lt_u32 s7, 14", "L_wdone", lambda: A("s_waitcnt vmcnt(16)\ns_barrier" if dlast else "s_barrier" if dlate else "s_waitcnt vmcnt(32)\ns_barrier"))
    A("s_waitcnt vmcnt(0)")
    stamp_at(12)
    if stamps:
        A("s_waitcnt lgkmcnt(0)")
        for i in range(16):
            A(f"v_writelane_b32 v4, s{64 + 2 * i}, {i}")
        A(f"v_lshlrev_b32 v5, 2, v0\nds_write_b32 v5, v4 offset:{L_G}\ns_waitcnt lgkmcnt(0)")
    A("s_barrier")
    A("s_endpgm")
    A("L_svcbar:")
    A("L_svcbar2:")
    A("v_mov_b32 v99, 1")
    A("ds_write_b32 v98, v99")
    A("s_mov_b32 s4, 0")
    A("s_branch L_svcend")
    A("L_end:")
    A("s_endpgm")
    A("L_codeend:")

    if jitter is not None:
        import random
        rnd = random.Random(jitter)
        C2 = []
        k = 0
        for blk in C:
            for ln in blk.split("\n"):
                if ln.startswith(("s_barrier", "global_store", "global_atomic")) and rnd.random() < 0.7:
                    k += 1
                    C2.append(f"s_cselect_b32 s91, 1, 0\ns_mul_i32 s90, s2, {rnd.randrange(3, 99, 2)}\ns_add_u32 s90, s90, s3\ns_mul_i32 s90, s90, {rnd.randrange(1001, 99999, 2)}")
                    C2.append(f"s_lshr_b32 s90, s90, 5\ns_and_b32 s90, s90, {rnd.choice((3, 7, 15, 63))}\ns_cmp_eq_u32 s90, 1\ns_cbranch_scc0 L_jit{k}\ns_sleep {rnd.choice((2, 10, 40, 120))}\nL_jit{k}:\ns_cmp_eq_u32 s91, 1")
                C2.append(ln)
        C = C2
    body = fix(C)
    out = HEADER
    out += f"; @launch grid=(256,1,1) block=(576,1,1) lds={LDS_BYTES}\n"
    out += DOC.lstrip("\n")
    out += '.amdgcn_target "amdgcn-amd-amdhsa--gfx950"\n.text\n'
    out += f".globl {NAME}_kernel\n.p2align 8\n.type {NAME}_kernel,@function\n{NAME}_kernel:\n"
    out += "\n".join(("" if l.endswith(":") else "    ") + l for l in body) + "\n"
    out += f""".section .rodata,"a"
.p2align 6
.amdhsa_kernel {NAME}_kernel
  .amdhsa_next_free_vgpr 168
  .amdhsa_next_free_sgpr 96
  .amdhsa_accum_offset 168
  .amdhsa_group_segment_fixed_size 0
  .amdhsa_kernarg_size 96
  .amdhsa_user_sgpr_count 2
  .amdhsa_user_sgpr_kernarg_segment_ptr 1
  .amdhsa_system_sgpr_workgroup_id_x 1
  .amdhsa_float_denorm_mode_32 3
.end_amdhsa_kernel
"""
    return out


if __name__ == "__main__":
    cfg = eval("dict(" + (sys.argv[2] if len(sys.argv) > 2 else "") + ")")
    open(sys.argv[1], "w").write(gen(**cfg))
```

```python
import sys
from asmlib import fix, VM

NAME = "sequential_preLN__gqa_block_cached__glu_gated_geglu__decode"
HEADER = open("cdna_kernels/" + NAME + ".s.ref").read().split("; Override launch")[0]

WS_Q = 0x0
WS_F = 0x10000
WS_G = 0x11000
WS_R = 0x12000
WS_V = 0x13000
WS_P1 = 0x20000
P1_STRIDE = 2048
WS_P2 = 0xB0000
WS_P3 = 0xC0000
WS_STAMP = 0x200000
L_Q = 0
L_X = 1024
L_M = 2048
L_L = 2176
L_F = 2304
L_B = 2560
L_H = 4608
L_HN = 6656
L_G = 7680
L_W = 8704
L_K = L_W + 49152
KRING = 3
VRING = 5
LDS_BYTES = L_K + 8 * KRING * 4096

DOC = r'''
; ---------------------------------------------------------------------------------------------------------------------
; One launch, 256 workgroups (one per CU) of 8 streaming waves + 1 service wave.  x = wg & 7, y = wg >> 3.
;
; Streaming waves: workgroup (x, y) owns 1024 keys of KV head x (8 rounds of one 16-key tile per wave).  K tiles go to
;   S^T = K q^T by MFMA (4 heads x 4 copies across the 16 columns), scores rounded to bf16 where the reference rounds,
; Service wave: LayerNorm(x), a 64 x 128 block of the q projection, exchange of q through d_ws, prefetch of the FFN weights.
;       stage D  (y = 14, 15) sums the FFN partials, adds the residual, writes 32 outputs
; Hand-offs: every slot is first set to 0xffffffff by this launch; readers start polling only after a chain of flags that
;   ids published in this launch shows all 32 workgroups of a head on one die, P1 and the helper flags use that die's L2.
; ---------------------------------------------------------------------------------------------------------------------
'''
LOG2E = 0x3FB8AA3B
SCALE = 0x3DB504F3
FULL = "row_mask:0xf bank_mask:0xf"
SPIN_MAX = 200000


def gen(D=3, D2=3, nt=True, inter="global", stamps=False, wnt=True, warm='spread', sleep=1, qsleep=4,
        xp=(), masked=True, qrot=4, local=True, qpos=18, pref=True, fold=True, bpos=None, bwait=False, ppos=None, kfirst=True, wb=False, pad1=0, pad2=0, pad3=0, gsync=True, gsleep=2, cdelay=0, opos=None, enc=None, dsplit=True, early=False, gate=True, sclr='after', qearly=True, lpos='b1b', order=None, pm='Sg2GPU', dsleep=None, cfast=False, adapt=None, d2from=32, D3=None, d3from=56, split=False, dup='auto', dup3=True, rankpre=True, gmiss=16, ntr=2, vpos=44, dlate=True, outfl='', jitter=None, p1plain=False, clrpos=3, wqfirst=False, dseq=None, NB=3, bar1c=True, lp=('c', 'c', 'c', 'c'), dlast=False, csd=False, c4=True, b4=False, bprep=True, txor=None, clrbal=True, crot=0, Dinit=None, boost=range(52, 64)):
    C = []
    A = C.append
    if dlast:
        pm = pm + "D"
    ntf = " nt" if nt else ""
    wntf = " nt" if wnt else ""
    D2 = D if D2 is None else D2
    hmap = "xcd"; KS = 4; ld2 = ld3 = st2 = st3 = "sc1"; peel = False; late4 = True; cpos = ("end",) * 6; fastln = True; perturb = None
    Dinit = D if Dinit is None else Dinit
    bpos = (Dinit + max(3, clrpos) if kfirst else D) if bpos is None else bpos
    KL = KS.bit_length() - 1
    NQ = 64 // KS
    QR = 2048 * KS

    def stamp_at(k):
        if stamps:
            A(f"s_memrealtime s[{64 + 2 * k}:{65 + 2 * k}]")

    def stamp_store():
        if not stamps or stamps == "enc":
            return
        A("s_waitcnt lgkmcnt(0)")
        if stamps == "dbg":
            lab = f"L_dbg{len(C)}"
            A("s_and_b32 s4, s3, 7\ns_cmp_eq_u32 s4, 0")
            A(f"s_cbranch_scc0 {lab}")
            A("s_not_b32 s64, s64")
            A("s_cmp_eq_u32 s3, 8")
            sel0 = (0, 1, 2, 4, 5, 6, 7)
            sel8 = (2, 4, 5, 6, 7, 8, 9)
            A("s_mov_b64 exec, -1")
            for i in range(7):
                A(f"s_cselect_b32 s4, s{64 + 2 * sel8[i]}, s{64 + 2 * sel0[i]}")
                A(f"v_writelane_b32 v4, s4, {i}")
            A("s_lshl_b32 s4, s3, 2\ns_add_u32 s4, s4, 4\nv_lshl_add_u32 v1, v0, 2, s4")
            A("s_mov_b64 exec, 0x7f")
            A("global_atomic_umax v1, v4, s[36:37] sc1")
            A(f"{lab}:")
            return
        lab = f"L_st{len(C)}"
        A(f"s_cmp_eq_u32 s3, 1\ns_cbranch_scc0 {lab}")
        A(f"s_mov_b64 exec, 0xffff\nv_lshlrev_b32 v5, 2, v0\nds_read_b32 v4, v5 offset:{L_G}")
        A(f"s_lshl_b32 s4, s2, 4\ns_add_u32 s4, s4, 8\ns_lshl_b32 s4, s4, 6\ns_add_u32 s4, s4, {WS_STAMP}\nv_add_u32 v5, s4, v5")
        A("s_waitcnt lgkmcnt(0)\nglobal_store_dword v5, v4, s[38:39]\ns_nop 1")
        A(f"{lab}:")
        A("s_mov_b64 exec, 1")
        A("s_lshl_b32 s4, s2, 4\ns_add_u32 s4, s4, s3\ns_lshl_b32 s4, s4, 6")
        A(f"s_add_u32 s4, s4, {WS_STAMP}")
        A("v_mov_b32 v1, s4")
        A("s_getreg_b32 s94, hwreg(HW_REG_XCC_ID)")
        A("s_lshl_b32 s92, s62, 16\ns_add_u32 s92, s92, s59\ns_lshl_b32 s4, s49, 11\ns_add_u32 s92, s92, s4")
        for q in range(4):
            for i in range(4):
                A(f"v_mov_b32 v{4 + i}, s{64 + 2 * (4 * q + i)}")
            A(f"global_store_dwordx4 v1, v[4:7], s[38:39] offset:{16 * q}")
            A("s_nop 1")

    def rowsum(a, op="add"):
        for s in (8, 4, 2, 1):
            A(f"v_{op}_f32_dpp v{a}, v{a}, v{a} row_ror:{s} {FULL}")

    def xrow(a, t, op="add"):
        A(f"v_mov_b32 v{t}, v{a}")
        A(f"v_permlane16_swap_b32 v{a}, v{t}")
        A(f"v_{op}_f32 v{a}, v{a}, v{t}")
        A(f"v_mov_b32 v{t}, v{a}")
        A(f"v_permlane32_swap_b32 v{a}, v{t}")
        A(f"v_{op}_f32 v{a}, v{a}, v{t}")

    def scatter4(r):
        A(f"v_permlane32_swap_b32 v{r}, v{r + 1}\nv_permlane32_swap_b32 v{r + 2}, v{r + 3}")
        A(f"v_add_f32 v{r}, v{r}, v{r + 1}\nv_add_f32 v{r + 2}, v{r + 2}, v{r + 3}")
        A(f"v_permlane16_swap_b32 v{r}, v{r + 2}")
        A(f"v_add_f32 v{r}, v{r}, v{r + 2}")

    def sigma(dst, t):
        A(f"v_bfe_u32 v{dst}, v0, 4, 1\nv_lshrrev_b32 v{t}, 5, v0\nv_lshl_add_u32 v{dst}, v{dst}, 1, v{t}")

    def rbf(a):
        A(f"v_cvt_pk_bf16_f32 v{a}, v{a}, v{a}")
        A(f"v_lshlrev_b32 v{a}, 16, v{a}")

    def ln_stats(vals, mean, den, rden, t0, t1, tmp):
        A(f"v_add_f32 v{t0}, v{vals[0]}, v{vals[1]}")
        A(f"v_add_f32 v{t1}, v{vals[2]}, v{vals[3]}")
        A(f"v_add_f32 v{mean}, v{vals[4]}, v{vals[5]}")
        A(f"v_add_f32 v{den}, v{vals[6]}, v{vals[7]}")
        A(f"v_add_f32 v{t0}, v{t0}, v{t1}")
        A(f"v_add_f32 v{mean}, v{mean}, v{den}")
        A(f"v_add_f32 v{mean}, v{mean}, v{t0}")
        rowsum(mean)
        xrow(mean, t0)
        A(f"v_mul_f32 v{mean}, 0x3b000000, v{mean}")
        for i in range(8):
            A(f"v_sub_f32 v{tmp[i]}, v{vals[i]}, v{mean}")
        A(f"v_mul_f32 v{den}, v{tmp[0]}, v{tmp[0]}")
        A(f"v_mul_f32 v{t1}, v{tmp[1]}, v{tmp[1]}")
        for i in range(2, 8, 2):
            A(f"v_fmac_f32 v{den}, v{tmp[i]}, v{tmp[i]}")
            A(f"v_fmac_f32 v{t1}, v{tmp[i + 1]}, v{tmp[i + 1]}")
        A(f"v_add_f32 v{den}, v{den}, v{t1}")
        rowsum(den)
        xrow(den, t0)
        A(f"v_mul_f32 v{den}, 0x3b000000, v{den}")
        A(f"v_cvt_pk_bf16_f32 v{t0}, v{mean}, v{den}")
        A(f"v_lshlrev_b32 v{mean}, 16, v{t0}")
        A(f"v_and_b32 v{den}, 0xffff0000, v{t0}")
        A(f"v_add_f32 v{den}, 0x3727c5ac, v{den}")
        rbf(den)
        A(f"v_sqrt_f32 v{t0}, v{den}")
        A(f"v_rsq_f32 v{t1}, v{den}")
        A(f"v_fma_f32 v{den}, -v{t0}, v{t0}, v{den}")
        A(f"v_mul_f32 v{t1}, 0.5, v{t1}")
        A(f"v_fma_f32 v{den}, v{den}, v{t1}, v{t0}")
        rbf(den)
        A(f"v_rcp_f32 v{rden}, v{den}")

    def ln_apply(xs, mean, den, rden, ts):
        for x in xs:
            A(f"v_sub_f32 v{x}, v{x}, v{mean}")
        for x in xs:
            A(f"v_cvt_pk_bf16_f32 v{x}, v{x}, v{x}")
        for x in xs:
            A(f"v_lshlrev_b32 v{x}, 16, v{x}")
        for x, t in zip(xs, ts):
            A(f"v_mul_f32 v{t}, v{x}, v{rden}")
        for x, t in zip(xs, ts):
            A(f"v_fma_f32 v{x}, -v{t}, v{den}, v{x}")
        for x, t in zip(xs, ts):
            A(f"v_fma_f32 v{x}, v{x}, v{rden}, v{t}")

    def ln2():
        A("v_mov_b32 v133, v132")
        for i in range(4):
            A(f"v_pk_add_f32 v[{124 + 2 * i}:{125 + 2 * i}], v[{124 + 2 * i}:{125 + 2 * i}], v[132:133] neg_lo:[0,1] neg_hi:[0,1]")
        A("v_pk_add_f32 v[134:135], v[124:125], v[126:127]")
        A("v_pk_mul_f32 v[136:137], v[124:125], v[124:125]")
        A("v_pk_add_f32 v[138:139], v[128:129], v[130:131]")
        A("v_pk_fma_f32 v[136:137], v[126:127], v[126:127], v[136:137]")
        A("v_pk_add_f32 v[134:135], v[134:135], v[138:139]")
        A("v_pk_fma_f32 v[136:137], v[128:129], v[128:129], v[136:137]")
        A("v_add_f32 v16, v134, v135")
        A("v_pk_fma_f32 v[136:137], v[130:131], v[130:131], v[136:137]")
        A("v_add_f32 v17, v136, v137")
        for m in ("row_shr:1", "row_shr:2", "row_shr:4", "row_shr:8"):
            A(f"v_add_f32_dpp v16, v16, v16 {m} {FULL} bound_ctrl:0")
            A(f"v_add_f32_dpp v17, v17, v17 {m} {FULL} bound_ctrl:0")
        for m in ("row_bcast:15 row_mask:0xa", "row_bcast:31 row_mask:0xc"):
            A(f"v_add_f32_dpp v16, v16, v16 {m} bank_mask:0xf")
            A(f"v_add_f32_dpp v17, v17, v17 {m} bank_mask:0xf")
        A("v_readlane_b32 s4, v16, 63")
        A("v_readlane_b32 s5, v17, 63")
        A("v_mov_b32 v18, 0x3b000000")
        A("v_mul_f32 v16, s4, v18")
        A("v_mul_f32 v17, s5, v18")
        A("v_fma_f32 v17, -v16, v16, v17")
        A("v_add_f32 v16, v16, v132")
        A("v_max_f32 v17, 0, v17")
        A("v_cvt_pk_bf16_f32 v18, v16, v17")
        A("v_and_b32 v17, 0xffff0000, v18")
        A("v_lshlrev_b32 v16, 16, v18")
        A("v_add_f32 v17, 0x3727c5ac, v17")
        A("v_sub_f32 v120, v120, v16")
        A("v_cvt_pk_bf16_f32 v18, v120, v17")
        A("v_and_b32 v17, 0xffff0000, v18")
        A("v_sqrt_f32 v17, v17")
        A("v_lshlrev_b32 v120, 16, v18")
        rbf(17)
        A("v_rcp_f32 v18, v17")
        A("v_mul_f32 v19, v120, v18")
        A("v_fma_f32 v120, -v19, v17, v120")
        A("v_fma_f32 v120, v120, v18, v19")

    def poll(label, loads, regs, t, slp=None, between=None):
        slp = sleep if slp is None else slp
        A("s_mov_b32 s59, 0")
        if between:
            for l in loads:
                A(l)
            between()
            A(f"s_branch {label}_chk")
        A(f"{label}:")
        for l in loads:
            A(l)
        if between:
            A(f"{label}_chk:")
        A("s_waitcnt vmcnt(0)")
        regs = list(regs)
        if len(regs) == 1:
            t = regs[0]
            rest = []
        elif len(regs) % 2 == 0:
            A(f"v_max_u32 v{t}, v{regs[0]}, v{regs[1]}")
            rest = regs[2:]
        else:
            A(f"v_max3_u32 v{t}, v{regs[0]}, v{regs[1]}, v{regs[2]}")
            rest = regs[3:]
        for i in range(0, len(rest), 2):
            A(f"v_max3_u32 v{t}, v{t}, v{rest[i]}, v{rest[i + 1]}")
        A(f"v_cmp_eq_u32 vcc, -1, v{t}")
        A(f"s_branch {label}_ok" if ("svc3" in xp and label in ("L_pollq", "L_pollall")) else f"s_cbranch_vccz {label}_ok")
        A("s_add_u32 s59, s59, 1")
        A(f"s_cmp_lt_u32 s59, {SPIN_MAX}")
        A(f"s_cbranch_scc0 {label}_ok")
        if masked:
            A("s_mov_b64 exec, vcc")
        if slp:
            A(f"s_sleep {slp}")
        A(f"s_branch {label}")
        A(f"{label}_ok:")
        if masked:
            A("s_mov_b64 exec, -1")

    def ldswait(label, off, val=None):
        A(f"v_mov_b32 v24, {L_F}\ns_mov_b32 s5, 0")
        A(f"{label}:")
        A(f"ds_read_b32 v25, v24 offset:{off}")
        A("s_waitcnt lgkmcnt(0)")
        A("v_cmp_ne_u32 vcc, 0, v25" if val is None else f"v_cmp_eq_u32 vcc, {val}, v25")
        A(f"s_cbranch_vccnz {label}_ok")
        A(f"s_add_u32 s5, s5, 1\ns_cmp_lt_u32 s5, {SPIN_MAX * 64}\ns_cbranch_scc0 {label}_ok")
        A("s_sleep 1")
        A(f"s_branch {label}")
        A(f"{label}_ok:")

    def store_quad(val, addr, lo="0x11111111", hi="0x11111111", fl="sc1", addr2=None):
        for i in (1, 2, 3):
            A(f"v_mov_b32_dpp v{val + i}, v{val} quad_perm:[{i},{i},{i},{i}] {FULL}")
        A(f"s_mov_b32 exec_lo, {lo}\ns_mov_b32 exec_hi, {hi}")
        A(f"global_store_dwordx4 v{addr}, v[{val}:{val + 3}], s[38:39] {fl}")
        if addr2 is not None:
            A(f"global_store_dwordx4 v{addr2}, v[{val}:{val + 3}], s[38:39] {fl}")
        A("s_mov_b64 exec, -1")

    def roles():
        brot = 0 if local else 4
        A(f"s_add_u32 s61, s6, {brot}\ns_and_b32 s61, s61, 7")
        A("s_bfe_u32 s13, s7, 0x10003\ns_lshl_b32 s4, s61, 1\ns_add_u32 s13, s13, s4")
        A("s_and_b32 s14, s7, 7")
        A("s_mul_i32 s15, s6, 14\ns_add_u32 s15, s15, s7")

    def rowoff(dst, row, tmp, on=True):
        if dup is None or not on:
            A(f"s_lshl_b32 {dst}, {row}, 11")
        else:
            A(f"s_lshr_b32 {tmp}, {row}, 2\ns_lshl_b32 {tmp}, {tmp}, 14\ns_and_b32 {dst}, {row}, 3\ns_lshl_b32 {dst}, {dst}, 11\ns_add_u32 {dst}, {dst}, {tmp}")

    def mycopy(dst):
        if dup == "auto":
            A(f"s_mov_b32 {dst}, s49")
        else:
            A(f"s_lshr_b32 {dst}, s6, 2\ns_xor_b32 {dst}, {dst}, {dup}\ns_lshl_b32 {dst}, {dst}, 13")

    def p1slot(dst):
        A(f"s_lshl_b32 {dst}, s6, 5\ns_add_u32 {dst}, {dst}, s7\ns_mul_i32 {dst}, {dst}, {P1_STRIDE}\ns_add_u32 {dst}, {dst}, {WS_P1}")

    stamp_at(0)
    A("s_load_dwordx16 s[16:31], s[0:1], 0")
    A("s_load_dwordx8 s[32:39], s[0:1], 64")
    A("s_cmp_ge_u32 s2, 256")
    A("s_cbranch_scc1 L_end")
    A("v_lshrrev_b32 v1, 6, v0")
    A("v_and_b32 v0, 63, v0")
    A("v_readfirstlane_b32 s3, v1")
    A("s_and_b32 s6, s2, 7")
    A("s_lshr_b32 s7, s2, 3")
    A(f"s_add_u32 s60, s6, {qrot}\ns_and_b32 s60, s60, 7")
    A("v_lshlrev_b32 v9, 4, v0")
    A("s_cmp_eq_u32 s3, 8")
    A("s_cbranch_scc1 L_service")
    def wqaddr():
        A("v_lshrrev_b32 v10, 3, v0\nv_and_b32 v11, 7, v0\nv_lshlrev_b32 v10, 13, v10\nv_lshl_add_u32 v10, v11, 4, v10")
        A("s_and_b32 s4, s7, 3\ns_lshl_b32 s4, s4, 3\ns_add_u32 s4, s4, s3\ns_lshl_b32 s4, s4, 7\ns_add_u32 s4, s4, s60\ns_lshl_b32 s4, s4, 3")
        A("s_lshr_b32 s5, s7, 2\ns_add_u32 s4, s4, s5\ns_lshl_b32 s4, s4, 7")
        A("v_add_u32 v10, s4, v10\nv_add_u32 v11, 0x10000, v10")
        A(f"s_lshl_b32 s57, s3, 11\ns_add_u32 m0, s57, {L_W}")

    def clears(b=12):
        n0 = len(C)
        clears0()
        if b != 12:
            for i in range(n0, len(C)):
                for r in (17, 16, 15, 14, 13, 12):
                    C[i] = C[i].replace(f"v{r},", f"v{r - 12 + b},").replace(f"v{r}\n", f"v{r - 12 + b}\n")
                    if C[i].endswith(f"v{r}"):
                        C[i] = C[i][:-len(f"v{r}")] + f"v{r - 12 + b}"

    def clears1():
        for i in range(4):
            A(f"v_mov_b32 v{12 + i}, -1")
        roles()
        p1slot("s4")
        A("s_and_b32 s9, s7, 15\ns_mul_i32 s8, s6, 14\ns_add_u32 s8, s8, s9")
        rowoff("s5", "s8", "s48")
        A(f"s_lshr_b32 s8, s7, 4\ns_lshl_b32 s8, s8, 13\ns_add_u32 s5, s5, s8\ns_add_u32 s5, s5, {WS_P3 - 256}")
        A("v_mov_b32 v16, s4\nv_mov_b32 v17, s5\nv_cmp_gt_u32 vcc, 16, v0\ns_lshl_b32 s4, s3, 8")
        A("v_cndmask_b32 v16, v17, v16, vcc\nv_add3_u32 v16, v16, v9, s4")
        rowoff("s4", "s13", "s48")
        A(f"s_lshl_b32 s5, s14, 8\ns_add_u32 s4, s4, s5\ns_add_u32 s4, s4, {WS_P2 - 512}")
        A(f"v_bfe_u32 v17, v0, 4, 1\nv_mul_u32_u24 v17, {8192 - 256}, v17\nv_add3_u32 v17, v17, v9, s4\nv_cmp_gt_u32 vcc, 32, v0")
        A("s_cmp_lt_u32 s9, 14\ns_cselect_b32 s8, -1, 0xffff")
        A("v_cndmask_b32 v16, v17, v16, vcc")
        A("s_lshr_b32 s9, s7, 4\ns_cmp_lt_u32 s3, s9\ns_cselect_b32 s9, -1, 0")

    def clears0():
        if clrbal and dup is not None and dup3:
            return clears1()
        for i in range(4):
            A(f"v_mov_b32 v{12 + i}, -1")
        roles()
        p1slot("s4")
        rowoff("s5", "s15", "s8", dup3)
        A(f"s_add_u32 s5, s5, {WS_P3 - 256}")
        rowoff("s8", "s13", "s9")
        A(f"s_lshl_b32 s9, s14, 8\ns_add_u32 s8, s8, s9\ns_add_u32 s8, s8, {WS_P2 - 256}")
        A("s_cmp_ge_u32 s7, 16\ns_cselect_b32 s5, s8, s5\ns_cselect_b32 s8, 1, 8\ns_cselect_b32 s9, 32, 14")
        A("s_cmp_lt_u32 s7, s9\ns_cselect_b32 s8, s8, 0\ns_cmp_lt_u32 s3, s8\ns_cselect_b32 s8, -1, 0xffff")
        if dup is not None:
            A("s_cselect_b32 s9, 0xffff, 0")
            if not dup3:
                A("s_cmp_ge_u32 s7, 16\ns_cselect_b32 s9, s9, 0")
        A("v_mov_b32 v16, s4\nv_mov_b32 v17, s5\nv_cmp_gt_u32 vcc, 16, v0\ns_lshl_b32 s4, s3, 8")
        A("v_cndmask_b32 v16, v17, v16, vcc\nv_add3_u32 v16, v16, v9, s4")
        if dup is not None:
            A(f"v_lshrrev_b32 v17, 5, v0\nv_mul_u32_u24 v17, {8192 - 256}, v17\nv_add_u32 v16, v16, v17")

    def clearstore(b=12):
        if p1plain:
            A("s_mov_b64 exec, 0xffff")
            if p1plain != "none":
                A("global_store_dwordx4 v16, v[12:15], s[38:39]")
            A("s_andn2_b32 s8, s8, 0xffff\ns_cbranch_scc0 L_noc2")
        A("s_mov_b32 exec_lo, s8\ns_mov_b32 exec_hi, " + ("0" if dup is None else "s9"))
        A(f"global_store_dwordx4 v{b + 4}, v[{b}:{b + 3}], s[38:39] sc1")
        A("L_noc2:")
        A("s_mov_b64 exec, -1")

    def wqload():
        A("s_cmp_eq_u32 s3, 0")
        A("s_cbranch_scc0 L_nox")
        A(f"s_mov_b32 m0, {L_X}")
        A("global_load_lds_dwordx4 v9, s[16:17]")
        A(f"s_mov_b32 m0, {L_W}")
        A("s_nop 0")
        A("L_nox:")
        A(f"global_load_lds_dwordx4 v10, s[22:23]{wntf}")
        A("s_add_u32 m0, m0, 1024")
        A(f"global_load_lds_dwordx4 v11, s[22:23]{wntf}")
    if not kfirst:
        wqaddr()
    vKS = (1, 2, 3, 4)
    vKR = (5, 6, 7, 8)
    vV, vM, vML, vL = 9, 10, 11, 12
    PK = (13, 14)
    vAl = 15
    SEL = (16, 17, 18, 19)
    S = (20, 21, 22, 23)
    T = (24, 25, 26, 27)
    BB = 28
    vT2 = 38
    ACC = (40, 44)
    QF = 48
    KF = 64
    VR = [80 + 16 * i for i in range(VRING)]
    A("v_lshrrev_b32 v24, 4, v0")
    A("v_lshlrev_b32 v25, 6, v24")
    A(f"v_xor_b32 v{vKS[0]}, v{vV}, v25")
    for i in (1, 2, 3):
        A(f"v_xor_b32 v{vKS[i]}, {16 * i}, v{vKS[0]}")
    if split:
        A(f"v_add_u32 v{vKS[2]}, 6144, v{vKS[2]}\nv_add_u32 v{vKS[3]}, 6144, v{vKS[3]}\nv_add_u32 v39, 6144, v{vV}")
    A("s_lshl_b32 s10, s6, 23")
    ipat = {"wgtile": "wwwtttccccc", "contig": "tttwwwccccc", "global": "wwwcccccttt"}.get(inter, inter)
    assert sorted(ipat) == sorted("wwwtttccccc") and not split
    if crot:
        A(f"s_lshl_b32 s4, s7, {crot}\ns_lshr_b32 s5, s7, {5 - crot}\ns_or_b32 s4, s4, s5\ns_and_b32 s4, s4, 31")
    for k, reg in (("w", "s3"), ("c", "s4" if crot else "s7")):
        pos = [i for i, ch in enumerate(ipat) if ch == k]
        b = 0
        while b < len(pos):
            e = b
            while e + 1 < len(pos) and pos[e + 1] == pos[e] + 1:
                e += 1
            if b == 0 and e == len(pos) - 1:
                A(f"s_lshl_b32 s11, {reg}, {12 + pos[0]}")
            else:
                A(f"s_bfe_u32 s11, {reg}, {hex(((e - b + 1) << 16) | b)}\ns_lshl_b32 s11, s11, {12 + pos[b]}")
            A("s_add_u32 s10, s10, s11")
            b = e + 1
    tpos = [i for i, ch in enumerate(ipat) if ch == "t"]

    def toff(t):
        return sum(((t >> b) & 1) << (12 + p) for b, p in enumerate(tpos))
    if txor:
        assert tpos == list(range(tpos[0], tpos[0] + 3))
        A({"c": "s_and_b32 s11, s7, 7", "x": "s_mov_b32 s11, s6", "cx": "s_xor_b32 s11, s7, s6\ns_and_b32 s11, s11, 7",
           "ch": "s_lshr_b32 s11, s7, 2", "chx": "s_lshr_b32 s11, s7, 2\ns_xor_b32 s11, s11, s6"}[txor])
        A(f"s_lshl_b32 s11, s11, {12 + tpos[0]}\ns_add_u32 s10, s10, s11")
    A("s_mov_b32 s11, s10")
    A(f"s_mul_i32 s56, s3, {KRING * 4096}\ns_add_u32 s56, s56, {L_K}")
    A("s_mov_b32 s42, 0x4000000\ns_mov_b32 s43, 0x20000")
    if kfirst:
        A("s_mov_b32 m0, s56")
    if sclr == "first" and "noclear" not in xp:
        clears()
    A("s_waitcnt lgkmcnt(0)")
    stamp_at(12)
    if sclr == "first" and "noclear" not in xp:
        clearstore()
    if not kfirst:
        A("s_barrier")
        wqload()
        A("s_mov_b32 m0, s56")
    A("s_mov_b32 s40, s18\ns_and_b32 s41, s19, 0xffff")
    stamp_at(11)
    vm = VM()
    ids = {}
    m0k = [0]
    order = (order or {3: "K0 V0 K1 V1 K2 V2 V3 V4 K3 K4 K5 K6 K7 V5 V6 V7", 2: "K0 V0 K1 V1 K2 V2 V3 V4 K3 K4 K5 V5 K6 K7 V6 V7"}[NB]).split()
    seq = [(g[0], int(g[1]), u) for g in order for u in range(4)]
    NPRE = 4 * (KRING + VRING)

    def W(opid):
        w = vm.wait(opid)
        if w:
            A(w)

    def load(n):
        mat, t, u = seq[n]
        d = D if n < d2from else D2
        if D3 and n >= d3from:
            d = D3
        if n <= bpos:
            d = Dinit
        if dseq and n > bpos:
            d = int(dseq[n])
        if n in boost:
            W(ids[seq[n - d - 1]])
            A(f"s_bitcmp1_b32 s48, 0\ns_cbranch_scc1 L_bo{n}")
            A(f"s_waitcnt vmcnt({vm.n - ids[seq[n - d]]})")
            A(f"L_bo{n}:")
        elif adapt and n >= NPRE and n in adapt[2]:
            W(ids[seq[n - d - 1]])
            A(f"s_cbranch_vccnz L_ad{n}")
            A(f"s_waitcnt vmcnt({d - 1})")
            A(f"L_ad{n}:")
        elif n >= d:
            W(ids[seq[n - d]])
            if adapt and n >= NPRE and n in adapt[3]:
                A(f"s_cmp_le_u32 s9, {adapt[0]}")
                A(f"s_cbranch_scc0 L_ad{n}")
                A(f"s_waitcnt vmcnt({d - 2})")
                A(f"L_ad{n}:")
        if opos and n in opos and "now" not in xp:
            for i, p in enumerate(opos):
                if p == n:
                    A(f"global_load_dwordx4 v[164:167], v161, s[24:25] offset:{1024 * i}")
        if mat == "K":
            if m0k[0] != t:
                m0k[0] = t
                A(f"s_add_u32 m0, s56, {4096 * (t % KRING)}")
            A(f"buffer_load_dwordx4 v{vKS[u]}, s[40:43], s10 offen offset:{1024 * u}{ntf} lds")
            if u == 3 and t < 7:
                A(f"s_xor_b32 s10, s10, {hex(toff(t + 1) ^ toff(t))}")
        else:
            r = VR[t % VRING] + 4 * u
            A(f"buffer_load_dwordx4 v[{r}:{r + 3}], v{39 if (split and u >= 2) else vV}, s[44:47], s11 offen offset:{1024 * u}{ntf}")
            if u == 3 and t < 7:
                A(f"s_xor_b32 s11, s11, {hex(toff(t + 1) ^ toff(t))}")
        ids[seq[n]] = vm.issue()
        if n == qpos:
            A(f"v_mov_b32 v39, {L_F}\nds_write_b32 v39, v39 offset:8")
        if n == vpos and dup == "auto" and vpos:
            A("ds_write_b32 v39, v39 offset:20")

    def consts():
        A("v_and_b32 v24, 3, v0")
        A("v_mov_b32 v25, 0x0c0c0c0c")
        for k, (lo, e0) in enumerate(((0x0100, 0), (0x0100, 2), (0x0302, 0), (0x0302, 2))):
            A(f"v_mov_b32 v26, {hex(0x0c0c0000 | lo)}")
            A(f"v_mov_b32 v27, {hex((lo << 16) | 0x0c0c)}")
            A(f"v_cmp_eq_u32 vcc, {e0}, v24")
            A(f"v_cndmask_b32 v{SEL[k]}, v25, v26, vcc")
            A(f"v_cmp_eq_u32 vcc, {e0 + 1}, v24")
            A(f"v_cndmask_b32 v{SEL[k]}, v{SEL[k]}, v27, vcc")
        for z in (0, 1, 4, 5, 8, 9):
            A(f"v_mov_b32 v{BB + z}, 0")
        A(f"s_mov_b32 s12, {hex(LOG2E)}")
        if boost:
            A("s_getreg_b32 s48, hwreg(HW_REG_XCC_ID, 0, 4)")
        A("v_bfe_u32 v25, v0, 2, 2")
        A("v_lshrrev_b32 v26, 4, v0")
        A("v_lshlrev_b32 v27, 8, v25")
        A(f"v_lshl_add_u32 v{vT2}, v26, 4, v27")
        A("v_lshl_add_u32 v25, v24, 2, v25")
        A("v_and_b32 v27, 15, v0")
        A("v_xor_b32 v26, v26, v27")
        A("v_lshlrev_b32 v26, 4, v26")
        A("v_lshl_add_u32 v26, v25, 8, v26")
        for u in range(4):
            A(f"v_xor_b32 v{vKR[u]}, {64 * u}, v26")
            A(f"v_add_u32 v{vKR[u]}, s56, v{vKR[u]}")
        roles()
        A("s_lshl_b32 s58, s3, 12")
        if dlate:
            A(f"s_min_u32 s4, s15, 111\ns_lshl_b32 s4, s4, 3\ns_add_u32 s4, s4, s3\ns_lshl_b32 s4, s4, 11\nv_add_u32 v162, s4, v{vV}")
        A("s_lshl_b32 s4, s13, 3\ns_add_u32 s4, s4, s3\ns_lshl_b32 s4, s4, 15\ns_lshl_b32 s5, s14, 7\ns_add_u32 s4, s4, s5")
        A("v_lshrrev_b32 v160, 3, v0\nv_and_b32 v161, 7, v0\nv_lshlrev_b32 v160, 10, v160\nv_lshl_add_u32 v160, v161, 4, v160\nv_add_u32 v160, s4, v160")
        A(f"s_lshl_b32 s4, s61, 5\ns_add_u32 s4, s4, s7\ns_lshl_b32 s4, s4, 3\ns_add_u32 s4, s4, s3\ns_lshl_b32 s4, s4, 11\nv_add_u32 v161, s4, v{vV}")

    def late(pos="c"):
        ops = [i for i in range(4) if lp[i] == pos]
        if "now" in xp or not ops:
            return
        if not dlast:
            A("s_cmp_lt_u32 s7, 14")
            A(f"s_cbranch_scc0 L_late_b{pos}")
        for i in (ops if not dlast else ()):
            if i < 2:
                A(f"s_add_u32 m0, s57, {L_W + 32768 + 1024 * i}")
                A(f"global_load_lds_dwordx4 v162, s[32:33]{wntf}")
                if i == 0:
                    A("v_add_u32 v162, 1024, v162")
            else:
                A("s_mov_b64 exec, 1")
                A("global_load_dword v163, v162, s[32:33]")
        if not dlast:
            A(f"s_branch L_late_done{pos}")
        A(f"L_late_b{pos}:")
        A("s_cmp_ge_u32 s7, 16")
        A("s_cselect_b64 exec, -1, 1")
        for i in ops:
            A(f"s_add_u32 m0, s58, {L_W + 1024 * i}")
            A(f"global_load_lds_dwordx4 v160, s[24:25] offset:0{wntf}")
            vm.issue()
            if i < 3:
                A("v_add_u32 v160, 0x2000, v160")
        A(f"L_late_done{pos}:")
        A("s_mov_b64 exec, -1")
        m0k[0] = None

    T0 = 8 - NB
    SS = {t: tuple(range(144 + 4 * (t - T0), 148 + 4 * (t - T0))) for t in range(T0, 8)}
    PKS = {t: (128 + 2 * (t - T0), 129 + 2 * (t - T0)) for t in range(T0, 8)}

    def scores(t, S):
        W(ids[("K", t, 3)])
        k = KF
        for u in range(4):
            A(f"ds_read_b128 v[{k + 4 * u}:{k + 4 * u + 3}], v{vKR[u]} offset:{4096 * (t % KRING)}")
        for u in range(4):
            c = "0" if u == 0 else f"v[{S[0]}:{S[3]}]"
            A("s_waitcnt lgkmcnt(0)" if stamps else f"s_waitcnt lgkmcnt({3 - u})")
            A(f"v_mfma_f32_16x16x32_bf16 v[{S[0]}:{S[3]}], v[{k + 4 * u}:{k + 4 * u + 3}], v[{QF + 4 * u}:{QF + 4 * u + 3}], {c}")
        for rnd in range(2):
            A(f"v_cvt_pk_bf16_f32 v{T[0]}, v{S[0]}, v{S[1]}")
            A(f"v_cvt_pk_bf16_f32 v{T[1]}, v{S[2]}, v{S[3]}")
            A(f"v_lshlrev_b32 v{S[0]}, 16, v{T[0]}")
            A(f"v_and_b32 v{S[1]}, 0xffff0000, v{T[0]}")
            A(f"v_lshlrev_b32 v{S[2]}, 16, v{T[1]}")
            A(f"v_and_b32 v{S[3]}, 0xffff0000, v{T[1]}")
            if rnd == 0:
                for r in range(4):
                    A(f"v_mul_f32 v{S[r]}, {hex(SCALE)}, v{S[r]}")
        if t == 0:
            A(f"v_max_f32 v{vM}, v{S[0]}, v{S[1]}")
            A(f"v_max3_f32 v{vM}, v{vM}, v{S[2]}, v{S[3]}")
        else:
            A(f"v_max3_f32 v{vM}, v{vM}, v{S[0]}, v{S[1]}")
            A(f"v_max3_f32 v{vM}, v{vM}, v{S[2]}, v{S[3]}")

    def probs(tiles, first):
        if not first:
            A(f"v_mov_b32 v{vAl}, v{vML}")
        A(f"v_mul_f32 v{vML}, s12, v{vM}")
        if not first:
            A(f"v_sub_f32 v{vAl}, v{vAl}, v{vML}")
            A(f"v_exp_f32 v{vAl}, v{vAl}")
        for S, P in tiles:
            for r in range(4):
                A(f"v_fma_f32 v{S[r]}, v{S[r]}, s12, -v{vML}")
        for S, P in tiles:
            for r in range(4):
                A(f"v_exp_f32 v{S[r]}, v{S[r]}")
        if not first:
            for a in range(8):
                A(f"v_mul_f32 v{ACC[0] + a}, v{vAl}, v{ACC[0] + a}")
            A(f"v_mul_f32 v{vL}, v{vL}, v{vAl}")
        for i, (S, P) in enumerate(tiles):
            A(f"v_add_f32 v{T[0]}, v{S[0]}, v{S[1]}")
            A(f"v_add_f32 v{T[1]}, v{S[2]}, v{S[3]}")
            A(f"v_cvt_pk_bf16_f32 v{P[0]}, v{S[0]}, v{S[1]}")
            A(f"v_cvt_pk_bf16_f32 v{P[1]}, v{S[2]}, v{S[3]}")
            if first and i == 0:
                A(f"v_add_f32 v{vL}, v{T[0]}, v{T[1]}")
            else:
                A(f"v_add_f32 v{T[0]}, v{T[0]}, v{T[1]}")
                A(f"v_add_f32 v{vL}, v{vL}, v{T[0]}")

    def qk(t):
        scores(t, S)
        xrow(vM, T[0], "max")
        probs([(S, PK)], t == 0)

    def sc(t):
        scores(t, SS[t])
        if t == 7:
            xrow(vM, T[0], "max")
            A("v_bfe_u32 v26, v0, 2, 2\nv_lshlrev_b32 v26, 5, v26\ns_lshl_b32 s4, s3, 2\nv_add_u32 v27, s4, v26")
            A("s_mov_b64 exec, 0x1111")
            A(f"ds_write_b32 v27, v{vM} offset:{L_M}")
            A("s_mov_b64 exec, -1")

    def fin1(t):
        A("s_waitcnt lgkmcnt(0)")
        A("s_barrier")
        k0 = KF
        A(f"ds_read_b128 v[{k0}:{k0 + 3}], v26 offset:{L_M}")
        A(f"ds_read_b128 v[{k0 + 4}:{k0 + 7}], v26 offset:{L_M + 16}")
        A("s_waitcnt lgkmcnt(0)")
        A(f"v_max3_f32 v{vM}, v{k0}, v{k0 + 1}, v{k0 + 2}")
        A(f"v_max3_f32 v{vM}, v{vM}, v{k0 + 3}, v{k0 + 4}")
        A(f"v_max3_f32 v{vM}, v{vM}, v{k0 + 5}, v{k0 + 6}")
        A(f"v_max_f32 v{vM}, v{vM}, v{k0 + 7}")
        probs([(SS[t], PKS[t]) for t in range(T0, 8)], False)
        xrow(vL, T[0])
        A("s_mov_b64 exec, 0x1111")
        A(f"ds_write_b32 v27, v{vL} offset:{L_L}")
        A("s_mov_b64 exec, -1")

    def fin2(t):
        A("s_and_b32 s4, s3, 1\ns_lshl_b32 s4, s4, 6\nv_lshrrev_b32 v26, 5, v0\nv_lshl_add_u32 v26, v26, 5, s4")
        A(f"v_mov_b32 v27, {L_F}")
        A("s_waitcnt lgkmcnt(0)")
        A("s_barrier")
        A(f"ds_read_b128 v[64:67], v26 offset:{L_M}")
        A(f"ds_read_b128 v[68:71], v26 offset:{L_M + 16}")
        A(f"ds_read_b128 v[72:75], v26 offset:{L_L}")
        A(f"ds_read_b128 v[76:79], v26 offset:{L_L + 16}")
        A("ds_read2_b32 v[26:27], v27 offset0:4 offset1:1")
        A("s_waitcnt lgkmcnt(0)")
        A("v_max3_f32 v64, v64, v65, v66\nv_max3_f32 v64, v64, v67, v68\nv_max3_f32 v64, v64, v69, v70\nv_max_f32 v64, v64, v71")
        for i in range(4):
            A(f"v_add_f32 v{72 + i}, v{72 + i}, v{76 + i}")
        A("v_add_f32 v72, v72, v73\nv_add_f32 v74, v74, v75\nv_add_f32 v72, v72, v74")
        A("v_readfirstlane_b32 s62, v27")
        A("v_readfirstlane_b32 s49, v26")
        A("v_log_f32 v73, v72")
        A(f"v_rcp_f32 v{vAl}, v72")
        A(f"v_mul_f32 v64, s12, v64")
        A(f"v_add_f32 v{vL}, v64, v73")
        A(f"v_and_b32 v{vM}, 3, v0\nv_add_u32 v{vM}, 0x07060501, v{vM}")
        A("s_mov_b32 s50, 0x88888888\ns_mov_b32 s51, 0x88888888")

    def fin3(t):
        A(f"v_add_u32 v64, s56, v{vV}")
        A("v_and_b32 v65, 15, v0\nv_bfe_u32 v66, v0, 4, 1\nv_mul_u32_u24 v66, 272, v66\nv_add_u32 v65, v65, v66")
        A("v_lshrrev_b32 v66, 5, v0\nv_lshl_add_u32 v65, v66, 4, v65\ns_lshl_b32 s4, s3, 7")
        A(f"s_add_u32 s4, s4, {L_K}\nv_lshl_add_u32 v65, v65, 2, s4")
        A(f"v_add_u32 v66, {4 * KRING * 4096}, v65")
        p1slot("s4")
        A("s_lshl_b32 s5, s3, 8\ns_add_u32 s5, s5, s4\nv_lshl_add_u32 v67, v0, 2, s5")

    def prepB():
        A(f"s_lshl_b32 s4, s61, 5\nv_lshrrev_b32 v57, 3, v0\nv_add_u32 v57, s4, v57\nv_mul_u32_u24 v57, {P1_STRIDE}, v57")
        if b4:
            A("s_and_b32 s4, s13, 1\ns_lshl_b32 s4, s4, 1\ns_bfe_u32 s5, s3, 0x10001\ns_add_u32 s4, s4, s5")
            A(f"s_and_b32 s5, s3, 1\ns_lshl_b32 s5, s5, 3\ns_add_u32 s4, s4, s5\ns_lshl_b32 s4, s4, 7\ns_add_u32 s4, s4, {WS_P1}")
        else:
            A("s_and_b32 s4, s13, 1\ns_lshl_b32 s4, s4, 1\ns_lshr_b32 s5, s3, 2\ns_add_u32 s4, s4, s5")
            A(f"s_and_b32 s5, s3, 3\ns_lshl_b32 s5, s5, 2\ns_add_u32 s4, s4, s5\ns_lshl_b32 s4, s4, 7\ns_add_u32 s4, s4, {WS_P1}")
        A("v_and_b32 v58, 7, v0\nv_lshl_add_u32 v57, v58, 4, v57\nv_add_u32 v48, s4, v57")
        for pi in range(1, 4):
            A(f"v_add_u32 v{48 + pi}, {8 * pi * P1_STRIDE}, v48")
        A("s_mov_b32 s52, 0x04000c0c\ns_mov_b32 s53, 0x0706000c")
        A("s_mov_b32 s54, 0xffff0000\ns_mov_b32 s55, 0xffff0000\ns_mov_b32 s8, 0\ns_mov_b32 s9, -1")
        sigma(57, 58)
        A("v_bfe_u32 v58, v0, 2, 2\nv_lshl_add_u32 v57, v57, 3, v58\nv_lshlrev_b32 v57, 7, v57")
        A(f"v_and_b32 v58, 3, v0\nv_lshl_add_u32 v57, v58, 3, v57\ns_lshl_b32 s4, s3, {13 if b4 else 12}\nv_add_u32 v52, s4, v57")
        A("v_lshlrev_b32 v54, 2, v0\ns_lshl_b32 s4, s3, 8\nv_add_u32 v53, s4, v54")
        rowoff("s4", "s13", "s5")
        A(f"s_lshl_b32 s5, s14, 8\ns_add_u32 s4, s4, s5\ns_add_u32 s4, s4, {WS_P2}")
        if dup is not None:
            mycopy("s5")
            A("s_xor_b32 s5, s5, 0x2000\ns_add_u32 s4, s4, s5")
        A("v_add_u32 v55, s4, v54")
        A("v_xor_b32 v56, 0x2000, v55")

    def fin4(t):
        if bprep:
            prepB()

    def pv(t, last=False):
        v = VR[t % VRING]
        P = PKS.get(t, PK)

        def perm(i):
            b = BB + 2 + 4 * (i & 1)
            A(f"v_perm_b32 v{b}, v{P[i >> 1]}, v{P[i >> 1]}, v{SEL[2 * (i & 1)]}")
            A(f"v_perm_b32 v{b + 1}, v{P[i >> 1]}, v{P[i >> 1]}, v{SEL[2 * (i & 1) + 1]}")
        perm(0)
        perm(1)
        if not last:
            W(ids[("V", t, 3)])
        for i in range(4):
            if last:
                W(ids[("V", t, i)])
            b = BB + 2 + 4 * (i & 1)
            for h in range(2):
                c = "0" if (t == 0 and i == 0) else f"v[{ACC[h]}:{ACC[h] + 3}]"
                bb = b if h == 0 else b - 2
                A(f"v_mfma_f32_16x16x32_bf16 v[{ACC[h]}:{ACC[h] + 3}], v[{v + 4 * i}:{v + 4 * i + 3}], v[{bb}:{bb + 3}], {c}")
            if i < 2:
                perm(i + 2)

    for n in range(NPRE):
        load(n)
        if n == 3:
            A("s_mov_b32 s44, s20\ns_and_b32 s45, s21, 0xffff\ns_mov_b32 s46, 0x4000000\ns_mov_b32 s47, 0x20000")
            if sclr == "after" and "noclear" not in xp and clrpos == 3 and not wqfirst:
                clears()
                clearstore()
            if kfirst:
                wqaddr()
                wqload()
                m0k[0] = None
            if sclr == "after" and "noclear" not in xp and clrpos == 3 and wqfirst:
                clears()
                clearstore()
            if kfirst:
                A("s_barrier")
        if n == clrpos and clrpos > 3 and sclr == "after" and "noclear" not in xp:
            clears(72)
            clearstore(72)
        if n == max(Dinit - 1, 3):
            consts()
        if n == bpos:
            stamp_at(13)
            A(f"v_mov_b32 v24, {L_F}\nv_mov_b32 v25, 1\ns_mov_b64 exec, 1\nds_add_u32 v24, v25 offset:12\ns_mov_b64 exec, -1")
        if n == qpos and False:
            A(f"v_mov_b32 v24, {L_F}\nds_write_b32 v24, v24 offset:8")
    stamp_at(1)
    ldswait("L_waitq", 0)
    if adapt:
        lo, hi, lsites, tsites = adapt
        A("v_readfirstlane_b32 s9, v25")
        A(f"v_cmp_lt_u32 vcc, {hi}, v25")
        if stamps:
            A("s_mov_b32 s88, s9")
    stamp_at(2)
    for u in range(4):
        A(f"ds_read_b128 v[{QF + 4 * u}:{QF + 4 * u + 3}], v{vT2} offset:{L_Q + 64 * u}")
    A("s_waitcnt lgkmcnt(0)")
    blocks = []
    for t in range(T0):
        blocks += [(qk, t, ("K", t, 3)), (pv, t, ("V", t, 3))]
    for t in range(T0, 8):
        blocks += [(sc, t, ("K", t, 3))]
    blocks += [(fin1, 7, ("K", 7, 3)), (fin2, 7, ("K", 7, 3)), (fin3, 7, ("K", 7, 3)), (fin4, 7, ("K", 7, 3))]
    for t in range(T0, 7):
        blocks += [(pv, t, ("V", t, 3))]
    bi = 0
    for n in range(NPRE, len(seq)):
        mat, t, u = seq[n]
        needb = {"K": 2 * (t - KRING) + 1, "V": 2 * (t - VRING) + 2}[mat]
        while bi < needb:
            blocks[bi][0](blocks[bi][1])
            bi += 1
        load(n)
        late(n)
        if n < len(seq) - 1 and bi < len(blocks) and blocks[bi][2] in ids and ids[blocks[bi][2]] <= vm.done:
            blocks[bi][0](blocks[bi][1])
            bi += 1
    while bi < len(blocks) and blocks[bi][0] is not pv:
        blocks[bi][0](blocks[bi][1])
        bi += 1
    if bar1c:
        A("s_barrier")
        late()
    else:
        late()
        A("s_barrier")
    while bi < len(blocks):
        blocks[bi][0](blocks[bi][1])
        bi += 1
    stamp_at(3)
    pv(7, last=True)
    stamp_at(4)
    A(f"ds_write_b128 v64, v[{ACC[0]}:{ACC[0] + 3}]")
    A(f"ds_write_b128 v64, v[{ACC[1]}:{ACC[1] + 3}] offset:1088")
    A("s_waitcnt lgkmcnt(0)")
    A("s_barrier")
    R0 = 72
    for i in range(8):
        A(f"ds_read_b32 v{R0 + i}, v{65 + (i >> 2)} offset:{KRING * 4096 * (i & 3)}")
    A("s_cmp_eq_u32 s62, 1")
    A("s_waitcnt lgkmcnt(0)")
    for i in range(2):
        A(f"v_pk_add_f32 v[{R0 + 2 * i}:{R0 + 2 * i + 1}], v[{R0 + 2 * i}:{R0 + 2 * i + 1}], v[{R0 + 4 + 2 * i}:{R0 + 5 + 2 * i}]")
    A(f"v_pk_add_f32 v[{R0}:{R0 + 1}], v[{R0}:{R0 + 1}], v[{R0 + 2}:{R0 + 3}]")
    A(f"v_add_f32 v{R0}, v{R0}, v{R0 + 1}")
    A(f"v_mul_f32 v{R0}, v{R0}, v{vAl}")
    A(f"v_mov_b32_dpp v{R0 + 1}, v{R0} quad_perm:[3,3,3,3] {FULL}")
    A(f"v_perm_b32 v{R0}, v{R0}, v{R0 + 1}, v{vM}")
    A(f"v_cndmask_b32 v{R0}, v{R0}, v{vL}, s[50:51]")
    A("s_cbranch_scc0 L_pubfar")
    A(f"global_store_dword v67, v{R0}, s[38:39]")
    A("L_published:")
    for _ in range(pad2):
        A("s_nop 0")
    stamp_at(5)
    A("s_cmp_lt_u32 s7, 14")
    A("s_cbranch_scc1 L_ffn")
    A("s_cmp_lt_u32 s7, 16")
    A("s_cbranch_scc1 L_final")
    if not bprep:
        prepB()
    NKK = 2 if b4 else 1
    WB = 80
    D0 = 120
    TP = 152
    WW = 160
    AA = 112
    AC = 32
    loads = [f"global_load_dwordx4 v[{D0 + 16 * kk + 4 * pi}:{D0 + 16 * kk + 4 * pi + 3}], v{48 + pi}, s[38:39] offset:{512 * kk} sc1" for pi in range(4) for kk in range(NKK)]

    def bweights():
        A(f"s_waitcnt vmcnt({4 * NKK})")
        if b4:
            A("s_barrier")
        for kk in range(NKK):
            for tau in range(4):
                for t in range(2):
                    r = WB + 16 * kk + 4 * tau + 2 * t
                    if kk == 1 and tau == 3 and t == 0:
                        A("s_waitcnt lgkmcnt(0)")
                    A(f"ds_read_b64_tr_b16 v[{r}:{r + 1}], v52 offset:{L_W + 4096 * kk + 512 * t + 32 * tau}")
    A("s_barrier")
    if b4:
        A("s_cmp_lt_u32 s3, 4")
        A("s_cbranch_scc1 L_bgo")
        A("s_waitcnt vmcnt(0)")
        A("s_barrier")
        A("s_branch L_bdone")
        A("L_bgo:")
    stamp_at(8)
    poll("L_poll1", loads, range(D0, D0 + 16 * NKK), 31, between=bweights)
    stamp_at(6)
    pm1 = [f"v_perm_b32 v{TP + 4 * kk + pi}, v{D0 + 16 * kk + 4 * pi + 2}, v{D0 + 16 * kk + 4 * pi + 1}, s52" for kk in range(NKK) for pi in range(4)]
    A(f"v_max3_f32 v16, v{D0 + 3}, v{D0 + 7}, v{D0 + 11}\nv_max_f32 v16, v16, v{D0 + 15}")
    A(pm1.pop(0))
    A(pm1.pop(0))
    A(f"v_max_f32_dpp v16, v16, v16 row_ror:8 {FULL}")
    A("v_mov_b32 v17, v16")
    A(pm1.pop(0))
    A(pm1.pop(0))
    A("v_permlane16_swap_b32 v16, v17")
    A("v_max_f32 v16, v16, v17")
    A("v_mov_b32 v17, v16")
    for x in pm1[:2]:
        A(x)
    A("v_permlane32_swap_b32 v16, v17")
    A("v_max_f32 v16, v16, v17")
    for pi in range(4):
        A(f"v_sub_f32 v{WW + pi}, v{D0 + 4 * pi + 3}, v16")
    for x in pm1[2:]:
        A(x)
    for pi in range(4):
        A(f"v_exp_f32 v{WW + pi}, v{WW + pi}")
        for kk in range(NKK):
            A(f"v_perm_b32 v{D0 + 16 * kk + 4 * pi + 3}, v{TP + 4 * kk + pi}, v{D0 + 16 * kk + 4 * pi}, s53")
    A(f"v_pk_add_f32 v[16:17], v[{WW}:{WW + 1}], v[{WW + 2}:{WW + 3}]")
    for kk in range(NKK):
        for hlf in range(2):
            r = D0 + 16 * kk + 2 * hlf
            A(f"v_pk_mul_f32 v[{r}:{r + 1}], v[{WW}:{WW + 1}], v[{r}:{r + 1}] op_sel_hi:[0,1]")
    A("v_add_f32 v16, v16, v17")
    for pi in range(1, 4):
        w = f"v[{WW + (pi & 2)}:{WW + 1 + (pi & 2)}]"
        sel = "op_sel:[1,0,0] op_sel_hi:[1,1,1]" if pi & 1 else "op_sel_hi:[0,1,1]"
        for kk in range(NKK):
            for hlf in range(2):
                r = D0 + 16 * kk + 2 * hlf
                A(f"v_pk_fma_f32 v[{r}:{r + 1}], {w}, v[{r + 4 * pi}:{r + 4 * pi + 1}], v[{r}:{r + 1}] {sel}")
        if pi == 1:
            A(f"v_add_f32_dpp v16, v16, v16 row_ror:8 {FULL}")
    A("v_mov_b32 v17, v16")
    for kk in range(NKK):
        d = D0 + 16 * kk
        A(f"v_permlane32_swap_b32 v{d}, v{d + 1}\nv_permlane32_swap_b32 v{d + 2}, v{d + 3}")
    A("v_permlane32_swap_b32 v16, v17")
    A("v_add_f32 v16, v16, v17")
    A("v_mov_b32 v17, v16")
    for kk in range(NKK):
        d = D0 + 16 * kk
        A(f"v_add_f32 v{d}, v{d}, v{d + 1}\nv_add_f32 v{d + 2}, v{d + 2}, v{d + 3}")
    A("v_permlane16_swap_b32 v16, v17")
    A("v_add_f32 v16, v16, v17")
    for kk in range(NKK):
        d = D0 + 16 * kk
        A(f"v_permlane16_swap_b32 v{d}, v{d + 2}")
    A("v_rcp_f32 v16, v16")
    for kk in range(NKK):
        d = D0 + 16 * kk
        A(f"v_add_f32 v{d}, v{d}, v{d + 2}")
    for kk in range(NKK):
        d = D0 + 16 * kk
        A(f"v_add_f32_dpp v{d}, v{d}, v{d} row_ror:8 {FULL}")
    for kk in range(NKK):
        d = D0 + 16 * kk
        A(f"v_mul_f32 v{d}, v{d}, v16")
    for kk in range(NKK):
        d = D0 + 16 * kk
        A(f"v_mov_b32_dpp v{d + 1}, v{d} quad_perm:[1,0,3,2] {FULL}")
    for kk in range(NKK):
        d = D0 + 16 * kk
        A(f"v_cvt_pk_bf16_f32 v{d}, v{d}, v{d + 1}")
    for kk in range(NKK):
        for e in range(4):
            A(f"v_mov_b32_dpp v{AA + 4 * kk + e}, v{D0 + 16 * kk} row_newbcast:{2 * e} {FULL}")
    A("s_waitcnt lgkmcnt(0)")
    for kk in range(NKK):
        for tau in range(4):
            c = "0" if kk == 0 else f"v[{AC + 4 * tau}:{AC + 4 * tau + 3}]"
            b = WB + 16 * kk + 4 * tau
            A(f"v_mfma_f32_16x16x32_bf16 v[{AC + 4 * tau}:{AC + 4 * tau + 3}], v[{AA + 4 * kk}:{AA + 4 * kk + 3}], v[{b}:{b + 3}], {c}")
    A(f"v_cndmask_b32 v{AC}, v{AC}, v{AC + 4}, s[54:55]")
    A(f"v_cndmask_b32 v{AC + 8}, v{AC + 8}, v{AC + 12}, s[54:55]")
    A(f"v_cndmask_b32 v{AC}, v{AC}, v{AC + 8}, s[8:9]")
    A(f"ds_write_b32 v53, v{AC} offset:{L_B}")
    A("s_cmp_eq_u32 s3, 0")
    A("s_waitcnt lgkmcnt(0)")
    A("s_barrier")
    A("s_cbranch_scc0 L_bdone")
    NW = 8 // NKK
    for i in range(NW):
        A(f"ds_read_b32 v{120 + i}, v54 offset:{L_B + 256 * i}")
    A("s_waitcnt lgkmcnt(0)")
    if NW == 8:
        for i in range(2):
            A(f"v_pk_add_f32 v[{120 + 2 * i}:{121 + 2 * i}], v[{120 + 2 * i}:{121 + 2 * i}], v[{124 + 2 * i}:{125 + 2 * i}]")
    A("v_pk_add_f32 v[120:121], v[120:121], v[122:123]")
    A("v_add_f32 v120, v120, v121")
    store_quad(120, 55, fl=st2, addr2=None if dup is None else 56)
    A("L_bdone:")
    if wb:
        A("s_cmp_eq_u32 s3, 1\ns_cbranch_scc0 L_nowb\ns_cmp_eq_u32 s7, 16\ns_cbranch_scc0 L_nowb")
        A("buffer_wbl2 sc1")
        A("L_nowb:")
    stamp_at(7)
    stamp_store()
    A("s_endpgm")
    A("L_pubfar:")
    A("s_nop 0")
    store_quad(R0, 67)
    A("s_branch L_published")
    A("L_ffn:")
    vCol = 65
    A("v_and_b32 v17, 7, v0\nv_bfe_u32 v16, v0, 3, 2\nv_lshl_add_u32 v16, v17, 2, v16")
    A("v_and_b32 v18, 32, v0\nv_add_u32 v16, v16, v18")
    A(f"s_lshl_b32 s4, s3, 6\nv_add_u32 v{vCol}, s4, v16")
    A(f"v_lshlrev_b32 v29, 1, v{vCol}")
    A(f"ds_read_u16_d16_hi v64, v29 offset:{L_X}")
    A(f"s_lshl_b32 s4, s3, 8\ns_add_u32 s4, s4, {WS_P2}")
    if dup is None:
        A("v_lshrrev_b32 v18, 3, v0\nv_lshlrev_b32 v19, 12, v18\nv_lshl_add_u32 v16, v17, 4, v19\nv_add_u32 v20, s4, v16")
    else:
        mycopy("s5")
        A("s_add_u32 s4, s4, s5")
        A("v_lshrrev_b32 v18, 4, v0\nv_lshlrev_b32 v19, 14, v18\nv_bfe_u32 v18, v0, 3, 1\nv_lshl_add_u32 v19, v18, 12, v19\nv_lshl_add_u32 v16, v17, 4, v19\nv_add_u32 v20, s4, v16")
    A("v_lshrrev_b32 v18, 4, v0\nv_and_b32 v17, 15, v0")
    rowoff("s4", "s15", "s5", dup3)
    A(f"s_add_u32 s4, s4, {WS_P3}\ns_lshl_b32 s5, s3, {9 if c4 else 8}\ns_and_b32 s5, s5, 0x7ff\ns_add_u32 s4, s4, s5")
    if dup is not None and dup3:
        mycopy("s5")
        A("s_xor_b32 s5, s5, 0x2000\ns_add_u32 s4, s4, s5")
    A(f"v_lshl_add_u32 v22, v0, {3 if c4 else 2}, s4")
    if dup is not None and dup3:
        A("v_xor_b32 v21, 0x2000, v22")
    A("s_lshl_b32 s5, s3, 4\nv_mov_b32 v23, s5")
    A("v_and_b32 v24, 7, v0\nv_lshlrev_b32 v24, 4, v24")
    A("s_mov_b32 s63, 0x42800000\ns_mov_b32 s54, 0xffff0000\ns_mov_b32 s55, 0xffff0000")
    A("v_mov_b32 v67, 0x3b000000\nv_mov_b32 v68, 0x3727c5ac\nv_mov_b32 v69, 0xbdd2d3e8\nv_mov_b32 v70, 0xc0135761")
    for i in range(4):
        A(f"v_mov_b32 v{72 + i}, 0x3f803f80")
    A("s_lshl_b32 s4, s3, 7\nv_lshl_add_u32 v25, v18, 4, s4")
    A("v_lshlrev_b32 v27, 2, v0\ns_lshl_b32 s5, s3, 8\nv_add_u32 v26, s5, v27")
    A("v_lshl_add_u32 v28, v0, 1, s4")
    if cfast:
        A("v_bfe_u32 v16, v0, 2, 2\nv_lshlrev_b32 v16, 2, v16\nv_bfe_u32 v19, v0, 4, 1\nv_lshl_add_u32 v16, v19, 1, v16")
        A("v_and_b32 v19, 32, v0\nv_add_u32 v16, v16, v19\nv_lshlrev_b32 v16, 5, v16")
    else:
        A("v_bfe_u32 v16, v0, 2, 2\nv_lshl_add_u32 v16, v18, 3, v16\nv_lshlrev_b32 v16, 5, v16")
    A("v_and_b32 v17, 3, v0\nv_lshl_add_u32 v16, v17, 3, v16\nv_add_u32 v16, s57, v16")
    GW = 88
    DW = 104

    DW2 = 144

    def dreads():
        if c4:
            A("s_lshl_b32 s5, s3, 8\nv_lshl_add_u32 v28, v0, 2, s5")
            A("v_and_b32 v28, 0x3ff, v28")
            for r in range(16):
                if r == 14:
                    A("s_waitcnt lgkmcnt(0)")
                A(f"ds_read_b32 v{DW + r}, v28 offset:{L_W + 32768 + 1024 * r}")
            A("s_waitcnt lgkmcnt(0)")
            for r in range(16):
                A(f"v_and_b32 v{40 + r}, 0xffff0000, v{DW + r}")
                A(f"v_lshlrev_b32 v{DW + r}, 16, v{DW + r}")
            return
        for r in range(16):
            if r == 14:
                A("s_waitcnt lgkmcnt(0)")
            A(f"ds_read_u16_d16_hi v{DW + r}, v28 offset:{L_W + 32768 + 1024 * r}")
    if dsplit and not dlast:
        if dlate:
            A("s_waitcnt vmcnt(1)")
        A("s_barrier")
        dreads()
        A("s_waitcnt lgkmcnt(0)")
    A("s_barrier")
    stamp_at(11)

    def cweights():
        for mat in range(2):
            for kap in range(2):
                for t in range(2):
                    r = GW + 8 * mat + 4 * kap + 2 * t
                    A(f"ds_read_b64_tr_b16 v[{r}:{r + 1}], v16 offset:{L_W + 16384 * mat + ((32 * kap + 512 * t) if cfast else (1024 * kap + 128 * t))}")
        if cfast or csd:
            stamp_at(13)
            return
        colsums()

    def colsums():
        A("s_waitcnt lgkmcnt(0)")
        A(f"v_mfma_f32_16x16x32_bf16 v[140:143], v[72:75], v[{GW}:{GW + 3}], 0")
        A(f"v_mfma_f32_16x16x32_bf16 v[144:147], v[72:75], v[{GW + 8}:{GW + 11}], 0")
        A(f"v_mfma_f32_16x16x32_bf16 v[140:143], v[72:75], v[{GW + 4}:{GW + 7}], v[140:143]")
        A(f"v_mfma_f32_16x16x32_bf16 v[144:147], v[72:75], v[{GW + 12}:{GW + 15}], v[144:147]")
        if not (cfast or csd):
            A("v_cndmask_b32 v66, v140, v144, s[54:55]")
            stamp_at(13)
    loads = [f"global_load_dwordx4 v[{120 + 4 * i}:{123 + 4 * i}], v20, s[38:39] offset:{2048 * (i >> 1) + 128 * (i & 1)} {ld2}" for i in range(4)]
    poll("L_poll2", loads, range(120, 136), 31, between=cweights)
    stamp_at(6)
    if cfast or csd:
        n0 = len(C)
        colsums()
        cs = C[n0:]
        del C[n0:]
        A(cs[0])
    for e in range(4):
        if cfast or csd:
            A(cs[1 + e])
        A(f"v_pk_add_f32 v[{120 + 2 * e}:{121 + 2 * e}], v[{120 + 2 * e}:{121 + 2 * e}], v[{128 + 2 * e}:{129 + 2 * e}]")
    for e in range(4):
        A(f"v_permlane32_swap_b32 v{120 + e}, v{124 + e}")
    A("v_pk_add_f32 v[120:121], v[120:121], v[124:125]\nv_pk_add_f32 v[122:123], v[122:123], v[126:127]")
    A("v_permlane16_swap_b32 v120, v122\nv_permlane16_swap_b32 v121, v123")
    A("v_pk_add_f32 v[122:123], v[120:121], v[122:123]")
    A("v_add_f32_dpp v120, v122, v122 row_ror:8 row_mask:0xf bank_mask:0x3")
    A("v_add_f32_dpp v120, v123, v123 row_ror:8 row_mask:0xf bank_mask:0xc")
    A("v_add_f32 v120, v120, v64")
    if cfast:
        A(f"v_mov_b32_dpp v122, v120 quad_perm:[1,0,3,2] {FULL}")
        A("v_cndmask_b32 v66, v140, v144, s[54:55]")
        A("v_cvt_pk_bf16_f32 v121, v120, v122")
        A("v_lshlrev_b32 v120, 16, v121")
        for e in range(8):
            A(f"v_mov_b32_dpp v{124 + e}, v121 row_newbcast:{2 * e} {FULL}")
            if e == 0:
                A("v_readfirstlane_b32 s4, v120")
    else:
        A("v_cvt_pk_bf16_f32 v121, v120, v120")
        A(f"ds_write_b16 v29, v121 offset:{L_HN}")
        A("v_lshlrev_b32 v120, 16, v121")
        if csd:
            A("v_cndmask_b32 v66, v140, v144, s[54:55]")
        A("v_readfirstlane_b32 s4, v120")
        A("s_waitcnt lgkmcnt(0)")
        A(f"ds_read_b128 v[124:127], v25 offset:{L_HN}")
        A(f"ds_read_b128 v[128:131], v25 offset:{L_HN + 64}")
    A("v_subrev_f32 v148, s4, v120")
    A("v_mov_b32 v150, s4")
    A("v_mul_f32 v149, v148, v148")
    steps = [f"{m} {FULL}" for m in ("row_shr:1", "row_shr:2", "row_shr:4", "row_shr:8")] + ["row_bcast:15 row_mask:0xa bank_mask:0xf", "row_bcast:31 row_mask:0xc bank_mask:0xf"]
    mf = [f"v_mfma_f32_16x16x32_bf16 v[132:135], v[124:127], v[{GW}:{GW + 3}], 0",
          f"v_mfma_f32_16x16x32_bf16 v[136:139], v[124:127], v[{GW + 8}:{GW + 11}], 0",
          f"v_mfma_f32_16x16x32_bf16 v[132:135], v[128:131], v[{GW + 4}:{GW + 7}], v[132:135]",
          f"v_mfma_f32_16x16x32_bf16 v[136:139], v[128:131], v[{GW + 12}:{GW + 15}], v[136:139]"]
    for k, m in enumerate(steps):
        A(f"v_add_f32_dpp v148, v148, v148 {m}")
        A(f"v_add_f32_dpp v149, v149, v149 {m}")
        if k == (0 if cfast else 1):
            if not cfast:
                A("s_waitcnt lgkmcnt(0)")
            stamp_at(8)
            A(mf[0])
            A(mf[1])
        if k == (1 if cfast else 2):
            A(mf[2])
            A(mf[3])
    A("s_mov_b32 exec_lo, 0\ns_mov_b32 exec_hi, 0x80000000")
    A(f"ds_write_b96 v23, v[148:150] offset:{L_H}")
    A("s_mov_b32 exec_lo, -1\ns_mov_b32 exec_hi, 0")
    A("v_cndmask_b32 v66, v132, v136, s[54:55]")
    A("s_mov_b64 exec, -1")
    A(f"ds_write_b32 v26, v66 offset:{L_B}")
    A("s_waitcnt lgkmcnt(0)")
    stamp_at(9)
    if c4:
        A("s_cmp_lt_u32 s3, 4")
    A("s_barrier")
    if c4:
        A("s_cbranch_scc0 L_cdone")
    A(f"ds_read_b96 v[124:126], v24 offset:{L_H}")
    for i in range(8):
        A(f"ds_read_b32 v{128 + i}, v27 offset:{L_B + 256 * i}")
    nd = 0
    if dlast:
        nd = 6
        for r in range(nd):
            A(f"ds_read_u16_d16_hi v{DW + r}, v28 offset:{L_W + 32768 + 1024 * r}")
    A("s_waitcnt lgkmcnt(0)" if stamps else f"s_waitcnt lgkmcnt({8 + nd})")
    stamp_at(10)
    x8 = ("quad_perm:[1,0,3,2]", "quad_perm:[2,3,0,1]", "row_half_mirror")
    A("v_fma_f32 v127, v126, s63, v124")
    A("v_add_f32 v124, v124, v124")
    A("s_waitcnt lgkmcnt(0)" if stamps else f"s_waitcnt lgkmcnt({4 + nd})")
    A(f"v_add_f32_dpp v127, v127, v127 {x8[0]} {FULL}")
    A("v_pk_add_f32 v[128:129], v[128:129], v[130:131]")
    A("s_waitcnt lgkmcnt(0)" if stamps else f"s_waitcnt lgkmcnt({nd})")
    if dlast:
        for r in range(nd, 15):
            A(f"ds_read_u16_d16_hi v{DW + r}, v28 offset:{L_W + 32768 + 1024 * r}")
    A(f"v_add_f32_dpp v127, v127, v127 {x8[1]} {FULL}")
    A("v_pk_add_f32 v[132:133], v[132:133], v[134:135]")
    A("v_pk_add_f32 v[128:129], v[128:129], v[132:133]")
    A(f"v_add_f32_dpp v127, v127, v127 {x8[2]} {FULL}")
    A("v_add_f32 v120, v128, v129")
    A("v_add_f32 v121, v128, v129")
    A("v_mul_f32 v127, 0x3b000000, v127")
    A("v_sub_f32 v126, v127, v126")
    A("v_permlane32_swap_b32 v120, v121")
    A("v_fma_f32 v124, v126, s63, -v124")
    A("v_fma_f32 v125, v126, v124, v125")
    A("v_fma_f32 v122, -v127, v121, v120")
    A("v_fma_f32 v121, -v127, v121, v120")
    A(f"v_add_f32_dpp v125, v125, v125 {x8[0]} {FULL}")
    A("v_mov_b32 v120, v122")
    A(f"v_add_f32_dpp v125, v125, v125 {x8[1]} {FULL}")
    A("v_permlane16_swap_b32 v120, v121")
    A(f"v_add_f32_dpp v125, v125, v125 {x8[2]} {FULL}")
    if dlast:
        A("s_waitcnt lgkmcnt(0)")
        A(f"ds_read_u16_d16_hi v{DW + 15}, v28 offset:{L_W + 32768 + 1024 * 15}")
    A("v_fma_f32 v125, v125, v67, v68")
    A("v_rsq_f32 v125, v125")
    A("v_mul_f32 v120, v120, v125")
    A("v_mul_f32 v121, v121, v125")
    A("v_mul_f32 v122, v120, v120")
    A("v_mul_f32 v121, v120, v121")
    A("v_fma_f32 v122, v122, v69, v70")
    A("v_mul_f32 v122, v122, v120")
    A("v_exp_f32 v122, v122")
    A("v_add_f32 v122, 1.0, v122")
    A("v_rcp_f32 v122, v122")
    A("v_mul_f32 v120, v121, v122")
    if dlast:
        A("s_waitcnt lgkmcnt(0)")
    if c4:
        for r in range(16):
            op = "mul" if r < 2 else "fmac"
            A(f"v_{op}_f32_dpp v{124 + 2 * (r & 1)}, v120, v{DW + r} row_newbcast:{r} {FULL}")
            A(f"v_{op}_f32_dpp v{125 + 2 * (r & 1)}, v120, v{40 + r} row_newbcast:{r} {FULL}")
        A("v_pk_add_f32 v[124:125], v[124:125], v[126:127]")
        A(f"v_mov_b32_dpp v126, v124 quad_perm:[1,1,3,3] {FULL}")
        A(f"v_mov_b32_dpp v127, v125 quad_perm:[1,1,3,3] {FULL}")
        A("s_mov_b32 exec_lo, 0x55555555\ns_mov_b32 exec_hi, 0x55555555")
        A("global_store_dwordx4 v22, v[124:127], s[38:39] sc1")
        if dup is not None and dup3:
            A("global_store_dwordx4 v21, v[124:127], s[38:39] sc1")
        A("s_mov_b64 exec, -1")
    else:
        for r in range(16):
            op = "mul" if r < 4 else "fmac"
            A(f"v_{op}_f32_dpp v{124 + (r & 3)}, v120, v{DW + r} row_newbcast:{r} {FULL}")
        A("v_pk_add_f32 v[124:125], v[124:125], v[126:127]")
        A("v_add_f32 v124, v124, v125")
        store_quad(124, 22, fl=st3, addr2=21 if (dup is not None and dup3) else None)
    A("L_cdone:")
    stamp_at(7)
    stamp_store()
    A("s_endpgm")
    A("L_final:")
    A("s_barrier")
    A("s_sub_u32 s15, s7, 14\ns_lshl_b32 s4, s6, 1\ns_add_u32 s15, s15, s4")
    A("v_and_b32 v16, 7, v0\nv_lshrrev_b32 v17, 3, v0\nv_lshlrev_b32 v17, 11, v17\nv_lshl_add_u32 v17, v16, 4, v17")
    A("v_and_b32 v22, 31, v0\ns_lshl_b32 s4, s15, 6\nv_lshl_add_u32 v18, v22, 1, s4")
    A("v_lshlrev_b32 v22, 2, v22")
    sigma(23, 24)
    A("v_lshl_add_u32 v23, v16, 2, v23\nv_lshl_add_u32 v19, v23, 1, s4")
    A(f"ds_read_u16_d16_hi v19, v19 offset:{L_X}")
    A("s_lshl_b32 s4, s3, 7\nv_lshl_add_u32 v23, v23, 2, s4")
    if dup is None:
        A(f"s_lshl_b32 s4, s3, 15\ns_add_u32 s4, s4, {WS_P3}")
        A("s_cmp_eq_u32 s3, 7")
        A(f"s_cselect_b32 s4, {WS_P2}, s4")
        A("s_lshl_b32 s5, s15, 7\ns_add_u32 s4, s4, s5")
        A("v_add_u32 v20, s4, v17\nv_add_u32 v21, 0x4000, v20")
    else:
        A("v_lshrrev_b32 v24, 5, v0\nv_lshlrev_b32 v24, 13, v24")
        mycopy("s8")
        A(f"s_lshl_b32 s4, s3, {16 if dup3 else 15}\ns_add_u32 s4, s4, {WS_P3}")
        A("s_cmp_eq_u32 s3, 7")
        A(f"s_cselect_b32 s4, {WS_P2}, s4")
        if dup3:
            A("s_add_u32 s4, s4, s8\ns_mov_b32 s9, 0x8000")
        else:
            A("s_cselect_b32 s8, s8, 0\ns_movk_i32 s9, 0x4000\ns_cselect_b32 s9, 0x8000, s9\ns_cselect_b32 s5, -1, 0\ns_add_u32 s4, s4, s8\nv_and_b32 v24, s5, v24")
        A("s_lshl_b32 s5, s15, 7\ns_add_u32 s4, s4, s5")
        A("v_add3_u32 v20, v17, v24, s4\nv_add_u32 v21, s9, v20")
    loads = [f"global_load_dwordx4 v[{120 + 4 * i}:{123 + 4 * i}], v{20 + i}, s[38:39] {ld3}" for i in range(2)]
    if dsleep is not None:
        A("s_cmp_eq_u32 s3, 7")
        A("s_cbranch_scc1 L_dgo")
        A("s_barrier")
        A(f"s_sleep {dsleep}")
        A("L_dgo:")
    poll("L_poll3", loads, range(120, 128), 16)
    if dsleep is not None:
        A("s_cmp_eq_u32 s3, 7")
        A("s_cbranch_scc0 L_dgo2")
        A("s_barrier")
        A("L_dgo2:")
    stamp_at(6)
    for e in range(4):
        A(f"v_add_f32 v{120 + e}, v{120 + e}, v{124 + e}")
    scatter4(120)
    A(f"v_add_f32_dpp v120, v120, v120 row_ror:8 {FULL}")
    A("s_cmp_eq_u32 s3, 7")
    A("s_cbranch_scc0 L_dnoh")
    A("s_waitcnt lgkmcnt(0)")
    A("v_add_f32 v120, v120, v19")
    rbf(120)
    A("L_dnoh:")
    A("s_mov_b32 exec_lo, 0x00ff00ff\ns_mov_b32 exec_hi, 0x00ff00ff")
    A(f"ds_write_b32 v23, v120 offset:{L_B}")
    A("s_mov_b64 exec, -1")
    A("s_cmp_eq_u32 s3, 0")
    A("s_waitcnt lgkmcnt(0)")
    A("s_barrier")
    A("s_cbranch_scc0 L_ddone")
    for i in range(8):
        A(f"ds_read_b32 v{120 + i}, v22 offset:{L_B + 128 * i}")
    A("s_waitcnt lgkmcnt(0)")
    for i in range(2):
        A(f"v_pk_add_f32 v[{120 + 2 * i}:{121 + 2 * i}], v[{120 + 2 * i}:{121 + 2 * i}], v[{124 + 2 * i}:{125 + 2 * i}]")
    A("v_pk_add_f32 v[120:121], v[120:121], v[122:123]")
    A("v_add_f32 v120, v120, v121")
    if perturb:
        import struct
        kind, val = perturb
        h = hex(struct.unpack("<I", struct.pack("<f", val))[0])
        if kind == "add": A(f"v_add_f32 v120, {h}, v120")
        if kind == "mul": A(f"v_mul_f32 v120, {h}, v120")
        if kind == "one":
            A("s_cmp_eq_u32 s15, 0\ns_cselect_b32 s4, 1, 0\ns_mov_b32 s5, 0\ns_mov_b64 exec, s[4:5]")
            A(f"v_add_f32 v120, {h}, v120\ns_mov_b64 exec, -1")
    A(f"v_mov_b32_dpp v121, v120 quad_perm:[1,0,3,2] {FULL}")
    A("v_cvt_pk_bf16_f32 v120, v120, v121")
    A("s_mov_b64 exec, 0x55555555")
    A("global_store_dword v18, v120, s[34:35]" + (" " + outfl if outfl else ""))
    stamp_at(7)
    if enc:
        a, b, mult = enc
        A("s_waitcnt lgkmcnt(0)")
        if a == "fix":
            A(f"s_mov_b32 s78, s64\ns_mov_b32 s4, {mult}")
        else:
            A(f"s_sub_u32 s4, s{64 + 2 * a}, s{64 + 2 * b}\ns_mul_i32 s4, s4, {mult}\ns_min_u32 s4, s4, 40000")
        A("L_enc:\ns_memrealtime s[8:9]\ns_waitcnt lgkmcnt(0)\ns_sub_u32 s5, s8, s78\ns_cmp_lt_u32 s5, s4\ns_cbranch_scc1 L_enc")
    A("L_ddone:")
    stamp_at(7)
    stamp_store()
    A("s_endpgm")

    for _ in range(pad3):
        A("s_nop 0")
    A("L_service:")
    A("s_setprio 3")
    A(f"v_mov_b32 v98, {L_F}\nv_mov_b32 v99, 0")
    A("ds_write_b32 v98, v99")
    A("ds_write_b32 v98, v99 offset:8")
    A("ds_write_b32 v98, v99 offset:12")
    A("ds_write_b32 v98, v99 offset:20")
    if not qearly:
        A("s_waitcnt lgkmcnt(0)")
        A("s_barrier")
    for i in range(4):
        A(f"v_mov_b32 v{100 + i}, -1")
    roles()
    p1slot("s4")
    A("v_add_u32 v104, s4, v9")
    A("s_cmp_eq_u32 s7, 0")
    A("s_waitcnt lgkmcnt(0)")
    if "svcoff" in xp:
        A("s_barrier\ns_branch L_svcbar" if qearly else "s_branch L_svcbar")
    A("s_cbranch_scc0 L_qcleared")
    A(f"s_lshl_b32 s10, s60, 13\nv_add_u32 v3, s10, v9\nv_add_u32 v8, 0x1000, v3")
    for i in range(8):
        A(f"global_store_dwordx4 v{3 if i < 4 else 8}, v[100:103], s[38:39] offset:{1024 * (i & 3)} sc1")
    A(f"s_lshl_b32 s10, s60, 7\ns_add_u32 s10, s10, {WS_F}\nv_add_u32 v3, s10, v9")
    A(f"s_lshl_b32 s10, s6, 7\ns_add_u32 s10, s10, {WS_G}\nv_add_u32 v8, s10, v9")
    A("s_mov_b64 exec, 0xff")
    A("global_store_dwordx4 v3, v[100:103], s[38:39] sc1")
    A("global_store_dwordx4 v8, v[100:103], s[38:39] sc1")
    if adapt or rankpre:
        A(f"global_store_dwordx4 v8, v[100:103], s[38:39] offset:{WS_R - WS_G - 4096 + 4096 - 0 if WS_R - WS_G < 4096 else 0} sc1" if False else f"v_add_u32 v8, {WS_R - WS_G}, v8\nglobal_store_dwordx4 v8, v[100:103], s[38:39] sc1")
    if dup == "auto" and vpos:
        A(f"v_add_u32 v8, {WS_V - WS_R}, v8\nglobal_store_dwordx4 v8, v[100:103], s[38:39] sc1")
    A("s_mov_b64 exec, -1")
    A("L_qcleared:")
    if qearly:
        A("s_barrier")
    nyoung = 0
    if "noclear" not in xp and sclr is None:
        A("global_store_dwordx4 v104, v[100:103], s[38:39] sc1")
        A("global_store_dwordx4 v104, v[100:103], s[38:39] offset:1024 sc1")
        nyoung += 2
        A("s_cmp_lt_u32 s7, 14")
        A("s_cbranch_scc0 L_noclr3")
        A(f"s_lshl_b32 s4, s15, 11\ns_add_u32 s4, s4, {WS_P3}\nv_add_u32 v105, s4, v9")
        A("global_store_dwordx4 v105, v[100:103], s[38:39] sc1")
        A("global_store_dwordx4 v105, v[100:103], s[38:39] offset:1024 sc1")
        A("L_noclr3:")
        A("s_cmp_ge_u32 s7, 16")
        A("s_cbranch_scc0 L_noclr2")
        A(f"s_lshl_b32 s4, s13, 11\ns_lshl_b32 s5, s14, 8\ns_add_u32 s4, s4, s5\ns_add_u32 s4, s4, {WS_P2}\nv_add_u32 v105, s4, v9")
        A("s_mov_b64 exec, 0xffff")
        A("global_store_dwordx4 v105, v[100:103], s[38:39] sc1")
        A("s_mov_b64 exec, -1")
        A("L_noclr2:")
    stamp_at(1)
    A("v_lshlrev_b32 v96, 5, v0")
    A("s_cmp_eq_u32 s7, 0")
    A("s_cbranch_scc0 L_noqflag")
    A("s_lshl_b32 s4, s60, 5\nv_mov_b32 v104, s4\nv_mov_b32 v105, 1")
    A(f"s_waitcnt vmcnt({4 if ('noclear' not in xp and sclr is None) else 0})")
    A("s_mov_b64 exec, 1")
    A("global_store_dword v104, v105, s[36:37] sc1")
    A("s_mov_b64 exec, -1")
    A("L_noqflag:")
    ldswait("L_waitwq", 12, 8)

    def firstlook():
        A("s_mov_b64 exec, 0xff")
        A("global_load_dword v97, v96, s[36:37] sc1")
        A("s_mov_b64 exec, -1")
    if qearly:
        firstlook()
    A(f"ds_read_b128 v[4:7], v9 offset:{L_X}")
    A("s_waitcnt lgkmcnt(0)")
    stamp_at(2)
    X = list(range(8, 16))
    X[1] = 3
    for i in range(4):
        A(f"v_lshlrev_b32 v{X[2 * i]}, 16, v{4 + i}")
        A(f"v_and_b32 v{X[2 * i + 1]}, 0xffff0000, v{4 + i}")
    ln_stats(X, 16, 17, 18, 19, 20, list(range(22, 30)))
    ln_apply(X, 16, 17, 18, list(range(22, 30)))
    for i in range(4):
        A(f"v_cvt_pk_bf16_f32 v{4 + i}, v{X[2 * i]}, v{X[2 * i + 1]}")
    A(f"ds_write_b128 v9, v[4:7] offset:{L_HN}")
    A(f"s_and_b32 s4, s7, {KS - 1}\ns_lshl_b32 s4, s4, {10 - KL}\nv_lshrrev_b32 v17, 4, v0\nv_lshl_add_u32 v16, v17, 4, s4")
    A("v_bfe_u32 v18, v0, 2, 2\nv_lshl_add_u32 v17, v17, 3, v18\nv_lshlrev_b32 v17, 7, v17\nv_and_b32 v18, 3, v0\nv_lshl_add_u32 v17, v18, 3, v17")
    A("s_waitcnt lgkmcnt(0)")
    NK = NQ // 4
    for k in range(NK):
        A(f"ds_read_b128 v[{32 + 4 * k}:{35 + 4 * k}], v16 offset:{L_HN + 64 * k}")
    stamp_at(3)
    if not qearly:
        firstlook()
    for k in range(NK):
        A("s_waitcnt lgkmcnt(0)")
        b = 64 + 16 * (k & 1)
        for tau in range(4):
            for t in range(2):
                r = b + 4 * tau + 2 * t
                A(f"ds_read_b64_tr_b16 v[{r}:{r + 1}], v17 offset:{L_W + 4096 * k + 512 * t + 32 * tau}")
        if k > 0:
            bp = 64 + 16 * ((k - 1) & 1)
            for tau in range(4):
                c = "0" if k == 1 else f"v[{112 + 4 * tau}:{115 + 4 * tau}]"
                A(f"v_mfma_f32_16x16x32_bf16 v[{112 + 4 * tau}:{115 + 4 * tau}], v[{28 + 4 * k}:{31 + 4 * k}], v[{bp + 4 * tau}:{bp + 4 * tau + 3}], {c}")
    A("s_waitcnt lgkmcnt(0)")
    for tau in range(4):
        A(f"v_mfma_f32_16x16x32_bf16 v[{112 + 4 * tau}:{115 + 4 * tau}], v[{28 + 4 * NK}:{31 + 4 * NK}], v[{80 + 4 * tau}:{83 + 4 * tau}], v[{112 + 4 * tau}:{115 + 4 * tau}]")
    A(f"s_lshl_b32 s4, s60, {11 + KL}\ns_and_b32 s5, s7, {KS - 1}\ns_lshl_b32 s5, s5, 11\ns_add_u32 s4, s4, s5\ns_lshr_b32 s5, s7, {KL}\ns_lshl_b32 s5, s5, 8\ns_add_u32 s4, s4, s5")
    A("v_lshl_add_u32 v17, v0, 2, s4")
    for tau in range(1, 4):
        A(f"v_mov_b32_dpp v112, v{112 + 4 * tau} quad_perm:[0,1,2,3] row_mask:{hex(1 << tau)} bank_mask:0xf")
    for i in (1, 2, 3):
        A(f"v_mov_b32_dpp v{112 + i}, v112 quad_perm:[{i},{i},{i},{i}] {FULL}")
    A("L_qdone:")
    A(f"s_lshl_b32 s4, s60, 5\ns_add_u32 s4, s4, s7\ns_lshl_b32 s4, s4, 2\ns_add_u32 s4, s4, {WS_F}\nv_mov_b32 v18, s4")
    A(f"s_lshl_b32 s4, s6, {11 + KL}\nv_add_u32 v19, s4, v9\nv_add_u32 v20, 0x1000, v19")
    A("s_getreg_b32 s62, hwreg(HW_REG_XCC_ID, 0, 4)\nv_mov_b32 v21, s62")
    A("s_lshl_b32 s4, 1, s60\ns_lshl_b32 s5, 1, s6\ns_or_b32 s4, s4, s5")
    if adapt:
        A(f"s_add_u32 s5, s7, {qrot}\ns_and_b32 s5, s5, 7\ns_lshl_b32 s5, 1, s5\ns_or_b32 s4, s4, s5")
    A("s_mov_b32 s5, 0")
    stamp_at(4)
    if "svc1" in xp: A("s_branch L_svcbar2")
    A("L_pollf:")
    A("s_waitcnt vmcnt(0) lgkmcnt(0)")
    A("v_cmp_ne_u32 vcc, 1, v97")
    A("s_and_b32 s57, vcc_lo, s4")
    A("s_cbranch_scc0 L_pollf_ok")
    A(f"s_add_u32 s5, s5, 1\ns_cmp_lt_u32 s5, {SPIN_MAX}\ns_cbranch_scc0 L_pollf_ok")
    A("s_sleep 8")
    A("s_mov_b64 exec, 0xff")
    A("global_load_dword v97, v96, s[36:37] sc1")
    A("s_mov_b64 exec, -1")
    A("s_branch L_pollf")
    A("L_pollf_ok:")
    if KS == 2:
        A("s_cmp_lt_u32 s7, 16")
        A("s_cbranch_scc0 L_noqpub")
    A("s_mov_b32 exec_lo, 0x11111111\ns_mov_b32 exec_hi, 0x11111111")
    A("global_store_dwordx4 v17, v[112:115], s[38:39] sc1")
    A("L_noqpub:")
    A("s_mov_b64 exec, 1")
    A("global_store_dword v18, v21, s[38:39] sc1")
    A("s_mov_b64 exec, -1")
    stamp_at(5)
    if "svc2" in xp: A("s_branch L_svcbar2")
    if warm == "spread":
        A("s_getpc_b64 s[48:49]")
        A("L_pc:")
        A(f"s_sub_u32 s48, s48, L_pc-{NAME}_kernel\ns_subb_u32 s49, s49, 0")
        A(f"s_lshl_b32 s4, s7, 9\nv_lshl_add_u32 v2, v0, 3, s4\nv_min_u32 v2, L_codeend-{NAME}_kernel-8, v2")
        A("global_load_dwordx2 v[128:129], v2, s[48:49]")
    elif warm:
        if warm == "one":
            A("s_cmp_eq_u32 s7, 1")
            A("s_cbranch_scc0 L_nowarm")
        A("s_getpc_b64 s[48:49]")
        A("L_pc:")
        A(f"s_sub_u32 s48, s48, L_pc-{NAME}_kernel\ns_subb_u32 s49, s49, 0")
        A(f"s_mov_b32 s4, L_codeend-{NAME}_kernel-16\nv_mov_b32 v2, v9\ns_mov_b32 s5, 0")
        A("L_warm:")
        A("v_min_u32 v3, s4, v2")
        A("global_load_dwordx4 v[128:131], v3, s[48:49]")
        A("v_add_u32 v2, 1024, v2\ns_add_u32 s5, s5, 1024\ns_cmp_lt_u32 s5, s4\ns_cbranch_scc1 L_warm")
    if warm:
        A("L_nowarm:")
    if adapt:
        A(f"s_and_b32 s4, s7, 7\ns_lshl_b32 s4, s4, 7\ns_add_u32 s4, s4, {WS_R}\nv_mov_b32 v26, s4\nv_mov_b32 v27, 1")
    ldswait("L_waitpos", 8)
    if adapt:
        A("s_mov_b64 exec, 1")
        A("global_atomic_add v28, v26, v27, s[38:39] sc0 sc1")
        A("s_mov_b64 exec, -1")
    poll("L_pollq", [f"global_load_dwordx4 v[{32 + 4 * i}:{35 + 4 * i}], v{19 + (i >> 2)}, s[38:39] offset:{1024 * (i & 3)} sc1" for i in range(2 * KS)],
         range(32, 32 + 8 * KS), 16, slp=qsleep)
    stamp_at(6)
    for e in range(8):
        A(f"v_add_f32 v{32 + e}, v{32 + e}, v{40 + e}")
        if KS == 4:
            A(f"v_add_f32 v{48 + e}, v{48 + e}, v{56 + e}")
    if KS == 4:
        for e in range(8):
            A(f"v_add_f32 v{32 + e}, v{32 + e}, v{48 + e}")
    for e in range(4):
        A(f"v_cvt_pk_bf16_f32 v{40 + e}, v{32 + 2 * e}, v{33 + 2 * e}")
    A("v_lshlrev_b32 v16, 3, v0")
    A(f"ds_write_b64 v16, v[40:41] offset:{L_Q}")
    A(f"ds_write_b64 v16, v[42:43] offset:{L_Q + 512}")
    if adapt:
        A("v_readfirstlane_b32 s4, v28")
        A("s_add_u32 s4, s4, 2")
        A("v_mov_b32 v99, s4")
    else:
        A("v_mov_b32 v99, 1")
    A("s_waitcnt lgkmcnt(0)")
    A("ds_write_b32 v98, v99")
    stamp_at(7)
    if "svc4" in xp: A("s_branch L_svcbar2")
    A("s_mov_b32 s5, 0")
    A("L_pollf2:")
    A("s_mov_b64 exec, 0xff")
    A("global_load_dword v97, v96, s[36:37] sc1")
    A("s_waitcnt vmcnt(0)")
    A("v_cmp_ne_u32 vcc, 1, v97")
    A("s_mov_b64 exec, -1")
    A("s_cbranch_vccz L_pollf2_ok")
    A(f"s_add_u32 s5, s5, 1\ns_cmp_lt_u32 s5, {SPIN_MAX}\ns_cbranch_scc1 L_pollf2")
    A("L_pollf2_ok:")
    stamp_at(8)
    A(f"v_add_u32 v19, {WS_F}, v9")
    poll("L_pollall", ["global_load_dwordx4 v[32:35], v19, s[38:39] sc1"], range(32, 36), 16, slp=16)
    stamp_at(9)
    A("v_xor_b32 v32, v32, v21\nv_xor_b32 v33, v33, v21\nv_xor_b32 v34, v34, v21\nv_xor_b32 v35, v35, v21")
    A("v_or_b32 v32, v32, v33\nv_or3_b32 v32, v32, v34, v35")
    A("v_cmp_ne_u32 vcc, 0, v32")
    A("s_lshl_b32 s4, s60, 3\ns_lshr_b64 s[4:5], vcc, s4\ns_and_b32 s4, s4, 0xff")
    A("s_cselect_b32 s4, 0, 1" if local and "far" not in xp else "s_mov_b32 s4, 0")
    A("L_svcend:")
    A("s_mov_b32 s63, s4")
    if dup == "auto":
        A(f"s_andn2_b32 s8, s7, 4\ns_lshl_b32 s9, s6, 5\ns_add_u32 s8, s8, s9\ns_lshl_b32 s8, s8, 11\ns_and_b32 s9, s7, 4\ns_lshl_b32 s9, s9, 8")
        A(f"s_add_u32 s8, s8, s9\ns_add_u32 s8, s8, {WS_P1}\ns_add_u32 s12, s38, s8\ns_addc_u32 s13, s39, 0\ns_mov_b32 s10, 0")
        A("s_waitcnt lgkmcnt(0)")
        for t in range(ntr):
            A("s_mov_b32 s8, 0\ns_mov_b32 s9, 0")
            o0, o1 = 128 * t, 128 * t + 8192
            A(f"s_load_dword s9, s[12:13], {o1}\ns_load_dword s8, s[12:13], {o0}" if t & 1 else f"s_load_dword s8, s[12:13], {o0}\ns_load_dword s9, s[12:13], {o1}")
            A("s_waitcnt lgkmcnt(1)")
            A("s_sub_u32 s11, s9, s8")
            A("s_waitcnt lgkmcnt(0)")
            A("s_add_u32 s10, s10, s11")
        if vpos:
            A("s_cmp_eq_u32 s63, 1")
            A("s_cbranch_scc0 L_novote")
            A(f"s_lshl_b32 s8, s6, 7\ns_add_u32 s8, s8, {WS_V}\nv_and_b32 v16, 31, v0\nv_lshl_add_u32 v16, v16, 2, s8")
            A("s_lshl_b32 s9, s7, 2\ns_add_u32 s8, s8, s9\nv_mov_b32 v17, s8\ns_add_u32 s10, s10, 16\nv_mov_b32 v18, s10")
            A("s_mov_b64 exec, 1\nglobal_store_dword v17, v18, s[38:39]\ns_mov_b64 exec, -1")
            ldswait("L_waitv", 20)
            A("global_load_dword v18, v16, s[38:39] sc1")
            A("s_waitcnt vmcnt(0)")
            A("v_cmp_lt_i32 vcc, 16, v18")
            A("s_bcnt1_i32_b64 s10, vcc")
            A("v_cmp_gt_u32 vcc, 16, v18")
            A("s_bcnt1_i32_b64 s8, vcc")
            A("s_sub_u32 s10, s10, s8")
            A("L_novote:")
        A("s_cmp_lt_i32 s10, 0\ns_cselect_b32 s10, 0x2000, 0\nv_mov_b32 v99, s10")
        A("ds_write_b32 v98, v99 offset:16")
        roles()
    A("v_mov_b32 v99, s63")
    A("ds_write_b32 v98, v99 offset:4")
    A(f"s_lshl_b32 s4, s6, 7\ns_add_u32 s4, s4, {WS_G}\nv_and_b32 v16, 31, v0\nv_lshl_add_u32 v16, v16, 2, s4")
    A("s_lshl_b32 s5, s7, 2\ns_add_u32 s4, s4, s5\nv_mov_b32 v17, s4\nv_mov_b32 v18, 0")
    A(f"s_and_b32 s4, s7, {0 if rankpre else 15}\ns_mul_i32 s4, s4, {32 * 3584}\ns_mul_i32 s5, s6, 448\ns_andn2_b32 s5, s5, 127\ns_add_u32 s4, s4, s5")
    A("v_lshrrev_b32 v21, 5, v0\nv_mul_u32_u24 v21, 3584, v21\nv_and_b32 v22, 31, v0\nv_lshl_add_u32 v21, v22, 4, v21\nv_add_u32 v21, s4, v21")
    if rankpre:
        A(f"s_lshl_b32 s4, s6, 7\ns_add_u32 s4, s4, {WS_R}\nv_mov_b32 v26, s4\nv_mov_b32 v27, 1")
        A("s_lshl_b32 s4, s7, 1\ns_sub_u32 s4, s4, 1\nv_mov_b32 v28, 0")
    A("v_lshrrev_b32 v22, 1, v0\nv_mul_u32_u24 v22, 3584, v22\nv_and_b32 v23, 1, v0\nv_lshl_add_u32 v22, v23, 4, v22\ns_lshl_b32 s4, s15, 5\nv_add_u32 v22, s4, v22")
    A("s_lshl_b32 s4, s15, 14\nv_add_u32 v23, s4, v9")
    A("s_waitcnt lgkmcnt(0)")
    A("s_barrier")
    A("s_barrier")
    A("s_barrier")
    assert gate and dsplit

    def wloop(label, n, lds, body):
        A(f"s_mov_b32 s5, {n}")
        if lds is not None:
            A(f"s_mov_b32 m0, {lds}")
        A(f"{label}:")
        body()
        A(f"s_sub_u32 s5, s5, 1\ns_cmp_lg_u32 s5, 0\ns_cbranch_scc1 {label}")

    def b_pre():
        A("global_load_dwordx4 v[32:35], v21, s[28:29]")
        A("global_load_dwordx4 v[32:35], v21, s[30:31]")
        A("v_add_u32 v21, 7168, v21")

    def b_down():
        A(f"global_load_lds_dwordx4 v23, s[32:33]{wntf}")
        A("v_add_u32 v23, 1024, v23\ns_add_u32 m0, m0, 1024")

    def b_gu():
        A("global_load_lds_dwordx4 v22, s[28:29]")
        A("s_add_u32 m0, m0, 16384")
        A("global_load_lds_dwordx4 v22, s[30:31]")
        A(f"v_add_u32 v22, {32 * 3584}, v22\ns_sub_u32 m0, m0, {16384 - 1024}")

    def only(cond, label, body):
        A(cond)
        A(f"s_cbranch_scc0 {label}")
        body()
        A(f"{label}:")
    after_pre = 0
    for k, step in enumerate(pm):
        if step in "SgG" and not gsync:
            continue
        if step in "PDU" and "now" in xp:
            continue
        if step == "D" and dlate and not dlast:
            continue
        if step == "S":
            def sig():
                A("s_mov_b64 exec, 1\nglobal_store_dword v17, v18, s[38:39]")
                if rankpre:
                    only("s_cmp_lt_u32 s7, 16", "L_norank", lambda: A("global_atomic_add v28, v26, v27, s[38:39] sc0 sc1"))
                A("s_mov_b64 exec, -1")
            only("s_cmp_eq_u32 s63, 1", "L_nosig", sig)
        elif step in "12":
            A("s_barrier")

        elif step == "g":
            only("s_cmp_eq_u32 s63, 1", f"L_nog{k}", lambda: A("global_load_dword v19, v16, s[38:39] sc1"))
        elif step == "G":
            def gwait():
                A("s_mov_b32 s5, 0")
                A("L_pollg:")
                A("s_waitcnt vmcnt(0)")
                A("v_cmp_eq_u32 vcc, -1, v19")
                if gmiss:
                    A(f"s_bcnt1_i32_b32 s4, vcc_lo\ns_cmp_le_u32 s4, {gmiss}\ns_cbranch_scc1 L_gok")
                else:
                    A("s_cbranch_vccz L_gok")
                A(f"s_add_u32 s5, s5, 1\ns_cmp_lt_u32 s5, {SPIN_MAX}\ns_cbranch_scc0 L_gok")
                A(f"s_sleep {gsleep}")
                A("global_load_dword v19, v16, s[38:39] sc1")
                A("s_branch L_pollg")
            only("s_cmp_eq_u32 s63, 1", "L_gok", gwait)
            stamp_at(10)
        elif step == "P":
            if pref and not rankpre:
                only("s_cmp_lt_u32 s7, 16", "L_nopre", lambda: wloop("L_wpre", 16, None, b_pre))
            if pref and rankpre:
                def pre():
                    A("s_waitcnt vmcnt(0)")
                    A("v_readfirstlane_b32 s8, v28")
                    A("s_add_u32 s8, s8, 1\ns_mul_i32 s9, s8, 3\ns_lshl_b32 s4, s8, 1\ns_add_u32 s4, s4, 8")
                    A("s_cmp_lt_u32 s8, 8\ns_cselect_b32 s9, s9, s4\ns_cselect_b32 s5, 24, 16")
                    A("s_cmp_lt_u32 s8, 12\ns_cselect_b32 s5, s5, 0")
                    A("s_lshl_b32 s4, s7, 1\ns_cmp_eq_u32 s63, 1\ns_cselect_b32 s9, s9, s4\ns_cselect_b32 s5, s5, 16")
                    A(f"s_mul_i32 s9, s9, {16 * 3584}\nv_add_u32 v21, s9, v21")
                    A("s_cmp_eq_u32 s5, 0\ns_cbranch_scc1 L_nopre")
                    A("L_wpre:")
                    b_pre()
                    A("s_sub_u32 s5, s5, 1\ns_cmp_lg_u32 s5, 0\ns_cbranch_scc1 L_wpre")
                    A("s_waitcnt vmcnt(30)")
                only("s_cmp_lt_u32 s7, 16", "L_nopre", pre)
            after_pre = 0
        elif step == "D":
            A("s_waitcnt vmcnt(46)")
            only("s_cmp_lt_u32 s7, 14", "L_nodown", lambda: wloop("L_wdown", 16, L_W + 32768, b_down))
            after_pre = 16
        elif step == "w":
            A(f"s_waitcnt vmcnt({after_pre})")
            stamp_at(11)
        elif step == "z":
            A(f"s_sleep {cdelay}")
        elif step == "U":
            only("s_cmp_lt_u32 s7, 14", "L_nogu", lambda: wloop("L_wgu", 16, L_W, b_gu))
    only("s_cmp_lt_u32 s7, 14", "L_wdone", lambda: A("s_waitcnt vmcnt(16)\ns_barrier" if dlast else "s_barrier" if dlate else "s_waitcnt vmcnt(32)\ns_barrier"))
    A("s_waitcnt vmcnt(0)")
    stamp_at(12)
    if stamps:
        A("s_waitcnt lgkmcnt(0)")
        for i in range(16):
            A(f"v_writelane_b32 v4, s{64 + 2 * i}, {i}")
        A(f"v_lshlrev_b32 v5, 2, v0\nds_write_b32 v5, v4 offset:{L_G}\ns_waitcnt lgkmcnt(0)")
    A("s_barrier")
    A("s_endpgm")
    if xp:
        A("L_svcbar:")
        A("L_svcbar2:")
        A("v_mov_b32 v99, 1")
        A("ds_write_b32 v98, v99")
        A("s_mov_b32 s4, 0")
        A("s_branch L_svcend")
    A("L_end:")
    A("s_endpgm")
    A("L_codeend:")

    if jitter is not None:
        import random
        rnd = random.Random(jitter)
        C2 = []
        k = 0
        for blk in C:
            for ln in blk.split("\n"):
                if ln.startswith(("s_barrier", "global_store", "global_atomic")) and rnd.random() < 0.7:
                    k += 1
                    C2.append(f"s_cselect_b32 s91, 1, 0\ns_mul_i32 s90, s2, {rnd.randrange(3, 99, 2)}\ns_add_u32 s90, s90, s3\ns_mul_i32 s90, s90, {rnd.randrange(1001, 99999, 2)}")
                    C2.append(f"s_lshr_b32 s90, s90, 5\ns_and_b32 s90, s90, {rnd.choice((3, 7, 15, 63))}\ns_cmp_eq_u32 s90, 1\ns_cbranch_scc0 L_jit{k}\ns_sleep {rnd.choice((2, 10, 40, 120))}\nL_jit{k}:\ns_cmp_eq_u32 s91, 1")
                C2.append(ln)
        C = C2
    body = fix(C)
    out = HEADER
    out += f"; @launch grid=(256,1,1) block=(576,1,1) lds={LDS_BYTES}\n"
    out += DOC.lstrip("\n")
    out += '.amdgcn_target "amdgcn-amd-amdhsa--gfx950"\n.text\n'
    out += f".globl {NAME}_kernel\n.p2align 8\n.type {NAME}_kernel,@function\n{NAME}_kernel:\n"
    out += "\n".join(("" if l.endswith(":") else "    ") + l for l in body) + "\n"
    out += f""".section .rodata,"a"
.p2align 6
.amdhsa_kernel {NAME}_kernel
  .amdhsa_next_free_vgpr 168
  .amdhsa_next_free_sgpr 96
  .amdhsa_accum_offset 168
  .amdhsa_group_segment_fixed_size 0
  .amdhsa_kernarg_size 96
  .amdhsa_user_sgpr_count 2
  .amdhsa_user_sgpr_kernarg_segment_ptr 1
  .amdhsa_system_sgpr_workgroup_id_x 1
  .amdhsa_float_denorm_mode_32 3
.end_amdhsa_kernel
"""
    return out


if __name__ == "__main__":
    cfg = eval("dict(" + (sys.argv[2] if len(sys.argv) > 2 else "") + ")")
    open(sys.argv[1], "w").write(gen(**cfg))
```

```python
import sys
from asmlib import fix, VM

NAME = "sequential_preLN__gqa_block_cached__glu_gated_geglu__decode"
HEADER = open("cdna_kernels/" + NAME + ".s.ref").read().split("; Override launch")[0]

WS_Q = 0x0
WS_F = 0x10000
WS_G = 0x11000
WS_R = 0x12000
WS_V = 0x13000
WS_A = 0x14000
WS_P1 = 0x20000
P1_STRIDE = 2048
WS_P2 = 0xB0000
WS_P3 = 0xC0000
WS_STAMP = 0x200000
L_Q = 0
L_X = 1024
L_M = 2048
L_L = 2176
L_F = 2304
L_B = 2560
L_H = 4608
L_HN = 6656
L_G = 7680
L_W = 8704
L_K = L_W + 49152
KRING = 3
VRING = 5
LDS_BYTES = L_K + 8 * KRING * 4096

DOC = r'''
; ---------------------------------------------------------------------------------------------------------------------
; One launch, 256 workgroups (one per CU) of 8 streaming waves + 1 service wave.  x = wg & 7, y = wg >> 3.
;
; Streaming waves: workgroup (x, y) owns 1024 keys of KV head x (8 rounds of one 16-key tile per wave).  K tiles go to
;   S^T = K q^T by MFMA (4 heads x 4 copies across the 16 columns), scores rounded to bf16 where the reference rounds,
; Service wave: LayerNorm(x), a 64 x 128 block of the q projection, exchange of q through d_ws, prefetch of the FFN weights.
;       stage D  (y = 14, 15) sums the FFN partials, adds the residual, writes 32 outputs
; Hand-offs: every slot is first set to 0xffffffff by this launch; readers start polling only after a chain of flags that
;   ids published in this launch shows all 32 workgroups of a head on one die, P1 and the helper flags use that die's L2.
; ---------------------------------------------------------------------------------------------------------------------
'''
LOG2E = 0x3FB8AA3B
SCALE = 0x3DB504F3
FULL = "row_mask:0xf bank_mask:0xf"
SPIN_MAX = 200000


def gen(D=3, D2=3, nt=True, inter="global", stamps=False, wnt=True, warm='spread', sleep=1, qsleep=4,
        xp=(), masked=True, qrot=4, local=True, qpos=18, pref=True, fold=True, bpos=None, bwait=False, ppos=None, kfirst=True, wb=False, pad1=0, pad2=0, pad3=0, gsync=True, gsleep=2, cdelay=0, opos=None, enc=None, dsplit=True, early=False, gate=True, sclr='after', qearly=True, lpos='b1b', order=None, pm='Sg2GPU', dsleep=None, cfast=False, adapt=None, d2from=32, D3=None, d3from=56, split=False, dup='auto', dup3=True, rankpre=True, gmiss=16, ntr=2, vpos=44, dlate=True, outfl='', jitter=None, p1plain=False, clrpos=3, wqfirst=False, dseq=None, NB=3, bar1c=True, lp=('c', 'c', 'c', 'c'), dlast=False, csd=False, c4=True, b4=False, bprep=True, txor=None, clrbal=True, crot=0, Dinit=None, boost=range(50, 64), dyn=None, dynodd=0, dyn2=None):
    C = []
    A = C.append
    if dyn2:
        boost = range(min(st for _, st in dyn2), 64)
    if dlast:
        pm = pm + "D"
    ntf = " nt" if nt else ""
    wntf = " nt" if wnt else ""
    D2 = D if D2 is None else D2
    hmap = "xcd"; KS = 4; ld2 = ld3 = st2 = st3 = "sc1"; peel = False; late4 = True; cpos = ("end",) * 6; fastln = True; perturb = None
    Dinit = D if Dinit is None else Dinit
    bpos = (Dinit + max(3, clrpos) if kfirst else D) if bpos is None else bpos
    KL = KS.bit_length() - 1
    NQ = 64 // KS
    QR = 2048 * KS

    def stamp_at(k):
        if stamps:
            A(f"s_memrealtime s[{64 + 2 * k}:{65 + 2 * k}]")

    def stamp_store():
        if not stamps or stamps == "enc":
            return
        A("s_waitcnt lgkmcnt(0)")
        if stamps == "dbg":
            lab = f"L_dbg{len(C)}"
            A("s_and_b32 s4, s3, 7\ns_cmp_eq_u32 s4, 0")
            A(f"s_cbranch_scc0 {lab}")
            A("s_not_b32 s64, s64")
            A("s_cmp_eq_u32 s3, 8")
            sel0 = (0, 1, 2, 4, 5, 6, 7)
            sel8 = (2, 4, 5, 6, 7, 8, 9)
            A("s_mov_b64 exec, -1")
            for i in range(7):
                A(f"s_cselect_b32 s4, s{64 + 2 * sel8[i]}, s{64 + 2 * sel0[i]}")
                A(f"v_writelane_b32 v4, s4, {i}")
            A("s_lshl_b32 s4, s3, 2\ns_add_u32 s4, s4, 4\nv_lshl_add_u32 v1, v0, 2, s4")
            A("s_mov_b64 exec, 0x7f")
            A("global_atomic_umax v1, v4, s[36:37] sc1")
            A(f"{lab}:")
            return
        lab = f"L_st{len(C)}"
        A(f"s_cmp_eq_u32 s3, 1\ns_cbranch_scc0 {lab}")
        A(f"s_mov_b64 exec, 0xffff\nv_lshlrev_b32 v5, 2, v0\nds_read_b32 v4, v5 offset:{L_G}")
        A(f"s_lshl_b32 s4, s2, 4\ns_add_u32 s4, s4, 8\ns_lshl_b32 s4, s4, 6\ns_add_u32 s4, s4, {WS_STAMP}\nv_add_u32 v5, s4, v5")
        A("s_waitcnt lgkmcnt(0)\nglobal_store_dword v5, v4, s[38:39]\ns_nop 1")
        A(f"{lab}:")
        A("s_mov_b64 exec, 1")
        A("s_lshl_b32 s4, s2, 4\ns_add_u32 s4, s4, s3\ns_lshl_b32 s4, s4, 6")
        A(f"s_add_u32 s4, s4, {WS_STAMP}")
        A("v_mov_b32 v1, s4")
        A("s_getreg_b32 s94, hwreg(HW_REG_XCC_ID)")
        if stamps == "hw":
            A("s_getreg_b32 s90, hwreg(HW_REG_HW_ID)")
        A("s_lshl_b32 s92, s62, 16\ns_add_u32 s92, s92, s59\ns_lshl_b32 s4, s49, 11\ns_add_u32 s92, s92, s4")
        for q in range(4):
            for i in range(4):
                A(f"v_mov_b32 v{4 + i}, s{64 + 2 * (4 * q + i)}")
            A(f"global_store_dwordx4 v1, v[4:7], s[38:39] offset:{16 * q}")
            A("s_nop 1")

    def rowsum(a, op="add"):
        for s in (8, 4, 2, 1):
            A(f"v_{op}_f32_dpp v{a}, v{a}, v{a} row_ror:{s} {FULL}")

    def xrow(a, t, op="add"):
        A(f"v_mov_b32 v{t}, v{a}")
        A(f"v_permlane16_swap_b32 v{a}, v{t}")
        A(f"v_{op}_f32 v{a}, v{a}, v{t}")
        A(f"v_mov_b32 v{t}, v{a}")
        A(f"v_permlane32_swap_b32 v{a}, v{t}")
        A(f"v_{op}_f32 v{a}, v{a}, v{t}")

    def scatter4(r):
        A(f"v_permlane32_swap_b32 v{r}, v{r + 1}\nv_permlane32_swap_b32 v{r + 2}, v{r + 3}")
        A(f"v_add_f32 v{r}, v{r}, v{r + 1}\nv_add_f32 v{r + 2}, v{r + 2}, v{r + 3}")
        A(f"v_permlane16_swap_b32 v{r}, v{r + 2}")
        A(f"v_add_f32 v{r}, v{r}, v{r + 2}")

    def sigma(dst, t):
        A(f"v_bfe_u32 v{dst}, v0, 4, 1\nv_lshrrev_b32 v{t}, 5, v0\nv_lshl_add_u32 v{dst}, v{dst}, 1, v{t}")

    def rbf(a):
        A(f"v_cvt_pk_bf16_f32 v{a}, v{a}, v{a}")
        A(f"v_lshlrev_b32 v{a}, 16, v{a}")

    def ln_stats(vals, mean, den, rden, t0, t1, tmp):
        A(f"v_add_f32 v{t0}, v{vals[0]}, v{vals[1]}")
        A(f"v_add_f32 v{t1}, v{vals[2]}, v{vals[3]}")
        A(f"v_add_f32 v{mean}, v{vals[4]}, v{vals[5]}")
        A(f"v_add_f32 v{den}, v{vals[6]}, v{vals[7]}")
        A(f"v_add_f32 v{t0}, v{t0}, v{t1}")
        A(f"v_add_f32 v{mean}, v{mean}, v{den}")
        A(f"v_add_f32 v{mean}, v{mean}, v{t0}")
        rowsum(mean)
        xrow(mean, t0)
        A(f"v_mul_f32 v{mean}, 0x3b000000, v{mean}")
        for i in range(8):
            A(f"v_sub_f32 v{tmp[i]}, v{vals[i]}, v{mean}")
        A(f"v_mul_f32 v{den}, v{tmp[0]}, v{tmp[0]}")
        A(f"v_mul_f32 v{t1}, v{tmp[1]}, v{tmp[1]}")
        for i in range(2, 8, 2):
            A(f"v_fmac_f32 v{den}, v{tmp[i]}, v{tmp[i]}")
            A(f"v_fmac_f32 v{t1}, v{tmp[i + 1]}, v{tmp[i + 1]}")
        A(f"v_add_f32 v{den}, v{den}, v{t1}")
        rowsum(den)
        xrow(den, t0)
        A(f"v_mul_f32 v{den}, 0x3b000000, v{den}")
        A(f"v_cvt_pk_bf16_f32 v{t0}, v{mean}, v{den}")
        A(f"v_lshlrev_b32 v{mean}, 16, v{t0}")
        A(f"v_and_b32 v{den}, 0xffff0000, v{t0}")
        A(f"v_add_f32 v{den}, 0x3727c5ac, v{den}")
        rbf(den)
        A(f"v_sqrt_f32 v{t0}, v{den}")
        A(f"v_rsq_f32 v{t1}, v{den}")
        A(f"v_fma_f32 v{den}, -v{t0}, v{t0}, v{den}")
        A(f"v_mul_f32 v{t1}, 0.5, v{t1}")
        A(f"v_fma_f32 v{den}, v{den}, v{t1}, v{t0}")
        rbf(den)
        A(f"v_rcp_f32 v{rden}, v{den}")

    def ln_apply(xs, mean, den, rden, ts):
        for x in xs:
            A(f"v_sub_f32 v{x}, v{x}, v{mean}")
        for x in xs:
            A(f"v_cvt_pk_bf16_f32 v{x}, v{x}, v{x}")
        for x in xs:
            A(f"v_lshlrev_b32 v{x}, 16, v{x}")
        for x, t in zip(xs, ts):
            A(f"v_mul_f32 v{t}, v{x}, v{rden}")
        for x, t in zip(xs, ts):
            A(f"v_fma_f32 v{x}, -v{t}, v{den}, v{x}")
        for x, t in zip(xs, ts):
            A(f"v_fma_f32 v{x}, v{x}, v{rden}, v{t}")

    def ln2():
        A("v_mov_b32 v133, v132")
        for i in range(4):
            A(f"v_pk_add_f32 v[{124 + 2 * i}:{125 + 2 * i}], v[{124 + 2 * i}:{125 + 2 * i}], v[132:133] neg_lo:[0,1] neg_hi:[0,1]")
        A("v_pk_add_f32 v[134:135], v[124:125], v[126:127]")
        A("v_pk_mul_f32 v[136:137], v[124:125], v[124:125]")
        A("v_pk_add_f32 v[138:139], v[128:129], v[130:131]")
        A("v_pk_fma_f32 v[136:137], v[126:127], v[126:127], v[136:137]")
        A("v_pk_add_f32 v[134:135], v[134:135], v[138:139]")
        A("v_pk_fma_f32 v[136:137], v[128:129], v[128:129], v[136:137]")
        A("v_add_f32 v16, v134, v135")
        A("v_pk_fma_f32 v[136:137], v[130:131], v[130:131], v[136:137]")
        A("v_add_f32 v17, v136, v137")
        for m in ("row_shr:1", "row_shr:2", "row_shr:4", "row_shr:8"):
            A(f"v_add_f32_dpp v16, v16, v16 {m} {FULL} bound_ctrl:0")
            A(f"v_add_f32_dpp v17, v17, v17 {m} {FULL} bound_ctrl:0")
        for m in ("row_bcast:15 row_mask:0xa", "row_bcast:31 row_mask:0xc"):
            A(f"v_add_f32_dpp v16, v16, v16 {m} bank_mask:0xf")
            A(f"v_add_f32_dpp v17, v17, v17 {m} bank_mask:0xf")
        A("v_readlane_b32 s4, v16, 63")
        A("v_readlane_b32 s5, v17, 63")
        A("v_mov_b32 v18, 0x3b000000")
        A("v_mul_f32 v16, s4, v18")
        A("v_mul_f32 v17, s5, v18")
        A("v_fma_f32 v17, -v16, v16, v17")
        A("v_add_f32 v16, v16, v132")
        A("v_max_f32 v17, 0, v17")
        A("v_cvt_pk_bf16_f32 v18, v16, v17")
        A("v_and_b32 v17, 0xffff0000, v18")
        A("v_lshlrev_b32 v16, 16, v18")
        A("v_add_f32 v17, 0x3727c5ac, v17")
        A("v_sub_f32 v120, v120, v16")
        A("v_cvt_pk_bf16_f32 v18, v120, v17")
        A("v_and_b32 v17, 0xffff0000, v18")
        A("v_sqrt_f32 v17, v17")
        A("v_lshlrev_b32 v120, 16, v18")
        rbf(17)
        A("v_rcp_f32 v18, v17")
        A("v_mul_f32 v19, v120, v18")
        A("v_fma_f32 v120, -v19, v17, v120")
        A("v_fma_f32 v120, v120, v18, v19")

    def poll(label, loads, regs, t, slp=None, between=None):
        slp = sleep if slp is None else slp
        A("s_mov_b32 s59, 0")
        if between:
            for l in loads:
                A(l)
            between()
            A(f"s_branch {label}_chk")
        A(f"{label}:")
        for l in loads:
            A(l)
        if between:
            A(f"{label}_chk:")
        A("s_waitcnt vmcnt(0)")
        regs = list(regs)
        if len(regs) == 1:
            t = regs[0]
            rest = []
        elif len(regs) % 2 == 0:
            A(f"v_max_u32 v{t}, v{regs[0]}, v{regs[1]}")
            rest = regs[2:]
        else:
            A(f"v_max3_u32 v{t}, v{regs[0]}, v{regs[1]}, v{regs[2]}")
            rest = regs[3:]
        for i in range(0, len(rest), 2):
            A(f"v_max3_u32 v{t}, v{t}, v{rest[i]}, v{rest[i + 1]}")
        A(f"v_cmp_eq_u32 vcc, -1, v{t}")
        A(f"s_branch {label}_ok" if ("svc3" in xp and label in ("L_pollq", "L_pollall")) else f"s_cbranch_vccz {label}_ok")
        A("s_add_u32 s59, s59, 1")
        A(f"s_cmp_lt_u32 s59, {SPIN_MAX}")
        A(f"s_cbranch_scc0 {label}_ok")
        if masked:
            A("s_mov_b64 exec, vcc")
        if slp:
            A(f"s_sleep {slp}")
        A(f"s_branch {label}")
        A(f"{label}_ok:")
        if masked:
            A("s_mov_b64 exec, -1")

    def ldswait(label, off, val=None):
        A(f"v_mov_b32 v24, {L_F}\ns_mov_b32 s5, 0")
        A(f"{label}:")
        A(f"ds_read_b32 v25, v24 offset:{off}")
        A("s_waitcnt lgkmcnt(0)")
        A("v_cmp_ne_u32 vcc, 0, v25" if val is None else f"v_cmp_eq_u32 vcc, {val}, v25")
        A(f"s_cbranch_vccnz {label}_ok")
        A(f"s_add_u32 s5, s5, 1\ns_cmp_lt_u32 s5, {SPIN_MAX * 64}\ns_cbranch_scc0 {label}_ok")
        A("s_sleep 1")
        A(f"s_branch {label}")
        A(f"{label}_ok:")

    def store_quad(val, addr, lo="0x11111111", hi="0x11111111", fl="sc1", addr2=None):
        for i in (1, 2, 3):
            A(f"v_mov_b32_dpp v{val + i}, v{val} quad_perm:[{i},{i},{i},{i}] {FULL}")
        A(f"s_mov_b32 exec_lo, {lo}\ns_mov_b32 exec_hi, {hi}")
        A(f"global_store_dwordx4 v{addr}, v[{val}:{val + 3}], s[38:39] {fl}")
        if addr2 is not None:
            A(f"global_store_dwordx4 v{addr2}, v[{val}:{val + 3}], s[38:39] {fl}")
        A("s_mov_b64 exec, -1")

    def roles():
        brot = 0 if local else 4
        A(f"s_add_u32 s61, s6, {brot}\ns_and_b32 s61, s61, 7")
        A("s_bfe_u32 s13, s7, 0x10003\ns_lshl_b32 s4, s61, 1\ns_add_u32 s13, s13, s4")
        A("s_and_b32 s14, s7, 7")
        A("s_mul_i32 s15, s6, 14\ns_add_u32 s15, s15, s7")

    def rowoff(dst, row, tmp, on=True):
        if dup is None or not on:
            A(f"s_lshl_b32 {dst}, {row}, 11")
        else:
            A(f"s_lshr_b32 {tmp}, {row}, 2\ns_lshl_b32 {tmp}, {tmp}, 14\ns_and_b32 {dst}, {row}, 3\ns_lshl_b32 {dst}, {dst}, 11\ns_add_u32 {dst}, {dst}, {tmp}")

    def mycopy(dst):
        if dup == "auto":
            A(f"s_mov_b32 {dst}, s49")
        else:
            A(f"s_lshr_b32 {dst}, s6, 2\ns_xor_b32 {dst}, {dst}, {dup}\ns_lshl_b32 {dst}, {dst}, 13")

    def p1slot(dst):
        A(f"s_lshl_b32 {dst}, s6, 5\ns_add_u32 {dst}, {dst}, s7\ns_mul_i32 {dst}, {dst}, {P1_STRIDE}\ns_add_u32 {dst}, {dst}, {WS_P1}")

    stamp_at(0)
    A("s_load_dwordx16 s[16:31], s[0:1], 0")
    A("s_load_dwordx8 s[32:39], s[0:1], 64")
    A("s_cmp_ge_u32 s2, 256")
    A("s_cbranch_scc1 L_end")
    A("v_lshrrev_b32 v1, 6, v0")
    A("v_and_b32 v0, 63, v0")
    A("v_readfirstlane_b32 s3, v1")
    A("s_and_b32 s6, s2, 7")
    A("s_lshr_b32 s7, s2, 3")
    A(f"s_add_u32 s60, s6, {qrot}\ns_and_b32 s60, s60, 7")
    A("v_lshlrev_b32 v9, 4, v0")
    A("s_cmp_eq_u32 s3, 8")
    A("s_cbranch_scc1 L_service")
    def wqaddr():
        A("v_lshrrev_b32 v10, 3, v0\nv_and_b32 v11, 7, v0\nv_lshlrev_b32 v10, 13, v10\nv_lshl_add_u32 v10, v11, 4, v10")
        A("s_and_b32 s4, s7, 3\ns_lshl_b32 s4, s4, 3\ns_add_u32 s4, s4, s3\ns_lshl_b32 s4, s4, 7\ns_add_u32 s4, s4, s60\ns_lshl_b32 s4, s4, 3")
        A("s_lshr_b32 s5, s7, 2\ns_add_u32 s4, s4, s5\ns_lshl_b32 s4, s4, 7")
        A("v_add_u32 v10, s4, v10\nv_add_u32 v11, 0x10000, v10")
        A(f"s_lshl_b32 s57, s3, 11\ns_add_u32 m0, s57, {L_W}")

    def clears(b=12):
        n0 = len(C)
        clears0()
        if b != 12:
            for i in range(n0, len(C)):
                for r in (17, 16, 15, 14, 13, 12):
                    C[i] = C[i].replace(f"v{r},", f"v{r - 12 + b},").replace(f"v{r}\n", f"v{r - 12 + b}\n")
                    if C[i].endswith(f"v{r}"):
                        C[i] = C[i][:-len(f"v{r}")] + f"v{r - 12 + b}"

    def clears1():
        for i in range(4):
            A(f"v_mov_b32 v{12 + i}, -1")
        roles()
        p1slot("s4")
        A("s_and_b32 s9, s7, 15\ns_mul_i32 s8, s6, 14\ns_add_u32 s8, s8, s9")
        rowoff("s5", "s8", "s48")
        A(f"s_lshr_b32 s8, s7, 4\ns_lshl_b32 s8, s8, 13\ns_add_u32 s5, s5, s8\ns_add_u32 s5, s5, {WS_P3 - 256}")
        A("v_mov_b32 v16, s4\nv_mov_b32 v17, s5\nv_cmp_gt_u32 vcc, 16, v0\ns_lshl_b32 s4, s3, 8")
        A("v_cndmask_b32 v16, v17, v16, vcc\nv_add3_u32 v16, v16, v9, s4")
        rowoff("s4", "s13", "s48")
        A(f"s_lshl_b32 s5, s14, 8\ns_add_u32 s4, s4, s5\ns_add_u32 s4, s4, {WS_P2 - 512}")
        A(f"v_bfe_u32 v17, v0, 4, 1\nv_mul_u32_u24 v17, {8192 - 256}, v17\nv_add3_u32 v17, v17, v9, s4\nv_cmp_gt_u32 vcc, 32, v0")
        A("s_cmp_lt_u32 s9, 14\ns_cselect_b32 s8, -1, 0xffff")
        A("v_cndmask_b32 v16, v17, v16, vcc")
        A("s_lshr_b32 s9, s7, 4\ns_cmp_lt_u32 s3, s9\ns_cselect_b32 s9, -1, 0")

    def clears0():
        if clrbal and dup is not None and dup3:
            return clears1()
        for i in range(4):
            A(f"v_mov_b32 v{12 + i}, -1")
        roles()
        p1slot("s4")
        rowoff("s5", "s15", "s8", dup3)
        A(f"s_add_u32 s5, s5, {WS_P3 - 256}")
        rowoff("s8", "s13", "s9")
        A(f"s_lshl_b32 s9, s14, 8\ns_add_u32 s8, s8, s9\ns_add_u32 s8, s8, {WS_P2 - 256}")
        A("s_cmp_ge_u32 s7, 16\ns_cselect_b32 s5, s8, s5\ns_cselect_b32 s8, 1, 8\ns_cselect_b32 s9, 32, 14")
        A("s_cmp_lt_u32 s7, s9\ns_cselect_b32 s8, s8, 0\ns_cmp_lt_u32 s3, s8\ns_cselect_b32 s8, -1, 0xffff")
        if dup is not None:
            A("s_cselect_b32 s9, 0xffff, 0")
            if not dup3:
                A("s_cmp_ge_u32 s7, 16\ns_cselect_b32 s9, s9, 0")
        A("v_mov_b32 v16, s4\nv_mov_b32 v17, s5\nv_cmp_gt_u32 vcc, 16, v0\ns_lshl_b32 s4, s3, 8")
        A("v_cndmask_b32 v16, v17, v16, vcc\nv_add3_u32 v16, v16, v9, s4")
        if dup is not None:
            A(f"v_lshrrev_b32 v17, 5, v0\nv_mul_u32_u24 v17, {8192 - 256}, v17\nv_add_u32 v16, v16, v17")

    def clearstore(b=12):
        if p1plain:
            A("s_mov_b64 exec, 0xffff")
            if p1plain != "none":
                A("global_store_dwordx4 v16, v[12:15], s[38:39]")
            A("s_andn2_b32 s8, s8, 0xffff\ns_cbranch_scc0 L_noc2")
        A("s_mov_b32 exec_lo, s8\ns_mov_b32 exec_hi, " + ("0" if dup is None else "s9"))
        A(f"global_store_dwordx4 v{b + 4}, v[{b}:{b + 3}], s[38:39] sc1")
        A("L_noc2:")
        A("s_mov_b64 exec, -1")

    def wqload():
        A("s_cmp_eq_u32 s3, 0")
        A("s_cbranch_scc0 L_nox")
        A(f"s_mov_b32 m0, {L_X}")
        A("global_load_lds_dwordx4 v9, s[16:17]")
        A(f"s_mov_b32 m0, {L_W}")
        A("s_nop 0")
        A("L_nox:")
        A(f"global_load_lds_dwordx4 v10, s[22:23]{wntf}")
        A("s_add_u32 m0, m0, 1024")
        A(f"global_load_lds_dwordx4 v11, s[22:23]{wntf}")
    if not kfirst:
        wqaddr()
    vKS = (1, 2, 3, 4)
    vKR = (5, 6, 7, 8)
    vV, vM, vML, vL = 9, 10, 11, 12
    PK = (13, 14)
    vAl = 15
    SEL = (16, 17, 18, 19)
    S = (20, 21, 22, 23)
    T = (24, 25, 26, 27)
    BB = 28
    vT2 = 38
    ACC = (40, 44)
    QF = 48
    KF = 64
    VR = [80 + 16 * i for i in range(VRING)]
    A("v_lshrrev_b32 v24, 4, v0")
    A("v_lshlrev_b32 v25, 6, v24")
    A(f"v_xor_b32 v{vKS[0]}, v{vV}, v25")
    for i in (1, 2, 3):
        A(f"v_xor_b32 v{vKS[i]}, {16 * i}, v{vKS[0]}")
    if split:
        A(f"v_add_u32 v{vKS[2]}, 6144, v{vKS[2]}\nv_add_u32 v{vKS[3]}, 6144, v{vKS[3]}\nv_add_u32 v39, 6144, v{vV}")
    A("s_lshl_b32 s10, s6, 23")
    ipat = {"wgtile": "wwwtttccccc", "contig": "tttwwwccccc", "global": "wwwcccccttt"}.get(inter, inter)
    assert sorted(ipat) == sorted("wwwtttccccc") and not split
    if crot:
        A(f"s_lshl_b32 s4, s7, {crot}\ns_lshr_b32 s5, s7, {5 - crot}\ns_or_b32 s4, s4, s5\ns_and_b32 s4, s4, 31")
    for k, reg in (("w", "s3"), ("c", "s4" if crot else "s7")):
        pos = [i for i, ch in enumerate(ipat) if ch == k]
        b = 0
        while b < len(pos):
            e = b
            while e + 1 < len(pos) and pos[e + 1] == pos[e] + 1:
                e += 1
            if b == 0 and e == len(pos) - 1:
                A(f"s_lshl_b32 s11, {reg}, {12 + pos[0]}")
            else:
                A(f"s_bfe_u32 s11, {reg}, {hex(((e - b + 1) << 16) | b)}\ns_lshl_b32 s11, s11, {12 + pos[b]}")
            A("s_add_u32 s10, s10, s11")
            b = e + 1
    tpos = [i for i, ch in enumerate(ipat) if ch == "t"]

    def toff(t):
        return sum(((t >> b) & 1) << (12 + p) for b, p in enumerate(tpos))
    if txor:
        assert tpos == list(range(tpos[0], tpos[0] + 3))
        A({"c": "s_and_b32 s11, s7, 7", "x": "s_mov_b32 s11, s6", "cx": "s_xor_b32 s11, s7, s6\ns_and_b32 s11, s11, 7",
           "ch": "s_lshr_b32 s11, s7, 2", "chx": "s_lshr_b32 s11, s7, 2\ns_xor_b32 s11, s11, s6"}[txor])
        A(f"s_lshl_b32 s11, s11, {12 + tpos[0]}\ns_add_u32 s10, s10, s11")
    A("s_mov_b32 s11, s10")
    A(f"s_mul_i32 s56, s3, {KRING * 4096}\ns_add_u32 s56, s56, {L_K}")
    A("s_mov_b32 s42, 0x4000000\ns_mov_b32 s43, 0x20000")
    if kfirst:
        A("s_mov_b32 m0, s56")
    if sclr == "first" and "noclear" not in xp:
        clears()
    A("s_waitcnt lgkmcnt(0)")
    stamp_at(12)
    if sclr == "first" and "noclear" not in xp:
        clearstore()
    if not kfirst:
        A("s_barrier")
        wqload()
        A("s_mov_b32 m0, s56")
    A("s_mov_b32 s40, s18\ns_and_b32 s41, s19, 0xffff")
    stamp_at(11)
    vm = VM()
    ids = {}
    m0k = [0]
    order = (order or {3: "K0 V0 K1 V1 K2 V2 V3 V4 K3 K4 K5 K6 K7 V5 V6 V7", 2: "K0 V0 K1 V1 K2 V2 V3 V4 K3 K4 K5 V5 K6 K7 V6 V7"}[NB]).split()
    seq = [(g[0], int(g[1]), u) for g in order for u in range(4)]
    NPRE = 4 * (KRING + VRING)

    def W(opid):
        w = vm.wait(opid)
        if w:
            A(w)

    def load(n):
        mat, t, u = seq[n]
        d = D if n < d2from else D2
        if D3 and n >= d3from:
            d = D3
        if n <= bpos:
            d = Dinit
        if dseq and n > bpos:
            d = int(dseq[n])
        if dyn and boost and n == min(boost):
            A("ds_read_b32 v38, v39 offset:24\ns_waitcnt lgkmcnt(0)\nv_readfirstlane_b32 s48, v38")
        if n in boost:
            W(ids[seq[n - d - 1]])
            A(f"s_cmp_le_u32 s48, {n}\ns_cbranch_scc1 L_bo{n}" if dyn2 else f"s_bitcmp1_b32 s48, 0\ns_cbranch_scc1 L_bo{n}")
            A(f"s_waitcnt vmcnt({vm.n - ids[seq[n - d]]})")
            A(f"L_bo{n}:")
        elif adapt and n >= NPRE and n in adapt[2]:
            W(ids[seq[n - d - 1]])
            A(f"s_cbranch_vccnz L_ad{n}")
            A(f"s_waitcnt vmcnt({d - 1})")
            A(f"L_ad{n}:")
        elif n >= d:
            W(ids[seq[n - d]])
            if adapt and n >= NPRE and n in adapt[3]:
                A(f"s_cmp_le_u32 s9, {adapt[0]}")
                A(f"s_cbranch_scc0 L_ad{n}")
                A(f"s_waitcnt vmcnt({d - 2})")
                A(f"L_ad{n}:")
        if opos and n in opos and "now" not in xp:
            for i, p in enumerate(opos):
                if p == n:
                    A(f"global_load_dwordx4 v[164:167], v161, s[24:25] offset:{1024 * i}")
        if mat == "K":
            if m0k[0] != t:
                m0k[0] = t
                A(f"s_add_u32 m0, s56, {4096 * (t % KRING)}")
            A(f"buffer_load_dwordx4 v{vKS[u]}, s[40:43], s10 offen offset:{1024 * u}{ntf} lds")
            if u == 3 and t < 7:
                A(f"s_xor_b32 s10, s10, {hex(toff(t + 1) ^ toff(t))}")
        else:
            r = VR[t % VRING] + 4 * u
            A(f"buffer_load_dwordx4 v[{r}:{r + 3}], v{39 if (split and u >= 2) else vV}, s[44:47], s11 offen offset:{1024 * u}{ntf}")
            if u == 3 and t < 7:
                A(f"s_xor_b32 s11, s11, {hex(toff(t + 1) ^ toff(t))}")
        ids[seq[n]] = vm.issue()
        if n == qpos:
            A(f"v_mov_b32 v39, {L_F}\nds_write_b32 v39, v39 offset:8")
        if n == vpos and dup == "auto" and vpos:
            A("ds_write_b32 v39, v39 offset:20")

    def consts():
        A("v_and_b32 v24, 3, v0")
        A("v_mov_b32 v25, 0x0c0c0c0c")
        for k, (lo, e0) in enumerate(((0x0100, 0), (0x0100, 2), (0x0302, 0), (0x0302, 2))):
            A(f"v_mov_b32 v26, {hex(0x0c0c0000 | lo)}")
            A(f"v_mov_b32 v27, {hex((lo << 16) | 0x0c0c)}")
            A(f"v_cmp_eq_u32 vcc, {e0}, v24")
            A(f"v_cndmask_b32 v{SEL[k]}, v25, v26, vcc")
            A(f"v_cmp_eq_u32 vcc, {e0 + 1}, v24")
            A(f"v_cndmask_b32 v{SEL[k]}, v{SEL[k]}, v27, vcc")
        for z in (0, 1, 4, 5, 8, 9):
            A(f"v_mov_b32 v{BB + z}, 0")
        A(f"s_mov_b32 s12, {hex(LOG2E)}")
        if boost and not dyn and not dyn2:
            A("s_getreg_b32 s48, hwreg(HW_REG_XCC_ID, 0, 4)")
        A("v_bfe_u32 v25, v0, 2, 2")
        A("v_lshrrev_b32 v26, 4, v0")
        A("v_lshlrev_b32 v27, 8, v25")
        A(f"v_lshl_add_u32 v{vT2}, v26, 4, v27")
        A("v_lshl_add_u32 v25, v24, 2, v25")
        A("v_and_b32 v27, 15, v0")
        A("v_xor_b32 v26, v26, v27")
        A("v_lshlrev_b32 v26, 4, v26")
        A("v_lshl_add_u32 v26, v25, 8, v26")
        for u in range(4):
            A(f"v_xor_b32 v{vKR[u]}, {64 * u}, v26")
            A(f"v_add_u32 v{vKR[u]}, s56, v{vKR[u]}")
        roles()
        A("s_lshl_b32 s58, s3, 12")
        if dlate:
            A(f"s_min_u32 s4, s15, 111\ns_lshl_b32 s4, s4, 3\ns_add_u32 s4, s4, s3\ns_lshl_b32 s4, s4, 11\nv_add_u32 v162, s4, v{vV}")
        A("s_lshl_b32 s4, s13, 3\ns_add_u32 s4, s4, s3\ns_lshl_b32 s4, s4, 15\ns_lshl_b32 s5, s14, 7\ns_add_u32 s4, s4, s5")
        A("v_lshrrev_b32 v160, 3, v0\nv_and_b32 v161, 7, v0\nv_lshlrev_b32 v160, 10, v160\nv_lshl_add_u32 v160, v161, 4, v160\nv_add_u32 v160, s4, v160")
        A(f"s_lshl_b32 s4, s61, 5\ns_add_u32 s4, s4, s7\ns_lshl_b32 s4, s4, 3\ns_add_u32 s4, s4, s3\ns_lshl_b32 s4, s4, 11\nv_add_u32 v161, s4, v{vV}")

    def late(pos="c"):
        ops = [i for i in range(4) if lp[i] == pos]
        if "now" in xp or not ops:
            return
        if not dlast:
            A("s_cmp_lt_u32 s7, 14")
            A(f"s_cbranch_scc0 L_late_b{pos}")
        for i in (ops if not dlast else ()):
            if i < 2:
                A(f"s_add_u32 m0, s57, {L_W + 32768 + 1024 * i}")
                A(f"global_load_lds_dwordx4 v162, s[32:33]{wntf}")
                if i == 0:
                    A("v_add_u32 v162, 1024, v162")
            else:
                A("s_mov_b64 exec, 1")
                A("global_load_dword v163, v162, s[32:33]")
        if not dlast:
            A(f"s_branch L_late_done{pos}")
        A(f"L_late_b{pos}:")
        A("s_cmp_ge_u32 s7, 16")
        A("s_cselect_b64 exec, -1, 1")
        for i in ops:
            A(f"s_add_u32 m0, s58, {L_W + 1024 * i}")
            A(f"global_load_lds_dwordx4 v160, s[24:25] offset:0{wntf}")
            vm.issue()
            if i < 3:
                A("v_add_u32 v160, 0x2000, v160")
        A(f"L_late_done{pos}:")
        A("s_mov_b64 exec, -1")
        m0k[0] = None

    T0 = 8 - NB
    SS = {t: tuple(range(144 + 4 * (t - T0), 148 + 4 * (t - T0))) for t in range(T0, 8)}
    PKS = {t: (128 + 2 * (t - T0), 129 + 2 * (t - T0)) for t in range(T0, 8)}

    def scores(t, S):
        W(ids[("K", t, 3)])
        k = KF
        for u in range(4):
            A(f"ds_read_b128 v[{k + 4 * u}:{k + 4 * u + 3}], v{vKR[u]} offset:{4096 * (t % KRING)}")
        for u in range(4):
            c = "0" if u == 0 else f"v[{S[0]}:{S[3]}]"
            A("s_waitcnt lgkmcnt(0)" if stamps else f"s_waitcnt lgkmcnt({3 - u})")
            A(f"v_mfma_f32_16x16x32_bf16 v[{S[0]}:{S[3]}], v[{k + 4 * u}:{k + 4 * u + 3}], v[{QF + 4 * u}:{QF + 4 * u + 3}], {c}")
        for rnd in range(2):
            A(f"v_cvt_pk_bf16_f32 v{T[0]}, v{S[0]}, v{S[1]}")
            A(f"v_cvt_pk_bf16_f32 v{T[1]}, v{S[2]}, v{S[3]}")
            A(f"v_lshlrev_b32 v{S[0]}, 16, v{T[0]}")
            A(f"v_and_b32 v{S[1]}, 0xffff0000, v{T[0]}")
            A(f"v_lshlrev_b32 v{S[2]}, 16, v{T[1]}")
            A(f"v_and_b32 v{S[3]}, 0xffff0000, v{T[1]}")
            if rnd == 0:
                for r in range(4):
                    A(f"v_mul_f32 v{S[r]}, {hex(SCALE)}, v{S[r]}")
        if t == 0:
            A(f"v_max_f32 v{vM}, v{S[0]}, v{S[1]}")
            A(f"v_max3_f32 v{vM}, v{vM}, v{S[2]}, v{S[3]}")
        else:
            A(f"v_max3_f32 v{vM}, v{vM}, v{S[0]}, v{S[1]}")
            A(f"v_max3_f32 v{vM}, v{vM}, v{S[2]}, v{S[3]}")

    def probs(tiles, first):
        if not first:
            A(f"v_mov_b32 v{vAl}, v{vML}")
        A(f"v_mul_f32 v{vML}, s12, v{vM}")
        if not first:
            A(f"v_sub_f32 v{vAl}, v{vAl}, v{vML}")
            A(f"v_exp_f32 v{vAl}, v{vAl}")
        for S, P in tiles:
            for r in range(4):
                A(f"v_fma_f32 v{S[r]}, v{S[r]}, s12, -v{vML}")
        for S, P in tiles:
            for r in range(4):
                A(f"v_exp_f32 v{S[r]}, v{S[r]}")
        if not first:
            for a in range(8):
                A(f"v_mul_f32 v{ACC[0] + a}, v{vAl}, v{ACC[0] + a}")
            A(f"v_mul_f32 v{vL}, v{vL}, v{vAl}")
        for i, (S, P) in enumerate(tiles):
            A(f"v_add_f32 v{T[0]}, v{S[0]}, v{S[1]}")
            A(f"v_add_f32 v{T[1]}, v{S[2]}, v{S[3]}")
            A(f"v_cvt_pk_bf16_f32 v{P[0]}, v{S[0]}, v{S[1]}")
            A(f"v_cvt_pk_bf16_f32 v{P[1]}, v{S[2]}, v{S[3]}")
            if first and i == 0:
                A(f"v_add_f32 v{vL}, v{T[0]}, v{T[1]}")
            else:
                A(f"v_add_f32 v{T[0]}, v{T[0]}, v{T[1]}")
                A(f"v_add_f32 v{vL}, v{vL}, v{T[0]}")

    def qk(t):
        scores(t, S)
        xrow(vM, T[0], "max")
        probs([(S, PK)], t == 0)

    def sc(t):
        scores(t, SS[t])
        if t == 7:
            xrow(vM, T[0], "max")
            A("v_bfe_u32 v26, v0, 2, 2\nv_lshlrev_b32 v26, 5, v26\ns_lshl_b32 s4, s3, 2\nv_add_u32 v27, s4, v26")
            A("s_mov_b64 exec, 0x1111")
            A(f"ds_write_b32 v27, v{vM} offset:{L_M}")
            A("s_mov_b64 exec, -1")

    def fin1(t):
        A("s_waitcnt lgkmcnt(0)")
        A("s_barrier")
        k0 = KF
        A(f"ds_read_b128 v[{k0}:{k0 + 3}], v26 offset:{L_M}")
        A(f"ds_read_b128 v[{k0 + 4}:{k0 + 7}], v26 offset:{L_M + 16}")
        A("s_waitcnt lgkmcnt(0)")
        A(f"v_max3_f32 v{vM}, v{k0}, v{k0 + 1}, v{k0 + 2}")
        A(f"v_max3_f32 v{vM}, v{vM}, v{k0 + 3}, v{k0 + 4}")
        A(f"v_max3_f32 v{vM}, v{vM}, v{k0 + 5}, v{k0 + 6}")
        A(f"v_max_f32 v{vM}, v{vM}, v{k0 + 7}")
        probs([(SS[t], PKS[t]) for t in range(T0, 8)], False)
        xrow(vL, T[0])
        A("s_mov_b64 exec, 0x1111")
        A(f"ds_write_b32 v27, v{vL} offset:{L_L}")
        A("s_mov_b64 exec, -1")

    def fin2(t):
        A("s_and_b32 s4, s3, 1\ns_lshl_b32 s4, s4, 6\nv_lshrrev_b32 v26, 5, v0\nv_lshl_add_u32 v26, v26, 5, s4")
        A(f"v_mov_b32 v27, {L_F}")
        A("s_waitcnt lgkmcnt(0)")
        A("s_barrier")
        A(f"ds_read_b128 v[64:67], v26 offset:{L_M}")
        A(f"ds_read_b128 v[68:71], v26 offset:{L_M + 16}")
        A(f"ds_read_b128 v[72:75], v26 offset:{L_L}")
        A(f"ds_read_b128 v[76:79], v26 offset:{L_L + 16}")
        A("ds_read2_b32 v[26:27], v27 offset0:4 offset1:1")
        A("s_waitcnt lgkmcnt(0)")
        A("v_max3_f32 v64, v64, v65, v66\nv_max3_f32 v64, v64, v67, v68\nv_max3_f32 v64, v64, v69, v70\nv_max_f32 v64, v64, v71")
        for i in range(4):
            A(f"v_add_f32 v{72 + i}, v{72 + i}, v{76 + i}")
        A("v_add_f32 v72, v72, v73\nv_add_f32 v74, v74, v75\nv_add_f32 v72, v72, v74")
        A("v_readfirstlane_b32 s62, v27")
        A("v_readfirstlane_b32 s49, v26")
        A("v_log_f32 v73, v72")
        A(f"v_rcp_f32 v{vAl}, v72")
        A(f"v_mul_f32 v64, s12, v64")
        A(f"v_add_f32 v{vL}, v64, v73")
        A(f"v_and_b32 v{vM}, 3, v0\nv_add_u32 v{vM}, 0x07060501, v{vM}")
        A("s_mov_b32 s50, 0x88888888\ns_mov_b32 s51, 0x88888888")

    def fin3(t):
        A(f"v_add_u32 v64, s56, v{vV}")
        A("v_and_b32 v65, 15, v0\nv_bfe_u32 v66, v0, 4, 1\nv_mul_u32_u24 v66, 272, v66\nv_add_u32 v65, v65, v66")
        A("v_lshrrev_b32 v66, 5, v0\nv_lshl_add_u32 v65, v66, 4, v65\ns_lshl_b32 s4, s3, 7")
        A(f"s_add_u32 s4, s4, {L_K}\nv_lshl_add_u32 v65, v65, 2, s4")
        A(f"v_add_u32 v66, {4 * KRING * 4096}, v65")
        p1slot("s4")
        A("s_lshl_b32 s5, s3, 8\ns_add_u32 s5, s5, s4\nv_lshl_add_u32 v67, v0, 2, s5")

    def prepB():
        A(f"s_lshl_b32 s4, s61, 5\nv_lshrrev_b32 v57, 3, v0\nv_add_u32 v57, s4, v57\nv_mul_u32_u24 v57, {P1_STRIDE}, v57")
        if b4:
            A("s_and_b32 s4, s13, 1\ns_lshl_b32 s4, s4, 1\ns_bfe_u32 s5, s3, 0x10001\ns_add_u32 s4, s4, s5")
            A(f"s_and_b32 s5, s3, 1\ns_lshl_b32 s5, s5, 3\ns_add_u32 s4, s4, s5\ns_lshl_b32 s4, s4, 7\ns_add_u32 s4, s4, {WS_P1}")
        else:
            A("s_and_b32 s4, s13, 1\ns_lshl_b32 s4, s4, 1\ns_lshr_b32 s5, s3, 2\ns_add_u32 s4, s4, s5")
            A(f"s_and_b32 s5, s3, 3\ns_lshl_b32 s5, s5, 2\ns_add_u32 s4, s4, s5\ns_lshl_b32 s4, s4, 7\ns_add_u32 s4, s4, {WS_P1}")
        A("v_and_b32 v58, 7, v0\nv_lshl_add_u32 v57, v58, 4, v57\nv_add_u32 v48, s4, v57")
        for pi in range(1, 4):
            A(f"v_add_u32 v{48 + pi}, {8 * pi * P1_STRIDE}, v48")
        A("s_mov_b32 s52, 0x04000c0c\ns_mov_b32 s53, 0x0706000c")
        A("s_mov_b32 s54, 0xffff0000\ns_mov_b32 s55, 0xffff0000\ns_mov_b32 s8, 0\ns_mov_b32 s9, -1")
        sigma(57, 58)
        A("v_bfe_u32 v58, v0, 2, 2\nv_lshl_add_u32 v57, v57, 3, v58\nv_lshlrev_b32 v57, 7, v57")
        A(f"v_and_b32 v58, 3, v0\nv_lshl_add_u32 v57, v58, 3, v57\ns_lshl_b32 s4, s3, {13 if b4 else 12}\nv_add_u32 v52, s4, v57")
        A("v_lshlrev_b32 v54, 2, v0\ns_lshl_b32 s4, s3, 8\nv_add_u32 v53, s4, v54")
        rowoff("s4", "s13", "s5")
        A(f"s_lshl_b32 s5, s14, 8\ns_add_u32 s4, s4, s5\ns_add_u32 s4, s4, {WS_P2}")
        if dup is not None:
            mycopy("s5")
            A("s_xor_b32 s5, s5, 0x2000\ns_add_u32 s4, s4, s5")
        A("v_add_u32 v55, s4, v54")
        A("v_xor_b32 v56, 0x2000, v55")

    def fin4(t):
        if bprep:
            prepB()

    def pv(t, last=False):
        v = VR[t % VRING]
        P = PKS.get(t, PK)

        def perm(i):
            b = BB + 2 + 4 * (i & 1)
            A(f"v_perm_b32 v{b}, v{P[i >> 1]}, v{P[i >> 1]}, v{SEL[2 * (i & 1)]}")
            A(f"v_perm_b32 v{b + 1}, v{P[i >> 1]}, v{P[i >> 1]}, v{SEL[2 * (i & 1) + 1]}")
        perm(0)
        perm(1)
        if not last:
            W(ids[("V", t, 3)])
        for i in range(4):
            if last:
                W(ids[("V", t, i)])
            b = BB + 2 + 4 * (i & 1)
            for h in range(2):
                c = "0" if (t == 0 and i == 0) else f"v[{ACC[h]}:{ACC[h] + 3}]"
                bb = b if h == 0 else b - 2
                A(f"v_mfma_f32_16x16x32_bf16 v[{ACC[h]}:{ACC[h] + 3}], v[{v + 4 * i}:{v + 4 * i + 3}], v[{bb}:{bb + 3}], {c}")
            if i < 2:
                perm(i + 2)

    for n in range(NPRE):
        load(n)
        if n == 3:
            A("s_mov_b32 s44, s20\ns_and_b32 s45, s21, 0xffff\ns_mov_b32 s46, 0x4000000\ns_mov_b32 s47, 0x20000")
            if sclr == "after" and "noclear" not in xp and clrpos == 3 and not wqfirst:
                clears()
                clearstore()
            if kfirst:
                wqaddr()
                wqload()
                m0k[0] = None
            if sclr == "after" and "noclear" not in xp and clrpos == 3 and wqfirst:
                clears()
                clearstore()
            if kfirst:
                A("s_barrier")
        if n == clrpos and clrpos > 3 and sclr == "after" and "noclear" not in xp:
            clears(72)
            clearstore(72)
        if n == max(Dinit - 1, 3):
            consts()
        if n == bpos:
            stamp_at(13)
            A(f"v_mov_b32 v24, {L_F}\nv_mov_b32 v25, 1\ns_mov_b64 exec, 1\nds_add_u32 v24, v25 offset:12\ns_mov_b64 exec, -1")
        if n == qpos and False:
            A(f"v_mov_b32 v24, {L_F}\nds_write_b32 v24, v24 offset:8")
    stamp_at(1)
    ldswait("L_waitq", 0)
    if dyn2:
        A("v_readfirstlane_b32 s48, v25")
    if adapt:
        lo, hi, lsites, tsites = adapt
        A("v_readfirstlane_b32 s9, v25")
        A(f"v_cmp_lt_u32 vcc, {hi}, v25")
        if stamps:
            A("s_mov_b32 s88, s9")
    stamp_at(2)
    for u in range(4):
        A(f"ds_read_b128 v[{QF + 4 * u}:{QF + 4 * u + 3}], v{vT2} offset:{L_Q + 64 * u}")
    A("s_waitcnt lgkmcnt(0)")
    blocks = []
    for t in range(T0):
        blocks += [(qk, t, ("K", t, 3)), (pv, t, ("V", t, 3))]
    for t in range(T0, 8):
        blocks += [(sc, t, ("K", t, 3))]
    blocks += [(fin1, 7, ("K", 7, 3)), (fin2, 7, ("K", 7, 3)), (fin3, 7, ("K", 7, 3)), (fin4, 7, ("K", 7, 3))]
    for t in range(T0, 7):
        blocks += [(pv, t, ("V", t, 3))]
    bi = 0
    for n in range(NPRE, len(seq)):
        mat, t, u = seq[n]
        needb = {"K": 2 * (t - KRING) + 1, "V": 2 * (t - VRING) + 2}[mat]
        while bi < needb:
            blocks[bi][0](blocks[bi][1])
            bi += 1
        load(n)
        late(n)
        if n < len(seq) - 1 and bi < len(blocks) and blocks[bi][2] in ids and ids[blocks[bi][2]] <= vm.done:
            blocks[bi][0](blocks[bi][1])
            bi += 1
    while bi < len(blocks) and blocks[bi][0] is not pv:
        blocks[bi][0](blocks[bi][1])
        bi += 1
    if bar1c:
        A("s_barrier")
        late()
    else:
        late()
        A("s_barrier")
    while bi < len(blocks):
        blocks[bi][0](blocks[bi][1])
        bi += 1
    stamp_at(3)
    pv(7, last=True)
    stamp_at(4)
    A(f"ds_write_b128 v64, v[{ACC[0]}:{ACC[0] + 3}]")
    A(f"ds_write_b128 v64, v[{ACC[1]}:{ACC[1] + 3}] offset:1088")
    A("s_waitcnt lgkmcnt(0)")
    A("s_barrier")
    R0 = 72
    for i in range(8):
        A(f"ds_read_b32 v{R0 + i}, v{65 + (i >> 2)} offset:{KRING * 4096 * (i & 3)}")
    A("s_cmp_eq_u32 s62, 1")
    A("s_waitcnt lgkmcnt(0)")
    for i in range(2):
        A(f"v_pk_add_f32 v[{R0 + 2 * i}:{R0 + 2 * i + 1}], v[{R0 + 2 * i}:{R0 + 2 * i + 1}], v[{R0 + 4 + 2 * i}:{R0 + 5 + 2 * i}]")
    A(f"v_pk_add_f32 v[{R0}:{R0 + 1}], v[{R0}:{R0 + 1}], v[{R0 + 2}:{R0 + 3}]")
    A(f"v_add_f32 v{R0}, v{R0}, v{R0 + 1}")
    A(f"v_mul_f32 v{R0}, v{R0}, v{vAl}")
    A(f"v_mov_b32_dpp v{R0 + 1}, v{R0} quad_perm:[3,3,3,3] {FULL}")
    A(f"v_perm_b32 v{R0}, v{R0}, v{R0 + 1}, v{vM}")
    A(f"v_cndmask_b32 v{R0}, v{R0}, v{vL}, s[50:51]")
    A("s_cbranch_scc0 L_pubfar")
    A(f"global_store_dword v67, v{R0}, s[38:39]")
    A("L_published:")
    for _ in range(pad2):
        A("s_nop 0")
    stamp_at(5)
    A("s_cmp_lt_u32 s7, 14")
    A("s_cbranch_scc1 L_ffn")
    A("s_cmp_lt_u32 s7, 16")
    A("s_cbranch_scc1 L_final")
    if not bprep:
        prepB()
    NKK = 2 if b4 else 1
    WB = 80
    D0 = 120
    TP = 152
    WW = 160
    AA = 112
    AC = 32
    loads = [f"global_load_dwordx4 v[{D0 + 16 * kk + 4 * pi}:{D0 + 16 * kk + 4 * pi + 3}], v{48 + pi}, s[38:39] offset:{512 * kk} sc1" for pi in range(4) for kk in range(NKK)]

    def bweights():
        A(f"s_waitcnt vmcnt({4 * NKK})")
        if b4:
            A("s_barrier")
        for kk in range(NKK):
            for tau in range(4):
                for t in range(2):
                    r = WB + 16 * kk + 4 * tau + 2 * t
                    if kk == 1 and tau == 3 and t == 0:
                        A("s_waitcnt lgkmcnt(0)")
                    A(f"ds_read_b64_tr_b16 v[{r}:{r + 1}], v52 offset:{L_W + 4096 * kk + 512 * t + 32 * tau}")
    A("s_barrier")
    if b4:
        A("s_cmp_lt_u32 s3, 4")
        A("s_cbranch_scc1 L_bgo")
        A("s_waitcnt vmcnt(0)")
        A("s_barrier")
        A("s_branch L_bdone")
        A("L_bgo:")
    stamp_at(8)
    poll("L_poll1", loads, range(D0, D0 + 16 * NKK), 31, between=bweights)
    stamp_at(6)
    pm1 = [f"v_perm_b32 v{TP + 4 * kk + pi}, v{D0 + 16 * kk + 4 * pi + 2}, v{D0 + 16 * kk + 4 * pi + 1}, s52" for kk in range(NKK) for pi in range(4)]
    A(f"v_max3_f32 v16, v{D0 + 3}, v{D0 + 7}, v{D0 + 11}\nv_max_f32 v16, v16, v{D0 + 15}")
    A(pm1.pop(0))
    A(pm1.pop(0))
    A(f"v_max_f32_dpp v16, v16, v16 row_ror:8 {FULL}")
    A("v_mov_b32 v17, v16")
    A(pm1.pop(0))
    A(pm1.pop(0))
    A("v_permlane16_swap_b32 v16, v17")
    A("v_max_f32 v16, v16, v17")
    A("v_mov_b32 v17, v16")
    for x in pm1[:2]:
        A(x)
    A("v_permlane32_swap_b32 v16, v17")
    A("v_max_f32 v16, v16, v17")
    for pi in range(4):
        A(f"v_sub_f32 v{WW + pi}, v{D0 + 4 * pi + 3}, v16")
    for x in pm1[2:]:
        A(x)
    for pi in range(4):
        A(f"v_exp_f32 v{WW + pi}, v{WW + pi}")
        for kk in range(NKK):
            A(f"v_perm_b32 v{D0 + 16 * kk + 4 * pi + 3}, v{TP + 4 * kk + pi}, v{D0 + 16 * kk + 4 * pi}, s53")
    A(f"v_pk_add_f32 v[16:17], v[{WW}:{WW + 1}], v[{WW + 2}:{WW + 3}]")
    for kk in range(NKK):
        for hlf in range(2):
            r = D0 + 16 * kk + 2 * hlf
            A(f"v_pk_mul_f32 v[{r}:{r + 1}], v[{WW}:{WW + 1}], v[{r}:{r + 1}] op_sel_hi:[0,1]")
    A("v_add_f32 v16, v16, v17")
    for pi in range(1, 4):
        w = f"v[{WW + (pi & 2)}:{WW + 1 + (pi & 2)}]"
        sel = "op_sel:[1,0,0] op_sel_hi:[1,1,1]" if pi & 1 else "op_sel_hi:[0,1,1]"
        for kk in range(NKK):
            for hlf in range(2):
                r = D0 + 16 * kk + 2 * hlf
                A(f"v_pk_fma_f32 v[{r}:{r + 1}], {w}, v[{r + 4 * pi}:{r + 4 * pi + 1}], v[{r}:{r + 1}] {sel}")
        if pi == 1:
            A(f"v_add_f32_dpp v16, v16, v16 row_ror:8 {FULL}")
    A("v_mov_b32 v17, v16")
    for kk in range(NKK):
        d = D0 + 16 * kk
        A(f"v_permlane32_swap_b32 v{d}, v{d + 1}\nv_permlane32_swap_b32 v{d + 2}, v{d + 3}")
    A("v_permlane32_swap_b32 v16, v17")
    A("v_add_f32 v16, v16, v17")
    A("v_mov_b32 v17, v16")
    for kk in range(NKK):
        d = D0 + 16 * kk
        A(f"v_add_f32 v{d}, v{d}, v{d + 1}\nv_add_f32 v{d + 2}, v{d + 2}, v{d + 3}")
    A("v_permlane16_swap_b32 v16, v17")
    A("v_add_f32 v16, v16, v17")
    for kk in range(NKK):
        d = D0 + 16 * kk
        A(f"v_permlane16_swap_b32 v{d}, v{d + 2}")
    A("v_rcp_f32 v16, v16")
    for kk in range(NKK):
        d = D0 + 16 * kk
        A(f"v_add_f32 v{d}, v{d}, v{d + 2}")
    for kk in range(NKK):
        d = D0 + 16 * kk
        A(f"v_add_f32_dpp v{d}, v{d}, v{d} row_ror:8 {FULL}")
    for kk in range(NKK):
        d = D0 + 16 * kk
        A(f"v_mul_f32 v{d}, v{d}, v16")
    for kk in range(NKK):
        d = D0 + 16 * kk
        A(f"v_mov_b32_dpp v{d + 1}, v{d} quad_perm:[1,0,3,2] {FULL}")
    for kk in range(NKK):
        d = D0 + 16 * kk
        A(f"v_cvt_pk_bf16_f32 v{d}, v{d}, v{d + 1}")
    for kk in range(NKK):
        for e in range(4):
            A(f"v_mov_b32_dpp v{AA + 4 * kk + e}, v{D0 + 16 * kk} row_newbcast:{2 * e} {FULL}")
    A("s_waitcnt lgkmcnt(0)")
    for kk in range(NKK):
        for tau in range(4):
            c = "0" if kk == 0 else f"v[{AC + 4 * tau}:{AC + 4 * tau + 3}]"
            b = WB + 16 * kk + 4 * tau
            A(f"v_mfma_f32_16x16x32_bf16 v[{AC + 4 * tau}:{AC + 4 * tau + 3}], v[{AA + 4 * kk}:{AA + 4 * kk + 3}], v[{b}:{b + 3}], {c}")
    A(f"v_cndmask_b32 v{AC}, v{AC}, v{AC + 4}, s[54:55]")
    A(f"v_cndmask_b32 v{AC + 8}, v{AC + 8}, v{AC + 12}, s[54:55]")
    A(f"v_cndmask_b32 v{AC}, v{AC}, v{AC + 8}, s[8:9]")
    A(f"ds_write_b32 v53, v{AC} offset:{L_B}")
    A("s_cmp_eq_u32 s3, 0")
    A("s_waitcnt lgkmcnt(0)")
    A("s_barrier")
    A("s_cbranch_scc0 L_bdone")
    NW = 8 // NKK
    for i in range(NW):
        A(f"ds_read_b32 v{120 + i}, v54 offset:{L_B + 256 * i}")
    A("s_waitcnt lgkmcnt(0)")
    if NW == 8:
        for i in range(2):
            A(f"v_pk_add_f32 v[{120 + 2 * i}:{121 + 2 * i}], v[{120 + 2 * i}:{121 + 2 * i}], v[{124 + 2 * i}:{125 + 2 * i}]")
    A("v_pk_add_f32 v[120:121], v[120:121], v[122:123]")
    A("v_add_f32 v120, v120, v121")
    store_quad(120, 55, fl=st2, addr2=None if dup is None else 56)
    A("L_bdone:")
    if wb:
        A("s_cmp_eq_u32 s3, 1\ns_cbranch_scc0 L_nowb\ns_cmp_eq_u32 s7, 16\ns_cbranch_scc0 L_nowb")
        A("buffer_wbl2 sc1")
        A("L_nowb:")
    stamp_at(7)
    stamp_store()
    A("s_endpgm")
    A("L_pubfar:")
    A("s_nop 0")
    store_quad(R0, 67)
    A("s_branch L_published")
    A("L_ffn:")
    vCol = 65
    A("v_and_b32 v17, 7, v0\nv_bfe_u32 v16, v0, 3, 2\nv_lshl_add_u32 v16, v17, 2, v16")
    A("v_and_b32 v18, 32, v0\nv_add_u32 v16, v16, v18")
    A(f"s_lshl_b32 s4, s3, 6\nv_add_u32 v{vCol}, s4, v16")
    A(f"v_lshlrev_b32 v29, 1, v{vCol}")
    A(f"ds_read_u16_d16_hi v64, v29 offset:{L_X}")
    A(f"s_lshl_b32 s4, s3, 8\ns_add_u32 s4, s4, {WS_P2}")
    if dup is None:
        A("v_lshrrev_b32 v18, 3, v0\nv_lshlrev_b32 v19, 12, v18\nv_lshl_add_u32 v16, v17, 4, v19\nv_add_u32 v20, s4, v16")
    else:
        mycopy("s5")
        A("s_add_u32 s4, s4, s5")
        A("v_lshrrev_b32 v18, 4, v0\nv_lshlrev_b32 v19, 14, v18\nv_bfe_u32 v18, v0, 3, 1\nv_lshl_add_u32 v19, v18, 12, v19\nv_lshl_add_u32 v16, v17, 4, v19\nv_add_u32 v20, s4, v16")
    A("v_lshrrev_b32 v18, 4, v0\nv_and_b32 v17, 15, v0")
    rowoff("s4", "s15", "s5", dup3)
    A(f"s_add_u32 s4, s4, {WS_P3}\ns_lshl_b32 s5, s3, {9 if c4 else 8}\ns_and_b32 s5, s5, 0x7ff\ns_add_u32 s4, s4, s5")
    if dup is not None and dup3:
        mycopy("s5")
        A("s_xor_b32 s5, s5, 0x2000\ns_add_u32 s4, s4, s5")
    A(f"v_lshl_add_u32 v22, v0, {3 if c4 else 2}, s4")
    if dup is not None and dup3:
        A("v_xor_b32 v21, 0x2000, v22")
    A("s_lshl_b32 s5, s3, 4\nv_mov_b32 v23, s5")
    A("v_and_b32 v24, 7, v0\nv_lshlrev_b32 v24, 4, v24")
    A("s_mov_b32 s63, 0x42800000\ns_mov_b32 s54, 0xffff0000\ns_mov_b32 s55, 0xffff0000")
    A("v_mov_b32 v67, 0x3b000000\nv_mov_b32 v68, 0x3727c5ac\nv_mov_b32 v69, 0xbdd2d3e8\nv_mov_b32 v70, 0xc0135761")
    for i in range(4):
        A(f"v_mov_b32 v{72 + i}, 0x3f803f80")
    A("s_lshl_b32 s4, s3, 7\nv_lshl_add_u32 v25, v18, 4, s4")
    A("v_lshlrev_b32 v27, 2, v0\ns_lshl_b32 s5, s3, 8\nv_add_u32 v26, s5, v27")
    A("v_lshl_add_u32 v28, v0, 1, s4")
    if cfast:
        A("v_bfe_u32 v16, v0, 2, 2\nv_lshlrev_b32 v16, 2, v16\nv_bfe_u32 v19, v0, 4, 1\nv_lshl_add_u32 v16, v19, 1, v16")
        A("v_and_b32 v19, 32, v0\nv_add_u32 v16, v16, v19\nv_lshlrev_b32 v16, 5, v16")
    else:
        A("v_bfe_u32 v16, v0, 2, 2\nv_lshl_add_u32 v16, v18, 3, v16\nv_lshlrev_b32 v16, 5, v16")
    A("v_and_b32 v17, 3, v0\nv_lshl_add_u32 v16, v17, 3, v16\nv_add_u32 v16, s57, v16")
    GW = 88
    DW = 104

    DW2 = 144

    def dreads():
        if c4:
            A("s_lshl_b32 s5, s3, 8\nv_lshl_add_u32 v28, v0, 2, s5")
            A("v_and_b32 v28, 0x3ff, v28")
            for r in range(16):
                if r == 14:
                    A("s_waitcnt lgkmcnt(0)")
                A(f"ds_read_b32 v{DW + r}, v28 offset:{L_W + 32768 + 1024 * r}")
            A("s_waitcnt lgkmcnt(0)")
            for r in range(16):
                A(f"v_and_b32 v{40 + r}, 0xffff0000, v{DW + r}")
                A(f"v_lshlrev_b32 v{DW + r}, 16, v{DW + r}")
            return
        for r in range(16):
            if r == 14:
                A("s_waitcnt lgkmcnt(0)")
            A(f"ds_read_u16_d16_hi v{DW + r}, v28 offset:{L_W + 32768 + 1024 * r}")
    if dsplit and not dlast:
        if dlate:
            A("s_waitcnt vmcnt(1)")
        A("s_barrier")
        dreads()
        A("s_waitcnt lgkmcnt(0)")
    A("s_barrier")
    stamp_at(11)

    def cweights():
        for mat in range(2):
            for kap in range(2):
                for t in range(2):
                    r = GW + 8 * mat + 4 * kap + 2 * t
                    A(f"ds_read_b64_tr_b16 v[{r}:{r + 1}], v16 offset:{L_W + 16384 * mat + ((32 * kap + 512 * t) if cfast else (1024 * kap + 128 * t))}")
        if cfast or csd:
            stamp_at(13)
            return
        colsums()

    def colsums():
        A("s_waitcnt lgkmcnt(0)")
        A(f"v_mfma_f32_16x16x32_bf16 v[140:143], v[72:75], v[{GW}:{GW + 3}], 0")
        A(f"v_mfma_f32_16x16x32_bf16 v[144:147], v[72:75], v[{GW + 8}:{GW + 11}], 0")
        A(f"v_mfma_f32_16x16x32_bf16 v[140:143], v[72:75], v[{GW + 4}:{GW + 7}], v[140:143]")
        A(f"v_mfma_f32_16x16x32_bf16 v[144:147], v[72:75], v[{GW + 12}:{GW + 15}], v[144:147]")
        if not (cfast or csd):
            A("v_cndmask_b32 v66, v140, v144, s[54:55]")
            stamp_at(13)
    loads = [f"global_load_dwordx4 v[{120 + 4 * i}:{123 + 4 * i}], v20, s[38:39] offset:{2048 * (i >> 1) + 128 * (i & 1)} {ld2}" for i in range(4)]
    poll("L_poll2", loads, range(120, 136), 31, between=cweights)
    stamp_at(6)
    if cfast or csd:
        n0 = len(C)
        colsums()
        cs = C[n0:]
        del C[n0:]
        A(cs[0])
    for e in range(4):
        if cfast or csd:
            A(cs[1 + e])
        A(f"v_pk_add_f32 v[{120 + 2 * e}:{121 + 2 * e}], v[{120 + 2 * e}:{121 + 2 * e}], v[{128 + 2 * e}:{129 + 2 * e}]")
    for e in range(4):
        A(f"v_permlane32_swap_b32 v{120 + e}, v{124 + e}")
    A("v_pk_add_f32 v[120:121], v[120:121], v[124:125]\nv_pk_add_f32 v[122:123], v[122:123], v[126:127]")
    A("v_permlane16_swap_b32 v120, v122\nv_permlane16_swap_b32 v121, v123")
    A("v_pk_add_f32 v[122:123], v[120:121], v[122:123]")
    A("v_add_f32_dpp v120, v122, v122 row_ror:8 row_mask:0xf bank_mask:0x3")
    A("v_add_f32_dpp v120, v123, v123 row_ror:8 row_mask:0xf bank_mask:0xc")
    A("v_add_f32 v120, v120, v64")
    if cfast:
        A(f"v_mov_b32_dpp v122, v120 quad_perm:[1,0,3,2] {FULL}")
        A("v_cndmask_b32 v66, v140, v144, s[54:55]")
        A("v_cvt_pk_bf16_f32 v121, v120, v122")
        A("v_lshlrev_b32 v120, 16, v121")
        for e in range(8):
            A(f"v_mov_b32_dpp v{124 + e}, v121 row_newbcast:{2 * e} {FULL}")
            if e == 0:
                A("v_readfirstlane_b32 s4, v120")
    else:
        A("v_cvt_pk_bf16_f32 v121, v120, v120")
        A(f"ds_write_b16 v29, v121 offset:{L_HN}")
        A("v_lshlrev_b32 v120, 16, v121")
        if csd:
            A("v_cndmask_b32 v66, v140, v144, s[54:55]")
        A("v_readfirstlane_b32 s4, v120")
        A("s_waitcnt lgkmcnt(0)")
        A(f"ds_read_b128 v[124:127], v25 offset:{L_HN}")
        A(f"ds_read_b128 v[128:131], v25 offset:{L_HN + 64}")
    A("v_subrev_f32 v148, s4, v120")
    A("v_mov_b32 v150, s4")
    A("v_mul_f32 v149, v148, v148")
    steps = [f"{m} {FULL}" for m in ("row_shr:1", "row_shr:2", "row_shr:4", "row_shr:8")] + ["row_bcast:15 row_mask:0xa bank_mask:0xf", "row_bcast:31 row_mask:0xc bank_mask:0xf"]
    mf = [f"v_mfma_f32_16x16x32_bf16 v[132:135], v[124:127], v[{GW}:{GW + 3}], 0",
          f"v_mfma_f32_16x16x32_bf16 v[136:139], v[124:127], v[{GW + 8}:{GW + 11}], 0",
          f"v_mfma_f32_16x16x32_bf16 v[132:135], v[128:131], v[{GW + 4}:{GW + 7}], v[132:135]",
          f"v_mfma_f32_16x16x32_bf16 v[136:139], v[128:131], v[{GW + 12}:{GW + 15}], v[136:139]"]
    for k, m in enumerate(steps):
        A(f"v_add_f32_dpp v148, v148, v148 {m}")
        A(f"v_add_f32_dpp v149, v149, v149 {m}")
        if k == (0 if cfast else 1):
            if not cfast:
                A("s_waitcnt lgkmcnt(0)")
            stamp_at(8)
            A(mf[0])
            A(mf[1])
        if k == (1 if cfast else 2):
            A(mf[2])
            A(mf[3])
    A("s_mov_b32 exec_lo, 0\ns_mov_b32 exec_hi, 0x80000000")
    A(f"ds_write_b96 v23, v[148:150] offset:{L_H}")
    A("s_mov_b32 exec_lo, -1\ns_mov_b32 exec_hi, 0")
    A("v_cndmask_b32 v66, v132, v136, s[54:55]")
    A("s_mov_b64 exec, -1")
    A(f"ds_write_b32 v26, v66 offset:{L_B}")
    A("s_waitcnt lgkmcnt(0)")
    stamp_at(9)
    if c4:
        A("s_cmp_lt_u32 s3, 4")
    A("s_barrier")
    if c4:
        A("s_cbranch_scc0 L_cdone")
    A(f"ds_read_b96 v[124:126], v24 offset:{L_H}")
    for i in range(8):
        A(f"ds_read_b32 v{128 + i}, v27 offset:{L_B + 256 * i}")
    nd = 0
    if dlast:
        nd = 6
        for r in range(nd):
            A(f"ds_read_u16_d16_hi v{DW + r}, v28 offset:{L_W + 32768 + 1024 * r}")
    A("s_waitcnt lgkmcnt(0)" if stamps else f"s_waitcnt lgkmcnt({8 + nd})")
    stamp_at(10)
    x8 = ("quad_perm:[1,0,3,2]", "quad_perm:[2,3,0,1]", "row_half_mirror")
    A("v_fma_f32 v127, v126, s63, v124")
    A("v_add_f32 v124, v124, v124")
    A("s_waitcnt lgkmcnt(0)" if stamps else f"s_waitcnt lgkmcnt({4 + nd})")
    A(f"v_add_f32_dpp v127, v127, v127 {x8[0]} {FULL}")
    A("v_pk_add_f32 v[128:129], v[128:129], v[130:131]")
    A("s_waitcnt lgkmcnt(0)" if stamps else f"s_waitcnt lgkmcnt({nd})")
    if dlast:
        for r in range(nd, 15):
            A(f"ds_read_u16_d16_hi v{DW + r}, v28 offset:{L_W + 32768 + 1024 * r}")
    A(f"v_add_f32_dpp v127, v127, v127 {x8[1]} {FULL}")
    A("v_pk_add_f32 v[132:133], v[132:133], v[134:135]")
    A("v_pk_add_f32 v[128:129], v[128:129], v[132:133]")
    A(f"v_add_f32_dpp v127, v127, v127 {x8[2]} {FULL}")
    A("v_add_f32 v120, v128, v129")
    A("v_add_f32 v121, v128, v129")
    A("v_mul_f32 v127, 0x3b000000, v127")
    A("v_sub_f32 v126, v127, v126")
    A("v_permlane32_swap_b32 v120, v121")
    A("v_fma_f32 v124, v126, s63, -v124")
    A("v_fma_f32 v125, v126, v124, v125")
    A("v_fma_f32 v122, -v127, v121, v120")
    A("v_fma_f32 v121, -v127, v121, v120")
    A(f"v_add_f32_dpp v125, v125, v125 {x8[0]} {FULL}")
    A("v_mov_b32 v120, v122")
    A(f"v_add_f32_dpp v125, v125, v125 {x8[1]} {FULL}")
    A("v_permlane16_swap_b32 v120, v121")
    A(f"v_add_f32_dpp v125, v125, v125 {x8[2]} {FULL}")
    if dlast:
        A("s_waitcnt lgkmcnt(0)")
        A(f"ds_read_u16_d16_hi v{DW + 15}, v28 offset:{L_W + 32768 + 1024 * 15}")
    A("v_fma_f32 v125, v125, v67, v68")
    A("v_rsq_f32 v125, v125")
    A("v_mul_f32 v120, v120, v125")
    A("v_mul_f32 v121, v121, v125")
    A("v_mul_f32 v122, v120, v120")
    A("v_mul_f32 v121, v120, v121")
    A("v_fma_f32 v122, v122, v69, v70")
    A("v_mul_f32 v122, v122, v120")
    A("v_exp_f32 v122, v122")
    A("v_add_f32 v122, 1.0, v122")
    A("v_rcp_f32 v122, v122")
    A("v_mul_f32 v120, v121, v122")
    if dlast:
        A("s_waitcnt lgkmcnt(0)")
    if c4:
        for r in range(16):
            op = "mul" if r < 2 else "fmac"
            A(f"v_{op}_f32_dpp v{124 + 2 * (r & 1)}, v120, v{DW + r} row_newbcast:{r} {FULL}")
            A(f"v_{op}_f32_dpp v{125 + 2 * (r & 1)}, v120, v{40 + r} row_newbcast:{r} {FULL}")
        A("v_pk_add_f32 v[124:125], v[124:125], v[126:127]")
        A(f"v_mov_b32_dpp v126, v124 quad_perm:[1,1,3,3] {FULL}")
        A(f"v_mov_b32_dpp v127, v125 quad_perm:[1,1,3,3] {FULL}")
        A("s_mov_b32 exec_lo, 0x55555555\ns_mov_b32 exec_hi, 0x55555555")
        A("global_store_dwordx4 v22, v[124:127], s[38:39] sc1")
        if dup is not None and dup3:
            A("global_store_dwordx4 v21, v[124:127], s[38:39] sc1")
        A("s_mov_b64 exec, -1")
    else:
        for r in range(16):
            op = "mul" if r < 4 else "fmac"
            A(f"v_{op}_f32_dpp v{124 + (r & 3)}, v120, v{DW + r} row_newbcast:{r} {FULL}")
        A("v_pk_add_f32 v[124:125], v[124:125], v[126:127]")
        A("v_add_f32 v124, v124, v125")
        store_quad(124, 22, fl=st3, addr2=21 if (dup is not None and dup3) else None)
    A("L_cdone:")
    stamp_at(7)
    stamp_store()
    A("s_endpgm")
    A("L_final:")
    A("s_barrier")
    A("s_sub_u32 s15, s7, 14\ns_lshl_b32 s4, s6, 1\ns_add_u32 s15, s15, s4")
    A("v_and_b32 v16, 7, v0\nv_lshrrev_b32 v17, 3, v0\nv_lshlrev_b32 v17, 11, v17\nv_lshl_add_u32 v17, v16, 4, v17")
    A("v_and_b32 v22, 31, v0\ns_lshl_b32 s4, s15, 6\nv_lshl_add_u32 v18, v22, 1, s4")
    A("v_lshlrev_b32 v22, 2, v22")
    sigma(23, 24)
    A("v_lshl_add_u32 v23, v16, 2, v23\nv_lshl_add_u32 v19, v23, 1, s4")
    A(f"ds_read_u16_d16_hi v19, v19 offset:{L_X}")
    A("s_lshl_b32 s4, s3, 7\nv_lshl_add_u32 v23, v23, 2, s4")
    if dup is None:
        A(f"s_lshl_b32 s4, s3, 15\ns_add_u32 s4, s4, {WS_P3}")
        A("s_cmp_eq_u32 s3, 7")
        A(f"s_cselect_b32 s4, {WS_P2}, s4")
        A("s_lshl_b32 s5, s15, 7\ns_add_u32 s4, s4, s5")
        A("v_add_u32 v20, s4, v17\nv_add_u32 v21, 0x4000, v20")
    else:
        A("v_lshrrev_b32 v24, 5, v0\nv_lshlrev_b32 v24, 13, v24")
        mycopy("s8")
        A(f"s_lshl_b32 s4, s3, {16 if dup3 else 15}\ns_add_u32 s4, s4, {WS_P3}")
        A("s_cmp_eq_u32 s3, 7")
        A(f"s_cselect_b32 s4, {WS_P2}, s4")
        if dup3:
            A("s_add_u32 s4, s4, s8\ns_mov_b32 s9, 0x8000")
        else:
            A("s_cselect_b32 s8, s8, 0\ns_movk_i32 s9, 0x4000\ns_cselect_b32 s9, 0x8000, s9\ns_cselect_b32 s5, -1, 0\ns_add_u32 s4, s4, s8\nv_and_b32 v24, s5, v24")
        A("s_lshl_b32 s5, s15, 7\ns_add_u32 s4, s4, s5")
        A("v_add3_u32 v20, v17, v24, s4\nv_add_u32 v21, s9, v20")
    loads = [f"global_load_dwordx4 v[{120 + 4 * i}:{123 + 4 * i}], v{20 + i}, s[38:39] {ld3}" for i in range(2)]
    if dsleep is not None:
        A("s_cmp_eq_u32 s3, 7")
        A("s_cbranch_scc1 L_dgo")
        A("s_barrier")
        A(f"s_sleep {dsleep}")
        A("L_dgo:")
    poll("L_poll3", loads, range(120, 128), 16)
    if dsleep is not None:
        A("s_cmp_eq_u32 s3, 7")
        A("s_cbranch_scc0 L_dgo2")
        A("s_barrier")
        A("L_dgo2:")
    stamp_at(6)
    for e in range(4):
        A(f"v_add_f32 v{120 + e}, v{120 + e}, v{124 + e}")
    scatter4(120)
    A(f"v_add_f32_dpp v120, v120, v120 row_ror:8 {FULL}")
    A("s_cmp_eq_u32 s3, 7")
    A("s_cbranch_scc0 L_dnoh")
    A("s_waitcnt lgkmcnt(0)")
    A("v_add_f32 v120, v120, v19")
    rbf(120)
    A("L_dnoh:")
    A("s_mov_b32 exec_lo, 0x00ff00ff\ns_mov_b32 exec_hi, 0x00ff00ff")
    A(f"ds_write_b32 v23, v120 offset:{L_B}")
    A("s_mov_b64 exec, -1")
    A("s_cmp_eq_u32 s3, 0")
    A("s_waitcnt lgkmcnt(0)")
    A("s_barrier")
    A("s_cbranch_scc0 L_ddone")
    for i in range(8):
        A(f"ds_read_b32 v{120 + i}, v22 offset:{L_B + 128 * i}")
    A("s_waitcnt lgkmcnt(0)")
    for i in range(2):
        A(f"v_pk_add_f32 v[{120 + 2 * i}:{121 + 2 * i}], v[{120 + 2 * i}:{121 + 2 * i}], v[{124 + 2 * i}:{125 + 2 * i}]")
    A("v_pk_add_f32 v[120:121], v[120:121], v[122:123]")
    A("v_add_f32 v120, v120, v121")
    if perturb:
        import struct
        kind, val = perturb
        h = hex(struct.unpack("<I", struct.pack("<f", val))[0])
        if kind == "add": A(f"v_add_f32 v120, {h}, v120")
        if kind == "mul": A(f"v_mul_f32 v120, {h}, v120")
        if kind == "one":
            A("s_cmp_eq_u32 s15, 0\ns_cselect_b32 s4, 1, 0\ns_mov_b32 s5, 0\ns_mov_b64 exec, s[4:5]")
            A(f"v_add_f32 v120, {h}, v120\ns_mov_b64 exec, -1")
    A(f"v_mov_b32_dpp v121, v120 quad_perm:[1,0,3,2] {FULL}")
    A("v_cvt_pk_bf16_f32 v120, v120, v121")
    A("s_mov_b64 exec, 0x55555555")
    A("global_store_dword v18, v120, s[34:35]" + (" " + outfl if outfl else ""))
    stamp_at(7)
    if enc:
        a, b, mult = enc
        A("s_waitcnt lgkmcnt(0)")
        if a == "fix":
            A(f"s_mov_b32 s78, s64\ns_mov_b32 s4, {mult}")
        else:
            A(f"s_sub_u32 s4, s{64 + 2 * a}, s{64 + 2 * b}\ns_mul_i32 s4, s4, {mult}\ns_min_u32 s4, s4, 40000")
        A("L_enc:\ns_memrealtime s[8:9]\ns_waitcnt lgkmcnt(0)\ns_sub_u32 s5, s8, s78\ns_cmp_lt_u32 s5, s4\ns_cbranch_scc1 L_enc")
    A("L_ddone:")
    stamp_at(7)
    stamp_store()
    A("s_endpgm")

    for _ in range(pad3):
        A("s_nop 0")
    A("L_service:")
    A("s_setprio 3")
    A(f"v_mov_b32 v98, {L_F}\nv_mov_b32 v99, 0")
    A("ds_write_b32 v98, v99")
    A("ds_write_b32 v98, v99 offset:8")
    A("ds_write_b32 v98, v99 offset:12")
    A("ds_write_b32 v98, v99 offset:20")
    if dyn:
        A("ds_write_b32 v98, v99 offset:24")
    if not qearly:
        A("s_waitcnt lgkmcnt(0)")
        A("s_barrier")
    for i in range(4):
        A(f"v_mov_b32 v{100 + i}, -1")
    roles()
    p1slot("s4")
    A("v_add_u32 v104, s4, v9")
    A("s_cmp_eq_u32 s7, 0")
    A("s_waitcnt lgkmcnt(0)")
    if "svcoff" in xp:
        A("s_barrier\ns_branch L_svcbar" if qearly else "s_branch L_svcbar")
    A("s_cbranch_scc0 L_qcleared")
    A(f"s_lshl_b32 s10, s60, 13\nv_add_u32 v3, s10, v9\nv_add_u32 v8, 0x1000, v3")
    for i in range(8):
        A(f"global_store_dwordx4 v{3 if i < 4 else 8}, v[100:103], s[38:39] offset:{1024 * (i & 3)} sc1")
    A(f"s_lshl_b32 s10, s60, 7\ns_add_u32 s10, s10, {WS_F}\nv_add_u32 v3, s10, v9")
    A(f"s_lshl_b32 s10, s6, 7\ns_add_u32 s10, s10, {WS_G}\nv_add_u32 v8, s10, v9")
    A("s_mov_b64 exec, 0xff")
    A("global_store_dwordx4 v3, v[100:103], s[38:39] sc1")
    A("global_store_dwordx4 v8, v[100:103], s[38:39] sc1")
    if adapt or rankpre:
        A(f"global_store_dwordx4 v8, v[100:103], s[38:39] offset:{WS_R - WS_G - 4096 + 4096 - 0 if WS_R - WS_G < 4096 else 0} sc1" if False else f"v_add_u32 v8, {WS_R - WS_G}, v8\nglobal_store_dwordx4 v8, v[100:103], s[38:39] sc1")
    if dup == "auto" and vpos:
        A(f"v_add_u32 v8, {WS_V - WS_R}, v8\nglobal_store_dwordx4 v8, v[100:103], s[38:39] sc1")
        if dyn or dyn2:
            A(f"v_add_u32 v8, {WS_A - WS_V}, v8\nglobal_store_dwordx4 v8, v[100:103], s[38:39] sc1")
    A("s_mov_b64 exec, -1")
    A("L_qcleared:")
    if qearly:
        A("s_barrier")
    nyoung = 0
    if "noclear" not in xp and sclr is None:
        A("global_store_dwordx4 v104, v[100:103], s[38:39] sc1")
        A("global_store_dwordx4 v104, v[100:103], s[38:39] offset:1024 sc1")
        nyoung += 2
        A("s_cmp_lt_u32 s7, 14")
        A("s_cbranch_scc0 L_noclr3")
        A(f"s_lshl_b32 s4, s15, 11\ns_add_u32 s4, s4, {WS_P3}\nv_add_u32 v105, s4, v9")
        A("global_store_dwordx4 v105, v[100:103], s[38:39] sc1")
        A("global_store_dwordx4 v105, v[100:103], s[38:39] offset:1024 sc1")
        A("L_noclr3:")
        A("s_cmp_ge_u32 s7, 16")
        A("s_cbranch_scc0 L_noclr2")
        A(f"s_lshl_b32 s4, s13, 11\ns_lshl_b32 s5, s14, 8\ns_add_u32 s4, s4, s5\ns_add_u32 s4, s4, {WS_P2}\nv_add_u32 v105, s4, v9")
        A("s_mov_b64 exec, 0xffff")
        A("global_store_dwordx4 v105, v[100:103], s[38:39] sc1")
        A("s_mov_b64 exec, -1")
        A("L_noclr2:")
    stamp_at(1)
    A("v_lshlrev_b32 v96, 5, v0")
    A("s_cmp_eq_u32 s7, 0")
    A("s_cbranch_scc0 L_noqflag")
    A("s_lshl_b32 s4, s60, 5\nv_mov_b32 v104, s4\nv_mov_b32 v105, 1")
    A(f"s_waitcnt vmcnt({4 if ('noclear' not in xp and sclr is None) else 0})")
    A("s_mov_b64 exec, 1")
    A("global_store_dword v104, v105, s[36:37] sc1")
    A("s_mov_b64 exec, -1")
    A("L_noqflag:")
    ldswait("L_waitwq", 12, 8)

    def firstlook():
        A("s_mov_b64 exec, 0xff")
        A("global_load_dword v97, v96, s[36:37] sc1")
        A("s_mov_b64 exec, -1")
    if qearly:
        firstlook()
    A(f"ds_read_b128 v[4:7], v9 offset:{L_X}")
    A("s_waitcnt lgkmcnt(0)")
    stamp_at(2)
    X = list(range(8, 16))
    X[1] = 3
    for i in range(4):
        A(f"v_lshlrev_b32 v{X[2 * i]}, 16, v{4 + i}")
        A(f"v_and_b32 v{X[2 * i + 1]}, 0xffff0000, v{4 + i}")
    ln_stats(X, 16, 17, 18, 19, 20, list(range(22, 30)))
    ln_apply(X, 16, 17, 18, list(range(22, 30)))
    for i in range(4):
        A(f"v_cvt_pk_bf16_f32 v{4 + i}, v{X[2 * i]}, v{X[2 * i + 1]}")
    A(f"ds_write_b128 v9, v[4:7] offset:{L_HN}")
    A(f"s_and_b32 s4, s7, {KS - 1}\ns_lshl_b32 s4, s4, {10 - KL}\nv_lshrrev_b32 v17, 4, v0\nv_lshl_add_u32 v16, v17, 4, s4")
    A("v_bfe_u32 v18, v0, 2, 2\nv_lshl_add_u32 v17, v17, 3, v18\nv_lshlrev_b32 v17, 7, v17\nv_and_b32 v18, 3, v0\nv_lshl_add_u32 v17, v18, 3, v17")
    A("s_waitcnt lgkmcnt(0)")
    NK = NQ // 4
    for k in range(NK):
        A(f"ds_read_b128 v[{32 + 4 * k}:{35 + 4 * k}], v16 offset:{L_HN + 64 * k}")
    stamp_at(3)
    if not qearly:
        firstlook()
    for k in range(NK):
        A("s_waitcnt lgkmcnt(0)")
        b = 64 + 16 * (k & 1)
        for tau in range(4):
            for t in range(2):
                r = b + 4 * tau + 2 * t
                A(f"ds_read_b64_tr_b16 v[{r}:{r + 1}], v17 offset:{L_W + 4096 * k + 512 * t + 32 * tau}")
        if k > 0:
            bp = 64 + 16 * ((k - 1) & 1)
            for tau in range(4):
                c = "0" if k == 1 else f"v[{112 + 4 * tau}:{115 + 4 * tau}]"
                A(f"v_mfma_f32_16x16x32_bf16 v[{112 + 4 * tau}:{115 + 4 * tau}], v[{28 + 4 * k}:{31 + 4 * k}], v[{bp + 4 * tau}:{bp + 4 * tau + 3}], {c}")
    A("s_waitcnt lgkmcnt(0)")
    for tau in range(4):
        A(f"v_mfma_f32_16x16x32_bf16 v[{112 + 4 * tau}:{115 + 4 * tau}], v[{28 + 4 * NK}:{31 + 4 * NK}], v[{80 + 4 * tau}:{83 + 4 * tau}], v[{112 + 4 * tau}:{115 + 4 * tau}]")
    A(f"s_lshl_b32 s4, s60, {11 + KL}\ns_and_b32 s5, s7, {KS - 1}\ns_lshl_b32 s5, s5, 11\ns_add_u32 s4, s4, s5\ns_lshr_b32 s5, s7, {KL}\ns_lshl_b32 s5, s5, 8\ns_add_u32 s4, s4, s5")
    A("v_lshl_add_u32 v17, v0, 2, s4")
    for tau in range(1, 4):
        A(f"v_mov_b32_dpp v112, v{112 + 4 * tau} quad_perm:[0,1,2,3] row_mask:{hex(1 << tau)} bank_mask:0xf")
    for i in (1, 2, 3):
        A(f"v_mov_b32_dpp v{112 + i}, v112 quad_perm:[{i},{i},{i},{i}] {FULL}")
    A("L_qdone:")
    A(f"s_lshl_b32 s4, s60, 5\ns_add_u32 s4, s4, s7\ns_lshl_b32 s4, s4, 2\ns_add_u32 s4, s4, {WS_F}\nv_mov_b32 v18, s4")
    A(f"s_lshl_b32 s4, s6, {11 + KL}\nv_add_u32 v19, s4, v9\nv_add_u32 v20, 0x1000, v19")
    A("s_getreg_b32 s62, hwreg(HW_REG_XCC_ID, 0, 4)\nv_mov_b32 v21, s62")
    A("s_lshl_b32 s4, 1, s60\ns_lshl_b32 s5, 1, s6\ns_or_b32 s4, s4, s5")
    if adapt or dyn2:
        A(f"s_add_u32 s5, s7, {qrot}\ns_and_b32 s5, s5, 7\ns_lshl_b32 s5, 1, s5\ns_or_b32 s4, s4, s5")
    A("s_mov_b32 s5, 0")
    stamp_at(4)
    if "svc1" in xp: A("s_branch L_svcbar2")
    A("L_pollf:")
    A("s_waitcnt vmcnt(0) lgkmcnt(0)")
    A("v_cmp_ne_u32 vcc, 1, v97")
    A("s_and_b32 s57, vcc_lo, s4")
    A("s_cbranch_scc0 L_pollf_ok")
    A(f"s_add_u32 s5, s5, 1\ns_cmp_lt_u32 s5, {SPIN_MAX}\ns_cbranch_scc0 L_pollf_ok")
    A("s_sleep 8")
    A("s_mov_b64 exec, 0xff")
    A("global_load_dword v97, v96, s[36:37] sc1")
    A("s_mov_b64 exec, -1")
    A("s_branch L_pollf")
    A("L_pollf_ok:")
    if KS == 2:
        A("s_cmp_lt_u32 s7, 16")
        A("s_cbranch_scc0 L_noqpub")
    A("s_mov_b32 exec_lo, 0x11111111\ns_mov_b32 exec_hi, 0x11111111")
    A("global_store_dwordx4 v17, v[112:115], s[38:39] sc1")
    A("L_noqpub:")
    A("s_mov_b64 exec, 1")
    A("global_store_dword v18, v21, s[38:39] sc1")
    A("s_mov_b64 exec, -1")
    stamp_at(5)
    if "svc2" in xp: A("s_branch L_svcbar2")
    if warm == "spread":
        A("s_getpc_b64 s[48:49]")
        A("L_pc:")
        A(f"s_sub_u32 s48, s48, L_pc-{NAME}_kernel\ns_subb_u32 s49, s49, 0")
        A(f"s_lshl_b32 s4, s7, 9\nv_lshl_add_u32 v2, v0, 3, s4\nv_min_u32 v2, L_codeend-{NAME}_kernel-8, v2")
        A("global_load_dwordx2 v[128:129], v2, s[48:49]")
    elif warm:
        if warm == "one":
            A("s_cmp_eq_u32 s7, 1")
            A("s_cbranch_scc0 L_nowarm")
        A("s_getpc_b64 s[48:49]")
        A("L_pc:")
        A(f"s_sub_u32 s48, s48, L_pc-{NAME}_kernel\ns_subb_u32 s49, s49, 0")
        A(f"s_mov_b32 s4, L_codeend-{NAME}_kernel-16\nv_mov_b32 v2, v9\ns_mov_b32 s5, 0")
        A("L_warm:")
        A("v_min_u32 v3, s4, v2")
        A("global_load_dwordx4 v[128:131], v3, s[48:49]")
        A("v_add_u32 v2, 1024, v2\ns_add_u32 s5, s5, 1024\ns_cmp_lt_u32 s5, s4\ns_cbranch_scc1 L_warm")
    if warm:
        A("L_nowarm:")
    if adapt:
        A(f"s_and_b32 s4, s7, 7\ns_lshl_b32 s4, s4, 7\ns_add_u32 s4, s4, {WS_R}\nv_mov_b32 v26, s4\nv_mov_b32 v27, 1")
    if dyn2:
        A(f"s_and_b32 s4, s7, 7\ns_lshl_b32 s4, s4, 7\ns_add_u32 s4, s4, {WS_A}\nv_mov_b32 v26, s4\nv_mov_b32 v27, 1")
    ldswait("L_waitpos", 8)
    if dyn2:
        A("s_mov_b64 exec, 1\nglobal_atomic_add v28, v26, v27, s[38:39] sc0 sc1\ns_mov_b64 exec, -1")
    if adapt:
        A("s_mov_b64 exec, 1")
        A("global_atomic_add v28, v26, v27, s[38:39] sc0 sc1")
        A("s_mov_b64 exec, -1")
    poll("L_pollq", [f"global_load_dwordx4 v[{32 + 4 * i}:{35 + 4 * i}], v{19 + (i >> 2)}, s[38:39] offset:{1024 * (i & 3)} sc1" for i in range(2 * KS)],
         range(32, 32 + 8 * KS), 16, slp=qsleep)
    stamp_at(6)
    for e in range(8):
        A(f"v_add_f32 v{32 + e}, v{32 + e}, v{40 + e}")
        if KS == 4:
            A(f"v_add_f32 v{48 + e}, v{48 + e}, v{56 + e}")
    if KS == 4:
        for e in range(8):
            A(f"v_add_f32 v{32 + e}, v{32 + e}, v{48 + e}")
    for e in range(4):
        A(f"v_cvt_pk_bf16_f32 v{40 + e}, v{32 + 2 * e}, v{33 + 2 * e}")
    A("v_lshlrev_b32 v16, 3, v0")
    A(f"ds_write_b64 v16, v[40:41] offset:{L_Q}")
    A(f"ds_write_b64 v16, v[42:43] offset:{L_Q + 512}")
    if dyn2:
        A(f"v_readfirstlane_b32 s4, v28\ns_and_b32 s5, s62, 1\ns_mul_i32 s5, s5, {dynodd}\ns_add_u32 s4, s4, s5\ns_add_u32 s4, s4, 1\ns_mov_b32 s5, 64")
        for thr, start in dyn2:
            A(f"s_cmp_ge_u32 s4, {thr}\ns_cselect_b32 s5, {start}, s5")
        A("v_mov_b32 v99, s5")
    elif adapt:
        A("v_readfirstlane_b32 s4, v28")
        A("s_add_u32 s4, s4, 2")
        A("v_mov_b32 v99, s4")
    else:
        A("v_mov_b32 v99, 1")
    A("s_waitcnt lgkmcnt(0)")
    A("ds_write_b32 v98, v99")
    stamp_at(7)
    if "svc4" in xp: A("s_branch L_svcbar2")
    A("s_mov_b32 s5, 0")
    A("L_pollf2:")
    A("s_mov_b64 exec, 0xff")
    A("global_load_dword v97, v96, s[36:37] sc1")
    A("s_waitcnt vmcnt(0)")
    A("v_cmp_ne_u32 vcc, 1, v97")
    A("s_mov_b64 exec, -1")
    A("s_cbranch_vccz L_pollf2_ok")
    A(f"s_add_u32 s5, s5, 1\ns_cmp_lt_u32 s5, {SPIN_MAX}\ns_cbranch_scc1 L_pollf2")
    A("L_pollf2_ok:")
    stamp_at(8)
    A(f"v_add_u32 v19, {WS_F}, v9")
    poll("L_pollall", ["global_load_dwordx4 v[32:35], v19, s[38:39] sc1"], range(32, 36), 16, slp=16)
    stamp_at(9)
    A("v_xor_b32 v32, v32, v21\nv_xor_b32 v33, v33, v21\nv_xor_b32 v34, v34, v21\nv_xor_b32 v35, v35, v21")
    A("v_or_b32 v32, v32, v33\nv_or3_b32 v32, v32, v34, v35")
    A("v_cmp_ne_u32 vcc, 0, v32")
    A("s_lshl_b32 s4, s60, 3\ns_lshr_b64 s[4:5], vcc, s4\ns_and_b32 s4, s4, 0xff")
    A("s_cselect_b32 s4, 0, 1" if local and "far" not in xp else "s_mov_b32 s4, 0")
    A("L_svcend:")
    A("s_mov_b32 s63, s4")
    if dup == "auto":
        A(f"s_andn2_b32 s8, s7, 4\ns_lshl_b32 s9, s6, 5\ns_add_u32 s8, s8, s9\ns_lshl_b32 s8, s8, 11\ns_and_b32 s9, s7, 4\ns_lshl_b32 s9, s9, 8")
        A(f"s_add_u32 s8, s8, s9\ns_add_u32 s8, s8, {WS_P1}\ns_add_u32 s12, s38, s8\ns_addc_u32 s13, s39, 0\ns_mov_b32 s10, 0")
        A("s_waitcnt lgkmcnt(0)")
        for t in range(ntr):
            A("s_mov_b32 s8, 0\ns_mov_b32 s9, 0")
            o0, o1 = 128 * t, 128 * t + 8192
            A(f"s_load_dword s9, s[12:13], {o1}\ns_load_dword s8, s[12:13], {o0}" if t & 1 else f"s_load_dword s8, s[12:13], {o0}\ns_load_dword s9, s[12:13], {o1}")
            A("s_waitcnt lgkmcnt(1)")
            A("s_sub_u32 s11, s9, s8")
            A("s_waitcnt lgkmcnt(0)")
            A("s_add_u32 s10, s10, s11")
        if vpos:
            A("s_cmp_eq_u32 s63, 1")
            A("s_cbranch_scc0 L_novote")
            A(f"s_lshl_b32 s8, s6, 7\ns_add_u32 s8, s8, {WS_V}\nv_and_b32 v16, 31, v0\nv_lshl_add_u32 v16, v16, 2, s8")
            A("s_lshl_b32 s9, s7, 2\ns_add_u32 s8, s8, s9\nv_mov_b32 v17, s8\ns_add_u32 s10, s10, 16\nv_mov_b32 v18, s10")
            A("s_mov_b64 exec, 1\nglobal_store_dword v17, v18, s[38:39]\ns_mov_b64 exec, -1")
            if dyn:
                A(f"s_and_b32 s8, s7, 7\ns_lshl_b32 s8, s8, 7\ns_add_u32 s8, s8, {WS_A}\nv_mov_b32 v17, s8\nv_mov_b32 v19, 1")
            ldswait("L_waitv", 20)
            if dyn:
                A("s_mov_b64 exec, 1\nglobal_atomic_add v20, v17, v19, s[38:39] sc0 sc1\ns_mov_b64 exec, -1")
            A("global_load_dword v18, v16, s[38:39] sc1")
            A("s_waitcnt vmcnt(0)")
            if dyn:
                A(f"v_readfirstlane_b32 s8, v20\ns_and_b32 s9, s62, 1\ns_mul_i32 s9, s9, {dynodd}\ns_add_u32 s8, s8, s9\ns_add_u32 s8, s8, 1\ns_cmp_ge_u32 s8, {dyn}\ns_cselect_b32 s8, 1, 0\nv_mov_b32 v20, s8")
                A("ds_write_b32 v98, v20 offset:24")
            A("v_cmp_lt_i32 vcc, 16, v18")
            A("s_bcnt1_i32_b64 s10, vcc")
            A("v_cmp_gt_u32 vcc, 16, v18")
            A("s_bcnt1_i32_b64 s8, vcc")
            A("s_sub_u32 s10, s10, s8")
            A("L_novote:")
        A("s_cmp_lt_i32 s10, 0\ns_cselect_b32 s10, 0x2000, 0\nv_mov_b32 v99, s10")
        A("ds_write_b32 v98, v99 offset:16")
        roles()
    A("v_mov_b32 v99, s63")
    A("ds_write_b32 v98, v99 offset:4")
    A(f"s_lshl_b32 s4, s6, 7\ns_add_u32 s4, s4, {WS_G}\nv_and_b32 v16, 31, v0\nv_lshl_add_u32 v16, v16, 2, s4")
    A("s_lshl_b32 s5, s7, 2\ns_add_u32 s4, s4, s5\nv_mov_b32 v17, s4\nv_mov_b32 v18, 0")
    A(f"s_and_b32 s4, s7, {0 if rankpre else 15}\ns_mul_i32 s4, s4, {32 * 3584}\ns_mul_i32 s5, s6, 448\ns_andn2_b32 s5, s5, 127\ns_add_u32 s4, s4, s5")
    A("v_lshrrev_b32 v21, 5, v0\nv_mul_u32_u24 v21, 3584, v21\nv_and_b32 v22, 31, v0\nv_lshl_add_u32 v21, v22, 4, v21\nv_add_u32 v21, s4, v21")
    if rankpre:
        A(f"s_lshl_b32 s4, s6, 7\ns_add_u32 s4, s4, {WS_R}\nv_mov_b32 v26, s4\nv_mov_b32 v27, 1")
        A("s_lshl_b32 s4, s7, 1\ns_sub_u32 s4, s4, 1\nv_mov_b32 v28, 0")
    A("v_lshrrev_b32 v22, 1, v0\nv_mul_u32_u24 v22, 3584, v22\nv_and_b32 v23, 1, v0\nv_lshl_add_u32 v22, v23, 4, v22\ns_lshl_b32 s4, s15, 5\nv_add_u32 v22, s4, v22")
    A("s_lshl_b32 s4, s15, 14\nv_add_u32 v23, s4, v9")
    A("s_waitcnt lgkmcnt(0)")
    A("s_barrier")
    A("s_barrier")
    A("s_barrier")
    assert gate and dsplit

    def wloop(label, n, lds, body):
        A(f"s_mov_b32 s5, {n}")
        if lds is not None:
            A(f"s_mov_b32 m0, {lds}")
        A(f"{label}:")
        body()
        A(f"s_sub_u32 s5, s5, 1\ns_cmp_lg_u32 s5, 0\ns_cbranch_scc1 {label}")

    def b_pre():
        A("global_load_dwordx4 v[32:35], v21, s[28:29]")
        A("global_load_dwordx4 v[32:35], v21, s[30:31]")
        A("v_add_u32 v21, 7168, v21")

    def b_down():
        A(f"global_load_lds_dwordx4 v23, s[32:33]{wntf}")
        A("v_add_u32 v23, 1024, v23\ns_add_u32 m0, m0, 1024")

    def b_gu():
        A("global_load_lds_dwordx4 v22, s[28:29]")
        A("s_add_u32 m0, m0, 16384")
        A("global_load_lds_dwordx4 v22, s[30:31]")
        A(f"v_add_u32 v22, {32 * 3584}, v22\ns_sub_u32 m0, m0, {16384 - 1024}")

    def only(cond, label, body):
        A(cond)
        A(f"s_cbranch_scc0 {label}")
        body()
        A(f"{label}:")
    after_pre = 0
    for k, step in enumerate(pm):
        if step in "SgG" and not gsync:
            continue
        if step in "PDU" and "now" in xp:
            continue
        if step == "D" and dlate and not dlast:
            continue
        if step == "S":
            def sig():
                A("s_mov_b64 exec, 1\nglobal_store_dword v17, v18, s[38:39]")
                if rankpre:
                    only("s_cmp_lt_u32 s7, 16", "L_norank", lambda: A("global_atomic_add v28, v26, v27, s[38:39] sc0 sc1"))
                A("s_mov_b64 exec, -1")
            only("s_cmp_eq_u32 s63, 1", "L_nosig", sig)
        elif step in "12":
            A("s_barrier")

        elif step == "g":
            only("s_cmp_eq_u32 s63, 1", f"L_nog{k}", lambda: A("global_load_dword v19, v16, s[38:39] sc1"))
        elif step == "G":
            def gwait():
                A("s_mov_b32 s5, 0")
                A("L_pollg:")
                A("s_waitcnt vmcnt(0)")
                A("v_cmp_eq_u32 vcc, -1, v19")
                if gmiss:
                    A(f"s_bcnt1_i32_b32 s4, vcc_lo\ns_cmp_le_u32 s4, {gmiss}\ns_cbranch_scc1 L_gok")
                else:
                    A("s_cbranch_vccz L_gok")
                A(f"s_add_u32 s5, s5, 1\ns_cmp_lt_u32 s5, {SPIN_MAX}\ns_cbranch_scc0 L_gok")
                A(f"s_sleep {gsleep}")
                A("global_load_dword v19, v16, s[38:39] sc1")
                A("s_branch L_pollg")
            only("s_cmp_eq_u32 s63, 1", "L_gok", gwait)
            stamp_at(10)
        elif step == "P":
            if pref and not rankpre:
                only("s_cmp_lt_u32 s7, 16", "L_nopre", lambda: wloop("L_wpre", 16, None, b_pre))
            if pref and rankpre:
                def pre():
                    A("s_waitcnt vmcnt(0)")
                    A("v_readfirstlane_b32 s8, v28")
                    A("s_add_u32 s8, s8, 1\ns_mul_i32 s9, s8, 3\ns_lshl_b32 s4, s8, 1\ns_add_u32 s4, s4, 8")
                    A("s_cmp_lt_u32 s8, 8\ns_cselect_b32 s9, s9, s4\ns_cselect_b32 s5, 24, 16")
                    A("s_cmp_lt_u32 s8, 12\ns_cselect_b32 s5, s5, 0")
                    A("s_lshl_b32 s4, s7, 1\ns_cmp_eq_u32 s63, 1\ns_cselect_b32 s9, s9, s4\ns_cselect_b32 s5, s5, 16")
                    A(f"s_mul_i32 s9, s9, {16 * 3584}\nv_add_u32 v21, s9, v21")
                    A("s_cmp_eq_u32 s5, 0\ns_cbranch_scc1 L_nopre")
                    A("L_wpre:")
                    b_pre()
                    A("s_sub_u32 s5, s5, 1\ns_cmp_lg_u32 s5, 0\ns_cbranch_scc1 L_wpre")
                    A("s_waitcnt vmcnt(30)")
                only("s_cmp_lt_u32 s7, 16", "L_nopre", pre)
            after_pre = 0
        elif step == "D":
            A("s_waitcnt vmcnt(46)")
            only("s_cmp_lt_u32 s7, 14", "L_nodown", lambda: wloop("L_wdown", 16, L_W + 32768, b_down))
            after_pre = 16
        elif step == "w":
            A(f"s_waitcnt vmcnt({after_pre})")
            stamp_at(11)
        elif step == "z":
            A(f"s_sleep {cdelay}")
        elif step == "U":
            only("s_cmp_lt_u32 s7, 14", "L_nogu", lambda: wloop("L_wgu", 16, L_W, b_gu))
    only("s_cmp_lt_u32 s7, 14", "L_wdone", lambda: A("s_waitcnt vmcnt(16)\ns_barrier" if dlast else "s_barrier" if dlate else "s_waitcnt vmcnt(32)\ns_barrier"))
    A("s_waitcnt vmcnt(0)")
    stamp_at(12)
    if stamps:
        A("s_waitcnt lgkmcnt(0)")
        for i in range(16):
            A(f"v_writelane_b32 v4, s{64 + 2 * i}, {i}")
        A(f"v_lshlrev_b32 v5, 2, v0\nds_write_b32 v5, v4 offset:{L_G}\ns_waitcnt lgkmcnt(0)")
    A("s_barrier")
    A("s_endpgm")
    if xp:
        A("L_svcbar:")
        A("L_svcbar2:")
        A("v_mov_b32 v99, 1")
        A("ds_write_b32 v98, v99")
        A("s_mov_b32 s4, 0")
        A("s_branch L_svcend")
    A("L_end:")
    A("s_endpgm")
    A("L_codeend:")

    if jitter is not None:
        import random
        rnd = random.Random(jitter)
        C2 = []
        k = 0
        for blk in C:
            for ln in blk.split("\n"):
                if ln.startswith(("s_barrier", "global_store", "global_atomic")) and rnd.random() < 0.7:
                    k += 1
                    C2.append(f"s_cselect_b32 s91, 1, 0\ns_mul_i32 s90, s2, {rnd.randrange(3, 99, 2)}\ns_add_u32 s90, s90, s3\ns_mul_i32 s90, s90, {rnd.randrange(1001, 99999, 2)}")
                    C2.append(f"s_lshr_b32 s90, s90, 5\ns_and_b32 s90, s90, {rnd.choice((3, 7, 15, 63))}\ns_cmp_eq_u32 s90, 1\ns_cbranch_scc0 L_jit{k}\ns_sleep {rnd.choice((2, 10, 40, 120))}\nL_jit{k}:\ns_cmp_eq_u32 s91, 1")
                C2.append(ln)
        C = C2
    body = fix(C)
    out = HEADER
    out += f"; @launch grid=(256,1,1) block=(576,1,1) lds={LDS_BYTES}\n"
    out += DOC.lstrip("\n")
    out += '.amdgcn_target "amdgcn-amd-amdhsa--gfx950"\n.text\n'
    out += f".globl {NAME}_kernel\n.p2align 8\n.type {NAME}_kernel,@function\n{NAME}_kernel:\n"
    out += "\n".join(("" if l.endswith(":") else "    ") + l for l in body) + "\n"
    out += f""".section .rodata,"a"
.p2align 6
.amdhsa_kernel {NAME}_kernel
  .amdhsa_next_free_vgpr 168
  .amdhsa_next_free_sgpr 96
  .amdhsa_accum_offset 168
  .amdhsa_group_segment_fixed_size 0
  .amdhsa_kernarg_size 96
  .amdhsa_user_sgpr_count 2
  .amdhsa_user_sgpr_kernarg_segment_ptr 1
  .amdhsa_system_sgpr_workgroup_id_x 1
  .amdhsa_float_denorm_mode_32 3
.end_amdhsa_kernel
"""
    return out


if __name__ == "__main__":
    cfg = eval("dict(" + (sys.argv[2] if len(sys.argv) > 2 else "") + ")")
    open(sys.argv[1], "w").write(gen(**cfg))
```

```python
import sys
from asmlib import fix, VM

NAME = "sequential_preLN__gqa_block_cached__glu_gated_geglu__decode"
HEADER = open("cdna_kernels/" + NAME + ".s.ref").read().split("; Override launch")[0]

WS_Q = 0x0
WS_F = 0x10000
WS_G = 0x11000
WS_R = 0x12000
WS_V = 0x13000
WS_A = 0x14000
WS_P1 = 0x20000
P1_STRIDE = 2048
WS_P2 = 0xB0000
WS_P3 = 0xC0000
WS_STAMP = 0x200000
L_Q = 0
L_X = 1024
L_M = 2048
L_L = 2176
L_F = 2304
L_B = 2560
L_H = 4608
L_HN = 6656
L_G = 7680
L_W = 8704
L_K = L_W + 49152
KRING = 3
VRING = 5
LDS_BYTES = L_K + 8 * KRING * 4096

DOC = r'''
; ---------------------------------------------------------------------------------------------------------------------
; One launch, 256 workgroups (one per CU) of 8 streaming waves + 1 service wave.  x = wg & 7, y = wg >> 3.
;
; Streaming waves: workgroup (x, y) owns 1024 keys of KV head x (8 rounds of one 16-key tile per wave).  K tiles go to
;   long runs of one matrix (K0, V0-4, K1-7, V5-7), since interleaving two far-apart buffers costs HBM efficiency.
;   S^T = K q^T by MFMA (4 heads x 4 copies across the 16 columns), scores rounded to bf16 where the reference rounds,
; Service wave: LayerNorm(x), a 64 x 128 block of the q projection, exchange of q through d_ws, prefetch of the FFN weights.
;       stage D  (y = 14, 15) sums the FFN partials, adds the residual, writes 32 outputs
; Hand-offs: every slot is first set to 0xffffffff by this launch; readers start polling only after a chain of flags that
;   ids published in this launch shows all 32 workgroups of a head on one die, P1 and the helper flags use that die's L2.
; ---------------------------------------------------------------------------------------------------------------------
'''
LOG2E = 0x3FB8AA3B
SCALE = 0x3DB504F3
FULL = "row_mask:0xf bank_mask:0xf"
SPIN_MAX = 200000


def gen(D=3, D2=3, nt=True, inter="wgtile", stamps=False, wnt=True, warm='spread', sleep=1, qsleep=4,
        xp=(), masked=True, qrot=4, local=True, qpos=18, pref=True, fold=True, bpos=None, bwait=False, ppos=None, kfirst=True, wb=False, pad1=0, pad2=0, pad3=0, gsync=True, gsleep=2, cdelay=0, opos=None, enc=None, dsplit=True, early=False, gate=True, sclr='after', qearly=True, lpos='b1b', order=None, pm='Sg2GPU', dsleep=None, cfast=False, adapt=None, d2from=32, D3=None, d3from=56, split=False, dup='auto', dup3=True, rankpre=True, gmiss=16, ntr=2, vpos=44, dlate=True, outfl='', jitter=None, p1plain=False, clrpos=3, wqfirst=False, dseq=None, NB=3, bar1c=True, lp=('c', 'c', 'c', 'c'), dlast=False, csd=False, c4=True, b4=False, bprep=True, txor='ch', clrbal=True, crot=0, Dinit=None, boost=range(50, 64), dyn=None, dynodd=0, dyn2=None, npre=None):
    C = []
    A = C.append
    if dyn2:
        boost = range(min(st for _, st in dyn2), 64)
    if dlast:
        pm = pm + "D"
    ntf = " nt" if nt else ""
    wntf = " nt" if wnt else ""
    D2 = D if D2 is None else D2
    hmap = "xcd"; KS = 4; ld2 = ld3 = st2 = st3 = "sc1"; peel = False; late4 = True; cpos = ("end",) * 6; fastln = True; perturb = None
    Dinit = D if Dinit is None else Dinit
    bpos = (Dinit + max(3, clrpos) if kfirst else D) if bpos is None else bpos
    KL = KS.bit_length() - 1
    NQ = 64 // KS
    QR = 2048 * KS

    def stamp_at(k):
        if stamps:
            A(f"s_memrealtime s[{64 + 2 * k}:{65 + 2 * k}]")

    def stamp_store():
        if not stamps or stamps == "enc":
            return
        A("s_waitcnt lgkmcnt(0)")
        if stamps == "dbg":
            lab = f"L_dbg{len(C)}"
            A("s_and_b32 s4, s3, 7\ns_cmp_eq_u32 s4, 0")
            A(f"s_cbranch_scc0 {lab}")
            A("s_not_b32 s64, s64")
            A("s_cmp_eq_u32 s3, 8")
            sel0 = (0, 1, 2, 4, 5, 6, 7)
            sel8 = (2, 4, 5, 6, 7, 8, 9)
            A("s_mov_b64 exec, -1")
            for i in range(7):
                A(f"s_cselect_b32 s4, s{64 + 2 * sel8[i]}, s{64 + 2 * sel0[i]}")
                A(f"v_writelane_b32 v4, s4, {i}")
            A("s_lshl_b32 s4, s3, 2\ns_add_u32 s4, s4, 4\nv_lshl_add_u32 v1, v0, 2, s4")
            A("s_mov_b64 exec, 0x7f")
            A("global_atomic_umax v1, v4, s[36:37] sc1")
            A(f"{lab}:")
            return
        lab = f"L_st{len(C)}"
        A(f"s_cmp_eq_u32 s3, 1\ns_cbranch_scc0 {lab}")
        A(f"s_mov_b64 exec, 0xffff\nv_lshlrev_b32 v5, 2, v0\nds_read_b32 v4, v5 offset:{L_G}")
        A(f"s_lshl_b32 s4, s2, 4\ns_add_u32 s4, s4, 8\ns_lshl_b32 s4, s4, 6\ns_add_u32 s4, s4, {WS_STAMP}\nv_add_u32 v5, s4, v5")
        A("s_waitcnt lgkmcnt(0)\nglobal_store_dword v5, v4, s[38:39]\ns_nop 1")
        A(f"{lab}:")
        A("s_mov_b64 exec, 1")
        A("s_lshl_b32 s4, s2, 4\ns_add_u32 s4, s4, s3\ns_lshl_b32 s4, s4, 6")
        A(f"s_add_u32 s4, s4, {WS_STAMP}")
        A("v_mov_b32 v1, s4")
        A("s_getreg_b32 s94, hwreg(HW_REG_XCC_ID)")
        if stamps == "hw":
            A("s_getreg_b32 s90, hwreg(HW_REG_HW_ID)")
        A("s_lshl_b32 s92, s62, 16\ns_add_u32 s92, s92, s59\ns_lshl_b32 s4, s49, 11\ns_add_u32 s92, s92, s4")
        for q in range(4):
            for i in range(4):
                A(f"v_mov_b32 v{4 + i}, s{64 + 2 * (4 * q + i)}")
            A(f"global_store_dwordx4 v1, v[4:7], s[38:39] offset:{16 * q}")
            A("s_nop 1")

    def rowsum(a, op="add"):
        for s in (8, 4, 2, 1):
            A(f"v_{op}_f32_dpp v{a}, v{a}, v{a} row_ror:{s} {FULL}")

    def xrow(a, t, op="add"):
        A(f"v_mov_b32 v{t}, v{a}")
        A(f"v_permlane16_swap_b32 v{a}, v{t}")
        A(f"v_{op}_f32 v{a}, v{a}, v{t}")
        A(f"v_mov_b32 v{t}, v{a}")
        A(f"v_permlane32_swap_b32 v{a}, v{t}")
        A(f"v_{op}_f32 v{a}, v{a}, v{t}")

    def scatter4(r):
        A(f"v_permlane32_swap_b32 v{r}, v{r + 1}\nv_permlane32_swap_b32 v{r + 2}, v{r + 3}")
        A(f"v_add_f32 v{r}, v{r}, v{r + 1}\nv_add_f32 v{r + 2}, v{r + 2}, v{r + 3}")
        A(f"v_permlane16_swap_b32 v{r}, v{r + 2}")
        A(f"v_add_f32 v{r}, v{r}, v{r + 2}")

    def sigma(dst, t):
        A(f"v_bfe_u32 v{dst}, v0, 4, 1\nv_lshrrev_b32 v{t}, 5, v0\nv_lshl_add_u32 v{dst}, v{dst}, 1, v{t}")

    def rbf(a):
        A(f"v_cvt_pk_bf16_f32 v{a}, v{a}, v{a}")
        A(f"v_lshlrev_b32 v{a}, 16, v{a}")

    def ln_stats(vals, mean, den, rden, t0, t1, tmp):
        A(f"v_add_f32 v{t0}, v{vals[0]}, v{vals[1]}")
        A(f"v_add_f32 v{t1}, v{vals[2]}, v{vals[3]}")
        A(f"v_add_f32 v{mean}, v{vals[4]}, v{vals[5]}")
        A(f"v_add_f32 v{den}, v{vals[6]}, v{vals[7]}")
        A(f"v_add_f32 v{t0}, v{t0}, v{t1}")
        A(f"v_add_f32 v{mean}, v{mean}, v{den}")
        A(f"v_add_f32 v{mean}, v{mean}, v{t0}")
        rowsum(mean)
        xrow(mean, t0)
        A(f"v_mul_f32 v{mean}, 0x3b000000, v{mean}")
        for i in range(8):
            A(f"v_sub_f32 v{tmp[i]}, v{vals[i]}, v{mean}")
        A(f"v_mul_f32 v{den}, v{tmp[0]}, v{tmp[0]}")
        A(f"v_mul_f32 v{t1}, v{tmp[1]}, v{tmp[1]}")
        for i in range(2, 8, 2):
            A(f"v_fmac_f32 v{den}, v{tmp[i]}, v{tmp[i]}")
            A(f"v_fmac_f32 v{t1}, v{tmp[i + 1]}, v{tmp[i + 1]}")
        A(f"v_add_f32 v{den}, v{den}, v{t1}")
        rowsum(den)
        xrow(den, t0)
        A(f"v_mul_f32 v{den}, 0x3b000000, v{den}")
        A(f"v_cvt_pk_bf16_f32 v{t0}, v{mean}, v{den}")
        A(f"v_lshlrev_b32 v{mean}, 16, v{t0}")
        A(f"v_and_b32 v{den}, 0xffff0000, v{t0}")
        A(f"v_add_f32 v{den}, 0x3727c5ac, v{den}")
        rbf(den)
        A(f"v_sqrt_f32 v{t0}, v{den}")
        A(f"v_rsq_f32 v{t1}, v{den}")
        A(f"v_fma_f32 v{den}, -v{t0}, v{t0}, v{den}")
        A(f"v_mul_f32 v{t1}, 0.5, v{t1}")
        A(f"v_fma_f32 v{den}, v{den}, v{t1}, v{t0}")
        rbf(den)
        A(f"v_rcp_f32 v{rden}, v{den}")

    def ln_apply(xs, mean, den, rden, ts):
        for x in xs:
            A(f"v_sub_f32 v{x}, v{x}, v{mean}")
        for x in xs:
            A(f"v_cvt_pk_bf16_f32 v{x}, v{x}, v{x}")
        for x in xs:
            A(f"v_lshlrev_b32 v{x}, 16, v{x}")
        for x, t in zip(xs, ts):
            A(f"v_mul_f32 v{t}, v{x}, v{rden}")
        for x, t in zip(xs, ts):
            A(f"v_fma_f32 v{x}, -v{t}, v{den}, v{x}")
        for x, t in zip(xs, ts):
            A(f"v_fma_f32 v{x}, v{x}, v{rden}, v{t}")

    def ln2():
        A("v_mov_b32 v133, v132")
        for i in range(4):
            A(f"v_pk_add_f32 v[{124 + 2 * i}:{125 + 2 * i}], v[{124 + 2 * i}:{125 + 2 * i}], v[132:133] neg_lo:[0,1] neg_hi:[0,1]")
        A("v_pk_add_f32 v[134:135], v[124:125], v[126:127]")
        A("v_pk_mul_f32 v[136:137], v[124:125], v[124:125]")
        A("v_pk_add_f32 v[138:139], v[128:129], v[130:131]")
        A("v_pk_fma_f32 v[136:137], v[126:127], v[126:127], v[136:137]")
        A("v_pk_add_f32 v[134:135], v[134:135], v[138:139]")
        A("v_pk_fma_f32 v[136:137], v[128:129], v[128:129], v[136:137]")
        A("v_add_f32 v16, v134, v135")
        A("v_pk_fma_f32 v[136:137], v[130:131], v[130:131], v[136:137]")
        A("v_add_f32 v17, v136, v137")
        for m in ("row_shr:1", "row_shr:2", "row_shr:4", "row_shr:8"):
            A(f"v_add_f32_dpp v16, v16, v16 {m} {FULL} bound_ctrl:0")
            A(f"v_add_f32_dpp v17, v17, v17 {m} {FULL} bound_ctrl:0")
        for m in ("row_bcast:15 row_mask:0xa", "row_bcast:31 row_mask:0xc"):
            A(f"v_add_f32_dpp v16, v16, v16 {m} bank_mask:0xf")
            A(f"v_add_f32_dpp v17, v17, v17 {m} bank_mask:0xf")
        A("v_readlane_b32 s4, v16, 63")
        A("v_readlane_b32 s5, v17, 63")
        A("v_mov_b32 v18, 0x3b000000")
        A("v_mul_f32 v16, s4, v18")
        A("v_mul_f32 v17, s5, v18")
        A("v_fma_f32 v17, -v16, v16, v17")
        A("v_add_f32 v16, v16, v132")
        A("v_max_f32 v17, 0, v17")
        A("v_cvt_pk_bf16_f32 v18, v16, v17")
        A("v_and_b32 v17, 0xffff0000, v18")
        A("v_lshlrev_b32 v16, 16, v18")
        A("v_add_f32 v17, 0x3727c5ac, v17")
        A("v_sub_f32 v120, v120, v16")
        A("v_cvt_pk_bf16_f32 v18, v120, v17")
        A("v_and_b32 v17, 0xffff0000, v18")
        A("v_sqrt_f32 v17, v17")
        A("v_lshlrev_b32 v120, 16, v18")
        rbf(17)
        A("v_rcp_f32 v18, v17")
        A("v_mul_f32 v19, v120, v18")
        A("v_fma_f32 v120, -v19, v17, v120")
        A("v_fma_f32 v120, v120, v18, v19")

    def poll(label, loads, regs, t, slp=None, between=None):
        slp = sleep if slp is None else slp
        A("s_mov_b32 s59, 0")
        if between:
            for l in loads:
                A(l)
            between()
            A(f"s_branch {label}_chk")
        A(f"{label}:")
        for l in loads:
            A(l)
        if between:
            A(f"{label}_chk:")
        A("s_waitcnt vmcnt(0)")
        regs = list(regs)
        if len(regs) == 1:
            t = regs[0]
            rest = []
        elif len(regs) % 2 == 0:
            A(f"v_max_u32 v{t}, v{regs[0]}, v{regs[1]}")
            rest = regs[2:]
        else:
            A(f"v_max3_u32 v{t}, v{regs[0]}, v{regs[1]}, v{regs[2]}")
            rest = regs[3:]
        for i in range(0, len(rest), 2):
            A(f"v_max3_u32 v{t}, v{t}, v{rest[i]}, v{rest[i + 1]}")
        A(f"v_cmp_eq_u32 vcc, -1, v{t}")
        A(f"s_branch {label}_ok" if ("svc3" in xp and label in ("L_pollq", "L_pollall")) else f"s_cbranch_vccz {label}_ok")
        A("s_add_u32 s59, s59, 1")
        A(f"s_cmp_lt_u32 s59, {SPIN_MAX}")
        A(f"s_cbranch_scc0 {label}_ok")
        if masked:
            A("s_mov_b64 exec, vcc")
        if slp:
            A(f"s_sleep {slp}")
        A(f"s_branch {label}")
        A(f"{label}_ok:")
        if masked:
            A("s_mov_b64 exec, -1")

    def ldswait(label, off, val=None):
        A(f"v_mov_b32 v24, {L_F}\ns_mov_b32 s5, 0")
        A(f"{label}:")
        A(f"ds_read_b32 v25, v24 offset:{off}")
        A("s_waitcnt lgkmcnt(0)")
        A("v_cmp_ne_u32 vcc, 0, v25" if val is None else f"v_cmp_eq_u32 vcc, {val}, v25")
        A(f"s_cbranch_vccnz {label}_ok")
        A(f"s_add_u32 s5, s5, 1\ns_cmp_lt_u32 s5, {SPIN_MAX * 64}\ns_cbranch_scc0 {label}_ok")
        A("s_sleep 1")
        A(f"s_branch {label}")
        A(f"{label}_ok:")

    def store_quad(val, addr, lo="0x11111111", hi="0x11111111", fl="sc1", addr2=None):
        for i in (1, 2, 3):
            A(f"v_mov_b32_dpp v{val + i}, v{val} quad_perm:[{i},{i},{i},{i}] {FULL}")
        A(f"s_mov_b32 exec_lo, {lo}\ns_mov_b32 exec_hi, {hi}")
        A(f"global_store_dwordx4 v{addr}, v[{val}:{val + 3}], s[38:39] {fl}")
        if addr2 is not None:
            A(f"global_store_dwordx4 v{addr2}, v[{val}:{val + 3}], s[38:39] {fl}")
        A("s_mov_b64 exec, -1")

    def roles():
        brot = 0 if local else 4
        A(f"s_add_u32 s61, s6, {brot}\ns_and_b32 s61, s61, 7")
        A("s_bfe_u32 s13, s7, 0x10003\ns_lshl_b32 s4, s61, 1\ns_add_u32 s13, s13, s4")
        A("s_and_b32 s14, s7, 7")
        A("s_mul_i32 s15, s6, 14\ns_add_u32 s15, s15, s7")

    def rowoff(dst, row, tmp, on=True):
        if dup is None or not on:
            A(f"s_lshl_b32 {dst}, {row}, 11")
        else:
            A(f"s_lshr_b32 {tmp}, {row}, 2\ns_lshl_b32 {tmp}, {tmp}, 14\ns_and_b32 {dst}, {row}, 3\ns_lshl_b32 {dst}, {dst}, 11\ns_add_u32 {dst}, {dst}, {tmp}")

    def mycopy(dst):
        if dup == "auto":
            A(f"s_mov_b32 {dst}, s49")
        else:
            A(f"s_lshr_b32 {dst}, s6, 2\ns_xor_b32 {dst}, {dst}, {dup}\ns_lshl_b32 {dst}, {dst}, 13")

    def p1slot(dst):
        A(f"s_lshl_b32 {dst}, s6, 5\ns_add_u32 {dst}, {dst}, s7\ns_mul_i32 {dst}, {dst}, {P1_STRIDE}\ns_add_u32 {dst}, {dst}, {WS_P1}")

    A("; ==== entry")
    stamp_at(0)
    A("s_load_dwordx16 s[16:31], s[0:1], 0")
    A("s_load_dwordx8 s[32:39], s[0:1], 64")
    A("s_cmp_ge_u32 s2, 256")
    A("s_cbranch_scc1 L_end")
    A("v_lshrrev_b32 v1, 6, v0")
    A("v_and_b32 v0, 63, v0")
    A("v_readfirstlane_b32 s3, v1")
    A("s_and_b32 s6, s2, 7")
    A("s_lshr_b32 s7, s2, 3")
    A(f"s_add_u32 s60, s6, {qrot}\ns_and_b32 s60, s60, 7")
    A("v_lshlrev_b32 v9, 4, v0")
    A("s_cmp_eq_u32 s3, 8")
    A("s_cbranch_scc1 L_service")
    def wqaddr():
        A("v_lshrrev_b32 v10, 3, v0\nv_and_b32 v11, 7, v0\nv_lshlrev_b32 v10, 13, v10\nv_lshl_add_u32 v10, v11, 4, v10")
        A("s_and_b32 s4, s7, 3\ns_lshl_b32 s4, s4, 3\ns_add_u32 s4, s4, s3\ns_lshl_b32 s4, s4, 7\ns_add_u32 s4, s4, s60\ns_lshl_b32 s4, s4, 3")
        A("s_lshr_b32 s5, s7, 2\ns_add_u32 s4, s4, s5\ns_lshl_b32 s4, s4, 7")
        A("v_add_u32 v10, s4, v10\nv_add_u32 v11, 0x10000, v10")
        A(f"s_lshl_b32 s57, s3, 11\ns_add_u32 m0, s57, {L_W}")

    def clears(b=12):
        n0 = len(C)
        clears0()
        if b != 12:
            for i in range(n0, len(C)):
                for r in (17, 16, 15, 14, 13, 12):
                    C[i] = C[i].replace(f"v{r},", f"v{r - 12 + b},").replace(f"v{r}\n", f"v{r - 12 + b}\n")
                    if C[i].endswith(f"v{r}"):
                        C[i] = C[i][:-len(f"v{r}")] + f"v{r - 12 + b}"

    def clears1():
        A("; -- reset the hand-off slots this workgroup answers for")
        for i in range(4):
            A(f"v_mov_b32 v{12 + i}, -1")
        roles()
        p1slot("s4")
        A("s_and_b32 s9, s7, 15\ns_mul_i32 s8, s6, 14\ns_add_u32 s8, s8, s9")
        rowoff("s5", "s8", "s48")
        A(f"s_lshr_b32 s8, s7, 4\ns_lshl_b32 s8, s8, 13\ns_add_u32 s5, s5, s8\ns_add_u32 s5, s5, {WS_P3 - 256}")
        A("v_mov_b32 v16, s4\nv_mov_b32 v17, s5\nv_cmp_gt_u32 vcc, 16, v0\ns_lshl_b32 s4, s3, 8")
        A("v_cndmask_b32 v16, v17, v16, vcc\nv_add3_u32 v16, v16, v9, s4")
        rowoff("s4", "s13", "s48")
        A(f"s_lshl_b32 s5, s14, 8\ns_add_u32 s4, s4, s5\ns_add_u32 s4, s4, {WS_P2 - 512}")
        A(f"v_bfe_u32 v17, v0, 4, 1\nv_mul_u32_u24 v17, {8192 - 256}, v17\nv_add3_u32 v17, v17, v9, s4\nv_cmp_gt_u32 vcc, 32, v0")
        A("s_cmp_lt_u32 s9, 14\ns_cselect_b32 s8, -1, 0xffff")
        A("v_cndmask_b32 v16, v17, v16, vcc")
        A("s_lshr_b32 s9, s7, 4\ns_cmp_lt_u32 s3, s9\ns_cselect_b32 s9, -1, 0")

    def clears0():
        if clrbal and dup is not None and dup3:
            return clears1()
        for i in range(4):
            A(f"v_mov_b32 v{12 + i}, -1")
        roles()
        p1slot("s4")
        rowoff("s5", "s15", "s8", dup3)
        A(f"s_add_u32 s5, s5, {WS_P3 - 256}")
        rowoff("s8", "s13", "s9")
        A(f"s_lshl_b32 s9, s14, 8\ns_add_u32 s8, s8, s9\ns_add_u32 s8, s8, {WS_P2 - 256}")
        A("s_cmp_ge_u32 s7, 16\ns_cselect_b32 s5, s8, s5\ns_cselect_b32 s8, 1, 8\ns_cselect_b32 s9, 32, 14")
        A("s_cmp_lt_u32 s7, s9\ns_cselect_b32 s8, s8, 0\ns_cmp_lt_u32 s3, s8\ns_cselect_b32 s8, -1, 0xffff")
        if dup is not None:
            A("s_cselect_b32 s9, 0xffff, 0")
            if not dup3:
                A("s_cmp_ge_u32 s7, 16\ns_cselect_b32 s9, s9, 0")
        A("v_mov_b32 v16, s4\nv_mov_b32 v17, s5\nv_cmp_gt_u32 vcc, 16, v0\ns_lshl_b32 s4, s3, 8")
        A("v_cndmask_b32 v16, v17, v16, vcc\nv_add3_u32 v16, v16, v9, s4")
        if dup is not None:
            A(f"v_lshrrev_b32 v17, 5, v0\nv_mul_u32_u24 v17, {8192 - 256}, v17\nv_add_u32 v16, v16, v17")

    def clearstore(b=12):
        if p1plain:
            A("s_mov_b64 exec, 0xffff")
            if p1plain != "none":
                A("global_store_dwordx4 v16, v[12:15], s[38:39]")
            A("s_andn2_b32 s8, s8, 0xffff\ns_cbranch_scc0 L_noc2")
        A("s_mov_b32 exec_lo, s8\ns_mov_b32 exec_hi, " + ("0" if dup is None else "s9"))
        A(f"global_store_dwordx4 v{b + 4}, v[{b}:{b + 3}], s[38:39] sc1")
        A("L_noc2:")
        A("s_mov_b64 exec, -1")

    def wqload():
        A("; -- x and this wave's rows of the w_q block -> LDS")
        A("s_cmp_eq_u32 s3, 0")
        A("s_cbranch_scc0 L_nox")
        A(f"s_mov_b32 m0, {L_X}")
        A("global_load_lds_dwordx4 v9, s[16:17]")
        A(f"s_mov_b32 m0, {L_W}")
        A("s_nop 0")
        A("L_nox:")
        A(f"global_load_lds_dwordx4 v10, s[22:23]{wntf}")
        A("s_add_u32 m0, m0, 1024")
        A(f"global_load_lds_dwordx4 v11, s[22:23]{wntf}")
    if not kfirst:
        wqaddr()
    vKS = (1, 2, 3, 4)
    vKR = (5, 6, 7, 8)
    vV, vM, vML, vL = 9, 10, 11, 12
    PK = (13, 14)
    vAl = 15
    SEL = (16, 17, 18, 19)
    S = (20, 21, 22, 23)
    T = (24, 25, 26, 27)
    BB = 28
    vT2 = 38
    ACC = (40, 44)
    QF = 48
    KF = 64
    VR = [80 + 16 * i for i in range(VRING)]
    A("v_lshrrev_b32 v24, 4, v0")
    A("v_lshlrev_b32 v25, 6, v24")
    A(f"v_xor_b32 v{vKS[0]}, v{vV}, v25")
    for i in (1, 2, 3):
        A(f"v_xor_b32 v{vKS[i]}, {16 * i}, v{vKS[0]}")
    if split:
        A(f"v_add_u32 v{vKS[2]}, 6144, v{vKS[2]}\nv_add_u32 v{vKS[3]}, 6144, v{vKS[3]}\nv_add_u32 v39, 6144, v{vV}")
    A("s_lshl_b32 s10, s6, 23")
    ipat = {"wgtile": "wwwtttccccc", "contig": "tttwwwccccc", "global": "wwwcccccttt"}.get(inter, inter)
    assert sorted(ipat) == sorted("wwwtttccccc") and not split
    if crot:
        A(f"s_lshl_b32 s4, s7, {crot}\ns_lshr_b32 s5, s7, {5 - crot}\ns_or_b32 s4, s4, s5\ns_and_b32 s4, s4, 31")
    for k, reg in (("w", "s3"), ("c", "s4" if crot else "s7")):
        pos = [i for i, ch in enumerate(ipat) if ch == k]
        b = 0
        while b < len(pos):
            e = b
            while e + 1 < len(pos) and pos[e + 1] == pos[e] + 1:
                e += 1
            if b == 0 and e == len(pos) - 1:
                A(f"s_lshl_b32 s11, {reg}, {12 + pos[0]}")
            else:
                A(f"s_bfe_u32 s11, {reg}, {hex(((e - b + 1) << 16) | b)}\ns_lshl_b32 s11, s11, {12 + pos[b]}")
            A("s_add_u32 s10, s10, s11")
            b = e + 1
    tpos = [i for i, ch in enumerate(ipat) if ch == "t"]

    def toff(t):
        return sum(((t >> b) & 1) << (12 + p) for b, p in enumerate(tpos))
    if txor:
        assert tpos == list(range(tpos[0], tpos[0] + 3))
        A({"c": "s_and_b32 s11, s7, 7", "x": "s_mov_b32 s11, s6", "cx": "s_xor_b32 s11, s7, s6\ns_and_b32 s11, s11, 7",
           "ch": "s_lshr_b32 s11, s7, 2", "chx": "s_lshr_b32 s11, s7, 2\ns_xor_b32 s11, s11, s6"}[txor])
        A(f"s_lshl_b32 s11, s11, {12 + tpos[0]}\ns_add_u32 s10, s10, s11")
    A("s_mov_b32 s11, s10")
    A(f"s_mul_i32 s56, s3, {KRING * 4096}\ns_add_u32 s56, s56, {L_K}")
    A("s_mov_b32 s42, 0x4000000\ns_mov_b32 s43, 0x20000\ns_mov_b32 s46, 0x4000000\ns_mov_b32 s47, 0x20000" if (order and order[0] == "V") else "s_mov_b32 s42, 0x4000000\ns_mov_b32 s43, 0x20000")
    if kfirst:
        A("s_mov_b32 m0, s56")
    if sclr == "first" and "noclear" not in xp:
        clears()
    A("s_waitcnt lgkmcnt(0)")
    stamp_at(12)
    if sclr == "first" and "noclear" not in xp:
        clearstore()
    if not kfirst:
        A("s_barrier")
        wqload()
        A("s_mov_b32 m0, s56")
    vfirst = bool(order) and order[0] == "V"
    if vfirst:
        A("s_mov_b32 s44, s20\ns_and_b32 s45, s21, 0xffff")
    else:
        A("s_mov_b32 s40, s18\ns_and_b32 s41, s19, 0xffff")
    stamp_at(11)
    vm = VM()
    ids = {}
    m0k = [0]
    order = (order or {3: "K0 V0 V1 V2 V3 V4 K1 K2 K3 K4 K5 K6 K7 V5 V6 V7", 2: "K0 V0 K1 V1 K2 V2 V3 V4 K3 K4 K5 V5 K6 K7 V6 V7"}[NB]).split()
    if len(order) == 1:
        cnt = {"K": 0, "V": 0}
        seq = []
        for ch in order[0]:
            seq.append((ch, cnt[ch] >> 2, cnt[ch] & 3))
            cnt[ch] += 1
        assert cnt == {"K": 32, "V": 32} and order[0][:4] == "KKKK"
    else:
        seq = [(g[0], int(g[1]), u) for g in order for u in range(4)]
    NPRE = npre or 4 * (KRING + VRING)

    def W(opid):
        w = vm.wait(opid)
        if w:
            A(w)

    def load(n):
        mat, t, u = seq[n]
        d = D if n < d2from else D2
        if D3 and n >= d3from:
            d = D3
        if n <= bpos:
            d = Dinit
        if dseq and n > bpos:
            d = int(dseq[n])
        if dyn and boost and n == min(boost):
            A("ds_read_b32 v38, v39 offset:24\ns_waitcnt lgkmcnt(0)\nv_readfirstlane_b32 s48, v38")
        if n in boost:
            W(ids[seq[n - d - 1]])
            A(f"s_cmp_le_u32 s48, {n}\ns_cbranch_scc1 L_bo{n}" if dyn2 else f"s_bitcmp1_b32 s48, 0\ns_cbranch_scc1 L_bo{n}")
            A(f"s_waitcnt vmcnt({vm.n - ids[seq[n - d]]})")
            A(f"L_bo{n}:")
        elif adapt and n >= NPRE and n in adapt[2]:
            W(ids[seq[n - d - 1]])
            A(f"s_cbranch_vccnz L_ad{n}")
            A(f"s_waitcnt vmcnt({d - 1})")
            A(f"L_ad{n}:")
        elif n >= d:
            W(ids[seq[n - d]])
            if adapt and n >= NPRE and n in adapt[3]:
                A(f"s_cmp_le_u32 s9, {adapt[0]}")
                A(f"s_cbranch_scc0 L_ad{n}")
                A(f"s_waitcnt vmcnt({d - 2})")
                A(f"L_ad{n}:")
        if opos and n in opos and "now" not in xp:
            for i, p in enumerate(opos):
                if p == n:
                    A(f"global_load_dwordx4 v[164:167], v161, s[24:25] offset:{1024 * i}")
        if mat == "K":
            if m0k[0] != t:
                m0k[0] = t
                A(f"s_add_u32 m0, s56, {4096 * (t % KRING)}")
            A(f"buffer_load_dwordx4 v{vKS[u]}, s[40:43], s10 offen offset:{1024 * u}{ntf} lds")
            if u == 3 and t < 7:
                A(f"s_xor_b32 s10, s10, {hex(toff(t + 1) ^ toff(t))}")
        else:
            r = VR[t % VRING] + 4 * u
            A(f"buffer_load_dwordx4 v[{r}:{r + 3}], v{39 if (split and u >= 2) else vV}, s[44:47], s11 offen offset:{1024 * u}{ntf}")
            if u == 3 and t < 7:
                A(f"s_xor_b32 s11, s11, {hex(toff(t + 1) ^ toff(t))}")
        ids[seq[n]] = vm.issue()
        if n == qpos:
            A(f"v_mov_b32 v39, {L_F}\nds_write_b32 v39, v39 offset:8")
        if n == vpos and dup == "auto" and vpos:
            A("ds_write_b32 v39, v39 offset:20")

    def consts():
        A("; -- per-lane constants")
        A("v_and_b32 v24, 3, v0")
        A("v_mov_b32 v25, 0x0c0c0c0c")
        for k, (lo, e0) in enumerate(((0x0100, 0), (0x0100, 2), (0x0302, 0), (0x0302, 2))):
            A(f"v_mov_b32 v26, {hex(0x0c0c0000 | lo)}")
            A(f"v_mov_b32 v27, {hex((lo << 16) | 0x0c0c)}")
            A(f"v_cmp_eq_u32 vcc, {e0}, v24")
            A(f"v_cndmask_b32 v{SEL[k]}, v25, v26, vcc")
            A(f"v_cmp_eq_u32 vcc, {e0 + 1}, v24")
            A(f"v_cndmask_b32 v{SEL[k]}, v{SEL[k]}, v27, vcc")
        for z in (0, 1, 4, 5, 8, 9):
            A(f"v_mov_b32 v{BB + z}, 0")
        A(f"s_mov_b32 s12, {hex(LOG2E)}")
        if boost and not dyn and not dyn2:
            A("s_getreg_b32 s48, hwreg(HW_REG_XCC_ID, 0, 4)")
        A("v_bfe_u32 v25, v0, 2, 2")
        A("v_lshrrev_b32 v26, 4, v0")
        A("v_lshlrev_b32 v27, 8, v25")
        A(f"v_lshl_add_u32 v{vT2}, v26, 4, v27")
        A("v_lshl_add_u32 v25, v24, 2, v25")
        A("v_and_b32 v27, 15, v0")
        A("v_xor_b32 v26, v26, v27")
        A("v_lshlrev_b32 v26, 4, v26")
        A("v_lshl_add_u32 v26, v25, 8, v26")
        for u in range(4):
            A(f"v_xor_b32 v{vKR[u]}, {64 * u}, v26")
            A(f"v_add_u32 v{vKR[u]}, s56, v{vKR[u]}")
        roles()
        A("s_lshl_b32 s58, s3, 12")
        if dlate:
            A(f"s_min_u32 s4, s15, 111\ns_lshl_b32 s4, s4, 3\ns_add_u32 s4, s4, s3\ns_lshl_b32 s4, s4, 11\nv_add_u32 v162, s4, v{vV}")
        A("s_lshl_b32 s4, s13, 3\ns_add_u32 s4, s4, s3\ns_lshl_b32 s4, s4, 15\ns_lshl_b32 s5, s14, 7\ns_add_u32 s4, s4, s5")
        A("v_lshrrev_b32 v160, 3, v0\nv_and_b32 v161, 7, v0\nv_lshlrev_b32 v160, 10, v160\nv_lshl_add_u32 v160, v161, 4, v160\nv_add_u32 v160, s4, v160")
        A(f"s_lshl_b32 s4, s61, 5\ns_add_u32 s4, s4, s7\ns_lshl_b32 s4, s4, 3\ns_add_u32 s4, s4, s3\ns_lshl_b32 s4, s4, 11\nv_add_u32 v161, s4, v{vV}")

    def late(pos="c"):
        ops = [i for i in range(4) if lp[i] == pos]
        if "now" in xp or not ops:
            return
        if not dlast:
            A("s_cmp_lt_u32 s7, 14")
            A(f"s_cbranch_scc0 L_late_b{pos}")
        for i in (ops if not dlast else ()):
            if i < 2:
                A(f"s_add_u32 m0, s57, {L_W + 32768 + 1024 * i}")
                A(f"global_load_lds_dwordx4 v162, s[32:33]{wntf}")
                if i == 0:
                    A("v_add_u32 v162, 1024, v162")
            else:
                A("s_mov_b64 exec, 1")
                A("global_load_dword v163, v162, s[32:33]")
        if not dlast:
            A(f"s_branch L_late_done{pos}")
        A(f"L_late_b{pos}:")
        A("s_cmp_ge_u32 s7, 16")
        A("s_cselect_b64 exec, -1, 1")
        for i in ops:
            A(f"s_add_u32 m0, s58, {L_W + 1024 * i}")
            A(f"global_load_lds_dwordx4 v160, s[24:25] offset:0{wntf}")
            vm.issue()
            if i < 3:
                A("v_add_u32 v160, 0x2000, v160")
        A(f"L_late_done{pos}:")
        A("s_mov_b64 exec, -1")
        m0k[0] = None

    T0 = 8 - NB
    SS = {t: tuple(range(144 + 4 * (t - T0), 148 + 4 * (t - T0))) for t in range(T0, 8)}
    PKS = {t: (128 + 2 * (t - T0), 129 + 2 * (t - T0)) for t in range(T0, 8)}

    def scores(t, S):
        W(ids[("K", t, 3)])
        k = KF
        for u in range(4):
            A(f"ds_read_b128 v[{k + 4 * u}:{k + 4 * u + 3}], v{vKR[u]} offset:{4096 * (t % KRING)}")
        for u in range(4):
            c = "0" if u == 0 else f"v[{S[0]}:{S[3]}]"
            A("s_waitcnt lgkmcnt(0)" if stamps else f"s_waitcnt lgkmcnt({3 - u})")
            A(f"v_mfma_f32_16x16x32_bf16 v[{S[0]}:{S[3]}], v[{k + 4 * u}:{k + 4 * u + 3}], v[{QF + 4 * u}:{QF + 4 * u + 3}], {c}")
        for rnd in range(2):
            A(f"v_cvt_pk_bf16_f32 v{T[0]}, v{S[0]}, v{S[1]}")
            A(f"v_cvt_pk_bf16_f32 v{T[1]}, v{S[2]}, v{S[3]}")
            A(f"v_lshlrev_b32 v{S[0]}, 16, v{T[0]}")
            A(f"v_and_b32 v{S[1]}, 0xffff0000, v{T[0]}")
            A(f"v_lshlrev_b32 v{S[2]}, 16, v{T[1]}")
            A(f"v_and_b32 v{S[3]}, 0xffff0000, v{T[1]}")
            if rnd == 0:
                for r in range(4):
                    A(f"v_mul_f32 v{S[r]}, {hex(SCALE)}, v{S[r]}")
        if t == 0:
            A(f"v_max_f32 v{vM}, v{S[0]}, v{S[1]}")
            A(f"v_max3_f32 v{vM}, v{vM}, v{S[2]}, v{S[3]}")
        else:
            A(f"v_max3_f32 v{vM}, v{vM}, v{S[0]}, v{S[1]}")
            A(f"v_max3_f32 v{vM}, v{vM}, v{S[2]}, v{S[3]}")

    def probs(tiles, first):
        if not first:
            A(f"v_mov_b32 v{vAl}, v{vML}")
        A(f"v_mul_f32 v{vML}, s12, v{vM}")
        if not first:
            A(f"v_sub_f32 v{vAl}, v{vAl}, v{vML}")
            A(f"v_exp_f32 v{vAl}, v{vAl}")
        for S, P in tiles:
            for r in range(4):
                A(f"v_fma_f32 v{S[r]}, v{S[r]}, s12, -v{vML}")
        for S, P in tiles:
            for r in range(4):
                A(f"v_exp_f32 v{S[r]}, v{S[r]}")
        if not first:
            for a in range(8):
                A(f"v_mul_f32 v{ACC[0] + a}, v{vAl}, v{ACC[0] + a}")
            A(f"v_mul_f32 v{vL}, v{vL}, v{vAl}")
        for i, (S, P) in enumerate(tiles):
            A(f"v_add_f32 v{T[0]}, v{S[0]}, v{S[1]}")
            A(f"v_add_f32 v{T[1]}, v{S[2]}, v{S[3]}")
            A(f"v_cvt_pk_bf16_f32 v{P[0]}, v{S[0]}, v{S[1]}")
            A(f"v_cvt_pk_bf16_f32 v{P[1]}, v{S[2]}, v{S[3]}")
            if first and i == 0:
                A(f"v_add_f32 v{vL}, v{T[0]}, v{T[1]}")
            else:
                A(f"v_add_f32 v{T[0]}, v{T[0]}, v{T[1]}")
                A(f"v_add_f32 v{vL}, v{vL}, v{T[0]}")

    def qk(t):
        A(f"; -- scores and probabilities of round {t}")
        scores(t, S)
        xrow(vM, T[0], "max")
        probs([(S, PK)], t == 0)

    def sc(t):
        A(f"; -- scores of round {t} (the last rounds share one softmax step)")
        scores(t, SS[t])
        if t == 7:
            xrow(vM, T[0], "max")
            A("v_bfe_u32 v26, v0, 2, 2\nv_lshlrev_b32 v26, 5, v26\ns_lshl_b32 s4, s3, 2\nv_add_u32 v27, s4, v26")
            A("s_mov_b64 exec, 0x1111")
            A(f"ds_write_b32 v27, v{vM} offset:{L_M}")
            A("s_mov_b64 exec, -1")

    def fin1(t):
        A("; -- workgroup-wide maximum, probabilities of the last rounds")
        A("s_waitcnt lgkmcnt(0)")
        A("s_barrier")
        k0 = KF
        A(f"ds_read_b128 v[{k0}:{k0 + 3}], v26 offset:{L_M}")
        A(f"ds_read_b128 v[{k0 + 4}:{k0 + 7}], v26 offset:{L_M + 16}")
        A("s_waitcnt lgkmcnt(0)")
        A(f"v_max3_f32 v{vM}, v{k0}, v{k0 + 1}, v{k0 + 2}")
        A(f"v_max3_f32 v{vM}, v{vM}, v{k0 + 3}, v{k0 + 4}")
        A(f"v_max3_f32 v{vM}, v{vM}, v{k0 + 5}, v{k0 + 6}")
        A(f"v_max_f32 v{vM}, v{vM}, v{k0 + 7}")
        probs([(SS[t], PKS[t]) for t in range(T0, 8)], False)
        xrow(vL, T[0])
        A("s_mov_b64 exec, 0x1111")
        A(f"ds_write_b32 v27, v{vL} offset:{L_L}")
        A("s_mov_b64 exec, -1")

    def fin2(t):
        A("; -- workgroup-wide sum: 1/sum and log2(sum of exps)")
        A("s_and_b32 s4, s3, 1\ns_lshl_b32 s4, s4, 6\nv_lshrrev_b32 v26, 5, v0\nv_lshl_add_u32 v26, v26, 5, s4")
        A(f"v_mov_b32 v27, {L_F}")
        A("s_waitcnt lgkmcnt(0)")
        A("s_barrier")
        A(f"ds_read_b128 v[64:67], v26 offset:{L_M}")
        A(f"ds_read_b128 v[68:71], v26 offset:{L_M + 16}")
        A(f"ds_read_b128 v[72:75], v26 offset:{L_L}")
        A(f"ds_read_b128 v[76:79], v26 offset:{L_L + 16}")
        A("ds_read2_b32 v[26:27], v27 offset0:4 offset1:1")
        A("s_waitcnt lgkmcnt(0)")
        A("v_max3_f32 v64, v64, v65, v66\nv_max3_f32 v64, v64, v67, v68\nv_max3_f32 v64, v64, v69, v70\nv_max_f32 v64, v64, v71")
        for i in range(4):
            A(f"v_add_f32 v{72 + i}, v{72 + i}, v{76 + i}")
        A("v_add_f32 v72, v72, v73\nv_add_f32 v74, v74, v75\nv_add_f32 v72, v72, v74")
        A("v_readfirstlane_b32 s62, v27")
        A("v_readfirstlane_b32 s49, v26")
        A("v_log_f32 v73, v72")
        A(f"v_rcp_f32 v{vAl}, v72")
        A(f"v_mul_f32 v64, s12, v64")
        A(f"v_add_f32 v{vL}, v64, v73")
        A(f"v_and_b32 v{vM}, 3, v0\nv_add_u32 v{vM}, 0x07060501, v{vM}")
        A("s_mov_b32 s50, 0x88888888\ns_mov_b32 s51, 0x88888888")

    def fin3(t):
        A("; -- addresses for stage A")
        A(f"v_add_u32 v64, s56, v{vV}")
        A("v_and_b32 v65, 15, v0\nv_bfe_u32 v66, v0, 4, 1\nv_mul_u32_u24 v66, 272, v66\nv_add_u32 v65, v65, v66")
        A("v_lshrrev_b32 v66, 5, v0\nv_lshl_add_u32 v65, v66, 4, v65\ns_lshl_b32 s4, s3, 7")
        A(f"s_add_u32 s4, s4, {L_K}\nv_lshl_add_u32 v65, v65, 2, s4")
        A(f"v_add_u32 v66, {4 * KRING * 4096}, v65")
        p1slot("s4")
        A("s_lshl_b32 s5, s3, 8\ns_add_u32 s5, s5, s4\nv_lshl_add_u32 v67, v0, 2, s5")

    def prepB():
        A("; -- addresses for stage B")
        A(f"s_lshl_b32 s4, s61, 5\nv_lshrrev_b32 v57, 3, v0\nv_add_u32 v57, s4, v57\nv_mul_u32_u24 v57, {P1_STRIDE}, v57")
        if b4:
            A("s_and_b32 s4, s13, 1\ns_lshl_b32 s4, s4, 1\ns_bfe_u32 s5, s3, 0x10001\ns_add_u32 s4, s4, s5")
            A(f"s_and_b32 s5, s3, 1\ns_lshl_b32 s5, s5, 3\ns_add_u32 s4, s4, s5\ns_lshl_b32 s4, s4, 7\ns_add_u32 s4, s4, {WS_P1}")
        else:
            A("s_and_b32 s4, s13, 1\ns_lshl_b32 s4, s4, 1\ns_lshr_b32 s5, s3, 2\ns_add_u32 s4, s4, s5")
            A(f"s_and_b32 s5, s3, 3\ns_lshl_b32 s5, s5, 2\ns_add_u32 s4, s4, s5\ns_lshl_b32 s4, s4, 7\ns_add_u32 s4, s4, {WS_P1}")
        A("v_and_b32 v58, 7, v0\nv_lshl_add_u32 v57, v58, 4, v57\nv_add_u32 v48, s4, v57")
        for pi in range(1, 4):
            A(f"v_add_u32 v{48 + pi}, {8 * pi * P1_STRIDE}, v48")
        A("s_mov_b32 s52, 0x04000c0c\ns_mov_b32 s53, 0x0706000c")
        A("s_mov_b32 s54, 0xffff0000\ns_mov_b32 s55, 0xffff0000\ns_mov_b32 s8, 0\ns_mov_b32 s9, -1")
        sigma(57, 58)
        A("v_bfe_u32 v58, v0, 2, 2\nv_lshl_add_u32 v57, v57, 3, v58\nv_lshlrev_b32 v57, 7, v57")
        A(f"v_and_b32 v58, 3, v0\nv_lshl_add_u32 v57, v58, 3, v57\ns_lshl_b32 s4, s3, {13 if b4 else 12}\nv_add_u32 v52, s4, v57")
        A("v_lshlrev_b32 v54, 2, v0\ns_lshl_b32 s4, s3, 8\nv_add_u32 v53, s4, v54")
        rowoff("s4", "s13", "s5")
        A(f"s_lshl_b32 s5, s14, 8\ns_add_u32 s4, s4, s5\ns_add_u32 s4, s4, {WS_P2}")
        if dup is not None:
            mycopy("s5")
            A("s_xor_b32 s5, s5, 0x2000\ns_add_u32 s4, s4, s5")
        A("v_add_u32 v55, s4, v54")
        A("v_xor_b32 v56, 0x2000, v55")

    def fin4(t):
        if bprep:
            prepB()

    def pv(t, last=False):
        v = VR[t % VRING]
        P = PKS.get(t, PK)

        def perm(i):
            b = BB + 2 + 4 * (i & 1)
            A(f"v_perm_b32 v{b}, v{P[i >> 1]}, v{P[i >> 1]}, v{SEL[2 * (i & 1)]}")
            A(f"v_perm_b32 v{b + 1}, v{P[i >> 1]}, v{P[i >> 1]}, v{SEL[2 * (i & 1) + 1]}")
        perm(0)
        perm(1)
        if not last:
            W(ids[("V", t, 3)])
        for i in range(4):
            if last:
                W(ids[("V", t, i)])
            b = BB + 2 + 4 * (i & 1)
            for h in range(2):
                c = "0" if (t == 0 and i == 0) else f"v[{ACC[h]}:{ACC[h] + 3}]"
                bb = b if h == 0 else b - 2
                A(f"v_mfma_f32_16x16x32_bf16 v[{ACC[h]}:{ACC[h] + 3}], v[{v + 4 * i}:{v + 4 * i + 3}], v[{bb}:{bb + 3}], {c}")
            if i < 2:
                perm(i + 2)

    for n in range(NPRE):
        load(n)
        if n == 3:
            A("s_mov_b32 s40, s18\ns_and_b32 s41, s19, 0xffff" if vfirst else "s_mov_b32 s44, s20\ns_and_b32 s45, s21, 0xffff\ns_mov_b32 s46, 0x4000000\ns_mov_b32 s47, 0x20000")
            if sclr == "after" and "noclear" not in xp and clrpos == 3 and not wqfirst:
                clears()
                clearstore()
            if kfirst:
                wqaddr()
                wqload()
                m0k[0] = None
            if sclr == "after" and "noclear" not in xp and clrpos == 3 and wqfirst:
                clears()
                clearstore()
            if kfirst:
                A("s_barrier")
        if n == clrpos and clrpos > 3 and sclr == "after" and "noclear" not in xp:
            clears(72)
            clearstore(72)
        if n == max(Dinit - 1, 3):
            consts()
        if n == bpos:
            stamp_at(13)
            A(f"v_mov_b32 v24, {L_F}\nv_mov_b32 v25, 1\ns_mov_b64 exec, 1\nds_add_u32 v24, v25 offset:12\ns_mov_b64 exec, -1")
        if n == qpos and False:
            A(f"v_mov_b32 v24, {L_F}\nds_write_b32 v24, v24 offset:8")
    stamp_at(1)
    ldswait("L_waitq", 0)
    if dyn2:
        A("v_readfirstlane_b32 s48, v25")
    if adapt:
        lo, hi, lsites, tsites = adapt
        A("v_readfirstlane_b32 s9, v25")
        A(f"v_cmp_lt_u32 vcc, {hi}, v25")
        if stamps:
            A("s_mov_b32 s88, s9")
    stamp_at(2)
    for u in range(4):
        A(f"ds_read_b128 v[{QF + 4 * u}:{QF + 4 * u + 3}], v{vT2} offset:{L_Q + 64 * u}")
    A("s_waitcnt lgkmcnt(0)")
    blocks = []
    for t in range(T0):
        blocks += [(qk, t, ("K", t, 3)), (pv, t, ("V", t, 3))]
    for t in range(T0, 8):
        blocks += [(sc, t, ("K", t, 3))]
    blocks += [(fin1, 7, ("K", 7, 3)), (fin2, 7, ("K", 7, 3)), (fin3, 7, ("K", 7, 3)), (fin4, 7, ("K", 7, 3))]
    for t in range(T0, 7):
        blocks += [(pv, t, ("V", t, 3))]
    bi = 0
    for n in range(NPRE, len(seq)):
        mat, t, u = seq[n]
        needb = {"K": 2 * (t - KRING) + 1, "V": 2 * (t - VRING) + 2}[mat]
        while bi < needb:
            blocks[bi][0](blocks[bi][1])
            bi += 1
        load(n)
        late(n)
        if n < len(seq) - 1 and bi < len(blocks) and blocks[bi][2] in ids and ids[blocks[bi][2]] <= vm.done:
            blocks[bi][0](blocks[bi][1])
            bi += 1
    while bi < len(blocks) and blocks[bi][0] is not pv:
        blocks[bi][0](blocks[bi][1])
        bi += 1
    if bar1c:
        A("s_barrier")
        late()
    else:
        late()
        A("s_barrier")
    while bi < len(blocks):
        blocks[bi][0](blocks[bi][1])
        bi += 1
    stamp_at(3)
    pv(7, last=True)
    stamp_at(4)
    A(f"ds_write_b128 v64, v[{ACC[0]}:{ACC[0] + 3}]")
    A(f"ds_write_b128 v64, v[{ACC[1]}:{ACC[1] + 3}] offset:1088")
    A("s_waitcnt lgkmcnt(0)")
    A("s_barrier")
    R0 = 72
    for i in range(8):
        A(f"ds_read_b32 v{R0 + i}, v{65 + (i >> 2)} offset:{KRING * 4096 * (i & 3)}")
    A("s_cmp_eq_u32 s62, 1")
    A("s_waitcnt lgkmcnt(0)")
    for i in range(2):
        A(f"v_pk_add_f32 v[{R0 + 2 * i}:{R0 + 2 * i + 1}], v[{R0 + 2 * i}:{R0 + 2 * i + 1}], v[{R0 + 4 + 2 * i}:{R0 + 5 + 2 * i}]")
    A(f"v_pk_add_f32 v[{R0}:{R0 + 1}], v[{R0}:{R0 + 1}], v[{R0 + 2}:{R0 + 3}]")
    A(f"v_add_f32 v{R0}, v{R0}, v{R0 + 1}")
    A(f"v_mul_f32 v{R0}, v{R0}, v{vAl}")
    A(f"v_mov_b32_dpp v{R0 + 1}, v{R0} quad_perm:[3,3,3,3] {FULL}")
    A(f"v_perm_b32 v{R0}, v{R0}, v{R0 + 1}, v{vM}")
    A(f"v_cndmask_b32 v{R0}, v{R0}, v{vL}, s[50:51]")
    A("s_cbranch_scc0 L_pubfar")
    A(f"global_store_dword v67, v{R0}, s[38:39]")
    A("L_published:")
    for _ in range(pad2):
        A("s_nop 0")
    stamp_at(5)
    A("s_cmp_lt_u32 s7, 14")
    A("s_cbranch_scc1 L_ffn")
    A("s_cmp_lt_u32 s7, 16")
    A("s_cbranch_scc1 L_final")
    if not bprep:
        prepB()
    NKK = 2 if b4 else 1
    WB = 80
    D0 = 120
    TP = 152
    WW = 160
    AA = 112
    AC = 32
    loads = [f"global_load_dwordx4 v[{D0 + 16 * kk + 4 * pi}:{D0 + 16 * kk + 4 * pi + 3}], v{48 + pi}, s[38:39] offset:{512 * kk} sc1" for pi in range(4) for kk in range(NKK)]

    def bweights():
        A(f"s_waitcnt vmcnt({4 * NKK})")
        if b4:
            A("s_barrier")
        for kk in range(NKK):
            for tau in range(4):
                for t in range(2):
                    r = WB + 16 * kk + 4 * tau + 2 * t
                    if kk == 1 and tau == 3 and t == 0:
                        A("s_waitcnt lgkmcnt(0)")
                    A(f"ds_read_b64_tr_b16 v[{r}:{r + 1}], v52 offset:{L_W + 4096 * kk + 512 * t + 32 * tau}")
    A("s_barrier")
    if b4:
        A("s_cmp_lt_u32 s3, 4")
        A("s_cbranch_scc1 L_bgo")
        A("s_waitcnt vmcnt(0)")
        A("s_barrier")
        A("s_branch L_bdone")
        A("L_bgo:")
    stamp_at(8)
    poll("L_poll1", loads, range(D0, D0 + 16 * NKK), 31, between=bweights)
    stamp_at(6)
    pm1 = [f"v_perm_b32 v{TP + 4 * kk + pi}, v{D0 + 16 * kk + 4 * pi + 2}, v{D0 + 16 * kk + 4 * pi + 1}, s52" for kk in range(NKK) for pi in range(4)]
    A(f"v_max3_f32 v16, v{D0 + 3}, v{D0 + 7}, v{D0 + 11}\nv_max_f32 v16, v16, v{D0 + 15}")
    A(pm1.pop(0))
    A(pm1.pop(0))
    A(f"v_max_f32_dpp v16, v16, v16 row_ror:8 {FULL}")
    A("v_mov_b32 v17, v16")
    A(pm1.pop(0))
    A(pm1.pop(0))
    A("v_permlane16_swap_b32 v16, v17")
    A("v_max_f32 v16, v16, v17")
    A("v_mov_b32 v17, v16")
    for x in pm1[:2]:
        A(x)
    A("v_permlane32_swap_b32 v16, v17")
    A("v_max_f32 v16, v16, v17")
    for pi in range(4):
        A(f"v_sub_f32 v{WW + pi}, v{D0 + 4 * pi + 3}, v16")
    for x in pm1[2:]:
        A(x)
    for pi in range(4):
        A(f"v_exp_f32 v{WW + pi}, v{WW + pi}")
        for kk in range(NKK):
            A(f"v_perm_b32 v{D0 + 16 * kk + 4 * pi + 3}, v{TP + 4 * kk + pi}, v{D0 + 16 * kk + 4 * pi}, s53")
    A(f"v_pk_add_f32 v[16:17], v[{WW}:{WW + 1}], v[{WW + 2}:{WW + 3}]")
    for kk in range(NKK):
        for hlf in range(2):
            r = D0 + 16 * kk + 2 * hlf
            A(f"v_pk_mul_f32 v[{r}:{r + 1}], v[{WW}:{WW + 1}], v[{r}:{r + 1}] op_sel_hi:[0,1]")
    A("v_add_f32 v16, v16, v17")
    for pi in range(1, 4):
        w = f"v[{WW + (pi & 2)}:{WW + 1 + (pi & 2)}]"
        sel = "op_sel:[1,0,0] op_sel_hi:[1,1,1]" if pi & 1 else "op_sel_hi:[0,1,1]"
        for kk in range(NKK):
            for hlf in range(2):
                r = D0 + 16 * kk + 2 * hlf
                A(f"v_pk_fma_f32 v[{r}:{r + 1}], {w}, v[{r + 4 * pi}:{r + 4 * pi + 1}], v[{r}:{r + 1}] {sel}")
        if pi == 1:
            A(f"v_add_f32_dpp v16, v16, v16 row_ror:8 {FULL}")
    A("v_mov_b32 v17, v16")
    for kk in range(NKK):
        d = D0 + 16 * kk
        A(f"v_permlane32_swap_b32 v{d}, v{d + 1}\nv_permlane32_swap_b32 v{d + 2}, v{d + 3}")
    A("v_permlane32_swap_b32 v16, v17")
    A("v_add_f32 v16, v16, v17")
    A("v_mov_b32 v17, v16")
    for kk in range(NKK):
        d = D0 + 16 * kk
        A(f"v_add_f32 v{d}, v{d}, v{d + 1}\nv_add_f32 v{d + 2}, v{d + 2}, v{d + 3}")
    A("v_permlane16_swap_b32 v16, v17")
    A("v_add_f32 v16, v16, v17")
    for kk in range(NKK):
        d = D0 + 16 * kk
        A(f"v_permlane16_swap_b32 v{d}, v{d + 2}")
    A("v_rcp_f32 v16, v16")
    for kk in range(NKK):
        d = D0 + 16 * kk
        A(f"v_add_f32 v{d}, v{d}, v{d + 2}")
    for kk in range(NKK):
        d = D0 + 16 * kk
        A(f"v_add_f32_dpp v{d}, v{d}, v{d} row_ror:8 {FULL}")
    for kk in range(NKK):
        d = D0 + 16 * kk
        A(f"v_mul_f32 v{d}, v{d}, v16")
    for kk in range(NKK):
        d = D0 + 16 * kk
        A(f"v_mov_b32_dpp v{d + 1}, v{d} quad_perm:[1,0,3,2] {FULL}")
    for kk in range(NKK):
        d = D0 + 16 * kk
        A(f"v_cvt_pk_bf16_f32 v{d}, v{d}, v{d + 1}")
    for kk in range(NKK):
        for e in range(4):
            A(f"v_mov_b32_dpp v{AA + 4 * kk + e}, v{D0 + 16 * kk} row_newbcast:{2 * e} {FULL}")
    A("s_waitcnt lgkmcnt(0)")
    for kk in range(NKK):
        for tau in range(4):
            c = "0" if kk == 0 else f"v[{AC + 4 * tau}:{AC + 4 * tau + 3}]"
            b = WB + 16 * kk + 4 * tau
            A(f"v_mfma_f32_16x16x32_bf16 v[{AC + 4 * tau}:{AC + 4 * tau + 3}], v[{AA + 4 * kk}:{AA + 4 * kk + 3}], v[{b}:{b + 3}], {c}")
    A(f"v_cndmask_b32 v{AC}, v{AC}, v{AC + 4}, s[54:55]")
    A(f"v_cndmask_b32 v{AC + 8}, v{AC + 8}, v{AC + 12}, s[54:55]")
    A(f"v_cndmask_b32 v{AC}, v{AC}, v{AC + 8}, s[8:9]")
    A(f"ds_write_b32 v53, v{AC} offset:{L_B}")
    A("s_cmp_eq_u32 s3, 0")
    A("s_waitcnt lgkmcnt(0)")
    A("s_barrier")
    A("s_cbranch_scc0 L_bdone")
    NW = 8 // NKK
    for i in range(NW):
        A(f"ds_read_b32 v{120 + i}, v54 offset:{L_B + 256 * i}")
    A("s_waitcnt lgkmcnt(0)")
    if NW == 8:
        for i in range(2):
            A(f"v_pk_add_f32 v[{120 + 2 * i}:{121 + 2 * i}], v[{120 + 2 * i}:{121 + 2 * i}], v[{124 + 2 * i}:{125 + 2 * i}]")
    A("v_pk_add_f32 v[120:121], v[120:121], v[122:123]")
    A("v_add_f32 v120, v120, v121")
    store_quad(120, 55, fl=st2, addr2=None if dup is None else 56)
    A("L_bdone:")
    if wb:
        A("s_cmp_eq_u32 s3, 1\ns_cbranch_scc0 L_nowb\ns_cmp_eq_u32 s7, 16\ns_cbranch_scc0 L_nowb")
        A("buffer_wbl2 sc1")
        A("L_nowb:")
    stamp_at(7)
    stamp_store()
    A("s_endpgm")
    A("L_pubfar:")
    A("s_nop 0")
    store_quad(R0, 67)
    A("s_branch L_published")
    A("L_ffn:")
    vCol = 65
    A("v_and_b32 v17, 7, v0\nv_bfe_u32 v16, v0, 3, 2\nv_lshl_add_u32 v16, v17, 2, v16")
    A("v_and_b32 v18, 32, v0\nv_add_u32 v16, v16, v18")
    A(f"s_lshl_b32 s4, s3, 6\nv_add_u32 v{vCol}, s4, v16")
    A(f"v_lshlrev_b32 v29, 1, v{vCol}")
    A(f"ds_read_u16_d16_hi v64, v29 offset:{L_X}")
    A(f"s_lshl_b32 s4, s3, 8\ns_add_u32 s4, s4, {WS_P2}")
    if dup is None:
        A("v_lshrrev_b32 v18, 3, v0\nv_lshlrev_b32 v19, 12, v18\nv_lshl_add_u32 v16, v17, 4, v19\nv_add_u32 v20, s4, v16")
    else:
        mycopy("s5")
        A("s_add_u32 s4, s4, s5")
        A("v_lshrrev_b32 v18, 4, v0\nv_lshlrev_b32 v19, 14, v18\nv_bfe_u32 v18, v0, 3, 1\nv_lshl_add_u32 v19, v18, 12, v19\nv_lshl_add_u32 v16, v17, 4, v19\nv_add_u32 v20, s4, v16")
    A("v_lshrrev_b32 v18, 4, v0\nv_and_b32 v17, 15, v0")
    rowoff("s4", "s15", "s5", dup3)
    A(f"s_add_u32 s4, s4, {WS_P3}\ns_lshl_b32 s5, s3, {9 if c4 else 8}\ns_and_b32 s5, s5, 0x7ff\ns_add_u32 s4, s4, s5")
    if dup is not None and dup3:
        mycopy("s5")
        A("s_xor_b32 s5, s5, 0x2000\ns_add_u32 s4, s4, s5")
    A(f"v_lshl_add_u32 v22, v0, {3 if c4 else 2}, s4")
    if dup is not None and dup3:
        A("v_xor_b32 v21, 0x2000, v22")
    A("s_lshl_b32 s5, s3, 4\nv_mov_b32 v23, s5")
    A("v_and_b32 v24, 7, v0\nv_lshlrev_b32 v24, 4, v24")
    A("s_mov_b32 s63, 0x42800000\ns_mov_b32 s54, 0xffff0000\ns_mov_b32 s55, 0xffff0000")
    A("v_mov_b32 v67, 0x3b000000\nv_mov_b32 v68, 0x3727c5ac\nv_mov_b32 v69, 0xbdd2d3e8\nv_mov_b32 v70, 0xc0135761")
    for i in range(4):
        A(f"v_mov_b32 v{72 + i}, 0x3f803f80")
    A("s_lshl_b32 s4, s3, 7\nv_lshl_add_u32 v25, v18, 4, s4")
    A("v_lshlrev_b32 v27, 2, v0\ns_lshl_b32 s5, s3, 8\nv_add_u32 v26, s5, v27")
    A("v_lshl_add_u32 v28, v0, 1, s4")
    if cfast:
        A("v_bfe_u32 v16, v0, 2, 2\nv_lshlrev_b32 v16, 2, v16\nv_bfe_u32 v19, v0, 4, 1\nv_lshl_add_u32 v16, v19, 1, v16")
        A("v_and_b32 v19, 32, v0\nv_add_u32 v16, v16, v19\nv_lshlrev_b32 v16, 5, v16")
    else:
        A("v_bfe_u32 v16, v0, 2, 2\nv_lshl_add_u32 v16, v18, 3, v16\nv_lshlrev_b32 v16, 5, v16")
    A("v_and_b32 v17, 3, v0\nv_lshl_add_u32 v16, v17, 3, v16\nv_add_u32 v16, s57, v16")
    GW = 88
    DW = 104

    DW2 = 144

    def dreads():
        if c4:
            A("s_lshl_b32 s5, s3, 8\nv_lshl_add_u32 v28, v0, 2, s5")
            A("v_and_b32 v28, 0x3ff, v28")
            for r in range(16):
                if r == 14:
                    A("s_waitcnt lgkmcnt(0)")
                A(f"ds_read_b32 v{DW + r}, v28 offset:{L_W + 32768 + 1024 * r}")
            A("s_waitcnt lgkmcnt(0)")
            for r in range(16):
                A(f"v_and_b32 v{40 + r}, 0xffff0000, v{DW + r}")
                A(f"v_lshlrev_b32 v{DW + r}, 16, v{DW + r}")
            return
        for r in range(16):
            if r == 14:
                A("s_waitcnt lgkmcnt(0)")
            A(f"ds_read_u16_d16_hi v{DW + r}, v28 offset:{L_W + 32768 + 1024 * r}")
    if dsplit and not dlast:
        if dlate:
            A("s_waitcnt vmcnt(1)")
        A("s_barrier")
        dreads()
        A("s_waitcnt lgkmcnt(0)")
    A("s_barrier")
    stamp_at(11)

    def cweights():
        for mat in range(2):
            for kap in range(2):
                for t in range(2):
                    r = GW + 8 * mat + 4 * kap + 2 * t
                    A(f"ds_read_b64_tr_b16 v[{r}:{r + 1}], v16 offset:{L_W + 16384 * mat + ((32 * kap + 512 * t) if cfast else (1024 * kap + 128 * t))}")
        if cfast or csd:
            stamp_at(13)
            return
        colsums()

    def colsums():
        A("s_waitcnt lgkmcnt(0)")
        A(f"v_mfma_f32_16x16x32_bf16 v[140:143], v[72:75], v[{GW}:{GW + 3}], 0")
        A(f"v_mfma_f32_16x16x32_bf16 v[144:147], v[72:75], v[{GW + 8}:{GW + 11}], 0")
        A(f"v_mfma_f32_16x16x32_bf16 v[140:143], v[72:75], v[{GW + 4}:{GW + 7}], v[140:143]")
        A(f"v_mfma_f32_16x16x32_bf16 v[144:147], v[72:75], v[{GW + 12}:{GW + 15}], v[144:147]")
        if not (cfast or csd):
            A("v_cndmask_b32 v66, v140, v144, s[54:55]")
            stamp_at(13)
    loads = [f"global_load_dwordx4 v[{120 + 4 * i}:{123 + 4 * i}], v20, s[38:39] offset:{2048 * (i >> 1) + 128 * (i & 1)} {ld2}" for i in range(4)]
    poll("L_poll2", loads, range(120, 136), 31, between=cweights)
    stamp_at(6)
    if cfast or csd:
        n0 = len(C)
        colsums()
        cs = C[n0:]
        del C[n0:]
        A(cs[0])
    for e in range(4):
        if cfast or csd:
            A(cs[1 + e])
        A(f"v_pk_add_f32 v[{120 + 2 * e}:{121 + 2 * e}], v[{120 + 2 * e}:{121 + 2 * e}], v[{128 + 2 * e}:{129 + 2 * e}]")
    for e in range(4):
        A(f"v_permlane32_swap_b32 v{120 + e}, v{124 + e}")
    A("v_pk_add_f32 v[120:121], v[120:121], v[124:125]\nv_pk_add_f32 v[122:123], v[122:123], v[126:127]")
    A("v_permlane16_swap_b32 v120, v122\nv_permlane16_swap_b32 v121, v123")
    A("v_pk_add_f32 v[122:123], v[120:121], v[122:123]")
    A("v_add_f32_dpp v120, v122, v122 row_ror:8 row_mask:0xf bank_mask:0x3")
    A("v_add_f32_dpp v120, v123, v123 row_ror:8 row_mask:0xf bank_mask:0xc")
    A("v_add_f32 v120, v120, v64")
    if cfast:
        A(f"v_mov_b32_dpp v122, v120 quad_perm:[1,0,3,2] {FULL}")
        A("v_cndmask_b32 v66, v140, v144, s[54:55]")
        A("v_cvt_pk_bf16_f32 v121, v120, v122")
        A("v_lshlrev_b32 v120, 16, v121")
        for e in range(8):
            A(f"v_mov_b32_dpp v{124 + e}, v121 row_newbcast:{2 * e} {FULL}")
            if e == 0:
                A("v_readfirstlane_b32 s4, v120")
    else:
        A("v_cvt_pk_bf16_f32 v121, v120, v120")
        A(f"ds_write_b16 v29, v121 offset:{L_HN}")
        A("v_lshlrev_b32 v120, 16, v121")
        if csd:
            A("v_cndmask_b32 v66, v140, v144, s[54:55]")
        A("v_readfirstlane_b32 s4, v120")
        A("s_waitcnt lgkmcnt(0)")
        A(f"ds_read_b128 v[124:127], v25 offset:{L_HN}")
        A(f"ds_read_b128 v[128:131], v25 offset:{L_HN + 64}")
    A("v_subrev_f32 v148, s4, v120")
    A("v_mov_b32 v150, s4")
    A("v_mul_f32 v149, v148, v148")
    steps = [f"{m} {FULL}" for m in ("row_shr:1", "row_shr:2", "row_shr:4", "row_shr:8")] + ["row_bcast:15 row_mask:0xa bank_mask:0xf", "row_bcast:31 row_mask:0xc bank_mask:0xf"]
    mf = [f"v_mfma_f32_16x16x32_bf16 v[132:135], v[124:127], v[{GW}:{GW + 3}], 0",
          f"v_mfma_f32_16x16x32_bf16 v[136:139], v[124:127], v[{GW + 8}:{GW + 11}], 0",
          f"v_mfma_f32_16x16x32_bf16 v[132:135], v[128:131], v[{GW + 4}:{GW + 7}], v[132:135]",
          f"v_mfma_f32_16x16x32_bf16 v[136:139], v[128:131], v[{GW + 12}:{GW + 15}], v[136:139]"]
    for k, m in enumerate(steps):
        A(f"v_add_f32_dpp v148, v148, v148 {m}")
        A(f"v_add_f32_dpp v149, v149, v149 {m}")
        if k == (0 if cfast else 1):
            if not cfast:
                A("s_waitcnt lgkmcnt(0)")
            stamp_at(8)
            A(mf[0])
            A(mf[1])
        if k == (1 if cfast else 2):
            A(mf[2])
            A(mf[3])
    A("s_mov_b32 exec_lo, 0\ns_mov_b32 exec_hi, 0x80000000")
    A(f"ds_write_b96 v23, v[148:150] offset:{L_H}")
    A("s_mov_b32 exec_lo, -1\ns_mov_b32 exec_hi, 0")
    A("v_cndmask_b32 v66, v132, v136, s[54:55]")
    A("s_mov_b64 exec, -1")
    A(f"ds_write_b32 v26, v66 offset:{L_B}")
    A("s_waitcnt lgkmcnt(0)")
    stamp_at(9)
    if c4:
        A("s_cmp_lt_u32 s3, 4")
    A("s_barrier")
    if c4:
        A("s_cbranch_scc0 L_cdone")
    A(f"ds_read_b96 v[124:126], v24 offset:{L_H}")
    for i in range(8):
        A(f"ds_read_b32 v{128 + i}, v27 offset:{L_B + 256 * i}")
    nd = 0
    if dlast:
        nd = 6
        for r in range(nd):
            A(f"ds_read_u16_d16_hi v{DW + r}, v28 offset:{L_W + 32768 + 1024 * r}")
    A("s_waitcnt lgkmcnt(0)" if stamps else f"s_waitcnt lgkmcnt({8 + nd})")
    stamp_at(10)
    x8 = ("quad_perm:[1,0,3,2]", "quad_perm:[2,3,0,1]", "row_half_mirror")
    A("v_fma_f32 v127, v126, s63, v124")
    A("v_add_f32 v124, v124, v124")
    A("s_waitcnt lgkmcnt(0)" if stamps else f"s_waitcnt lgkmcnt({4 + nd})")
    A(f"v_add_f32_dpp v127, v127, v127 {x8[0]} {FULL}")
    A("v_pk_add_f32 v[128:129], v[128:129], v[130:131]")
    A("s_waitcnt lgkmcnt(0)" if stamps else f"s_waitcnt lgkmcnt({nd})")
    if dlast:
        for r in range(nd, 15):
            A(f"ds_read_u16_d16_hi v{DW + r}, v28 offset:{L_W + 32768 + 1024 * r}")
    A(f"v_add_f32_dpp v127, v127, v127 {x8[1]} {FULL}")
    A("v_pk_add_f32 v[132:133], v[132:133], v[134:135]")
    A("v_pk_add_f32 v[128:129], v[128:129], v[132:133]")
    A(f"v_add_f32_dpp v127, v127, v127 {x8[2]} {FULL}")
    A("v_add_f32 v120, v128, v129")
    A("v_add_f32 v121, v128, v129")
    A("v_mul_f32 v127, 0x3b000000, v127")
    A("v_sub_f32 v126, v127, v126")
    A("v_permlane32_swap_b32 v120, v121")
    A("v_fma_f32 v124, v126, s63, -v124")
    A("v_fma_f32 v125, v126, v124, v125")
    A("v_fma_f32 v122, -v127, v121, v120")
    A("v_fma_f32 v121, -v127, v121, v120")
    A(f"v_add_f32_dpp v125, v125, v125 {x8[0]} {FULL}")
    A("v_mov_b32 v120, v122")
    A(f"v_add_f32_dpp v125, v125, v125 {x8[1]} {FULL}")
    A("v_permlane16_swap_b32 v120, v121")
    A(f"v_add_f32_dpp v125, v125, v125 {x8[2]} {FULL}")
    if dlast:
        A("s_waitcnt lgkmcnt(0)")
        A(f"ds_read_u16_d16_hi v{DW + 15}, v28 offset:{L_W + 32768 + 1024 * 15}")
    A("v_fma_f32 v125, v125, v67, v68")
    A("v_rsq_f32 v125, v125")
    A("v_mul_f32 v120, v120, v125")
    A("v_mul_f32 v121, v121, v125")
    A("v_mul_f32 v122, v120, v120")
    A("v_mul_f32 v121, v120, v121")
    A("v_fma_f32 v122, v122, v69, v70")
    A("v_mul_f32 v122, v122, v120")
    A("v_exp_f32 v122, v122")
    A("v_add_f32 v122, 1.0, v122")
    A("v_rcp_f32 v122, v122")
    A("v_mul_f32 v120, v121, v122")
    if dlast:
        A("s_waitcnt lgkmcnt(0)")
    if c4:
        for r in range(16):
            op = "mul" if r < 2 else "fmac"
            A(f"v_{op}_f32_dpp v{124 + 2 * (r & 1)}, v120, v{DW + r} row_newbcast:{r} {FULL}")
            A(f"v_{op}_f32_dpp v{125 + 2 * (r & 1)}, v120, v{40 + r} row_newbcast:{r} {FULL}")
        A("v_pk_add_f32 v[124:125], v[124:125], v[126:127]")
        A(f"v_mov_b32_dpp v126, v124 quad_perm:[1,1,3,3] {FULL}")
        A(f"v_mov_b32_dpp v127, v125 quad_perm:[1,1,3,3] {FULL}")
        A("s_mov_b32 exec_lo, 0x55555555\ns_mov_b32 exec_hi, 0x55555555")
        A("global_store_dwordx4 v22, v[124:127], s[38:39] sc1")
        if dup is not None and dup3:
            A("global_store_dwordx4 v21, v[124:127], s[38:39] sc1")
        A("s_mov_b64 exec, -1")
    else:
        for r in range(16):
            op = "mul" if r < 4 else "fmac"
            A(f"v_{op}_f32_dpp v{124 + (r & 3)}, v120, v{DW + r} row_newbcast:{r} {FULL}")
        A("v_pk_add_f32 v[124:125], v[124:125], v[126:127]")
        A("v_add_f32 v124, v124, v125")
        store_quad(124, 22, fl=st3, addr2=21 if (dup is not None and dup3) else None)
    A("L_cdone:")
    stamp_at(7)
    stamp_store()
    A("s_endpgm")
    A("L_final:")
    A("s_barrier")
    A("s_sub_u32 s15, s7, 14\ns_lshl_b32 s4, s6, 1\ns_add_u32 s15, s15, s4")
    A("v_and_b32 v16, 7, v0\nv_lshrrev_b32 v17, 3, v0\nv_lshlrev_b32 v17, 11, v17\nv_lshl_add_u32 v17, v16, 4, v17")
    A("v_and_b32 v22, 31, v0\ns_lshl_b32 s4, s15, 6\nv_lshl_add_u32 v18, v22, 1, s4")
    A("v_lshlrev_b32 v22, 2, v22")
    sigma(23, 24)
    A("v_lshl_add_u32 v23, v16, 2, v23\nv_lshl_add_u32 v19, v23, 1, s4")
    A(f"ds_read_u16_d16_hi v19, v19 offset:{L_X}")
    A("s_lshl_b32 s4, s3, 7\nv_lshl_add_u32 v23, v23, 2, s4")
    if dup is None:
        A(f"s_lshl_b32 s4, s3, 15\ns_add_u32 s4, s4, {WS_P3}")
        A("s_cmp_eq_u32 s3, 7")
        A(f"s_cselect_b32 s4, {WS_P2}, s4")
        A("s_lshl_b32 s5, s15, 7\ns_add_u32 s4, s4, s5")
        A("v_add_u32 v20, s4, v17\nv_add_u32 v21, 0x4000, v20")
    else:
        A("v_lshrrev_b32 v24, 5, v0\nv_lshlrev_b32 v24, 13, v24")
        mycopy("s8")
        A(f"s_lshl_b32 s4, s3, {16 if dup3 else 15}\ns_add_u32 s4, s4, {WS_P3}")
        A("s_cmp_eq_u32 s3, 7")
        A(f"s_cselect_b32 s4, {WS_P2}, s4")
        if dup3:
            A("s_add_u32 s4, s4, s8\ns_mov_b32 s9, 0x8000")
        else:
            A("s_cselect_b32 s8, s8, 0\ns_movk_i32 s9, 0x4000\ns_cselect_b32 s9, 0x8000, s9\ns_cselect_b32 s5, -1, 0\ns_add_u32 s4, s4, s8\nv_and_b32 v24, s5, v24")
        A("s_lshl_b32 s5, s15, 7\ns_add_u32 s4, s4, s5")
        A("v_add3_u32 v20, v17, v24, s4\nv_add_u32 v21, s9, v20")
    loads = [f"global_load_dwordx4 v[{120 + 4 * i}:{123 + 4 * i}], v{20 + i}, s[38:39] {ld3}" for i in range(2)]
    if dsleep is not None:
        A("s_cmp_eq_u32 s3, 7")
        A("s_cbranch_scc1 L_dgo")
        A("s_barrier")
        A(f"s_sleep {dsleep}")
        A("L_dgo:")
    poll("L_poll3", loads, range(120, 128), 16)
    if dsleep is not None:
        A("s_cmp_eq_u32 s3, 7")
        A("s_cbranch_scc0 L_dgo2")
        A("s_barrier")
        A("L_dgo2:")
    stamp_at(6)
    for e in range(4):
        A(f"v_add_f32 v{120 + e}, v{120 + e}, v{124 + e}")
    scatter4(120)
    A(f"v_add_f32_dpp v120, v120, v120 row_ror:8 {FULL}")
    A("s_cmp_eq_u32 s3, 7")
    A("s_cbranch_scc0 L_dnoh")
    A("s_waitcnt lgkmcnt(0)")
    A("v_add_f32 v120, v120, v19")
    rbf(120)
    A("L_dnoh:")
    A("s_mov_b32 exec_lo, 0x00ff00ff\ns_mov_b32 exec_hi, 0x00ff00ff")
    A(f"ds_write_b32 v23, v120 offset:{L_B}")
    A("s_mov_b64 exec, -1")
    A("s_cmp_eq_u32 s3, 0")
    A("s_waitcnt lgkmcnt(0)")
    A("s_barrier")
    A("s_cbranch_scc0 L_ddone")
    for i in range(8):
        A(f"ds_read_b32 v{120 + i}, v22 offset:{L_B + 128 * i}")
    A("s_waitcnt lgkmcnt(0)")
    for i in range(2):
        A(f"v_pk_add_f32 v[{120 + 2 * i}:{121 + 2 * i}], v[{120 + 2 * i}:{121 + 2 * i}], v[{124 + 2 * i}:{125 + 2 * i}]")
    A("v_pk_add_f32 v[120:121], v[120:121], v[122:123]")
    A("v_add_f32 v120, v120, v121")
    if perturb:
        import struct
        kind, val = perturb
        h = hex(struct.unpack("<I", struct.pack("<f", val))[0])
        if kind == "add": A(f"v_add_f32 v120, {h}, v120")
        if kind == "mul": A(f"v_mul_f32 v120, {h}, v120")
        if kind == "one":
            A("s_cmp_eq_u32 s15, 0\ns_cselect_b32 s4, 1, 0\ns_mov_b32 s5, 0\ns_mov_b64 exec, s[4:5]")
            A(f"v_add_f32 v120, {h}, v120\ns_mov_b64 exec, -1")
    A(f"v_mov_b32_dpp v121, v120 quad_perm:[1,0,3,2] {FULL}")
    A("v_cvt_pk_bf16_f32 v120, v120, v121")
    A("s_mov_b64 exec, 0x55555555")
    A("global_store_dword v18, v120, s[34:35]" + (" " + outfl if outfl else ""))
    stamp_at(7)
    if enc:
        a, b, mult = enc
        A("s_waitcnt lgkmcnt(0)")
        if a == "fix":
            A(f"s_mov_b32 s78, s64\ns_mov_b32 s4, {mult}")
        else:
            A(f"s_sub_u32 s4, s{64 + 2 * a}, s{64 + 2 * b}\ns_mul_i32 s4, s4, {mult}\ns_min_u32 s4, s4, 40000")
        A("L_enc:\ns_memrealtime s[8:9]\ns_waitcnt lgkmcnt(0)\ns_sub_u32 s5, s8, s78\ns_cmp_lt_u32 s5, s4\ns_cbranch_scc1 L_enc")
    A("L_ddone:")
    stamp_at(7)
    stamp_store()
    A("s_endpgm")

    for _ in range(pad3):
        A("s_nop 0")
    A("L_service:")
    A("s_setprio 3")
    A(f"v_mov_b32 v98, {L_F}\nv_mov_b32 v99, 0")
    A("ds_write_b32 v98, v99")
    A("ds_write_b32 v98, v99 offset:8")
    A("ds_write_b32 v98, v99 offset:12")
    A("ds_write_b32 v98, v99 offset:20")
    if dyn:
        A("ds_write_b32 v98, v99 offset:24")
    if not qearly:
        A("s_waitcnt lgkmcnt(0)")
        A("s_barrier")
    for i in range(4):
        A(f"v_mov_b32 v{100 + i}, -1")
    roles()
    p1slot("s4")
    A("v_add_u32 v104, s4, v9")
    A("s_cmp_eq_u32 s7, 0")
    A("s_waitcnt lgkmcnt(0)")
    if "svcoff" in xp:
        A("s_barrier\ns_branch L_svcbar" if qearly else "s_branch L_svcbar")
    A("s_cbranch_scc0 L_qcleared")
    A(f"s_lshl_b32 s10, s60, 13\nv_add_u32 v3, s10, v9\nv_add_u32 v8, 0x1000, v3")
    for i in range(8):
        A(f"global_store_dwordx4 v{3 if i < 4 else 8}, v[100:103], s[38:39] offset:{1024 * (i & 3)} sc1")
    A(f"s_lshl_b32 s10, s60, 7\ns_add_u32 s10, s10, {WS_F}\nv_add_u32 v3, s10, v9")
    A(f"s_lshl_b32 s10, s6, 7\ns_add_u32 s10, s10, {WS_G}\nv_add_u32 v8, s10, v9")
    A("s_mov_b64 exec, 0xff")
    A("global_store_dwordx4 v3, v[100:103], s[38:39] sc1")
    A("global_store_dwordx4 v8, v[100:103], s[38:39] sc1")
    if adapt or rankpre:
        A(f"global_store_dwordx4 v8, v[100:103], s[38:39] offset:{WS_R - WS_G - 4096 + 4096 - 0 if WS_R - WS_G < 4096 else 0} sc1" if False else f"v_add_u32 v8, {WS_R - WS_G}, v8\nglobal_store_dwordx4 v8, v[100:103], s[38:39] sc1")
    if dup == "auto" and vpos:
        A(f"v_add_u32 v8, {WS_V - WS_R}, v8\nglobal_store_dwordx4 v8, v[100:103], s[38:39] sc1")
        if dyn or dyn2:
            A(f"v_add_u32 v8, {WS_A - WS_V}, v8\nglobal_store_dwordx4 v8, v[100:103], s[38:39] sc1")
    A("s_mov_b64 exec, -1")
    A("L_qcleared:")
    if qearly:
        A("s_barrier")
    nyoung = 0
    if "noclear" not in xp and sclr is None:
        A("global_store_dwordx4 v104, v[100:103], s[38:39] sc1")
        A("global_store_dwordx4 v104, v[100:103], s[38:39] offset:1024 sc1")
        nyoung += 2
        A("s_cmp_lt_u32 s7, 14")
        A("s_cbranch_scc0 L_noclr3")
        A(f"s_lshl_b32 s4, s15, 11\ns_add_u32 s4, s4, {WS_P3}\nv_add_u32 v105, s4, v9")
        A("global_store_dwordx4 v105, v[100:103], s[38:39] sc1")
        A("global_store_dwordx4 v105, v[100:103], s[38:39] offset:1024 sc1")
        A("L_noclr3:")
        A("s_cmp_ge_u32 s7, 16")
        A("s_cbranch_scc0 L_noclr2")
        A(f"s_lshl_b32 s4, s13, 11\ns_lshl_b32 s5, s14, 8\ns_add_u32 s4, s4, s5\ns_add_u32 s4, s4, {WS_P2}\nv_add_u32 v105, s4, v9")
        A("s_mov_b64 exec, 0xffff")
        A("global_store_dwordx4 v105, v[100:103], s[38:39] sc1")
        A("s_mov_b64 exec, -1")
        A("L_noclr2:")
    stamp_at(1)
    A("v_lshlrev_b32 v96, 5, v0")
    A("s_cmp_eq_u32 s7, 0")
    A("s_cbranch_scc0 L_noqflag")
    A("s_lshl_b32 s4, s60, 5\nv_mov_b32 v104, s4\nv_mov_b32 v105, 1")
    A(f"s_waitcnt vmcnt({4 if ('noclear' not in xp and sclr is None) else 0})")
    A("s_mov_b64 exec, 1")
    A("global_store_dword v104, v105, s[36:37] sc1")
    A("s_mov_b64 exec, -1")
    A("L_noqflag:")
    ldswait("L_waitwq", 12, 8)

    def firstlook():
        A("s_mov_b64 exec, 0xff")
        A("global_load_dword v97, v96, s[36:37] sc1")
        A("s_mov_b64 exec, -1")
    if qearly:
        firstlook()
    A(f"ds_read_b128 v[4:7], v9 offset:{L_X}")
    A("s_waitcnt lgkmcnt(0)")
    stamp_at(2)
    X = list(range(8, 16))
    X[1] = 3
    for i in range(4):
        A(f"v_lshlrev_b32 v{X[2 * i]}, 16, v{4 + i}")
        A(f"v_and_b32 v{X[2 * i + 1]}, 0xffff0000, v{4 + i}")
    ln_stats(X, 16, 17, 18, 19, 20, list(range(22, 30)))
    ln_apply(X, 16, 17, 18, list(range(22, 30)))
    for i in range(4):
        A(f"v_cvt_pk_bf16_f32 v{4 + i}, v{X[2 * i]}, v{X[2 * i + 1]}")
    A(f"ds_write_b128 v9, v[4:7] offset:{L_HN}")
    A(f"s_and_b32 s4, s7, {KS - 1}\ns_lshl_b32 s4, s4, {10 - KL}\nv_lshrrev_b32 v17, 4, v0\nv_lshl_add_u32 v16, v17, 4, s4")
    A("v_bfe_u32 v18, v0, 2, 2\nv_lshl_add_u32 v17, v17, 3, v18\nv_lshlrev_b32 v17, 7, v17\nv_and_b32 v18, 3, v0\nv_lshl_add_u32 v17, v18, 3, v17")
    A("s_waitcnt lgkmcnt(0)")
    NK = NQ // 4
    for k in range(NK):
        A(f"ds_read_b128 v[{32 + 4 * k}:{35 + 4 * k}], v16 offset:{L_HN + 64 * k}")
    stamp_at(3)
    if not qearly:
        firstlook()
    for k in range(NK):
        A("s_waitcnt lgkmcnt(0)")
        b = 64 + 16 * (k & 1)
        for tau in range(4):
            for t in range(2):
                r = b + 4 * tau + 2 * t
                A(f"ds_read_b64_tr_b16 v[{r}:{r + 1}], v17 offset:{L_W + 4096 * k + 512 * t + 32 * tau}")
        if k > 0:
            bp = 64 + 16 * ((k - 1) & 1)
            for tau in range(4):
                c = "0" if k == 1 else f"v[{112 + 4 * tau}:{115 + 4 * tau}]"
                A(f"v_mfma_f32_16x16x32_bf16 v[{112 + 4 * tau}:{115 + 4 * tau}], v[{28 + 4 * k}:{31 + 4 * k}], v[{bp + 4 * tau}:{bp + 4 * tau + 3}], {c}")
    A("s_waitcnt lgkmcnt(0)")
    for tau in range(4):
        A(f"v_mfma_f32_16x16x32_bf16 v[{112 + 4 * tau}:{115 + 4 * tau}], v[{28 + 4 * NK}:{31 + 4 * NK}], v[{80 + 4 * tau}:{83 + 4 * tau}], v[{112 + 4 * tau}:{115 + 4 * tau}]")
    A(f"s_lshl_b32 s4, s60, {11 + KL}\ns_and_b32 s5, s7, {KS - 1}\ns_lshl_b32 s5, s5, 11\ns_add_u32 s4, s4, s5\ns_lshr_b32 s5, s7, {KL}\ns_lshl_b32 s5, s5, 8\ns_add_u32 s4, s4, s5")
    A("v_lshl_add_u32 v17, v0, 2, s4")
    for tau in range(1, 4):
        A(f"v_mov_b32_dpp v112, v{112 + 4 * tau} quad_perm:[0,1,2,3] row_mask:{hex(1 << tau)} bank_mask:0xf")
    for i in (1, 2, 3):
        A(f"v_mov_b32_dpp v{112 + i}, v112 quad_perm:[{i},{i},{i},{i}] {FULL}")
    A("L_qdone:")
    A(f"s_lshl_b32 s4, s60, 5\ns_add_u32 s4, s4, s7\ns_lshl_b32 s4, s4, 2\ns_add_u32 s4, s4, {WS_F}\nv_mov_b32 v18, s4")
    A(f"s_lshl_b32 s4, s6, {11 + KL}\nv_add_u32 v19, s4, v9\nv_add_u32 v20, 0x1000, v19")
    A("s_getreg_b32 s62, hwreg(HW_REG_XCC_ID, 0, 4)\nv_mov_b32 v21, s62")
    A("s_lshl_b32 s4, 1, s60\ns_lshl_b32 s5, 1, s6\ns_or_b32 s4, s4, s5")
    if adapt or dyn2:
        A(f"s_add_u32 s5, s7, {qrot}\ns_and_b32 s5, s5, 7\ns_lshl_b32 s5, 1, s5\ns_or_b32 s4, s4, s5")
    A("s_mov_b32 s5, 0")
    stamp_at(4)
    if "svc1" in xp: A("s_branch L_svcbar2")
    A("L_pollf:")
    A("s_waitcnt vmcnt(0) lgkmcnt(0)")
    A("v_cmp_ne_u32 vcc, 1, v97")
    A("s_and_b32 s57, vcc_lo, s4")
    A("s_cbranch_scc0 L_pollf_ok")
    A(f"s_add_u32 s5, s5, 1\ns_cmp_lt_u32 s5, {SPIN_MAX}\ns_cbranch_scc0 L_pollf_ok")
    A("s_sleep 8")
    A("s_mov_b64 exec, 0xff")
    A("global_load_dword v97, v96, s[36:37] sc1")
    A("s_mov_b64 exec, -1")
    A("s_branch L_pollf")
    A("L_pollf_ok:")
    if KS == 2:
        A("s_cmp_lt_u32 s7, 16")
        A("s_cbranch_scc0 L_noqpub")
    A("s_mov_b32 exec_lo, 0x11111111\ns_mov_b32 exec_hi, 0x11111111")
    A("global_store_dwordx4 v17, v[112:115], s[38:39] sc1")
    A("L_noqpub:")
    A("s_mov_b64 exec, 1")
    A("global_store_dword v18, v21, s[38:39] sc1")
    A("s_mov_b64 exec, -1")
    stamp_at(5)
    if "svc2" in xp: A("s_branch L_svcbar2")
    if warm == "spread":
        A("s_getpc_b64 s[48:49]")
        A("L_pc:")
        A(f"s_sub_u32 s48, s48, L_pc-{NAME}_kernel\ns_subb_u32 s49, s49, 0")
        A(f"s_lshl_b32 s4, s7, 9\nv_lshl_add_u32 v2, v0, 3, s4\nv_min_u32 v2, L_codeend-{NAME}_kernel-8, v2")
        A("global_load_dwordx2 v[128:129], v2, s[48:49]")
    elif warm:
        if warm == "one":
            A("s_cmp_eq_u32 s7, 1")
            A("s_cbranch_scc0 L_nowarm")
        A("s_getpc_b64 s[48:49]")
        A("L_pc:")
        A(f"s_sub_u32 s48, s48, L_pc-{NAME}_kernel\ns_subb_u32 s49, s49, 0")
        A(f"s_mov_b32 s4, L_codeend-{NAME}_kernel-16\nv_mov_b32 v2, v9\ns_mov_b32 s5, 0")
        A("L_warm:")
        A("v_min_u32 v3, s4, v2")
        A("global_load_dwordx4 v[128:131], v3, s[48:49]")
        A("v_add_u32 v2, 1024, v2\ns_add_u32 s5, s5, 1024\ns_cmp_lt_u32 s5, s4\ns_cbranch_scc1 L_warm")
    if warm:
        A("L_nowarm:")
    if adapt:
        A(f"s_and_b32 s4, s7, 7\ns_lshl_b32 s4, s4, 7\ns_add_u32 s4, s4, {WS_R}\nv_mov_b32 v26, s4\nv_mov_b32 v27, 1")
    if dyn2:
        A(f"s_and_b32 s4, s7, 7\ns_lshl_b32 s4, s4, 7\ns_add_u32 s4, s4, {WS_A}\nv_mov_b32 v26, s4\nv_mov_b32 v27, 1")
    ldswait("L_waitpos", 8)
    if dyn2:
        A("s_mov_b64 exec, 1\nglobal_atomic_add v28, v26, v27, s[38:39] sc0 sc1\ns_mov_b64 exec, -1")
    if adapt:
        A("s_mov_b64 exec, 1")
        A("global_atomic_add v28, v26, v27, s[38:39] sc0 sc1")
        A("s_mov_b64 exec, -1")
    poll("L_pollq", [f"global_load_dwordx4 v[{32 + 4 * i}:{35 + 4 * i}], v{19 + (i >> 2)}, s[38:39] offset:{1024 * (i & 3)} sc1" for i in range(2 * KS)],
         range(32, 32 + 8 * KS), 16, slp=qsleep)
    stamp_at(6)
    for e in range(8):
        A(f"v_add_f32 v{32 + e}, v{32 + e}, v{40 + e}")
        if KS == 4:
            A(f"v_add_f32 v{48 + e}, v{48 + e}, v{56 + e}")
    if KS == 4:
        for e in range(8):
            A(f"v_add_f32 v{32 + e}, v{32 + e}, v{48 + e}")
    for e in range(4):
        A(f"v_cvt_pk_bf16_f32 v{40 + e}, v{32 + 2 * e}, v{33 + 2 * e}")
    A("v_lshlrev_b32 v16, 3, v0")
    A(f"ds_write_b64 v16, v[40:41] offset:{L_Q}")
    A(f"ds_write_b64 v16, v[42:43] offset:{L_Q + 512}")
    if dyn2:
        A(f"v_readfirstlane_b32 s4, v28\ns_and_b32 s5, s62, 1\ns_mul_i32 s5, s5, {dynodd}\ns_add_u32 s4, s4, s5\ns_add_u32 s4, s4, 1\ns_mov_b32 s5, 64")
        for thr, start in dyn2:
            A(f"s_cmp_ge_u32 s4, {thr}\ns_cselect_b32 s5, {start}, s5")
        A("v_mov_b32 v99, s5")
    elif adapt:
        A("v_readfirstlane_b32 s4, v28")
        A("s_add_u32 s4, s4, 2")
        A("v_mov_b32 v99, s4")
    else:
        A("v_mov_b32 v99, 1")
    A("s_waitcnt lgkmcnt(0)")
    A("ds_write_b32 v98, v99")
    stamp_at(7)
    if "svc4" in xp: A("s_branch L_svcbar2")
    A("s_mov_b32 s5, 0")
    A("L_pollf2:")
    A("s_mov_b64 exec, 0xff")
    A("global_load_dword v97, v96, s[36:37] sc1")
    A("s_waitcnt vmcnt(0)")
    A("v_cmp_ne_u32 vcc, 1, v97")
    A("s_mov_b64 exec, -1")
    A("s_cbranch_vccz L_pollf2_ok")
    A(f"s_add_u32 s5, s5, 1\ns_cmp_lt_u32 s5, {SPIN_MAX}\ns_cbranch_scc1 L_pollf2")
    A("L_pollf2_ok:")
    stamp_at(8)
    A(f"v_add_u32 v19, {WS_F}, v9")
    poll("L_pollall", ["global_load_dwordx4 v[32:35], v19, s[38:39] sc1"], range(32, 36), 16, slp=16)
    stamp_at(9)
    A("v_xor_b32 v32, v32, v21\nv_xor_b32 v33, v33, v21\nv_xor_b32 v34, v34, v21\nv_xor_b32 v35, v35, v21")
    A("v_or_b32 v32, v32, v33\nv_or3_b32 v32, v32, v34, v35")
    A("v_cmp_ne_u32 vcc, 0, v32")
    A("s_lshl_b32 s4, s60, 3\ns_lshr_b64 s[4:5], vcc, s4\ns_and_b32 s4, s4, 0xff")
    A("s_cselect_b32 s4, 0, 1" if local and "far" not in xp else "s_mov_b32 s4, 0")
    A("L_svcend:")
    A("s_mov_b32 s63, s4")
    if dup == "auto":
        A(f"s_andn2_b32 s8, s7, 4\ns_lshl_b32 s9, s6, 5\ns_add_u32 s8, s8, s9\ns_lshl_b32 s8, s8, 11\ns_and_b32 s9, s7, 4\ns_lshl_b32 s9, s9, 8")
        A(f"s_add_u32 s8, s8, s9\ns_add_u32 s8, s8, {WS_P1}\ns_add_u32 s12, s38, s8\ns_addc_u32 s13, s39, 0\ns_mov_b32 s10, 0")
        A("s_waitcnt lgkmcnt(0)")
        for t in range(ntr):
            A("s_mov_b32 s8, 0\ns_mov_b32 s9, 0")
            o0, o1 = 128 * t, 128 * t + 8192
            A(f"s_load_dword s9, s[12:13], {o1}\ns_load_dword s8, s[12:13], {o0}" if t & 1 else f"s_load_dword s8, s[12:13], {o0}\ns_load_dword s9, s[12:13], {o1}")
            A("s_waitcnt lgkmcnt(1)")
            A("s_sub_u32 s11, s9, s8")
            A("s_waitcnt lgkmcnt(0)")
            A("s_add_u32 s10, s10, s11")
        if vpos:
            A("s_cmp_eq_u32 s63, 1")
            A("s_cbranch_scc0 L_novote")
            A(f"s_lshl_b32 s8, s6, 7\ns_add_u32 s8, s8, {WS_V}\nv_and_b32 v16, 31, v0\nv_lshl_add_u32 v16, v16, 2, s8")
            A("s_lshl_b32 s9, s7, 2\ns_add_u32 s8, s8, s9\nv_mov_b32 v17, s8\ns_add_u32 s10, s10, 16\nv_mov_b32 v18, s10")
            A("s_mov_b64 exec, 1\nglobal_store_dword v17, v18, s[38:39]\ns_mov_b64 exec, -1")
            if dyn:
                A(f"s_and_b32 s8, s7, 7\ns_lshl_b32 s8, s8, 7\ns_add_u32 s8, s8, {WS_A}\nv_mov_b32 v17, s8\nv_mov_b32 v19, 1")
            ldswait("L_waitv", 20)
            if dyn:
                A("s_mov_b64 exec, 1\nglobal_atomic_add v20, v17, v19, s[38:39] sc0 sc1\ns_mov_b64 exec, -1")
            A("global_load_dword v18, v16, s[38:39] sc1")
            A("s_waitcnt vmcnt(0)")
            if dyn:
                A(f"v_readfirstlane_b32 s8, v20\ns_and_b32 s9, s62, 1\ns_mul_i32 s9, s9, {dynodd}\ns_add_u32 s8, s8, s9\ns_add_u32 s8, s8, 1\ns_cmp_ge_u32 s8, {dyn}\ns_cselect_b32 s8, 1, 0\nv_mov_b32 v20, s8")
                A("ds_write_b32 v98, v20 offset:24")
            A("v_cmp_lt_i32 vcc, 16, v18")
            A("s_bcnt1_i32_b64 s10, vcc")
            A("v_cmp_gt_u32 vcc, 16, v18")
            A("s_bcnt1_i32_b64 s8, vcc")
            A("s_sub_u32 s10, s10, s8")
            A("L_novote:")
        A("s_cmp_lt_i32 s10, 0\ns_cselect_b32 s10, 0x2000, 0\nv_mov_b32 v99, s10")
        A("ds_write_b32 v98, v99 offset:16")
        roles()
    A("v_mov_b32 v99, s63")
    A("ds_write_b32 v98, v99 offset:4")
    A(f"s_lshl_b32 s4, s6, 7\ns_add_u32 s4, s4, {WS_G}\nv_and_b32 v16, 31, v0\nv_lshl_add_u32 v16, v16, 2, s4")
    A("s_lshl_b32 s5, s7, 2\ns_add_u32 s4, s4, s5\nv_mov_b32 v17, s4\nv_mov_b32 v18, 0")
    A(f"s_and_b32 s4, s7, {0 if rankpre else 15}\ns_mul_i32 s4, s4, {32 * 3584}\ns_mul_i32 s5, s6, 448\ns_andn2_b32 s5, s5, 127\ns_add_u32 s4, s4, s5")
    A("v_lshrrev_b32 v21, 5, v0\nv_mul_u32_u24 v21, 3584, v21\nv_and_b32 v22, 31, v0\nv_lshl_add_u32 v21, v22, 4, v21\nv_add_u32 v21, s4, v21")
    if rankpre:
        A(f"s_lshl_b32 s4, s6, 7\ns_add_u32 s4, s4, {WS_R}\nv_mov_b32 v26, s4\nv_mov_b32 v27, 1")
        A("s_lshl_b32 s4, s7, 1\ns_sub_u32 s4, s4, 1\nv_mov_b32 v28, 0")
    A("v_lshrrev_b32 v22, 1, v0\nv_mul_u32_u24 v22, 3584, v22\nv_and_b32 v23, 1, v0\nv_lshl_add_u32 v22, v23, 4, v22\ns_lshl_b32 s4, s15, 5\nv_add_u32 v22, s4, v22")
    A("s_lshl_b32 s4, s15, 14\nv_add_u32 v23, s4, v9")
    A("s_waitcnt lgkmcnt(0)")
    A("s_barrier")
    A("s_barrier")
    A("s_barrier")
    assert gate and dsplit

    def wloop(label, n, lds, body):
        A(f"s_mov_b32 s5, {n}")
        if lds is not None:
            A(f"s_mov_b32 m0, {lds}")
        A(f"{label}:")
        body()
        A(f"s_sub_u32 s5, s5, 1\ns_cmp_lg_u32 s5, 0\ns_cbranch_scc1 {label}")

    def b_pre():
        A("global_load_dwordx4 v[32:35], v21, s[28:29]")
        A("global_load_dwordx4 v[32:35], v21, s[30:31]")
        A("v_add_u32 v21, 7168, v21")

    def b_down():
        A(f"global_load_lds_dwordx4 v23, s[32:33]{wntf}")
        A("v_add_u32 v23, 1024, v23\ns_add_u32 m0, m0, 1024")

    def b_gu():
        A("global_load_lds_dwordx4 v22, s[28:29]")
        A("s_add_u32 m0, m0, 16384")
        A("global_load_lds_dwordx4 v22, s[30:31]")
        A(f"v_add_u32 v22, {32 * 3584}, v22\ns_sub_u32 m0, m0, {16384 - 1024}")

    def only(cond, label, body):
        A(cond)
        A(f"s_cbranch_scc0 {label}")
        body()
        A(f"{label}:")
    after_pre = 0
    for k, step in enumerate(pm):
        if step in "SgG" and not gsync:
            continue
        if step in "PDU" and "now" in xp:
            continue
        if step == "D" and dlate and not dlast:
            continue
        if step == "S":
            def sig():
                A("s_mov_b64 exec, 1\nglobal_store_dword v17, v18, s[38:39]")
                if rankpre:
                    only("s_cmp_lt_u32 s7, 16", "L_norank", lambda: A("global_atomic_add v28, v26, v27, s[38:39] sc0 sc1"))
                A("s_mov_b64 exec, -1")
            only("s_cmp_eq_u32 s63, 1", "L_nosig", sig)
        elif step in "12":
            A("s_barrier")

        elif step == "g":
            only("s_cmp_eq_u32 s63, 1", f"L_nog{k}", lambda: A("global_load_dword v19, v16, s[38:39] sc1"))
        elif step == "G":
            def gwait():
                A("s_mov_b32 s5, 0")
                A("L_pollg:")
                A("s_waitcnt vmcnt(0)")
                A("v_cmp_eq_u32 vcc, -1, v19")
                if gmiss:
                    A(f"s_bcnt1_i32_b32 s4, vcc_lo\ns_cmp_le_u32 s4, {gmiss}\ns_cbranch_scc1 L_gok")
                else:
                    A("s_cbranch_vccz L_gok")
                A(f"s_add_u32 s5, s5, 1\ns_cmp_lt_u32 s5, {SPIN_MAX}\ns_cbranch_scc0 L_gok")
                A(f"s_sleep {gsleep}")
                A("global_load_dword v19, v16, s[38:39] sc1")
                A("s_branch L_pollg")
            only("s_cmp_eq_u32 s63, 1", "L_gok", gwait)
            stamp_at(10)
        elif step == "P":
            if pref and not rankpre:
                only("s_cmp_lt_u32 s7, 16", "L_nopre", lambda: wloop("L_wpre", 16, None, b_pre))
            if pref and rankpre:
                def pre():
                    A("s_waitcnt vmcnt(0)")
                    A("v_readfirstlane_b32 s8, v28")
                    A("s_add_u32 s8, s8, 1\ns_mul_i32 s9, s8, 3\ns_lshl_b32 s4, s8, 1\ns_add_u32 s4, s4, 8")
                    A("s_cmp_lt_u32 s8, 8\ns_cselect_b32 s9, s9, s4\ns_cselect_b32 s5, 24, 16")
                    A("s_cmp_lt_u32 s8, 12\ns_cselect_b32 s5, s5, 0")
                    A("s_lshl_b32 s4, s7, 1\ns_cmp_eq_u32 s63, 1\ns_cselect_b32 s9, s9, s4\ns_cselect_b32 s5, s5, 16")
                    A(f"s_mul_i32 s9, s9, {16 * 3584}\nv_add_u32 v21, s9, v21")
                    A("s_cmp_eq_u32 s5, 0\ns_cbranch_scc1 L_nopre")
                    A("L_wpre:")
                    b_pre()
                    A("s_sub_u32 s5, s5, 1\ns_cmp_lg_u32 s5, 0\ns_cbranch_scc1 L_wpre")
                    A("s_waitcnt vmcnt(30)")
                only("s_cmp_lt_u32 s7, 16", "L_nopre", pre)
            after_pre = 0
        elif step == "D":
            A("s_waitcnt vmcnt(46)")
            only("s_cmp_lt_u32 s7, 14", "L_nodown", lambda: wloop("L_wdown", 16, L_W + 32768, b_down))
            after_pre = 16
        elif step == "w":
            A(f"s_waitcnt vmcnt({after_pre})")
            stamp_at(11)
        elif step == "z":
            A(f"s_sleep {cdelay}")
        elif step == "U":
            only("s_cmp_lt_u32 s7, 14", "L_nogu", lambda: wloop("L_wgu", 16, L_W, b_gu))
    only("s_cmp_lt_u32 s7, 14", "L_wdone", lambda: A("s_waitcnt vmcnt(16)\ns_barrier" if dlast else "s_barrier" if dlate else "s_waitcnt vmcnt(32)\ns_barrier"))
    A("s_waitcnt vmcnt(0)")
    stamp_at(12)
    if stamps:
        A("s_waitcnt lgkmcnt(0)")
        for i in range(16):
            A(f"v_writelane_b32 v4, s{64 + 2 * i}, {i}")
        A(f"v_lshlrev_b32 v5, 2, v0\nds_write_b32 v5, v4 offset:{L_G}\ns_waitcnt lgkmcnt(0)")
    A("s_barrier")
    A("s_endpgm")
    if xp:
        A("L_svcbar:")
        A("L_svcbar2:")
        A("v_mov_b32 v99, 1")
        A("ds_write_b32 v98, v99")
        A("s_mov_b32 s4, 0")
        A("s_branch L_svcend")
    A("L_end:")
    A("s_endpgm")
    A("L_codeend:")

    if jitter is not None:
        import random
        rnd = random.Random(jitter)
        C2 = []
        k = 0
        for blk in C:
            for ln in blk.split("\n"):
                if ln.startswith(("s_barrier", "global_store", "global_atomic")) and rnd.random() < 0.7:
                    k += 1
                    C2.append(f"s_cselect_b32 s91, 1, 0\ns_mul_i32 s90, s2, {rnd.randrange(3, 99, 2)}\ns_add_u32 s90, s90, s3\ns_mul_i32 s90, s90, {rnd.randrange(1001, 99999, 2)}")
                    C2.append(f"s_lshr_b32 s90, s90, 5\ns_and_b32 s90, s90, {rnd.choice((3, 7, 15, 63))}\ns_cmp_eq_u32 s90, 1\ns_cbranch_scc0 L_jit{k}\ns_sleep {rnd.choice((2, 10, 40, 120))}\nL_jit{k}:\ns_cmp_eq_u32 s91, 1")
                C2.append(ln)
        C = C2
    body = fix(C)
    out = HEADER
    out += f"; @launch grid=(256,1,1) block=(576,1,1) lds={LDS_BYTES}\n"
    out += DOC.lstrip("\n")
    out += '.amdgcn_target "amdgcn-amd-amdhsa--gfx950"\n.text\n'
    out += f".globl {NAME}_kernel\n.p2align 8\n.type {NAME}_kernel,@function\n{NAME}_kernel:\n"
    out += "\n".join(("" if l.endswith(":") and not l.startswith(";") else "    ") + l for l in body) + "\n"
    out += f""".section .rodata,"a"
.p2align 6
.amdhsa_kernel {NAME}_kernel
  .amdhsa_next_free_vgpr 168
  .amdhsa_next_free_sgpr 96
  .amdhsa_accum_offset 168
  .amdhsa_group_segment_fixed_size 0
  .amdhsa_kernarg_size 96
  .amdhsa_user_sgpr_count 2
  .amdhsa_user_sgpr_kernarg_segment_ptr 1
  .amdhsa_system_sgpr_workgroup_id_x 1
  .amdhsa_float_denorm_mode_32 3
.end_amdhsa_kernel
"""
    return out


if __name__ == "__main__":
    cfg = eval("dict(" + (sys.argv[2] if len(sys.argv) > 2 else "") + ")")
    open(sys.argv[1], "w").write(gen(**cfg))
```
